```python
import torch

def _softmax(x, axis=-1):
    return torch.softmax(x, dim=axis)
def _gelu(x):
    return torch.nn.functional.gelu(x, approximate="tanh")
def _silu(x):
    return torch.nn.functional.silu(x)
def _sigmoid(x):
    return torch.sigmoid(x)
def _layernorm(x, axis=-1, eps=1e-5):
    m = x.mean(dim=axis, keepdim=True)
    v = x.var(dim=axis, keepdim=True, unbiased=False)
    return (x - m) / torch.sqrt(v + eps)
def _scatter_add(tgt, idx, src, axis=0):
    return tgt.clone().index_add_(axis, idx, src)
def _segment_sum(src, seg, n):
    out = torch.zeros((n,) + src.shape[1:], dtype=src.dtype)
    return out.index_add_(0, seg, src)
def _pad(x, pw):
    flat = tuple(v for pair in reversed(pw) for v in pair)
    return torch.nn.functional.pad(x, flat)

kernel_name = 'sequential_preLN__sliding_block__glu_gated_glu__prompt'

def setup_inputs():

    _w = (lambda a: (lambda t: t.to(torch.bfloat16) if t.is_floating_point() else t)(torch.as_tensor(a)))
    def _A_setup():
        B, S, D = 1, 2048, 512
        return {
            "x": _w((lambda *s: torch.randn(*s, dtype=torch.bfloat16) * 0.05)(B, S, D)),
            "wqkv": _w((lambda *s: torch.randn(*s, dtype=torch.bfloat16) * 0.05)(D, 3 * D)),
            "wo": _w((lambda *s: torch.randn(*s, dtype=torch.bfloat16) * 0.05)(D, D)),
        }
    _A_in = _A_setup()

    def _B_setup():
        B, S, D, F = 1, 2048, 512, 1376
        return {
            "x": _w((lambda *s: torch.randn(*s, dtype=torch.bfloat16) * 0.05)(B, S, D)),
            "w_gate": _w((lambda *s: torch.randn(*s, dtype=torch.bfloat16) * 0.05)(D, F)),
            "w_up": _w((lambda *s: torch.randn(*s, dtype=torch.bfloat16) * 0.05)(D, F)),
            "w_down": _w((lambda *s: torch.randn(*s, dtype=torch.bfloat16) * 0.05)(F, D)),
        }
    _B_in = _B_setup()

    return {
        "A_x": _A_in["x"],
        "A_wqkv": _A_in["wqkv"],
        "A_wo": _A_in["wo"],
        "B_x": _B_in["x"],
        "B_w_gate": _B_in["w_gate"],
        "B_w_up": _B_in["w_up"],
        "B_w_down": _B_in["w_down"],
    }

def reference(A_x, A_wqkv, A_wo, B_x, B_w_gate, B_w_up, B_w_down):
    def _A_ref(x, wqkv, wo):
        B, S, D = x.shape
        H = 32; Dh = D // H; W = 256
        qkv = (lambda x, *d: x.permute(*d))((x @ wqkv).reshape(B, S, 3, H, Dh), 2, 0, 3, 1, 4)
        q, k, v = qkv[0], qkv[1], qkv[2]
        scores = torch.einsum("bhqd,bhkd->bhqk", q, k) * (Dh ** -0.5)
        idx = torch.arange(S)
        mask = (idx[:, None] - idx[None, :] >= 0) & (idx[:, None] - idx[None, :] < W)
        scores = torch.where(mask[None, None], scores, -1e9)
        p = _softmax(scores, axis=-1)
        o = torch.einsum("bhqk,bhkd->bhqd", p, v)
        return (lambda x, *d: x.permute(*d))(o, 0, 2, 1, 3).reshape(B, S, D) @ wo

    def _B_ref(x, w_gate, w_up, w_down):
        g = torch.einsum("bsd,df->bsf", x, w_gate)
        u = torch.einsum("bsd,df->bsf", x, w_up)
        h = _sigmoid(g) * u
        return torch.einsum("bsf,fd->bsd", h, w_down)

    x = A_x
    h = x + _A_ref(_layernorm(x, axis=-1), A_wqkv, A_wo)
    h2 = h + _B_ref(_layernorm(h, axis=-1), B_w_gate, B_w_up, B_w_down)
    return h2
```

```python
import sys
NAME = "sequential_preLN__sliding_block__glu_gated_glu__prompt"
out = []
def E(s): out.append("    " + s)
def L(s): out.append(s + ":")
MB = 1 << 20
WS_Q, WS_K, WS_V, WS_O, WS_H, WS_HH = 0, 2*MB, 4*MB, 6*MB, 8*MB, 10*MB
LOG2E = 1.4426950408889634
import struct
def f2u(f): return struct.unpack("<I", struct.pack("<f", f))[0]

def prologue(name, nwg):
    out.append(".p2align 8"); out.append(f".globl {name}"); out.append(f".type {name},@function"); L(name)
    E(f"s_cmp_ge_u32 s2, {nwg}"); E(f"s_cbranch_scc1 {name}_done")
    E("s_load_dwordx16 s[16:31], s[0:1], 0"); E("s_load_dwordx4 s[32:35], s[0:1], 64")
    E("v_and_b32 v1, 63, v0")
    E("v_lshrrev_b32 v2, 6, v0")
    E("v_and_b32 v3, 31, v0")
    E("v_readfirstlane_b32 s3, v2")
    E("v_bfe_u32 v4, v0, 5, 1")
    E("s_waitcnt lgkmcnt(0)")
def epilogue_end(name):
    L(f"{name}_done"); E("s_endpgm")
def srd(d, base, off, size):
    if off >= 0:
        E(f"s_add_u32 s{d}, s{base}, {off}"); E(f"s_addc_u32 s{d+1}, s{base+1}, 0")
    else:
        E(f"s_sub_u32 s{d}, s{base}, {-off}"); E(f"s_subb_u32 s{d+1}, s{base+1}, 0")
    E(f"s_mov_b32 s{d+2}, {size}"); E(f"s_mov_b32 s{d+3}, 0x00020000")

VX, VW, ACC0, ACC1, VT = 16, 144, 176, 192, 208

def w_addr(perm, vdst):
    E("v_bfe_u32 v5, v0, 2, 2")
    E(f"v_lshlrev_b32 v6, {2 if perm else 3}, v4")
    E("v_add_u32 v5, v5, v6")
    E("v_lshlrev_b32 v5, 6, v5")
    E("v_bfe_u32 v6, v0, 4, 1")
    E("v_lshlrev_b32 v6, 5, v6")
    E("v_add_u32 v5, v5, v6")
    E("v_and_b32 v6, 3, v0")
    E("v_lshlrev_b32 v6, 3, v6")
    E(f"v_add_u32 v{vdst}, v5, v6")

def dma_setup(ldw):
    E("v_lshrrev_b32 v5, 2, v0"); E(f"s_mov_b32 s4, {ldw}"); E("v_mul_lo_u32 v5, v5, s4")
    E("v_and_b32 v6, 3, v0"); E("v_lshlrev_b32 v6, 4, v6"); E("v_add_u32 v7, v5, v6")
    E("s_lshl_b32 s5, s3, 10")
def dma_region(srdreg, scol, ldsbase, nj, ldw):
    E(f"s_mov_b32 s6, s{scol}"); E(f"s_add_u32 s7, s5, {ldsbase}")
    for j in range(nj):
        E("s_mov_b32 m0, s7");
        if j + 1 < nj: E("s_add_u32 s7, s7, 4096")
        else: E("s_nop 0")
        E(f"buffer_load_dwordx4 v7, s[{srdreg}:{srdreg+3}], s6 offen lds")
        if j + 1 < nj: E(f"s_add_u32 s6, s6, {64*ldw}")

def mfma_items(items, perm, swap_of, first_of):
    d2 = 512 if perm else 256
    n = len(items); D = 6
    def rd(i):
        va, off, _, _ = items[i]; w = VW + 4 * (i % 8)
        E(f"ds_read_b64_tr_b16 v[{w}:{w+1}], v{va} offset:{off}")
        E(f"ds_read_b64_tr_b16 v[{w+2}:{w+3}], v{va} offset:{off+d2}")
    for i in range(min(D, n)): rd(i)
    for i in range(n):
        va, off, x, acc = items[i][:4]; w = VW + 4 * (i % 8)
        E(f"s_waitcnt lgkmcnt({2*(min(i+D-1, n-1)-i)})")
        c = "0" if first_of(i) else f"v[{acc}:{acc+15}]"
        if swap_of(i): E(f"v_mfma_f32_32x32x16_bf16 v[{acc}:{acc+15}], v[{x}:{x+3}], v[{w}:{w+3}], {c}")
        else:          E(f"v_mfma_f32_32x32x16_bf16 v[{acc}:{acc+15}], v[{w}:{w+3}], v[{x}:{x+3}], {c}")
        if i + D < n: rd(i + D)
        yield i

def ln_regs(ndma):
    E("s_mov_b32 s8, 0x3f803f80")
    for q in range(4): E(f"v_mov_b32 v{VT+q}, 0"); E(f"v_mov_b32 v{VT+4+q}, 0")
    for g in range(4):
        E(f"s_waitcnt vmcnt({min(63, 24-8*g+ndma)})")
        for r in range(32*g, 32*g+32):
            E(f"v_dot2_f32_bf16 v{VT+(r&3)}, v{VX+r}, s8, v{VT+(r&3)}")
            E(f"v_dot2_f32_bf16 v{VT+4+(r&3)}, v{VX+r}, v{VX+r}, v{VT+4+(r&3)}")
    E(f"v_add_f32 v{VT}, v{VT}, v{VT+1}"); E(f"v_add_f32 v{VT+2}, v{VT+2}, v{VT+3}")
    E(f"v_add_f32 v{VT+4}, v{VT+4}, v{VT+5}"); E(f"v_add_f32 v{VT+6}, v{VT+6}, v{VT+7}")
    E(f"v_add_f32 v{VT}, v{VT}, v{VT+2}"); E(f"v_add_f32 v{VT+4}, v{VT+4}, v{VT+6}")
    E(f"v_mov_b32 v{VT+1}, v{VT}"); E(f"v_mov_b32 v{VT+5}, v{VT+4}")
    E("s_nop 1")
    E(f"v_permlane32_swap_b32 v{VT}, v{VT+1}"); E(f"v_permlane32_swap_b32 v{VT+4}, v{VT+5}")
    E("s_nop 1")
    E(f"v_add_f32 v{VT}, v{VT}, v{VT+1}"); E(f"v_add_f32 v{VT+4}, v{VT+4}, v{VT+5}")
    E(f"v_mul_f32 v{VT}, {f2u(1/512):#x}, v{VT}")
    E(f"v_mul_f32 v{VT+4}, {f2u(1/512):#x}, v{VT+4}")
    E(f"v_fma_f32 v{VT+4}, -v{VT}, v{VT}, v{VT+4}")
    E(f"v_max_f32 v{VT+4}, 0, v{VT+4}")
    E(f"v_add_f32 v{VT+4}, {f2u(1e-5):#x}, v{VT+4}")
    E(f"v_rsq_f32 v{VT+4}, v{VT+4}")
    E("s_nop 0")
    E(f"v_mul_f32 v{VT}, v{VT}, v{VT+4}")
    E(f"v_sub_f32 v{VT}, 0, v{VT}")
    for r in range(128):
        a, b = VT + 8 + 2 * (r & 3), VT + 9 + 2 * (r & 3)
        E(f"v_lshlrev_b32 v{a}, 16, v{VX+r}"); E(f"v_and_b32 v{b}, 0xffff0000, v{VX+r}")
        E(f"v_fma_f32 v{a}, v{a}, v{VT+4}, v{VT}"); E(f"v_fma_f32 v{b}, v{b}, v{VT+4}, v{VT}")
        E(f"v_cvt_pk_bf16_f32 v{VX+r}, v{a}, v{b}")

def load_x(srdreg, ld, nsteps, base=VX):
    E("s_lshl_b32 s10, s3, 5"); E("s_add_u32 s10, s10, s9")
    E("v_add_u32 v9, s10, v3"); E(f"s_mov_b32 s4, {ld}"); E("v_mul_lo_u32 v8, v9, s4")
    E("v_lshlrev_b32 v5, 4, v4"); E("v_add_u32 v8, v8, v5")
    for s in range(nsteps):
        E(f"buffer_load_dwordx4 v[{base+4*s}:{base+4*s+3}], v8, s[{srdreg}:{srdreg+3}], 0 offen offset:{32*s}")
def pack(acc, dst):
    for i in range(8): E(f"v_cvt_pk_bf16_f32 v{dst+i}, v{acc+2*i}, v{acc+2*i+1}")

kernels = []
def k1():
    n = "k1_qkv_kernel"; kernels.append((n, 256, 98304)); prologue(n, 256)
    E("s_lshr_b32 s9, s2, 4"); E("s_lshl_b32 s9, s9, 7")
    E("s_and_b32 s11, s2, 15"); E("s_mul_i32 s11, s11, 3")
    srd(40, 16, 0, 2*MB); srd(44, 18, 0, 512*3072); srd(48, 34, 0, 6*MB)
    load_x(40, 1024, 32)
    dma_setup(3072)
    for j in range(3):
        E(f"s_add_u32 s12, s11, {j}"); E("s_lshl_b32 s12, s12, 6")
        dma_region(44, 12, j*32768, 8, 3072)
    w_addr(False, 10)
    E("v_lshlrev_b32 v11, 5, v9"); E("v_lshlrev_b32 v5, 4, v4"); E("v_add_u32 v11, v11, v5")
    E("v_lshlrev_b32 v12, 12, v3"); E("v_lshlrev_b32 v5, 4, v4"); E("v_add_u32 v12, v12, v5")
    E("s_lshl_b32 s13, s10, 1"); E("v_add_u32 v12, s13, v12")
    ln_regs(24)
    E("s_waitcnt vmcnt(0)"); E("s_barrier")
    for j in range(3):
        E(f"v_add_u32 v13, {j*32768}, v10")
        E(f"s_add_u32 s12, s11, {j}"); E("s_cmp_ge_u32 s12, 32"); E(f"s_cbranch_scc1 {n}_v{j}")
        for sw in (False, True):
            if sw: L(f"{n}_v{j}")
            items = [(13, 1024*s, VX+4*s, ACC0) for s in range(32)]
            for _ in mfma_items(items, False, lambda i: sw, lambda i: i == 0): pass
            E("s_nop 15"); pack(ACC0, VT)
            if not sw:
                E("s_lshr_b32 s14, s12, 4"); E("s_lshl_b32 s14, s14, 21"); E("s_and_b32 s15, s12, 15"); E("s_lshl_b32 s15, s15, 17")
                E("s_add_u32 s14, s14, s15"); E("s_add_u32 s15, s14, 65536")
                E(f"buffer_store_dwordx4 v[{VT}:{VT+3}], v11, s[48:51], s14 offen")
                E(f"buffer_store_dwordx4 v[{VT+4}:{VT+7}], v11, s[48:51], s15 offen")
                E(f"s_branch {n}_e{j}")
            else:
                E("s_sub_u32 s14, s12, 32"); E("s_lshl_b32 s14, s14, 17"); E(f"s_add_u32 s14, s14, {WS_V}")
                E(f"buffer_store_dwordx4 v[{VT}:{VT+3}], v12, s[48:51], s14 offen")
                E(f"buffer_store_dwordx4 v[{VT+4}:{VT+7}], v12, s[48:51], s14 offen offset:32")
        L(f"{n}_e{j}"); E("s_nop 1")
    epilogue_end(n)

def k2():
    n = "k2_attn_kernel"; kernels.append((n, 512, 0)); prologue(n, 512)
    Q, KV, S, O = 16, 20, 96, 240
    E("s_lshr_b32 s9, s2, 3"); E("s_lshl_b32 s9, s9, 5")
    E("s_and_b32 s11, s2, 7"); E("s_lshl_b32 s11, s11, 2"); E("s_add_u32 s11, s11, s3")
    srd(40, 34, WS_Q, 2*MB); srd(44, 34, WS_K - 8192, 2*MB + 8192); srd(48, 34, WS_V - 512, 2*MB + 512); srd(52, 34, WS_O, 2*MB)
    E("s_lshl_b32 s12, s11, 11"); E("s_add_u32 s12, s12, s9")
    E("v_add_u32 v5, s12, v3"); E("v_lshlrev_b32 v5, 5, v5"); E("v_lshlrev_b32 v6, 4, v4"); E("v_add_u32 v8, v5, v6")
    E(f"buffer_load_dwordx4 v[{Q}:{Q+3}], v8, s[40:43], 0 offen")
    for kb in range(9):
        E(f"s_mov_b32 s13, {kb*1024}")
        E(f"buffer_load_dwordx4 v[{KV+4*kb}:{KV+4*kb+3}], v8, s[44:47], s13 offen")
    E("v_and_b32 v5, 15, v0"); E("s_lshl_b32 s13, s11, 4"); E("v_add_u32 v5, s13, v5"); E("v_lshlrev_b32 v5, 12, v5")
    E("s_lshl_b32 s13, s9, 1"); E("v_add_u32 v5, s13, v5"); E("v_add_u32 v9, v5, v6")
    E("v_add_u32 v5, s9, v3"); E("v_lshlrev_b32 v5, 10, v5"); E("s_lshl_b32 s13, s11, 5"); E("v_add_u32 v5, s13, v5"); E("v_add_u32 v10, v5, v6")
    E("v_lshlrev_b32 v5, 2, v4"); E("v_sub_u32 v11, v3, v5")
    for i in range(16):
        c = 8*(i >> 2) + (i & 3)
        E(f"v_cmp_le_i32 s[{56+2*i}:{57+2*i}], {c}, v11")
    E(f"v_mov_b32 v12, {f2u(-1e30):#x}")
    for kb in range(9):
        E(f"s_waitcnt vmcnt({8-kb})")
        E(f"v_mfma_f32_32x32x16_bf16 v[{S+16*kb}:{S+16*kb+15}], v[{KV+4*kb}:{KV+4*kb+3}], v[{Q}:{Q+3}], 0")
    E("s_nop 3")
    for r in range(72): E(f"v_mov_b32 v{KV+r}, 0x3f803f80")
    E("s_mov_b32 s14, 0x0000ffff"); E("s_mov_b32 s15, 0x0000ffff"); E("s_mov_b64 exec, s[14:15]")
    for t in range(18):
        E(f"buffer_load_dwordx4 v[{KV+4*t}:{KV+4*t+3}], v9, s[48:51], 0 offen offset:{32*t}")
    E("s_mov_b64 exec, -1")
    E("s_nop 7")
    for i in range(16):
        E(f"v_cndmask_b32 v{S+128+i}, v12, v{S+128+i}, s[{56+2*i}:{57+2*i}]")
        E(f"v_cndmask_b32 v{S+i}, v{S+i}, v12, s[{56+2*i}:{57+2*i}]")
    for kb in range(8):
        E(f"s_cmp_ge_u32 s9, {256-32*kb}"); E(f"s_cbranch_scc1 {n}_ok{kb}")
        for i in range(16): E(f"v_mov_b32 v{S+16*kb+i}, v12")
        L(f"{n}_ok{kb}")
    for c in range(4): E(f"v_max_f32 v{4+c}, v{S+c}, v{S+4+c}")
    for r in range(8, 144, 8):
        for c in range(4): E(f"v_max3_f32 v{4+c}, v{4+c}, v{S+r+c}, v{S+r+4+c}")
    E("v_max_f32 v4, v4, v5"); E("v_max_f32 v6, v6, v7"); E("v_max_f32 v4, v4, v6"); E("v_mov_b32 v5, v4")
    E("s_nop 1"); E("v_permlane32_swap_b32 v4, v5"); E("s_nop 1"); E("v_max_f32 v4, v4, v5")
    cc = 0.25 * LOG2E
    E(f"s_mov_b32 s13, {f2u(cc):#x}"); E("v_mul_f32 v4, s13, v4")
    for r in range(0, 144, 4):
        for c in range(4): E(f"v_fma_f32 v{S+r+c}, v{S+r+c}, s13, -v4")
        for c in range(4): E(f"v_exp_f32 v{S+r+c}, v{S+r+c}")
        if r >= 4:
            p = r - 4; d = S + 16*(p//16) + (p % 16)//2
            E(f"v_cvt_pk_bf16_f32 v{d}, v{S+p}, v{S+p+1}"); E(f"v_cvt_pk_bf16_f32 v{d+1}, v{S+p+2}, v{S+p+3}")
    p = 140; d = S + 16*(p//16) + (p % 16)//2
    E("s_nop 0"); E(f"v_cvt_pk_bf16_f32 v{d}, v{S+p}, v{S+p+1}"); E(f"v_cvt_pk_bf16_f32 v{d+1}, v{S+p+2}, v{S+p+3}")
    E("s_nop 1")
    for t in range(18):
        E(f"s_waitcnt vmcnt({17-t})")
        b = S + 16*(t//2) + 4*(t % 2)
        E(f"v_mfma_f32_32x32x16_bf16 v[{O}:{O+15}], v[{KV+4*t}:{KV+4*t+3}], v[{b}:{b+3}], {'0' if t == 0 else f'v[{O}:{O+15}]'}")
    E("s_nop 15"); E(f"v_rcp_f32 v4, v{O+8}"); E("s_nop 0")
    for i in range(8): E(f"v_mul_f32 v{O+i}, v{O+i}, v4")
    for i in range(4): E(f"v_cvt_pk_bf16_f32 v{Q+i}, v{O+2*i}, v{O+2*i+1}")
    E(f"buffer_store_dwordx4 v[{Q}:{Q+3}], v10, s[52:55], 0 offen")
    epilogue_end(n)

def k3():
    n = "k3_wo_kernel"; kernels.append((n, 256, 32768)); prologue(n, 256)
    E("s_lshr_b32 s9, s2, 4"); E("s_lshl_b32 s9, s9, 7"); E("s_and_b32 s11, s2, 15"); E("s_lshl_b32 s12, s11, 6")
    srd(40, 34, WS_O, 2*MB); srd(44, 20, 0, 512*1024); srd(48, 34, WS_H, 2*MB); srd(52, 16, 0, 2*MB)
    dma_setup(1024); dma_region(44, 12, 0, 8, 1024)
    load_x(40, 1024, 32)
    w_addr(True, 10)
    E("v_lshlrev_b32 v11, 10, v9"); E("v_lshlrev_b32 v5, 3, v4"); E("v_add_u32 v12, v11, v5"); E("v_lshlrev_b32 v5, 4, v4"); E("v_add_u32 v11, v11, v5")
    for q in range(4): E(f"buffer_load_dwordx2 v[{VT+8+2*q}:{VT+9+2*q}], v12, s[52:55], s12 offen offset:{16*q}")
    E("s_waitcnt vmcnt(0)"); E("s_barrier")
    items = [(10, 1024*s, VX+4*s, ACC0) for s in range(32)]
    for _ in mfma_items(items, True, lambda i: False, lambda i: i == 0): pass
    E("s_nop 15")
    for i in range(8):
        E(f"v_lshlrev_b32 v5, 16, v{VT+8+i}"); E(f"v_and_b32 v6, 0xffff0000, v{VT+8+i}")
        E(f"v_add_f32 v{ACC0+2*i}, v{ACC0+2*i}, v5"); E(f"v_add_f32 v{ACC0+2*i+1}, v{ACC0+2*i+1}, v6")
    pack(ACC0, VT)
    E(f"buffer_store_dwordx4 v[{VT}:{VT+3}], v11, s[48:51], s12 offen")
    E(f"buffer_store_dwordx4 v[{VT+4}:{VT+7}], v11, s[48:51], s12 offen offset:32")
    epilogue_end(n)

def k4():
    n = "k4_glu_kernel"; kernels.append((n, 256, 163840)); prologue(n, 256)
    E("s_lshr_b32 s9, s2, 4"); E("s_lshl_b32 s9, s9, 7")
    E("s_and_b32 s11, s2, 15"); E("s_mul_i32 s11, s11, 86"); E("s_and_b32 s11, s11, 0xfffffff0"); E("s_lshl_b32 s11, s11, 1")
    srd(40, 34, WS_H, 2*MB); srd(44, 24, 0, 512*2752); srd(48, 26, 0, 512*2752); srd(52, 34, WS_HH, 2048*2752)
    load_x(40, 2752 if False else 1024, 32)
    dma_setup(2752)
    def reg(slot):
        E(f"s_add_u32 s12, s11, {64*(slot//2)}")
        dma_region(44 if slot % 2 == 0 else 48, 12, (slot % 5)*32768, 8, 2752)
    for sl in range(4): reg(sl)
    w_addr(True, 10)
    E("s_mov_b32 s4, 2752"); E("v_mul_lo_u32 v11, v9, s4"); E("v_lshlrev_b32 v5, 4, v4"); E("v_add_u32 v11, v11, v5")
    ln_regs(32)
    reg(4)
    E("s_waitcnt vmcnt(0)"); E("s_barrier")
    E(f"s_mov_b32 s13, {f2u(-LOG2E):#x}")
    for j in range(3):
        sg, su = ((2*j) % 5)*32768, ((2*j+1) % 5)*32768
        E(f"v_add_u32 v13, {sg}, v10"); E(f"v_add_u32 v14, {su}, v10")
        if j == 2: E("s_waitcnt vmcnt(0)"); E("s_barrier")
        items = []
        for s in range(32): items += [(13, 1024*s, VX+4*s, ACC0), (14, 1024*s, VX+4*s, ACC1)]
        for _ in mfma_items(items, True, lambda i: False, lambda i: i < 2): pass
        if j == 0: E("s_barrier"); reg(5)
        E("s_nop 15")
        for i in range(16): E(f"v_mul_f32 v{ACC0+i}, s13, v{ACC0+i}")
        for i in range(16): E(f"v_exp_f32 v{ACC0+i}, v{ACC0+i}")
        for i in range(16): E(f"v_add_f32 v{ACC0+i}, 1.0, v{ACC0+i}")
        for i in range(16): E(f"v_rcp_f32 v{ACC0+i}, v{ACC0+i}")
        for i in range(16): E(f"v_mul_f32 v{ACC0+i}, v{ACC0+i}, v{ACC1+i}")
        pack(ACC0, VT)
        E(f"s_add_u32 s12, s11, {64*j}")
        E(f"buffer_store_dwordx4 v[{VT}:{VT+3}], v11, s[52:55], s12 offen")
        E(f"buffer_store_dwordx4 v[{VT+4}:{VT+7}], v11, s[52:55], s12 offen offset:32")
        E("s_nop 1")
    epilogue_end(n)

def k5():
    n = "k5_down_kernel"; kernels.append((n, 256, 22*4096)); prologue(n, 256)
    NX = 44; X = 56; global VW
    oldVW = VW; VW = 16; A = 232; T = 48
    E("s_lshr_b32 s9, s2, 4"); E("s_lshl_b32 s9, s9, 7"); E("s_and_b32 s11, s2, 15"); E("s_lshl_b32 s12, s11, 6")
    srd(40, 34, WS_HH, 2048*2752); srd(44, 28, 0, 1376*1024); srd(48, 34, WS_H, 2*MB); srd(52, 30, 0, 2*MB)
    dma_setup(1024); dma_region(44, 12, 0, 22, 1024)
    load_x(40, 2752, 40, X)
    E("v_add_u32 v14, 0x500, v8")
    for s in range(40, NX): E(f"buffer_load_dwordx4 v[{X+4*s}:{X+4*s+3}], v14, s[40:43], 0 offen offset:{32*(s-40)}")
    w_addr(True, 10); E("v_add_u32 v13, 0x10000, v10")
    E("v_lshlrev_b32 v11, 10, v9"); E("v_lshlrev_b32 v5, 3, v4"); E("v_add_u32 v12, v11, v5"); E("v_lshlrev_b32 v5, 4, v4"); E("v_add_u32 v11, v11, v5")
    E(f"buffer_load_dwordx4 v[248:251], v11, s[48:51], s12 offen"); E(f"buffer_load_dwordx4 v[252:255], v11, s[48:51], s12 offen offset:32")
    E("s_waitcnt vmcnt(0)"); E("s_barrier")
    items = [((10, 1024*s) if s < 64 else (13, 1024*(s-64))) + (X+4*(s % NX), A) for s in range(86)]
    for i in mfma_items(items, True, lambda i: False, lambda i: i == 0):
        if i + NX < 86:
            s = i + NX; E(f"buffer_load_dwordx4 v[{X+4*i}:{X+4*i+3}], v14, s[40:43], 0 offen offset:{32*(s-40)}")
        if i + 1 >= NX and i + 1 < 86: E(f"s_waitcnt vmcnt({85-(i+1)})")
    VW = oldVW
    E("s_nop 15")
    for i in range(8):
        E(f"v_lshlrev_b32 v5, 16, v{248+i}"); E(f"v_and_b32 v6, 0xffff0000, v{248+i}")
        E(f"v_add_f32 v{A+2*i}, v{A+2*i}, v5"); E(f"v_add_f32 v{A+2*i+1}, v{A+2*i+1}, v6")
    pack(A, T)
    for q in range(4): E(f"buffer_store_dwordx2 v[{T+2*q}:{T+2*q+1}], v12, s[52:55], s12 offen offset:{16*q}")
    epilogue_end(n)

k1(); k2(); k3(); k4(); k5()
hdr = open("cdna_kernels/" + NAME + ".s.ref").read().split("\n")
head = [l for l in hdr if l.startswith(";") and "@launch" not in l and "Override" not in l and "grid=ceil" not in l]
txt = head + [f"; @launch kernel={k} grid=({g},1,1) block=(256,1,1) lds={l}" for k, g, l in kernels]
txt += ['.amdgcn_target "amdgcn-amd-amdhsa--gfx950"', ".text"] + out + ['.section .rodata,"a"']
for k, g, l in kernels:
    txt += [".p2align 6", f".amdhsa_kernel {k}", "  .amdhsa_next_free_vgpr 256", "  .amdhsa_next_free_sgpr 102", "  .amdhsa_accum_offset 256",
            "  .amdhsa_group_segment_fixed_size 0", "  .amdhsa_kernarg_size 80", "  .amdhsa_user_sgpr_count 2",
            "  .amdhsa_user_sgpr_kernarg_segment_ptr 1", "  .amdhsa_system_sgpr_workgroup_id_x 1", ".end_amdhsa_kernel"]
open("cdna_kernels/" + NAME + ".s", "w").write("\n".join(txt) + "\n")
```

```python
import sys
NAME = "sequential_preLN__sliding_block__glu_gated_glu__prompt"
out = []
def E(s): out.append("    " + s)
def L(s): out.append(s + ":")
MB = 1 << 20
WS_Q, WS_K, WS_V, WS_O, WS_H, WS_HH = 0, 2*MB, 4*MB, 6*MB, 8*MB, 10*MB
LOG2E = 1.4426950408889634
import struct
def f2u(f): return struct.unpack("<I", struct.pack("<f", f))[0]

def prologue(name, nwg):
    out.append(".p2align 8"); out.append(f".globl {name}"); out.append(f".type {name},@function"); L(name)
    E(f"s_cmp_ge_u32 s2, {nwg}"); E(f"s_cbranch_scc1 {name}_done")
    E("s_load_dwordx16 s[16:31], s[0:1], 0"); E("s_load_dwordx4 s[32:35], s[0:1], 64")
    E("v_and_b32 v1, 63, v0")
    E("v_lshrrev_b32 v2, 6, v0")
    E("v_and_b32 v3, 31, v0")
    E("v_readfirstlane_b32 s3, v2")
    E("v_bfe_u32 v4, v0, 5, 1")
    E("s_waitcnt lgkmcnt(0)")
def epilogue_end(name):
    L(f"{name}_done"); E("s_endpgm")
def srd(d, base, off, size):
    if off >= 0:
        E(f"s_add_u32 s{d}, s{base}, {off}"); E(f"s_addc_u32 s{d+1}, s{base+1}, 0")
    else:
        E(f"s_sub_u32 s{d}, s{base}, {-off}"); E(f"s_subb_u32 s{d+1}, s{base+1}, 0")
    E(f"s_mov_b32 s{d+2}, {size}"); E(f"s_mov_b32 s{d+3}, 0x00020000")

VX, VW, ACC0, ACC1, VT = 16, 144, 176, 192, 208

def w_addr(perm, vdst):
    E("v_bfe_u32 v5, v0, 2, 2")
    E(f"v_lshlrev_b32 v6, {2 if perm else 3}, v4")
    E("v_add_u32 v5, v5, v6")
    E("v_lshlrev_b32 v5, 6, v5")
    E("v_bfe_u32 v6, v0, 4, 1")
    E("v_lshlrev_b32 v6, 5, v6")
    E("v_add_u32 v5, v5, v6")
    E("v_and_b32 v6, 3, v0")
    E("v_lshlrev_b32 v6, 3, v6")
    E(f"v_add_u32 v{vdst}, v5, v6")

def dma_setup(ldw):
    E("v_lshrrev_b32 v5, 2, v0"); E(f"s_mov_b32 s4, {ldw}"); E("v_mul_lo_u32 v5, v5, s4")
    E("v_and_b32 v6, 3, v0"); E("v_lshlrev_b32 v6, 4, v6"); E("v_add_u32 v7, v5, v6")
    E("s_lshl_b32 s5, s3, 10")
def dma_region(srdreg, scol, ldsbase, nj, ldw):
    E(f"s_mov_b32 s6, s{scol}"); E(f"s_add_u32 s7, s5, {ldsbase}")
    for j in range(nj):
        E("s_mov_b32 m0, s7");
        if j + 1 < nj: E("s_add_u32 s7, s7, 4096")
        else: E("s_nop 0")
        E(f"buffer_load_dwordx4 v7, s[{srdreg}:{srdreg+3}], s6 offen lds")
        if j + 1 < nj: E(f"s_add_u32 s6, s6, {64*ldw}")

def mfma_items(items, perm, swap_of, first_of):
    d2 = 512 if perm else 256
    n = len(items); D = 6
    def rd(i):
        va, off, _, _ = items[i]; w = VW + 4 * (i % 8)
        E(f"ds_read_b64_tr_b16 v[{w}:{w+1}], v{va} offset:{off}")
        E(f"ds_read_b64_tr_b16 v[{w+2}:{w+3}], v{va} offset:{off+d2}")
    for i in range(min(D, n)): rd(i)
    for i in range(n):
        va, off, x, acc = items[i][:4]; w = VW + 4 * (i % 8)
        E(f"s_waitcnt lgkmcnt({2*(min(i+D-1, n-1)-i)})")
        c = "0" if first_of(i) else f"v[{acc}:{acc+15}]"
        if swap_of(i): E(f"v_mfma_f32_32x32x16_bf16 v[{acc}:{acc+15}], v[{x}:{x+3}], v[{w}:{w+3}], {c}")
        else:          E(f"v_mfma_f32_32x32x16_bf16 v[{acc}:{acc+15}], v[{w}:{w+3}], v[{x}:{x+3}], {c}")
        if i + D < n: rd(i + D)
        yield i

def ln_regs(ndma):
    E("s_mov_b32 s8, 0x3f803f80")
    for q in range(4): E(f"v_mov_b32 v{VT+q}, 0"); E(f"v_mov_b32 v{VT+4+q}, 0")
    for g in range(4):
        E(f"s_waitcnt vmcnt({min(63, 24-8*g+ndma)})")
        for r in range(32*g, 32*g+32):
            E(f"v_dot2_f32_bf16 v{VT+(r&3)}, v{VX+r}, s8, v{VT+(r&3)}")
            E(f"v_dot2_f32_bf16 v{VT+4+(r&3)}, v{VX+r}, v{VX+r}, v{VT+4+(r&3)}")
    E(f"v_add_f32 v{VT}, v{VT}, v{VT+1}"); E(f"v_add_f32 v{VT+2}, v{VT+2}, v{VT+3}")
    E(f"v_add_f32 v{VT+4}, v{VT+4}, v{VT+5}"); E(f"v_add_f32 v{VT+6}, v{VT+6}, v{VT+7}")
    E(f"v_add_f32 v{VT}, v{VT}, v{VT+2}"); E(f"v_add_f32 v{VT+4}, v{VT+4}, v{VT+6}")
    E(f"v_mov_b32 v{VT+1}, v{VT}"); E(f"v_mov_b32 v{VT+5}, v{VT+4}")
    E("s_nop 1")
    E(f"v_permlane32_swap_b32 v{VT}, v{VT+1}"); E(f"v_permlane32_swap_b32 v{VT+4}, v{VT+5}")
    E("s_nop 1")
    E(f"v_add_f32 v{VT}, v{VT}, v{VT+1}"); E(f"v_add_f32 v{VT+4}, v{VT+4}, v{VT+5}")
    E(f"v_mul_f32 v{VT}, {f2u(1/512):#x}, v{VT}")
    E(f"v_mul_f32 v{VT+4}, {f2u(1/512):#x}, v{VT+4}")
    E(f"v_fma_f32 v{VT+4}, -v{VT}, v{VT}, v{VT+4}")
    E(f"v_max_f32 v{VT+4}, 0, v{VT+4}")
    E(f"v_add_f32 v{VT+4}, {f2u(1e-5):#x}, v{VT+4}")
    E(f"v_rsq_f32 v{VT+4}, v{VT+4}")
    E("s_nop 0")
    E(f"v_mul_f32 v{VT}, v{VT}, v{VT+4}")
    E(f"v_sub_f32 v{VT}, 0, v{VT}")
    for r in range(128):
        a, b = VT + 8 + 2 * (r & 3), VT + 9 + 2 * (r & 3)
        E(f"v_lshlrev_b32 v{a}, 16, v{VX+r}"); E(f"v_and_b32 v{b}, 0xffff0000, v{VX+r}")
        E(f"v_fma_f32 v{a}, v{a}, v{VT+4}, v{VT}"); E(f"v_fma_f32 v{b}, v{b}, v{VT+4}, v{VT}")
        E(f"v_cvt_pk_bf16_f32 v{VX+r}, v{a}, v{b}")

def load_x(srdreg, ld, nsteps, base=VX):
    E("s_lshl_b32 s10, s3, 5"); E("s_add_u32 s10, s10, s9")
    E("v_add_u32 v9, s10, v3"); E(f"s_mov_b32 s4, {ld}"); E("v_mul_lo_u32 v8, v9, s4")
    E("v_lshlrev_b32 v5, 4, v4"); E("v_add_u32 v8, v8, v5")
    for s in range(nsteps):
        E(f"buffer_load_dwordx4 v[{base+4*s}:{base+4*s+3}], v8, s[{srdreg}:{srdreg+3}], 0 offen offset:{32*s}")
def pack(acc, dst):
    for i in range(8): E(f"v_cvt_pk_bf16_f32 v{dst+i}, v{acc+2*i}, v{acc+2*i+1}")

kernels = []
def k1():
    n = "k1_qkv_kernel"; kernels.append((n, 256, 98304)); prologue(n, 256)
    E("s_lshr_b32 s9, s2, 4"); E("s_lshl_b32 s9, s9, 7")
    E("s_and_b32 s11, s2, 15"); E("s_mul_i32 s11, s11, 3")
    srd(40, 16, 0, 2*MB); srd(44, 18, 0, 512*3072); srd(48, 34, 0, 6*MB)
    load_x(40, 1024, 32)
    dma_setup(3072)
    for j in range(3):
        E(f"s_add_u32 s12, s11, {j}"); E("s_lshl_b32 s12, s12, 6")
        dma_region(44, 12, j*32768, 8, 3072)
    w_addr(False, 10)
    E("v_lshlrev_b32 v11, 5, v9"); E("v_lshlrev_b32 v5, 4, v4"); E("v_add_u32 v11, v11, v5")
    E("v_lshlrev_b32 v12, 12, v3"); E("v_lshlrev_b32 v5, 4, v4"); E("v_add_u32 v12, v12, v5")
    E("s_lshl_b32 s13, s10, 1"); E("v_add_u32 v12, s13, v12")
    ln_regs(24)
    E("s_waitcnt vmcnt(0)"); E("s_barrier")
    for j in range(3):
        E(f"v_add_u32 v13, {j*32768}, v10")
        E(f"s_add_u32 s12, s11, {j}"); E("s_cmp_ge_u32 s12, 32"); E(f"s_cbranch_scc1 {n}_v{j}")
        for sw in (False, True):
            if sw: L(f"{n}_v{j}")
            items = [(13, 1024*s, VX+4*s, ACC0) for s in range(32)]
            for _ in mfma_items(items, False, lambda i: sw, lambda i: i == 0): pass
            E("s_nop 15"); pack(ACC0, VT)
            if not sw:
                E("s_lshr_b32 s14, s12, 4"); E("s_lshl_b32 s14, s14, 21"); E("s_and_b32 s15, s12, 15"); E("s_lshl_b32 s15, s15, 17")
                E("s_add_u32 s14, s14, s15"); E("s_add_u32 s15, s14, 65536")
                E(f"buffer_store_dwordx4 v[{VT}:{VT+3}], v11, s[48:51], s14 offen")
                E(f"buffer_store_dwordx4 v[{VT+4}:{VT+7}], v11, s[48:51], s15 offen")
                E(f"s_branch {n}_e{j}")
            else:
                E("s_sub_u32 s14, s12, 32"); E("s_lshl_b32 s14, s14, 17"); E(f"s_add_u32 s14, s14, {WS_V}")
                E(f"buffer_store_dwordx4 v[{VT}:{VT+3}], v12, s[48:51], s14 offen")
                E(f"buffer_store_dwordx4 v[{VT+4}:{VT+7}], v12, s[48:51], s14 offen offset:32")
        L(f"{n}_e{j}"); E("s_nop 1")
    epilogue_end(n)

def k2():
    n = "k2_attn_kernel"; kernels.append((n, 512, 0)); prologue(n, 512)
    Q, KV, S, O = 16, 20, 96, 240
    E("s_lshr_b32 s9, s2, 3"); E("s_lshl_b32 s9, s9, 5")
    E("s_and_b32 s11, s2, 7"); E("s_lshl_b32 s11, s11, 2"); E("s_add_u32 s11, s11, s3")
    srd(40, 34, WS_Q, 2*MB); srd(44, 34, WS_K - 8192, 2*MB + 8192); srd(48, 34, WS_V - 512, 2*MB + 512); srd(52, 34, WS_O, 2*MB)
    E("s_lshl_b32 s12, s11, 11"); E("s_add_u32 s12, s12, s9")
    E("v_add_u32 v5, s12, v3"); E("v_lshlrev_b32 v5, 5, v5"); E("v_lshlrev_b32 v6, 4, v4"); E("v_add_u32 v8, v5, v6")
    E(f"buffer_load_dwordx4 v[{Q}:{Q+3}], v8, s[40:43], 0 offen")
    for kb in range(9):
        E(f"s_mov_b32 s13, {kb*1024}")
        E(f"buffer_load_dwordx4 v[{KV+4*kb}:{KV+4*kb+3}], v8, s[44:47], s13 offen")
    E("v_and_b32 v5, 15, v0"); E("s_lshl_b32 s13, s11, 4"); E("v_add_u32 v5, s13, v5"); E("v_lshlrev_b32 v5, 12, v5")
    E("s_lshl_b32 s13, s9, 1"); E("v_add_u32 v5, s13, v5"); E("v_add_u32 v9, v5, v6")
    E("v_add_u32 v5, s9, v3"); E("v_lshlrev_b32 v5, 10, v5"); E("s_lshl_b32 s13, s11, 5"); E("v_add_u32 v5, s13, v5"); E("v_add_u32 v10, v5, v6")
    E("v_lshlrev_b32 v5, 2, v4"); E("v_sub_u32 v11, v3, v5")
    for i in range(16):
        c = 8*(i >> 2) + (i & 3)
        E(f"v_cmp_le_i32 s[{56+2*i}:{57+2*i}], {c}, v11")
    E(f"v_mov_b32 v12, {f2u(-1e30):#x}")
    for kb in range(9):
        E(f"s_waitcnt vmcnt({8-kb})")
        E(f"v_mfma_f32_32x32x16_bf16 v[{S+16*kb}:{S+16*kb+15}], v[{KV+4*kb}:{KV+4*kb+3}], v[{Q}:{Q+3}], 0")
    E("s_nop 3")
    for r in range(72): E(f"v_mov_b32 v{KV+r}, 0x3f803f80")
    E("s_mov_b32 s14, 0x0000ffff"); E("s_mov_b32 s15, 0x0000ffff"); E("s_mov_b64 exec, s[14:15]")
    for t in range(18):
        E(f"buffer_load_dwordx4 v[{KV+4*t}:{KV+4*t+3}], v9, s[48:51], 0 offen offset:{32*t}")
    E("s_mov_b64 exec, -1")
    E("s_nop 7")
    for i in range(16):
        E(f"v_cndmask_b32 v{S+128+i}, v12, v{S+128+i}, s[{56+2*i}:{57+2*i}]")
        E(f"v_cndmask_b32 v{S+i}, v{S+i}, v12, s[{56+2*i}:{57+2*i}]")
    for kb in range(8):
        E(f"s_cmp_ge_u32 s9, {256-32*kb}"); E(f"s_cbranch_scc1 {n}_ok{kb}")
        for i in range(16): E(f"v_mov_b32 v{S+16*kb+i}, v12")
        L(f"{n}_ok{kb}")
    for c in range(4): E(f"v_max_f32 v{4+c}, v{S+c}, v{S+4+c}")
    for r in range(8, 144, 8):
        for c in range(4): E(f"v_max3_f32 v{4+c}, v{4+c}, v{S+r+c}, v{S+r+4+c}")
    E("v_max_f32 v4, v4, v5"); E("v_max_f32 v6, v6, v7"); E("v_max_f32 v4, v4, v6"); E("v_mov_b32 v5, v4")
    E("s_nop 1"); E("v_permlane32_swap_b32 v4, v5"); E("s_nop 1"); E("v_max_f32 v4, v4, v5")
    cc = 0.25 * LOG2E
    E(f"s_mov_b32 s13, {f2u(cc):#x}"); E("v_mul_f32 v4, s13, v4")
    for r in range(0, 144, 4):
        for c in range(4): E(f"v_fma_f32 v{S+r+c}, v{S+r+c}, s13, -v4")
        for c in range(4): E(f"v_exp_f32 v{S+r+c}, v{S+r+c}")
        if r >= 4:
            p = r - 4; d = S + 16*(p//16) + (p % 16)//2
            E(f"v_cvt_pk_bf16_f32 v{d}, v{S+p}, v{S+p+1}"); E(f"v_cvt_pk_bf16_f32 v{d+1}, v{S+p+2}, v{S+p+3}")
    p = 140; d = S + 16*(p//16) + (p % 16)//2
    E("s_nop 0"); E(f"v_cvt_pk_bf16_f32 v{d}, v{S+p}, v{S+p+1}"); E(f"v_cvt_pk_bf16_f32 v{d+1}, v{S+p+2}, v{S+p+3}")
    E("s_nop 1")
    for t in range(18):
        E(f"s_waitcnt vmcnt({17-t})")
        b = S + 16*(t//2) + 4*(t % 2)
        E(f"v_mfma_f32_32x32x16_bf16 v[{O}:{O+15}], v[{KV+4*t}:{KV+4*t+3}], v[{b}:{b+3}], {'0' if t == 0 else f'v[{O}:{O+15}]'}")
    E("s_nop 15"); E(f"v_rcp_f32 v4, v{O+8}"); E("s_nop 0")
    for i in range(8): E(f"v_mul_f32 v{O+i}, v{O+i}, v4")
    for i in range(4): E(f"v_cvt_pk_bf16_f32 v{Q+i}, v{O+2*i}, v{O+2*i+1}")
    E(f"buffer_store_dwordx4 v[{Q}:{Q+3}], v10, s[52:55], 0 offen")
    epilogue_end(n)

def k3():
    n = "k3_wo_kernel"; kernels.append((n, 256, 32768)); prologue(n, 256)
    E("s_lshr_b32 s9, s2, 4"); E("s_lshl_b32 s9, s9, 7"); E("s_and_b32 s11, s2, 15"); E("s_lshl_b32 s12, s11, 6")
    srd(40, 34, WS_O, 2*MB); srd(44, 20, 0, 512*1024); srd(48, 34, WS_H, 2*MB); srd(52, 16, 0, 2*MB)
    dma_setup(1024); dma_region(44, 12, 0, 8, 1024)
    load_x(40, 1024, 32)
    w_addr(True, 10)
    E("v_lshlrev_b32 v11, 10, v9"); E("v_lshlrev_b32 v5, 3, v4"); E("v_add_u32 v12, v11, v5"); E("v_lshlrev_b32 v5, 4, v4"); E("v_add_u32 v11, v11, v5")
    for q in range(4): E(f"buffer_load_dwordx2 v[{VT+8+2*q}:{VT+9+2*q}], v12, s[52:55], s12 offen offset:{16*q}")
    E("s_waitcnt vmcnt(0)"); E("s_barrier")
    items = [(10, 1024*s, VX+4*s, ACC0) for s in range(32)]
    for _ in mfma_items(items, True, lambda i: False, lambda i: i == 0): pass
    E("s_nop 15")
    for i in range(8):
        E(f"v_lshlrev_b32 v5, 16, v{VT+8+i}"); E(f"v_and_b32 v6, 0xffff0000, v{VT+8+i}")
        E(f"v_add_f32 v{ACC0+2*i}, v{ACC0+2*i}, v5"); E(f"v_add_f32 v{ACC0+2*i+1}, v{ACC0+2*i+1}, v6")
    pack(ACC0, VT)
    E(f"buffer_store_dwordx4 v[{VT}:{VT+3}], v11, s[48:51], s12 offen")
    E(f"buffer_store_dwordx4 v[{VT+4}:{VT+7}], v11, s[48:51], s12 offen offset:32")
    epilogue_end(n)

def k4():
    n = "k4_glu_kernel"; kernels.append((n, 256, 163840)); prologue(n, 256)
    E("s_lshr_b32 s9, s2, 4"); E("s_lshl_b32 s9, s9, 7")
    E("s_and_b32 s11, s2, 15"); E("s_mul_i32 s11, s11, 86"); E("s_and_b32 s11, s11, 0xfffffff0"); E("s_lshl_b32 s11, s11, 1")
    srd(40, 34, WS_H, 2*MB); srd(44, 24, 0, 512*2752); srd(48, 26, 0, 512*2752); srd(52, 34, WS_HH, 2048*2752)
    load_x(40, 2752 if False else 1024, 32)
    dma_setup(2752)
    def reg(slot):
        E(f"s_add_u32 s12, s11, {64*(slot//2)}")
        dma_region(44 if slot % 2 == 0 else 48, 12, (slot % 5)*32768, 8, 2752)
    for sl in range(4): reg(sl)
    w_addr(True, 10)
    E("s_mov_b32 s4, 2752"); E("v_mul_lo_u32 v11, v9, s4"); E("v_lshlrev_b32 v5, 4, v4"); E("v_add_u32 v11, v11, v5")
    ln_regs(32)
    reg(4)
    E("s_waitcnt vmcnt(0)"); E("s_barrier")
    E(f"s_mov_b32 s13, {f2u(-LOG2E):#x}")
    for j in range(3):
        sg, su = ((2*j) % 5)*32768, ((2*j+1) % 5)*32768
        E(f"v_add_u32 v13, {sg}, v10"); E(f"v_add_u32 v14, {su}, v10")
        if j == 2: E("s_waitcnt vmcnt(0)"); E("s_barrier")
        items = []
        for s in range(32): items += [(13, 1024*s, VX+4*s, ACC0), (14, 1024*s, VX+4*s, ACC1)]
        for _ in mfma_items(items, True, lambda i: False, lambda i: i < 2): pass
        if j == 0: E("s_barrier"); reg(5)
        E("s_nop 15")
        for i in range(16): E(f"v_mul_f32 v{ACC0+i}, s13, v{ACC0+i}")
        for i in range(16): E(f"v_exp_f32 v{ACC0+i}, v{ACC0+i}")
        for i in range(16): E(f"v_add_f32 v{ACC0+i}, 1.0, v{ACC0+i}")
        for i in range(16): E(f"v_rcp_f32 v{ACC0+i}, v{ACC0+i}")
        for i in range(16): E(f"v_mul_f32 v{ACC0+i}, v{ACC0+i}, v{ACC1+i}")
        pack(ACC0, VT)
        E(f"s_add_u32 s12, s11, {64*j}")
        E(f"buffer_store_dwordx4 v[{VT}:{VT+3}], v11, s[52:55], s12 offen")
        E(f"buffer_store_dwordx4 v[{VT+4}:{VT+7}], v11, s[52:55], s12 offen offset:32")
        E("s_nop 1")
    epilogue_end(n)

def k5():
    n = "k5_down_kernel"; kernels.append((n, 256, 22*4096)); prologue(n, 256)
    NX = 44; X = 56; global VW
    oldVW = VW; VW = 16; A = 232; T = 48
    E("s_lshr_b32 s9, s2, 4"); E("s_lshl_b32 s9, s9, 7"); E("s_and_b32 s11, s2, 15"); E("s_lshl_b32 s12, s11, 6")
    srd(40, 34, WS_HH, 2048*2752); srd(44, 28, 0, 1376*1024); srd(48, 34, WS_H, 2*MB); srd(52, 30, 0, 2*MB)
    dma_setup(1024); dma_region(44, 12, 0, 22, 1024)
    load_x(40, 2752, 40, X)
    E("v_add_u32 v14, 0x500, v8")
    for s in range(40, NX): E(f"buffer_load_dwordx4 v[{X+4*s}:{X+4*s+3}], v14, s[40:43], 0 offen offset:{32*(s-40)}")
    w_addr(True, 10); E("v_add_u32 v13, 0x10000, v10")
    E("v_lshlrev_b32 v11, 10, v9"); E("v_lshlrev_b32 v5, 3, v4"); E("v_add_u32 v12, v11, v5"); E("v_lshlrev_b32 v5, 4, v4"); E("v_add_u32 v11, v11, v5")
    E(f"buffer_load_dwordx4 v[248:251], v11, s[48:51], s12 offen"); E(f"buffer_load_dwordx4 v[252:255], v11, s[48:51], s12 offen offset:32")
    E("s_waitcnt vmcnt(0)"); E("s_barrier")
    items = [((10, 1024*s) if s < 64 else (13, 1024*(s-64))) + (X+4*(s % NX), A) for s in range(86)]
    for i in mfma_items(items, True, lambda i: False, lambda i: i == 0):
        if i + NX < 86:
            s = i + NX; E(f"buffer_load_dwordx4 v[{X+4*i}:{X+4*i+3}], v14, s[40:43], 0 offen offset:{32*(s-40)}")
        if i + 1 >= NX and i + 1 < 86: E(f"s_waitcnt vmcnt({85-(i+1)})")
    VW = oldVW
    E("s_nop 15")
    for i in range(8):
        E(f"v_lshlrev_b32 v5, 16, v{248+i}"); E(f"v_and_b32 v6, 0xffff0000, v{248+i}")
        E(f"v_add_f32 v{A+2*i}, v{A+2*i}, v5"); E(f"v_add_f32 v{A+2*i+1}, v{A+2*i+1}, v6")
    pack(A, T)
    for q in range(4): E(f"buffer_store_dwordx2 v[{T+2*q}:{T+2*q+1}], v12, s[52:55], s12 offen offset:{16*q}")
    epilogue_end(n)

k1(); k2(); k3(); k4(); k5()
hdr = open("cdna_kernels/" + NAME + ".s.ref").read().split("\n")
head = [l for l in hdr if l.startswith(";") and "@launch" not in l and "Override" not in l and "grid=ceil" not in l]
import os
dup = int(os.environ.get("DUP", "-1"))
ll = []
for idx, (k, g, l) in enumerate(kernels):
    ll += [f"; @launch kernel={k} grid=({g},1,1) block=(256,1,1) lds={l}"] * (5 if idx == dup else 1)
txt = head + ll
txt += ['.amdgcn_target "amdgcn-amd-amdhsa--gfx950"', ".text"] + out + ['.section .rodata,"a"']
for k, g, l in kernels:
    txt += [".p2align 6", f".amdhsa_kernel {k}", "  .amdhsa_next_free_vgpr 256", "  .amdhsa_next_free_sgpr 102", "  .amdhsa_accum_offset 256",
            "  .amdhsa_group_segment_fixed_size 0", "  .amdhsa_kernarg_size 80", "  .amdhsa_user_sgpr_count 2",
            "  .amdhsa_user_sgpr_kernarg_segment_ptr 1", "  .amdhsa_system_sgpr_workgroup_id_x 1", ".end_amdhsa_kernel"]
open(os.environ.get("OUT", "cdna_kernels/" + NAME + ".s"), "w").write("\n".join(txt) + "\n")
```

```python
import sys
NAME = "sequential_preLN__sliding_block__glu_gated_glu__prompt"
out = []
def E(s): out.append("    " + s)
def L(s): out.append(s + ":")
MB = 1 << 20
WS_Q, WS_K, WS_V, WS_O, WS_H, WS_HH = 0, 2*MB, 4*MB, 6*MB, 8*MB, 10*MB
WS_XN = 16*MB
LOG2E = 1.4426950408889634
import struct
def f2u(f): return struct.unpack("<I", struct.pack("<f", f))[0]

def prologue(name, nwg):
    out.append(".p2align 8"); out.append(f".globl {name}"); out.append(f".type {name},@function"); L(name)
    E(f"s_cmp_ge_u32 s2, {nwg}"); E(f"s_cbranch_scc1 {name}_done")
    E("s_load_dwordx16 s[16:31], s[0:1], 0"); E("s_load_dwordx4 s[32:35], s[0:1], 64")
    E("v_and_b32 v1, 63, v0")
    E("v_lshrrev_b32 v2, 6, v0")
    E("v_and_b32 v3, 31, v0")
    E("v_readfirstlane_b32 s3, v2")
    E("v_bfe_u32 v4, v0, 5, 1")
    E("s_waitcnt lgkmcnt(0)")
def epilogue_end(name):
    L(f"{name}_done"); E("s_endpgm")
def srd(d, base, off, size):
    if off >= 0:
        E(f"s_add_u32 s{d}, s{base}, {off}"); E(f"s_addc_u32 s{d+1}, s{base+1}, 0")
    else:
        E(f"s_sub_u32 s{d}, s{base}, {-off}"); E(f"s_subb_u32 s{d+1}, s{base+1}, 0")
    E(f"s_mov_b32 s{d+2}, {size}"); E(f"s_mov_b32 s{d+3}, 0x00020000")

VX, VW, ACC0, ACC1, VT = 16, 144, 176, 192, 208

def w_addr(perm, vdst):
    E("v_bfe_u32 v5, v0, 2, 2")
    E(f"v_lshlrev_b32 v6, {2 if perm else 3}, v4")
    E("v_add_u32 v5, v5, v6")
    E("v_lshlrev_b32 v5, 6, v5")
    E("v_bfe_u32 v6, v0, 4, 1")
    E("v_lshlrev_b32 v6, 5, v6")
    E("v_add_u32 v5, v5, v6")
    E("v_and_b32 v6, 3, v0")
    E("v_lshlrev_b32 v6, 3, v6")
    E(f"v_add_u32 v{vdst}, v5, v6")

def dma_setup(ldw):
    E("v_lshrrev_b32 v5, 2, v0"); E(f"s_mov_b32 s4, {ldw}"); E("v_mul_lo_u32 v5, v5, s4")
    E("v_and_b32 v6, 3, v0"); E("v_lshlrev_b32 v6, 4, v6"); E("v_add_u32 v7, v5, v6")
    E("s_lshl_b32 s5, s3, 10")
def dma_region(srdreg, scol, ldsbase, nj, ldw):
    E(f"s_mov_b32 s6, s{scol}"); E(f"s_add_u32 s7, s5, {ldsbase}")
    for j in range(nj):
        E("s_mov_b32 m0, s7");
        if j + 1 < nj: E("s_add_u32 s7, s7, 4096")
        else: E("s_nop 0")
        E(f"buffer_load_dwordx4 v7, s[{srdreg}:{srdreg+3}], s6 offen lds")
        if j + 1 < nj: E(f"s_add_u32 s6, s6, {64*ldw}")

def mfma_items(items, perm, swap_of, first_of):
    d2 = 512 if perm else 256
    n = len(items); D = 6
    def rd(i):
        va, off, _, _ = items[i]; w = VW + 4 * (i % 8)
        E(f"ds_read_b64_tr_b16 v[{w}:{w+1}], v{va} offset:{off}")
        E(f"ds_read_b64_tr_b16 v[{w+2}:{w+3}], v{va} offset:{off+d2}")
    for i in range(min(D, n)): rd(i)
    for i in range(n):
        va, off, x, acc = items[i][:4]; w = VW + 4 * (i % 8)
        E(f"s_waitcnt lgkmcnt({2*(min(i+D-1, n-1)-i)})")
        c = "0" if first_of(i) else f"v[{acc}:{acc+15}]"
        if swap_of(i): E(f"v_mfma_f32_32x32x16_bf16 v[{acc}:{acc+15}], v[{x}:{x+3}], v[{w}:{w+3}], {c}")
        else:          E(f"v_mfma_f32_32x32x16_bf16 v[{acc}:{acc+15}], v[{w}:{w+3}], v[{x}:{x+3}], {c}")
        if i + D < n: rd(i + D)
        yield i

def ln_regs(ndma):
    E("s_mov_b32 s8, 0x3f803f80")
    for q in range(4): E(f"v_mov_b32 v{VT+q}, 0"); E(f"v_mov_b32 v{VT+4+q}, 0")
    for g in range(4):
        E(f"s_waitcnt vmcnt({min(63, 24-8*g+ndma)})")
        for r in range(32*g, 32*g+32):
            E(f"v_dot2_f32_bf16 v{VT+(r&3)}, v{VX+r}, s8, v{VT+(r&3)}")
            E(f"v_dot2_f32_bf16 v{VT+4+(r&3)}, v{VX+r}, v{VX+r}, v{VT+4+(r&3)}")
    E("s_nop 3")
    E(f"v_add_f32 v{VT}, v{VT}, v{VT+1}"); E(f"v_add_f32 v{VT+2}, v{VT+2}, v{VT+3}")
    E(f"v_add_f32 v{VT+4}, v{VT+4}, v{VT+5}"); E(f"v_add_f32 v{VT+6}, v{VT+6}, v{VT+7}")
    E(f"v_add_f32 v{VT}, v{VT}, v{VT+2}"); E(f"v_add_f32 v{VT+4}, v{VT+4}, v{VT+6}")
    E(f"v_mov_b32 v{VT+1}, v{VT}"); E(f"v_mov_b32 v{VT+5}, v{VT+4}")
    E("s_nop 1")
    E(f"v_permlane32_swap_b32 v{VT}, v{VT+1}"); E(f"v_permlane32_swap_b32 v{VT+4}, v{VT+5}")
    E("s_nop 1")
    E(f"v_add_f32 v{VT}, v{VT}, v{VT+1}"); E(f"v_add_f32 v{VT+4}, v{VT+4}, v{VT+5}")
    E(f"v_mul_f32 v{VT}, {f2u(1/512):#x}, v{VT}")
    E(f"v_mul_f32 v{VT+4}, {f2u(1/512):#x}, v{VT+4}")
    E(f"v_fma_f32 v{VT+4}, -v{VT}, v{VT}, v{VT+4}")
    E(f"v_max_f32 v{VT+4}, 0, v{VT+4}")
    E(f"v_add_f32 v{VT+4}, {f2u(1e-5):#x}, v{VT+4}")
    E(f"v_rsq_f32 v{VT+4}, v{VT+4}")
    E("s_nop 0")
    E(f"v_mul_f32 v{VT}, v{VT}, v{VT+4}")
    E(f"v_sub_f32 v{VT}, 0, v{VT}")
    for r in range(128):
        a, b = VT + 8 + 2 * (r & 3), VT + 9 + 2 * (r & 3)
        E(f"v_lshlrev_b32 v{a}, 16, v{VX+r}"); E(f"v_and_b32 v{b}, 0xffff0000, v{VX+r}")
        E(f"v_fma_f32 v{a}, v{a}, v{VT+4}, v{VT}"); E(f"v_fma_f32 v{b}, v{b}, v{VT+4}, v{VT}")
        E(f"v_cvt_pk_bf16_f32 v{VX+r}, v{a}, v{b}")

def load_x(srdreg, ld, nsteps, base=VX):
    E("s_lshl_b32 s10, s3, 5"); E("s_add_u32 s10, s10, s9")
    E("v_add_u32 v9, s10, v3"); E(f"s_mov_b32 s4, {ld}"); E("v_mul_lo_u32 v8, v9, s4")
    E("v_lshlrev_b32 v5, 4, v4"); E("v_add_u32 v8, v8, v5")
    for s in range(nsteps):
        E(f"buffer_load_dwordx4 v[{base+4*s}:{base+4*s+3}], v8, s[{srdreg}:{srdreg+3}], 0 offen offset:{32*s}")
def wgmap():
    E("s_and_b32 s9, s2, 7"); E("s_lshl_b32 s9, s9, 1"); E("s_lshr_b32 s11, s2, 7"); E("s_add_u32 s9, s9, s11"); E("s_lshl_b32 s9, s9, 7")
    E("s_lshr_b32 s11, s2, 3"); E("s_and_b32 s11, s11, 15")
def load_xt(srdreg, nsteps_total, nsteps, base=VX):
    E("s_lshl_b32 s10, s3, 5"); E("s_add_u32 s10, s10, s9"); E("v_add_u32 v9, s10, v3")
    E("s_lshr_b32 s4, s10, 5"); E(f"s_mul_i32 s4, s4, {nsteps_total*1024}")
    E("v_lshlrev_b32 v8, 4, v1"); E("v_add_u32 v8, s4, v8")
    for s in range(nsteps):
        if s % 4 == 0: E(f"s_mov_b32 s4, {1024*s}")
        E(f"buffer_load_dwordx4 v[{base+4*s}:{base+4*s+3}], v8, s[{srdreg}:{srdreg+3}], s4 offen offset:{1024*(s%4)}")
def pack(acc, dst):
    for i in range(8): E(f"v_cvt_pk_bf16_f32 v{dst+i}, v{acc+2*i}, v{acc+2*i+1}")

kernels = []
def k0():
    n = "k0_ln_kernel"; kernels.append((n, 256, 0)); prologue(n, 256)
    E("s_and_b32 s9, s2, 7"); E("s_lshl_b32 s9, s9, 8"); E("s_lshr_b32 s10, s2, 3"); E("s_lshl_b32 s10, s10, 3"); E("s_add_u32 s9, s9, s10")
    E("s_lshl_b32 s10, s3, 1"); E("s_add_u32 s9, s9, s10")
    srd(40, 16, 0, 2*MB); srd(44, 34, WS_XN, 2*MB)
    E("s_lshl_b32 s10, s9, 10"); E("v_lshlrev_b32 v5, 4, v1")
    E("buffer_load_dwordx4 v[16:19], v5, s[40:43], s10 offen"); E("buffer_load_dwordx4 v[20:23], v5, s[40:43], s10 offen offset:1024")
    E("s_lshr_b32 s11, s9, 5"); E("s_lshl_b32 s11, s11, 15"); E("s_and_b32 s12, s9, 31"); E("s_lshl_b32 s12, s12, 4"); E("s_add_u32 s11, s11, s12")
    E("v_lshrrev_b32 v6, 1, v1"); E("v_lshlrev_b32 v6, 10, v6"); E("v_and_b32 v7, 1, v1"); E("v_lshlrev_b32 v7, 9, v7"); E("v_add_u32 v6, v6, v7")
    E("s_mov_b32 s8, 0x3f803f80")
    for q in range(4): E(f"v_mov_b32 v{24+q}, 0")
    E("s_waitcnt vmcnt(0)")
    for r in range(2):
        for i in range(4):
            E(f"v_dot2_f32_bf16 v{24+2*r}, v{16+4*r+i}, s8, v{24+2*r}"); E(f"v_dot2_f32_bf16 v{25+2*r}, v{16+4*r+i}, v{16+4*r+i}, v{25+2*r}")
    E("s_nop 3")
    for off in (0x041F, 0x081F, 0x101F, 0x201F, 0x401F):
        for q in range(4): E(f"ds_swizzle_b32 v{28+q}, v{24+q} offset:{off:#x}")
        E("s_waitcnt lgkmcnt(0)")
        for q in range(4): E(f"v_add_f32 v{24+q}, v{24+q}, v{28+q}")
    for q in range(4): E(f"v_mov_b32 v{28+q}, v{24+q}")
    E("s_nop 1")
    for q in range(4): E(f"v_permlane32_swap_b32 v{24+q}, v{28+q}")
    E("s_nop 1")
    for q in range(4): E(f"v_add_f32 v{24+q}, v{24+q}, v{28+q}")
    for r in range(2):
        a, b = 24+2*r, 25+2*r
        E(f"v_mul_f32 v{a}, {f2u(1/512):#x}, v{a}"); E(f"v_mul_f32 v{b}, {f2u(1/512):#x}, v{b}")
        E(f"v_fma_f32 v{b}, -v{a}, v{a}, v{b}"); E(f"v_max_f32 v{b}, 0, v{b}"); E(f"v_add_f32 v{b}, {f2u(1e-5):#x}, v{b}")
        E(f"v_rsq_f32 v{b}, v{b}"); E("s_nop 0"); E(f"v_mul_f32 v{a}, v{a}, v{b}"); E(f"v_sub_f32 v{a}, 0, v{a}")
        for i in range(4):
            x = 16+4*r+i
            E(f"v_lshlrev_b32 v30, 16, v{x}"); E(f"v_and_b32 v31, 0xffff0000, v{x}")
            E(f"v_fma_f32 v30, v30, v{b}, v{a}"); E(f"v_fma_f32 v31, v31, v{b}, v{a}"); E(f"v_cvt_pk_bf16_f32 v{x}, v30, v31")
        E(f"buffer_store_dwordx4 v[{16+4*r}:{19+4*r}], v6, s[44:47], s11 offen offset:{16*r}")
    epilogue_end(n)
def k1():
    n = "k1_qkv_kernel"; kernels.append((n, 256, 98304)); prologue(n, 256)
    wgmap(); E("s_mul_i32 s11, s11, 3")
    srd(40, 34, WS_XN, 2*MB); srd(44, 18, 0, 512*3072); srd(48, 34, 0, 6*MB)
    dma_setup(3072)
    for j in range(3):
        E(f"s_add_u32 s12, s11, {j}"); E("s_lshl_b32 s12, s12, 6")
        dma_region(44, 12, j*32768, 8, 3072)
        if j == 0: load_xt(40, 32, 32)
    w_addr(False, 10)
    E("v_lshlrev_b32 v11, 5, v9"); E("v_lshlrev_b32 v5, 4, v4"); E("v_add_u32 v11, v11, v5")
    E("v_lshlrev_b32 v12, 12, v3"); E("v_lshlrev_b32 v5, 4, v4"); E("v_add_u32 v12, v12, v5")
    E("s_lshl_b32 s13, s10, 1"); E("v_add_u32 v12, s13, v12")
    E("s_waitcnt vmcnt(0)"); E("s_barrier")
    for j in range(3):
        E(f"v_add_u32 v13, {j*32768}, v10")
        E(f"s_add_u32 s12, s11, {j}"); E("s_cmp_ge_u32 s12, 32"); E(f"s_cbranch_scc1 {n}_v{j}")
        for sw in (False, True):
            if sw: L(f"{n}_v{j}")
            items = [(13, 1024*s, VX+4*s, ACC0) for s in range(32)]
            for _ in mfma_items(items, False, lambda i: sw, lambda i: i == 0): pass
            E("s_nop 15"); pack(ACC0, VT)
            if not sw:
                E("s_lshr_b32 s14, s12, 4"); E("s_lshl_b32 s14, s14, 21"); E("s_and_b32 s15, s12, 15"); E("s_lshl_b32 s15, s15, 17")
                E("s_add_u32 s14, s14, s15"); E("s_add_u32 s15, s14, 65536")
                E(f"buffer_store_dwordx4 v[{VT}:{VT+3}], v11, s[48:51], s14 offen")
                E(f"buffer_store_dwordx4 v[{VT+4}:{VT+7}], v11, s[48:51], s15 offen")
                E(f"s_branch {n}_e{j}")
            else:
                E("s_sub_u32 s14, s12, 32"); E("s_lshl_b32 s14, s14, 17"); E(f"s_add_u32 s14, s14, {WS_V}")
                E(f"buffer_store_dwordx4 v[{VT}:{VT+3}], v12, s[48:51], s14 offen")
                E(f"buffer_store_dwordx4 v[{VT+4}:{VT+7}], v12, s[48:51], s14 offen offset:32")
        L(f"{n}_e{j}"); E("s_nop 1")
    epilogue_end(n)

def k2():
    n = "k2_attn_kernel"; kernels.append((n, 512, 0)); prologue(n, 512)
    Q, KV, S, O = 16, 20, 96, 240
    E("s_lshr_b32 s9, s2, 3"); E("s_lshl_b32 s9, s9, 5")
    E("s_and_b32 s11, s2, 7"); E("s_lshl_b32 s11, s11, 2"); E("s_add_u32 s11, s11, s3")
    srd(40, 34, WS_Q, 2*MB); srd(44, 34, WS_K - 8192, 2*MB + 8192); srd(48, 34, WS_V - 512, 2*MB + 512); srd(52, 34, WS_O, 2*MB)
    E("s_lshl_b32 s12, s11, 11"); E("s_add_u32 s12, s12, s9")
    E("v_add_u32 v5, s12, v3"); E("v_lshlrev_b32 v5, 5, v5"); E("v_lshlrev_b32 v6, 4, v4"); E("v_add_u32 v8, v5, v6")
    E(f"buffer_load_dwordx4 v[{Q}:{Q+3}], v8, s[40:43], 0 offen")
    for kb in range(9):
        E(f"s_mov_b32 s13, {kb*1024}")
        E(f"buffer_load_dwordx4 v[{KV+4*kb}:{KV+4*kb+3}], v8, s[44:47], s13 offen")
    E("v_and_b32 v5, 15, v0"); E("s_lshl_b32 s13, s11, 4"); E("v_add_u32 v5, s13, v5"); E("v_lshlrev_b32 v5, 12, v5")
    E("s_lshl_b32 s13, s9, 1"); E("v_add_u32 v5, s13, v5"); E("v_add_u32 v9, v5, v6")
    E("s_add_u32 s13, s9, s11"); E("s_lshl_b32 s13, s13, 10"); E("v_lshlrev_b32 v5, 4, v1"); E("v_add_u32 v10, s13, v5")
    E("v_lshlrev_b32 v5, 2, v4"); E("v_sub_u32 v11, v3, v5")
    for i in range(16):
        c = 8*(i >> 2) + (i & 3)
        E(f"v_cmp_le_i32 s[{56+2*i}:{57+2*i}], {c}, v11")
    E(f"v_mov_b32 v12, {f2u(-1e30):#x}")
    for kb in range(9):
        E(f"s_waitcnt vmcnt({8-kb})")
        E(f"v_mfma_f32_32x32x16_bf16 v[{S+16*kb}:{S+16*kb+15}], v[{KV+4*kb}:{KV+4*kb+3}], v[{Q}:{Q+3}], 0")
    E("s_nop 3")
    for r in range(72): E(f"v_mov_b32 v{KV+r}, 0x3f803f80")
    E("s_mov_b32 s14, 0x0000ffff"); E("s_mov_b32 s15, 0x0000ffff"); E("s_mov_b64 exec, s[14:15]")
    for t in range(18):
        E(f"buffer_load_dwordx4 v[{KV+4*t}:{KV+4*t+3}], v9, s[48:51], 0 offen offset:{32*t}")
    E("s_mov_b64 exec, -1")
    E("s_nop 7")
    for i in range(16):
        E(f"v_cndmask_b32 v{S+128+i}, v12, v{S+128+i}, s[{56+2*i}:{57+2*i}]")
        E(f"v_cndmask_b32 v{S+i}, v{S+i}, v12, s[{56+2*i}:{57+2*i}]")
    for kb in range(8):
        E(f"s_cmp_ge_u32 s9, {256-32*kb}"); E(f"s_cbranch_scc1 {n}_ok{kb}")
        for i in range(16): E(f"v_mov_b32 v{S+16*kb+i}, v12")
        L(f"{n}_ok{kb}")
    for c in range(4): E(f"v_max_f32 v{4+c}, v{S+c}, v{S+4+c}")
    for r in range(8, 144, 8):
        for c in range(4): E(f"v_max3_f32 v{4+c}, v{4+c}, v{S+r+c}, v{S+r+4+c}")
    E("v_max_f32 v4, v4, v5"); E("v_max_f32 v6, v6, v7"); E("v_max_f32 v4, v4, v6"); E("v_mov_b32 v5, v4")
    E("s_nop 1"); E("v_permlane32_swap_b32 v4, v5"); E("s_nop 1"); E("v_max_f32 v4, v4, v5")
    cc = 0.25 * LOG2E
    E(f"s_mov_b32 s13, {f2u(cc):#x}"); E("v_mul_f32 v4, s13, v4")
    for r in range(0, 144, 4):
        for c in range(4): E(f"v_fma_f32 v{S+r+c}, v{S+r+c}, s13, -v4")
        for c in range(4): E(f"v_exp_f32 v{S+r+c}, v{S+r+c}")
        if r >= 4:
            p = r - 4; d = S + 16*(p//16) + (p % 16)//2
            E(f"v_cvt_pk_bf16_f32 v{d}, v{S+p}, v{S+p+1}"); E(f"v_cvt_pk_bf16_f32 v{d+1}, v{S+p+2}, v{S+p+3}")
    p = 140; d = S + 16*(p//16) + (p % 16)//2
    E("s_nop 0"); E(f"v_cvt_pk_bf16_f32 v{d}, v{S+p}, v{S+p+1}"); E(f"v_cvt_pk_bf16_f32 v{d+1}, v{S+p+2}, v{S+p+3}")
    E("s_nop 1")
    for t in range(18):
        E(f"s_waitcnt vmcnt({17-t})")
        b = S + 16*(t//2) + 4*(t % 2)
        E(f"v_mfma_f32_32x32x16_bf16 v[{O}:{O+15}], v[{KV+4*t}:{KV+4*t+3}], v[{b}:{b+3}], {'0' if t == 0 else f'v[{O}:{O+15}]'}")
    E("s_nop 15"); E(f"v_rcp_f32 v4, v{O+8}"); E("s_nop 0")
    for i in range(8): E(f"v_mul_f32 v{O+i}, v{O+i}, v4")
    for i in range(4): E(f"v_cvt_pk_bf16_f32 v{Q+i}, v{O+2*i}, v{O+2*i+1}")
    E(f"buffer_store_dwordx4 v[{Q}:{Q+3}], v10, s[52:55], 0 offen")
    epilogue_end(n)

def k3():
    n = "k3_wo_kernel"; kernels.append((n, 256, 32768)); prologue(n, 256)
    wgmap(); E("s_lshl_b32 s12, s11, 6")
    srd(40, 34, WS_O, 2*MB); srd(44, 20, 0, 512*1024); srd(48, 34, WS_H, 2*MB); srd(52, 16, 0, 2*MB)
    dma_setup(1024); dma_region(44, 12, 0, 8, 1024)
    load_xt(40, 32, 32)
    w_addr(True, 10)
    E("v_lshlrev_b32 v12, 10, v9"); E("v_lshlrev_b32 v5, 3, v4"); E("v_add_u32 v12, v12, v5"); E("s_lshl_b32 s13, s11, 11")
    for q in range(4): E(f"buffer_load_dwordx2 v[{VT+8+2*q}:{VT+9+2*q}], v12, s[52:55], s12 offen offset:{16*q}")
    E("s_waitcnt vmcnt(0)"); E("s_barrier")
    items = [(10, 1024*s, VX+4*s, ACC0) for s in range(32)]
    for _ in mfma_items(items, True, lambda i: False, lambda i: i == 0): pass
    E("s_nop 15")
    for i in range(8):
        E(f"v_lshlrev_b32 v5, 16, v{VT+8+i}"); E(f"v_and_b32 v6, 0xffff0000, v{VT+8+i}")
        E(f"v_add_f32 v{ACC0+2*i}, v{ACC0+2*i}, v5"); E(f"v_add_f32 v{ACC0+2*i+1}, v{ACC0+2*i+1}, v6")
    pack(ACC0, VT)
    E(f"buffer_store_dwordx4 v[{VT}:{VT+3}], v8, s[48:51], s13 offen")
    E(f"buffer_store_dwordx4 v[{VT+4}:{VT+7}], v8, s[48:51], s13 offen offset:1024")
    epilogue_end(n)

def k4():
    n = "k4_glu_kernel"; kernels.append((n, 256, 163840)); prologue(n, 256)
    wgmap(); E("s_mul_i32 s11, s11, 86"); E("s_and_b32 s11, s11, 0xfffffff0"); E("s_lshl_b32 s11, s11, 1")
    srd(40, 34, WS_H, 2*MB); srd(44, 24, 0, 512*2752); srd(48, 26, 0, 512*2752); srd(52, 34, WS_HH, 2048*2752)
    load_xt(40, 32, 32)
    dma_setup(2752)
    def reg(slot):
        E(f"s_add_u32 s12, s11, {64*(slot//2)}")
        dma_region(44 if slot % 2 == 0 else 48, 12, (slot % 5)*32768, 8, 2752)
    for sl in range(4): reg(sl)
    w_addr(True, 10)
    E("s_lshr_b32 s4, s10, 5"); E(f"s_mul_i32 s4, s4, {86*1024}"); E("v_lshlrev_b32 v11, 4, v1"); E("v_add_u32 v11, s4, v11")
    ln_regs(32)
    reg(4)
    E("s_waitcnt vmcnt(0)"); E("s_barrier")
    E(f"s_mov_b32 s13, {f2u(-LOG2E):#x}")
    for j in range(3):
        sg, su = ((2*j) % 5)*32768, ((2*j+1) % 5)*32768
        E(f"v_add_u32 v13, {sg}, v10"); E(f"v_add_u32 v14, {su}, v10")
        if j == 2: E("s_waitcnt vmcnt(0)"); E("s_barrier")
        items = []
        for s in range(32): items += [(13, 1024*s, VX+4*s, ACC0), (14, 1024*s, VX+4*s, ACC1)]
        for _ in mfma_items(items, True, lambda i: False, lambda i: i < 2): pass
        if j == 0: E("s_barrier"); reg(5)
        E("s_nop 15")
        for i in range(16): E(f"v_mul_f32 v{ACC0+i}, s13, v{ACC0+i}")
        for i in range(16): E(f"v_exp_f32 v{ACC0+i}, v{ACC0+i}")
        for i in range(16): E(f"v_add_f32 v{ACC0+i}, 1.0, v{ACC0+i}")
        for i in range(16): E(f"v_rcp_f32 v{ACC0+i}, v{ACC0+i}")
        for i in range(16): E(f"v_mul_f32 v{ACC0+i}, v{ACC0+i}, v{ACC1+i}")
        pack(ACC0, VT)
        E(f"s_add_u32 s12, s11, {64*j}"); E("s_lshl_b32 s12, s12, 5")
        E(f"buffer_store_dwordx4 v[{VT}:{VT+3}], v11, s[52:55], s12 offen")
        E(f"buffer_store_dwordx4 v[{VT+4}:{VT+7}], v11, s[52:55], s12 offen offset:1024")
        E("s_nop 1")
    epilogue_end(n)

def k5():
    n = "k5_down_kernel"; kernels.append((n, 256, 22*4096)); prologue(n, 256)
    NX = 44; X = 56; global VW
    oldVW = VW; VW = 16; A = 232; T = 48
    wgmap(); E("s_lshl_b32 s12, s11, 6")
    srd(40, 34, WS_HH, 2048*2752); srd(44, 28, 0, 1376*1024); srd(48, 34, WS_H, 2*MB); srd(52, 30, 0, 2*MB)
    dma_setup(1024); dma_region(44, 12, 0, 22, 1024)
    load_xt(40, 86, NX, X)
    w_addr(True, 10); E("v_add_u32 v13, 0x10000, v10")
    E("v_lshlrev_b32 v12, 10, v9"); E("v_lshlrev_b32 v5, 3, v4"); E("v_add_u32 v12, v12, v5")
    E("s_lshl_b32 s13, s10, 10"); E("s_lshl_b32 s14, s11, 11"); E("s_add_u32 s13, s13, s14"); E("v_lshlrev_b32 v11, 4, v1")
    E(f"buffer_load_dwordx4 v[248:251], v11, s[48:51], s13 offen"); E(f"buffer_load_dwordx4 v[252:255], v11, s[48:51], s13 offen offset:1024")
    E("s_waitcnt vmcnt(0)"); E("s_barrier")
    items = [((10, 1024*s) if s < 64 else (13, 1024*(s-64))) + (X+4*(s % NX), A) for s in range(86)]
    for i in mfma_items(items, True, lambda i: False, lambda i: i == 0):
        if i + NX < 86:
            s = i + NX; E(f"s_mov_b32 s4, {1024*s}"); E(f"buffer_load_dwordx4 v[{X+4*i}:{X+4*i+3}], v8, s[40:43], s4 offen")
        if i + 1 >= NX and i + 1 < 86: E(f"s_waitcnt vmcnt({85-(i+1)})")
    VW = oldVW
    E("s_nop 15")
    for i in range(8):
        E(f"v_lshlrev_b32 v5, 16, v{248+i}"); E(f"v_and_b32 v6, 0xffff0000, v{248+i}")
        E(f"v_add_f32 v{A+2*i}, v{A+2*i}, v5"); E(f"v_add_f32 v{A+2*i+1}, v{A+2*i+1}, v6")
    pack(A, T)
    for q in range(4): E(f"buffer_store_dwordx2 v[{T+2*q}:{T+2*q+1}], v12, s[52:55], s12 offen offset:{16*q}")
    epilogue_end(n)

k0(); k1(); k2(); k3(); k4(); k5()
hdr = open("cdna_kernels/" + NAME + ".s.ref").read().split("\n")
head = [l for l in hdr if l.startswith(";") and "@launch" not in l and "Override" not in l and "grid=ceil" not in l]
import os
dup = int(os.environ.get("DUP", "-1"))
ll = []
for idx, (k, g, l) in enumerate(kernels):
    ll += [f"; @launch kernel={k} grid=({g},1,1) block=(256,1,1) lds={l}"] * (5 if idx == dup else 1)
if dup == 99: ll = ll + ll
txt = head + ll
txt += ['.amdgcn_target "amdgcn-amd-amdhsa--gfx950"', ".text"] + out + ['.section .rodata,"a"']
for k, g, l in kernels:
    txt += [".p2align 6", f".amdhsa_kernel {k}", "  .amdhsa_next_free_vgpr 256", "  .amdhsa_next_free_sgpr 102", "  .amdhsa_accum_offset 256",
            "  .amdhsa_group_segment_fixed_size 0", "  .amdhsa_kernarg_size 80", "  .amdhsa_user_sgpr_count 2",
            "  .amdhsa_user_sgpr_kernarg_segment_ptr 1", "  .amdhsa_system_sgpr_workgroup_id_x 1", ".end_amdhsa_kernel"]
open(os.environ.get("OUT", "cdna_kernels/" + NAME + ".s"), "w").write("\n".join(txt) + "\n")
```

```python
import sys, os
NAME = "sequential_preLN__sliding_block__glu_gated_glu__prompt"
out = []
def E(s): out.append("    " + s)
def L(s): out.append(s + ":")
MB = 1 << 20
WS_Q, WS_K, WS_V, WS_O, WS_H, WS_HH = 0, 2*MB, 4*MB, 6*MB, 8*MB, 10*MB
WS_XN = 16*MB
LOG2E = 1.4426950408889634
import struct
def f2u(f): return struct.unpack("<I", struct.pack("<f", f))[0]

def prologue(name, nwg):
    out.append(".p2align 8"); out.append(f".globl {name}"); out.append(f".type {name},@function"); L(name)
    E(f"s_cmp_ge_u32 s2, {nwg}"); E(f"s_cbranch_scc1 {name}_done")
    E("s_load_dwordx16 s[16:31], s[0:1], 0"); E("s_load_dwordx4 s[32:35], s[0:1], 64")
    E("v_and_b32 v1, 63, v0")
    E("v_lshrrev_b32 v2, 6, v0")
    E("v_and_b32 v3, 31, v0")
    E("v_readfirstlane_b32 s3, v2")
    E("v_bfe_u32 v4, v0, 5, 1")
    E("s_waitcnt lgkmcnt(0)")
STAMPK = os.environ.get("STAMP", "")
nst = [0]
def stamp(name):
    if name != STAMPK: return
    E("s_memtime s[88:89]"); E("s_waitcnt lgkmcnt(0)"); E(f"s_mov_b32 s{90+nst[0]}, s88"); nst[0] += 1
def epilogue_end(name):
    if name == STAMPK:
        stamp(name)
        E("s_cmp_lg_u32 s2, 8"); E(f"s_cbranch_scc1 {name}_done"); E("s_cmp_lg_u32 s3, 0"); E(f"s_cbranch_scc1 {name}_done")
        srd(40, 32, 0, 256)
        for i in range(nst[0]):
            E(f"s_sub_u32 s4, s{90+i}, s90"); E("v_mov_b32 v5, s4"); E(f"v_mov_b32 v6, {4*i}"); E("buffer_store_dword v5, v6, s[40:43], 0 offen")
    L(f"{name}_done"); E("s_endpgm")
def srd(d, base, off, size):
    if off >= 0:
        E(f"s_add_u32 s{d}, s{base}, {off}"); E(f"s_addc_u32 s{d+1}, s{base+1}, 0")
    else:
        E(f"s_sub_u32 s{d}, s{base}, {-off}"); E(f"s_subb_u32 s{d+1}, s{base+1}, 0")
    E(f"s_mov_b32 s{d+2}, {size}"); E(f"s_mov_b32 s{d+3}, 0x00020000")

VX, VW, ACC0, ACC1, VT = 16, 144, 176, 192, 208

def w_addr(perm, vdst):
    E("v_bfe_u32 v5, v0, 2, 2")
    E(f"v_lshlrev_b32 v6, {2 if perm else 3}, v4")
    E("v_add_u32 v5, v5, v6")
    E("v_lshlrev_b32 v5, 6, v5")
    E("v_bfe_u32 v6, v0, 4, 1")
    E("v_lshlrev_b32 v6, 5, v6")
    E("v_add_u32 v5, v5, v6")
    E("v_and_b32 v6, 3, v0")
    E("v_lshlrev_b32 v6, 3, v6")
    E(f"v_add_u32 v{vdst}, v5, v6")

def dma_setup(ldw):
    E("v_lshrrev_b32 v5, 2, v0"); E(f"s_mov_b32 s4, {ldw}"); E("v_mul_lo_u32 v5, v5, s4")
    E("v_and_b32 v6, 3, v0"); E("v_lshlrev_b32 v6, 4, v6"); E("v_add_u32 v7, v5, v6")
    E("s_lshl_b32 s5, s3, 10")
def dma_region(srdreg, scol, ldsbase, nj, ldw):
    E(f"s_mov_b32 s6, s{scol}"); E(f"s_add_u32 s7, s5, {ldsbase}")
    for j in range(nj):
        E("s_mov_b32 m0, s7");
        if j + 1 < nj: E("s_add_u32 s7, s7, 4096")
        else: E("s_nop 0")
        E(f"buffer_load_dwordx4 v7, s[{srdreg}:{srdreg+3}], s6 offen lds")
        if j + 1 < nj: E(f"s_add_u32 s6, s6, {64*ldw}")

def mfma_items(items, perm, swap_of, first_of):
    d2 = 512 if perm else 256
    n = len(items); D = 6
    def rd(i):
        va, off, _, _ = items[i]; w = VW + 4 * (i % 8)
        E(f"ds_read_b64_tr_b16 v[{w}:{w+1}], v{va} offset:{off}")
        E(f"ds_read_b64_tr_b16 v[{w+2}:{w+3}], v{va} offset:{off+d2}")
    for i in range(min(D, n)): rd(i)
    for i in range(n):
        va, off, x, acc = items[i][:4]; w = VW + 4 * (i % 8)
        E(f"s_waitcnt lgkmcnt({2*(min(i+D-1, n-1)-i)})")
        c = "0" if first_of(i) else f"v[{acc}:{acc+15}]"
        if swap_of(i): E(f"v_mfma_f32_32x32x16_bf16 v[{acc}:{acc+15}], v[{x}:{x+3}], v[{w}:{w+3}], {c}")
        else:          E(f"v_mfma_f32_32x32x16_bf16 v[{acc}:{acc+15}], v[{w}:{w+3}], v[{x}:{x+3}], {c}")
        if i + D < n: rd(i + D)
        yield i

def ln_regs(ndma):
    E("s_mov_b32 s8, 0x3f803f80")
    for q in range(4): E(f"v_mov_b32 v{VT+q}, 0"); E(f"v_mov_b32 v{VT+4+q}, 0")
    for g in range(4):
        E(f"s_waitcnt vmcnt({min(63, 24-8*g+ndma)})")
        for r in range(32*g, 32*g+32):
            E(f"v_dot2_f32_bf16 v{VT+(r&3)}, v{VX+r}, s8, v{VT+(r&3)}")
            E(f"v_dot2_f32_bf16 v{VT+4+(r&3)}, v{VX+r}, v{VX+r}, v{VT+4+(r&3)}")
    E("s_nop 3")
    E(f"v_add_f32 v{VT}, v{VT}, v{VT+1}"); E(f"v_add_f32 v{VT+2}, v{VT+2}, v{VT+3}")
    E(f"v_add_f32 v{VT+4}, v{VT+4}, v{VT+5}"); E(f"v_add_f32 v{VT+6}, v{VT+6}, v{VT+7}")
    E(f"v_add_f32 v{VT}, v{VT}, v{VT+2}"); E(f"v_add_f32 v{VT+4}, v{VT+4}, v{VT+6}")
    E(f"v_mov_b32 v{VT+1}, v{VT}"); E(f"v_mov_b32 v{VT+5}, v{VT+4}")
    E("s_nop 1")
    E(f"v_permlane32_swap_b32 v{VT}, v{VT+1}"); E(f"v_permlane32_swap_b32 v{VT+4}, v{VT+5}")
    E("s_nop 1")
    E(f"v_add_f32 v{VT}, v{VT}, v{VT+1}"); E(f"v_add_f32 v{VT+4}, v{VT+4}, v{VT+5}")
    E(f"v_mul_f32 v{VT}, {f2u(1/512):#x}, v{VT}")
    E(f"v_mul_f32 v{VT+4}, {f2u(1/512):#x}, v{VT+4}")
    E(f"v_fma_f32 v{VT+4}, -v{VT}, v{VT}, v{VT+4}")
    E(f"v_max_f32 v{VT+4}, 0, v{VT+4}")
    E(f"v_add_f32 v{VT+4}, {f2u(1e-5):#x}, v{VT+4}")
    E(f"v_rsq_f32 v{VT+4}, v{VT+4}")
    E("s_nop 0")
    E(f"v_mul_f32 v{VT}, v{VT}, v{VT+4}")
    E(f"v_sub_f32 v{VT}, 0, v{VT}")
    for r in range(128):
        a, b = VT + 8 + 2 * (r & 3), VT + 9 + 2 * (r & 3)
        E(f"v_lshlrev_b32 v{a}, 16, v{VX+r}"); E(f"v_and_b32 v{b}, 0xffff0000, v{VX+r}")
        E(f"v_fma_f32 v{a}, v{a}, v{VT+4}, v{VT}"); E(f"v_fma_f32 v{b}, v{b}, v{VT+4}, v{VT}")
        E(f"v_cvt_pk_bf16_f32 v{VX+r}, v{a}, v{b}")

def load_x(srdreg, ld, nsteps, base=VX):
    E("s_lshl_b32 s10, s3, 5"); E("s_add_u32 s10, s10, s9")
    E("v_add_u32 v9, s10, v3"); E(f"s_mov_b32 s4, {ld}"); E("v_mul_lo_u32 v8, v9, s4")
    E("v_lshlrev_b32 v5, 4, v4"); E("v_add_u32 v8, v8, v5")
    for s in range(nsteps):
        E(f"buffer_load_dwordx4 v[{base+4*s}:{base+4*s+3}], v8, s[{srdreg}:{srdreg+3}], 0 offen offset:{32*s}")
def wgmap():
    E("s_and_b32 s9, s2, 7"); E("s_lshl_b32 s9, s9, 1"); E("s_lshr_b32 s11, s2, 7"); E("s_add_u32 s9, s9, s11"); E("s_lshl_b32 s9, s9, 7")
    E("s_lshr_b32 s11, s2, 3"); E("s_and_b32 s11, s11, 15")
def load_xt(srdreg, nsteps_total, nsteps, base=VX):
    E("s_lshl_b32 s10, s3, 5"); E("s_add_u32 s10, s10, s9"); E("v_add_u32 v9, s10, v3")
    E("s_lshr_b32 s4, s10, 5"); E(f"s_mul_i32 s4, s4, {nsteps_total*1024}")
    E("v_lshlrev_b32 v8, 4, v1"); E("v_add_u32 v8, s4, v8")
    for s in range(nsteps):
        if s % 4 == 0: E(f"s_mov_b32 s4, {1024*s}")
        E(f"buffer_load_dwordx4 v[{base+4*s}:{base+4*s+3}], v8, s[{srdreg}:{srdreg+3}], s4 offen offset:{1024*(s%4)}")
def pack(acc, dst):
    for i in range(8): E(f"v_cvt_pk_bf16_f32 v{dst+i}, v{acc+2*i}, v{acc+2*i+1}")

kernels = []
def k0():
    n = "k0_ln_kernel"; kernels.append((n, 256, 0)); prologue(n, 256)
    E("s_and_b32 s9, s2, 7"); E("s_lshl_b32 s9, s9, 8"); E("s_lshr_b32 s10, s2, 3"); E("s_lshl_b32 s10, s10, 3"); E("s_add_u32 s9, s9, s10")
    E("s_lshl_b32 s10, s3, 1"); E("s_add_u32 s9, s9, s10")
    srd(40, 16, 0, 2*MB); srd(44, 34, WS_XN, 2*MB)
    E("s_lshl_b32 s10, s9, 10"); E("v_lshlrev_b32 v5, 4, v1")
    E("buffer_load_dwordx4 v[16:19], v5, s[40:43], s10 offen"); E("buffer_load_dwordx4 v[20:23], v5, s[40:43], s10 offen offset:1024")
    E("s_lshr_b32 s11, s9, 5"); E("s_lshl_b32 s11, s11, 15"); E("s_and_b32 s12, s9, 31"); E("s_lshl_b32 s12, s12, 4"); E("s_add_u32 s11, s11, s12")
    E("v_lshrrev_b32 v6, 1, v1"); E("v_lshlrev_b32 v6, 10, v6"); E("v_and_b32 v7, 1, v1"); E("v_lshlrev_b32 v7, 9, v7"); E("v_add_u32 v6, v6, v7")
    E("s_mov_b32 s8, 0x3f803f80")
    for q in range(4): E(f"v_mov_b32 v{24+q}, 0")
    E("s_waitcnt vmcnt(0)")
    for r in range(2):
        for i in range(4):
            E(f"v_dot2_f32_bf16 v{24+2*r}, v{16+4*r+i}, s8, v{24+2*r}"); E(f"v_dot2_f32_bf16 v{25+2*r}, v{16+4*r+i}, v{16+4*r+i}, v{25+2*r}")
    E("s_nop 3")
    for off in (0x041F, 0x081F, 0x101F, 0x201F, 0x401F):
        for q in range(4): E(f"ds_swizzle_b32 v{28+q}, v{24+q} offset:{off:#x}")
        E("s_waitcnt lgkmcnt(0)")
        for q in range(4): E(f"v_add_f32 v{24+q}, v{24+q}, v{28+q}")
    for q in range(4): E(f"v_mov_b32 v{28+q}, v{24+q}")
    E("s_nop 1")
    for q in range(4): E(f"v_permlane32_swap_b32 v{24+q}, v{28+q}")
    E("s_nop 1")
    for q in range(4): E(f"v_add_f32 v{24+q}, v{24+q}, v{28+q}")
    for r in range(2):
        a, b = 24+2*r, 25+2*r
        E(f"v_mul_f32 v{a}, {f2u(1/512):#x}, v{a}"); E(f"v_mul_f32 v{b}, {f2u(1/512):#x}, v{b}")
        E(f"v_fma_f32 v{b}, -v{a}, v{a}, v{b}"); E(f"v_max_f32 v{b}, 0, v{b}"); E(f"v_add_f32 v{b}, {f2u(1e-5):#x}, v{b}")
        E(f"v_rsq_f32 v{b}, v{b}"); E("s_nop 0"); E(f"v_mul_f32 v{a}, v{a}, v{b}"); E(f"v_sub_f32 v{a}, 0, v{a}")
        for i in range(4):
            x = 16+4*r+i
            E(f"v_lshlrev_b32 v30, 16, v{x}"); E(f"v_and_b32 v31, 0xffff0000, v{x}")
            E(f"v_fma_f32 v30, v30, v{b}, v{a}"); E(f"v_fma_f32 v31, v31, v{b}, v{a}"); E(f"v_cvt_pk_bf16_f32 v{x}, v30, v31")
        E(f"buffer_store_dwordx4 v[{16+4*r}:{19+4*r}], v6, s[44:47], s11 offen offset:{16*r}")
    epilogue_end(n)
def k1():
    n = "k1_qkv_kernel"; kernels.append((n, 256, 98304)); prologue(n, 256)
    wgmap(); E("s_mul_i32 s11, s11, 3")
    srd(40, 34, WS_XN, 2*MB); srd(44, 18, 0, 512*3072); srd(48, 34, 0, 6*MB)
    dma_setup(3072)
    for j in range(3):
        E(f"s_add_u32 s12, s11, {j}"); E("s_lshl_b32 s12, s12, 6")
        dma_region(44, 12, j*32768, 8, 3072)
        if j == 0: load_xt(40, 32, 32)
    w_addr(False, 10)
    E("v_lshlrev_b32 v11, 5, v9"); E("v_lshlrev_b32 v5, 4, v4"); E("v_add_u32 v11, v11, v5")
    E("v_lshlrev_b32 v12, 12, v3"); E("v_lshlrev_b32 v5, 4, v4"); E("v_add_u32 v12, v12, v5")
    E("s_lshl_b32 s13, s10, 1"); E("v_add_u32 v12, s13, v12")
    E("s_waitcnt vmcnt(0)"); E("s_barrier")
    for j in range(3):
        E(f"v_add_u32 v13, {j*32768}, v10")
        E(f"s_add_u32 s12, s11, {j}"); E("s_cmp_ge_u32 s12, 32"); E(f"s_cbranch_scc1 {n}_v{j}")
        for sw in (False, True):
            if sw: L(f"{n}_v{j}")
            items = [(13, 1024*s, VX+4*s, ACC0) for s in range(32)]
            for _ in mfma_items(items, False, lambda i: sw, lambda i: i == 0): pass
            E("s_nop 15"); pack(ACC0, VT)
            if not sw:
                E("s_lshr_b32 s14, s12, 4"); E("s_lshl_b32 s14, s14, 21"); E("s_and_b32 s15, s12, 15"); E("s_lshl_b32 s15, s15, 17")
                E("s_add_u32 s14, s14, s15"); E("s_add_u32 s15, s14, 65536")
                E(f"buffer_store_dwordx4 v[{VT}:{VT+3}], v11, s[48:51], s14 offen")
                E(f"buffer_store_dwordx4 v[{VT+4}:{VT+7}], v11, s[48:51], s15 offen")
                E(f"s_branch {n}_e{j}")
            else:
                E("s_sub_u32 s14, s12, 32"); E("s_lshl_b32 s14, s14, 17"); E(f"s_add_u32 s14, s14, {WS_V}")
                E(f"buffer_store_dwordx4 v[{VT}:{VT+3}], v12, s[48:51], s14 offen")
                E(f"buffer_store_dwordx4 v[{VT+4}:{VT+7}], v12, s[48:51], s14 offen offset:32")
        L(f"{n}_e{j}"); E("s_nop 1")
    epilogue_end(n)

def k2():
    n = "k2_attn_kernel"; kernels.append((n, 512, 0)); prologue(n, 512)
    Q, KV, S, O = 16, 20, 96, 240
    E("s_lshr_b32 s9, s2, 3"); E("s_lshl_b32 s9, s9, 5")
    E("s_and_b32 s11, s2, 7"); E("s_lshl_b32 s11, s11, 2"); E("s_add_u32 s11, s11, s3")
    srd(40, 34, WS_Q, 2*MB); srd(44, 34, WS_K - 8192, 2*MB + 8192); srd(48, 34, WS_V - 512, 2*MB + 512); srd(52, 34, WS_O, 2*MB)
    E("s_lshl_b32 s12, s11, 11"); E("s_add_u32 s12, s12, s9")
    E("v_add_u32 v5, s12, v3"); E("v_lshlrev_b32 v5, 5, v5"); E("v_lshlrev_b32 v6, 4, v4"); E("v_add_u32 v8, v5, v6")
    E(f"buffer_load_dwordx4 v[{Q}:{Q+3}], v8, s[40:43], 0 offen")
    for kb in range(9):
        E(f"s_mov_b32 s13, {kb*1024}")
        E(f"buffer_load_dwordx4 v[{KV+4*kb}:{KV+4*kb+3}], v8, s[44:47], s13 offen")
    E("v_and_b32 v5, 15, v0"); E("s_lshl_b32 s13, s11, 4"); E("v_add_u32 v5, s13, v5"); E("v_lshlrev_b32 v5, 12, v5")
    E("s_lshl_b32 s13, s9, 1"); E("v_add_u32 v5, s13, v5"); E("v_add_u32 v9, v5, v6")
    E("s_add_u32 s13, s9, s11"); E("s_lshl_b32 s13, s13, 10"); E("v_lshlrev_b32 v5, 4, v1"); E("v_add_u32 v10, s13, v5")
    E("v_lshlrev_b32 v5, 2, v4"); E("v_sub_u32 v11, v3, v5")
    for i in range(16):
        c = 8*(i >> 2) + (i & 3)
        E(f"v_cmp_le_i32 s[{56+2*i}:{57+2*i}], {c}, v11")
    E(f"v_mov_b32 v12, {f2u(-1e30):#x}")
    for kb in range(9):
        E(f"s_waitcnt vmcnt({8-kb})")
        E(f"v_mfma_f32_32x32x16_bf16 v[{S+16*kb}:{S+16*kb+15}], v[{KV+4*kb}:{KV+4*kb+3}], v[{Q}:{Q+3}], 0")
    E("s_nop 3")
    for r in range(72): E(f"v_mov_b32 v{KV+r}, 0x3f803f80")
    E("s_mov_b32 s14, 0x0000ffff"); E("s_mov_b32 s15, 0x0000ffff"); E("s_mov_b64 exec, s[14:15]")
    for t in range(18):
        E(f"buffer_load_dwordx4 v[{KV+4*t}:{KV+4*t+3}], v9, s[48:51], 0 offen offset:{32*t}")
    E("s_mov_b64 exec, -1")
    E("s_nop 7")
    for i in range(16):
        E(f"v_cndmask_b32 v{S+128+i}, v12, v{S+128+i}, s[{56+2*i}:{57+2*i}]")
        E(f"v_cndmask_b32 v{S+i}, v{S+i}, v12, s[{56+2*i}:{57+2*i}]")
    for kb in range(8):
        E(f"s_cmp_ge_u32 s9, {256-32*kb}"); E(f"s_cbranch_scc1 {n}_ok{kb}")
        for i in range(16): E(f"v_mov_b32 v{S+16*kb+i}, v12")
        L(f"{n}_ok{kb}")
    for c in range(4): E(f"v_max_f32 v{4+c}, v{S+c}, v{S+4+c}")
    for r in range(8, 144, 8):
        for c in range(4): E(f"v_max3_f32 v{4+c}, v{4+c}, v{S+r+c}, v{S+r+4+c}")
    E("v_max_f32 v4, v4, v5"); E("v_max_f32 v6, v6, v7"); E("v_max_f32 v4, v4, v6"); E("v_mov_b32 v5, v4")
    E("s_nop 1"); E("v_permlane32_swap_b32 v4, v5"); E("s_nop 1"); E("v_max_f32 v4, v4, v5")
    cc = 0.25 * LOG2E
    E(f"s_mov_b32 s13, {f2u(cc):#x}"); E("v_mul_f32 v4, s13, v4")
    for r in range(0, 144, 4):
        for c in range(4): E(f"v_fma_f32 v{S+r+c}, v{S+r+c}, s13, -v4")
        for c in range(4): E(f"v_exp_f32 v{S+r+c}, v{S+r+c}")
        if r >= 4:
            p = r - 4; d = S + 16*(p//16) + (p % 16)//2
            E(f"v_cvt_pk_bf16_f32 v{d}, v{S+p}, v{S+p+1}"); E(f"v_cvt_pk_bf16_f32 v{d+1}, v{S+p+2}, v{S+p+3}")
    p = 140; d = S + 16*(p//16) + (p % 16)//2
    E("s_nop 0"); E(f"v_cvt_pk_bf16_f32 v{d}, v{S+p}, v{S+p+1}"); E(f"v_cvt_pk_bf16_f32 v{d+1}, v{S+p+2}, v{S+p+3}")
    E("s_nop 1")
    for t in range(18):
        E(f"s_waitcnt vmcnt({17-t})")
        b = S + 16*(t//2) + 4*(t % 2)
        E(f"v_mfma_f32_32x32x16_bf16 v[{O}:{O+15}], v[{KV+4*t}:{KV+4*t+3}], v[{b}:{b+3}], {'0' if t == 0 else f'v[{O}:{O+15}]'}")
    E("s_nop 15"); E(f"v_rcp_f32 v4, v{O+8}"); E("s_nop 0")
    for i in range(8): E(f"v_mul_f32 v{O+i}, v{O+i}, v4")
    for i in range(4): E(f"v_cvt_pk_bf16_f32 v{Q+i}, v{O+2*i}, v{O+2*i+1}")
    E(f"buffer_store_dwordx4 v[{Q}:{Q+3}], v10, s[52:55], 0 offen")
    epilogue_end(n)

def k3():
    n = "k3_wo_kernel"; kernels.append((n, 256, 32768)); prologue(n, 256)
    wgmap(); E("s_lshl_b32 s12, s11, 6")
    srd(40, 34, WS_O, 2*MB); srd(44, 20, 0, 512*1024); srd(48, 34, WS_H, 2*MB); srd(52, 16, 0, 2*MB)
    dma_setup(1024); dma_region(44, 12, 0, 8, 1024)
    load_xt(40, 32, 32)
    w_addr(True, 10)
    E("v_lshlrev_b32 v12, 10, v9"); E("v_lshlrev_b32 v5, 3, v4"); E("v_add_u32 v12, v12, v5"); E("s_lshl_b32 s13, s11, 11")
    for q in range(4): E(f"buffer_load_dwordx2 v[{VT+8+2*q}:{VT+9+2*q}], v12, s[52:55], s12 offen offset:{16*q}")
    E("s_waitcnt vmcnt(0)"); E("s_barrier")
    items = [(10, 1024*s, VX+4*s, ACC0) for s in range(32)]
    for _ in mfma_items(items, True, lambda i: False, lambda i: i == 0): pass
    E("s_nop 15")
    for i in range(8):
        E(f"v_lshlrev_b32 v5, 16, v{VT+8+i}"); E(f"v_and_b32 v6, 0xffff0000, v{VT+8+i}")
        E(f"v_add_f32 v{ACC0+2*i}, v{ACC0+2*i}, v5"); E(f"v_add_f32 v{ACC0+2*i+1}, v{ACC0+2*i+1}, v6")
    pack(ACC0, VT)
    E(f"buffer_store_dwordx4 v[{VT}:{VT+3}], v8, s[48:51], s13 offen")
    E(f"buffer_store_dwordx4 v[{VT+4}:{VT+7}], v8, s[48:51], s13 offen offset:1024")
    epilogue_end(n)

def k4():
    n = "k4_glu_kernel"; kernels.append((n, 256, 163840)); prologue(n, 256)
    stamp(n); wgmap(); E("s_mul_i32 s11, s11, 86"); E("s_and_b32 s11, s11, 0xfffffff0"); E("s_lshl_b32 s11, s11, 1")
    srd(40, 34, WS_H, 2*MB); srd(44, 24, 0, 512*2752); srd(48, 26, 0, 512*2752); srd(52, 34, WS_HH, 2048*2752)
    load_xt(40, 32, 32)
    dma_setup(2752)
    def reg(slot):
        E(f"s_add_u32 s12, s11, {64*(slot//2)}")
        dma_region(44 if slot % 2 == 0 else 48, 12, (slot % 5)*32768, 8, 2752)
    for sl in range(4): reg(sl)
    w_addr(True, 10)
    E("s_lshr_b32 s4, s10, 5"); E(f"s_mul_i32 s4, s4, {86*1024}"); E("v_lshlrev_b32 v11, 4, v1"); E("v_add_u32 v11, s4, v11")
    stamp(n); ln_regs(32); stamp(n)
    reg(4)
    E("s_waitcnt vmcnt(0)"); E("s_barrier"); stamp(n)
    E(f"s_mov_b32 s13, {f2u(-LOG2E):#x}")
    for j in range(3):
        sg, su = ((2*j) % 5)*32768, ((2*j+1) % 5)*32768
        E(f"v_add_u32 v13, {sg}, v10"); E(f"v_add_u32 v14, {su}, v10")
        if j == 2: E("s_waitcnt vmcnt(0)"); E("s_barrier")
        items = []
        for s in range(32): items += [(13, 1024*s, VX+4*s, ACC0), (14, 1024*s, VX+4*s, ACC1)]
        for _ in mfma_items(items, True, lambda i: False, lambda i: i < 2): pass
        stamp(n)
        if j == 0: E("s_barrier"); reg(5)
        E("s_nop 15")
        for i in range(16): E(f"v_mul_f32 v{ACC0+i}, s13, v{ACC0+i}")
        for i in range(16): E(f"v_exp_f32 v{ACC0+i}, v{ACC0+i}")
        for i in range(16): E(f"v_add_f32 v{ACC0+i}, 1.0, v{ACC0+i}")
        for i in range(16): E(f"v_rcp_f32 v{ACC0+i}, v{ACC0+i}")
        for i in range(16): E(f"v_mul_f32 v{ACC0+i}, v{ACC0+i}, v{ACC1+i}")
        pack(ACC0, VT)
        E(f"s_add_u32 s12, s11, {64*j}"); E("s_lshl_b32 s12, s12, 5")
        E(f"buffer_store_dwordx4 v[{VT}:{VT+3}], v11, s[52:55], s12 offen")
        E(f"buffer_store_dwordx4 v[{VT+4}:{VT+7}], v11, s[52:55], s12 offen offset:1024")
        E("s_nop 1")
    epilogue_end(n)

def k5():
    n = "k5_down_kernel"; kernels.append((n, 256, 22*4096)); prologue(n, 256)
    NX = 44; X = 56; global VW
    oldVW = VW; VW = 16; A = 232; T = 48
    wgmap(); E("s_lshl_b32 s12, s11, 6")
    srd(40, 34, WS_HH, 2048*2752); srd(44, 28, 0, 1376*1024); srd(48, 34, WS_H, 2*MB); srd(52, 30, 0, 2*MB)
    dma_setup(1024); dma_region(44, 12, 0, 22, 1024)
    load_xt(40, 86, NX, X)
    w_addr(True, 10); E("v_add_u32 v13, 0x10000, v10")
    E("v_lshlrev_b32 v12, 10, v9"); E("v_lshlrev_b32 v5, 3, v4"); E("v_add_u32 v12, v12, v5")
    E("s_lshl_b32 s13, s10, 10"); E("s_lshl_b32 s14, s11, 11"); E("s_add_u32 s13, s13, s14"); E("v_lshlrev_b32 v11, 4, v1")
    E(f"buffer_load_dwordx4 v[248:251], v11, s[48:51], s13 offen"); E(f"buffer_load_dwordx4 v[252:255], v11, s[48:51], s13 offen offset:1024")
    E("s_waitcnt vmcnt(0)"); E("s_barrier")
    items = [((10, 1024*s) if s < 64 else (13, 1024*(s-64))) + (X+4*(s % NX), A) for s in range(86)]
    for i in mfma_items(items, True, lambda i: False, lambda i: i == 0):
        if i + NX < 86:
            s = i + NX; E(f"s_mov_b32 s4, {1024*s}"); E(f"buffer_load_dwordx4 v[{X+4*i}:{X+4*i+3}], v8, s[40:43], s4 offen")
        if i + 1 >= NX and i + 1 < 86: E(f"s_waitcnt vmcnt({85-(i+1)})")
    VW = oldVW
    E("s_nop 15")
    for i in range(8):
        E(f"v_lshlrev_b32 v5, 16, v{248+i}"); E(f"v_and_b32 v6, 0xffff0000, v{248+i}")
        E(f"v_add_f32 v{A+2*i}, v{A+2*i}, v5"); E(f"v_add_f32 v{A+2*i+1}, v{A+2*i+1}, v6")
    pack(A, T)
    for q in range(4): E(f"buffer_store_dwordx2 v[{T+2*q}:{T+2*q+1}], v12, s[52:55], s12 offen offset:{16*q}")
    epilogue_end(n)

k0(); k1(); k2(); k3(); k4(); k5()
hdr = open("cdna_kernels/" + NAME + ".s.ref").read().split("\n")
head = [l for l in hdr if l.startswith(";") and "@launch" not in l and "Override" not in l and "grid=ceil" not in l]
import os
dup = int(os.environ.get("DUP", "-1"))
ll = []
for idx, (k, g, l) in enumerate(kernels):
    ll += [f"; @launch kernel={k} grid=({g},1,1) block=(256,1,1) lds={l}"] * (5 if idx == dup else 1)
if dup == 99: ll = ll + ll
if STAMPK:
    ll = ll + [x for x in ll if STAMPK in x]
txt = head + ll
txt += ['.amdgcn_target "amdgcn-amd-amdhsa--gfx950"', ".text"] + out + ['.section .rodata,"a"']
for k, g, l in kernels:
    txt += [".p2align 6", f".amdhsa_kernel {k}", "  .amdhsa_next_free_vgpr 256", "  .amdhsa_next_free_sgpr 102", "  .amdhsa_accum_offset 256",
            "  .amdhsa_group_segment_fixed_size 0", "  .amdhsa_kernarg_size 80", "  .amdhsa_user_sgpr_count 2",
            "  .amdhsa_user_sgpr_kernarg_segment_ptr 1", "  .amdhsa_system_sgpr_workgroup_id_x 1", ".end_amdhsa_kernel"]
open(os.environ.get("OUT", "cdna_kernels/" + NAME + ".s"), "w").write("\n".join(txt) + "\n")
```

```python
import sys, os
NAME = "sequential_preLN__sliding_block__glu_gated_glu__prompt"
out = []
def E(s): out.append("    " + s)
def L(s): out.append(s + ":")
MB = 1 << 20
WS_Q, WS_K, WS_V, WS_O, WS_H, WS_HH = 0, 2*MB, 4*MB, 6*MB, 8*MB, 10*MB
WS_XN = 16*MB
LOG2E = 1.4426950408889634
import struct
def f2u(f): return struct.unpack("<I", struct.pack("<f", f))[0]

def prologue(name, nwg):
    out.append(".p2align 8"); out.append(f".globl {name}"); out.append(f".type {name},@function"); L(name)
    E(f"s_cmp_ge_u32 s2, {nwg}"); E(f"s_cbranch_scc1 {name}_done")
    E("s_load_dwordx16 s[16:31], s[0:1], 0"); E("s_load_dwordx4 s[32:35], s[0:1], 64")
    E("v_and_b32 v1, 63, v0")
    E("v_lshrrev_b32 v2, 6, v0")
    E("v_and_b32 v3, 31, v0")
    E("v_readfirstlane_b32 s3, v2")
    E("v_bfe_u32 v4, v0, 5, 1")
    E("s_waitcnt lgkmcnt(0)")
STAMPK = os.environ.get("STAMP", "")
nst = [0]
def stamp(name):
    if name != STAMPK: return
    E("s_memtime s[88:89]"); E("s_waitcnt lgkmcnt(0)"); E(f"s_mov_b32 s{90+nst[0]}, s88"); nst[0] += 1
def epilogue_end(name):
    if name == STAMPK:
        stamp(name)
        E("s_cmp_lg_u32 s2, 8"); E(f"s_cbranch_scc1 {name}_done"); E("s_cmp_lg_u32 s3, 0"); E(f"s_cbranch_scc1 {name}_done")
        srd(40, 32, 0, 256)
        for i in range(nst[0]):
            E(f"s_sub_u32 s4, s{90+i}, s90"); E("v_mov_b32 v5, s4"); E(f"v_mov_b32 v6, {4*i}"); E("buffer_store_dword v5, v6, s[40:43], 0 offen")
    L(f"{name}_done"); E("s_endpgm")
def srd(d, base, off, size):
    if off >= 0:
        E(f"s_add_u32 s{d}, s{base}, {off}"); E(f"s_addc_u32 s{d+1}, s{base+1}, 0")
    else:
        E(f"s_sub_u32 s{d}, s{base}, {-off}"); E(f"s_subb_u32 s{d+1}, s{base+1}, 0")
    E(f"s_mov_b32 s{d+2}, {size}"); E(f"s_mov_b32 s{d+3}, 0x00020000")

VX, VW, ACC0, ACC1, VT = 16, 144, 176, 192, 208

def w_addr(perm, vdst):
    E("v_bfe_u32 v5, v0, 2, 2")
    E(f"v_lshlrev_b32 v6, {2 if perm else 3}, v4")
    E("v_add_u32 v5, v5, v6")
    E("v_lshlrev_b32 v5, 6, v5")
    E("v_bfe_u32 v6, v0, 4, 1")
    E("v_lshlrev_b32 v6, 5, v6")
    E("v_add_u32 v5, v5, v6")
    E("v_and_b32 v6, 3, v0")
    E("v_lshlrev_b32 v6, 3, v6")
    E(f"v_add_u32 v{vdst}, v5, v6")

def dma_setup(ldw):
    E("v_lshrrev_b32 v5, 2, v0"); E(f"s_mov_b32 s4, {ldw}"); E("v_mul_lo_u32 v5, v5, s4")
    E("v_and_b32 v6, 3, v0"); E("v_lshlrev_b32 v6, 4, v6"); E("v_add_u32 v7, v5, v6")
    E("s_lshl_b32 s5, s3, 10")
def dma_region(srdreg, scol, ldsbase, nj, ldw):
    E(f"s_mov_b32 s6, s{scol}"); E(f"s_add_u32 s7, s5, {ldsbase}")
    for j in range(nj):
        E("s_mov_b32 m0, s7");
        if j + 1 < nj: E("s_add_u32 s7, s7, 4096")
        else: E("s_nop 0")
        E(f"buffer_load_dwordx4 v7, s[{srdreg}:{srdreg+3}], s6 offen lds")
        if j + 1 < nj: E(f"s_add_u32 s6, s6, {64*ldw}")

def dma_list(srdreg, scolreg, coladd, ldsbase, nj, ldw):
    r = []
    for j in range(nj):
        r.append([f"s_add_u32 s6, s{scolreg}, {coladd + j*64*ldw}", f"s_add_u32 m0, s5, {ldsbase + j*4096}", "s_nop 0",
                  f"buffer_load_dwordx4 v7, s[{srdreg}:{srdreg+3}], s6 offen lds"])
    return r
def mfma_items(items, perm, swap_of, first_of):
    d2 = 512 if perm else 256
    n = len(items); D = 6
    def rd(i):
        va, off, _, _ = items[i]; w = VW + 4 * (i % 8)
        E(f"ds_read_b64_tr_b16 v[{w}:{w+1}], v{va} offset:{off}")
        E(f"ds_read_b64_tr_b16 v[{w+2}:{w+3}], v{va} offset:{off+d2}")
    for i in range(min(D, n)): rd(i)
    for i in range(n):
        va, off, x, acc = items[i][:4]; w = VW + 4 * (i % 8)
        E(f"s_waitcnt lgkmcnt({2*(min(i+D-1, n-1)-i)})")
        c = "0" if first_of(i) else f"v[{acc}:{acc+15}]"
        if swap_of(i): E(f"v_mfma_f32_32x32x16_bf16 v[{acc}:{acc+15}], v[{x}:{x+3}], v[{w}:{w+3}], {c}")
        else:          E(f"v_mfma_f32_32x32x16_bf16 v[{acc}:{acc+15}], v[{w}:{w+3}], v[{x}:{x+3}], {c}")
        if i + D < n: rd(i + D)
        yield i

def ln_regs(ndma, inter=[]):
    E("s_mov_b32 s8, 0x3f803f80")
    for q in range(4): E(f"v_mov_b32 v{VT+q}, 0"); E(f"v_mov_b32 v{VT+4+q}, 0")
    for g in range(4):
        E(f"s_waitcnt vmcnt({min(63, 24-8*g+ndma)})")
        for r in range(32*g, 32*g+32):
            E(f"v_dot2_f32_bf16 v{VT+(r&3)}, v{VX+r}, s8, v{VT+(r&3)}")
            E(f"v_dot2_f32_bf16 v{VT+4+(r&3)}, v{VX+r}, v{VX+r}, v{VT+4+(r&3)}")
    E("s_nop 3")
    E(f"v_add_f32 v{VT}, v{VT}, v{VT+1}"); E(f"v_add_f32 v{VT+2}, v{VT+2}, v{VT+3}")
    E(f"v_add_f32 v{VT+4}, v{VT+4}, v{VT+5}"); E(f"v_add_f32 v{VT+6}, v{VT+6}, v{VT+7}")
    E(f"v_add_f32 v{VT}, v{VT}, v{VT+2}"); E(f"v_add_f32 v{VT+4}, v{VT+4}, v{VT+6}")
    E(f"v_mov_b32 v{VT+1}, v{VT}"); E(f"v_mov_b32 v{VT+5}, v{VT+4}")
    E("s_nop 1")
    E(f"v_permlane32_swap_b32 v{VT}, v{VT+1}"); E(f"v_permlane32_swap_b32 v{VT+4}, v{VT+5}")
    E("s_nop 1")
    E(f"v_add_f32 v{VT}, v{VT}, v{VT+1}"); E(f"v_add_f32 v{VT+4}, v{VT+4}, v{VT+5}")
    E(f"v_mul_f32 v{VT}, {f2u(1/512):#x}, v{VT}")
    E(f"v_mul_f32 v{VT+4}, {f2u(1/512):#x}, v{VT+4}")
    E(f"v_fma_f32 v{VT+4}, -v{VT}, v{VT}, v{VT+4}")
    E(f"v_max_f32 v{VT+4}, 0, v{VT+4}")
    E(f"v_add_f32 v{VT+4}, {f2u(1e-5):#x}, v{VT+4}")
    E(f"v_rsq_f32 v{VT+4}, v{VT+4}")
    E("s_nop 0")
    E(f"v_mul_f32 v{VT}, v{VT}, v{VT+4}")
    E(f"v_sub_f32 v{VT}, 0, v{VT}")
    inter = list(inter)
    for r in range(128):
        if inter and r % 5 == 0:
            for x in inter.pop(0): E(x)
        a, b = VT + 8 + 2 * (r & 3), VT + 9 + 2 * (r & 3)
        E(f"v_lshlrev_b32 v{a}, 16, v{VX+r}"); E(f"v_and_b32 v{b}, 0xffff0000, v{VX+r}")
        E(f"v_fma_f32 v{a}, v{a}, v{VT+4}, v{VT}"); E(f"v_fma_f32 v{b}, v{b}, v{VT+4}, v{VT}")
        E(f"v_cvt_pk_bf16_f32 v{VX+r}, v{a}, v{b}")

def load_x(srdreg, ld, nsteps, base=VX):
    E("s_lshl_b32 s10, s3, 5"); E("s_add_u32 s10, s10, s9")
    E("v_add_u32 v9, s10, v3"); E(f"s_mov_b32 s4, {ld}"); E("v_mul_lo_u32 v8, v9, s4")
    E("v_lshlrev_b32 v5, 4, v4"); E("v_add_u32 v8, v8, v5")
    for s in range(nsteps):
        E(f"buffer_load_dwordx4 v[{base+4*s}:{base+4*s+3}], v8, s[{srdreg}:{srdreg+3}], 0 offen offset:{32*s}")
def wgmap(a=2):
    if a == 2:
        E("s_and_b32 s9, s2, 7"); E("s_lshl_b32 s9, s9, 1"); E("s_lshr_b32 s11, s2, 7"); E("s_add_u32 s9, s9, s11"); E("s_lshl_b32 s9, s9, 7")
        E("s_lshr_b32 s11, s2, 3"); E("s_and_b32 s11, s11, 15")
    else:
        E("s_bfe_u32 s9, s2, 0x20001"); E("s_lshl_b32 s9, s9, 2"); E("s_lshr_b32 s11, s2, 6"); E("s_add_u32 s9, s9, s11"); E("s_lshl_b32 s9, s9, 7")
        E("s_bfe_u32 s11, s2, 0x30003"); E("s_and_b32 s4, s2, 1"); E("s_lshl_b32 s4, s4, 3"); E("s_add_u32 s11, s11, s4")
def load_xt(srdreg, nsteps_total, nsteps, base=VX):
    E("s_lshl_b32 s10, s3, 5"); E("s_add_u32 s10, s10, s9"); E("v_add_u32 v9, s10, v3")
    E("s_lshr_b32 s4, s10, 5"); E(f"s_mul_i32 s4, s4, {nsteps_total*1024}")
    E("v_lshlrev_b32 v8, 4, v1"); E("v_add_u32 v8, s4, v8")
    for s in range(nsteps):
        if s % 4 == 0: E(f"s_mov_b32 s4, {1024*s}")
        E(f"buffer_load_dwordx4 v[{base+4*s}:{base+4*s+3}], v8, s[{srdreg}:{srdreg+3}], s4 offen offset:{1024*(s%4)}")
def pack(acc, dst):
    for i in range(8): E(f"v_cvt_pk_bf16_f32 v{dst+i}, v{acc+2*i}, v{acc+2*i+1}")

kernels = []
def k0():
    n = "k0_ln_kernel"; kernels.append((n, 256, 0)); prologue(n, 256)
    E("s_and_b32 s9, s2, 7"); E("s_lshl_b32 s9, s9, 8"); E("s_lshr_b32 s10, s2, 3"); E("s_lshl_b32 s10, s10, 3"); E("s_add_u32 s9, s9, s10")
    E("s_lshl_b32 s10, s3, 1"); E("s_add_u32 s9, s9, s10")
    srd(40, 16, 0, 2*MB); srd(44, 34, WS_XN, 2*MB)
    E("s_lshl_b32 s10, s9, 10"); E("v_lshlrev_b32 v5, 4, v1")
    E("buffer_load_dwordx4 v[16:19], v5, s[40:43], s10 offen"); E("buffer_load_dwordx4 v[20:23], v5, s[40:43], s10 offen offset:1024")
    E("s_lshr_b32 s11, s9, 5"); E("s_lshl_b32 s11, s11, 15"); E("s_and_b32 s12, s9, 31"); E("s_lshl_b32 s12, s12, 4"); E("s_add_u32 s11, s11, s12")
    E("v_lshrrev_b32 v6, 1, v1"); E("v_lshlrev_b32 v6, 10, v6"); E("v_and_b32 v7, 1, v1"); E("v_lshlrev_b32 v7, 9, v7"); E("v_add_u32 v6, v6, v7")
    E("s_mov_b32 s8, 0x3f803f80")
    for q in range(4): E(f"v_mov_b32 v{24+q}, 0")
    E("s_waitcnt vmcnt(0)")
    for r in range(2):
        for i in range(4):
            E(f"v_dot2_f32_bf16 v{24+2*r}, v{16+4*r+i}, s8, v{24+2*r}"); E(f"v_dot2_f32_bf16 v{25+2*r}, v{16+4*r+i}, v{16+4*r+i}, v{25+2*r}")
    E("s_nop 3")
    for off in (0x041F, 0x081F, 0x101F, 0x201F, 0x401F):
        for q in range(4): E(f"ds_swizzle_b32 v{28+q}, v{24+q} offset:{off:#x}")
        E("s_waitcnt lgkmcnt(0)")
        for q in range(4): E(f"v_add_f32 v{24+q}, v{24+q}, v{28+q}")
    for q in range(4): E(f"v_mov_b32 v{28+q}, v{24+q}")
    E("s_nop 1")
    for q in range(4): E(f"v_permlane32_swap_b32 v{24+q}, v{28+q}")
    E("s_nop 1")
    for q in range(4): E(f"v_add_f32 v{24+q}, v{24+q}, v{28+q}")
    for r in range(2):
        a, b = 24+2*r, 25+2*r
        E(f"v_mul_f32 v{a}, {f2u(1/512):#x}, v{a}"); E(f"v_mul_f32 v{b}, {f2u(1/512):#x}, v{b}")
        E(f"v_fma_f32 v{b}, -v{a}, v{a}, v{b}"); E(f"v_max_f32 v{b}, 0, v{b}"); E(f"v_add_f32 v{b}, {f2u(1e-5):#x}, v{b}")
        E(f"v_rsq_f32 v{b}, v{b}"); E("s_nop 0"); E(f"v_mul_f32 v{a}, v{a}, v{b}"); E(f"v_sub_f32 v{a}, 0, v{a}")
        for i in range(4):
            x = 16+4*r+i
            E(f"v_lshlrev_b32 v30, 16, v{x}"); E(f"v_and_b32 v31, 0xffff0000, v{x}")
            E(f"v_fma_f32 v30, v30, v{b}, v{a}"); E(f"v_fma_f32 v31, v31, v{b}, v{a}"); E(f"v_cvt_pk_bf16_f32 v{x}, v30, v31")
        E(f"buffer_store_dwordx4 v[{16+4*r}:{19+4*r}], v6, s[44:47], s11 offen offset:{16*r}")
    epilogue_end(n)
def k1():
    n = "k1_qkv_kernel"; kernels.append((n, 256, 98304)); prologue(n, 256)
    stamp(n); wgmap(4); E("s_mul_i32 s11, s11, 3")
    srd(40, 34, WS_XN, 2*MB); srd(44, 18, 0, 512*3072); srd(48, 34, 0, 6*MB)
    dma_setup(3072)
    for j in range(3):
        E(f"s_add_u32 s12, s11, {j}"); E("s_lshl_b32 s12, s12, 6")
        dma_region(44, 12, j*32768, 8, 3072)
        if j == 0: load_xt(40, 32, 32)
    w_addr(False, 10)
    E("v_lshlrev_b32 v11, 5, v9"); E("v_lshlrev_b32 v5, 4, v4"); E("v_add_u32 v11, v11, v5")
    E("v_lshlrev_b32 v12, 12, v3"); E("v_lshlrev_b32 v5, 4, v4"); E("v_add_u32 v12, v12, v5")
    E("s_lshl_b32 s13, s10, 1"); E("v_add_u32 v12, s13, v12")
    stamp(n)
    for j in range(3):
        E(f"s_waitcnt vmcnt({[16, 8+0, 2][j] if j != 1 else 10})"); E("s_barrier"); stamp(n)
        E(f"v_add_u32 v13, {j*32768}, v10")
        E(f"s_add_u32 s12, s11, {j}"); E("s_cmp_ge_u32 s12, 32"); E(f"s_cbranch_scc1 {n}_v{j}")
        for sw in (False, True):
            if sw: L(f"{n}_v{j}")
            items = [(13, 1024*s, VX+4*s, ACC0) for s in range(32)]
            for _ in mfma_items(items, False, lambda i: sw, lambda i: i == 0): pass
            E("s_nop 15"); pack(ACC0, VT)
            if not sw:
                E("s_lshr_b32 s14, s12, 4"); E("s_lshl_b32 s14, s14, 21"); E("s_and_b32 s15, s12, 15"); E("s_lshl_b32 s15, s15, 17")
                E("s_add_u32 s14, s14, s15"); E("s_add_u32 s15, s14, 65536")
                E(f"buffer_store_dwordx4 v[{VT}:{VT+3}], v11, s[48:51], s14 offen")
                E(f"buffer_store_dwordx4 v[{VT+4}:{VT+7}], v11, s[48:51], s15 offen")
                E(f"s_branch {n}_e{j}")
            else:
                E("s_sub_u32 s14, s12, 32"); E("s_lshl_b32 s14, s14, 17"); E(f"s_add_u32 s14, s14, {WS_V}")
                E(f"buffer_store_dwordx4 v[{VT}:{VT+3}], v12, s[48:51], s14 offen")
                E(f"buffer_store_dwordx4 v[{VT+4}:{VT+7}], v12, s[48:51], s14 offen offset:32")
        L(f"{n}_e{j}"); E("s_nop 1")
    epilogue_end(n)

def k2():
    n = "k2_attn_kernel"; kernels.append((n, 512, 0)); prologue(n, 512)
    Q, KV, S, O = 16, 20, 96, 240
    E("s_lshr_b32 s9, s2, 3"); E("s_lshl_b32 s9, s9, 5")
    E("s_and_b32 s11, s2, 7"); E("s_lshl_b32 s11, s11, 2"); E("s_add_u32 s11, s11, s3")
    srd(40, 34, WS_Q, 2*MB); srd(44, 34, WS_K - 8192, 2*MB + 8192); srd(48, 34, WS_V - 512, 2*MB + 512); srd(52, 34, WS_O, 2*MB)
    E("s_lshl_b32 s12, s11, 11"); E("s_add_u32 s12, s12, s9")
    E("v_add_u32 v5, s12, v3"); E("v_lshlrev_b32 v5, 5, v5"); E("v_lshlrev_b32 v6, 4, v4"); E("v_add_u32 v8, v5, v6")
    E(f"buffer_load_dwordx4 v[{Q}:{Q+3}], v8, s[40:43], 0 offen")
    for kb in range(9):
        E(f"s_mov_b32 s13, {kb*1024}")
        E(f"buffer_load_dwordx4 v[{KV+4*kb}:{KV+4*kb+3}], v8, s[44:47], s13 offen")
    E("v_and_b32 v5, 15, v0"); E("s_lshl_b32 s13, s11, 4"); E("v_add_u32 v5, s13, v5"); E("v_lshlrev_b32 v5, 12, v5")
    E("s_lshl_b32 s13, s9, 1"); E("v_add_u32 v5, s13, v5"); E("v_add_u32 v9, v5, v6")
    E("s_add_u32 s13, s9, s11"); E("s_lshl_b32 s13, s13, 10"); E("v_lshlrev_b32 v5, 4, v1"); E("v_add_u32 v10, s13, v5")
    E("v_lshlrev_b32 v5, 2, v4"); E("v_sub_u32 v11, v3, v5")
    for i in range(16):
        c = 8*(i >> 2) + (i & 3)
        E(f"v_cmp_le_i32 s[{56+2*i}:{57+2*i}], {c}, v11")
    E(f"v_mov_b32 v12, {f2u(-1e30):#x}")
    for kb in range(9):
        E(f"s_waitcnt vmcnt({8-kb})")
        E(f"v_mfma_f32_32x32x16_bf16 v[{S+16*kb}:{S+16*kb+15}], v[{KV+4*kb}:{KV+4*kb+3}], v[{Q}:{Q+3}], 0")
    E("s_nop 3")
    for r in range(72): E(f"v_mov_b32 v{KV+r}, 0x3f803f80")
    E("s_mov_b32 s14, 0x0000ffff"); E("s_mov_b32 s15, 0x0000ffff"); E("s_mov_b64 exec, s[14:15]")
    for t in range(18):
        E(f"buffer_load_dwordx4 v[{KV+4*t}:{KV+4*t+3}], v9, s[48:51], 0 offen offset:{32*t}")
    E("s_mov_b64 exec, -1")
    E("s_nop 7")
    for i in range(16):
        E(f"v_cndmask_b32 v{S+128+i}, v12, v{S+128+i}, s[{56+2*i}:{57+2*i}]")
        E(f"v_cndmask_b32 v{S+i}, v{S+i}, v12, s[{56+2*i}:{57+2*i}]")
    for kb in range(8):
        E(f"s_cmp_ge_u32 s9, {256-32*kb}"); E(f"s_cbranch_scc1 {n}_ok{kb}")
        for i in range(16): E(f"v_mov_b32 v{S+16*kb+i}, v12")
        L(f"{n}_ok{kb}")
    for c in range(4): E(f"v_max_f32 v{4+c}, v{S+c}, v{S+4+c}")
    for r in range(8, 144, 8):
        for c in range(4): E(f"v_max3_f32 v{4+c}, v{4+c}, v{S+r+c}, v{S+r+4+c}")
    E("v_max_f32 v4, v4, v5"); E("v_max_f32 v6, v6, v7"); E("v_max_f32 v4, v4, v6"); E("v_mov_b32 v5, v4")
    E("s_nop 1"); E("v_permlane32_swap_b32 v4, v5"); E("s_nop 1"); E("v_max_f32 v4, v4, v5")
    cc = 0.25 * LOG2E
    E(f"s_mov_b32 s13, {f2u(cc):#x}"); E("v_mul_f32 v4, s13, v4")
    for r in range(0, 144, 4):
        for c in range(4): E(f"v_fma_f32 v{S+r+c}, v{S+r+c}, s13, -v4")
        for c in range(4): E(f"v_exp_f32 v{S+r+c}, v{S+r+c}")
        if r >= 4:
            p = r - 4; d = S + 16*(p//16) + (p % 16)//2
            E(f"v_cvt_pk_bf16_f32 v{d}, v{S+p}, v{S+p+1}"); E(f"v_cvt_pk_bf16_f32 v{d+1}, v{S+p+2}, v{S+p+3}")
    p = 140; d = S + 16*(p//16) + (p % 16)//2
    E("s_nop 0"); E(f"v_cvt_pk_bf16_f32 v{d}, v{S+p}, v{S+p+1}"); E(f"v_cvt_pk_bf16_f32 v{d+1}, v{S+p+2}, v{S+p+3}")
    E("s_nop 1")
    for t in range(18):
        E(f"s_waitcnt vmcnt({17-t})")
        b = S + 16*(t//2) + 4*(t % 2)
        E(f"v_mfma_f32_32x32x16_bf16 v[{O}:{O+15}], v[{KV+4*t}:{KV+4*t+3}], v[{b}:{b+3}], {'0' if t == 0 else f'v[{O}:{O+15}]'}")
    E("s_nop 15"); E(f"v_rcp_f32 v4, v{O+8}"); E("s_nop 0")
    for i in range(8): E(f"v_mul_f32 v{O+i}, v{O+i}, v4")
    for i in range(4): E(f"v_cvt_pk_bf16_f32 v{Q+i}, v{O+2*i}, v{O+2*i+1}")
    E(f"buffer_store_dwordx4 v[{Q}:{Q+3}], v10, s[52:55], 0 offen")
    epilogue_end(n)

def k3():
    n = "k3_wo_kernel"; kernels.append((n, 256, 32768)); prologue(n, 256)
    wgmap(); E("s_lshl_b32 s12, s11, 6")
    srd(40, 34, WS_O, 2*MB); srd(44, 20, 0, 512*1024); srd(48, 34, WS_H, 2*MB); srd(52, 16, 0, 2*MB)
    dma_setup(1024); dma_region(44, 12, 0, 8, 1024)
    load_xt(40, 32, 32)
    w_addr(True, 10)
    E("v_lshlrev_b32 v12, 10, v9"); E("v_lshlrev_b32 v5, 3, v4"); E("v_add_u32 v12, v12, v5"); E("s_lshl_b32 s13, s11, 11")
    for q in range(4): E(f"buffer_load_dwordx2 v[{VT+8+2*q}:{VT+9+2*q}], v12, s[52:55], s12 offen offset:{16*q}")
    E("s_waitcnt vmcnt(0)"); E("s_barrier")
    items = [(10, 1024*s, VX+4*s, ACC0) for s in range(32)]
    for _ in mfma_items(items, True, lambda i: False, lambda i: i == 0): pass
    E("s_nop 15")
    for i in range(8):
        E(f"v_lshlrev_b32 v5, 16, v{VT+8+i}"); E(f"v_and_b32 v6, 0xffff0000, v{VT+8+i}")
        E(f"v_add_f32 v{ACC0+2*i}, v{ACC0+2*i}, v5"); E(f"v_add_f32 v{ACC0+2*i+1}, v{ACC0+2*i+1}, v6")
    pack(ACC0, VT)
    E(f"buffer_store_dwordx4 v[{VT}:{VT+3}], v8, s[48:51], s13 offen")
    E(f"buffer_store_dwordx4 v[{VT+4}:{VT+7}], v8, s[48:51], s13 offen offset:1024")
    epilogue_end(n)

def k4():
    n = "k4_glu_kernel"; kernels.append((n, 256, 163840)); prologue(n, 256)
    stamp(n); wgmap(4); E("s_mul_i32 s11, s11, 86"); E("s_and_b32 s11, s11, 0xfffffff0"); E("s_lshl_b32 s11, s11, 1")
    srd(40, 34, WS_H, 2*MB); srd(44, 24, 0, 512*2752); srd(48, 26, 0, 512*2752); srd(52, 34, WS_HH, 2048*2752)
    load_xt(40, 32, 32)
    dma_setup(2752)
    def reg(slot):
        E(f"s_add_u32 s12, s11, {64*(slot//2)}")
        dma_region(44 if slot % 2 == 0 else 48, 12, (slot % 5)*32768, 8, 2752)
    def regl(slot): return dma_list(44 if slot % 2 == 0 else 48, 11, 64*(slot//2), (slot % 5)*32768, 8, 2752)
    for g in regl(0) + regl(1):
        for x in g: E(x)
    w_addr(True, 10)
    E("s_lshr_b32 s4, s10, 5"); E(f"s_mul_i32 s4, s4, {86*1024}"); E("v_lshlrev_b32 v11, 4, v1"); E("v_add_u32 v11, s4, v11")
    stamp(n); ln_regs(16, regl(2) + regl(3) + regl(4)); stamp(n)
    E(f"s_mov_b32 s13, {f2u(-LOG2E):#x}")
    for j in range(3):
        sg, su = ((2*j) % 5)*32768, ((2*j+1) % 5)*32768
        E(f"v_add_u32 v13, {sg}, v10"); E(f"v_add_u32 v14, {su}, v10")
        if j == 0: E("s_waitcnt vmcnt(24)"); E("s_barrier"); stamp(n)
        items = []
        for s in range(32): items += [(13, 1024*s, VX+4*s, ACC0), (14, 1024*s, VX+4*s, ACC1)]
        for _ in mfma_items(items, True, lambda i: False, lambda i: i < 2): pass
        stamp(n)
        if j == 0:
            E("s_waitcnt vmcnt(8)"); E("s_barrier")
            for g in regl(5):
                for x in g: E(x)
        if j == 1: E("s_waitcnt vmcnt(2)"); E("s_barrier")
        E("s_nop 15")
        for i in range(16): E(f"v_mul_f32 v{ACC0+i}, s13, v{ACC0+i}")
        for i in range(16): E(f"v_exp_f32 v{ACC0+i}, v{ACC0+i}")
        for i in range(16): E(f"v_add_f32 v{ACC0+i}, 1.0, v{ACC0+i}")
        for i in range(16): E(f"v_rcp_f32 v{ACC0+i}, v{ACC0+i}")
        for i in range(16): E(f"v_mul_f32 v{ACC0+i}, v{ACC0+i}, v{ACC1+i}")
        pack(ACC0, VT)
        E(f"s_add_u32 s12, s11, {64*j}"); E("s_lshl_b32 s12, s12, 5")
        E(f"buffer_store_dwordx4 v[{VT}:{VT+3}], v11, s[52:55], s12 offen")
        E(f"buffer_store_dwordx4 v[{VT+4}:{VT+7}], v11, s[52:55], s12 offen offset:1024")
        E("s_nop 1")
    epilogue_end(n)

def k5():
    n = "k5_down_kernel"; kernels.append((n, 256, 22*4096)); prologue(n, 256)
    NX = 44; X = 56; global VW
    oldVW = VW; VW = 16; A = 232; T = 48
    wgmap(); E("s_lshl_b32 s12, s11, 6")
    srd(40, 34, WS_HH, 2048*2752); srd(44, 28, 0, 1376*1024); srd(48, 34, WS_H, 2*MB); srd(52, 30, 0, 2*MB)
    dma_setup(1024); dma_region(44, 12, 0, 22, 1024)
    load_xt(40, 86, NX, X)
    w_addr(True, 10); E("v_add_u32 v13, 0x10000, v10")
    E("v_lshlrev_b32 v12, 10, v9"); E("v_lshlrev_b32 v5, 3, v4"); E("v_add_u32 v12, v12, v5")
    E("s_lshl_b32 s13, s10, 10"); E("s_lshl_b32 s14, s11, 11"); E("s_add_u32 s13, s13, s14"); E("v_lshlrev_b32 v11, 4, v1")
    E(f"buffer_load_dwordx4 v[248:251], v11, s[48:51], s13 offen"); E(f"buffer_load_dwordx4 v[252:255], v11, s[48:51], s13 offen offset:1024")
    E("s_waitcnt vmcnt(0)"); E("s_barrier")
    items = [((10, 1024*s) if s < 64 else (13, 1024*(s-64))) + (X+4*(s % NX), A) for s in range(86)]
    for i in mfma_items(items, True, lambda i: False, lambda i: i == 0):
        if i + NX < 86:
            s = i + NX; E(f"s_mov_b32 s4, {1024*s}"); E(f"buffer_load_dwordx4 v[{X+4*i}:{X+4*i+3}], v8, s[40:43], s4 offen")
        if i + 1 >= NX and i + 1 < 86: E(f"s_waitcnt vmcnt({85-(i+1)})")
    VW = oldVW
    E("s_nop 15")
    for i in range(8):
        E(f"v_lshlrev_b32 v5, 16, v{248+i}"); E(f"v_and_b32 v6, 0xffff0000, v{248+i}")
        E(f"v_add_f32 v{A+2*i}, v{A+2*i}, v5"); E(f"v_add_f32 v{A+2*i+1}, v{A+2*i+1}, v6")
    pack(A, T)
    for q in range(4): E(f"buffer_store_dwordx2 v[{T+2*q}:{T+2*q+1}], v12, s[52:55], s12 offen offset:{16*q}")
    epilogue_end(n)

k0(); k1(); k2(); k3(); k4(); k5()
hdr = open("cdna_kernels/" + NAME + ".s.ref").read().split("\n")
head = [l for l in hdr if l.startswith(";") and "@launch" not in l and "Override" not in l and "grid=ceil" not in l]
import os
dup = int(os.environ.get("DUP", "-1"))
ll = []
for idx, (k, g, l) in enumerate(kernels):
    ll += [f"; @launch kernel={k} grid=({g},1,1) block=(256,1,1) lds={l}"] * (5 if idx == dup else 1)
if dup == 99: ll = ll + ll
if STAMPK:
    ll = ll + [x for x in ll if STAMPK in x]
txt = head + ll
txt += ['.amdgcn_target "amdgcn-amd-amdhsa--gfx950"', ".text"] + out + ['.section .rodata,"a"']
for k, g, l in kernels:
    txt += [".p2align 6", f".amdhsa_kernel {k}", "  .amdhsa_next_free_vgpr 256", "  .amdhsa_next_free_sgpr 102", "  .amdhsa_accum_offset 256",
            "  .amdhsa_group_segment_fixed_size 0", "  .amdhsa_kernarg_size 80", "  .amdhsa_user_sgpr_count 2",
            "  .amdhsa_user_sgpr_kernarg_segment_ptr 1", "  .amdhsa_system_sgpr_workgroup_id_x 1", ".end_amdhsa_kernel"]
open(os.environ.get("OUT", "cdna_kernels/" + NAME + ".s"), "w").write("\n".join(txt) + "\n")
```

```python
import sys, os
NAME = "sequential_preLN__sliding_block__glu_gated_glu__prompt"
out = []
def E(s): out.append("    " + s)
def L(s): out.append(s + ":")
MB = 1 << 20
WS_Q, WS_K, WS_V, WS_O, WS_H, WS_HH = 0, 2*MB, 4*MB, 6*MB, 8*MB, 10*MB
WS_XN = 16*MB
LOG2E = 1.4426950408889634
import struct
def f2u(f): return struct.unpack("<I", struct.pack("<f", f))[0]

def prologue(name, nwg):
    out.append(".p2align 8"); out.append(f".globl {name}"); out.append(f".type {name},@function"); L(name)
    E(f"s_cmp_ge_u32 s2, {nwg}"); E(f"s_cbranch_scc1 {name}_done")
    E("s_load_dwordx16 s[16:31], s[0:1], 0"); E("s_load_dwordx4 s[32:35], s[0:1], 64")
    E("v_and_b32 v1, 63, v0")
    E("v_lshrrev_b32 v2, 6, v0")
    E("v_and_b32 v3, 31, v0")
    E("v_readfirstlane_b32 s3, v2")
    E("v_bfe_u32 v4, v0, 5, 1")
    E("s_waitcnt lgkmcnt(0)")
STAMPK = os.environ.get("STAMP", "")
nst = [0]
def stamp(name):
    if name != STAMPK: return
    E("s_memtime s[88:89]"); E("s_waitcnt lgkmcnt(0)"); E(f"s_mov_b32 s{90+nst[0]}, s88"); nst[0] += 1
def epilogue_end(name):
    if name == STAMPK:
        stamp(name)
        E("s_cmp_lg_u32 s2, 8"); E(f"s_cbranch_scc1 {name}_done"); E("s_cmp_lg_u32 s3, 0"); E(f"s_cbranch_scc1 {name}_done")
        srd(40, 32, 0, 256)
        for i in range(nst[0]):
            E(f"s_sub_u32 s4, s{90+i}, s90"); E("v_mov_b32 v5, s4"); E(f"v_mov_b32 v6, {4*i}"); E("buffer_store_dword v5, v6, s[40:43], 0 offen")
    L(f"{name}_done"); E("s_endpgm")
def srd(d, base, off, size):
    if off >= 0:
        E(f"s_add_u32 s{d}, s{base}, {off}"); E(f"s_addc_u32 s{d+1}, s{base+1}, 0")
    else:
        E(f"s_sub_u32 s{d}, s{base}, {-off}"); E(f"s_subb_u32 s{d+1}, s{base+1}, 0")
    E(f"s_mov_b32 s{d+2}, {size}"); E(f"s_mov_b32 s{d+3}, 0x00020000")

VX, VW, ACC0, ACC1, VT = 16, 144, 176, 192, 208

def w_addr(perm, vdst):
    E("v_bfe_u32 v5, v0, 2, 2")
    E(f"v_lshlrev_b32 v6, {2 if perm else 3}, v4")
    E("v_add_u32 v5, v5, v6")
    E("v_lshlrev_b32 v5, 6, v5")
    E("v_bfe_u32 v6, v0, 4, 1")
    E("v_lshlrev_b32 v6, 5, v6")
    E("v_add_u32 v5, v5, v6")
    E("v_and_b32 v6, 3, v0")
    E("v_lshlrev_b32 v6, 3, v6")
    E(f"v_add_u32 v{vdst}, v5, v6")

def dma_setup(ldw):
    E("v_lshrrev_b32 v5, 2, v0"); E(f"s_mov_b32 s4, {ldw}"); E("v_mul_lo_u32 v5, v5, s4")
    E("v_and_b32 v6, 3, v0"); E("v_lshlrev_b32 v6, 4, v6"); E("v_add_u32 v7, v5, v6")
    E("s_lshl_b32 s5, s3, 10")
def dma_region(srdreg, scol, ldsbase, nj, ldw):
    E(f"s_mov_b32 s6, s{scol}"); E(f"s_add_u32 s7, s5, {ldsbase}")
    for j in range(nj):
        E("s_mov_b32 m0, s7");
        if j + 1 < nj: E("s_add_u32 s7, s7, 4096")
        else: E("s_nop 0")
        E(f"buffer_load_dwordx4 v7, s[{srdreg}:{srdreg+3}], s6 offen lds")
        if j + 1 < nj: E(f"s_add_u32 s6, s6, {64*ldw}")

def dma_list(srdreg, scolreg, coladd, ldsbase, nj, ldw):
    r = []
    for j in range(nj):
        r.append([f"s_add_u32 s6, s{scolreg}, {coladd + j*64*ldw}", f"s_add_u32 m0, s5, {ldsbase + j*4096}", "s_nop 0",
                  f"buffer_load_dwordx4 v7, s[{srdreg}:{srdreg+3}], s6 offen lds"])
    return r
def mfma_items(items, perm, swap_of, first_of):
    d2 = 512 if perm else 256
    n = len(items); D = 6
    def rd(i):
        va, off, _, _ = items[i]; w = VW + 4 * (i % 8)
        E(f"ds_read_b64_tr_b16 v[{w}:{w+1}], v{va} offset:{off}")
        E(f"ds_read_b64_tr_b16 v[{w+2}:{w+3}], v{va} offset:{off+d2}")
    for i in range(min(D, n)): rd(i)
    for i in range(n):
        va, off, x, acc = items[i][:4]; w = VW + 4 * (i % 8)
        E(f"s_waitcnt lgkmcnt({2*(min(i+D-1, n-1)-i)})")
        c = "0" if first_of(i) else f"v[{acc}:{acc+15}]"
        if swap_of(i): E(f"v_mfma_f32_32x32x16_bf16 v[{acc}:{acc+15}], v[{x}:{x+3}], v[{w}:{w+3}], {c}")
        else:          E(f"v_mfma_f32_32x32x16_bf16 v[{acc}:{acc+15}], v[{w}:{w+3}], v[{x}:{x+3}], {c}")
        if i + D < n: rd(i + D)
        yield i

def ln_regs(ndma, inter=[]):
    E("s_mov_b32 s8, 0x3f803f80")
    for q in range(4): E(f"v_mov_b32 v{VT+q}, 0"); E(f"v_mov_b32 v{VT+4+q}, 0")
    for g in range(4):
        E(f"s_waitcnt vmcnt({min(63, 24-8*g+ndma)})")
        for r in range(32*g, 32*g+32):
            E(f"v_dot2_f32_bf16 v{VT+(r&3)}, v{VX+r}, s8, v{VT+(r&3)}")
            E(f"v_dot2_f32_bf16 v{VT+4+(r&3)}, v{VX+r}, v{VX+r}, v{VT+4+(r&3)}")
    E("s_nop 3")
    E(f"v_add_f32 v{VT}, v{VT}, v{VT+1}"); E(f"v_add_f32 v{VT+2}, v{VT+2}, v{VT+3}")
    E(f"v_add_f32 v{VT+4}, v{VT+4}, v{VT+5}"); E(f"v_add_f32 v{VT+6}, v{VT+6}, v{VT+7}")
    E(f"v_add_f32 v{VT}, v{VT}, v{VT+2}"); E(f"v_add_f32 v{VT+4}, v{VT+4}, v{VT+6}")
    E(f"v_mov_b32 v{VT+1}, v{VT}"); E(f"v_mov_b32 v{VT+5}, v{VT+4}")
    E("s_nop 1")
    E(f"v_permlane32_swap_b32 v{VT}, v{VT+1}"); E(f"v_permlane32_swap_b32 v{VT+4}, v{VT+5}")
    E("s_nop 1")
    E(f"v_add_f32 v{VT}, v{VT}, v{VT+1}"); E(f"v_add_f32 v{VT+4}, v{VT+4}, v{VT+5}")
    E(f"v_mul_f32 v{VT}, {f2u(1/512):#x}, v{VT}")
    E(f"v_mul_f32 v{VT+4}, {f2u(1/512):#x}, v{VT+4}")
    E(f"v_fma_f32 v{VT+4}, -v{VT}, v{VT}, v{VT+4}")
    E(f"v_max_f32 v{VT+4}, 0, v{VT+4}")
    E(f"v_add_f32 v{VT+4}, {f2u(1e-5):#x}, v{VT+4}")
    E(f"v_rsq_f32 v{VT+4}, v{VT+4}")
    E("s_nop 0")
    E(f"v_mul_f32 v{VT}, v{VT}, v{VT+4}")
    E(f"v_sub_f32 v{VT}, 0, v{VT}")
    inter = list(inter)
    for r in range(128):
        if inter and r % 5 == 0:
            for x in inter.pop(0): E(x)
        a, b = VT + 8 + 2 * (r & 3), VT + 9 + 2 * (r & 3)
        E(f"v_lshlrev_b32 v{a}, 16, v{VX+r}"); E(f"v_and_b32 v{b}, 0xffff0000, v{VX+r}")
        E(f"v_fma_f32 v{a}, v{a}, v{VT+4}, v{VT}"); E(f"v_fma_f32 v{b}, v{b}, v{VT+4}, v{VT}")
        E(f"v_cvt_pk_bf16_f32 v{VX+r}, v{a}, v{b}")

def load_x(srdreg, ld, nsteps, base=VX):
    E("s_lshl_b32 s10, s3, 5"); E("s_add_u32 s10, s10, s9")
    E("v_add_u32 v9, s10, v3"); E(f"s_mov_b32 s4, {ld}"); E("v_mul_lo_u32 v8, v9, s4")
    E("v_lshlrev_b32 v5, 4, v4"); E("v_add_u32 v8, v8, v5")
    for s in range(nsteps):
        E(f"buffer_load_dwordx4 v[{base+4*s}:{base+4*s+3}], v8, s[{srdreg}:{srdreg+3}], 0 offen offset:{32*s}")
def wgmap(a=2):
    if a == 2:
        E("s_and_b32 s9, s2, 7"); E("s_lshl_b32 s9, s9, 1"); E("s_lshr_b32 s11, s2, 7"); E("s_add_u32 s9, s9, s11"); E("s_lshl_b32 s9, s9, 7")
        E("s_lshr_b32 s11, s2, 3"); E("s_and_b32 s11, s11, 15")
    else:
        E("s_bfe_u32 s9, s2, 0x20001"); E("s_lshl_b32 s9, s9, 2"); E("s_lshr_b32 s11, s2, 6"); E("s_add_u32 s9, s9, s11"); E("s_lshl_b32 s9, s9, 7")
        E("s_bfe_u32 s11, s2, 0x30003"); E("s_and_b32 s4, s2, 1"); E("s_lshl_b32 s4, s4, 3"); E("s_add_u32 s11, s11, s4")
def load_xt(srdreg, nsteps_total, nsteps, base=VX):
    E("s_lshl_b32 s10, s3, 5"); E("s_add_u32 s10, s10, s9"); E("v_add_u32 v9, s10, v3")
    E("s_lshr_b32 s4, s10, 5"); E(f"s_mul_i32 s4, s4, {nsteps_total*1024}")
    E("v_lshlrev_b32 v8, 4, v1"); E("v_add_u32 v8, s4, v8")
    for s in range(nsteps):
        if s % 4 == 0: E(f"s_mov_b32 s4, {1024*s}")
        E(f"buffer_load_dwordx4 v[{base+4*s}:{base+4*s+3}], v8, s[{srdreg}:{srdreg+3}], s4 offen offset:{1024*(s%4)}")
def pack(acc, dst):
    for i in range(8): E(f"v_cvt_pk_bf16_f32 v{dst+i}, v{acc+2*i}, v{acc+2*i+1}")

kernels = []
def k0():
    n = "k0_ln_kernel"; kernels.append((n, 256, 0)); prologue(n, 256)
    E("s_and_b32 s9, s2, 7"); E("s_lshl_b32 s9, s9, 8"); E("s_lshr_b32 s10, s2, 3"); E("s_lshl_b32 s10, s10, 3"); E("s_add_u32 s9, s9, s10")
    E("s_lshl_b32 s10, s3, 1"); E("s_add_u32 s9, s9, s10")
    srd(40, 16, 0, 2*MB); srd(44, 34, WS_XN, 2*MB)
    E("s_lshl_b32 s10, s9, 10"); E("v_lshlrev_b32 v5, 4, v1")
    E("buffer_load_dwordx4 v[16:19], v5, s[40:43], s10 offen"); E("buffer_load_dwordx4 v[20:23], v5, s[40:43], s10 offen offset:1024")
    E("s_lshr_b32 s11, s9, 5"); E("s_lshl_b32 s11, s11, 15"); E("s_and_b32 s12, s9, 31"); E("s_lshl_b32 s12, s12, 4"); E("s_add_u32 s11, s11, s12")
    E("v_lshrrev_b32 v6, 1, v1"); E("v_lshlrev_b32 v6, 10, v6"); E("v_and_b32 v7, 1, v1"); E("v_lshlrev_b32 v7, 9, v7"); E("v_add_u32 v6, v6, v7")
    E("s_mov_b32 s8, 0x3f803f80")
    for q in range(4): E(f"v_mov_b32 v{24+q}, 0")
    if os.environ.get("PF", "1") == "1":
        E("s_lshl_b32 s12, s2, 12"); E("v_lshlrev_b32 v32, 4, v0"); E("v_add_u32 v32, s12, v32"); E("v_add_u32 v33, 0x100000, v32")
        k = 0
        for base, size in ((18, 512*3072), (20, 512*1024), (24, 512*2752), (26, 512*2752), (28, 1376*1024)):
            srd(48, base, 0, size)
            E(f"buffer_load_dwordx4 v[{36+4*k}:{39+4*k}], v32, s[48:51], 0 offen"); k += 1
            if size > MB: E(f"buffer_load_dwordx4 v[{36+4*k}:{39+4*k}], v33, s[48:51], 0 offen"); k += 1
        E("s_waitcnt vmcnt(9)")
    else:
        E("s_waitcnt vmcnt(0)")
    for r in range(2):
        for i in range(4):
            E(f"v_dot2_f32_bf16 v{24+2*r}, v{16+4*r+i}, s8, v{24+2*r}"); E(f"v_dot2_f32_bf16 v{25+2*r}, v{16+4*r+i}, v{16+4*r+i}, v{25+2*r}")
    E("s_nop 3")
    for off in (0x041F, 0x081F, 0x101F, 0x201F, 0x401F):
        for q in range(4): E(f"ds_swizzle_b32 v{28+q}, v{24+q} offset:{off:#x}")
        E("s_waitcnt lgkmcnt(0)")
        for q in range(4): E(f"v_add_f32 v{24+q}, v{24+q}, v{28+q}")
    for q in range(4): E(f"v_mov_b32 v{28+q}, v{24+q}")
    E("s_nop 1")
    for q in range(4): E(f"v_permlane32_swap_b32 v{24+q}, v{28+q}")
    E("s_nop 1")
    for q in range(4): E(f"v_add_f32 v{24+q}, v{24+q}, v{28+q}")
    for r in range(2):
        a, b = 24+2*r, 25+2*r
        E(f"v_mul_f32 v{a}, {f2u(1/512):#x}, v{a}"); E(f"v_mul_f32 v{b}, {f2u(1/512):#x}, v{b}")
        E(f"v_fma_f32 v{b}, -v{a}, v{a}, v{b}"); E(f"v_max_f32 v{b}, 0, v{b}"); E(f"v_add_f32 v{b}, {f2u(1e-5):#x}, v{b}")
        E(f"v_rsq_f32 v{b}, v{b}"); E("s_nop 0"); E(f"v_mul_f32 v{a}, v{a}, v{b}"); E(f"v_sub_f32 v{a}, 0, v{a}")
        for i in range(4):
            x = 16+4*r+i
            E(f"v_lshlrev_b32 v30, 16, v{x}"); E(f"v_and_b32 v31, 0xffff0000, v{x}")
            E(f"v_fma_f32 v30, v30, v{b}, v{a}"); E(f"v_fma_f32 v31, v31, v{b}, v{a}"); E(f"v_cvt_pk_bf16_f32 v{x}, v30, v31")
        E(f"buffer_store_dwordx4 v[{16+4*r}:{19+4*r}], v6, s[44:47], s11 offen offset:{16*r}")
    epilogue_end(n)
def k1():
    n = "k1_qkv_kernel"; kernels.append((n, 256, 98304)); prologue(n, 256)
    stamp(n); wgmap(4); E("s_mul_i32 s11, s11, 3")
    srd(40, 34, WS_XN, 2*MB); srd(44, 18, 0, 512*3072); srd(48, 34, 0, 6*MB)
    dma_setup(3072)
    for j in range(3):
        E(f"s_add_u32 s12, s11, {j}"); E("s_lshl_b32 s12, s12, 6")
        dma_region(44, 12, j*32768, 8, 3072)
        if j == 0: load_xt(40, 32, 32)
    w_addr(False, 10)
    E("v_lshlrev_b32 v11, 5, v9"); E("v_lshlrev_b32 v5, 4, v4"); E("v_add_u32 v11, v11, v5")
    E("v_lshlrev_b32 v12, 12, v3"); E("v_lshlrev_b32 v5, 4, v4"); E("v_add_u32 v12, v12, v5")
    E("s_lshl_b32 s13, s10, 1"); E("v_add_u32 v12, s13, v12")
    stamp(n)
    for j in range(3):
        E(f"s_waitcnt vmcnt({[16, 8+0, 2][j] if j != 1 else 10})"); E("s_barrier"); stamp(n)
        E(f"v_add_u32 v13, {j*32768}, v10")
        E(f"s_add_u32 s12, s11, {j}"); E("s_cmp_ge_u32 s12, 32"); E(f"s_cbranch_scc1 {n}_v{j}")
        for sw in (False, True):
            if sw: L(f"{n}_v{j}")
            items = [(13, 1024*s, VX+4*s, ACC0) for s in range(32)]
            for _ in mfma_items(items, False, lambda i: sw, lambda i: i == 0): pass
            E("s_nop 15"); pack(ACC0, VT)
            if not sw:
                E("s_lshr_b32 s14, s12, 4"); E("s_lshl_b32 s14, s14, 21"); E("s_and_b32 s15, s12, 15"); E("s_lshl_b32 s15, s15, 17")
                E("s_add_u32 s14, s14, s15"); E("s_add_u32 s15, s14, 65536")
                E(f"buffer_store_dwordx4 v[{VT}:{VT+3}], v11, s[48:51], s14 offen")
                E(f"buffer_store_dwordx4 v[{VT+4}:{VT+7}], v11, s[48:51], s15 offen")
                E(f"s_branch {n}_e{j}")
            else:
                E("s_sub_u32 s14, s12, 32"); E("s_lshl_b32 s14, s14, 17"); E(f"s_add_u32 s14, s14, {WS_V}")
                E(f"buffer_store_dwordx4 v[{VT}:{VT+3}], v12, s[48:51], s14 offen")
                E(f"buffer_store_dwordx4 v[{VT+4}:{VT+7}], v12, s[48:51], s14 offen offset:32")
        L(f"{n}_e{j}"); E("s_nop 1")
    epilogue_end(n)

def k2():
    n = "k2_attn_kernel"; kernels.append((n, 512, 0)); prologue(n, 512)
    Q, KV, S, O = 16, 20, 96, 240
    E("s_lshr_b32 s9, s2, 3"); E("s_lshl_b32 s9, s9, 5")
    E("s_and_b32 s11, s2, 7"); E("s_lshl_b32 s11, s11, 2"); E("s_add_u32 s11, s11, s3")
    srd(40, 34, WS_Q, 2*MB); srd(44, 34, WS_K - 8192, 2*MB + 8192); srd(48, 34, WS_V - 512, 2*MB + 512); srd(52, 34, WS_O, 2*MB)
    E("s_lshl_b32 s12, s11, 11"); E("s_add_u32 s12, s12, s9")
    E("v_add_u32 v5, s12, v3"); E("v_lshlrev_b32 v5, 5, v5"); E("v_lshlrev_b32 v6, 4, v4"); E("v_add_u32 v8, v5, v6")
    E(f"buffer_load_dwordx4 v[{Q}:{Q+3}], v8, s[40:43], 0 offen")
    for kb in range(9):
        E(f"s_mov_b32 s13, {kb*1024}")
        E(f"buffer_load_dwordx4 v[{KV+4*kb}:{KV+4*kb+3}], v8, s[44:47], s13 offen")
    E("v_and_b32 v5, 15, v0"); E("s_lshl_b32 s13, s11, 4"); E("v_add_u32 v5, s13, v5"); E("v_lshlrev_b32 v5, 12, v5")
    E("s_lshl_b32 s13, s9, 1"); E("v_add_u32 v5, s13, v5"); E("v_add_u32 v9, v5, v6")
    E("s_add_u32 s13, s9, s11"); E("s_lshl_b32 s13, s13, 10"); E("v_lshlrev_b32 v5, 4, v1"); E("v_add_u32 v10, s13, v5")
    E("v_lshlrev_b32 v5, 2, v4"); E("v_sub_u32 v11, v3, v5")
    for i in range(16):
        c = 8*(i >> 2) + (i & 3)
        E(f"v_cmp_le_i32 s[{56+2*i}:{57+2*i}], {c}, v11")
    E(f"v_mov_b32 v12, {f2u(-1e30):#x}")
    for kb in range(9):
        E(f"s_waitcnt vmcnt({8-kb})")
        E(f"v_mfma_f32_32x32x16_bf16 v[{S+16*kb}:{S+16*kb+15}], v[{KV+4*kb}:{KV+4*kb+3}], v[{Q}:{Q+3}], 0")
    E("s_nop 3")
    for r in range(72): E(f"v_mov_b32 v{KV+r}, 0x3f803f80")
    E("s_mov_b32 s14, 0x0000ffff"); E("s_mov_b32 s15, 0x0000ffff"); E("s_mov_b64 exec, s[14:15]")
    for t in range(18):
        E(f"buffer_load_dwordx4 v[{KV+4*t}:{KV+4*t+3}], v9, s[48:51], 0 offen offset:{32*t}")
    E("s_mov_b64 exec, -1")
    E("s_nop 7")
    for i in range(16):
        E(f"v_cndmask_b32 v{S+128+i}, v12, v{S+128+i}, s[{56+2*i}:{57+2*i}]")
        E(f"v_cndmask_b32 v{S+i}, v{S+i}, v12, s[{56+2*i}:{57+2*i}]")
    for kb in range(8):
        E(f"s_cmp_ge_u32 s9, {256-32*kb}"); E(f"s_cbranch_scc1 {n}_ok{kb}")
        for i in range(16): E(f"v_mov_b32 v{S+16*kb+i}, v12")
        L(f"{n}_ok{kb}")
    for c in range(4): E(f"v_max_f32 v{4+c}, v{S+c}, v{S+4+c}")
    for r in range(8, 144, 8):
        for c in range(4): E(f"v_max3_f32 v{4+c}, v{4+c}, v{S+r+c}, v{S+r+4+c}")
    E("v_max_f32 v4, v4, v5"); E("v_max_f32 v6, v6, v7"); E("v_max_f32 v4, v4, v6"); E("v_mov_b32 v5, v4")
    E("s_nop 1"); E("v_permlane32_swap_b32 v4, v5"); E("s_nop 1"); E("v_max_f32 v4, v4, v5")
    cc = 0.25 * LOG2E
    E(f"s_mov_b32 s13, {f2u(cc):#x}"); E("v_mul_f32 v4, s13, v4")
    for r in range(0, 144, 4):
        for c in range(4): E(f"v_fma_f32 v{S+r+c}, v{S+r+c}, s13, -v4")
        for c in range(4): E(f"v_exp_f32 v{S+r+c}, v{S+r+c}")
        if r >= 4:
            p = r - 4; d = S + 16*(p//16) + (p % 16)//2
            E(f"v_cvt_pk_bf16_f32 v{d}, v{S+p}, v{S+p+1}"); E(f"v_cvt_pk_bf16_f32 v{d+1}, v{S+p+2}, v{S+p+3}")
    p = 140; d = S + 16*(p//16) + (p % 16)//2
    E("s_nop 0"); E(f"v_cvt_pk_bf16_f32 v{d}, v{S+p}, v{S+p+1}"); E(f"v_cvt_pk_bf16_f32 v{d+1}, v{S+p+2}, v{S+p+3}")
    E("s_nop 1")
    for t in range(18):
        E(f"s_waitcnt vmcnt({17-t})")
        b = S + 16*(t//2) + 4*(t % 2)
        E(f"v_mfma_f32_32x32x16_bf16 v[{O}:{O+15}], v[{KV+4*t}:{KV+4*t+3}], v[{b}:{b+3}], {'0' if t == 0 else f'v[{O}:{O+15}]'}")
    E("s_nop 15"); E(f"v_rcp_f32 v4, v{O+8}"); E("s_nop 0")
    for i in range(8): E(f"v_mul_f32 v{O+i}, v{O+i}, v4")
    for i in range(4): E(f"v_cvt_pk_bf16_f32 v{Q+i}, v{O+2*i}, v{O+2*i+1}")
    E(f"buffer_store_dwordx4 v[{Q}:{Q+3}], v10, s[52:55], 0 offen")
    epilogue_end(n)

def k3():
    n = "k3_wo_kernel"; kernels.append((n, 256, 32768)); prologue(n, 256)
    wgmap(); E("s_lshl_b32 s12, s11, 6")
    srd(40, 34, WS_O, 2*MB); srd(44, 20, 0, 512*1024); srd(48, 34, WS_H, 2*MB); srd(52, 16, 0, 2*MB)
    dma_setup(1024); dma_region(44, 12, 0, 8, 1024)
    load_xt(40, 32, 32)
    w_addr(True, 10)
    E("v_lshlrev_b32 v12, 10, v9"); E("v_lshlrev_b32 v5, 3, v4"); E("v_add_u32 v12, v12, v5"); E("s_lshl_b32 s13, s11, 11")
    for q in range(4): E(f"buffer_load_dwordx2 v[{VT+8+2*q}:{VT+9+2*q}], v12, s[52:55], s12 offen offset:{16*q}")
    E("s_waitcnt vmcnt(0)"); E("s_barrier")
    items = [(10, 1024*s, VX+4*s, ACC0) for s in range(32)]
    for _ in mfma_items(items, True, lambda i: False, lambda i: i == 0): pass
    E("s_nop 15")
    for i in range(8):
        E(f"v_lshlrev_b32 v5, 16, v{VT+8+i}"); E(f"v_and_b32 v6, 0xffff0000, v{VT+8+i}")
        E(f"v_add_f32 v{ACC0+2*i}, v{ACC0+2*i}, v5"); E(f"v_add_f32 v{ACC0+2*i+1}, v{ACC0+2*i+1}, v6")
    pack(ACC0, VT)
    E(f"buffer_store_dwordx4 v[{VT}:{VT+3}], v8, s[48:51], s13 offen")
    E(f"buffer_store_dwordx4 v[{VT+4}:{VT+7}], v8, s[48:51], s13 offen offset:1024")
    epilogue_end(n)

def k4():
    n = "k4_glu_kernel"; kernels.append((n, 256, 163840)); prologue(n, 256)
    stamp(n); wgmap(4); E("s_mul_i32 s11, s11, 86"); E("s_and_b32 s11, s11, 0xfffffff0"); E("s_lshl_b32 s11, s11, 1")
    srd(40, 34, WS_H, 2*MB); srd(44, 24, 0, 512*2752); srd(48, 26, 0, 512*2752); srd(52, 34, WS_HH, 2048*2752)
    load_xt(40, 32, 32)
    dma_setup(2752)
    def reg(slot):
        E(f"s_add_u32 s12, s11, {64*(slot//2)}")
        dma_region(44 if slot % 2 == 0 else 48, 12, (slot % 5)*32768, 8, 2752)
    def regl(slot): return dma_list(44 if slot % 2 == 0 else 48, 11, 64*(slot//2), (slot % 5)*32768, 8, 2752)
    for g in regl(0) + regl(1):
        for x in g: E(x)
    w_addr(True, 10)
    E("s_lshr_b32 s4, s10, 5"); E(f"s_mul_i32 s4, s4, {86*1024}"); E("v_lshlrev_b32 v11, 4, v1"); E("v_add_u32 v11, s4, v11")
    stamp(n); ln_regs(16, regl(2) + regl(3) + regl(4)); stamp(n)
    E(f"s_mov_b32 s13, {f2u(-LOG2E):#x}")
    for j in range(3):
        sg, su = ((2*j) % 5)*32768, ((2*j+1) % 5)*32768
        E(f"v_add_u32 v13, {sg}, v10"); E(f"v_add_u32 v14, {su}, v10")
        if j == 0: E("s_waitcnt vmcnt(24)"); E("s_barrier"); stamp(n)
        items = []
        for s in range(32): items += [(13, 1024*s, VX+4*s, ACC0), (14, 1024*s, VX+4*s, ACC1)]
        for _ in mfma_items(items, True, lambda i: False, lambda i: i < 2): pass
        stamp(n)
        if j == 0:
            E("s_waitcnt vmcnt(8)"); E("s_barrier")
            for g in regl(5):
                for x in g: E(x)
        if j == 1: E("s_waitcnt vmcnt(2)"); E("s_barrier")
        E("s_nop 15")
        for i in range(16): E(f"v_mul_f32 v{ACC0+i}, s13, v{ACC0+i}")
        for i in range(16): E(f"v_exp_f32 v{ACC0+i}, v{ACC0+i}")
        for i in range(16): E(f"v_add_f32 v{ACC0+i}, 1.0, v{ACC0+i}")
        for i in range(16): E(f"v_rcp_f32 v{ACC0+i}, v{ACC0+i}")
        for i in range(16): E(f"v_mul_f32 v{ACC0+i}, v{ACC0+i}, v{ACC1+i}")
        pack(ACC0, VT)
        E(f"s_add_u32 s12, s11, {64*j}"); E("s_lshl_b32 s12, s12, 5")
        E(f"buffer_store_dwordx4 v[{VT}:{VT+3}], v11, s[52:55], s12 offen")
        E(f"buffer_store_dwordx4 v[{VT+4}:{VT+7}], v11, s[52:55], s12 offen offset:1024")
        E("s_nop 1")
    epilogue_end(n)

def k5():
    n = "k5_down_kernel"; kernels.append((n, 256, 22*4096)); prologue(n, 256)
    NX = 44; X = 56; global VW
    oldVW = VW; VW = 16; A = 232; T = 48
    wgmap(); E("s_lshl_b32 s12, s11, 6")
    srd(40, 34, WS_HH, 2048*2752); srd(44, 28, 0, 1376*1024); srd(48, 34, WS_H, 2*MB); srd(52, 30, 0, 2*MB)
    dma_setup(1024); dma_region(44, 12, 0, 22, 1024)
    load_xt(40, 86, NX, X)
    w_addr(True, 10); E("v_add_u32 v13, 0x10000, v10")
    E("v_lshlrev_b32 v12, 10, v9"); E("v_lshlrev_b32 v5, 3, v4"); E("v_add_u32 v12, v12, v5")
    E("s_lshl_b32 s13, s10, 10"); E("s_lshl_b32 s14, s11, 11"); E("s_add_u32 s13, s13, s14"); E("v_lshlrev_b32 v11, 4, v1")
    E(f"buffer_load_dwordx4 v[248:251], v11, s[48:51], s13 offen"); E(f"buffer_load_dwordx4 v[252:255], v11, s[48:51], s13 offen offset:1024")
    E("s_waitcnt vmcnt(0)"); E("s_barrier")
    items = [((10, 1024*s) if s < 64 else (13, 1024*(s-64))) + (X+4*(s % NX), A) for s in range(86)]
    for i in mfma_items(items, True, lambda i: False, lambda i: i == 0):
        if i + NX < 86:
            s = i + NX; E(f"s_mov_b32 s4, {1024*s}"); E(f"buffer_load_dwordx4 v[{X+4*i}:{X+4*i+3}], v8, s[40:43], s4 offen")
        if i + 1 >= NX and i + 1 < 86: E(f"s_waitcnt vmcnt({85-(i+1)})")
    VW = oldVW
    E("s_nop 15")
    for i in range(8):
        E(f"v_lshlrev_b32 v5, 16, v{248+i}"); E(f"v_and_b32 v6, 0xffff0000, v{248+i}")
        E(f"v_add_f32 v{A+2*i}, v{A+2*i}, v5"); E(f"v_add_f32 v{A+2*i+1}, v{A+2*i+1}, v6")
    pack(A, T)
    for q in range(4): E(f"buffer_store_dwordx2 v[{T+2*q}:{T+2*q+1}], v12, s[52:55], s12 offen offset:{16*q}")
    epilogue_end(n)

k0(); k1(); k2(); k3(); k4(); k5()
hdr = open("cdna_kernels/" + NAME + ".s.ref").read().split("\n")
head = [l for l in hdr if l.startswith(";") and "@launch" not in l and "Override" not in l and "grid=ceil" not in l]
import os
dup = int(os.environ.get("DUP", "-1"))
ll = []
for idx, (k, g, l) in enumerate(kernels):
    ll += [f"; @launch kernel={k} grid=({g},1,1) block=(256,1,1) lds={l}"] * (5 if idx == dup else 1)
if dup == 99: ll = ll + ll
if STAMPK:
    ll = ll + [x for x in ll if STAMPK in x]
txt = head + ll
txt += ['.amdgcn_target "amdgcn-amd-amdhsa--gfx950"', ".text"] + out + ['.section .rodata,"a"']
for k, g, l in kernels:
    txt += [".p2align 6", f".amdhsa_kernel {k}", "  .amdhsa_next_free_vgpr 256", "  .amdhsa_next_free_sgpr 102", "  .amdhsa_accum_offset 256",
            "  .amdhsa_group_segment_fixed_size 0", "  .amdhsa_kernarg_size 80", "  .amdhsa_user_sgpr_count 2",
            "  .amdhsa_user_sgpr_kernarg_segment_ptr 1", "  .amdhsa_system_sgpr_workgroup_id_x 1", ".end_amdhsa_kernel"]
open(os.environ.get("OUT", "cdna_kernels/" + NAME + ".s"), "w").write("\n".join(txt) + "\n")
```

```python
import sys, os
NAME = "sequential_preLN__sliding_block__glu_gated_glu__prompt"
out = []
def E(s): out.append("    " + s)
def L(s): out.append(s + ":")
MB = 1 << 20
WS_Q, WS_K, WS_V, WS_O, WS_H, WS_HH = 0, 2*MB, 4*MB, 6*MB, 8*MB, 10*MB
WS_XN = 16*MB
LOG2E = 1.4426950408889634
import struct
def f2u(f): return struct.unpack("<I", struct.pack("<f", f))[0]

def prologue(name, nwg):
    out.append(".p2align 8"); out.append(f".globl {name}"); out.append(f".type {name},@function"); L(name)
    E(f"s_cmp_ge_u32 s2, {nwg}"); E(f"s_cbranch_scc1 {name}_done")
    E("s_load_dwordx16 s[16:31], s[0:1], 0"); E("s_load_dwordx4 s[32:35], s[0:1], 64")
    E("v_and_b32 v1, 63, v0")
    E("v_lshrrev_b32 v2, 6, v0")
    E("v_and_b32 v3, 31, v0")
    E("v_readfirstlane_b32 s3, v2")
    E("v_bfe_u32 v4, v0, 5, 1")
    E("s_waitcnt lgkmcnt(0)")
STAMPK = os.environ.get("STAMP", "")
nst = [0]
def stamp(name):
    if name != STAMPK: return
    E("s_memtime s[88:89]"); E("s_waitcnt lgkmcnt(0)"); E(f"s_mov_b32 s{90+nst[0]}, s88"); nst[0] += 1
def epilogue_end(name):
    if name == STAMPK:
        stamp(name)
        srd(40, 32, 0, 256)
        E(f"s_sub_u32 s4, s{90+nst[0]-1}, s90"); E("v_mov_b32 v5, s4"); E("v_mov_b32 v6, 40"); E("buffer_atomic_umax v5, v6, s[40:43], 0 offen")
        E(f"v_mov_b32 v5, s{90+nst[0]-1}"); E("v_mov_b32 v6, 44"); E("buffer_atomic_umax v5, v6, s[40:43], 0 offen")
        E(f"s_not_b32 s4, s90"); E("v_mov_b32 v5, s4"); E("v_mov_b32 v6, 48"); E("buffer_atomic_umax v5, v6, s[40:43], 0 offen")
        E(f"v_mov_b32 v5, s90"); E("v_mov_b32 v6, 52"); E("buffer_atomic_umax v5, v6, s[40:43], 0 offen")
        E("s_cmp_lg_u32 s2, 8"); E(f"s_cbranch_scc1 {name}_done"); E("s_cmp_lg_u32 s3, 0"); E(f"s_cbranch_scc1 {name}_done")
        srd(40, 32, 0, 256)
        for i in range(nst[0]):
            E(f"s_sub_u32 s4, s{90+i}, s90"); E("v_mov_b32 v5, s4"); E(f"v_mov_b32 v6, {4*i}"); E("buffer_store_dword v5, v6, s[40:43], 0 offen")
    L(f"{name}_done"); E("s_endpgm")
def srd(d, base, off, size):
    if off >= 0:
        E(f"s_add_u32 s{d}, s{base}, {off}"); E(f"s_addc_u32 s{d+1}, s{base+1}, 0")
    else:
        E(f"s_sub_u32 s{d}, s{base}, {-off}"); E(f"s_subb_u32 s{d+1}, s{base+1}, 0")
    E(f"s_mov_b32 s{d+2}, {size}"); E(f"s_mov_b32 s{d+3}, 0x00020000")

VX, VW, ACC0, ACC1, VT = 16, 144, 176, 192, 208

def w_addr(perm, vdst):
    E("v_bfe_u32 v5, v0, 2, 2")
    E(f"v_lshlrev_b32 v6, {2 if perm else 3}, v4")
    E("v_add_u32 v5, v5, v6")
    E("v_lshlrev_b32 v5, 6, v5")
    E("v_bfe_u32 v6, v0, 4, 1")
    E("v_lshlrev_b32 v6, 5, v6")
    E("v_add_u32 v5, v5, v6")
    E("v_and_b32 v6, 3, v0")
    E("v_lshlrev_b32 v6, 3, v6")
    E(f"v_add_u32 v{vdst}, v5, v6")

def dma_setup(ldw):
    E("v_lshrrev_b32 v5, 2, v0"); E(f"s_mov_b32 s4, {ldw}"); E("v_mul_lo_u32 v5, v5, s4")
    E("v_and_b32 v6, 3, v0"); E("v_lshlrev_b32 v6, 4, v6"); E("v_add_u32 v7, v5, v6")
    E("s_lshl_b32 s5, s3, 10")
def dma_region(srdreg, scol, ldsbase, nj, ldw):
    E(f"s_mov_b32 s6, s{scol}"); E(f"s_add_u32 s7, s5, {ldsbase}")
    for j in range(nj):
        E("s_mov_b32 m0, s7");
        if j + 1 < nj: E("s_add_u32 s7, s7, 4096")
        else: E("s_nop 0")
        E(f"buffer_load_dwordx4 v7, s[{srdreg}:{srdreg+3}], s6 offen lds")
        if j + 1 < nj: E(f"s_add_u32 s6, s6, {64*ldw}")

def dma_list(srdreg, scolreg, coladd, ldsbase, nj, ldw):
    r = []
    for j in range(nj):
        r.append([f"s_add_u32 s6, s{scolreg}, {coladd + j*64*ldw}", f"s_add_u32 m0, s5, {ldsbase + j*4096}", "s_nop 0",
                  f"buffer_load_dwordx4 v7, s[{srdreg}:{srdreg+3}], s6 offen lds"])
    return r
def mfma_items(items, perm, swap_of, first_of):
    d2 = 512 if perm else 256
    n = len(items); D = 6
    def rd(i):
        va, off, _, _ = items[i]; w = VW + 4 * (i % 8)
        E(f"ds_read_b64_tr_b16 v[{w}:{w+1}], v{va} offset:{off}")
        E(f"ds_read_b64_tr_b16 v[{w+2}:{w+3}], v{va} offset:{off+d2}")
    for i in range(min(D, n)): rd(i)
    for i in range(n):
        va, off, x, acc = items[i][:4]; w = VW + 4 * (i % 8)
        E(f"s_waitcnt lgkmcnt({2*(min(i+D-1, n-1)-i)})")
        c = "0" if first_of(i) else f"v[{acc}:{acc+15}]"
        if swap_of(i): E(f"v_mfma_f32_32x32x16_bf16 v[{acc}:{acc+15}], v[{x}:{x+3}], v[{w}:{w+3}], {c}")
        else:          E(f"v_mfma_f32_32x32x16_bf16 v[{acc}:{acc+15}], v[{w}:{w+3}], v[{x}:{x+3}], {c}")
        if i + D < n: rd(i + D)
        yield i

def ln_regs(ndma, inter=[]):
    E("s_mov_b32 s8, 0x3f803f80")
    for q in range(4): E(f"v_mov_b32 v{VT+q}, 0"); E(f"v_mov_b32 v{VT+4+q}, 0")
    for g in range(4):
        E(f"s_waitcnt vmcnt({min(63, 24-8*g+ndma)})")
        for r in range(32*g, 32*g+32):
            E(f"v_dot2_f32_bf16 v{VT+(r&3)}, v{VX+r}, s8, v{VT+(r&3)}")
            E(f"v_dot2_f32_bf16 v{VT+4+(r&3)}, v{VX+r}, v{VX+r}, v{VT+4+(r&3)}")
    E("s_nop 3")
    E(f"v_add_f32 v{VT}, v{VT}, v{VT+1}"); E(f"v_add_f32 v{VT+2}, v{VT+2}, v{VT+3}")
    E(f"v_add_f32 v{VT+4}, v{VT+4}, v{VT+5}"); E(f"v_add_f32 v{VT+6}, v{VT+6}, v{VT+7}")
    E(f"v_add_f32 v{VT}, v{VT}, v{VT+2}"); E(f"v_add_f32 v{VT+4}, v{VT+4}, v{VT+6}")
    E(f"v_mov_b32 v{VT+1}, v{VT}"); E(f"v_mov_b32 v{VT+5}, v{VT+4}")
    E("s_nop 1")
    E(f"v_permlane32_swap_b32 v{VT}, v{VT+1}"); E(f"v_permlane32_swap_b32 v{VT+4}, v{VT+5}")
    E("s_nop 1")
    E(f"v_add_f32 v{VT}, v{VT}, v{VT+1}"); E(f"v_add_f32 v{VT+4}, v{VT+4}, v{VT+5}")
    E(f"v_mul_f32 v{VT}, {f2u(1/512):#x}, v{VT}")
    E(f"v_mul_f32 v{VT+4}, {f2u(1/512):#x}, v{VT+4}")
    E(f"v_fma_f32 v{VT+4}, -v{VT}, v{VT}, v{VT+4}")
    E(f"v_max_f32 v{VT+4}, 0, v{VT+4}")
    E(f"v_add_f32 v{VT+4}, {f2u(1e-5):#x}, v{VT+4}")
    E(f"v_rsq_f32 v{VT+4}, v{VT+4}")
    E("s_nop 0")
    E(f"v_mul_f32 v{VT}, v{VT}, v{VT+4}")
    E(f"v_sub_f32 v{VT}, 0, v{VT}")
    inter = list(inter)
    for r in range(128):
        if inter and r % 5 == 0:
            for x in inter.pop(0): E(x)
        a, b = VT + 8 + 2 * (r & 3), VT + 9 + 2 * (r & 3)
        E(f"v_lshlrev_b32 v{a}, 16, v{VX+r}"); E(f"v_and_b32 v{b}, 0xffff0000, v{VX+r}")
        E(f"v_fma_f32 v{a}, v{a}, v{VT+4}, v{VT}"); E(f"v_fma_f32 v{b}, v{b}, v{VT+4}, v{VT}")
        E(f"v_cvt_pk_bf16_f32 v{VX+r}, v{a}, v{b}")

def load_x(srdreg, ld, nsteps, base=VX):
    E("s_lshl_b32 s10, s3, 5"); E("s_add_u32 s10, s10, s9")
    E("v_add_u32 v9, s10, v3"); E(f"s_mov_b32 s4, {ld}"); E("v_mul_lo_u32 v8, v9, s4")
    E("v_lshlrev_b32 v5, 4, v4"); E("v_add_u32 v8, v8, v5")
    for s in range(nsteps):
        E(f"buffer_load_dwordx4 v[{base+4*s}:{base+4*s+3}], v8, s[{srdreg}:{srdreg+3}], 0 offen offset:{32*s}")
def wgmap(a=2):
    if a == 2:
        E("s_and_b32 s9, s2, 7"); E("s_lshl_b32 s9, s9, 1"); E("s_lshr_b32 s11, s2, 7"); E("s_add_u32 s9, s9, s11"); E("s_lshl_b32 s9, s9, 7")
        E("s_lshr_b32 s11, s2, 3"); E("s_and_b32 s11, s11, 15")
    else:
        E("s_bfe_u32 s9, s2, 0x20001"); E("s_lshl_b32 s9, s9, 2"); E("s_lshr_b32 s11, s2, 6"); E("s_add_u32 s9, s9, s11"); E("s_lshl_b32 s9, s9, 7")
        E("s_bfe_u32 s11, s2, 0x30003"); E("s_and_b32 s4, s2, 1"); E("s_lshl_b32 s4, s4, 3"); E("s_add_u32 s11, s11, s4")
def load_xt(srdreg, nsteps_total, nsteps, base=VX):
    E("s_lshl_b32 s10, s3, 5"); E("s_add_u32 s10, s10, s9"); E("v_add_u32 v9, s10, v3")
    E("s_lshr_b32 s4, s10, 5"); E(f"s_mul_i32 s4, s4, {nsteps_total*1024}")
    E("v_lshlrev_b32 v8, 4, v1"); E("v_add_u32 v8, s4, v8")
    for s in range(nsteps):
        if s % 4 == 0: E(f"s_mov_b32 s4, {1024*s}")
        E(f"buffer_load_dwordx4 v[{base+4*s}:{base+4*s+3}], v8, s[{srdreg}:{srdreg+3}], s4 offen offset:{1024*(s%4)}")
def pack(acc, dst):
    for i in range(8): E(f"v_cvt_pk_bf16_f32 v{dst+i}, v{acc+2*i}, v{acc+2*i+1}")

kernels = []
def k0():
    n = "k0_ln_kernel"; kernels.append((n, 256, 0)); prologue(n, 256)
    E("s_and_b32 s9, s2, 7"); E("s_lshl_b32 s9, s9, 8"); E("s_lshr_b32 s10, s2, 3"); E("s_lshl_b32 s10, s10, 3"); E("s_add_u32 s9, s9, s10")
    E("s_lshl_b32 s10, s3, 1"); E("s_add_u32 s9, s9, s10")
    srd(40, 16, 0, 2*MB); srd(44, 34, WS_XN, 2*MB)
    E("s_lshl_b32 s10, s9, 10"); E("v_lshlrev_b32 v5, 4, v1")
    E("buffer_load_dwordx4 v[16:19], v5, s[40:43], s10 offen"); E("buffer_load_dwordx4 v[20:23], v5, s[40:43], s10 offen offset:1024")
    E("s_lshr_b32 s11, s9, 5"); E("s_lshl_b32 s11, s11, 15"); E("s_and_b32 s12, s9, 31"); E("s_lshl_b32 s12, s12, 4"); E("s_add_u32 s11, s11, s12")
    E("v_lshrrev_b32 v6, 1, v1"); E("v_lshlrev_b32 v6, 10, v6"); E("v_and_b32 v7, 1, v1"); E("v_lshlrev_b32 v7, 9, v7"); E("v_add_u32 v6, v6, v7")
    E("s_mov_b32 s8, 0x3f803f80")
    for q in range(4): E(f"v_mov_b32 v{24+q}, 0")
    if os.environ.get("PF", "1") == "1":
        E("s_lshl_b32 s12, s2, 12"); E("v_lshlrev_b32 v32, 4, v0"); E("v_add_u32 v32, s12, v32"); E("v_add_u32 v33, 0x100000, v32")
        k = 0
        for base, size in ((18, 512*3072), (20, 512*1024), (24, 512*2752), (26, 512*2752), (28, 1376*1024)):
            srd(48, base, 0, size)
            E(f"buffer_load_dwordx4 v[{36+4*k}:{39+4*k}], v32, s[48:51], 0 offen"); k += 1
            if size > MB: E(f"buffer_load_dwordx4 v[{36+4*k}:{39+4*k}], v33, s[48:51], 0 offen"); k += 1
        E("s_waitcnt vmcnt(9)")
    else:
        E("s_waitcnt vmcnt(0)")
    for r in range(2):
        for i in range(4):
            E(f"v_dot2_f32_bf16 v{24+2*r}, v{16+4*r+i}, s8, v{24+2*r}"); E(f"v_dot2_f32_bf16 v{25+2*r}, v{16+4*r+i}, v{16+4*r+i}, v{25+2*r}")
    E("s_nop 3")
    for off in (0x041F, 0x081F, 0x101F, 0x201F, 0x401F):
        for q in range(4): E(f"ds_swizzle_b32 v{28+q}, v{24+q} offset:{off:#x}")
        E("s_waitcnt lgkmcnt(0)")
        for q in range(4): E(f"v_add_f32 v{24+q}, v{24+q}, v{28+q}")
    for q in range(4): E(f"v_mov_b32 v{28+q}, v{24+q}")
    E("s_nop 1")
    for q in range(4): E(f"v_permlane32_swap_b32 v{24+q}, v{28+q}")
    E("s_nop 1")
    for q in range(4): E(f"v_add_f32 v{24+q}, v{24+q}, v{28+q}")
    for r in range(2):
        a, b = 24+2*r, 25+2*r
        E(f"v_mul_f32 v{a}, {f2u(1/512):#x}, v{a}"); E(f"v_mul_f32 v{b}, {f2u(1/512):#x}, v{b}")
        E(f"v_fma_f32 v{b}, -v{a}, v{a}, v{b}"); E(f"v_max_f32 v{b}, 0, v{b}"); E(f"v_add_f32 v{b}, {f2u(1e-5):#x}, v{b}")
        E(f"v_rsq_f32 v{b}, v{b}"); E("s_nop 0"); E(f"v_mul_f32 v{a}, v{a}, v{b}"); E(f"v_sub_f32 v{a}, 0, v{a}")
        for i in range(4):
            x = 16+4*r+i
            E(f"v_lshlrev_b32 v30, 16, v{x}"); E(f"v_and_b32 v31, 0xffff0000, v{x}")
            E(f"v_fma_f32 v30, v30, v{b}, v{a}"); E(f"v_fma_f32 v31, v31, v{b}, v{a}"); E(f"v_cvt_pk_bf16_f32 v{x}, v30, v31")
        E(f"buffer_store_dwordx4 v[{16+4*r}:{19+4*r}], v6, s[44:47], s11 offen offset:{16*r}")
    epilogue_end(n)
def k1():
    n = "k1_qkv_kernel"; kernels.append((n, 256, 98304)); prologue(n, 256)
    stamp(n); wgmap(4); E("s_mul_i32 s11, s11, 3")
    srd(40, 34, WS_XN, 2*MB); srd(44, 18, 0, 512*3072); srd(48, 34, 0, 6*MB)
    dma_setup(3072)
    for j in range(3):
        E(f"s_add_u32 s12, s11, {j}"); E("s_lshl_b32 s12, s12, 6")
        dma_region(44, 12, j*32768, 8, 3072)
        if j == 0: load_xt(40, 32, 32)
    w_addr(False, 10)
    E("v_lshlrev_b32 v11, 5, v9"); E("v_lshlrev_b32 v5, 4, v4"); E("v_add_u32 v11, v11, v5")
    E("v_lshlrev_b32 v12, 12, v3"); E("v_lshlrev_b32 v5, 4, v4"); E("v_add_u32 v12, v12, v5")
    E("s_lshl_b32 s13, s10, 1"); E("v_add_u32 v12, s13, v12")
    stamp(n)
    for j in range(3):
        E(f"s_waitcnt vmcnt({[16, 8+0, 2][j] if j != 1 else 10})"); E("s_barrier"); stamp(n)
        E(f"v_add_u32 v13, {j*32768}, v10")
        E(f"s_add_u32 s12, s11, {j}"); E("s_cmp_ge_u32 s12, 32"); E(f"s_cbranch_scc1 {n}_v{j}")
        for sw in (False, True):
            if sw: L(f"{n}_v{j}")
            items = [(13, 1024*s, VX+4*s, ACC0) for s in range(32)]
            for _ in mfma_items(items, False, lambda i: sw, lambda i: i == 0): pass
            E("s_nop 15"); pack(ACC0, VT)
            if not sw:
                E("s_lshr_b32 s14, s12, 4"); E("s_lshl_b32 s14, s14, 21"); E("s_and_b32 s15, s12, 15"); E("s_lshl_b32 s15, s15, 17")
                E("s_add_u32 s14, s14, s15"); E("s_add_u32 s15, s14, 65536")
                E(f"buffer_store_dwordx4 v[{VT}:{VT+3}], v11, s[48:51], s14 offen")
                E(f"buffer_store_dwordx4 v[{VT+4}:{VT+7}], v11, s[48:51], s15 offen")
                E(f"s_branch {n}_e{j}")
            else:
                E("s_sub_u32 s14, s12, 32"); E("s_lshl_b32 s14, s14, 17"); E(f"s_add_u32 s14, s14, {WS_V}")
                E(f"buffer_store_dwordx4 v[{VT}:{VT+3}], v12, s[48:51], s14 offen")
                E(f"buffer_store_dwordx4 v[{VT+4}:{VT+7}], v12, s[48:51], s14 offen offset:32")
        L(f"{n}_e{j}"); E("s_nop 1")
    epilogue_end(n)

def k2():
    n = "k2_attn_kernel"; kernels.append((n, 512, 0)); prologue(n, 512)
    Q, KV, S, O = 16, 20, 96, 240
    E("s_lshr_b32 s9, s2, 3"); E("s_lshl_b32 s9, s9, 5")
    E("s_and_b32 s11, s2, 7"); E("s_lshl_b32 s11, s11, 2"); E("s_add_u32 s11, s11, s3")
    srd(40, 34, WS_Q, 2*MB); srd(44, 34, WS_K - 8192, 2*MB + 8192); srd(48, 34, WS_V - 512, 2*MB + 512); srd(52, 34, WS_O, 2*MB)
    E("s_lshl_b32 s12, s11, 11"); E("s_add_u32 s12, s12, s9")
    E("v_add_u32 v5, s12, v3"); E("v_lshlrev_b32 v5, 5, v5"); E("v_lshlrev_b32 v6, 4, v4"); E("v_add_u32 v8, v5, v6")
    E(f"buffer_load_dwordx4 v[{Q}:{Q+3}], v8, s[40:43], 0 offen")
    for kb in range(9):
        E(f"s_mov_b32 s13, {kb*1024}")
        E(f"buffer_load_dwordx4 v[{KV+4*kb}:{KV+4*kb+3}], v8, s[44:47], s13 offen")
    E("v_and_b32 v5, 15, v0"); E("s_lshl_b32 s13, s11, 4"); E("v_add_u32 v5, s13, v5"); E("v_lshlrev_b32 v5, 12, v5")
    E("s_lshl_b32 s13, s9, 1"); E("v_add_u32 v5, s13, v5"); E("v_add_u32 v9, v5, v6")
    E("s_add_u32 s13, s9, s11"); E("s_lshl_b32 s13, s13, 10"); E("v_lshlrev_b32 v5, 4, v1"); E("v_add_u32 v10, s13, v5")
    E("v_lshlrev_b32 v5, 2, v4"); E("v_sub_u32 v11, v3, v5")
    for i in range(16):
        c = 8*(i >> 2) + (i & 3)
        E(f"v_cmp_le_i32 s[{56+2*i}:{57+2*i}], {c}, v11")
    E(f"v_mov_b32 v12, {f2u(-1e30):#x}")
    for kb in range(9):
        E(f"s_waitcnt vmcnt({8-kb})")
        E(f"v_mfma_f32_32x32x16_bf16 v[{S+16*kb}:{S+16*kb+15}], v[{KV+4*kb}:{KV+4*kb+3}], v[{Q}:{Q+3}], 0")
    E("s_nop 3")
    for r in range(72): E(f"v_mov_b32 v{KV+r}, 0x3f803f80")
    E("s_mov_b32 s14, 0x0000ffff"); E("s_mov_b32 s15, 0x0000ffff"); E("s_mov_b64 exec, s[14:15]")
    for t in range(18):
        E(f"buffer_load_dwordx4 v[{KV+4*t}:{KV+4*t+3}], v9, s[48:51], 0 offen offset:{32*t}")
    E("s_mov_b64 exec, -1")
    E("s_nop 7")
    for i in range(16):
        E(f"v_cndmask_b32 v{S+128+i}, v12, v{S+128+i}, s[{56+2*i}:{57+2*i}]")
        E(f"v_cndmask_b32 v{S+i}, v{S+i}, v12, s[{56+2*i}:{57+2*i}]")
    for kb in range(8):
        E(f"s_cmp_ge_u32 s9, {256-32*kb}"); E(f"s_cbranch_scc1 {n}_ok{kb}")
        for i in range(16): E(f"v_mov_b32 v{S+16*kb+i}, v12")
        L(f"{n}_ok{kb}")
    for c in range(4): E(f"v_max_f32 v{4+c}, v{S+c}, v{S+4+c}")
    for r in range(8, 144, 8):
        for c in range(4): E(f"v_max3_f32 v{4+c}, v{4+c}, v{S+r+c}, v{S+r+4+c}")
    E("v_max_f32 v4, v4, v5"); E("v_max_f32 v6, v6, v7"); E("v_max_f32 v4, v4, v6"); E("v_mov_b32 v5, v4")
    E("s_nop 1"); E("v_permlane32_swap_b32 v4, v5"); E("s_nop 1"); E("v_max_f32 v4, v4, v5")
    cc = 0.25 * LOG2E
    E(f"s_mov_b32 s13, {f2u(cc):#x}"); E("v_mul_f32 v4, s13, v4")
    for r in range(0, 144, 4):
        for c in range(4): E(f"v_fma_f32 v{S+r+c}, v{S+r+c}, s13, -v4")
        for c in range(4): E(f"v_exp_f32 v{S+r+c}, v{S+r+c}")
        if r >= 4:
            p = r - 4; d = S + 16*(p//16) + (p % 16)//2
            E(f"v_cvt_pk_bf16_f32 v{d}, v{S+p}, v{S+p+1}"); E(f"v_cvt_pk_bf16_f32 v{d+1}, v{S+p+2}, v{S+p+3}")
    p = 140; d = S + 16*(p//16) + (p % 16)//2
    E("s_nop 0"); E(f"v_cvt_pk_bf16_f32 v{d}, v{S+p}, v{S+p+1}"); E(f"v_cvt_pk_bf16_f32 v{d+1}, v{S+p+2}, v{S+p+3}")
    E("s_nop 1")
    for t in range(18):
        E(f"s_waitcnt vmcnt({17-t})")
        b = S + 16*(t//2) + 4*(t % 2)
        E(f"v_mfma_f32_32x32x16_bf16 v[{O}:{O+15}], v[{KV+4*t}:{KV+4*t+3}], v[{b}:{b+3}], {'0' if t == 0 else f'v[{O}:{O+15}]'}")
    E("s_nop 15"); E(f"v_rcp_f32 v4, v{O+8}"); E("s_nop 0")
    for i in range(8): E(f"v_mul_f32 v{O+i}, v{O+i}, v4")
    for i in range(4): E(f"v_cvt_pk_bf16_f32 v{Q+i}, v{O+2*i}, v{O+2*i+1}")
    E(f"buffer_store_dwordx4 v[{Q}:{Q+3}], v10, s[52:55], 0 offen")
    epilogue_end(n)

def k3():
    n = "k3_wo_kernel"; kernels.append((n, 256, 32768)); prologue(n, 256)
    wgmap(); E("s_lshl_b32 s12, s11, 6")
    srd(40, 34, WS_O, 2*MB); srd(44, 20, 0, 512*1024); srd(48, 34, WS_H, 2*MB); srd(52, 16, 0, 2*MB)
    dma_setup(1024); dma_region(44, 12, 0, 8, 1024)
    load_xt(40, 32, 32)
    w_addr(True, 10)
    E("v_lshlrev_b32 v12, 10, v9"); E("v_lshlrev_b32 v5, 3, v4"); E("v_add_u32 v12, v12, v5"); E("s_lshl_b32 s13, s11, 11")
    for q in range(4): E(f"buffer_load_dwordx2 v[{VT+8+2*q}:{VT+9+2*q}], v12, s[52:55], s12 offen offset:{16*q}")
    E("s_waitcnt vmcnt(0)"); E("s_barrier")
    items = [(10, 1024*s, VX+4*s, ACC0) for s in range(32)]
    for _ in mfma_items(items, True, lambda i: False, lambda i: i == 0): pass
    E("s_nop 15")
    for i in range(8):
        E(f"v_lshlrev_b32 v5, 16, v{VT+8+i}"); E(f"v_and_b32 v6, 0xffff0000, v{VT+8+i}")
        E(f"v_add_f32 v{ACC0+2*i}, v{ACC0+2*i}, v5"); E(f"v_add_f32 v{ACC0+2*i+1}, v{ACC0+2*i+1}, v6")
    pack(ACC0, VT)
    E(f"buffer_store_dwordx4 v[{VT}:{VT+3}], v8, s[48:51], s13 offen")
    E(f"buffer_store_dwordx4 v[{VT+4}:{VT+7}], v8, s[48:51], s13 offen offset:1024")
    epilogue_end(n)

def k4():
    n = "k4_glu_kernel"; kernels.append((n, 256, 163840)); prologue(n, 256)
    stamp(n); wgmap(4); E("s_mul_i32 s11, s11, 86"); E("s_and_b32 s11, s11, 0xfffffff0"); E("s_lshl_b32 s11, s11, 1")
    srd(40, 34, WS_H, 2*MB); srd(44, 24, 0, 512*2752); srd(48, 26, 0, 512*2752); srd(52, 34, WS_HH, 2048*2752)
    load_xt(40, 32, 32)
    dma_setup(2752)
    def reg(slot):
        E(f"s_add_u32 s12, s11, {64*(slot//2)}")
        dma_region(44 if slot % 2 == 0 else 48, 12, (slot % 5)*32768, 8, 2752)
    def regl(slot): return dma_list(44 if slot % 2 == 0 else 48, 11, 64*(slot//2), (slot % 5)*32768, 8, 2752)
    for g in regl(0) + regl(1):
        for x in g: E(x)
    w_addr(True, 10)
    E("s_lshr_b32 s4, s10, 5"); E(f"s_mul_i32 s4, s4, {86*1024}"); E("v_lshlrev_b32 v11, 4, v1"); E("v_add_u32 v11, s4, v11")
    stamp(n); ln_regs(16, regl(2) + regl(3) + regl(4)); stamp(n)
    E(f"s_mov_b32 s13, {f2u(-LOG2E):#x}")
    for j in range(3):
        sg, su = ((2*j) % 5)*32768, ((2*j+1) % 5)*32768
        E(f"v_add_u32 v13, {sg}, v10"); E(f"v_add_u32 v14, {su}, v10")
        if j == 0: E("s_waitcnt vmcnt(24)"); E("s_barrier"); stamp(n)
        items = []
        for s in range(32): items += [(13, 1024*s, VX+4*s, ACC0), (14, 1024*s, VX+4*s, ACC1)]
        for _ in mfma_items(items, True, lambda i: False, lambda i: i < 2): pass
        stamp(n)
        if j == 0:
            E("s_waitcnt vmcnt(8)"); E("s_barrier")
            for g in regl(5):
                for x in g: E(x)
        if j == 1: E("s_waitcnt vmcnt(2)"); E("s_barrier")
        E("s_nop 15")
        for i in range(16): E(f"v_mul_f32 v{ACC0+i}, s13, v{ACC0+i}")
        for i in range(16): E(f"v_exp_f32 v{ACC0+i}, v{ACC0+i}")
        for i in range(16): E(f"v_add_f32 v{ACC0+i}, 1.0, v{ACC0+i}")
        for i in range(16): E(f"v_rcp_f32 v{ACC0+i}, v{ACC0+i}")
        for i in range(16): E(f"v_mul_f32 v{ACC0+i}, v{ACC0+i}, v{ACC1+i}")
        pack(ACC0, VT)
        E(f"s_add_u32 s12, s11, {64*j}"); E("s_lshl_b32 s12, s12, 5")
        E(f"buffer_store_dwordx4 v[{VT}:{VT+3}], v11, s[52:55], s12 offen")
        E(f"buffer_store_dwordx4 v[{VT+4}:{VT+7}], v11, s[52:55], s12 offen offset:1024")
        E("s_nop 1")
    epilogue_end(n)

def k5():
    n = "k5_down_kernel"; kernels.append((n, 256, 22*4096)); prologue(n, 256)
    NX = 44; X = 56; global VW
    oldVW = VW; VW = 16; A = 232; T = 48
    wgmap(); E("s_lshl_b32 s12, s11, 6")
    srd(40, 34, WS_HH, 2048*2752); srd(44, 28, 0, 1376*1024); srd(48, 34, WS_H, 2*MB); srd(52, 30, 0, 2*MB)
    dma_setup(1024); dma_region(44, 12, 0, 22, 1024)
    load_xt(40, 86, NX, X)
    w_addr(True, 10); E("v_add_u32 v13, 0x10000, v10")
    E("v_lshlrev_b32 v12, 10, v9"); E("v_lshlrev_b32 v5, 3, v4"); E("v_add_u32 v12, v12, v5")
    E("s_lshl_b32 s13, s10, 10"); E("s_lshl_b32 s14, s11, 11"); E("s_add_u32 s13, s13, s14"); E("v_lshlrev_b32 v11, 4, v1")
    E(f"buffer_load_dwordx4 v[248:251], v11, s[48:51], s13 offen"); E(f"buffer_load_dwordx4 v[252:255], v11, s[48:51], s13 offen offset:1024")
    E("s_waitcnt vmcnt(0)"); E("s_barrier")
    items = [((10, 1024*s) if s < 64 else (13, 1024*(s-64))) + (X+4*(s % NX), A) for s in range(86)]
    for i in mfma_items(items, True, lambda i: False, lambda i: i == 0):
        if i + NX < 86:
            s = i + NX; E(f"s_mov_b32 s4, {1024*s}"); E(f"buffer_load_dwordx4 v[{X+4*i}:{X+4*i+3}], v8, s[40:43], s4 offen")
        if i + 1 >= NX and i + 1 < 86: E(f"s_waitcnt vmcnt({85-(i+1)})")
    VW = oldVW
    E("s_nop 15")
    for i in range(8):
        E(f"v_lshlrev_b32 v5, 16, v{248+i}"); E(f"v_and_b32 v6, 0xffff0000, v{248+i}")
        E(f"v_add_f32 v{A+2*i}, v{A+2*i}, v5"); E(f"v_add_f32 v{A+2*i+1}, v{A+2*i+1}, v6")
    pack(A, T)
    for q in range(4): E(f"buffer_store_dwordx2 v[{T+2*q}:{T+2*q+1}], v12, s[52:55], s12 offen offset:{16*q}")
    epilogue_end(n)

k0(); k1(); k2(); k3(); k4(); k5()
hdr = open("cdna_kernels/" + NAME + ".s.ref").read().split("\n")
head = [l for l in hdr if l.startswith(";") and "@launch" not in l and "Override" not in l and "grid=ceil" not in l]
import os
dup = int(os.environ.get("DUP", "-1"))
ll = []
for idx, (k, g, l) in enumerate(kernels):
    ll += [f"; @launch kernel={k} grid=({g},1,1) block=(256,1,1) lds={l}"] * (5 if idx == dup else 1)
if dup == 99: ll = ll + ll
if STAMPK:
    ll = ll + [x for x in ll if STAMPK in x]
txt = head + ll
txt += ['.amdgcn_target "amdgcn-amd-amdhsa--gfx950"', ".text"] + out + ['.section .rodata,"a"']
for k, g, l in kernels:
    txt += [".p2align 6", f".amdhsa_kernel {k}", "  .amdhsa_next_free_vgpr 256", "  .amdhsa_next_free_sgpr 102", "  .amdhsa_accum_offset 256",
            "  .amdhsa_group_segment_fixed_size 0", "  .amdhsa_kernarg_size 80", "  .amdhsa_user_sgpr_count 2",
            "  .amdhsa_user_sgpr_kernarg_segment_ptr 1", "  .amdhsa_system_sgpr_workgroup_id_x 1", ".end_amdhsa_kernel"]
open(os.environ.get("OUT", "cdna_kernels/" + NAME + ".s"), "w").write("\n".join(txt) + "\n")
```

```python
import sys, os
NAME = "sequential_preLN__sliding_block__glu_gated_glu__prompt"
out = []
def E(s): out.append("    " + s)
def L(s): out.append(s + ":")
MB = 1 << 20
WS_Q, WS_K, WS_V, WS_O, WS_H, WS_HH = 0, 2*MB, 4*MB, 6*MB, 8*MB, 10*MB
WS_XN = 16*MB
LOG2E = 1.4426950408889634
import struct
def f2u(f): return struct.unpack("<I", struct.pack("<f", f))[0]

def prologue(name, nwg):
    out.append(".p2align 8"); out.append(f".globl {name}"); out.append(f".type {name},@function"); L(name)
    E(f"s_cmp_ge_u32 s2, {nwg}"); E(f"s_cbranch_scc1 {name}_done")
    E("s_load_dwordx16 s[16:31], s[0:1], 0"); E("s_load_dwordx4 s[32:35], s[0:1], 64")
    E("v_and_b32 v1, 63, v0")
    E("v_lshrrev_b32 v2, 6, v0")
    E("v_and_b32 v3, 31, v0")
    E("v_readfirstlane_b32 s3, v2")
    E("v_bfe_u32 v4, v0, 5, 1")
    E("s_waitcnt lgkmcnt(0)")
STAMPK = os.environ.get("STAMP", "")
nst = [0]
def stamp(name):
    if name != STAMPK: return
    E("s_memtime s[88:89]"); E("s_waitcnt lgkmcnt(0)"); E(f"s_mov_b32 s{90+nst[0]}, s88"); nst[0] += 1
def epilogue_end(name):
    if name == STAMPK:
        stamp(name)
        srd(40, 32, 0, 256)
        E(f"s_sub_u32 s4, s{90+nst[0]-1}, s90"); E("v_mov_b32 v5, s4"); E("v_mov_b32 v6, 40"); E("buffer_atomic_umax v5, v6, s[40:43], 0 offen")
        E(f"v_mov_b32 v5, s{90+nst[0]-1}"); E("v_mov_b32 v6, 44"); E("buffer_atomic_umax v5, v6, s[40:43], 0 offen")
        E(f"s_not_b32 s4, s90"); E("v_mov_b32 v5, s4"); E("v_mov_b32 v6, 48"); E("buffer_atomic_umax v5, v6, s[40:43], 0 offen")
        E(f"v_mov_b32 v5, s90"); E("v_mov_b32 v6, 52"); E("buffer_atomic_umax v5, v6, s[40:43], 0 offen")
        E("s_cmp_lg_u32 s2, 8"); E(f"s_cbranch_scc1 {name}_done"); E("s_cmp_lg_u32 s3, 0"); E(f"s_cbranch_scc1 {name}_done")
        srd(40, 32, 0, 256)
        for i in range(nst[0]):
            E(f"s_sub_u32 s4, s{90+i}, s90"); E("v_mov_b32 v5, s4"); E(f"v_mov_b32 v6, {4*i}"); E("buffer_store_dword v5, v6, s[40:43], 0 offen")
    L(f"{name}_done"); E("s_endpgm")
def srd(d, base, off, size):
    if off >= 0:
        E(f"s_add_u32 s{d}, s{base}, {off}"); E(f"s_addc_u32 s{d+1}, s{base+1}, 0")
    else:
        E(f"s_sub_u32 s{d}, s{base}, {-off}"); E(f"s_subb_u32 s{d+1}, s{base+1}, 0")
    E(f"s_mov_b32 s{d+2}, {size}"); E(f"s_mov_b32 s{d+3}, 0x00020000")

VX, VW, ACC0, ACC1, VT = 16, 144, 176, 192, 208

def w_addr(perm, vdst):
    E("v_bfe_u32 v5, v0, 2, 2")
    E(f"v_lshlrev_b32 v6, {2 if perm else 3}, v4")
    E("v_add_u32 v5, v5, v6")
    E("v_lshlrev_b32 v5, 6, v5")
    E("v_bfe_u32 v6, v0, 4, 1")
    E("v_lshlrev_b32 v6, 5, v6")
    E("v_add_u32 v5, v5, v6")
    E("v_and_b32 v6, 3, v0")
    E("v_lshlrev_b32 v6, 3, v6")
    E(f"v_add_u32 v{vdst}, v5, v6")

def dma_setup(ldw):
    E("v_lshrrev_b32 v5, 2, v0"); E(f"s_mov_b32 s4, {ldw}"); E("v_mul_lo_u32 v5, v5, s4")
    E("v_and_b32 v6, 3, v0"); E("v_lshlrev_b32 v6, 4, v6"); E("v_add_u32 v7, v5, v6")
    E("s_lshl_b32 s5, s3, 10")
def dma_region(srdreg, scol, ldsbase, nj, ldw):
    E(f"s_mov_b32 s6, s{scol}"); E(f"s_add_u32 s7, s5, {ldsbase}")
    for j in range(nj):
        E("s_mov_b32 m0, s7");
        if j + 1 < nj: E("s_add_u32 s7, s7, 4096")
        else: E("s_nop 0")
        E(f"buffer_load_dwordx4 v7, s[{srdreg}:{srdreg+3}], s6 offen lds")
        if j + 1 < nj: E(f"s_add_u32 s6, s6, {64*ldw}")

def dma_list(srdreg, scolreg, coladd, ldsbase, nj, ldw):
    r = []
    for j in range(nj):
        r.append([f"s_add_u32 s6, s{scolreg}, {coladd + j*64*ldw}", f"s_add_u32 m0, s5, {ldsbase + j*4096}", "s_nop 0",
                  f"buffer_load_dwordx4 v7, s[{srdreg}:{srdreg+3}], s6 offen lds"])
    return r
def mfma_items(items, perm, swap_of, first_of):
    d2 = 512 if perm else 256
    n = len(items); D = 6
    def rd(i):
        va, off, _, _ = items[i]; w = VW + 4 * (i % 8)
        E(f"ds_read_b64_tr_b16 v[{w}:{w+1}], v{va} offset:{off}")
        E(f"ds_read_b64_tr_b16 v[{w+2}:{w+3}], v{va} offset:{off+d2}")
    for i in range(min(D, n)): rd(i)
    for i in range(n):
        va, off, x, acc = items[i][:4]; w = VW + 4 * (i % 8)
        E(f"s_waitcnt lgkmcnt({2*(min(i+D-1, n-1)-i)})")
        c = "0" if first_of(i) else f"v[{acc}:{acc+15}]"
        if swap_of(i): E(f"v_mfma_f32_32x32x16_bf16 v[{acc}:{acc+15}], v[{x}:{x+3}], v[{w}:{w+3}], {c}")
        else:          E(f"v_mfma_f32_32x32x16_bf16 v[{acc}:{acc+15}], v[{w}:{w+3}], v[{x}:{x+3}], {c}")
        if i + D < n: rd(i + D)
        yield i

def ln_regs(ndma, inter=[]):
    E("s_mov_b32 s8, 0x3f803f80")
    for q in range(4): E(f"v_mov_b32 v{VT+q}, 0"); E(f"v_mov_b32 v{VT+4+q}, 0")
    for g in range(4):
        E(f"s_waitcnt vmcnt({min(63, 24-8*g+ndma)})")
        for r in range(32*g, 32*g+32):
            E(f"v_dot2_f32_bf16 v{VT+(r&3)}, v{VX+r}, s8, v{VT+(r&3)}")
            E(f"v_dot2_f32_bf16 v{VT+4+(r&3)}, v{VX+r}, v{VX+r}, v{VT+4+(r&3)}")
    E("s_nop 3")
    E(f"v_add_f32 v{VT}, v{VT}, v{VT+1}"); E(f"v_add_f32 v{VT+2}, v{VT+2}, v{VT+3}")
    E(f"v_add_f32 v{VT+4}, v{VT+4}, v{VT+5}"); E(f"v_add_f32 v{VT+6}, v{VT+6}, v{VT+7}")
    E(f"v_add_f32 v{VT}, v{VT}, v{VT+2}"); E(f"v_add_f32 v{VT+4}, v{VT+4}, v{VT+6}")
    E(f"v_mov_b32 v{VT+1}, v{VT}"); E(f"v_mov_b32 v{VT+5}, v{VT+4}")
    E("s_nop 1")
    E(f"v_permlane32_swap_b32 v{VT}, v{VT+1}"); E(f"v_permlane32_swap_b32 v{VT+4}, v{VT+5}")
    E("s_nop 1")
    E(f"v_add_f32 v{VT}, v{VT}, v{VT+1}"); E(f"v_add_f32 v{VT+4}, v{VT+4}, v{VT+5}")
    E(f"v_mul_f32 v{VT}, {f2u(1/512):#x}, v{VT}")
    E(f"v_mul_f32 v{VT+4}, {f2u(1/512):#x}, v{VT+4}")
    E(f"v_fma_f32 v{VT+4}, -v{VT}, v{VT}, v{VT+4}")
    E(f"v_max_f32 v{VT+4}, 0, v{VT+4}")
    E(f"v_add_f32 v{VT+4}, {f2u(1e-5):#x}, v{VT+4}")
    E(f"v_rsq_f32 v{VT+4}, v{VT+4}")
    E("s_nop 0")
    E(f"v_mul_f32 v{VT}, v{VT}, v{VT+4}")
    E(f"v_sub_f32 v{VT}, 0, v{VT}")
    inter = list(inter)
    for r in range(128):
        if inter and r % 5 == 0:
            for x in inter.pop(0): E(x)
        a, b = VT + 8 + 2 * (r & 3), VT + 9 + 2 * (r & 3)
        E(f"v_lshlrev_b32 v{a}, 16, v{VX+r}"); E(f"v_and_b32 v{b}, 0xffff0000, v{VX+r}")
        E(f"v_fma_f32 v{a}, v{a}, v{VT+4}, v{VT}"); E(f"v_fma_f32 v{b}, v{b}, v{VT+4}, v{VT}")
        E(f"v_cvt_pk_bf16_f32 v{VX+r}, v{a}, v{b}")

def load_x(srdreg, ld, nsteps, base=VX):
    E("s_lshl_b32 s10, s3, 5"); E("s_add_u32 s10, s10, s9")
    E("v_add_u32 v9, s10, v3"); E(f"s_mov_b32 s4, {ld}"); E("v_mul_lo_u32 v8, v9, s4")
    E("v_lshlrev_b32 v5, 4, v4"); E("v_add_u32 v8, v8, v5")
    for s in range(nsteps):
        E(f"buffer_load_dwordx4 v[{base+4*s}:{base+4*s+3}], v8, s[{srdreg}:{srdreg+3}], 0 offen offset:{32*s}")
def wgmap(a=2):
    if a == 2:
        E("s_and_b32 s9, s2, 7"); E("s_lshl_b32 s9, s9, 1"); E("s_lshr_b32 s11, s2, 7"); E("s_add_u32 s9, s9, s11"); E("s_lshl_b32 s9, s9, 7")
        E("s_lshr_b32 s11, s2, 3"); E("s_and_b32 s11, s11, 15")
    else:
        E("s_bfe_u32 s9, s2, 0x20001"); E("s_lshl_b32 s9, s9, 2"); E("s_lshr_b32 s11, s2, 6"); E("s_add_u32 s9, s9, s11"); E("s_lshl_b32 s9, s9, 7")
        E("s_bfe_u32 s11, s2, 0x30003"); E("s_and_b32 s4, s2, 1"); E("s_lshl_b32 s4, s4, 3"); E("s_add_u32 s11, s11, s4")
def load_xt(srdreg, nsteps_total, nsteps, base=VX):
    E("s_lshl_b32 s10, s3, 5"); E("s_add_u32 s10, s10, s9"); E("v_add_u32 v9, s10, v3")
    E("s_lshr_b32 s4, s10, 5"); E(f"s_mul_i32 s4, s4, {nsteps_total*1024}")
    E("v_lshlrev_b32 v8, 4, v1"); E("v_add_u32 v8, s4, v8")
    for s in range(nsteps):
        if s % 4 == 0: E(f"s_mov_b32 s4, {1024*s}")
        E(f"buffer_load_dwordx4 v[{base+4*s}:{base+4*s+3}], v8, s[{srdreg}:{srdreg+3}], s4 offen offset:{1024*(s%4)}")
def pack(acc, dst):
    for i in range(8): E(f"v_cvt_pk_bf16_f32 v{dst+i}, v{acc+2*i}, v{acc+2*i+1}")

kernels = []
def k0():
    n = "k0_ln_kernel"; kernels.append((n, 256, 0)); prologue(n, 256)
    E("s_and_b32 s9, s2, 7"); E("s_lshl_b32 s9, s9, 8"); E("s_lshr_b32 s10, s2, 3"); E("s_lshl_b32 s10, s10, 3"); E("s_add_u32 s9, s9, s10")
    E("s_lshl_b32 s10, s3, 1"); E("s_add_u32 s9, s9, s10")
    srd(40, 16, 0, 2*MB); srd(44, 34, WS_XN, 2*MB)
    E("s_lshl_b32 s10, s9, 10"); E("v_lshlrev_b32 v5, 4, v1")
    E("buffer_load_dwordx4 v[16:19], v5, s[40:43], s10 offen"); E("buffer_load_dwordx4 v[20:23], v5, s[40:43], s10 offen offset:1024")
    E("s_lshr_b32 s11, s9, 5"); E("s_lshl_b32 s11, s11, 15"); E("s_and_b32 s12, s9, 31"); E("s_lshl_b32 s12, s12, 4"); E("s_add_u32 s11, s11, s12")
    E("v_lshrrev_b32 v6, 1, v1"); E("v_lshlrev_b32 v6, 10, v6"); E("v_and_b32 v7, 1, v1"); E("v_lshlrev_b32 v7, 9, v7"); E("v_add_u32 v6, v6, v7")
    E("s_mov_b32 s8, 0x3f803f80")
    for q in range(4): E(f"v_mov_b32 v{24+q}, 0")
    if os.environ.get("PF", "1") == "1":
        E("s_lshl_b32 s12, s2, 12"); E("v_lshlrev_b32 v32, 4, v0"); E("v_add_u32 v32, s12, v32"); E("v_add_u32 v33, 0x100000, v32")
        k = 0
        for base, size in ((18, 512*3072), (20, 512*1024), (24, 512*2752), (26, 512*2752), (28, 1376*1024)):
            srd(48, base, 0, size)
            E(f"buffer_load_dwordx4 v[{36+4*k}:{39+4*k}], v32, s[48:51], 0 offen"); k += 1
            if size > MB: E(f"buffer_load_dwordx4 v[{36+4*k}:{39+4*k}], v33, s[48:51], 0 offen"); k += 1
        npf = int(os.environ.get("NPF", "8"))
        if npf:
            E("s_getpc_b64 s[60:61]"); L("k0_pc")
            E("v_lshlrev_b32 v34, 4, v0")
            for i in range(npf):
                E(f"global_load_dwordx4 v[{72+4*i}:{75+4*i}], v34, s[60:61]"); E("v_add_u32 v34, 0x1000, v34")
        E(f"s_waitcnt vmcnt({9+npf})")
    else:
        E("s_waitcnt vmcnt(0)")
    for r in range(2):
        for i in range(4):
            E(f"v_dot2_f32_bf16 v{24+2*r}, v{16+4*r+i}, s8, v{24+2*r}"); E(f"v_dot2_f32_bf16 v{25+2*r}, v{16+4*r+i}, v{16+4*r+i}, v{25+2*r}")
    E("s_nop 3")
    for off in (0x041F, 0x081F, 0x101F, 0x201F, 0x401F):
        for q in range(4): E(f"ds_swizzle_b32 v{28+q}, v{24+q} offset:{off:#x}")
        E("s_waitcnt lgkmcnt(0)")
        for q in range(4): E(f"v_add_f32 v{24+q}, v{24+q}, v{28+q}")
    for q in range(4): E(f"v_mov_b32 v{28+q}, v{24+q}")
    E("s_nop 1")
    for q in range(4): E(f"v_permlane32_swap_b32 v{24+q}, v{28+q}")
    E("s_nop 1")
    for q in range(4): E(f"v_add_f32 v{24+q}, v{24+q}, v{28+q}")
    for r in range(2):
        a, b = 24+2*r, 25+2*r
        E(f"v_mul_f32 v{a}, {f2u(1/512):#x}, v{a}"); E(f"v_mul_f32 v{b}, {f2u(1/512):#x}, v{b}")
        E(f"v_fma_f32 v{b}, -v{a}, v{a}, v{b}"); E(f"v_max_f32 v{b}, 0, v{b}"); E(f"v_add_f32 v{b}, {f2u(1e-5):#x}, v{b}")
        E(f"v_rsq_f32 v{b}, v{b}"); E("s_nop 0"); E(f"v_mul_f32 v{a}, v{a}, v{b}"); E(f"v_sub_f32 v{a}, 0, v{a}")
        for i in range(4):
            x = 16+4*r+i
            E(f"v_lshlrev_b32 v30, 16, v{x}"); E(f"v_and_b32 v31, 0xffff0000, v{x}")
            E(f"v_fma_f32 v30, v30, v{b}, v{a}"); E(f"v_fma_f32 v31, v31, v{b}, v{a}"); E(f"v_cvt_pk_bf16_f32 v{x}, v30, v31")
        E(f"buffer_store_dwordx4 v[{16+4*r}:{19+4*r}], v6, s[44:47], s11 offen offset:{16*r}")
    epilogue_end(n)
def k1():
    n = "k1_qkv_kernel"; kernels.append((n, 256, 98304)); prologue(n, 256)
    stamp(n); wgmap(4); E("s_mul_i32 s11, s11, 3")
    srd(40, 34, WS_XN, 2*MB); srd(44, 18, 0, 512*3072); srd(48, 34, 0, 6*MB)
    dma_setup(3072)
    for j in range(3):
        E(f"s_add_u32 s12, s11, {j}"); E("s_lshl_b32 s12, s12, 6")
        dma_region(44, 12, j*32768, 8, 3072)
        if j == 0: load_xt(40, 32, 32)
    w_addr(False, 10)
    E("v_lshlrev_b32 v11, 5, v9"); E("v_lshlrev_b32 v5, 4, v4"); E("v_add_u32 v11, v11, v5")
    E("v_lshlrev_b32 v12, 12, v3"); E("v_lshlrev_b32 v5, 4, v4"); E("v_add_u32 v12, v12, v5")
    E("s_lshl_b32 s13, s10, 1"); E("v_add_u32 v12, s13, v12")
    stamp(n)
    for j in range(3):
        E(f"s_waitcnt vmcnt({[16, 8+0, 2][j] if j != 1 else 10})"); E("s_barrier"); stamp(n)
        E(f"v_add_u32 v13, {j*32768}, v10")
        E(f"s_add_u32 s12, s11, {j}"); E("s_cmp_ge_u32 s12, 32"); E(f"s_cbranch_scc1 {n}_v{j}")
        for sw in (False, True):
            if sw: L(f"{n}_v{j}")
            items = [(13, 1024*s, VX+4*s, ACC0) for s in range(32)]
            for _ in mfma_items(items, False, lambda i: sw, lambda i: i == 0): pass
            E("s_nop 15"); pack(ACC0, VT)
            if not sw:
                E("s_lshr_b32 s14, s12, 4"); E("s_lshl_b32 s14, s14, 21"); E("s_and_b32 s15, s12, 15"); E("s_lshl_b32 s15, s15, 17")
                E("s_add_u32 s14, s14, s15"); E("s_add_u32 s15, s14, 65536")
                E(f"buffer_store_dwordx4 v[{VT}:{VT+3}], v11, s[48:51], s14 offen")
                E(f"buffer_store_dwordx4 v[{VT+4}:{VT+7}], v11, s[48:51], s15 offen")
                E(f"s_branch {n}_e{j}")
            else:
                E("s_sub_u32 s14, s12, 32"); E("s_lshl_b32 s14, s14, 17"); E(f"s_add_u32 s14, s14, {WS_V}")
                E(f"buffer_store_dwordx4 v[{VT}:{VT+3}], v12, s[48:51], s14 offen")
                E(f"buffer_store_dwordx4 v[{VT+4}:{VT+7}], v12, s[48:51], s14 offen offset:32")
        L(f"{n}_e{j}"); E("s_nop 1")
    epilogue_end(n)

def k2():
    n = "k2_attn_kernel"; kernels.append((n, 512, 0)); prologue(n, 512)
    Q, KV, S, O = 16, 20, 96, 240
    E("s_lshr_b32 s9, s2, 3"); E("s_lshl_b32 s9, s9, 5")
    E("s_and_b32 s11, s2, 7"); E("s_lshl_b32 s11, s11, 2"); E("s_add_u32 s11, s11, s3")
    srd(40, 34, WS_Q, 2*MB); srd(44, 34, WS_K - 8192, 2*MB + 8192); srd(48, 34, WS_V - 512, 2*MB + 512); srd(52, 34, WS_O, 2*MB)
    E("s_lshl_b32 s12, s11, 11"); E("s_add_u32 s12, s12, s9")
    E("v_add_u32 v5, s12, v3"); E("v_lshlrev_b32 v5, 5, v5"); E("v_lshlrev_b32 v6, 4, v4"); E("v_add_u32 v8, v5, v6")
    E(f"buffer_load_dwordx4 v[{Q}:{Q+3}], v8, s[40:43], 0 offen")
    for kb in range(9):
        E(f"s_mov_b32 s13, {kb*1024}")
        E(f"buffer_load_dwordx4 v[{KV+4*kb}:{KV+4*kb+3}], v8, s[44:47], s13 offen")
    E("v_and_b32 v5, 15, v0"); E("s_lshl_b32 s13, s11, 4"); E("v_add_u32 v5, s13, v5"); E("v_lshlrev_b32 v5, 12, v5")
    E("s_lshl_b32 s13, s9, 1"); E("v_add_u32 v5, s13, v5"); E("v_add_u32 v9, v5, v6")
    E("s_add_u32 s13, s9, s11"); E("s_lshl_b32 s13, s13, 10"); E("v_lshlrev_b32 v5, 4, v1"); E("v_add_u32 v10, s13, v5")
    E("v_lshlrev_b32 v5, 2, v4"); E("v_sub_u32 v11, v3, v5")
    for i in range(16):
        c = 8*(i >> 2) + (i & 3)
        E(f"v_cmp_le_i32 s[{56+2*i}:{57+2*i}], {c}, v11")
    E(f"v_mov_b32 v12, {f2u(-1e30):#x}")
    for kb in range(9):
        E(f"s_waitcnt vmcnt({8-kb})")
        E(f"v_mfma_f32_32x32x16_bf16 v[{S+16*kb}:{S+16*kb+15}], v[{KV+4*kb}:{KV+4*kb+3}], v[{Q}:{Q+3}], 0")
    E("s_nop 3")
    for r in range(72): E(f"v_mov_b32 v{KV+r}, 0x3f803f80")
    E("s_mov_b32 s14, 0x0000ffff"); E("s_mov_b32 s15, 0x0000ffff"); E("s_mov_b64 exec, s[14:15]")
    for t in range(18):
        E(f"buffer_load_dwordx4 v[{KV+4*t}:{KV+4*t+3}], v9, s[48:51], 0 offen offset:{32*t}")
    E("s_mov_b64 exec, -1")
    E("s_nop 7")
    for i in range(16):
        E(f"v_cndmask_b32 v{S+128+i}, v12, v{S+128+i}, s[{56+2*i}:{57+2*i}]")
        E(f"v_cndmask_b32 v{S+i}, v{S+i}, v12, s[{56+2*i}:{57+2*i}]")
    for kb in range(8):
        E(f"s_cmp_ge_u32 s9, {256-32*kb}"); E(f"s_cbranch_scc1 {n}_ok{kb}")
        for i in range(16): E(f"v_mov_b32 v{S+16*kb+i}, v12")
        L(f"{n}_ok{kb}")
    for c in range(4): E(f"v_max_f32 v{4+c}, v{S+c}, v{S+4+c}")
    for r in range(8, 144, 8):
        for c in range(4): E(f"v_max3_f32 v{4+c}, v{4+c}, v{S+r+c}, v{S+r+4+c}")
    E("v_max_f32 v4, v4, v5"); E("v_max_f32 v6, v6, v7"); E("v_max_f32 v4, v4, v6"); E("v_mov_b32 v5, v4")
    E("s_nop 1"); E("v_permlane32_swap_b32 v4, v5"); E("s_nop 1"); E("v_max_f32 v4, v4, v5")
    cc = 0.25 * LOG2E
    E(f"s_mov_b32 s13, {f2u(cc):#x}"); E("v_mul_f32 v4, s13, v4")
    for r in range(0, 144, 4):
        for c in range(4): E(f"v_fma_f32 v{S+r+c}, v{S+r+c}, s13, -v4")
        for c in range(4): E(f"v_exp_f32 v{S+r+c}, v{S+r+c}")
        if r >= 4:
            p = r - 4; d = S + 16*(p//16) + (p % 16)//2
            E(f"v_cvt_pk_bf16_f32 v{d}, v{S+p}, v{S+p+1}"); E(f"v_cvt_pk_bf16_f32 v{d+1}, v{S+p+2}, v{S+p+3}")
    p = 140; d = S + 16*(p//16) + (p % 16)//2
    E("s_nop 0"); E(f"v_cvt_pk_bf16_f32 v{d}, v{S+p}, v{S+p+1}"); E(f"v_cvt_pk_bf16_f32 v{d+1}, v{S+p+2}, v{S+p+3}")
    E("s_nop 1")
    for t in range(18):
        E(f"s_waitcnt vmcnt({17-t})")
        b = S + 16*(t//2) + 4*(t % 2)
        E(f"v_mfma_f32_32x32x16_bf16 v[{O}:{O+15}], v[{KV+4*t}:{KV+4*t+3}], v[{b}:{b+3}], {'0' if t == 0 else f'v[{O}:{O+15}]'}")
    E("s_nop 15"); E(f"v_rcp_f32 v4, v{O+8}"); E("s_nop 0")
    for i in range(8): E(f"v_mul_f32 v{O+i}, v{O+i}, v4")
    for i in range(4): E(f"v_cvt_pk_bf16_f32 v{Q+i}, v{O+2*i}, v{O+2*i+1}")
    E(f"buffer_store_dwordx4 v[{Q}:{Q+3}], v10, s[52:55], 0 offen")
    epilogue_end(n)

def k3():
    n = "k3_wo_kernel"; kernels.append((n, 256, 32768)); prologue(n, 256)
    wgmap(); E("s_lshl_b32 s12, s11, 6")
    srd(40, 34, WS_O, 2*MB); srd(44, 20, 0, 512*1024); srd(48, 34, WS_H, 2*MB); srd(52, 16, 0, 2*MB)
    dma_setup(1024); dma_region(44, 12, 0, 8, 1024)
    load_xt(40, 32, 32)
    w_addr(True, 10)
    E("v_lshlrev_b32 v12, 10, v9"); E("v_lshlrev_b32 v5, 3, v4"); E("v_add_u32 v12, v12, v5"); E("s_lshl_b32 s13, s11, 11")
    for q in range(4): E(f"buffer_load_dwordx2 v[{VT+8+2*q}:{VT+9+2*q}], v12, s[52:55], s12 offen offset:{16*q}")
    E("s_waitcnt vmcnt(0)"); E("s_barrier")
    items = [(10, 1024*s, VX+4*s, ACC0) for s in range(32)]
    for _ in mfma_items(items, True, lambda i: False, lambda i: i == 0): pass
    E("s_nop 15")
    for i in range(8):
        E(f"v_lshlrev_b32 v5, 16, v{VT+8+i}"); E(f"v_and_b32 v6, 0xffff0000, v{VT+8+i}")
        E(f"v_add_f32 v{ACC0+2*i}, v{ACC0+2*i}, v5"); E(f"v_add_f32 v{ACC0+2*i+1}, v{ACC0+2*i+1}, v6")
    pack(ACC0, VT)
    E(f"buffer_store_dwordx4 v[{VT}:{VT+3}], v8, s[48:51], s13 offen")
    E(f"buffer_store_dwordx4 v[{VT+4}:{VT+7}], v8, s[48:51], s13 offen offset:1024")
    epilogue_end(n)

def k4():
    n = "k4_glu_kernel"; kernels.append((n, 256, 163840)); prologue(n, 256)
    stamp(n); wgmap(4); E("s_mul_i32 s11, s11, 86"); E("s_and_b32 s11, s11, 0xfffffff0"); E("s_lshl_b32 s11, s11, 1")
    srd(40, 34, WS_H, 2*MB); srd(44, 24, 0, 512*2752); srd(48, 26, 0, 512*2752); srd(52, 34, WS_HH, 2048*2752)
    load_xt(40, 32, 32)
    dma_setup(2752)
    def reg(slot):
        E(f"s_add_u32 s12, s11, {64*(slot//2)}")
        dma_region(44 if slot % 2 == 0 else 48, 12, (slot % 5)*32768, 8, 2752)
    def regl(slot): return dma_list(44 if slot % 2 == 0 else 48, 11, 64*(slot//2), (slot % 5)*32768, 8, 2752)
    for g in regl(0) + regl(1):
        for x in g: E(x)
    w_addr(True, 10)
    E("s_lshr_b32 s4, s10, 5"); E(f"s_mul_i32 s4, s4, {86*1024}"); E("v_lshlrev_b32 v11, 4, v1"); E("v_add_u32 v11, s4, v11")
    stamp(n); ln_regs(16, regl(2) + regl(3) + regl(4)); stamp(n)
    E(f"s_mov_b32 s13, {f2u(-LOG2E):#x}")
    for j in range(3):
        sg, su = ((2*j) % 5)*32768, ((2*j+1) % 5)*32768
        E(f"v_add_u32 v13, {sg}, v10"); E(f"v_add_u32 v14, {su}, v10")
        if j == 0: E("s_waitcnt vmcnt(24)"); E("s_barrier"); stamp(n)
        items = []
        for s in range(32): items += [(13, 1024*s, VX+4*s, ACC0), (14, 1024*s, VX+4*s, ACC1)]
        for _ in mfma_items(items, True, lambda i: False, lambda i: i < 2): pass
        stamp(n)
        if j == 0:
            E("s_waitcnt vmcnt(8)"); E("s_barrier")
            for g in regl(5):
                for x in g: E(x)
        if j == 1: E("s_waitcnt vmcnt(2)"); E("s_barrier")
        E("s_nop 15")
        for i in range(16): E(f"v_mul_f32 v{ACC0+i}, s13, v{ACC0+i}")
        for i in range(16): E(f"v_exp_f32 v{ACC0+i}, v{ACC0+i}")
        for i in range(16): E(f"v_add_f32 v{ACC0+i}, 1.0, v{ACC0+i}")
        for i in range(16): E(f"v_rcp_f32 v{ACC0+i}, v{ACC0+i}")
        for i in range(16): E(f"v_mul_f32 v{ACC0+i}, v{ACC0+i}, v{ACC1+i}")
        pack(ACC0, VT)
        E(f"s_add_u32 s12, s11, {64*j}"); E("s_lshl_b32 s12, s12, 5")
        E(f"buffer_store_dwordx4 v[{VT}:{VT+3}], v11, s[52:55], s12 offen")
        E(f"buffer_store_dwordx4 v[{VT+4}:{VT+7}], v11, s[52:55], s12 offen offset:1024")
        E("s_nop 1")
    epilogue_end(n)

def k5():
    n = "k5_down_kernel"; kernels.append((n, 256, 22*4096)); prologue(n, 256)
    NX = 44; X = 56; global VW
    oldVW = VW; VW = 16; A = 232; T = 48
    wgmap(); E("s_lshl_b32 s12, s11, 6")
    srd(40, 34, WS_HH, 2048*2752); srd(44, 28, 0, 1376*1024); srd(48, 34, WS_H, 2*MB); srd(52, 30, 0, 2*MB)
    dma_setup(1024); dma_region(44, 12, 0, 22, 1024)
    load_xt(40, 86, NX, X)
    w_addr(True, 10); E("v_add_u32 v13, 0x10000, v10")
    E("v_lshlrev_b32 v12, 10, v9"); E("v_lshlrev_b32 v5, 3, v4"); E("v_add_u32 v12, v12, v5")
    E("s_lshl_b32 s13, s10, 10"); E("s_lshl_b32 s14, s11, 11"); E("s_add_u32 s13, s13, s14"); E("v_lshlrev_b32 v11, 4, v1")
    E(f"buffer_load_dwordx4 v[248:251], v11, s[48:51], s13 offen"); E(f"buffer_load_dwordx4 v[252:255], v11, s[48:51], s13 offen offset:1024")
    E("s_waitcnt vmcnt(0)"); E("s_barrier")
    items = [((10, 1024*s) if s < 64 else (13, 1024*(s-64))) + (X+4*(s % NX), A) for s in range(86)]
    for i in mfma_items(items, True, lambda i: False, lambda i: i == 0):
        if i + NX < 86:
            s = i + NX; E(f"s_mov_b32 s4, {1024*s}"); E(f"buffer_load_dwordx4 v[{X+4*i}:{X+4*i+3}], v8, s[40:43], s4 offen")
        if i + 1 >= NX and i + 1 < 86: E(f"s_waitcnt vmcnt({85-(i+1)})")
    VW = oldVW
    E("s_nop 15")
    for i in range(8):
        E(f"v_lshlrev_b32 v5, 16, v{248+i}"); E(f"v_and_b32 v6, 0xffff0000, v{248+i}")
        E(f"v_add_f32 v{A+2*i}, v{A+2*i}, v5"); E(f"v_add_f32 v{A+2*i+1}, v{A+2*i+1}, v6")
    pack(A, T)
    for q in range(4): E(f"buffer_store_dwordx2 v[{T+2*q}:{T+2*q+1}], v12, s[52:55], s12 offen offset:{16*q}")
    epilogue_end(n)

k0(); k1(); k2(); k3(); k4(); k5()
hdr = open("cdna_kernels/" + NAME + ".s.ref").read().split("\n")
head = [l for l in hdr if l.startswith(";") and "@launch" not in l and "Override" not in l and "grid=ceil" not in l]
import os
dup = int(os.environ.get("DUP", "-1"))
ll = []
for idx, (k, g, l) in enumerate(kernels):
    ll += [f"; @launch kernel={k} grid=({g},1,1) block=(256,1,1) lds={l}"] * (5 if idx == dup else 1)
if dup == 99: ll = ll + ll
if STAMPK:
    ll = ll + [x for x in ll if STAMPK in x]
txt = head + ll
txt += ['.amdgcn_target "amdgcn-amd-amdhsa--gfx950"', ".text"] + out + ['.section .rodata,"a"']
for k, g, l in kernels:
    txt += [".p2align 6", f".amdhsa_kernel {k}", "  .amdhsa_next_free_vgpr 256", "  .amdhsa_next_free_sgpr 102", "  .amdhsa_accum_offset 256",
            "  .amdhsa_group_segment_fixed_size 0", "  .amdhsa_kernarg_size 80", "  .amdhsa_user_sgpr_count 2",
            "  .amdhsa_user_sgpr_kernarg_segment_ptr 1", "  .amdhsa_system_sgpr_workgroup_id_x 1", ".end_amdhsa_kernel"]
open(os.environ.get("OUT", "cdna_kernels/" + NAME + ".s"), "w").write("\n".join(txt) + "\n")
```

```python
import sys, os
NAME = "sequential_preLN__sliding_block__glu_gated_glu__prompt"
out = []
def E(s): out.append("    " + s)
def L(s): out.append(s + ":")
MB = 1 << 20
WS_Q, WS_K, WS_V, WS_O, WS_H, WS_HH = 0, 2*MB, 4*MB, 6*MB, 8*MB, 10*MB
WS_XN = 16*MB
LOG2E = 1.4426950408889634
import struct
def f2u(f): return struct.unpack("<I", struct.pack("<f", f))[0]

def prologue(name, nwg):
    out.append(".p2align 8"); out.append(f".globl {name}"); out.append(f".type {name},@function"); L(name)
    E(f"s_cmp_ge_u32 s2, {nwg}"); E(f"s_cbranch_scc1 {name}_done")
    E("s_load_dwordx16 s[16:31], s[0:1], 0"); E("s_load_dwordx4 s[32:35], s[0:1], 64")
    E("v_and_b32 v1, 63, v0")
    E("v_lshrrev_b32 v2, 6, v0")
    E("v_and_b32 v3, 31, v0")
    E("v_readfirstlane_b32 s3, v2")
    E("v_bfe_u32 v4, v0, 5, 1")
    E("s_waitcnt lgkmcnt(0)")
STAMPK = os.environ.get("STAMP", "")
nst = [0]
def stamp(name):
    if name != STAMPK: return
    E("s_memtime s[88:89]"); E("s_waitcnt lgkmcnt(0)"); E(f"s_mov_b32 s{90+nst[0]}, s88"); nst[0] += 1
def epilogue_end(name):
    if name == STAMPK:
        stamp(name)
        srd(40, 32, 0, 256)
        E("s_cmp_lg_u32 s2, 8"); E(f"s_cbranch_scc1 {name}_done"); E("s_cmp_lg_u32 s3, 0"); E(f"s_cbranch_scc1 {name}_done")
        srd(40, 32, 0, 256)
        for i in range(nst[0]):
            E(f"s_sub_u32 s4, s{90+i}, s90"); E("v_mov_b32 v5, s4"); E(f"v_mov_b32 v6, {4*i}"); E("buffer_store_dword v5, v6, s[40:43], 0 offen")
    L(f"{name}_done"); E("s_endpgm")
def srd(d, base, off, size):
    if off >= 0:
        E(f"s_add_u32 s{d}, s{base}, {off}"); E(f"s_addc_u32 s{d+1}, s{base+1}, 0")
    else:
        E(f"s_sub_u32 s{d}, s{base}, {-off}"); E(f"s_subb_u32 s{d+1}, s{base+1}, 0")
    E(f"s_mov_b32 s{d+2}, {size}"); E(f"s_mov_b32 s{d+3}, 0x00020000")

VX, VW, ACC0, ACC1, VT = 16, 144, 176, 192, 208

def w_addr(perm, vdst):
    E("v_bfe_u32 v5, v0, 2, 2")
    E(f"v_lshlrev_b32 v6, {2 if perm else 3}, v4")
    E("v_add_u32 v5, v5, v6")
    E("v_lshlrev_b32 v5, 6, v5")
    E("v_bfe_u32 v6, v0, 4, 1")
    E("v_lshlrev_b32 v6, 5, v6")
    E("v_add_u32 v5, v5, v6")
    E("v_and_b32 v6, 3, v0")
    E("v_lshlrev_b32 v6, 3, v6")
    E(f"v_add_u32 v{vdst}, v5, v6")

def dma_setup(ldw):
    E("v_lshrrev_b32 v5, 2, v0"); E(f"s_mov_b32 s4, {ldw}"); E("v_mul_lo_u32 v5, v5, s4")
    E("v_and_b32 v6, 3, v0"); E("v_lshlrev_b32 v6, 4, v6"); E("v_add_u32 v7, v5, v6")
    E("s_lshl_b32 s5, s3, 10")
def dma_region(srdreg, scol, ldsbase, nj, ldw):
    E(f"s_mov_b32 s6, s{scol}"); E(f"s_add_u32 s7, s5, {ldsbase}")
    for j in range(nj):
        E("s_mov_b32 m0, s7");
        if j + 1 < nj: E("s_add_u32 s7, s7, 4096")
        else: E("s_nop 0")
        E(f"buffer_load_dwordx4 v7, s[{srdreg}:{srdreg+3}], s6 offen lds")
        if j + 1 < nj: E(f"s_add_u32 s6, s6, {64*ldw}")

def dma_list(srdreg, scolreg, coladd, ldsbase, nj, ldw):
    r = []
    for j in range(nj):
        r.append([f"s_add_u32 s6, s{scolreg}, {coladd + j*64*ldw}", f"s_add_u32 m0, s5, {ldsbase + j*4096}", "s_nop 0",
                  f"buffer_load_dwordx4 v7, s[{srdreg}:{srdreg+3}], s6 offen lds"])
    return r
def mfma_items(items, perm, swap_of, first_of):
    d2 = 512 if perm else 256
    n = len(items); D = 6
    def rd(i):
        va, off, _, _ = items[i]; w = VW + 4 * (i % 8)
        E(f"ds_read_b64_tr_b16 v[{w}:{w+1}], v{va} offset:{off}")
        E(f"ds_read_b64_tr_b16 v[{w+2}:{w+3}], v{va} offset:{off+d2}")
    for i in range(min(D, n)): rd(i)
    for i in range(n):
        va, off, x, acc = items[i][:4]; w = VW + 4 * (i % 8)
        E(f"s_waitcnt lgkmcnt({2*(min(i+D-1, n-1)-i)})")
        c = "0" if first_of(i) else f"v[{acc}:{acc+15}]"
        if swap_of(i): E(f"v_mfma_f32_32x32x16_bf16 v[{acc}:{acc+15}], v[{x}:{x+3}], v[{w}:{w+3}], {c}")
        else:          E(f"v_mfma_f32_32x32x16_bf16 v[{acc}:{acc+15}], v[{w}:{w+3}], v[{x}:{x+3}], {c}")
        if i + D < n: rd(i + D)
        yield i

def ln_regs(ndma, inter=[]):
    E("s_mov_b32 s8, 0x3f803f80")
    for q in range(4): E(f"v_mov_b32 v{VT+q}, 0"); E(f"v_mov_b32 v{VT+4+q}, 0")
    inter = list(inter); nd = 0
    for g in range(4):
        E(f"s_waitcnt vmcnt({min(63, 24-8*g+nd)})")
        for r in range(32*g, 32*g+32):
            if inter and r % 8 == 4:
                for x in inter.pop(0): E(x)
                nd += 1
            E(f"v_dot2_f32_bf16 v{VT+(r&3)}, v{VX+r}, s8, v{VT+(r&3)}")
            E(f"v_dot2_f32_bf16 v{VT+4+(r&3)}, v{VX+r}, v{VX+r}, v{VT+4+(r&3)}")
    E("s_nop 3")
    E(f"v_add_f32 v{VT}, v{VT}, v{VT+1}"); E(f"v_add_f32 v{VT+2}, v{VT+2}, v{VT+3}")
    E(f"v_add_f32 v{VT+4}, v{VT+4}, v{VT+5}"); E(f"v_add_f32 v{VT+6}, v{VT+6}, v{VT+7}")
    E(f"v_add_f32 v{VT}, v{VT}, v{VT+2}"); E(f"v_add_f32 v{VT+4}, v{VT+4}, v{VT+6}")
    E(f"v_mov_b32 v{VT+1}, v{VT}"); E(f"v_mov_b32 v{VT+5}, v{VT+4}")
    E("s_nop 1")
    E(f"v_permlane32_swap_b32 v{VT}, v{VT+1}"); E(f"v_permlane32_swap_b32 v{VT+4}, v{VT+5}")
    E("s_nop 1")
    E(f"v_add_f32 v{VT}, v{VT}, v{VT+1}"); E(f"v_add_f32 v{VT+4}, v{VT+4}, v{VT+5}")
    E(f"v_mul_f32 v{VT}, {f2u(1/512):#x}, v{VT}")
    E(f"v_mul_f32 v{VT+4}, {f2u(1/512):#x}, v{VT+4}")
    E(f"v_fma_f32 v{VT+4}, -v{VT}, v{VT}, v{VT+4}")
    E(f"v_max_f32 v{VT+4}, 0, v{VT+4}")
    E(f"v_add_f32 v{VT+4}, {f2u(1e-5):#x}, v{VT+4}")
    E(f"v_rsq_f32 v{VT+4}, v{VT+4}")
    E("s_nop 0")
    E(f"v_mul_f32 v{VT}, v{VT}, v{VT+4}")
    E(f"v_sub_f32 v{VT}, 0, v{VT}")
    for r in range(128):
        if inter and r % 5 == 0:
            for x in inter.pop(0): E(x)
        a, b = VT + 8 + 2 * (r & 3), VT + 9 + 2 * (r & 3)
        E(f"v_lshlrev_b32 v{a}, 16, v{VX+r}"); E(f"v_and_b32 v{b}, 0xffff0000, v{VX+r}")
        E(f"v_fma_f32 v{a}, v{a}, v{VT+4}, v{VT}"); E(f"v_fma_f32 v{b}, v{b}, v{VT+4}, v{VT}")
        E(f"v_cvt_pk_bf16_f32 v{VX+r}, v{a}, v{b}")

def load_x(srdreg, ld, nsteps, base=VX):
    E("s_lshl_b32 s10, s3, 5"); E("s_add_u32 s10, s10, s9")
    E("v_add_u32 v9, s10, v3"); E(f"s_mov_b32 s4, {ld}"); E("v_mul_lo_u32 v8, v9, s4")
    E("v_lshlrev_b32 v5, 4, v4"); E("v_add_u32 v8, v8, v5")
    for s in range(nsteps):
        E(f"buffer_load_dwordx4 v[{base+4*s}:{base+4*s+3}], v8, s[{srdreg}:{srdreg+3}], 0 offen offset:{32*s}")
def wgmap(a=2):
    if a == 2:
        E("s_and_b32 s9, s2, 7"); E("s_lshl_b32 s9, s9, 1"); E("s_lshr_b32 s11, s2, 7"); E("s_add_u32 s9, s9, s11"); E("s_lshl_b32 s9, s9, 7")
        E("s_lshr_b32 s11, s2, 3"); E("s_and_b32 s11, s11, 15")
    else:
        E("s_bfe_u32 s9, s2, 0x20001"); E("s_lshl_b32 s9, s9, 2"); E("s_lshr_b32 s11, s2, 6"); E("s_add_u32 s9, s9, s11"); E("s_lshl_b32 s9, s9, 7")
        E("s_bfe_u32 s11, s2, 0x30003"); E("s_and_b32 s4, s2, 1"); E("s_lshl_b32 s4, s4, 3"); E("s_add_u32 s11, s11, s4")
def load_xt(srdreg, nsteps_total, nsteps, base=VX):
    E("s_lshl_b32 s10, s3, 5"); E("s_add_u32 s10, s10, s9"); E("v_add_u32 v9, s10, v3")
    E("s_lshr_b32 s4, s10, 5"); E(f"s_mul_i32 s4, s4, {nsteps_total*1024}")
    E("v_lshlrev_b32 v8, 4, v1"); E("v_add_u32 v8, s4, v8")
    for s in range(nsteps):
        if s % 4 == 0: E(f"s_mov_b32 s4, {1024*s}")
        E(f"buffer_load_dwordx4 v[{base+4*s}:{base+4*s+3}], v8, s[{srdreg}:{srdreg+3}], s4 offen offset:{1024*(s%4)}")
def pack(acc, dst):
    for i in range(8): E(f"v_cvt_pk_bf16_f32 v{dst+i}, v{acc+2*i}, v{acc+2*i+1}")

kernels = []
def k0():
    n = "k0_ln_kernel"; kernels.append((n, 256, 0)); prologue(n, 256)
    E("s_and_b32 s9, s2, 7"); E("s_lshl_b32 s9, s9, 8"); E("s_lshr_b32 s10, s2, 3"); E("s_lshl_b32 s10, s10, 3"); E("s_add_u32 s9, s9, s10")
    E("s_lshl_b32 s10, s3, 1"); E("s_add_u32 s9, s9, s10")
    srd(40, 16, 0, 2*MB); srd(44, 34, WS_XN, 2*MB)
    E("s_lshl_b32 s10, s9, 10"); E("v_lshlrev_b32 v5, 4, v1")
    E("buffer_load_dwordx4 v[16:19], v5, s[40:43], s10 offen"); E("buffer_load_dwordx4 v[20:23], v5, s[40:43], s10 offen offset:1024")
    E("s_lshr_b32 s11, s9, 5"); E("s_lshl_b32 s11, s11, 15"); E("s_and_b32 s12, s9, 31"); E("s_lshl_b32 s12, s12, 4"); E("s_add_u32 s11, s11, s12")
    E("v_lshrrev_b32 v6, 1, v1"); E("v_lshlrev_b32 v6, 10, v6"); E("v_and_b32 v7, 1, v1"); E("v_lshlrev_b32 v7, 9, v7"); E("v_add_u32 v6, v6, v7")
    E("s_mov_b32 s8, 0x3f803f80")
    for q in range(4): E(f"v_mov_b32 v{24+q}, 0")
    if os.environ.get("PF", "1") == "1":
        E("s_lshl_b32 s12, s2, 12"); E("v_lshlrev_b32 v32, 4, v0"); E("v_add_u32 v32, s12, v32"); E("v_add_u32 v33, 0x100000, v32")
        k = 0
        for base, size in ((18, 512*3072), (20, 512*1024), (24, 512*2752), (26, 512*2752), (28, 1376*1024)):
            srd(48, base, 0, size)
            E(f"buffer_load_dwordx4 v[{36+4*k}:{39+4*k}], v32, s[48:51], 0 offen"); k += 1
            if size > MB: E(f"buffer_load_dwordx4 v[{36+4*k}:{39+4*k}], v33, s[48:51], 0 offen"); k += 1
        npf = int(os.environ.get("NPF", "0"))
        if npf:
            E("s_getpc_b64 s[60:61]"); L("k0_pc")
            E("v_lshlrev_b32 v34, 4, v0")
            for i in range(npf):
                E(f"global_load_dwordx4 v[{72+4*i}:{75+4*i}], v34, s[60:61]"); E("v_add_u32 v34, 0x1000, v34")
        E(f"s_waitcnt vmcnt({9+npf})")
    else:
        E("s_waitcnt vmcnt(0)")
    for r in range(2):
        for i in range(4):
            E(f"v_dot2_f32_bf16 v{24+2*r}, v{16+4*r+i}, s8, v{24+2*r}"); E(f"v_dot2_f32_bf16 v{25+2*r}, v{16+4*r+i}, v{16+4*r+i}, v{25+2*r}")
    E("s_nop 3")
    for off in (0x041F, 0x081F, 0x101F, 0x201F, 0x401F):
        for q in range(4): E(f"ds_swizzle_b32 v{28+q}, v{24+q} offset:{off:#x}")
        E("s_waitcnt lgkmcnt(0)")
        for q in range(4): E(f"v_add_f32 v{24+q}, v{24+q}, v{28+q}")
    for q in range(4): E(f"v_mov_b32 v{28+q}, v{24+q}")
    E("s_nop 1")
    for q in range(4): E(f"v_permlane32_swap_b32 v{24+q}, v{28+q}")
    E("s_nop 1")
    for q in range(4): E(f"v_add_f32 v{24+q}, v{24+q}, v{28+q}")
    for r in range(2):
        a, b = 24+2*r, 25+2*r
        E(f"v_mul_f32 v{a}, {f2u(1/512):#x}, v{a}"); E(f"v_mul_f32 v{b}, {f2u(1/512):#x}, v{b}")
        E(f"v_fma_f32 v{b}, -v{a}, v{a}, v{b}"); E(f"v_max_f32 v{b}, 0, v{b}"); E(f"v_add_f32 v{b}, {f2u(1e-5):#x}, v{b}")
        E(f"v_rsq_f32 v{b}, v{b}"); E("s_nop 0"); E(f"v_mul_f32 v{a}, v{a}, v{b}"); E(f"v_sub_f32 v{a}, 0, v{a}")
        for i in range(4):
            x = 16+4*r+i
            E(f"v_lshlrev_b32 v30, 16, v{x}"); E(f"v_and_b32 v31, 0xffff0000, v{x}")
            E(f"v_fma_f32 v30, v30, v{b}, v{a}"); E(f"v_fma_f32 v31, v31, v{b}, v{a}"); E(f"v_cvt_pk_bf16_f32 v{x}, v30, v31")
        E(f"buffer_store_dwordx4 v[{16+4*r}:{19+4*r}], v6, s[44:47], s11 offen offset:{16*r}")
    epilogue_end(n)
def k1():
    n = "k1_qkv_kernel"; kernels.append((n, 256, 98304)); prologue(n, 256)
    stamp(n); wgmap(4); E("s_mul_i32 s11, s11, 3")
    srd(40, 34, WS_XN, 2*MB); srd(44, 18, 0, 512*3072); srd(48, 34, 0, 6*MB)
    dma_setup(3072)
    E("s_lshl_b32 s12, s11, 6")
    dma_region(44, 12, 0, 8, 3072)
    load_xt(40, 32, 32)
    E("s_lshl_b32 s60, s11, 6")
    k1inter = dma_list(44, 60, 64, 32768, 8, 3072) + dma_list(44, 60, 128, 65536, 8, 3072)
    w_addr(False, 10)
    E("v_lshlrev_b32 v11, 5, v9"); E("v_lshlrev_b32 v5, 4, v4"); E("v_add_u32 v11, v11, v5")
    E("v_lshlrev_b32 v12, 12, v3"); E("v_lshlrev_b32 v5, 4, v4"); E("v_add_u32 v12, v12, v5")
    E("s_lshl_b32 s13, s10, 1"); E("v_add_u32 v12, s13, v12")
    stamp(n)
    for j in range(3):
        E(f"s_waitcnt vmcnt({[0, 10, 2][j]})"); E("s_barrier"); stamp(n)
        E(f"v_add_u32 v13, {j*32768}, v10")
        E(f"s_add_u32 s12, s11, {j}"); E("s_cmp_ge_u32 s12, 32"); E(f"s_cbranch_scc1 {n}_v{j}")
        for sw in (False, True):
            if sw: L(f"{n}_v{j}")
            items = [(13, 1024*s, VX+4*s, ACC0) for s in range(32)]
            for i in mfma_items(items, False, lambda i: sw, lambda i: i == 0):
                if j == 0 and i % 2 == 0:
                    for x in k1inter[i//2]: E(x)
            E("s_nop 15"); pack(ACC0, VT)
            if not sw:
                E("s_lshr_b32 s14, s12, 4"); E("s_lshl_b32 s14, s14, 21"); E("s_and_b32 s15, s12, 15"); E("s_lshl_b32 s15, s15, 17")
                E("s_add_u32 s14, s14, s15"); E("s_add_u32 s15, s14, 65536")
                E(f"buffer_store_dwordx4 v[{VT}:{VT+3}], v11, s[48:51], s14 offen")
                E(f"buffer_store_dwordx4 v[{VT+4}:{VT+7}], v11, s[48:51], s15 offen")
                E(f"s_branch {n}_e{j}")
            else:
                E("s_sub_u32 s14, s12, 32"); E("s_lshl_b32 s14, s14, 17"); E(f"s_add_u32 s14, s14, {WS_V}")
                E(f"buffer_store_dwordx4 v[{VT}:{VT+3}], v12, s[48:51], s14 offen")
                E(f"buffer_store_dwordx4 v[{VT+4}:{VT+7}], v12, s[48:51], s14 offen offset:32")
        L(f"{n}_e{j}"); E("s_nop 1")
    epilogue_end(n)

def k2():
    n = "k2_attn_kernel"; kernels.append((n, 512, 0)); prologue(n, 512)
    Q, KV, S, O = 16, 20, 96, 240
    E("s_lshr_b32 s9, s2, 3"); E("s_lshl_b32 s9, s9, 5")
    E("s_and_b32 s11, s2, 7"); E("s_lshl_b32 s11, s11, 2"); E("s_add_u32 s11, s11, s3")
    srd(40, 34, WS_Q, 2*MB); srd(44, 34, WS_K - 8192, 2*MB + 8192); srd(48, 34, WS_V - 512, 2*MB + 512); srd(52, 34, WS_O, 2*MB)
    E("s_lshl_b32 s12, s11, 11"); E("s_add_u32 s12, s12, s9")
    E("v_add_u32 v5, s12, v3"); E("v_lshlrev_b32 v5, 5, v5"); E("v_lshlrev_b32 v6, 4, v4"); E("v_add_u32 v8, v5, v6")
    E(f"buffer_load_dwordx4 v[{Q}:{Q+3}], v8, s[40:43], 0 offen")
    for kb in range(9):
        E(f"s_mov_b32 s13, {kb*1024}")
        E(f"buffer_load_dwordx4 v[{KV+4*kb}:{KV+4*kb+3}], v8, s[44:47], s13 offen")
    E("v_and_b32 v5, 15, v0"); E("s_lshl_b32 s13, s11, 4"); E("v_add_u32 v5, s13, v5"); E("v_lshlrev_b32 v5, 12, v5")
    E("s_lshl_b32 s13, s9, 1"); E("v_add_u32 v5, s13, v5"); E("v_add_u32 v9, v5, v6")
    E("s_add_u32 s13, s9, s11"); E("s_lshl_b32 s13, s13, 10"); E("v_lshlrev_b32 v5, 4, v1"); E("v_add_u32 v10, s13, v5")
    E("v_lshlrev_b32 v5, 2, v4"); E("v_sub_u32 v11, v3, v5")
    for i in range(16):
        c = 8*(i >> 2) + (i & 3)
        E(f"v_cmp_le_i32 s[{56+2*i}:{57+2*i}], {c}, v11")
    E(f"v_mov_b32 v12, {f2u(-1e30):#x}")
    for kb in range(9):
        E(f"s_waitcnt vmcnt({8-kb})")
        E(f"v_mfma_f32_32x32x16_bf16 v[{S+16*kb}:{S+16*kb+15}], v[{KV+4*kb}:{KV+4*kb+3}], v[{Q}:{Q+3}], 0")
    E("s_nop 3")
    for r in range(72): E(f"v_mov_b32 v{KV+r}, 0x3f803f80")
    E("s_mov_b32 s14, 0x0000ffff"); E("s_mov_b32 s15, 0x0000ffff"); E("s_mov_b64 exec, s[14:15]")
    for t in range(18):
        E(f"buffer_load_dwordx4 v[{KV+4*t}:{KV+4*t+3}], v9, s[48:51], 0 offen offset:{32*t}")
    E("s_mov_b64 exec, -1")
    E("s_nop 7")
    for i in range(16):
        E(f"v_cndmask_b32 v{S+128+i}, v12, v{S+128+i}, s[{56+2*i}:{57+2*i}]")
        E(f"v_cndmask_b32 v{S+i}, v{S+i}, v12, s[{56+2*i}:{57+2*i}]")
    for kb in range(8):
        E(f"s_cmp_ge_u32 s9, {256-32*kb}"); E(f"s_cbranch_scc1 {n}_ok{kb}")
        for i in range(16): E(f"v_mov_b32 v{S+16*kb+i}, v12")
        L(f"{n}_ok{kb}")
    for c in range(4): E(f"v_max_f32 v{4+c}, v{S+c}, v{S+4+c}")
    for r in range(8, 144, 8):
        for c in range(4): E(f"v_max3_f32 v{4+c}, v{4+c}, v{S+r+c}, v{S+r+4+c}")
    E("v_max_f32 v4, v4, v5"); E("v_max_f32 v6, v6, v7"); E("v_max_f32 v4, v4, v6"); E("v_mov_b32 v5, v4")
    E("s_nop 1"); E("v_permlane32_swap_b32 v4, v5"); E("s_nop 1"); E("v_max_f32 v4, v4, v5")
    cc = 0.25 * LOG2E
    E(f"s_mov_b32 s13, {f2u(cc):#x}"); E("v_mul_f32 v4, s13, v4")
    for r in range(0, 144, 4):
        for c in range(4): E(f"v_fma_f32 v{S+r+c}, v{S+r+c}, s13, -v4")
        for c in range(4): E(f"v_exp_f32 v{S+r+c}, v{S+r+c}")
        if r >= 4:
            p = r - 4; d = S + 16*(p//16) + (p % 16)//2
            E(f"v_cvt_pk_bf16_f32 v{d}, v{S+p}, v{S+p+1}"); E(f"v_cvt_pk_bf16_f32 v{d+1}, v{S+p+2}, v{S+p+3}")
    p = 140; d = S + 16*(p//16) + (p % 16)//2
    E("s_nop 0"); E(f"v_cvt_pk_bf16_f32 v{d}, v{S+p}, v{S+p+1}"); E(f"v_cvt_pk_bf16_f32 v{d+1}, v{S+p+2}, v{S+p+3}")
    E("s_nop 1")
    for t in range(18):
        E(f"s_waitcnt vmcnt({17-t})")
        b = S + 16*(t//2) + 4*(t % 2)
        E(f"v_mfma_f32_32x32x16_bf16 v[{O}:{O+15}], v[{KV+4*t}:{KV+4*t+3}], v[{b}:{b+3}], {'0' if t == 0 else f'v[{O}:{O+15}]'}")
    E("s_nop 15"); E(f"v_rcp_f32 v4, v{O+8}"); E("s_nop 0")
    for i in range(8): E(f"v_mul_f32 v{O+i}, v{O+i}, v4")
    for i in range(4): E(f"v_cvt_pk_bf16_f32 v{Q+i}, v{O+2*i}, v{O+2*i+1}")
    E(f"buffer_store_dwordx4 v[{Q}:{Q+3}], v10, s[52:55], 0 offen")
    epilogue_end(n)

def k3():
    n = "k3_wo_kernel"; kernels.append((n, 256, 32768)); prologue(n, 256)
    wgmap(); E("s_lshl_b32 s12, s11, 6")
    srd(40, 34, WS_O, 2*MB); srd(44, 20, 0, 512*1024); srd(48, 34, WS_H, 2*MB); srd(52, 16, 0, 2*MB)
    dma_setup(1024); dma_region(44, 12, 0, 8, 1024)
    load_xt(40, 32, 32)
    w_addr(True, 10)
    E("v_lshlrev_b32 v12, 10, v9"); E("v_lshlrev_b32 v5, 3, v4"); E("v_add_u32 v12, v12, v5"); E("s_lshl_b32 s13, s11, 11")
    for q in range(4): E(f"buffer_load_dwordx2 v[{VT+8+2*q}:{VT+9+2*q}], v12, s[52:55], s12 offen offset:{16*q}")
    E("s_waitcnt vmcnt(0)"); E("s_barrier")
    items = [(10, 1024*s, VX+4*s, ACC0) for s in range(32)]
    for _ in mfma_items(items, True, lambda i: False, lambda i: i == 0): pass
    E("s_nop 15")
    for i in range(8):
        E(f"v_lshlrev_b32 v5, 16, v{VT+8+i}"); E(f"v_and_b32 v6, 0xffff0000, v{VT+8+i}")
        E(f"v_add_f32 v{ACC0+2*i}, v{ACC0+2*i}, v5"); E(f"v_add_f32 v{ACC0+2*i+1}, v{ACC0+2*i+1}, v6")
    pack(ACC0, VT)
    E(f"buffer_store_dwordx4 v[{VT}:{VT+3}], v8, s[48:51], s13 offen")
    E(f"buffer_store_dwordx4 v[{VT+4}:{VT+7}], v8, s[48:51], s13 offen offset:1024")
    epilogue_end(n)

def k4():
    n = "k4_glu_kernel"; kernels.append((n, 256, 163840)); prologue(n, 256)
    stamp(n); wgmap(4); E("s_mul_i32 s11, s11, 86"); E("s_and_b32 s11, s11, 0xfffffff0"); E("s_lshl_b32 s11, s11, 1")
    srd(40, 34, WS_H, 2*MB); srd(44, 24, 0, 512*2752); srd(48, 26, 0, 512*2752); srd(52, 34, WS_HH, 2048*2752)
    load_xt(40, 32, 32)
    dma_setup(2752)
    def reg(slot):
        E(f"s_add_u32 s12, s11, {64*(slot//2)}")
        dma_region(44 if slot % 2 == 0 else 48, 12, (slot % 5)*32768, 8, 2752)
    def regl(slot): return dma_list(44 if slot % 2 == 0 else 48, 11, 64*(slot//2), (slot % 5)*32768, 8, 2752)
    w_addr(True, 10)
    E("s_lshr_b32 s4, s10, 5"); E(f"s_mul_i32 s4, s4, {86*1024}"); E("v_lshlrev_b32 v11, 4, v1"); E("v_add_u32 v11, s4, v11")
    stamp(n); ln_regs(0, regl(0) + regl(1) + regl(2) + regl(3) + regl(4)); stamp(n)
    E(f"s_mov_b32 s13, {f2u(-LOG2E):#x}")
    for j in range(3):
        sg, su = ((2*j) % 5)*32768, ((2*j+1) % 5)*32768
        E(f"v_add_u32 v13, {sg}, v10"); E(f"v_add_u32 v14, {su}, v10")
        if j == 0: E("s_waitcnt vmcnt(24)"); E("s_barrier"); stamp(n)
        items = []
        for s in range(32): items += [(13, 1024*s, VX+4*s, ACC0), (14, 1024*s, VX+4*s, ACC1)]
        for _ in mfma_items(items, True, lambda i: False, lambda i: i < 2): pass
        stamp(n)
        if j == 0:
            E("s_waitcnt vmcnt(8)"); E("s_barrier")
            for g in regl(5):
                for x in g: E(x)
        if j == 1: E("s_waitcnt vmcnt(2)"); E("s_barrier")
        E("s_nop 15")
        for i in range(16): E(f"v_mul_f32 v{ACC0+i}, s13, v{ACC0+i}")
        for i in range(16): E(f"v_exp_f32 v{ACC0+i}, v{ACC0+i}")
        for i in range(16): E(f"v_add_f32 v{ACC0+i}, 1.0, v{ACC0+i}")
        for i in range(16): E(f"v_rcp_f32 v{ACC0+i}, v{ACC0+i}")
        for i in range(16): E(f"v_mul_f32 v{ACC0+i}, v{ACC0+i}, v{ACC1+i}")
        pack(ACC0, VT)
        E(f"s_add_u32 s12, s11, {64*j}"); E("s_lshl_b32 s12, s12, 5")
        E(f"buffer_store_dwordx4 v[{VT}:{VT+3}], v11, s[52:55], s12 offen")
        E(f"buffer_store_dwordx4 v[{VT+4}:{VT+7}], v11, s[52:55], s12 offen offset:1024")
        E("s_nop 1")
    epilogue_end(n)

def k5():
    n = "k5_down_kernel"; kernels.append((n, 256, 22*4096)); prologue(n, 256)
    NX = 44; X = 56; global VW
    oldVW = VW; VW = 16; A = 232; T = 48
    wgmap(); E("s_lshl_b32 s12, s11, 6")
    srd(40, 34, WS_HH, 2048*2752); srd(44, 28, 0, 1376*1024); srd(48, 34, WS_H, 2*MB); srd(52, 30, 0, 2*MB)
    dma_setup(1024); dma_region(44, 12, 0, 22, 1024)
    load_xt(40, 86, NX, X)
    w_addr(True, 10); E("v_add_u32 v13, 0x10000, v10")
    E("v_lshlrev_b32 v12, 10, v9"); E("v_lshlrev_b32 v5, 3, v4"); E("v_add_u32 v12, v12, v5")
    E("s_lshl_b32 s13, s10, 10"); E("s_lshl_b32 s14, s11, 11"); E("s_add_u32 s13, s13, s14"); E("v_lshlrev_b32 v11, 4, v1")
    E(f"buffer_load_dwordx4 v[248:251], v11, s[48:51], s13 offen"); E(f"buffer_load_dwordx4 v[252:255], v11, s[48:51], s13 offen offset:1024")
    E("s_waitcnt vmcnt(0)"); E("s_barrier")
    items = [((10, 1024*s) if s < 64 else (13, 1024*(s-64))) + (X+4*(s % NX), A) for s in range(86)]
    for i in mfma_items(items, True, lambda i: False, lambda i: i == 0):
        if i + NX < 86:
            s = i + NX; E(f"s_mov_b32 s4, {1024*s}"); E(f"buffer_load_dwordx4 v[{X+4*i}:{X+4*i+3}], v8, s[40:43], s4 offen")
        if i + 1 >= NX and i + 1 < 86: E(f"s_waitcnt vmcnt({85-(i+1)})")
    VW = oldVW
    E("s_nop 15")
    for i in range(8):
        E(f"v_lshlrev_b32 v5, 16, v{248+i}"); E(f"v_and_b32 v6, 0xffff0000, v{248+i}")
        E(f"v_add_f32 v{A+2*i}, v{A+2*i}, v5"); E(f"v_add_f32 v{A+2*i+1}, v{A+2*i+1}, v6")
    pack(A, T)
    for q in range(4): E(f"buffer_store_dwordx2 v[{T+2*q}:{T+2*q+1}], v12, s[52:55], s12 offen offset:{16*q}")
    epilogue_end(n)

k0(); k1(); k2(); k3(); k4(); k5()
hdr = open("cdna_kernels/" + NAME + ".s.ref").read().split("\n")
head = [l for l in hdr if l.startswith(";") and "@launch" not in l and "Override" not in l and "grid=ceil" not in l]
import os
dup = int(os.environ.get("DUP", "-1"))
ll = []
for idx, (k, g, l) in enumerate(kernels):
    ll += [f"; @launch kernel={k} grid=({g},1,1) block=(256,1,1) lds={l}"] * (5 if idx == dup else 1)
if dup == 99: ll = ll + ll
if STAMPK:
    ll = ll + [x for x in ll if STAMPK in x]
txt = head + ll
txt += ['.amdgcn_target "amdgcn-amd-amdhsa--gfx950"', ".text"] + out + ['.section .rodata,"a"']
for k, g, l in kernels:
    txt += [".p2align 6", f".amdhsa_kernel {k}", "  .amdhsa_next_free_vgpr 256", "  .amdhsa_next_free_sgpr 102", "  .amdhsa_accum_offset 256",
            "  .amdhsa_group_segment_fixed_size 0", "  .amdhsa_kernarg_size 80", "  .amdhsa_user_sgpr_count 2",
            "  .amdhsa_user_sgpr_kernarg_segment_ptr 1", "  .amdhsa_system_sgpr_workgroup_id_x 1", ".end_amdhsa_kernel"]
open(os.environ.get("OUT", "cdna_kernels/" + NAME + ".s"), "w").write("\n".join(txt) + "\n")
```

```python
import sys, os
NAME = "sequential_preLN__sliding_block__glu_gated_glu__prompt"
out = []
def E(s): out.append("    " + s)
def L(s): out.append(s + ":")
MB = 1 << 20
WS_Q, WS_K, WS_V, WS_O, WS_H, WS_HH = 0, 2*MB, 4*MB, 6*MB, 8*MB, 10*MB
WS_XN = 16*MB
LOG2E = 1.4426950408889634
import struct
def f2u(f): return struct.unpack("<I", struct.pack("<f", f))[0]

def prologue(name, nwg):
    out.append(".p2align 8"); out.append(f".globl {name}"); out.append(f".type {name},@function"); L(name)
    E(f"s_cmp_ge_u32 s2, {nwg}"); E(f"s_cbranch_scc1 {name}_done")
    E("s_load_dwordx16 s[16:31], s[0:1], 0"); E("s_load_dwordx4 s[32:35], s[0:1], 64")
    E("v_and_b32 v1, 63, v0")
    E("v_lshrrev_b32 v2, 6, v0")
    E("v_and_b32 v3, 31, v0")
    E("v_readfirstlane_b32 s3, v2")
    E("v_bfe_u32 v4, v0, 5, 1")
    E("s_waitcnt lgkmcnt(0)")
STAMPK = os.environ.get("STAMP", "")
nst = [0]
def stamp(name):
    if name != STAMPK: return
    E("s_memtime s[88:89]"); E("s_waitcnt lgkmcnt(0)"); E(f"s_mov_b32 s{90+nst[0]}, s88"); nst[0] += 1
def epilogue_end(name):
    if name == STAMPK:
        stamp(name)
        srd(40, 32, 0, 256)
        E("s_cmp_lg_u32 s2, 8"); E(f"s_cbranch_scc1 {name}_done"); E("s_cmp_lg_u32 s3, 0"); E(f"s_cbranch_scc1 {name}_done")
        srd(40, 32, 0, 256)
        for i in range(nst[0]):
            E(f"s_sub_u32 s4, s{90+i}, s90"); E("v_mov_b32 v5, s4"); E(f"v_mov_b32 v6, {4*i}"); E("buffer_store_dword v5, v6, s[40:43], 0 offen")
    L(f"{name}_done"); E("s_endpgm")
def srd(d, base, off, size):
    if off >= 0:
        E(f"s_add_u32 s{d}, s{base}, {off}"); E(f"s_addc_u32 s{d+1}, s{base+1}, 0")
    else:
        E(f"s_sub_u32 s{d}, s{base}, {-off}"); E(f"s_subb_u32 s{d+1}, s{base+1}, 0")
    E(f"s_mov_b32 s{d+2}, {size}"); E(f"s_mov_b32 s{d+3}, 0x00020000")

VX, VW, ACC0, ACC1, VT = 16, 144, 176, 192, 208

def w_addr(perm, vdst, RB=64):
    E("v_bfe_u32 v5, v0, 2, 2")
    E(f"v_lshlrev_b32 v6, {2 if perm else 3}, v4")
    E("v_add_u32 v5, v5, v6")
    E(f"v_mul_u32_u24 v5, {RB}, v5")
    E("v_bfe_u32 v6, v0, 4, 1")
    E("v_lshlrev_b32 v6, 5, v6")
    E("v_add_u32 v5, v5, v6")
    E("v_and_b32 v6, 3, v0")
    E("v_lshlrev_b32 v6, 3, v6")
    E(f"v_add_u32 v{vdst}, v5, v6")

def dma_setup(ldw):
    E("v_lshrrev_b32 v5, 2, v0"); E(f"s_mov_b32 s4, {ldw}"); E("v_mul_lo_u32 v5, v5, s4")
    E("v_and_b32 v6, 3, v0"); E("v_lshlrev_b32 v6, 4, v6"); E("v_add_u32 v7, v5, v6")
    E("s_lshl_b32 s5, s3, 10")
def dma_region(srdreg, scol, ldsbase, nj, ldw):
    E(f"s_mov_b32 s6, s{scol}"); E(f"s_add_u32 s7, s5, {ldsbase}")
    for j in range(nj):
        E("s_mov_b32 m0, s7");
        if j + 1 < nj: E("s_add_u32 s7, s7, 4096")
        else: E("s_nop 0")
        E(f"buffer_load_dwordx4 v7, s[{srdreg}:{srdreg+3}], s6 offen lds")
        if j + 1 < nj: E(f"s_add_u32 s6, s6, {64*ldw}")

def dma_list(srdreg, scolreg, coladd, ldsbase, nj, ldw):
    r = []
    for j in range(nj):
        r.append([f"s_add_u32 s6, s{scolreg}, {coladd + j*64*ldw}", f"s_add_u32 m0, s5, {ldsbase + j*4096}", "s_nop 0",
                  f"buffer_load_dwordx4 v7, s[{srdreg}:{srdreg+3}], s6 offen lds"])
    return r
def dma_setup_w(ldw):
    E("s_lshl_b32 s5, s3, 10"); E("s_mov_b32 s4, 0xAAAB"); E(f"s_mov_b32 s6, {ldw}")
    for t, vr in enumerate((7, 14, 15)):
        E(f"v_add_u32 v5, {256*t}, v0"); E("v_mul_lo_u32 v6, v5, s4"); E("v_lshrrev_b32 v6, 19, v6")
        E("v_mul_u32_u24 v2, 12, v6"); E("v_sub_u32 v5, v5, v2"); E("v_lshlrev_b32 v5, 4, v5")
        E("v_mul_lo_u32 v6, v6, s6"); E(f"v_add_u32 v{vr}, v5, v6")
def dma_list_w(srdreg, scolreg, ldsbase, row0, nrows, ldw):
    r = []
    for j in range(nrows*12//256):
        r.append([f"s_add_u32 s6, s{scolreg}, {(row0 + (j//3)*64)*ldw}", f"s_add_u32 m0, s5, {ldsbase + j*4096}", "s_nop 0",
                  f"buffer_load_dwordx4 v{(7,14,15)[j%3]}, s[{srdreg}:{srdreg+3}], s6 offen lds"])
    return r
def mfma_items(items, perm, swap_of, first_of, RB=64):
    d2 = 8*RB if perm else 4*RB
    n = len(items); D = 6
    def rd(i):
        va, off, _, _ = items[i]; w = VW + 4 * (i % 8)
        E(f"ds_read_b64_tr_b16 v[{w}:{w+1}], v{va} offset:{off}")
        E(f"ds_read_b64_tr_b16 v[{w+2}:{w+3}], v{va} offset:{off+d2}")
    for i in range(min(D, n)): rd(i)
    for i in range(n):
        va, off, x, acc = items[i][:4]; w = VW + 4 * (i % 8)
        E(f"s_waitcnt lgkmcnt({2*(min(i+D-1, n-1)-i)})")
        c = "0" if first_of(i) else f"v[{acc}:{acc+15}]"
        if swap_of(i): E(f"v_mfma_f32_32x32x16_bf16 v[{acc}:{acc+15}], v[{x}:{x+3}], v[{w}:{w+3}], {c}")
        else:          E(f"v_mfma_f32_32x32x16_bf16 v[{acc}:{acc+15}], v[{w}:{w+3}], v[{x}:{x+3}], {c}")
        if i + D < n: rd(i + D)
        yield i

def ln_regs(ndma, inter=[]):
    E("s_mov_b32 s8, 0x3f803f80")
    for q in range(4): E(f"v_mov_b32 v{VT+q}, 0"); E(f"v_mov_b32 v{VT+4+q}, 0")
    inter = list(inter); nd = 0
    for g in range(4):
        E(f"s_waitcnt vmcnt({min(63, 24-8*g+nd)})")
        for r in range(32*g, 32*g+32):
            if inter and r % 8 == 4:
                for x in inter.pop(0): E(x)
                nd += 1
            E(f"v_dot2_f32_bf16 v{VT+(r&3)}, v{VX+r}, s8, v{VT+(r&3)}")
            E(f"v_dot2_f32_bf16 v{VT+4+(r&3)}, v{VX+r}, v{VX+r}, v{VT+4+(r&3)}")
    E("s_nop 3")
    E(f"v_add_f32 v{VT}, v{VT}, v{VT+1}"); E(f"v_add_f32 v{VT+2}, v{VT+2}, v{VT+3}")
    E(f"v_add_f32 v{VT+4}, v{VT+4}, v{VT+5}"); E(f"v_add_f32 v{VT+6}, v{VT+6}, v{VT+7}")
    E(f"v_add_f32 v{VT}, v{VT}, v{VT+2}"); E(f"v_add_f32 v{VT+4}, v{VT+4}, v{VT+6}")
    E(f"v_mov_b32 v{VT+1}, v{VT}"); E(f"v_mov_b32 v{VT+5}, v{VT+4}")
    E("s_nop 1")
    E(f"v_permlane32_swap_b32 v{VT}, v{VT+1}"); E(f"v_permlane32_swap_b32 v{VT+4}, v{VT+5}")
    E("s_nop 1")
    E(f"v_add_f32 v{VT}, v{VT}, v{VT+1}"); E(f"v_add_f32 v{VT+4}, v{VT+4}, v{VT+5}")
    E(f"v_mul_f32 v{VT}, {f2u(1/512):#x}, v{VT}")
    E(f"v_mul_f32 v{VT+4}, {f2u(1/512):#x}, v{VT+4}")
    E(f"v_fma_f32 v{VT+4}, -v{VT}, v{VT}, v{VT+4}")
    E(f"v_max_f32 v{VT+4}, 0, v{VT+4}")
    E(f"v_add_f32 v{VT+4}, {f2u(1e-5):#x}, v{VT+4}")
    E(f"v_rsq_f32 v{VT+4}, v{VT+4}")
    E("s_nop 0")
    E(f"v_mul_f32 v{VT}, v{VT}, v{VT+4}")
    E(f"v_sub_f32 v{VT}, 0, v{VT}")
    for r in range(128):
        if inter and r % 5 == 0:
            for x in inter.pop(0): E(x)
        a, b = VT + 8 + 2 * (r & 3), VT + 9 + 2 * (r & 3)
        E(f"v_lshlrev_b32 v{a}, 16, v{VX+r}"); E(f"v_and_b32 v{b}, 0xffff0000, v{VX+r}")
        E(f"v_fma_f32 v{a}, v{a}, v{VT+4}, v{VT}"); E(f"v_fma_f32 v{b}, v{b}, v{VT+4}, v{VT}")
        E(f"v_cvt_pk_bf16_f32 v{VX+r}, v{a}, v{b}")

def load_x(srdreg, ld, nsteps, base=VX):
    E("s_lshl_b32 s10, s3, 5"); E("s_add_u32 s10, s10, s9")
    E("v_add_u32 v9, s10, v3"); E(f"s_mov_b32 s4, {ld}"); E("v_mul_lo_u32 v8, v9, s4")
    E("v_lshlrev_b32 v5, 4, v4"); E("v_add_u32 v8, v8, v5")
    for s in range(nsteps):
        E(f"buffer_load_dwordx4 v[{base+4*s}:{base+4*s+3}], v8, s[{srdreg}:{srdreg+3}], 0 offen offset:{32*s}")
def wgmap(a=2):
    if a == 2:
        E("s_and_b32 s9, s2, 7"); E("s_lshl_b32 s9, s9, 1"); E("s_lshr_b32 s11, s2, 7"); E("s_add_u32 s9, s9, s11"); E("s_lshl_b32 s9, s9, 7")
        E("s_lshr_b32 s11, s2, 3"); E("s_and_b32 s11, s11, 15")
    else:
        E("s_bfe_u32 s9, s2, 0x20001"); E("s_lshl_b32 s9, s9, 2"); E("s_lshr_b32 s11, s2, 6"); E("s_add_u32 s9, s9, s11"); E("s_lshl_b32 s9, s9, 7")
        E("s_bfe_u32 s11, s2, 0x30003"); E("s_and_b32 s4, s2, 1"); E("s_lshl_b32 s4, s4, 3"); E("s_add_u32 s11, s11, s4")
def load_xt(srdreg, nsteps_total, nsteps, base=VX):
    E("s_lshl_b32 s10, s3, 5"); E("s_add_u32 s10, s10, s9"); E("v_add_u32 v9, s10, v3")
    E("s_lshr_b32 s4, s10, 5"); E(f"s_mul_i32 s4, s4, {nsteps_total*1024}")
    E("v_lshlrev_b32 v8, 4, v1"); E("v_add_u32 v8, s4, v8")
    for s in range(nsteps):
        if s % 4 == 0: E(f"s_mov_b32 s4, {1024*s}")
        E(f"buffer_load_dwordx4 v[{base+4*s}:{base+4*s+3}], v8, s[{srdreg}:{srdreg+3}], s4 offen offset:{1024*(s%4)}")
def pack(acc, dst):
    for i in range(8): E(f"v_cvt_pk_bf16_f32 v{dst+i}, v{acc+2*i}, v{acc+2*i+1}")

kernels = []
def k0():
    n = "k0_ln_kernel"; kernels.append((n, 256, 0)); prologue(n, 256)
    E("s_and_b32 s9, s2, 7"); E("s_lshl_b32 s9, s9, 8"); E("s_lshr_b32 s10, s2, 3"); E("s_lshl_b32 s10, s10, 3"); E("s_add_u32 s9, s9, s10")
    E("s_lshl_b32 s10, s3, 1"); E("s_add_u32 s9, s9, s10")
    srd(40, 16, 0, 2*MB); srd(44, 34, WS_XN, 2*MB)
    E("s_lshl_b32 s10, s9, 10"); E("v_lshlrev_b32 v5, 4, v1")
    E("buffer_load_dwordx4 v[16:19], v5, s[40:43], s10 offen"); E("buffer_load_dwordx4 v[20:23], v5, s[40:43], s10 offen offset:1024")
    E("s_lshr_b32 s11, s9, 5"); E("s_lshl_b32 s11, s11, 15"); E("s_and_b32 s12, s9, 31"); E("s_lshl_b32 s12, s12, 4"); E("s_add_u32 s11, s11, s12")
    E("v_lshrrev_b32 v6, 1, v1"); E("v_lshlrev_b32 v6, 10, v6"); E("v_and_b32 v7, 1, v1"); E("v_lshlrev_b32 v7, 9, v7"); E("v_add_u32 v6, v6, v7")
    E("s_mov_b32 s8, 0x3f803f80")
    for q in range(4): E(f"v_mov_b32 v{24+q}, 0")
    if os.environ.get("PF", "1") == "1":
        E("s_lshl_b32 s12, s2, 12"); E("v_lshlrev_b32 v32, 4, v0"); E("v_add_u32 v32, s12, v32"); E("v_add_u32 v33, 0x100000, v32")
        k = 0
        for base, size in ((18, 512*3072), (20, 512*1024), (24, 512*2752), (26, 512*2752), (28, 1376*1024)):
            srd(48, base, 0, size)
            E(f"buffer_load_dwordx4 v[{36+4*k}:{39+4*k}], v32, s[48:51], 0 offen"); k += 1
            if size > MB: E(f"buffer_load_dwordx4 v[{36+4*k}:{39+4*k}], v33, s[48:51], 0 offen"); k += 1
        npf = int(os.environ.get("NPF", "0"))
        if npf:
            E("s_getpc_b64 s[60:61]"); L("k0_pc")
            E("v_lshlrev_b32 v34, 4, v0")
            for i in range(npf):
                E(f"global_load_dwordx4 v[{72+4*i}:{75+4*i}], v34, s[60:61]"); E("v_add_u32 v34, 0x1000, v34")
        E(f"s_waitcnt vmcnt({9+npf})")
    else:
        E("s_waitcnt vmcnt(0)")
    for r in range(2):
        for i in range(4):
            E(f"v_dot2_f32_bf16 v{24+2*r}, v{16+4*r+i}, s8, v{24+2*r}"); E(f"v_dot2_f32_bf16 v{25+2*r}, v{16+4*r+i}, v{16+4*r+i}, v{25+2*r}")
    E("s_nop 3")
    for off in (0x041F, 0x081F, 0x101F, 0x201F, 0x401F):
        for q in range(4): E(f"ds_swizzle_b32 v{28+q}, v{24+q} offset:{off:#x}")
        E("s_waitcnt lgkmcnt(0)")
        for q in range(4): E(f"v_add_f32 v{24+q}, v{24+q}, v{28+q}")
    for q in range(4): E(f"v_mov_b32 v{28+q}, v{24+q}")
    E("s_nop 1")
    for q in range(4): E(f"v_permlane32_swap_b32 v{24+q}, v{28+q}")
    E("s_nop 1")
    for q in range(4): E(f"v_add_f32 v{24+q}, v{24+q}, v{28+q}")
    for r in range(2):
        a, b = 24+2*r, 25+2*r
        E(f"v_mul_f32 v{a}, {f2u(1/512):#x}, v{a}"); E(f"v_mul_f32 v{b}, {f2u(1/512):#x}, v{b}")
        E(f"v_fma_f32 v{b}, -v{a}, v{a}, v{b}"); E(f"v_max_f32 v{b}, 0, v{b}"); E(f"v_add_f32 v{b}, {f2u(1e-5):#x}, v{b}")
        E(f"v_rsq_f32 v{b}, v{b}"); E("s_nop 0"); E(f"v_mul_f32 v{a}, v{a}, v{b}"); E(f"v_sub_f32 v{a}, 0, v{a}")
        for i in range(4):
            x = 16+4*r+i
            E(f"v_lshlrev_b32 v30, 16, v{x}"); E(f"v_and_b32 v31, 0xffff0000, v{x}")
            E(f"v_fma_f32 v30, v30, v{b}, v{a}"); E(f"v_fma_f32 v31, v31, v{b}, v{a}"); E(f"v_cvt_pk_bf16_f32 v{x}, v30, v31")
        E(f"buffer_store_dwordx4 v[{16+4*r}:{19+4*r}], v6, s[44:47], s11 offen offset:{16*r}")
    epilogue_end(n)
def k1():
    n = "k1_qkv_kernel"; kernels.append((n, 256, 98304)); prologue(n, 256)
    stamp(n); wgmap(4); E("s_mul_i32 s11, s11, 3")
    srd(40, 34, WS_XN, 2*MB); srd(44, 18, 0, 512*3072); srd(48, 34, 0, 6*MB)
    dma_setup_w(3072)
    E("s_lshl_b32 s60, s11, 6")
    allw = dma_list_w(44, 60, 0, 0, 512, 3072)
    for g in allw[:8]:
        for x in g: E(x)
    load_xt(40, 32, 32)
    for g in allw[8:]:
        for x in g: E(x)
    w_addr(False, 10, 192); E("v_add_u32 v13, 0xc000, v10")
    E("v_lshlrev_b32 v11, 5, v9"); E("v_lshlrev_b32 v5, 4, v4"); E("v_add_u32 v11, v11, v5")
    E("v_lshlrev_b32 v12, 12, v3"); E("v_lshlrev_b32 v5, 4, v4"); E("v_add_u32 v12, v12, v5")
    E("s_lshl_b32 s13, s10, 1"); E("v_add_u32 v12, s13, v12")
    stamp(n)
    for j in range(3):
        if j == 0: E("s_waitcnt vmcnt(0)"); E("s_barrier"); stamp(n)
        E(f"s_add_u32 s12, s11, {j}"); E("s_cmp_ge_u32 s12, 32"); E(f"s_cbranch_scc1 {n}_v{j}")
        for sw in (False, True):
            if sw: L(f"{n}_v{j}")
            items = [((10, 3072*s + 64*j) if s < 16 else (13, 3072*(s-16) + 64*j)) + (VX+4*s, ACC0) for s in range(32)]
            for i in mfma_items(items, False, lambda i: sw, lambda i: i == 0, 192): pass
            stamp(n)
            E("s_nop 15"); pack(ACC0, VT)
            if not sw:
                E("s_lshr_b32 s14, s12, 4"); E("s_lshl_b32 s14, s14, 21"); E("s_and_b32 s15, s12, 15"); E("s_lshl_b32 s15, s15, 17")
                E("s_add_u32 s14, s14, s15"); E("s_add_u32 s15, s14, 65536")
                E(f"buffer_store_dwordx4 v[{VT}:{VT+3}], v11, s[48:51], s14 offen")
                E(f"buffer_store_dwordx4 v[{VT+4}:{VT+7}], v11, s[48:51], s15 offen")
                E(f"s_branch {n}_e{j}")
            else:
                E("s_sub_u32 s14, s12, 32"); E("s_lshl_b32 s14, s14, 17"); E(f"s_add_u32 s14, s14, {WS_V}")
                E(f"buffer_store_dwordx4 v[{VT}:{VT+3}], v12, s[48:51], s14 offen")
                E(f"buffer_store_dwordx4 v[{VT+4}:{VT+7}], v12, s[48:51], s14 offen offset:32")
        L(f"{n}_e{j}"); E("s_nop 1")
    epilogue_end(n)

def k2():
    n = "k2_attn_kernel"; kernels.append((n, 512, 0)); prologue(n, 512)
    Q, KV, S, O = 16, 20, 96, 240
    E("s_lshr_b32 s9, s2, 3"); E("s_lshl_b32 s9, s9, 5")
    E("s_and_b32 s11, s2, 7"); E("s_lshl_b32 s11, s11, 2"); E("s_add_u32 s11, s11, s3")
    srd(40, 34, WS_Q, 2*MB); srd(44, 34, WS_K - 8192, 2*MB + 8192); srd(48, 34, WS_V - 512, 2*MB + 512); srd(52, 34, WS_O, 2*MB)
    E("s_lshl_b32 s12, s11, 11"); E("s_add_u32 s12, s12, s9")
    E("v_add_u32 v5, s12, v3"); E("v_lshlrev_b32 v5, 5, v5"); E("v_lshlrev_b32 v6, 4, v4"); E("v_add_u32 v8, v5, v6")
    E(f"buffer_load_dwordx4 v[{Q}:{Q+3}], v8, s[40:43], 0 offen")
    for kb in range(9):
        E(f"s_mov_b32 s13, {kb*1024}")
        E(f"buffer_load_dwordx4 v[{KV+4*kb}:{KV+4*kb+3}], v8, s[44:47], s13 offen")
    E("v_and_b32 v5, 15, v0"); E("s_lshl_b32 s13, s11, 4"); E("v_add_u32 v5, s13, v5"); E("v_lshlrev_b32 v5, 12, v5")
    E("s_lshl_b32 s13, s9, 1"); E("v_add_u32 v5, s13, v5"); E("v_add_u32 v9, v5, v6")
    E("s_add_u32 s13, s9, s11"); E("s_lshl_b32 s13, s13, 10"); E("v_lshlrev_b32 v5, 4, v1"); E("v_add_u32 v10, s13, v5")
    E("v_lshlrev_b32 v5, 2, v4"); E("v_sub_u32 v11, v3, v5")
    for i in range(16):
        c = 8*(i >> 2) + (i & 3)
        E(f"v_cmp_le_i32 s[{56+2*i}:{57+2*i}], {c}, v11")
    E(f"v_mov_b32 v12, {f2u(-1e30):#x}")
    for kb in range(9):
        E(f"s_waitcnt vmcnt({8-kb})")
        E(f"v_mfma_f32_32x32x16_bf16 v[{S+16*kb}:{S+16*kb+15}], v[{KV+4*kb}:{KV+4*kb+3}], v[{Q}:{Q+3}], 0")
    E("s_nop 3")
    for r in range(72): E(f"v_mov_b32 v{KV+r}, 0x3f803f80")
    E("s_mov_b32 s14, 0x0000ffff"); E("s_mov_b32 s15, 0x0000ffff"); E("s_mov_b64 exec, s[14:15]")
    for t in range(18):
        E(f"buffer_load_dwordx4 v[{KV+4*t}:{KV+4*t+3}], v9, s[48:51], 0 offen offset:{32*t}")
    E("s_mov_b64 exec, -1")
    E("s_nop 7")
    for i in range(16):
        E(f"v_cndmask_b32 v{S+128+i}, v12, v{S+128+i}, s[{56+2*i}:{57+2*i}]")
        E(f"v_cndmask_b32 v{S+i}, v{S+i}, v12, s[{56+2*i}:{57+2*i}]")
    for kb in range(8):
        E(f"s_cmp_ge_u32 s9, {256-32*kb}"); E(f"s_cbranch_scc1 {n}_ok{kb}")
        for i in range(16): E(f"v_mov_b32 v{S+16*kb+i}, v12")
        L(f"{n}_ok{kb}")
    for c in range(4): E(f"v_max_f32 v{4+c}, v{S+c}, v{S+4+c}")
    for r in range(8, 144, 8):
        for c in range(4): E(f"v_max3_f32 v{4+c}, v{4+c}, v{S+r+c}, v{S+r+4+c}")
    E("v_max_f32 v4, v4, v5"); E("v_max_f32 v6, v6, v7"); E("v_max_f32 v4, v4, v6"); E("v_mov_b32 v5, v4")
    E("s_nop 1"); E("v_permlane32_swap_b32 v4, v5"); E("s_nop 1"); E("v_max_f32 v4, v4, v5")
    cc = 0.25 * LOG2E
    E(f"s_mov_b32 s13, {f2u(cc):#x}"); E("v_mul_f32 v4, s13, v4")
    for r in range(0, 144, 4):
        for c in range(4): E(f"v_fma_f32 v{S+r+c}, v{S+r+c}, s13, -v4")
        for c in range(4): E(f"v_exp_f32 v{S+r+c}, v{S+r+c}")
        if r >= 4:
            p = r - 4; d = S + 16*(p//16) + (p % 16)//2
            E(f"v_cvt_pk_bf16_f32 v{d}, v{S+p}, v{S+p+1}"); E(f"v_cvt_pk_bf16_f32 v{d+1}, v{S+p+2}, v{S+p+3}")
    p = 140; d = S + 16*(p//16) + (p % 16)//2
    E("s_nop 0"); E(f"v_cvt_pk_bf16_f32 v{d}, v{S+p}, v{S+p+1}"); E(f"v_cvt_pk_bf16_f32 v{d+1}, v{S+p+2}, v{S+p+3}")
    E("s_nop 1")
    for t in range(18):
        E(f"s_waitcnt vmcnt({17-t})")
        b = S + 16*(t//2) + 4*(t % 2)
        E(f"v_mfma_f32_32x32x16_bf16 v[{O}:{O+15}], v[{KV+4*t}:{KV+4*t+3}], v[{b}:{b+3}], {'0' if t == 0 else f'v[{O}:{O+15}]'}")
    E("s_nop 15"); E(f"v_rcp_f32 v4, v{O+8}"); E("s_nop 0")
    for i in range(8): E(f"v_mul_f32 v{O+i}, v{O+i}, v4")
    for i in range(4): E(f"v_cvt_pk_bf16_f32 v{Q+i}, v{O+2*i}, v{O+2*i+1}")
    E(f"buffer_store_dwordx4 v[{Q}:{Q+3}], v10, s[52:55], 0 offen")
    epilogue_end(n)

def k3():
    n = "k3_wo_kernel"; kernels.append((n, 256, 32768)); prologue(n, 256)
    wgmap(); E("s_lshl_b32 s12, s11, 6")
    srd(40, 34, WS_O, 2*MB); srd(44, 20, 0, 512*1024); srd(48, 34, WS_H, 2*MB); srd(52, 16, 0, 2*MB)
    dma_setup(1024); dma_region(44, 12, 0, 8, 1024)
    load_xt(40, 32, 32)
    w_addr(True, 10)
    E("v_lshlrev_b32 v12, 10, v9"); E("v_lshlrev_b32 v5, 3, v4"); E("v_add_u32 v12, v12, v5"); E("s_lshl_b32 s13, s11, 11")
    for q in range(4): E(f"buffer_load_dwordx2 v[{VT+8+2*q}:{VT+9+2*q}], v12, s[52:55], s12 offen offset:{16*q}")
    E("s_waitcnt vmcnt(0)"); E("s_barrier")
    items = [(10, 1024*s, VX+4*s, ACC0) for s in range(32)]
    for _ in mfma_items(items, True, lambda i: False, lambda i: i == 0): pass
    E("s_nop 15")
    for i in range(8):
        E(f"v_lshlrev_b32 v5, 16, v{VT+8+i}"); E(f"v_and_b32 v6, 0xffff0000, v{VT+8+i}")
        E(f"v_add_f32 v{ACC0+2*i}, v{ACC0+2*i}, v5"); E(f"v_add_f32 v{ACC0+2*i+1}, v{ACC0+2*i+1}, v6")
    pack(ACC0, VT)
    E(f"buffer_store_dwordx4 v[{VT}:{VT+3}], v8, s[48:51], s13 offen")
    E(f"buffer_store_dwordx4 v[{VT+4}:{VT+7}], v8, s[48:51], s13 offen offset:1024")
    epilogue_end(n)

def k4():
    n = "k4_glu_kernel"; kernels.append((n, 256, 163840)); prologue(n, 256)
    stamp(n); wgmap(4); E("s_mul_i32 s11, s11, 86"); E("s_and_b32 s11, s11, 0xfffffff0"); E("s_lshl_b32 s11, s11, 1")
    srd(40, 34, WS_H, 2*MB); srd(44, 24, 0, 512*2752); srd(48, 26, 0, 512*2752); srd(52, 34, WS_HH, 2048*2752)
    load_xt(40, 32, 32)
    dma_setup(2752)
    def reg(slot):
        E(f"s_add_u32 s12, s11, {64*(slot//2)}")
        dma_region(44 if slot % 2 == 0 else 48, 12, (slot % 5)*32768, 8, 2752)
    def regl(slot): return dma_list(44 if slot % 2 == 0 else 48, 11, 64*(slot//2), (slot % 5)*32768, 8, 2752)
    w_addr(True, 10)
    E("s_lshr_b32 s4, s10, 5"); E(f"s_mul_i32 s4, s4, {86*1024}"); E("v_lshlrev_b32 v11, 4, v1"); E("v_add_u32 v11, s4, v11")
    stamp(n); ln_regs(0, regl(0) + regl(1) + regl(2) + regl(3) + regl(4)); stamp(n)
    E(f"s_mov_b32 s13, {f2u(-LOG2E):#x}")
    for j in range(3):
        sg, su = ((2*j) % 5)*32768, ((2*j+1) % 5)*32768
        E(f"v_add_u32 v13, {sg}, v10"); E(f"v_add_u32 v14, {su}, v10")
        if j == 0: E("s_waitcnt vmcnt(24)"); E("s_barrier"); stamp(n)
        items = []
        for s in range(32): items += [(13, 1024*s, VX+4*s, ACC0), (14, 1024*s, VX+4*s, ACC1)]
        for _ in mfma_items(items, True, lambda i: False, lambda i: i < 2): pass
        stamp(n)
        if j == 0:
            E("s_waitcnt vmcnt(8)"); E("s_barrier")
            for g in regl(5):
                for x in g: E(x)
        if j == 1: E("s_waitcnt vmcnt(2)"); E("s_barrier")
        E("s_nop 15")
        for i in range(16): E(f"v_mul_f32 v{ACC0+i}, s13, v{ACC0+i}")
        for i in range(16): E(f"v_exp_f32 v{ACC0+i}, v{ACC0+i}")
        for i in range(16): E(f"v_add_f32 v{ACC0+i}, 1.0, v{ACC0+i}")
        for i in range(16): E(f"v_rcp_f32 v{ACC0+i}, v{ACC0+i}")
        for i in range(16): E(f"v_mul_f32 v{ACC0+i}, v{ACC0+i}, v{ACC1+i}")
        pack(ACC0, VT)
        E(f"s_add_u32 s12, s11, {64*j}"); E("s_lshl_b32 s12, s12, 5")
        E(f"buffer_store_dwordx4 v[{VT}:{VT+3}], v11, s[52:55], s12 offen")
        E(f"buffer_store_dwordx4 v[{VT+4}:{VT+7}], v11, s[52:55], s12 offen offset:1024")
        E("s_nop 1")
    epilogue_end(n)

def k5():
    n = "k5_down_kernel"; kernels.append((n, 256, 22*4096)); prologue(n, 256)
    NX = 44; X = 56; global VW
    oldVW = VW; VW = 16; A = 232; T = 48
    wgmap(); E("s_lshl_b32 s12, s11, 6")
    srd(40, 34, WS_HH, 2048*2752); srd(44, 28, 0, 1376*1024); srd(48, 34, WS_H, 2*MB); srd(52, 30, 0, 2*MB)
    dma_setup(1024); dma_region(44, 12, 0, 22, 1024)
    load_xt(40, 86, NX, X)
    w_addr(True, 10); E("v_add_u32 v13, 0x10000, v10")
    E("v_lshlrev_b32 v12, 10, v9"); E("v_lshlrev_b32 v5, 3, v4"); E("v_add_u32 v12, v12, v5")
    E("s_lshl_b32 s13, s10, 10"); E("s_lshl_b32 s14, s11, 11"); E("s_add_u32 s13, s13, s14"); E("v_lshlrev_b32 v11, 4, v1")
    E(f"buffer_load_dwordx4 v[248:251], v11, s[48:51], s13 offen"); E(f"buffer_load_dwordx4 v[252:255], v11, s[48:51], s13 offen offset:1024")
    E("s_waitcnt vmcnt(0)"); E("s_barrier")
    items = [((10, 1024*s) if s < 64 else (13, 1024*(s-64))) + (X+4*(s % NX), A) for s in range(86)]
    for i in mfma_items(items, True, lambda i: False, lambda i: i == 0):
        if i + NX < 86:
            s = i + NX; E(f"s_mov_b32 s4, {1024*s}"); E(f"buffer_load_dwordx4 v[{X+4*i}:{X+4*i+3}], v8, s[40:43], s4 offen")
        if i + 1 >= NX and i + 1 < 86: E(f"s_waitcnt vmcnt({85-(i+1)})")
    VW = oldVW
    E("s_nop 15")
    for i in range(8):
        E(f"v_lshlrev_b32 v5, 16, v{248+i}"); E(f"v_and_b32 v6, 0xffff0000, v{248+i}")
        E(f"v_add_f32 v{A+2*i}, v{A+2*i}, v5"); E(f"v_add_f32 v{A+2*i+1}, v{A+2*i+1}, v6")
    pack(A, T)
    for q in range(4): E(f"buffer_store_dwordx2 v[{T+2*q}:{T+2*q+1}], v12, s[52:55], s12 offen offset:{16*q}")
    epilogue_end(n)

k0(); k1(); k2(); k3(); k4(); k5()
hdr = open("cdna_kernels/" + NAME + ".s.ref").read().split("\n")
head = [l for l in hdr if l.startswith(";") and "@launch" not in l and "Override" not in l and "grid=ceil" not in l]
import os
dup = int(os.environ.get("DUP", "-1"))
ll = []
for idx, (k, g, l) in enumerate(kernels):
    ll += [f"; @launch kernel={k} grid=({g},1,1) block=(256,1,1) lds={l}"] * (5 if idx == dup else 1)
if dup == 99: ll = ll + ll
if STAMPK:
    ll = ll + [x for x in ll if STAMPK in x]
txt = head + ll
txt += ['.amdgcn_target "amdgcn-amd-amdhsa--gfx950"', ".text"] + out + ['.section .rodata,"a"']
for k, g, l in kernels:
    txt += [".p2align 6", f".amdhsa_kernel {k}", "  .amdhsa_next_free_vgpr 256", "  .amdhsa_next_free_sgpr 102", "  .amdhsa_accum_offset 256",
            "  .amdhsa_group_segment_fixed_size 0", "  .amdhsa_kernarg_size 80", "  .amdhsa_user_sgpr_count 2",
            "  .amdhsa_user_sgpr_kernarg_segment_ptr 1", "  .amdhsa_system_sgpr_workgroup_id_x 1", ".end_amdhsa_kernel"]
open(os.environ.get("OUT", "cdna_kernels/" + NAME + ".s"), "w").write("\n".join(txt) + "\n")
```

```python
import sys, os
NAME = "sequential_preLN__sliding_block__glu_gated_glu__prompt"
out = []
def E(s): out.append("    " + s)
def L(s): out.append(s + ":")
MB = 1 << 20
WS_Q, WS_K, WS_V, WS_O, WS_H, WS_HH = 0, 2*MB, 4*MB, 6*MB, 8*MB, 10*MB
WS_XN = 16*MB
LOG2E = 1.4426950408889634
import struct
def f2u(f): return struct.unpack("<I", struct.pack("<f", f))[0]

def prologue(name, nwg):
    out.append(".p2align 8"); out.append(f".globl {name}"); out.append(f".type {name},@function"); L(name)
    E(f"s_cmp_ge_u32 s2, {nwg}"); E(f"s_cbranch_scc1 {name}_done")
    E("s_load_dwordx16 s[16:31], s[0:1], 0"); E("s_load_dwordx4 s[32:35], s[0:1], 64")
    E("v_and_b32 v1, 63, v0")
    E("v_lshrrev_b32 v2, 6, v0")
    E("v_and_b32 v3, 31, v0")
    E("v_readfirstlane_b32 s3, v2")
    E("v_bfe_u32 v4, v0, 5, 1")
    E("s_waitcnt lgkmcnt(0)")
STAMPK = os.environ.get("STAMP", "")
nst = [0]
def stamp(name):
    if name != STAMPK: return
    E("s_memtime s[88:89]"); E("s_waitcnt lgkmcnt(0)"); E(f"s_mov_b32 s{90+nst[0]}, s88"); nst[0] += 1
def epilogue_end(name):
    if name == STAMPK:
        stamp(name)
        srd(40, 32, 0, 256)
        E("s_cmp_lg_u32 s2, 8"); E(f"s_cbranch_scc1 {name}_done"); E("s_cmp_lg_u32 s3, 0"); E(f"s_cbranch_scc1 {name}_done")
        srd(40, 32, 0, 256)
        for i in range(nst[0]):
            E(f"s_sub_u32 s4, s{90+i}, s90"); E("v_mov_b32 v5, s4"); E(f"v_mov_b32 v6, {4*i}"); E("buffer_store_dword v5, v6, s[40:43], 0 offen")
    L(f"{name}_done"); E("s_endpgm")
def srd(d, base, off, size):
    if off >= 0:
        E(f"s_add_u32 s{d}, s{base}, {off}"); E(f"s_addc_u32 s{d+1}, s{base+1}, 0")
    else:
        E(f"s_sub_u32 s{d}, s{base}, {-off}"); E(f"s_subb_u32 s{d+1}, s{base+1}, 0")
    E(f"s_mov_b32 s{d+2}, {size}"); E(f"s_mov_b32 s{d+3}, 0x00020000")

VX, VW, ACC0, ACC1, VT = 16, 144, 176, 192, 208

def w_addr(perm, vdst, RB=64):
    E("v_bfe_u32 v5, v0, 2, 2")
    E(f"v_lshlrev_b32 v6, {2 if perm else 3}, v4")
    E("v_add_u32 v5, v5, v6")
    E(f"v_mul_u32_u24 v5, {RB}, v5")
    E("v_bfe_u32 v6, v0, 4, 1")
    E("v_lshlrev_b32 v6, 5, v6")
    E("v_add_u32 v5, v5, v6")
    E("v_and_b32 v6, 3, v0")
    E("v_lshlrev_b32 v6, 3, v6")
    E(f"v_add_u32 v{vdst}, v5, v6")

def dma_setup(ldw):
    E("v_lshrrev_b32 v5, 2, v0"); E(f"s_mov_b32 s4, {ldw}"); E("v_mul_lo_u32 v5, v5, s4")
    E("v_and_b32 v6, 3, v0"); E("v_lshlrev_b32 v6, 4, v6"); E("v_add_u32 v7, v5, v6")
    E("s_lshl_b32 s5, s3, 10")
def dma_region(srdreg, scol, ldsbase, nj, ldw):
    E(f"s_mov_b32 s6, s{scol}"); E(f"s_add_u32 s7, s5, {ldsbase}")
    for j in range(nj):
        E("s_mov_b32 m0, s7");
        if j + 1 < nj: E("s_add_u32 s7, s7, 4096")
        else: E("s_nop 0")
        E(f"buffer_load_dwordx4 v7, s[{srdreg}:{srdreg+3}], s6 offen lds")
        if j + 1 < nj: E(f"s_add_u32 s6, s6, {64*ldw}")

def dma_list(srdreg, scolreg, coladd, ldsbase, nj, ldw):
    r = []
    for j in range(nj):
        r.append([f"s_add_u32 s6, s{scolreg}, {coladd + j*64*ldw}", f"s_add_u32 m0, s5, {ldsbase + j*4096}", "s_nop 0",
                  f"buffer_load_dwordx4 v7, s[{srdreg}:{srdreg+3}], s6 offen lds"])
    return r
def dma_setup_w(ldw):
    E("s_lshl_b32 s5, s3, 10"); E("s_mov_b32 s4, 0xAAAB"); E(f"s_mov_b32 s6, {ldw}")
    for t, vr in enumerate((7, 14, 15)):
        E(f"v_add_u32 v5, {256*t}, v0"); E("v_mul_lo_u32 v6, v5, s4"); E("v_lshrrev_b32 v6, 19, v6")
        E("v_mul_u32_u24 v2, 12, v6"); E("v_sub_u32 v5, v5, v2"); E("v_lshlrev_b32 v5, 4, v5")
        E("v_mul_lo_u32 v6, v6, s6"); E(f"v_add_u32 v{vr}, v5, v6")
def dma_list_w(srdreg, scolreg, ldsbase, row0, nrows, ldw):
    r = []
    for j in range(nrows*12//256):
        r.append([f"s_add_u32 s6, s{scolreg}, {(row0 + (j//3)*64)*ldw}", f"s_add_u32 m0, s5, {ldsbase + j*4096}", "s_nop 0",
                  f"buffer_load_dwordx4 v{(7,14,15)[j%3]}, s[{srdreg}:{srdreg+3}], s6 offen lds"])
    return r
def mfma_items(items, perm, swap_of, first_of, RB=64):
    d2 = 8*RB if perm else 4*RB
    n = len(items); D = 6
    def rd(i):
        va, off, _, _ = items[i]; w = VW + 4 * (i % 8)
        E(f"ds_read_b64_tr_b16 v[{w}:{w+1}], v{va} offset:{off}")
        E(f"ds_read_b64_tr_b16 v[{w+2}:{w+3}], v{va} offset:{off+d2}")
    for i in range(min(D, n)): rd(i)
    for i in range(n):
        va, off, x, acc = items[i][:4]; w = VW + 4 * (i % 8)
        E(f"s_waitcnt lgkmcnt({2*(min(i+D-1, n-1)-i)})")
        c = "0" if first_of(i) else f"v[{acc}:{acc+15}]"
        if swap_of(i): E(f"v_mfma_f32_32x32x16_bf16 v[{acc}:{acc+15}], v[{x}:{x+3}], v[{w}:{w+3}], {c}")
        else:          E(f"v_mfma_f32_32x32x16_bf16 v[{acc}:{acc+15}], v[{w}:{w+3}], v[{x}:{x+3}], {c}")
        if i + D < n: rd(i + D)
        yield i

def ln_regs(ndma, inter=[]):
    E("s_mov_b32 s8, 0x3f803f80")
    for q in range(4): E(f"v_mov_b32 v{VT+q}, 0"); E(f"v_mov_b32 v{VT+4+q}, 0")
    inter = list(inter); nd = 0
    for g in range(4):
        E(f"s_waitcnt vmcnt({min(63, 24-8*g+nd)})")
        for r in range(32*g, 32*g+32):
            if inter and r % 8 == 4:
                for x in inter.pop(0): E(x)
                nd += 1
            E(f"v_dot2_f32_bf16 v{VT+(r&3)}, v{VX+r}, s8, v{VT+(r&3)}")
            E(f"v_dot2_f32_bf16 v{VT+4+(r&3)}, v{VX+r}, v{VX+r}, v{VT+4+(r&3)}")
    E("s_nop 3")
    E(f"v_add_f32 v{VT}, v{VT}, v{VT+1}"); E(f"v_add_f32 v{VT+2}, v{VT+2}, v{VT+3}")
    E(f"v_add_f32 v{VT+4}, v{VT+4}, v{VT+5}"); E(f"v_add_f32 v{VT+6}, v{VT+6}, v{VT+7}")
    E(f"v_add_f32 v{VT}, v{VT}, v{VT+2}"); E(f"v_add_f32 v{VT+4}, v{VT+4}, v{VT+6}")
    E(f"v_mov_b32 v{VT+1}, v{VT}"); E(f"v_mov_b32 v{VT+5}, v{VT+4}")
    E("s_nop 1")
    E(f"v_permlane32_swap_b32 v{VT}, v{VT+1}"); E(f"v_permlane32_swap_b32 v{VT+4}, v{VT+5}")
    E("s_nop 1")
    E(f"v_add_f32 v{VT}, v{VT}, v{VT+1}"); E(f"v_add_f32 v{VT+4}, v{VT+4}, v{VT+5}")
    E(f"v_mul_f32 v{VT}, {f2u(1/512):#x}, v{VT}")
    E(f"v_mul_f32 v{VT+4}, {f2u(1/512):#x}, v{VT+4}")
    E(f"v_fma_f32 v{VT+4}, -v{VT}, v{VT}, v{VT+4}")
    E(f"v_max_f32 v{VT+4}, 0, v{VT+4}")
    E(f"v_add_f32 v{VT+4}, {f2u(1e-5):#x}, v{VT+4}")
    E(f"v_rsq_f32 v{VT+4}, v{VT+4}")
    E("s_nop 0")
    E(f"v_mul_f32 v{VT}, v{VT}, v{VT+4}")
    E(f"v_sub_f32 v{VT}, 0, v{VT}")
    for r in range(128):
        if inter and r % 5 == 0:
            for x in inter.pop(0): E(x)
        a, b = VT + 8 + 2 * (r & 3), VT + 9 + 2 * (r & 3)
        E(f"v_lshlrev_b32 v{a}, 16, v{VX+r}"); E(f"v_and_b32 v{b}, 0xffff0000, v{VX+r}")
        E(f"v_fma_f32 v{a}, v{a}, v{VT+4}, v{VT}"); E(f"v_fma_f32 v{b}, v{b}, v{VT+4}, v{VT}")
        E(f"v_cvt_pk_bf16_f32 v{VX+r}, v{a}, v{b}")

def load_x(srdreg, ld, nsteps, base=VX):
    E("s_lshl_b32 s10, s3, 5"); E("s_add_u32 s10, s10, s9")
    E("v_add_u32 v9, s10, v3"); E(f"s_mov_b32 s4, {ld}"); E("v_mul_lo_u32 v8, v9, s4")
    E("v_lshlrev_b32 v5, 4, v4"); E("v_add_u32 v8, v8, v5")
    for s in range(nsteps):
        E(f"buffer_load_dwordx4 v[{base+4*s}:{base+4*s+3}], v8, s[{srdreg}:{srdreg+3}], 0 offen offset:{32*s}")
def wgmap(a=2):
    if a == 2:
        E("s_and_b32 s9, s2, 7"); E("s_lshl_b32 s9, s9, 1"); E("s_lshr_b32 s11, s2, 7"); E("s_add_u32 s9, s9, s11"); E("s_lshl_b32 s9, s9, 7")
        E("s_lshr_b32 s11, s2, 3"); E("s_and_b32 s11, s11, 15")
    else:
        E("s_bfe_u32 s9, s2, 0x20001"); E("s_lshl_b32 s9, s9, 2"); E("s_lshr_b32 s11, s2, 6"); E("s_add_u32 s9, s9, s11"); E("s_lshl_b32 s9, s9, 7")
        E("s_bfe_u32 s11, s2, 0x30003"); E("s_and_b32 s4, s2, 1"); E("s_lshl_b32 s4, s4, 3"); E("s_add_u32 s11, s11, s4")
def load_xt(srdreg, nsteps_total, nsteps, base=VX):
    E("s_lshl_b32 s10, s3, 5"); E("s_add_u32 s10, s10, s9"); E("v_add_u32 v9, s10, v3")
    E("s_lshr_b32 s4, s10, 5"); E(f"s_mul_i32 s4, s4, {nsteps_total*1024}")
    E("v_lshlrev_b32 v8, 4, v1"); E("v_add_u32 v8, s4, v8")
    for s in range(nsteps):
        if s % 4 == 0: E(f"s_mov_b32 s4, {1024*s}")
        E(f"buffer_load_dwordx4 v[{base+4*s}:{base+4*s+3}], v8, s[{srdreg}:{srdreg+3}], s4 offen offset:{1024*(s%4)}")
def pack(acc, dst):
    for i in range(8): E(f"v_cvt_pk_bf16_f32 v{dst+i}, v{acc+2*i}, v{acc+2*i+1}")

kernels = []
def k0():
    n = "k0_ln_kernel"; kernels.append((n, 256, 0)); prologue(n, 256)
    E("s_and_b32 s9, s2, 7"); E("s_lshl_b32 s9, s9, 8"); E("s_lshr_b32 s10, s2, 3"); E("s_lshl_b32 s10, s10, 3"); E("s_add_u32 s9, s9, s10")
    E("s_lshl_b32 s10, s3, 1"); E("s_add_u32 s9, s9, s10")
    srd(40, 16, 0, 2*MB); srd(44, 34, WS_XN, 2*MB)
    E("s_lshl_b32 s10, s9, 10"); E("v_lshlrev_b32 v5, 4, v1")
    E("buffer_load_dwordx4 v[16:19], v5, s[40:43], s10 offen"); E("buffer_load_dwordx4 v[20:23], v5, s[40:43], s10 offen offset:1024")
    E("s_lshr_b32 s11, s9, 5"); E("s_lshl_b32 s11, s11, 15"); E("s_and_b32 s12, s9, 31"); E("s_lshl_b32 s12, s12, 4"); E("s_add_u32 s11, s11, s12")
    E("v_lshrrev_b32 v6, 1, v1"); E("v_lshlrev_b32 v6, 10, v6"); E("v_and_b32 v7, 1, v1"); E("v_lshlrev_b32 v7, 9, v7"); E("v_add_u32 v6, v6, v7")
    E("s_mov_b32 s8, 0x3f803f80")
    for q in range(4): E(f"v_mov_b32 v{24+q}, 0")
    if os.environ.get("PF", "1") == "1":
        E("s_lshl_b32 s12, s2, 12"); E("v_lshlrev_b32 v32, 4, v0"); E("v_add_u32 v32, s12, v32"); E("v_add_u32 v33, 0x100000, v32")
        k = 0
        for base, size in ((18, 512*3072), (20, 512*1024), (24, 512*2752), (26, 512*2752), (28, 1376*1024)):
            srd(48, base, 0, size)
            E(f"buffer_load_dwordx4 v[{36+4*k}:{39+4*k}], v32, s[48:51], 0 offen"); k += 1
            if size > MB: E(f"buffer_load_dwordx4 v[{36+4*k}:{39+4*k}], v33, s[48:51], 0 offen"); k += 1
        npf = int(os.environ.get("NPF", "0"))
        if npf:
            E("s_getpc_b64 s[60:61]"); L("k0_pc")
            E("v_lshlrev_b32 v34, 4, v0")
            for i in range(npf):
                E(f"global_load_dwordx4 v[{72+4*i}:{75+4*i}], v34, s[60:61]"); E("v_add_u32 v34, 0x1000, v34")
        E(f"s_waitcnt vmcnt({9+npf})")
    else:
        E("s_waitcnt vmcnt(0)")
    for r in range(2):
        for i in range(4):
            E(f"v_dot2_f32_bf16 v{24+2*r}, v{16+4*r+i}, s8, v{24+2*r}"); E(f"v_dot2_f32_bf16 v{25+2*r}, v{16+4*r+i}, v{16+4*r+i}, v{25+2*r}")
    E("s_nop 3")
    for off in (0x041F, 0x081F, 0x101F, 0x201F, 0x401F):
        for q in range(4): E(f"ds_swizzle_b32 v{28+q}, v{24+q} offset:{off:#x}")
        E("s_waitcnt lgkmcnt(0)")
        for q in range(4): E(f"v_add_f32 v{24+q}, v{24+q}, v{28+q}")
    for q in range(4): E(f"v_mov_b32 v{28+q}, v{24+q}")
    E("s_nop 1")
    for q in range(4): E(f"v_permlane32_swap_b32 v{24+q}, v{28+q}")
    E("s_nop 1")
    for q in range(4): E(f"v_add_f32 v{24+q}, v{24+q}, v{28+q}")
    for r in range(2):
        a, b = 24+2*r, 25+2*r
        E(f"v_mul_f32 v{a}, {f2u(1/512):#x}, v{a}"); E(f"v_mul_f32 v{b}, {f2u(1/512):#x}, v{b}")
        E(f"v_fma_f32 v{b}, -v{a}, v{a}, v{b}"); E(f"v_max_f32 v{b}, 0, v{b}"); E(f"v_add_f32 v{b}, {f2u(1e-5):#x}, v{b}")
        E(f"v_rsq_f32 v{b}, v{b}"); E("s_nop 0"); E(f"v_mul_f32 v{a}, v{a}, v{b}"); E(f"v_sub_f32 v{a}, 0, v{a}")
        for i in range(4):
            x = 16+4*r+i
            E(f"v_lshlrev_b32 v30, 16, v{x}"); E(f"v_and_b32 v31, 0xffff0000, v{x}")
            E(f"v_fma_f32 v30, v30, v{b}, v{a}"); E(f"v_fma_f32 v31, v31, v{b}, v{a}"); E(f"v_cvt_pk_bf16_f32 v{x}, v30, v31")
        E(f"buffer_store_dwordx4 v[{16+4*r}:{19+4*r}], v6, s[44:47], s11 offen offset:{16*r}")
    epilogue_end(n)

SC = " sc1"
def lanes():
    E("v_and_b32 v1, 63, v0"); E("v_and_b32 v3, 31, v0"); E("v_bfe_u32 v4, v0, 5, 1")
def signal(n, idx):
    E("s_waitcnt vmcnt(0)"); E("s_barrier")
    E("s_cmp_lg_u32 s3, 0"); E(f"s_cbranch_scc1 {n}_sig{idx}")
    E("s_lshr_b32 s4, s9, 5"); E(f"s_add_u32 s4, s4, {idx*64}")
    E("v_mov_b32 v5, 1"); E("v_mov_b32 v6, s4"); E("s_mov_b64 exec, 1")
    E("buffer_atomic_add v5, v6, s[56:59], 0 offen"); E("s_mov_b64 exec, -1")
    L(f"{n}_sig{idx}")
def wait(n, idx, back=0):
    for b in range(back + 1):
        E("s_lshr_b32 s4, s9, 5"); E(f"s_sub_i32 s4, s4, {4*b}"); E("s_max_i32 s4, s4, 0"); E(f"s_add_u32 s4, s4, {idx*64}")
        E("v_mov_b32 v6, s4"); E("s_mov_b32 s6, 0")
        L(f"{n}_w{idx}_{b}")
        E("buffer_load_dword v5, v6, s[56:59], 0 offen sc1"); E("s_waitcnt vmcnt(0)")
        E("v_readfirstlane_b32 s4, v5"); E("s_add_u32 s6, s6, 1"); E("s_cmp_ge_u32 s4, 16"); E(f"s_cbranch_scc1 {n}_wd{idx}_{b}")
        E("s_sleep 1"); E("s_cmp_lt_u32 s6, 0x4000"); E(f"s_cbranch_scc1 {n}_w{idx}_{b}")
        L(f"{n}_wd{idx}_{b}")
def load_xt2(srdreg, nsteps_total, nsteps, base=VX, sc=SC):
    E("s_lshr_b32 s4, s10, 5"); E(f"s_mul_i32 s4, s4, {nsteps_total*1024}")
    E("v_lshlrev_b32 v8, 4, v1"); E("v_add_u32 v8, s4, v8")
    for s in range(nsteps):
        if s % 4 == 0: E(f"s_mov_b32 s4, {1024*s}")
        E(f"buffer_load_dwordx4 v[{base+4*s}:{base+4*s+3}], v8, s[{srdreg}:{srdreg+3}], s4 offen offset:{1024*(s%4)}{sc}")
def issue(groups):
    for g in groups:
        for x in g: E(x)

def mega():
    global VW
    n = "km_block_kernel"; kernels.append((n, 256, 163840)); prologue(n, 256)
    wgmap(2)
    E("s_mov_b32 s61, s11")
    E("s_lshl_b32 s10, s3, 5"); E("s_add_u32 s10, s10, s9")
    srd(56, 32, 0, 256)
    E("s_mul_i32 s11, s61, 3")
    srd(40, 34, WS_XN, 2*MB); srd(44, 18, 0, 512*3072); srd(48, 34, 0, 6*MB)
    dma_setup_w(3072)
    E("s_lshl_b32 s60, s11, 6")
    allw = dma_list_w(44, 60, 0, 0, 512, 3072)
    issue(allw[:8]); load_xt2(40, 32, 32, VX, ""); issue(allw[8:])
    E("v_add_u32 v9, s10, v3")
    w_addr(False, 10, 192); E("v_add_u32 v13, 0xc000, v10")
    E("v_lshlrev_b32 v11, 5, v9"); E("v_lshlrev_b32 v5, 4, v4"); E("v_add_u32 v11, v11, v5")
    E("v_lshlrev_b32 v12, 12, v3"); E("v_lshlrev_b32 v5, 4, v4"); E("v_add_u32 v12, v12, v5")
    E("s_lshl_b32 s13, s10, 1"); E("v_add_u32 v12, s13, v12")
    E("s_waitcnt vmcnt(0)"); E("s_barrier")
    for j in range(3):
        E(f"s_add_u32 s12, s11, {j}"); E("s_cmp_ge_u32 s12, 32"); E(f"s_cbranch_scc1 {n}_v{j}")
        for sw in (False, True):
            if sw: L(f"{n}_v{j}")
            items = [((10, 3072*s + 64*j) if s < 16 else (13, 3072*(s-16) + 64*j)) + (VX+4*s, ACC0) for s in range(32)]
            for i in mfma_items(items, False, lambda i: sw, lambda i: i == 0, 192): pass
            E("s_nop 15"); pack(ACC0, VT)
            if not sw:
                E("s_lshr_b32 s14, s12, 4"); E("s_lshl_b32 s14, s14, 21"); E("s_and_b32 s15, s12, 15"); E("s_lshl_b32 s15, s15, 17")
                E("s_add_u32 s14, s14, s15"); E("s_add_u32 s15, s14, 65536")
                E(f"buffer_store_dwordx4 v[{VT}:{VT+3}], v11, s[48:51], s14 offen{SC}")
                E(f"buffer_store_dwordx4 v[{VT+4}:{VT+7}], v11, s[48:51], s15 offen{SC}")
                E(f"s_branch {n}_e{j}")
            else:
                E("s_sub_u32 s14, s12, 32"); E("s_lshl_b32 s14, s14, 17"); E(f"s_add_u32 s14, s14, {WS_V}")
                E(f"buffer_store_dwordx4 v[{VT}:{VT+3}], v12, s[48:51], s14 offen{SC}")
                E(f"buffer_store_dwordx4 v[{VT+4}:{VT+7}], v12, s[48:51], s14 offen offset:32{SC}")
        L(f"{n}_e{j}"); E("s_nop 1")
    signal(n, 0)
    srd(44, 20, 0, 512*1024); srd(64, 24, 0, 512*2752); srd(68, 26, 0, 512*2752)
    E("s_lshl_b32 s62, s61, 6")
    E("s_mul_i32 s63, s61, 86"); E("s_and_b32 s63, s63, 0xfffffff0"); E("s_lshl_b32 s63, s63, 1")
    dma_setup(1024); issue(dma_list(44, 62, 0, 0, 8, 1024))
    dma_setup(2752)
    slotof = {0: 1, 1: 2, 2: 3, 3: 4, 4: 0, 5: 1}
    def regl(r): return dma_list(64 if r % 2 == 0 else 68, 63, 64*(r//2), slotof[r]*32768, 8, 2752)
    for r in range(4): issue(regl(r))
    wait(n, 0, 2)
    Q, KV, S, O = 16, 20, 96, 240
    srd(40, 34, WS_Q, 2*MB); srd(44, 34, WS_K - 8192, 2*MB + 8192); srd(48, 34, WS_V - 512, 2*MB + 512); srd(52, 34, WS_O, 2*MB)
    E("v_lshlrev_b32 v5, 2, v4"); E("v_sub_u32 v11, v3, v5")
    for i in range(16):
        c = 8*(i >> 2) + (i & 3)
        E(f"v_cmp_le_i32 s[{72+i}:{73+i}], {c}, v11") if False else None
    E("s_sub_i32 s15, 256, s10"); E("s_max_i32 s15, s15, 0")
    E("s_lshl_b32 s64, s15, 5") if False else None
    for hh in range(2):
        E(f"s_lshl_b32 s11, s61, 1"); E(f"s_add_u32 s11, s11, {hh}")
        E("s_lshl_b32 s12, s11, 11"); E("s_add_u32 s12, s12, s10")
        E("v_lshlrev_b32 v6, 4, v4")
        E("v_add_u32 v5, s12, v3"); E("v_lshlrev_b32 v5, 5, v5"); E("v_add_u32 v8, v5, v6")
        E(f"buffer_load_dwordx4 v[{Q}:{Q+3}], v8, s[40:43], 0 offen{SC}")
        E("s_lshl_b32 s14, s15, 5")
        for kb in range(9):
            E(f"s_max_u32 s13, s14, {kb*1024}")
            E(f"buffer_load_dwordx4 v[{KV+4*kb}:{KV+4*kb+3}], v8, s[44:47], s13 offen{SC}")
        E("v_and_b32 v5, 15, v0"); E("s_lshl_b32 s13, s11, 4"); E("v_add_u32 v5, s13, v5"); E("v_lshlrev_b32 v5, 12, v5")
        E("s_lshl_b32 s13, s10, 1"); E("v_add_u32 v5, s13, v5"); E("v_add_u32 v9, v5, v6")
        E("s_add_u32 s13, s10, s11"); E("s_lshl_b32 s13, s13, 10"); E("v_lshlrev_b32 v5, 4, v1"); E("v_add_u32 v10, s13, v5")
        E(f"v_mov_b32 v12, {f2u(-1e30):#x}")
        for kb in range(9):
            E(f"s_waitcnt vmcnt({8-kb})")
            E(f"v_mfma_f32_32x32x16_bf16 v[{S+16*kb}:{S+16*kb+15}], v[{KV+4*kb}:{KV+4*kb+3}], v[{Q}:{Q+3}], 0")
        E("s_nop 3")
        for r in range(72): E(f"v_mov_b32 v{KV+r}, 0x3f803f80")
        E("s_mov_b32 s12, 0x0000ffff"); E("s_mov_b32 s13, 0x0000ffff"); E("s_mov_b64 exec, s[12:13]"); E("s_lshl_b32 s14, s15, 1")
        for t in range(18):
            E(f"s_max_u32 s13, s14, {32*t}")
            E(f"buffer_load_dwordx4 v[{KV+4*t}:{KV+4*t+3}], v9, s[48:51], s13 offen{SC}")
        E("s_mov_b64 exec, -1")
        for i in range(16):
            c = 8*(i >> 2) + (i & 3)
            E(f"v_cmp_le_i32 vcc, {c}, v11"); E("s_nop 1")
            E(f"v_cndmask_b32 v{S+128+i}, v12, v{S+128+i}, vcc"); E(f"v_cndmask_b32 v{S+i}, v{S+i}, v12, vcc")
        for kb in range(8):
            E(f"s_cmp_ge_u32 s10, {256-32*kb}"); E(f"s_cbranch_scc1 {n}_ok{hh}_{kb}")
            for i in range(16): E(f"v_mov_b32 v{S+16*kb+i}, v12")
            L(f"{n}_ok{hh}_{kb}")
        for c in range(4): E(f"v_max_f32 v{12+c}, v{S+c}, v{S+4+c}")
        for r in range(8, 144, 8):
            for c in range(4): E(f"v_max3_f32 v{12+c}, v{12+c}, v{S+r+c}, v{S+r+4+c}")
        E("v_max_f32 v12, v12, v13"); E("v_max_f32 v14, v14, v15"); E("v_max_f32 v12, v12, v14"); E("v_mov_b32 v13, v12")
        E("s_nop 1"); E("v_permlane32_swap_b32 v12, v13"); E("s_nop 1"); E("v_max_f32 v12, v12, v13")
        E(f"s_mov_b32 s13, {f2u(0.25*LOG2E):#x}"); E("v_mul_f32 v12, s13, v12")
        for r in range(0, 144, 4):
            for c in range(4): E(f"v_fma_f32 v{S+r+c}, v{S+r+c}, s13, -v12")
            for c in range(4): E(f"v_exp_f32 v{S+r+c}, v{S+r+c}")
            if r >= 4:
                p = r - 4; d = S + 16*(p//16) + (p % 16)//2
                E(f"v_cvt_pk_bf16_f32 v{d}, v{S+p}, v{S+p+1}"); E(f"v_cvt_pk_bf16_f32 v{d+1}, v{S+p+2}, v{S+p+3}")
        p = 140; d = S + 16*(p//16) + (p % 16)//2
        E("s_nop 0"); E(f"v_cvt_pk_bf16_f32 v{d}, v{S+p}, v{S+p+1}"); E(f"v_cvt_pk_bf16_f32 v{d+1}, v{S+p+2}, v{S+p+3}")
        E("s_nop 1")
        for t in range(18):
            E(f"s_waitcnt vmcnt({17-t})")
            b = S + 16*(t//2) + 4*(t % 2)
            E(f"v_mfma_f32_32x32x16_bf16 v[{O}:{O+15}], v[{KV+4*t}:{KV+4*t+3}], v[{b}:{b+3}], {'0' if t == 0 else f'v[{O}:{O+15}]'}")
        E("s_nop 15"); E(f"v_rcp_f32 v12, v{O+8}"); E("s_nop 0")
        for i in range(8): E(f"v_mul_f32 v{O+i}, v{O+i}, v12")
        for i in range(4): E(f"v_cvt_pk_bf16_f32 v{Q+i}, v{O+2*i}, v{O+2*i+1}")
        E(f"buffer_store_dwordx4 v[{Q}:{Q+3}], v10, s[52:55], 0 offen{SC}")
        E("s_nop 1")
    signal(n, 1)
    wait(n, 1)
    srd(40, 34, WS_O, 2*MB); srd(48, 34, WS_H, 2*MB); srd(52, 16, 0, 2*MB)
    load_xt2(40, 32, 32)
    E("v_add_u32 v9, s10, v3")
    w_addr(True, 10)
    E("v_lshlrev_b32 v12, 10, v9"); E("v_lshlrev_b32 v5, 3, v4"); E("v_add_u32 v12, v12, v5"); E("s_lshl_b32 s13, s61, 11")
    for q in range(4): E(f"buffer_load_dwordx2 v[{VT+8+2*q}:{VT+9+2*q}], v12, s[52:55], s62 offen offset:{16*q}")
    E("s_waitcnt vmcnt(0)"); E("s_barrier")
    items = [(10, 1024*s, VX+4*s, ACC0) for s in range(32)]
    for _ in mfma_items(items, True, lambda i: False, lambda i: i == 0): pass
    E("s_nop 15")
    for i in range(8):
        E(f"v_lshlrev_b32 v5, 16, v{VT+8+i}"); E(f"v_and_b32 v6, 0xffff0000, v{VT+8+i}")
        E(f"v_add_f32 v{ACC0+2*i}, v{ACC0+2*i}, v5"); E(f"v_add_f32 v{ACC0+2*i+1}, v{ACC0+2*i+1}, v6")
    pack(ACC0, VT)
    E(f"buffer_store_dwordx4 v[{VT}:{VT+3}], v8, s[48:51], s13 offen{SC}")
    E(f"buffer_store_dwordx4 v[{VT+4}:{VT+7}], v8, s[48:51], s13 offen offset:1024{SC}")
    signal(n, 2)
    issue(regl(4))
    wait(n, 2)
    srd(40, 34, WS_H, 2*MB); srd(52, 34, WS_HH, 2048*2752)
    load_xt2(40, 32, 32)
    E("s_lshr_b32 s4, s10, 5"); E(f"s_mul_i32 s4, s4, {86*1024}"); E("v_lshlrev_b32 v11, 4, v1"); E("v_add_u32 v11, s4, v11")
    ln_regs(0)
    E(f"s_mov_b32 s13, {f2u(-LOG2E):#x}")
    E("s_barrier")
    for j in range(3):
        sg, su = slotof[2*j]*32768, slotof[2*j+1]*32768
        E(f"v_add_u32 v13, {sg}, v10"); E(f"v_add_u32 v14, {su}, v10")
        items = []
        for s in range(32): items += [(13, 1024*s, VX+4*s, ACC0), (14, 1024*s, VX+4*s, ACC1)]
        for _ in mfma_items(items, True, lambda i: False, lambda i: i < 2): pass
        if j == 0: E("s_barrier"); issue(regl(5))
        if j == 1: E("s_waitcnt vmcnt(2)"); E("s_barrier")
        E("s_nop 15")
        for i in range(16): E(f"v_mul_f32 v{ACC0+i}, s13, v{ACC0+i}")
        for i in range(16): E(f"v_exp_f32 v{ACC0+i}, v{ACC0+i}")
        for i in range(16): E(f"v_add_f32 v{ACC0+i}, 1.0, v{ACC0+i}")
        for i in range(16): E(f"v_rcp_f32 v{ACC0+i}, v{ACC0+i}")
        for i in range(16): E(f"v_mul_f32 v{ACC0+i}, v{ACC0+i}, v{ACC1+i}")
        pack(ACC0, VT)
        E(f"s_add_u32 s12, s63, {64*j}"); E("s_lshl_b32 s12, s12, 5")
        E(f"buffer_store_dwordx4 v[{VT}:{VT+3}], v11, s[52:55], s12 offen{SC}")
        E(f"buffer_store_dwordx4 v[{VT+4}:{VT+7}], v11, s[52:55], s12 offen offset:1024{SC}")
        E("s_nop 1")
    signal(n, 3)
    NX = 44; X = 56; oldVW = VW; VW = 16; A = 232; T = 48
    srd(44, 28, 0, 1376*1024)
    dma_setup(1024); issue(dma_list(44, 62, 0, 0, 22, 1024))
    wait(n, 3)
    srd(40, 34, WS_HH, 2048*2752); srd(48, 34, WS_H, 2*MB); srd(52, 30, 0, 2*MB)
    load_xt2(40, 86, NX, X)
    E("v_add_u32 v13, 0x10000, v10"); E("v_add_u32 v9, s10, v3")
    E("v_lshlrev_b32 v12, 10, v9"); E("v_lshlrev_b32 v5, 3, v4"); E("v_add_u32 v12, v12, v5")
    E("s_lshl_b32 s13, s10, 10"); E("s_lshl_b32 s14, s61, 11"); E("s_add_u32 s13, s13, s14"); E("v_lshlrev_b32 v11, 4, v1")
    E(f"buffer_load_dwordx4 v[248:251], v11, s[48:51], s13 offen{SC}"); E(f"buffer_load_dwordx4 v[252:255], v11, s[48:51], s13 offen offset:1024{SC}")
    E("s_waitcnt vmcnt(0)"); E("s_barrier")
    items = [((10, 1024*s) if s < 64 else (13, 1024*(s-64))) + (X+4*(s % NX), A) for s in range(86)]
    for i in mfma_items(items, True, lambda i: False, lambda i: i == 0):
        if i + NX < 86:
            s = i + NX; E(f"s_mov_b32 s4, {1024*s}"); E(f"buffer_load_dwordx4 v[{X+4*i}:{X+4*i+3}], v8, s[40:43], s4 offen{SC}")
        if i + 1 >= NX and i + 1 < 86: E(f"s_waitcnt vmcnt({85-(i+1)})")
    VW = oldVW
    E("s_nop 15")
    for i in range(8):
        E(f"v_lshlrev_b32 v5, 16, v{248+i}"); E(f"v_and_b32 v6, 0xffff0000, v{248+i}")
        E(f"v_add_f32 v{A+2*i}, v{A+2*i}, v5"); E(f"v_add_f32 v{A+2*i+1}, v{A+2*i+1}, v6")
    pack(A, T)
    for q in range(4): E(f"buffer_store_dwordx2 v[{T+2*q}:{T+2*q+1}], v12, s[52:55], s62 offen offset:{16*q}")
    epilogue_end(n)

k0(); mega()
hdr = open("cdna_kernels/" + NAME + ".s.ref").read().split("\n")
head = [l for l in hdr if l.startswith(";") and "@launch" not in l and "Override" not in l and "grid=ceil" not in l]
import os
dup = int(os.environ.get("DUP", "-1"))
ll = []
for idx, (k, g, l) in enumerate(kernels):
    ll += [f"; @launch kernel={k} grid=({g},1,1) block=(256,1,1) lds={l}"] * (5 if idx == dup else 1)
if dup == 99: ll = ll + ll
if STAMPK:
    ll = ll + [x for x in ll if STAMPK in x]
txt = head + ll
txt += ['.amdgcn_target "amdgcn-amd-amdhsa--gfx950"', ".text"] + out + ['.section .rodata,"a"']
for k, g, l in kernels:
    txt += [".p2align 6", f".amdhsa_kernel {k}", "  .amdhsa_next_free_vgpr 256", "  .amdhsa_next_free_sgpr 102", "  .amdhsa_accum_offset 256",
            "  .amdhsa_group_segment_fixed_size 0", "  .amdhsa_kernarg_size 80", "  .amdhsa_user_sgpr_count 2",
            "  .amdhsa_user_sgpr_kernarg_segment_ptr 1", "  .amdhsa_system_sgpr_workgroup_id_x 1", ".end_amdhsa_kernel"]
open(os.environ.get("OUT", "cdna_kernels/" + NAME + ".s"), "w").write("\n".join(txt) + "\n")
```

```python
import sys, os
NAME = "sequential_preLN__sliding_block__glu_gated_glu__prompt"
out = []
def E(s): out.append("    " + s)
def L(s): out.append(s + ":")
MB = 1 << 20
WS_Q, WS_K, WS_V, WS_O, WS_H, WS_HH = 0, 2*MB, 4*MB, 6*MB, 8*MB, 10*MB
WS_XN = 16*MB
LOG2E = 1.4426950408889634
import struct
def f2u(f): return struct.unpack("<I", struct.pack("<f", f))[0]

def prologue(name, nwg):
    out.append(".p2align 8"); out.append(f".globl {name}"); out.append(f".type {name},@function"); L(name)
    E(f"s_cmp_ge_u32 s2, {nwg}"); E(f"s_cbranch_scc1 {name}_done")
    E("s_load_dwordx16 s[16:31], s[0:1], 0"); E("s_load_dwordx4 s[32:35], s[0:1], 64")
    E("v_and_b32 v1, 63, v0")
    E("v_lshrrev_b32 v2, 6, v0")
    E("v_and_b32 v3, 31, v0")
    E("v_readfirstlane_b32 s3, v2")
    E("v_bfe_u32 v4, v0, 5, 1")
    E("s_waitcnt lgkmcnt(0)")
STAMPK = os.environ.get("STAMP", "")
nst = [0]
def stamp(name):
    if name != STAMPK: return
    E("s_memtime s[74:75]"); E("s_waitcnt lgkmcnt(0)"); E(f"s_mov_b32 s{76+nst[0]}, s74"); nst[0] += 1
def epilogue_end(name):
    if name == STAMPK:
        stamp(name)
        srd(40, 32, 0, 256)
        E("s_cmp_lg_u32 s2, 8"); E(f"s_cbranch_scc1 {name}_done"); E("s_cmp_lg_u32 s3, 0"); E(f"s_cbranch_scc1 {name}_done")
        srd(40, 32, 0, 256)
        for i in range(nst[0]):
            E(f"s_sub_u32 s4, s{76+i}, s76"); E("v_mov_b32 v5, s4"); E(f"v_mov_b32 v6, {4*i}"); E("buffer_store_dword v5, v6, s[40:43], 0 offen")
    L(f"{name}_done"); E("s_endpgm")
def srd(d, base, off, size):
    if off >= 0:
        E(f"s_add_u32 s{d}, s{base}, {off}"); E(f"s_addc_u32 s{d+1}, s{base+1}, 0")
    else:
        E(f"s_sub_u32 s{d}, s{base}, {-off}"); E(f"s_subb_u32 s{d+1}, s{base+1}, 0")
    E(f"s_mov_b32 s{d+2}, {size}"); E(f"s_mov_b32 s{d+3}, 0x00020000")

VX, VW, ACC0, ACC1, VT = 16, 144, 176, 192, 208

def w_addr(perm, vdst, RB=64):
    E("v_bfe_u32 v5, v0, 2, 2")
    E(f"v_lshlrev_b32 v6, {2 if perm else 3}, v4")
    E("v_add_u32 v5, v5, v6")
    E(f"v_mul_u32_u24 v5, {RB}, v5")
    E("v_bfe_u32 v6, v0, 4, 1")
    E("v_lshlrev_b32 v6, 5, v6")
    E("v_add_u32 v5, v5, v6")
    E("v_and_b32 v6, 3, v0")
    E("v_lshlrev_b32 v6, 3, v6")
    E(f"v_add_u32 v{vdst}, v5, v6")

def dma_setup(ldw):
    E("v_lshrrev_b32 v5, 2, v0"); E(f"s_mov_b32 s4, {ldw}"); E("v_mul_lo_u32 v5, v5, s4")
    E("v_and_b32 v6, 3, v0"); E("v_lshlrev_b32 v6, 4, v6"); E("v_add_u32 v7, v5, v6")
    E("s_lshl_b32 s5, s3, 10")
def dma_region(srdreg, scol, ldsbase, nj, ldw):
    E(f"s_mov_b32 s6, s{scol}"); E(f"s_add_u32 s7, s5, {ldsbase}")
    for j in range(nj):
        E("s_mov_b32 m0, s7");
        if j + 1 < nj: E("s_add_u32 s7, s7, 4096")
        else: E("s_nop 0")
        E(f"buffer_load_dwordx4 v7, s[{srdreg}:{srdreg+3}], s6 offen lds")
        if j + 1 < nj: E(f"s_add_u32 s6, s6, {64*ldw}")

def dma_list(srdreg, scolreg, coladd, ldsbase, nj, ldw):
    r = []
    for j in range(nj):
        r.append([f"s_add_u32 s6, s{scolreg}, {coladd + j*64*ldw}", f"s_add_u32 m0, s5, {ldsbase + j*4096}", "s_nop 0",
                  f"buffer_load_dwordx4 v7, s[{srdreg}:{srdreg+3}], s6 offen lds"])
    return r
def dma_setup_w(ldw):
    E("s_lshl_b32 s5, s3, 10"); E("s_mov_b32 s4, 0xAAAB"); E(f"s_mov_b32 s6, {ldw}")
    for t, vr in enumerate((7, 14, 15)):
        E(f"v_add_u32 v5, {256*t}, v0"); E("v_mul_lo_u32 v6, v5, s4"); E("v_lshrrev_b32 v6, 19, v6")
        E("v_mul_u32_u24 v2, 12, v6"); E("v_sub_u32 v5, v5, v2"); E("v_lshlrev_b32 v5, 4, v5")
        E("v_mul_lo_u32 v6, v6, s6"); E(f"v_add_u32 v{vr}, v5, v6")
def dma_list_w(srdreg, scolreg, ldsbase, row0, nrows, ldw):
    r = []
    for j in range(nrows*12//256):
        r.append([f"s_add_u32 s6, s{scolreg}, {(row0 + (j//3)*64)*ldw}", f"s_add_u32 m0, s5, {ldsbase + j*4096}", "s_nop 0",
                  f"buffer_load_dwordx4 v{(7,14,15)[j%3]}, s[{srdreg}:{srdreg+3}], s6 offen lds"])
    return r
def mfma_items(items, perm, swap_of, first_of, RB=64):
    d2 = 8*RB if perm else 4*RB
    n = len(items); D = 6
    def rd(i):
        va, off, _, _ = items[i]; w = VW + 4 * (i % 8)
        E(f"ds_read_b64_tr_b16 v[{w}:{w+1}], v{va} offset:{off}")
        E(f"ds_read_b64_tr_b16 v[{w+2}:{w+3}], v{va} offset:{off+d2}")
    for i in range(min(D, n)): rd(i)
    for i in range(n):
        va, off, x, acc = items[i][:4]; w = VW + 4 * (i % 8)
        E(f"s_waitcnt lgkmcnt({2*(min(i+D-1, n-1)-i)})")
        c = "0" if first_of(i) else f"v[{acc}:{acc+15}]"
        if swap_of(i): E(f"v_mfma_f32_32x32x16_bf16 v[{acc}:{acc+15}], v[{x}:{x+3}], v[{w}:{w+3}], {c}")
        else:          E(f"v_mfma_f32_32x32x16_bf16 v[{acc}:{acc+15}], v[{w}:{w+3}], v[{x}:{x+3}], {c}")
        if i + D < n: rd(i + D)
        yield i

def ln_regs(ndma, inter=[]):
    E("s_mov_b32 s8, 0x3f803f80")
    for q in range(4): E(f"v_mov_b32 v{VT+q}, 0"); E(f"v_mov_b32 v{VT+4+q}, 0")
    inter = list(inter); nd = 0
    for g in range(4):
        E(f"s_waitcnt vmcnt({min(63, 24-8*g+nd)})")
        for r in range(32*g, 32*g+32):
            if inter and r % 8 == 4:
                for x in inter.pop(0): E(x)
                nd += 1
            E(f"v_dot2_f32_bf16 v{VT+(r&3)}, v{VX+r}, s8, v{VT+(r&3)}")
            E(f"v_dot2_f32_bf16 v{VT+4+(r&3)}, v{VX+r}, v{VX+r}, v{VT+4+(r&3)}")
    E("s_nop 3")
    E(f"v_add_f32 v{VT}, v{VT}, v{VT+1}"); E(f"v_add_f32 v{VT+2}, v{VT+2}, v{VT+3}")
    E(f"v_add_f32 v{VT+4}, v{VT+4}, v{VT+5}"); E(f"v_add_f32 v{VT+6}, v{VT+6}, v{VT+7}")
    E(f"v_add_f32 v{VT}, v{VT}, v{VT+2}"); E(f"v_add_f32 v{VT+4}, v{VT+4}, v{VT+6}")
    E(f"v_mov_b32 v{VT+1}, v{VT}"); E(f"v_mov_b32 v{VT+5}, v{VT+4}")
    E("s_nop 1")
    E(f"v_permlane32_swap_b32 v{VT}, v{VT+1}"); E(f"v_permlane32_swap_b32 v{VT+4}, v{VT+5}")
    E("s_nop 1")
    E(f"v_add_f32 v{VT}, v{VT}, v{VT+1}"); E(f"v_add_f32 v{VT+4}, v{VT+4}, v{VT+5}")
    E(f"v_mul_f32 v{VT}, {f2u(1/512):#x}, v{VT}")
    E(f"v_mul_f32 v{VT+4}, {f2u(1/512):#x}, v{VT+4}")
    E(f"v_fma_f32 v{VT+4}, -v{VT}, v{VT}, v{VT+4}")
    E(f"v_max_f32 v{VT+4}, 0, v{VT+4}")
    E(f"v_add_f32 v{VT+4}, {f2u(1e-5):#x}, v{VT+4}")
    E(f"v_rsq_f32 v{VT+4}, v{VT+4}")
    E("s_nop 0")
    E(f"v_mul_f32 v{VT}, v{VT}, v{VT+4}")
    E(f"v_sub_f32 v{VT}, 0, v{VT}")
    for r in range(128):
        if inter and r % 5 == 0:
            for x in inter.pop(0): E(x)
        a, b = VT + 8 + 2 * (r & 3), VT + 9 + 2 * (r & 3)
        E(f"v_lshlrev_b32 v{a}, 16, v{VX+r}"); E(f"v_and_b32 v{b}, 0xffff0000, v{VX+r}")
        E(f"v_fma_f32 v{a}, v{a}, v{VT+4}, v{VT}"); E(f"v_fma_f32 v{b}, v{b}, v{VT+4}, v{VT}")
        E(f"v_cvt_pk_bf16_f32 v{VX+r}, v{a}, v{b}")

def load_x(srdreg, ld, nsteps, base=VX):
    E("s_lshl_b32 s10, s3, 5"); E("s_add_u32 s10, s10, s9")
    E("v_add_u32 v9, s10, v3"); E(f"s_mov_b32 s4, {ld}"); E("v_mul_lo_u32 v8, v9, s4")
    E("v_lshlrev_b32 v5, 4, v4"); E("v_add_u32 v8, v8, v5")
    for s in range(nsteps):
        E(f"buffer_load_dwordx4 v[{base+4*s}:{base+4*s+3}], v8, s[{srdreg}:{srdreg+3}], 0 offen offset:{32*s}")
def wgmap(a=2):
    if a == 2:
        E("s_and_b32 s9, s2, 7"); E("s_lshl_b32 s9, s9, 1"); E("s_lshr_b32 s11, s2, 7"); E("s_add_u32 s9, s9, s11"); E("s_lshl_b32 s9, s9, 7")
        E("s_lshr_b32 s11, s2, 3"); E("s_and_b32 s11, s11, 15")
    else:
        E("s_bfe_u32 s9, s2, 0x20001"); E("s_lshl_b32 s9, s9, 2"); E("s_lshr_b32 s11, s2, 6"); E("s_add_u32 s9, s9, s11"); E("s_lshl_b32 s9, s9, 7")
        E("s_bfe_u32 s11, s2, 0x30003"); E("s_and_b32 s4, s2, 1"); E("s_lshl_b32 s4, s4, 3"); E("s_add_u32 s11, s11, s4")
def load_xt(srdreg, nsteps_total, nsteps, base=VX):
    E("s_lshl_b32 s10, s3, 5"); E("s_add_u32 s10, s10, s9"); E("v_add_u32 v9, s10, v3")
    E("s_lshr_b32 s4, s10, 5"); E(f"s_mul_i32 s4, s4, {nsteps_total*1024}")
    E("v_lshlrev_b32 v8, 4, v1"); E("v_add_u32 v8, s4, v8")
    for s in range(nsteps):
        if s % 4 == 0: E(f"s_mov_b32 s4, {1024*s}")
        E(f"buffer_load_dwordx4 v[{base+4*s}:{base+4*s+3}], v8, s[{srdreg}:{srdreg+3}], s4 offen offset:{1024*(s%4)}")
def pack(acc, dst):
    for i in range(8): E(f"v_cvt_pk_bf16_f32 v{dst+i}, v{acc+2*i}, v{acc+2*i+1}")

kernels = []
def k0():
    n = "k0_ln_kernel"; kernels.append((n, 256, 0)); prologue(n, 256)
    E("s_and_b32 s9, s2, 7"); E("s_lshl_b32 s9, s9, 8"); E("s_lshr_b32 s10, s2, 3"); E("s_lshl_b32 s10, s10, 3"); E("s_add_u32 s9, s9, s10")
    E("s_lshl_b32 s10, s3, 1"); E("s_add_u32 s9, s9, s10")
    srd(40, 16, 0, 2*MB); srd(44, 34, WS_XN, 2*MB)
    E("s_lshl_b32 s10, s9, 10"); E("v_lshlrev_b32 v5, 4, v1")
    E("buffer_load_dwordx4 v[16:19], v5, s[40:43], s10 offen"); E("buffer_load_dwordx4 v[20:23], v5, s[40:43], s10 offen offset:1024")
    E("s_lshr_b32 s11, s9, 5"); E("s_lshl_b32 s11, s11, 15"); E("s_and_b32 s12, s9, 31"); E("s_lshl_b32 s12, s12, 4"); E("s_add_u32 s11, s11, s12")
    E("v_lshrrev_b32 v6, 1, v1"); E("v_lshlrev_b32 v6, 10, v6"); E("v_and_b32 v7, 1, v1"); E("v_lshlrev_b32 v7, 9, v7"); E("v_add_u32 v6, v6, v7")
    E("s_mov_b32 s8, 0x3f803f80")
    for q in range(4): E(f"v_mov_b32 v{24+q}, 0")
    if os.environ.get("PF", "1") == "1":
        E("s_lshl_b32 s12, s2, 12"); E("v_lshlrev_b32 v32, 4, v0"); E("v_add_u32 v32, s12, v32"); E("v_add_u32 v33, 0x100000, v32")
        k = 0
        for base, size in ((18, 512*3072), (20, 512*1024), (24, 512*2752), (26, 512*2752), (28, 1376*1024)):
            srd(48, base, 0, size)
            E(f"buffer_load_dwordx4 v[{36+4*k}:{39+4*k}], v32, s[48:51], 0 offen"); k += 1
            if size > MB: E(f"buffer_load_dwordx4 v[{36+4*k}:{39+4*k}], v33, s[48:51], 0 offen"); k += 1
        npf = int(os.environ.get("NPF", "0"))
        if npf:
            E("s_getpc_b64 s[60:61]"); L("k0_pc")
            E("v_lshlrev_b32 v34, 4, v0")
            for i in range(npf):
                E(f"global_load_dwordx4 v[{72+4*i}:{75+4*i}], v34, s[60:61]"); E("v_add_u32 v34, 0x1000, v34")
        E(f"s_waitcnt vmcnt({9+npf})")
    else:
        E("s_waitcnt vmcnt(0)")
    for r in range(2):
        for i in range(4):
            E(f"v_dot2_f32_bf16 v{24+2*r}, v{16+4*r+i}, s8, v{24+2*r}"); E(f"v_dot2_f32_bf16 v{25+2*r}, v{16+4*r+i}, v{16+4*r+i}, v{25+2*r}")
    E("s_nop 3")
    for off in (0x041F, 0x081F, 0x101F, 0x201F, 0x401F):
        for q in range(4): E(f"ds_swizzle_b32 v{28+q}, v{24+q} offset:{off:#x}")
        E("s_waitcnt lgkmcnt(0)")
        for q in range(4): E(f"v_add_f32 v{24+q}, v{24+q}, v{28+q}")
    for q in range(4): E(f"v_mov_b32 v{28+q}, v{24+q}")
    E("s_nop 1")
    for q in range(4): E(f"v_permlane32_swap_b32 v{24+q}, v{28+q}")
    E("s_nop 1")
    for q in range(4): E(f"v_add_f32 v{24+q}, v{24+q}, v{28+q}")
    for r in range(2):
        a, b = 24+2*r, 25+2*r
        E(f"v_mul_f32 v{a}, {f2u(1/512):#x}, v{a}"); E(f"v_mul_f32 v{b}, {f2u(1/512):#x}, v{b}")
        E(f"v_fma_f32 v{b}, -v{a}, v{a}, v{b}"); E(f"v_max_f32 v{b}, 0, v{b}"); E(f"v_add_f32 v{b}, {f2u(1e-5):#x}, v{b}")
        E(f"v_rsq_f32 v{b}, v{b}"); E("s_nop 0"); E(f"v_mul_f32 v{a}, v{a}, v{b}"); E(f"v_sub_f32 v{a}, 0, v{a}")
        for i in range(4):
            x = 16+4*r+i
            E(f"v_lshlrev_b32 v30, 16, v{x}"); E(f"v_and_b32 v31, 0xffff0000, v{x}")
            E(f"v_fma_f32 v30, v30, v{b}, v{a}"); E(f"v_fma_f32 v31, v31, v{b}, v{a}"); E(f"v_cvt_pk_bf16_f32 v{x}, v30, v31")
        E(f"buffer_store_dwordx4 v[{16+4*r}:{19+4*r}], v6, s[44:47], s11 offen offset:{16*r}")
    epilogue_end(n)

SC = " sc1"
def lanes():
    E("v_and_b32 v1, 63, v0"); E("v_and_b32 v3, 31, v0"); E("v_bfe_u32 v4, v0, 5, 1")
def signal(n, idx):
    E("s_waitcnt vmcnt(0)"); E("s_barrier")
    E("s_cmp_lg_u32 s3, 0"); E(f"s_cbranch_scc1 {n}_sig{idx}")
    E("s_lshr_b32 s4, s9, 5"); E(f"s_add_u32 s4, s4, {idx*64}")
    E("v_mov_b32 v5, 1"); E("v_mov_b32 v6, s4"); E("s_mov_b64 exec, 1")
    E("buffer_atomic_add v5, v6, s[56:59], 0 offen"); E("s_mov_b64 exec, -1")
    L(f"{n}_sig{idx}")
def wait(n, idx, back=0):
    for b in range(back + 1):
        E("s_lshr_b32 s4, s9, 5"); E(f"s_sub_i32 s4, s4, {4*b}"); E("s_max_i32 s4, s4, 0"); E(f"s_add_u32 s4, s4, {idx*64}")
        E("v_mov_b32 v6, s4"); E("s_mov_b32 s6, 0")
        L(f"{n}_w{idx}_{b}")
        E("buffer_load_dword v5, v6, s[56:59], 0 offen sc1"); E("s_waitcnt vmcnt(0)")
        E("v_readfirstlane_b32 s4, v5"); E("s_add_u32 s6, s6, 1"); E("s_cmp_ge_u32 s4, 16"); E(f"s_cbranch_scc1 {n}_wd{idx}_{b}")
        E("s_sleep 1"); E("s_cmp_lt_u32 s6, 0x4000"); E(f"s_cbranch_scc1 {n}_w{idx}_{b}")
        L(f"{n}_wd{idx}_{b}")
def load_xt2(srdreg, nsteps_total, nsteps, base=VX, sc=SC):
    E("s_lshr_b32 s4, s10, 5"); E(f"s_mul_i32 s4, s4, {nsteps_total*1024}")
    E("v_lshlrev_b32 v8, 4, v1"); E("v_add_u32 v8, s4, v8")
    for s in range(nsteps):
        if s % 4 == 0: E(f"s_mov_b32 s4, {1024*s}")
        E(f"buffer_load_dwordx4 v[{base+4*s}:{base+4*s+3}], v8, s[{srdreg}:{srdreg+3}], s4 offen offset:{1024*(s%4)}{sc}")
def issue(groups):
    for g in groups:
        for x in g: E(x)

def mega():
    global VW
    n = "km_block_kernel"; kernels.append((n, 256, 163840)); prologue(n, 256)
    stamp(n); wgmap(2)
    E("s_mov_b32 s61, s11")
    E("s_lshl_b32 s10, s3, 5"); E("s_add_u32 s10, s10, s9")
    srd(56, 32, 0, 256)
    E("s_mul_i32 s11, s61, 3")
    srd(40, 34, WS_XN, 2*MB); srd(44, 18, 0, 512*3072); srd(48, 34, 0, 6*MB)
    dma_setup_w(3072)
    E("s_lshl_b32 s60, s11, 6")
    allw = dma_list_w(44, 60, 0, 0, 512, 3072)
    issue(allw[:8]); load_xt2(40, 32, 32, VX, ""); issue(allw[8:])
    E("v_add_u32 v9, s10, v3")
    w_addr(False, 10, 192); E("v_add_u32 v13, 0xc000, v10")
    E("v_lshlrev_b32 v11, 5, v9"); E("v_lshlrev_b32 v5, 4, v4"); E("v_add_u32 v11, v11, v5")
    E("v_lshlrev_b32 v12, 12, v3"); E("v_lshlrev_b32 v5, 4, v4"); E("v_add_u32 v12, v12, v5")
    E("s_lshl_b32 s13, s10, 1"); E("v_add_u32 v12, s13, v12")
    E("s_waitcnt vmcnt(0)"); E("s_barrier")
    for j in range(3):
        E(f"s_add_u32 s12, s11, {j}"); E("s_cmp_ge_u32 s12, 32"); E(f"s_cbranch_scc1 {n}_v{j}")
        for sw in (False, True):
            if sw: L(f"{n}_v{j}")
            items = [((10, 3072*s + 64*j) if s < 16 else (13, 3072*(s-16) + 64*j)) + (VX+4*s, ACC0) for s in range(32)]
            for i in mfma_items(items, False, lambda i: sw, lambda i: i == 0, 192): pass
            E("s_nop 15"); pack(ACC0, VT)
            if not sw:
                E("s_lshr_b32 s14, s12, 4"); E("s_lshl_b32 s14, s14, 21"); E("s_and_b32 s15, s12, 15"); E("s_lshl_b32 s15, s15, 17")
                E("s_add_u32 s14, s14, s15"); E("s_add_u32 s15, s14, 65536")
                E(f"buffer_store_dwordx4 v[{VT}:{VT+3}], v11, s[48:51], s14 offen{SC}")
                E(f"buffer_store_dwordx4 v[{VT+4}:{VT+7}], v11, s[48:51], s15 offen{SC}")
                E(f"s_branch {n}_e{j}")
            else:
                E("s_sub_u32 s14, s12, 32"); E("s_lshl_b32 s14, s14, 17"); E(f"s_add_u32 s14, s14, {WS_V}")
                E(f"buffer_store_dwordx4 v[{VT}:{VT+3}], v12, s[48:51], s14 offen{SC}")
                E(f"buffer_store_dwordx4 v[{VT+4}:{VT+7}], v12, s[48:51], s14 offen offset:32{SC}")
        L(f"{n}_e{j}"); E("s_nop 1")
    stamp(n); signal(n, 0); stamp(n)
    srd(44, 20, 0, 512*1024); srd(64, 24, 0, 512*2752); srd(68, 26, 0, 512*2752)
    E("s_lshl_b32 s62, s61, 6")
    E("s_mul_i32 s63, s61, 86"); E("s_and_b32 s63, s63, 0xfffffff0"); E("s_lshl_b32 s63, s63, 1")
    dma_setup(1024); issue(dma_list(44, 62, 0, 0, 8, 1024))
    dma_setup(2752)
    slotof = {0: 1, 1: 2, 2: 3, 3: 4, 4: 0, 5: 1}
    def regl(r): return dma_list(64 if r % 2 == 0 else 68, 63, 64*(r//2), slotof[r]*32768, 8, 2752)
    for r in range(4): issue(regl(r))
    wait(n, 0, 2); stamp(n)
    Q, KV, S, O = 16, 20, 96, 240
    srd(40, 34, WS_Q, 2*MB); srd(44, 34, WS_K - 8192, 2*MB + 8192); srd(48, 34, WS_V - 512, 2*MB + 512); srd(52, 34, WS_O, 2*MB)
    E("v_lshlrev_b32 v5, 2, v4"); E("v_sub_u32 v11, v3, v5")
    for i in range(16):
        c = 8*(i >> 2) + (i & 3)
        E(f"v_cmp_le_i32 s[{72+i}:{73+i}], {c}, v11") if False else None
    E("s_sub_i32 s15, 256, s10"); E("s_max_i32 s15, s15, 0")
    E("s_lshl_b32 s64, s15, 5") if False else None
    for hh in range(2):
        E(f"s_lshl_b32 s11, s61, 1"); E(f"s_add_u32 s11, s11, {hh}")
        E("s_lshl_b32 s12, s11, 11"); E("s_add_u32 s12, s12, s10")
        E("v_lshlrev_b32 v6, 4, v4")
        E("v_add_u32 v5, s12, v3"); E("v_lshlrev_b32 v5, 5, v5"); E("v_add_u32 v8, v5, v6")
        E(f"buffer_load_dwordx4 v[{Q}:{Q+3}], v8, s[40:43], 0 offen{SC}")
        E("s_lshl_b32 s14, s15, 5")
        for kb in range(9):
            E(f"s_max_u32 s13, s14, {kb*1024}")
            E(f"buffer_load_dwordx4 v[{KV+4*kb}:{KV+4*kb+3}], v8, s[44:47], s13 offen{SC}")
        E("v_and_b32 v5, 15, v0"); E("s_lshl_b32 s13, s11, 4"); E("v_add_u32 v5, s13, v5"); E("v_lshlrev_b32 v5, 12, v5")
        E("s_lshl_b32 s13, s10, 1"); E("v_add_u32 v5, s13, v5"); E("v_add_u32 v9, v5, v6")
        E("s_add_u32 s13, s10, s11"); E("s_lshl_b32 s13, s13, 10"); E("v_lshlrev_b32 v5, 4, v1"); E("v_add_u32 v10, s13, v5")
        E(f"v_mov_b32 v12, {f2u(-1e30):#x}")
        for kb in range(9):
            E(f"s_waitcnt vmcnt({8-kb})")
            E(f"v_mfma_f32_32x32x16_bf16 v[{S+16*kb}:{S+16*kb+15}], v[{KV+4*kb}:{KV+4*kb+3}], v[{Q}:{Q+3}], 0")
        E("s_nop 3")
        for r in range(72): E(f"v_mov_b32 v{KV+r}, 0x3f803f80")
        E("s_mov_b32 s12, 0x0000ffff"); E("s_mov_b32 s13, 0x0000ffff"); E("s_mov_b64 exec, s[12:13]"); E("s_lshl_b32 s14, s15, 1")
        for t in range(18):
            E(f"s_max_u32 s13, s14, {32*t}")
            E(f"buffer_load_dwordx4 v[{KV+4*t}:{KV+4*t+3}], v9, s[48:51], s13 offen{SC}")
        E("s_mov_b64 exec, -1")
        for i in range(16):
            c = 8*(i >> 2) + (i & 3)
            E(f"v_cmp_le_i32 vcc, {c}, v11"); E("s_nop 1")
            E(f"v_cndmask_b32 v{S+128+i}, v12, v{S+128+i}, vcc"); E(f"v_cndmask_b32 v{S+i}, v{S+i}, v12, vcc")
        for kb in range(8):
            E(f"s_cmp_ge_u32 s10, {256-32*kb}"); E(f"s_cbranch_scc1 {n}_ok{hh}_{kb}")
            for i in range(16): E(f"v_mov_b32 v{S+16*kb+i}, v12")
            L(f"{n}_ok{hh}_{kb}")
        for c in range(4): E(f"v_max_f32 v{12+c}, v{S+c}, v{S+4+c}")
        for r in range(8, 144, 8):
            for c in range(4): E(f"v_max3_f32 v{12+c}, v{12+c}, v{S+r+c}, v{S+r+4+c}")
        E("v_max_f32 v12, v12, v13"); E("v_max_f32 v14, v14, v15"); E("v_max_f32 v12, v12, v14"); E("v_mov_b32 v13, v12")
        E("s_nop 1"); E("v_permlane32_swap_b32 v12, v13"); E("s_nop 1"); E("v_max_f32 v12, v12, v13")
        E(f"s_mov_b32 s13, {f2u(0.25*LOG2E):#x}"); E("v_mul_f32 v12, s13, v12")
        for r in range(0, 144, 4):
            for c in range(4): E(f"v_fma_f32 v{S+r+c}, v{S+r+c}, s13, -v12")
            for c in range(4): E(f"v_exp_f32 v{S+r+c}, v{S+r+c}")
            if r >= 4:
                p = r - 4; d = S + 16*(p//16) + (p % 16)//2
                E(f"v_cvt_pk_bf16_f32 v{d}, v{S+p}, v{S+p+1}"); E(f"v_cvt_pk_bf16_f32 v{d+1}, v{S+p+2}, v{S+p+3}")
        p = 140; d = S + 16*(p//16) + (p % 16)//2
        E("s_nop 0"); E(f"v_cvt_pk_bf16_f32 v{d}, v{S+p}, v{S+p+1}"); E(f"v_cvt_pk_bf16_f32 v{d+1}, v{S+p+2}, v{S+p+3}")
        E("s_nop 1")
        for t in range(18):
            E(f"s_waitcnt vmcnt({17-t})")
            b = S + 16*(t//2) + 4*(t % 2)
            E(f"v_mfma_f32_32x32x16_bf16 v[{O}:{O+15}], v[{KV+4*t}:{KV+4*t+3}], v[{b}:{b+3}], {'0' if t == 0 else f'v[{O}:{O+15}]'}")
        E("s_nop 15"); E(f"v_rcp_f32 v12, v{O+8}"); E("s_nop 0")
        for i in range(8): E(f"v_mul_f32 v{O+i}, v{O+i}, v12")
        for i in range(4): E(f"v_cvt_pk_bf16_f32 v{Q+i}, v{O+2*i}, v{O+2*i+1}")
        E(f"buffer_store_dwordx4 v[{Q}:{Q+3}], v10, s[52:55], 0 offen{SC}")
        E("s_nop 1")
    stamp(n); signal(n, 1); stamp(n)
    wait(n, 1); stamp(n)
    srd(40, 34, WS_O, 2*MB); srd(48, 34, WS_H, 2*MB); srd(52, 16, 0, 2*MB)
    load_xt2(40, 32, 32)
    E("v_add_u32 v9, s10, v3")
    w_addr(True, 10)
    E("v_lshlrev_b32 v12, 10, v9"); E("v_lshlrev_b32 v5, 3, v4"); E("v_add_u32 v12, v12, v5"); E("s_lshl_b32 s13, s61, 11")
    for q in range(4): E(f"buffer_load_dwordx2 v[{VT+8+2*q}:{VT+9+2*q}], v12, s[52:55], s62 offen offset:{16*q}")
    E("s_waitcnt vmcnt(0)"); E("s_barrier")
    items = [(10, 1024*s, VX+4*s, ACC0) for s in range(32)]
    for _ in mfma_items(items, True, lambda i: False, lambda i: i == 0): pass
    E("s_nop 15")
    for i in range(8):
        E(f"v_lshlrev_b32 v5, 16, v{VT+8+i}"); E(f"v_and_b32 v6, 0xffff0000, v{VT+8+i}")
        E(f"v_add_f32 v{ACC0+2*i}, v{ACC0+2*i}, v5"); E(f"v_add_f32 v{ACC0+2*i+1}, v{ACC0+2*i+1}, v6")
    pack(ACC0, VT)
    E(f"buffer_store_dwordx4 v[{VT}:{VT+3}], v8, s[48:51], s13 offen{SC}")
    E(f"buffer_store_dwordx4 v[{VT+4}:{VT+7}], v8, s[48:51], s13 offen offset:1024{SC}")
    stamp(n); signal(n, 2); stamp(n)
    issue(regl(4))
    wait(n, 2); stamp(n)
    srd(40, 34, WS_H, 2*MB); srd(52, 34, WS_HH, 2048*2752)
    load_xt2(40, 32, 32)
    E("s_lshr_b32 s4, s10, 5"); E(f"s_mul_i32 s4, s4, {86*1024}"); E("v_lshlrev_b32 v11, 4, v1"); E("v_add_u32 v11, s4, v11")
    ln_regs(0)
    E(f"s_mov_b32 s13, {f2u(-LOG2E):#x}")
    E("s_barrier")
    for j in range(3):
        sg, su = slotof[2*j]*32768, slotof[2*j+1]*32768
        E(f"v_add_u32 v13, {sg}, v10"); E(f"v_add_u32 v14, {su}, v10")
        items = []
        for s in range(32): items += [(13, 1024*s, VX+4*s, ACC0), (14, 1024*s, VX+4*s, ACC1)]
        for _ in mfma_items(items, True, lambda i: False, lambda i: i < 2): pass
        if j == 0: E("s_barrier"); issue(regl(5))
        if j == 1: E("s_waitcnt vmcnt(2)"); E("s_barrier")
        E("s_nop 15")
        for i in range(16): E(f"v_mul_f32 v{ACC0+i}, s13, v{ACC0+i}")
        for i in range(16): E(f"v_exp_f32 v{ACC0+i}, v{ACC0+i}")
        for i in range(16): E(f"v_add_f32 v{ACC0+i}, 1.0, v{ACC0+i}")
        for i in range(16): E(f"v_rcp_f32 v{ACC0+i}, v{ACC0+i}")
        for i in range(16): E(f"v_mul_f32 v{ACC0+i}, v{ACC0+i}, v{ACC1+i}")
        pack(ACC0, VT)
        E(f"s_add_u32 s12, s63, {64*j}"); E("s_lshl_b32 s12, s12, 5")
        E(f"buffer_store_dwordx4 v[{VT}:{VT+3}], v11, s[52:55], s12 offen{SC}")
        E(f"buffer_store_dwordx4 v[{VT+4}:{VT+7}], v11, s[52:55], s12 offen offset:1024{SC}")
        E("s_nop 1")
    stamp(n); signal(n, 3); stamp(n)
    NX = 44; X = 56; oldVW = VW; VW = 16; A = 232; T = 48
    srd(44, 28, 0, 1376*1024)
    dma_setup(1024); issue(dma_list(44, 62, 0, 0, 22, 1024))
    wait(n, 3); stamp(n)
    srd(40, 34, WS_HH, 2048*2752); srd(48, 34, WS_H, 2*MB); srd(52, 30, 0, 2*MB)
    load_xt2(40, 86, NX, X)
    E("v_add_u32 v13, 0x10000, v10"); E("v_add_u32 v9, s10, v3")
    E("v_lshlrev_b32 v12, 10, v9"); E("v_lshlrev_b32 v5, 3, v4"); E("v_add_u32 v12, v12, v5")
    E("s_lshl_b32 s13, s10, 10"); E("s_lshl_b32 s14, s61, 11"); E("s_add_u32 s13, s13, s14"); E("v_lshlrev_b32 v11, 4, v1")
    E(f"buffer_load_dwordx4 v[248:251], v11, s[48:51], s13 offen{SC}"); E(f"buffer_load_dwordx4 v[252:255], v11, s[48:51], s13 offen offset:1024{SC}")
    E("s_waitcnt vmcnt(0)"); E("s_barrier")
    items = [((10, 1024*s) if s < 64 else (13, 1024*(s-64))) + (X+4*(s % NX), A) for s in range(86)]
    for i in mfma_items(items, True, lambda i: False, lambda i: i == 0):
        if i + NX < 86:
            s = i + NX; E(f"s_mov_b32 s4, {1024*s}"); E(f"buffer_load_dwordx4 v[{X+4*i}:{X+4*i+3}], v8, s[40:43], s4 offen{SC}")
        if i + 1 >= NX and i + 1 < 86: E(f"s_waitcnt vmcnt({85-(i+1)})")
    VW = oldVW
    E("s_nop 15")
    for i in range(8):
        E(f"v_lshlrev_b32 v5, 16, v{248+i}"); E(f"v_and_b32 v6, 0xffff0000, v{248+i}")
        E(f"v_add_f32 v{A+2*i}, v{A+2*i}, v5"); E(f"v_add_f32 v{A+2*i+1}, v{A+2*i+1}, v6")
    pack(A, T)
    for q in range(4): E(f"buffer_store_dwordx2 v[{T+2*q}:{T+2*q+1}], v12, s[52:55], s62 offen offset:{16*q}")
    epilogue_end(n)

k0(); mega()
hdr = open("cdna_kernels/" + NAME + ".s.ref").read().split("\n")
head = [l for l in hdr if l.startswith(";") and "@launch" not in l and "Override" not in l and "grid=ceil" not in l]
import os
dup = int(os.environ.get("DUP", "-1"))
ll = []
for idx, (k, g, l) in enumerate(kernels):
    ll += [f"; @launch kernel={k} grid=({g},1,1) block=(256,1,1) lds={l}"] * (5 if idx == dup else 1)
if dup == 99: ll = ll + ll
if STAMPK:
    ll = ll + [x for x in ll if STAMPK in x]
txt = head + ll
txt += ['.amdgcn_target "amdgcn-amd-amdhsa--gfx950"', ".text"] + out + ['.section .rodata,"a"']
for k, g, l in kernels:
    txt += [".p2align 6", f".amdhsa_kernel {k}", "  .amdhsa_next_free_vgpr 256", "  .amdhsa_next_free_sgpr 102", "  .amdhsa_accum_offset 256",
            "  .amdhsa_group_segment_fixed_size 0", "  .amdhsa_kernarg_size 80", "  .amdhsa_user_sgpr_count 2",
            "  .amdhsa_user_sgpr_kernarg_segment_ptr 1", "  .amdhsa_system_sgpr_workgroup_id_x 1", ".end_amdhsa_kernel"]
open(os.environ.get("OUT", "cdna_kernels/" + NAME + ".s"), "w").write("\n".join(txt) + "\n")
```

```python
import sys, os
NAME = "sequential_preLN__sliding_block__glu_gated_glu__prompt"
out = []
def E(s): out.append("    " + s)
def L(s): out.append(s + ":")
MB = 1 << 20
WS_Q, WS_K, WS_V, WS_O, WS_H, WS_HH = 0, 2*MB, 4*MB, 6*MB, 8*MB, 10*MB
WS_XN = 16*MB
LOG2E = 1.4426950408889634
import struct
def f2u(f): return struct.unpack("<I", struct.pack("<f", f))[0]

def prologue(name, nwg):
    out.append(".p2align 8"); out.append(f".globl {name}"); out.append(f".type {name},@function"); L(name)
    E(f"s_cmp_ge_u32 s2, {nwg}"); E(f"s_cbranch_scc1 {name}_done")
    E("s_load_dwordx16 s[16:31], s[0:1], 0"); E("s_load_dwordx4 s[32:35], s[0:1], 64")
    E("v_and_b32 v1, 63, v0")
    E("v_lshrrev_b32 v2, 6, v0")
    E("v_and_b32 v3, 31, v0")
    E("v_readfirstlane_b32 s3, v2")
    E("v_bfe_u32 v4, v0, 5, 1")
    E("s_waitcnt lgkmcnt(0)")
STAMPK = os.environ.get("STAMP", "")
nst = [0]
def stamp(name):
    if name != STAMPK: return
    E("s_memtime s[74:75]"); E("s_waitcnt lgkmcnt(0)"); E(f"s_mov_b32 s{76+nst[0]}, s74"); nst[0] += 1
def epilogue_end(name):
    if name == STAMPK:
        stamp(name)
        srd(40, 32, 0, 256)
        E("s_cmp_lg_u32 s2, 8"); E(f"s_cbranch_scc1 {name}_done"); E("s_cmp_lg_u32 s3, 0"); E(f"s_cbranch_scc1 {name}_done")
        srd(40, 32, 0, 256)
        for i in range(nst[0]):
            E(f"s_sub_u32 s4, s{76+i}, s76"); E("v_mov_b32 v5, s4"); E(f"v_mov_b32 v6, {4*i}"); E("buffer_store_dword v5, v6, s[40:43], 0 offen")
    L(f"{name}_done"); E("s_endpgm")
def srd(d, base, off, size):
    if off >= 0:
        E(f"s_add_u32 s{d}, s{base}, {off}"); E(f"s_addc_u32 s{d+1}, s{base+1}, 0")
    else:
        E(f"s_sub_u32 s{d}, s{base}, {-off}"); E(f"s_subb_u32 s{d+1}, s{base+1}, 0")
    E(f"s_mov_b32 s{d+2}, {size}"); E(f"s_mov_b32 s{d+3}, 0x00020000")

VX, VW, ACC0, ACC1, VT = 16, 144, 176, 192, 208

def w_addr(perm, vdst, RB=64):
    E("v_bfe_u32 v5, v0, 2, 2")
    E(f"v_lshlrev_b32 v6, {2 if perm else 3}, v4")
    E("v_add_u32 v5, v5, v6")
    E(f"v_mul_u32_u24 v5, {RB}, v5")
    E("v_bfe_u32 v6, v0, 4, 1")
    E("v_lshlrev_b32 v6, 5, v6")
    E("v_add_u32 v5, v5, v6")
    E("v_and_b32 v6, 3, v0")
    E("v_lshlrev_b32 v6, 3, v6")
    E(f"v_add_u32 v{vdst}, v5, v6")

def dma_setup(ldw):
    E("v_lshrrev_b32 v5, 2, v0"); E(f"s_mov_b32 s4, {ldw}"); E("v_mul_lo_u32 v5, v5, s4")
    E("v_and_b32 v6, 3, v0"); E("v_lshlrev_b32 v6, 4, v6"); E("v_add_u32 v7, v5, v6")
    E("s_lshl_b32 s5, s3, 10")
def dma_region(srdreg, scol, ldsbase, nj, ldw):
    E(f"s_mov_b32 s6, s{scol}"); E(f"s_add_u32 s7, s5, {ldsbase}")
    for j in range(nj):
        E("s_mov_b32 m0, s7");
        if j + 1 < nj: E("s_add_u32 s7, s7, 4096")
        else: E("s_nop 0")
        E(f"buffer_load_dwordx4 v7, s[{srdreg}:{srdreg+3}], s6 offen lds")
        if j + 1 < nj: E(f"s_add_u32 s6, s6, {64*ldw}")

def dma_list(srdreg, scolreg, coladd, ldsbase, nj, ldw):
    r = []
    for j in range(nj):
        r.append([f"s_add_u32 s6, s{scolreg}, {coladd + j*64*ldw}", f"s_add_u32 m0, s5, {ldsbase + j*4096}", "s_nop 0",
                  f"buffer_load_dwordx4 v7, s[{srdreg}:{srdreg+3}], s6 offen lds"])
    return r
def dma_setup_w(ldw):
    E("s_lshl_b32 s5, s3, 10"); E("s_mov_b32 s4, 0xAAAB"); E(f"s_mov_b32 s6, {ldw}")
    for t, vr in enumerate((7, 14, 15)):
        E(f"v_add_u32 v5, {256*t}, v0"); E("v_mul_lo_u32 v6, v5, s4"); E("v_lshrrev_b32 v6, 19, v6")
        E("v_mul_u32_u24 v2, 12, v6"); E("v_sub_u32 v5, v5, v2"); E("v_lshlrev_b32 v5, 4, v5")
        E("v_mul_lo_u32 v6, v6, s6"); E(f"v_add_u32 v{vr}, v5, v6")
def dma_list_w(srdreg, scolreg, ldsbase, row0, nrows, ldw):
    r = []
    for j in range(nrows*12//256):
        r.append([f"s_add_u32 s6, s{scolreg}, {(row0 + (j//3)*64)*ldw}", f"s_add_u32 m0, s5, {ldsbase + j*4096}", "s_nop 0",
                  f"buffer_load_dwordx4 v{(7,14,15)[j%3]}, s[{srdreg}:{srdreg+3}], s6 offen lds"])
    return r
def mfma_items(items, perm, swap_of, first_of, RB=64):
    d2 = 8*RB if perm else 4*RB
    n = len(items); D = 6
    def rd(i):
        va, off, _, _ = items[i]; w = VW + 4 * (i % 8)
        E(f"ds_read_b64_tr_b16 v[{w}:{w+1}], v{va} offset:{off}")
        E(f"ds_read_b64_tr_b16 v[{w+2}:{w+3}], v{va} offset:{off+d2}")
    for i in range(min(D, n)): rd(i)
    for i in range(n):
        va, off, x, acc = items[i][:4]; w = VW + 4 * (i % 8)
        E(f"s_waitcnt lgkmcnt({2*(min(i+D-1, n-1)-i)})")
        c = "0" if first_of(i) else f"v[{acc}:{acc+15}]"
        if swap_of(i): E(f"v_mfma_f32_32x32x16_bf16 v[{acc}:{acc+15}], v[{x}:{x+3}], v[{w}:{w+3}], {c}")
        else:          E(f"v_mfma_f32_32x32x16_bf16 v[{acc}:{acc+15}], v[{w}:{w+3}], v[{x}:{x+3}], {c}")
        if i + D < n: rd(i + D)
        yield i

def ln_regs(ndma, inter=[]):
    E("s_mov_b32 s8, 0x3f803f80")
    for q in range(4): E(f"v_mov_b32 v{VT+q}, 0"); E(f"v_mov_b32 v{VT+4+q}, 0")
    inter = list(inter); nd = 0
    for g in range(4):
        E(f"s_waitcnt vmcnt({min(63, 24-8*g+nd)})")
        for r in range(32*g, 32*g+32):
            if inter and r % 8 == 4:
                for x in inter.pop(0): E(x)
                nd += 1
            E(f"v_dot2_f32_bf16 v{VT+(r&3)}, v{VX+r}, s8, v{VT+(r&3)}")
            E(f"v_dot2_f32_bf16 v{VT+4+(r&3)}, v{VX+r}, v{VX+r}, v{VT+4+(r&3)}")
    E("s_nop 3")
    E(f"v_add_f32 v{VT}, v{VT}, v{VT+1}"); E(f"v_add_f32 v{VT+2}, v{VT+2}, v{VT+3}")
    E(f"v_add_f32 v{VT+4}, v{VT+4}, v{VT+5}"); E(f"v_add_f32 v{VT+6}, v{VT+6}, v{VT+7}")
    E(f"v_add_f32 v{VT}, v{VT}, v{VT+2}"); E(f"v_add_f32 v{VT+4}, v{VT+4}, v{VT+6}")
    E(f"v_mov_b32 v{VT+1}, v{VT}"); E(f"v_mov_b32 v{VT+5}, v{VT+4}")
    E("s_nop 1")
    E(f"v_permlane32_swap_b32 v{VT}, v{VT+1}"); E(f"v_permlane32_swap_b32 v{VT+4}, v{VT+5}")
    E("s_nop 1")
    E(f"v_add_f32 v{VT}, v{VT}, v{VT+1}"); E(f"v_add_f32 v{VT+4}, v{VT+4}, v{VT+5}")
    E(f"v_mul_f32 v{VT}, {f2u(1/512):#x}, v{VT}")
    E(f"v_mul_f32 v{VT+4}, {f2u(1/512):#x}, v{VT+4}")
    E(f"v_fma_f32 v{VT+4}, -v{VT}, v{VT}, v{VT+4}")
    E(f"v_max_f32 v{VT+4}, 0, v{VT+4}")
    E(f"v_add_f32 v{VT+4}, {f2u(1e-5):#x}, v{VT+4}")
    E(f"v_rsq_f32 v{VT+4}, v{VT+4}")
    E("s_nop 0")
    E(f"v_mul_f32 v{VT}, v{VT}, v{VT+4}")
    E(f"v_sub_f32 v{VT}, 0, v{VT}")
    for r in range(128):
        if inter and r % 5 == 0:
            for x in inter.pop(0): E(x)
        a, b = VT + 8 + 2 * (r & 3), VT + 9 + 2 * (r & 3)
        E(f"v_lshlrev_b32 v{a}, 16, v{VX+r}"); E(f"v_and_b32 v{b}, 0xffff0000, v{VX+r}")
        E(f"v_fma_f32 v{a}, v{a}, v{VT+4}, v{VT}"); E(f"v_fma_f32 v{b}, v{b}, v{VT+4}, v{VT}")
        E(f"v_cvt_pk_bf16_f32 v{VX+r}, v{a}, v{b}")

def load_x(srdreg, ld, nsteps, base=VX):
    E("s_lshl_b32 s10, s3, 5"); E("s_add_u32 s10, s10, s9")
    E("v_add_u32 v9, s10, v3"); E(f"s_mov_b32 s4, {ld}"); E("v_mul_lo_u32 v8, v9, s4")
    E("v_lshlrev_b32 v5, 4, v4"); E("v_add_u32 v8, v8, v5")
    for s in range(nsteps):
        E(f"buffer_load_dwordx4 v[{base+4*s}:{base+4*s+3}], v8, s[{srdreg}:{srdreg+3}], 0 offen offset:{32*s}")
def wgmap(a=2):
    if a == 2:
        E("s_and_b32 s9, s2, 7"); E("s_lshl_b32 s9, s9, 1"); E("s_lshr_b32 s11, s2, 7"); E("s_add_u32 s9, s9, s11"); E("s_lshl_b32 s9, s9, 7")
        E("s_lshr_b32 s11, s2, 3"); E("s_and_b32 s11, s11, 15")
    else:
        E("s_bfe_u32 s9, s2, 0x20001"); E("s_lshl_b32 s9, s9, 2"); E("s_lshr_b32 s11, s2, 6"); E("s_add_u32 s9, s9, s11"); E("s_lshl_b32 s9, s9, 7")
        E("s_bfe_u32 s11, s2, 0x30003"); E("s_and_b32 s4, s2, 1"); E("s_lshl_b32 s4, s4, 3"); E("s_add_u32 s11, s11, s4")
def load_xt(srdreg, nsteps_total, nsteps, base=VX):
    E("s_lshl_b32 s10, s3, 5"); E("s_add_u32 s10, s10, s9"); E("v_add_u32 v9, s10, v3")
    E("s_lshr_b32 s4, s10, 5"); E(f"s_mul_i32 s4, s4, {nsteps_total*1024}")
    E("v_lshlrev_b32 v8, 4, v1"); E("v_add_u32 v8, s4, v8")
    for s in range(nsteps):
        if s % 4 == 0: E(f"s_mov_b32 s4, {1024*s}")
        E(f"buffer_load_dwordx4 v[{base+4*s}:{base+4*s+3}], v8, s[{srdreg}:{srdreg+3}], s4 offen offset:{1024*(s%4)}")
def pack(acc, dst):
    for i in range(8): E(f"v_cvt_pk_bf16_f32 v{dst+i}, v{acc+2*i}, v{acc+2*i+1}")

kernels = []
def k0():
    n = "k0_ln_kernel"; kernels.append((n, 256, 0)); prologue(n, 256)
    E("s_and_b32 s9, s2, 7"); E("s_lshl_b32 s9, s9, 8"); E("s_lshr_b32 s10, s2, 3"); E("s_lshl_b32 s10, s10, 3"); E("s_add_u32 s9, s9, s10")
    E("s_lshl_b32 s10, s3, 1"); E("s_add_u32 s9, s9, s10")
    srd(40, 16, 0, 2*MB); srd(44, 34, WS_XN, 2*MB)
    E("s_cmp_lg_u32 s2, 0"); E("s_cbranch_scc1 k0_nz")
    srd(52, 34, 20*MB, 16384)
    for i in range(4): E(f"v_mov_b32 v{40+i}, 0")
    E("v_lshlrev_b32 v5, 6, v0")
    for i in range(4): E(f"buffer_store_dwordx4 v[40:43], v5, s[52:55], 0 offen offset:{16*i}")
    L("k0_nz")
    E("s_lshl_b32 s10, s9, 10"); E("v_lshlrev_b32 v5, 4, v1")
    E("buffer_load_dwordx4 v[16:19], v5, s[40:43], s10 offen"); E("buffer_load_dwordx4 v[20:23], v5, s[40:43], s10 offen offset:1024")
    E("s_lshr_b32 s11, s9, 5"); E("s_lshl_b32 s11, s11, 15"); E("s_and_b32 s12, s9, 31"); E("s_lshl_b32 s12, s12, 4"); E("s_add_u32 s11, s11, s12")
    E("v_lshrrev_b32 v6, 1, v1"); E("v_lshlrev_b32 v6, 10, v6"); E("v_and_b32 v7, 1, v1"); E("v_lshlrev_b32 v7, 9, v7"); E("v_add_u32 v6, v6, v7")
    E("s_mov_b32 s8, 0x3f803f80")
    for q in range(4): E(f"v_mov_b32 v{24+q}, 0")
    if os.environ.get("PF", "1") == "1":
        E("s_lshl_b32 s12, s2, 12"); E("v_lshlrev_b32 v32, 4, v0"); E("v_add_u32 v32, s12, v32"); E("v_add_u32 v33, 0x100000, v32")
        k = 0
        for base, size in ((18, 512*3072), (20, 512*1024), (24, 512*2752), (26, 512*2752), (28, 1376*1024)):
            srd(48, base, 0, size)
            E(f"buffer_load_dwordx4 v[{36+4*k}:{39+4*k}], v32, s[48:51], 0 offen"); k += 1
            if size > MB: E(f"buffer_load_dwordx4 v[{36+4*k}:{39+4*k}], v33, s[48:51], 0 offen"); k += 1
        npf = int(os.environ.get("NPF", "0"))
        if npf:
            E("s_getpc_b64 s[60:61]"); L("k0_pc")
            E("v_lshlrev_b32 v34, 4, v0")
            for i in range(npf):
                E(f"global_load_dwordx4 v[{72+4*i}:{75+4*i}], v34, s[60:61]"); E("v_add_u32 v34, 0x1000, v34")
        E(f"s_waitcnt vmcnt({9+npf})")
    else:
        E("s_waitcnt vmcnt(0)")
    for r in range(2):
        for i in range(4):
            E(f"v_dot2_f32_bf16 v{24+2*r}, v{16+4*r+i}, s8, v{24+2*r}"); E(f"v_dot2_f32_bf16 v{25+2*r}, v{16+4*r+i}, v{16+4*r+i}, v{25+2*r}")
    E("s_nop 3")
    for off in (0x041F, 0x081F, 0x101F, 0x201F, 0x401F):
        for q in range(4): E(f"ds_swizzle_b32 v{28+q}, v{24+q} offset:{off:#x}")
        E("s_waitcnt lgkmcnt(0)")
        for q in range(4): E(f"v_add_f32 v{24+q}, v{24+q}, v{28+q}")
    for q in range(4): E(f"v_mov_b32 v{28+q}, v{24+q}")
    E("s_nop 1")
    for q in range(4): E(f"v_permlane32_swap_b32 v{24+q}, v{28+q}")
    E("s_nop 1")
    for q in range(4): E(f"v_add_f32 v{24+q}, v{24+q}, v{28+q}")
    for r in range(2):
        a, b = 24+2*r, 25+2*r
        E(f"v_mul_f32 v{a}, {f2u(1/512):#x}, v{a}"); E(f"v_mul_f32 v{b}, {f2u(1/512):#x}, v{b}")
        E(f"v_fma_f32 v{b}, -v{a}, v{a}, v{b}"); E(f"v_max_f32 v{b}, 0, v{b}"); E(f"v_add_f32 v{b}, {f2u(1e-5):#x}, v{b}")
        E(f"v_rsq_f32 v{b}, v{b}"); E("s_nop 0"); E(f"v_mul_f32 v{a}, v{a}, v{b}"); E(f"v_sub_f32 v{a}, 0, v{a}")
        for i in range(4):
            x = 16+4*r+i
            E(f"v_lshlrev_b32 v30, 16, v{x}"); E(f"v_and_b32 v31, 0xffff0000, v{x}")
            E(f"v_fma_f32 v30, v30, v{b}, v{a}"); E(f"v_fma_f32 v31, v31, v{b}, v{a}"); E(f"v_cvt_pk_bf16_f32 v{x}, v30, v31")
        E(f"buffer_store_dwordx4 v[{16+4*r}:{19+4*r}], v6, s[44:47], s11 offen offset:{16*r}")
    epilogue_end(n)

SC = " sc1"
def lanes():
    E("v_and_b32 v1, 63, v0"); E("v_and_b32 v3, 31, v0"); E("v_bfe_u32 v4, v0, 5, 1")
WS_CNT = 20*MB
def signal(n, idx):
    E("s_waitcnt vmcnt(0)"); E("s_barrier")
    E("s_cmp_lg_u32 s3, 0"); E(f"s_cbranch_scc1 {n}_sig{idx}")
    E("s_lshl_b32 s4, s9, 1"); E(f"s_add_u32 s4, s4, {idx*4096}")
    E("v_mov_b32 v5, 1"); E("v_mov_b32 v6, s4"); E("s_mov_b64 exec, 1")
    E("buffer_atomic_add v5, v6, s[56:59], 0 offen"); E("s_mov_b64 exec, -1")
    L(f"{n}_sig{idx}")
def wait(n, idx, back=0):
    E("s_cmp_lg_u32 s3, 0"); E(f"s_cbranch_scc1 {n}_wx{idx}")
    for b in range(back + 1):
        E("s_lshl_b32 s4, s9, 1"); E(f"s_sub_i32 s4, s4, {256*b}"); E("s_max_i32 s4, s4, 0"); E(f"s_add_u32 s4, s4, {idx*4096}")
        E("v_mov_b32 v6, s4"); E("s_mov_b32 s6, 0")
        L(f"{n}_w{idx}_{b}")
        E("buffer_load_dword v5, v6, s[56:59], 0 offen sc1"); E("s_waitcnt vmcnt(0)")
        E("v_readfirstlane_b32 s4, v5"); E("s_add_u32 s6, s6, 1"); E("s_cmp_ge_u32 s4, 16"); E(f"s_cbranch_scc1 {n}_wd{idx}_{b}")
        E("s_sleep 3"); E("s_cmp_lt_u32 s6, 0x4000"); E(f"s_cbranch_scc1 {n}_w{idx}_{b}")
        L(f"{n}_wd{idx}_{b}")
    L(f"{n}_wx{idx}")
    E("s_waitcnt vmcnt(0)"); E("s_barrier")
def load_xt2(srdreg, nsteps_total, nsteps, base=VX, sc=SC):
    E("s_lshr_b32 s4, s10, 5"); E(f"s_mul_i32 s4, s4, {nsteps_total*1024}")
    E("v_lshlrev_b32 v8, 4, v1"); E("v_add_u32 v8, s4, v8")
    for s in range(nsteps):
        if s % 4 == 0: E(f"s_mov_b32 s4, {1024*s}")
        E(f"buffer_load_dwordx4 v[{base+4*s}:{base+4*s+3}], v8, s[{srdreg}:{srdreg+3}], s4 offen offset:{1024*(s%4)}{sc}")
def issue(groups):
    for g in groups:
        for x in g: E(x)

def mega():
    global VW
    n = "km_block_kernel"; kernels.append((n, 256, 163840)); prologue(n, 256)
    stamp(n); wgmap(2)
    E("s_mov_b32 s61, s11")
    E("s_lshl_b32 s10, s3, 5"); E("s_add_u32 s10, s10, s9")
    srd(56, 34, WS_CNT, 16384)
    E("s_mul_i32 s11, s61, 3")
    srd(40, 34, WS_XN, 2*MB); srd(44, 18, 0, 512*3072); srd(48, 34, 0, 6*MB)
    dma_setup_w(3072)
    E("s_lshl_b32 s60, s11, 6")
    allw = dma_list_w(44, 60, 0, 0, 512, 3072)
    issue(allw[:8]); load_xt2(40, 32, 32, VX, ""); issue(allw[8:])
    E("v_add_u32 v9, s10, v3")
    w_addr(False, 10, 192); E("v_add_u32 v13, 0xc000, v10")
    E("v_lshlrev_b32 v11, 5, v9"); E("v_lshlrev_b32 v5, 4, v4"); E("v_add_u32 v11, v11, v5")
    E("v_lshlrev_b32 v12, 12, v3"); E("v_lshlrev_b32 v5, 4, v4"); E("v_add_u32 v12, v12, v5")
    E("s_lshl_b32 s13, s10, 1"); E("v_add_u32 v12, s13, v12")
    E("s_waitcnt vmcnt(0)"); E("s_barrier")
    for j in range(3):
        E(f"s_add_u32 s12, s11, {j}"); E("s_cmp_ge_u32 s12, 32"); E(f"s_cbranch_scc1 {n}_v{j}")
        for sw in (False, True):
            if sw: L(f"{n}_v{j}")
            items = [((10, 3072*s + 64*j) if s < 16 else (13, 3072*(s-16) + 64*j)) + (VX+4*s, ACC0) for s in range(32)]
            for i in mfma_items(items, False, lambda i: sw, lambda i: i == 0, 192): pass
            E("s_nop 15"); pack(ACC0, VT)
            if not sw:
                E("s_lshr_b32 s14, s12, 4"); E("s_lshl_b32 s14, s14, 21"); E("s_and_b32 s15, s12, 15"); E("s_lshl_b32 s15, s15, 17")
                E("s_add_u32 s14, s14, s15"); E("s_add_u32 s15, s14, 65536")
                E(f"buffer_store_dwordx4 v[{VT}:{VT+3}], v11, s[48:51], s14 offen{SC}")
                E(f"buffer_store_dwordx4 v[{VT+4}:{VT+7}], v11, s[48:51], s15 offen{SC}")
                E(f"s_branch {n}_e{j}")
            else:
                E("s_sub_u32 s14, s12, 32"); E("s_lshl_b32 s14, s14, 17"); E(f"s_add_u32 s14, s14, {WS_V}")
                E(f"buffer_store_dwordx4 v[{VT}:{VT+3}], v12, s[48:51], s14 offen{SC}")
                E(f"buffer_store_dwordx4 v[{VT+4}:{VT+7}], v12, s[48:51], s14 offen offset:32{SC}")
        L(f"{n}_e{j}"); E("s_nop 1")
    stamp(n); signal(n, 0); stamp(n)
    srd(44, 20, 0, 512*1024); srd(64, 24, 0, 512*2752); srd(68, 26, 0, 512*2752)
    E("s_lshl_b32 s62, s61, 6")
    E("s_mul_i32 s63, s61, 86"); E("s_and_b32 s63, s63, 0xfffffff0"); E("s_lshl_b32 s63, s63, 1")
    dma_setup(1024); issue(dma_list(44, 62, 0, 0, 8, 1024))
    dma_setup(2752)
    slotof = {0: 1, 1: 2, 2: 3, 3: 4, 4: 0, 5: 1}
    def regl(r): return dma_list(64 if r % 2 == 0 else 68, 63, 64*(r//2), slotof[r]*32768, 8, 2752)
    for r in range(4): issue(regl(r))
    wait(n, 0, 2); stamp(n)
    Q, KV, S, O = 16, 20, 96, 240
    srd(40, 34, WS_Q, 2*MB); srd(44, 34, WS_K - 8192, 2*MB + 8192); srd(48, 34, WS_V - 512, 2*MB + 512); srd(52, 34, WS_O, 2*MB)
    E("v_lshlrev_b32 v5, 2, v4"); E("v_sub_u32 v11, v3, v5")
    for i in range(16):
        c = 8*(i >> 2) + (i & 3)
        E(f"v_cmp_le_i32 s[{72+i}:{73+i}], {c}, v11") if False else None
    E("s_sub_i32 s15, 256, s10"); E("s_max_i32 s15, s15, 0")
    E("s_lshl_b32 s64, s15, 5") if False else None
    for hh in range(2):
        E(f"s_lshl_b32 s11, s61, 1"); E(f"s_add_u32 s11, s11, {hh}")
        E("s_lshl_b32 s12, s11, 11"); E("s_add_u32 s12, s12, s10")
        E("v_lshlrev_b32 v6, 4, v4")
        E("v_add_u32 v5, s12, v3"); E("v_lshlrev_b32 v5, 5, v5"); E("v_add_u32 v8, v5, v6")
        E(f"buffer_load_dwordx4 v[{Q}:{Q+3}], v8, s[40:43], 0 offen{SC}")
        E("s_lshl_b32 s14, s15, 5")
        for kb in range(9):
            E(f"s_max_u32 s13, s14, {kb*1024}")
            E(f"buffer_load_dwordx4 v[{KV+4*kb}:{KV+4*kb+3}], v8, s[44:47], s13 offen{SC}")
        E("v_and_b32 v5, 15, v0"); E("s_lshl_b32 s13, s11, 4"); E("v_add_u32 v5, s13, v5"); E("v_lshlrev_b32 v5, 12, v5")
        E("s_lshl_b32 s13, s10, 1"); E("v_add_u32 v5, s13, v5"); E("v_add_u32 v9, v5, v6")
        E("s_add_u32 s13, s10, s11"); E("s_lshl_b32 s13, s13, 10"); E("v_lshlrev_b32 v5, 4, v1"); E("v_add_u32 v10, s13, v5")
        E(f"v_mov_b32 v12, {f2u(-1e30):#x}")
        for kb in range(9):
            E(f"s_waitcnt vmcnt({8-kb})")
            E(f"v_mfma_f32_32x32x16_bf16 v[{S+16*kb}:{S+16*kb+15}], v[{KV+4*kb}:{KV+4*kb+3}], v[{Q}:{Q+3}], 0")
        E("s_nop 3")
        for r in range(72): E(f"v_mov_b32 v{KV+r}, 0x3f803f80")
        E("s_mov_b32 s12, 0x0000ffff"); E("s_mov_b32 s13, 0x0000ffff"); E("s_mov_b64 exec, s[12:13]"); E("s_lshl_b32 s14, s15, 1")
        for t in range(18):
            E(f"s_max_u32 s13, s14, {32*t}")
            E(f"buffer_load_dwordx4 v[{KV+4*t}:{KV+4*t+3}], v9, s[48:51], s13 offen{SC}")
        E("s_mov_b64 exec, -1")
        for i in range(16):
            c = 8*(i >> 2) + (i & 3)
            E(f"v_cmp_le_i32 vcc, {c}, v11"); E("s_nop 1")
            E(f"v_cndmask_b32 v{S+128+i}, v12, v{S+128+i}, vcc"); E(f"v_cndmask_b32 v{S+i}, v{S+i}, v12, vcc")
        for kb in range(8):
            E(f"s_cmp_ge_u32 s10, {256-32*kb}"); E(f"s_cbranch_scc1 {n}_ok{hh}_{kb}")
            for i in range(16): E(f"v_mov_b32 v{S+16*kb+i}, v12")
            L(f"{n}_ok{hh}_{kb}")
        for c in range(4): E(f"v_max_f32 v{12+c}, v{S+c}, v{S+4+c}")
        for r in range(8, 144, 8):
            for c in range(4): E(f"v_max3_f32 v{12+c}, v{12+c}, v{S+r+c}, v{S+r+4+c}")
        E("v_max_f32 v12, v12, v13"); E("v_max_f32 v14, v14, v15"); E("v_max_f32 v12, v12, v14"); E("v_mov_b32 v13, v12")
        E("s_nop 1"); E("v_permlane32_swap_b32 v12, v13"); E("s_nop 1"); E("v_max_f32 v12, v12, v13")
        E(f"s_mov_b32 s13, {f2u(0.25*LOG2E):#x}"); E("v_mul_f32 v12, s13, v12")
        for r in range(0, 144, 4):
            for c in range(4): E(f"v_fma_f32 v{S+r+c}, v{S+r+c}, s13, -v12")
            for c in range(4): E(f"v_exp_f32 v{S+r+c}, v{S+r+c}")
            if r >= 4:
                p = r - 4; d = S + 16*(p//16) + (p % 16)//2
                E(f"v_cvt_pk_bf16_f32 v{d}, v{S+p}, v{S+p+1}"); E(f"v_cvt_pk_bf16_f32 v{d+1}, v{S+p+2}, v{S+p+3}")
        p = 140; d = S + 16*(p//16) + (p % 16)//2
        E("s_nop 0"); E(f"v_cvt_pk_bf16_f32 v{d}, v{S+p}, v{S+p+1}"); E(f"v_cvt_pk_bf16_f32 v{d+1}, v{S+p+2}, v{S+p+3}")
        E("s_nop 1")
        for t in range(18):
            E(f"s_waitcnt vmcnt({17-t})")
            b = S + 16*(t//2) + 4*(t % 2)
            E(f"v_mfma_f32_32x32x16_bf16 v[{O}:{O+15}], v[{KV+4*t}:{KV+4*t+3}], v[{b}:{b+3}], {'0' if t == 0 else f'v[{O}:{O+15}]'}")
        E("s_nop 15"); E(f"v_rcp_f32 v12, v{O+8}"); E("s_nop 0")
        for i in range(8): E(f"v_mul_f32 v{O+i}, v{O+i}, v12")
        for i in range(4): E(f"v_cvt_pk_bf16_f32 v{Q+i}, v{O+2*i}, v{O+2*i+1}")
        E(f"buffer_store_dwordx4 v[{Q}:{Q+3}], v10, s[52:55], 0 offen{SC}")
        E("s_nop 1")
    stamp(n); signal(n, 1); stamp(n)
    wait(n, 1); stamp(n)
    srd(40, 34, WS_O, 2*MB); srd(48, 34, WS_H, 2*MB); srd(52, 16, 0, 2*MB)
    load_xt2(40, 32, 32)
    E("v_add_u32 v9, s10, v3")
    w_addr(True, 10)
    E("v_lshlrev_b32 v12, 10, v9"); E("v_lshlrev_b32 v5, 3, v4"); E("v_add_u32 v12, v12, v5"); E("s_lshl_b32 s13, s61, 11")
    for q in range(4): E(f"buffer_load_dwordx2 v[{VT+8+2*q}:{VT+9+2*q}], v12, s[52:55], s62 offen offset:{16*q}")
    E("s_waitcnt vmcnt(0)"); E("s_barrier")
    items = [(10, 1024*s, VX+4*s, ACC0) for s in range(32)]
    for _ in mfma_items(items, True, lambda i: False, lambda i: i == 0): pass
    E("s_nop 15")
    for i in range(8):
        E(f"v_lshlrev_b32 v5, 16, v{VT+8+i}"); E(f"v_and_b32 v6, 0xffff0000, v{VT+8+i}")
        E(f"v_add_f32 v{ACC0+2*i}, v{ACC0+2*i}, v5"); E(f"v_add_f32 v{ACC0+2*i+1}, v{ACC0+2*i+1}, v6")
    pack(ACC0, VT)
    E(f"buffer_store_dwordx4 v[{VT}:{VT+3}], v8, s[48:51], s13 offen{SC}")
    E(f"buffer_store_dwordx4 v[{VT+4}:{VT+7}], v8, s[48:51], s13 offen offset:1024{SC}")
    stamp(n); signal(n, 2); stamp(n)
    issue(regl(4))
    wait(n, 2); stamp(n)
    srd(40, 34, WS_H, 2*MB); srd(52, 34, WS_HH, 2048*2752)
    load_xt2(40, 32, 32)
    E("s_lshr_b32 s4, s10, 5"); E(f"s_mul_i32 s4, s4, {86*1024}"); E("v_lshlrev_b32 v11, 4, v1"); E("v_add_u32 v11, s4, v11")
    ln_regs(0)
    E(f"s_mov_b32 s13, {f2u(-LOG2E):#x}")
    E("s_barrier")
    for j in range(3):
        sg, su = slotof[2*j]*32768, slotof[2*j+1]*32768
        E(f"v_add_u32 v13, {sg}, v10"); E(f"v_add_u32 v14, {su}, v10")
        items = []
        for s in range(32): items += [(13, 1024*s, VX+4*s, ACC0), (14, 1024*s, VX+4*s, ACC1)]
        for _ in mfma_items(items, True, lambda i: False, lambda i: i < 2): pass
        if j == 0: E("s_barrier"); issue(regl(5))
        if j == 1: E("s_waitcnt vmcnt(2)"); E("s_barrier")
        E("s_nop 15")
        for i in range(16): E(f"v_mul_f32 v{ACC0+i}, s13, v{ACC0+i}")
        for i in range(16): E(f"v_exp_f32 v{ACC0+i}, v{ACC0+i}")
        for i in range(16): E(f"v_add_f32 v{ACC0+i}, 1.0, v{ACC0+i}")
        for i in range(16): E(f"v_rcp_f32 v{ACC0+i}, v{ACC0+i}")
        for i in range(16): E(f"v_mul_f32 v{ACC0+i}, v{ACC0+i}, v{ACC1+i}")
        pack(ACC0, VT)
        E(f"s_add_u32 s12, s63, {64*j}"); E("s_lshl_b32 s12, s12, 5")
        E(f"buffer_store_dwordx4 v[{VT}:{VT+3}], v11, s[52:55], s12 offen{SC}")
        E(f"buffer_store_dwordx4 v[{VT+4}:{VT+7}], v11, s[52:55], s12 offen offset:1024{SC}")
        E("s_nop 1")
    stamp(n); signal(n, 3); stamp(n)
    NX = 44; X = 56; oldVW = VW; VW = 16; A = 232; T = 48
    srd(44, 28, 0, 1376*1024)
    dma_setup(1024); issue(dma_list(44, 62, 0, 0, 22, 1024))
    wait(n, 3); stamp(n)
    srd(40, 34, WS_HH, 2048*2752); srd(48, 34, WS_H, 2*MB); srd(52, 30, 0, 2*MB)
    load_xt2(40, 86, NX, X)
    E("v_add_u32 v13, 0x10000, v10"); E("v_add_u32 v9, s10, v3")
    E("v_lshlrev_b32 v12, 10, v9"); E("v_lshlrev_b32 v5, 3, v4"); E("v_add_u32 v12, v12, v5")
    E("s_lshl_b32 s13, s10, 10"); E("s_lshl_b32 s14, s61, 11"); E("s_add_u32 s13, s13, s14"); E("v_lshlrev_b32 v11, 4, v1")
    E(f"buffer_load_dwordx4 v[248:251], v11, s[48:51], s13 offen{SC}"); E(f"buffer_load_dwordx4 v[252:255], v11, s[48:51], s13 offen offset:1024{SC}")
    E("s_waitcnt vmcnt(0)"); E("s_barrier")
    items = [((10, 1024*s) if s < 64 else (13, 1024*(s-64))) + (X+4*(s % NX), A) for s in range(86)]
    for i in mfma_items(items, True, lambda i: False, lambda i: i == 0):
        if i + NX < 86:
            s = i + NX; E(f"s_mov_b32 s4, {1024*s}"); E(f"buffer_load_dwordx4 v[{X+4*i}:{X+4*i+3}], v8, s[40:43], s4 offen{SC}")
        if i + 1 >= NX and i + 1 < 86: E(f"s_waitcnt vmcnt({85-(i+1)})")
    VW = oldVW
    E("s_nop 15")
    for i in range(8):
        E(f"v_lshlrev_b32 v5, 16, v{248+i}"); E(f"v_and_b32 v6, 0xffff0000, v{248+i}")
        E(f"v_add_f32 v{A+2*i}, v{A+2*i}, v5"); E(f"v_add_f32 v{A+2*i+1}, v{A+2*i+1}, v6")
    pack(A, T)
    for q in range(4): E(f"buffer_store_dwordx2 v[{T+2*q}:{T+2*q+1}], v12, s[52:55], s62 offen offset:{16*q}")
    epilogue_end(n)

k0(); mega()
hdr = open("cdna_kernels/" + NAME + ".s.ref").read().split("\n")
head = [l for l in hdr if l.startswith(";") and "@launch" not in l and "Override" not in l and "grid=ceil" not in l]
import os
dup = int(os.environ.get("DUP", "-1"))
ll = []
for idx, (k, g, l) in enumerate(kernels):
    ll += [f"; @launch kernel={k} grid=({g},1,1) block=(256,1,1) lds={l}"] * (5 if idx == dup else 1)
if dup == 99: ll = ll + ll
if STAMPK:
    ll = ll + [x for x in ll if STAMPK in x]
txt = head + ll
txt += ['.amdgcn_target "amdgcn-amd-amdhsa--gfx950"', ".text"] + out + ['.section .rodata,"a"']
for k, g, l in kernels:
    txt += [".p2align 6", f".amdhsa_kernel {k}", "  .amdhsa_next_free_vgpr 256", "  .amdhsa_next_free_sgpr 102", "  .amdhsa_accum_offset 256",
            "  .amdhsa_group_segment_fixed_size 0", "  .amdhsa_kernarg_size 80", "  .amdhsa_user_sgpr_count 2",
            "  .amdhsa_user_sgpr_kernarg_segment_ptr 1", "  .amdhsa_system_sgpr_workgroup_id_x 1", ".end_amdhsa_kernel"]
open(os.environ.get("OUT", "cdna_kernels/" + NAME + ".s"), "w").write("\n".join(txt) + "\n")
```

```python
import sys, os
NAME = "sequential_preLN__sliding_block__glu_gated_glu__prompt"
out = []
def E(s): out.append("    " + s)
def L(s): out.append(s + ":")
MB = 1 << 20
WS_Q, WS_K, WS_V, WS_O, WS_H, WS_HH = 0, 2*MB, 4*MB, 6*MB, 8*MB, 10*MB
WS_XN = 16*MB
LOG2E = 1.4426950408889634
import struct
def f2u(f): return struct.unpack("<I", struct.pack("<f", f))[0]

def prologue(name, nwg):
    out.append(".p2align 8"); out.append(f".globl {name}"); out.append(f".type {name},@function"); L(name)
    E(f"s_cmp_ge_u32 s2, {nwg}"); E(f"s_cbranch_scc1 {name}_done")
    E("s_load_dwordx16 s[16:31], s[0:1], 0"); E("s_load_dwordx4 s[32:35], s[0:1], 64")
    E("v_and_b32 v1, 63, v0")
    E("v_lshrrev_b32 v2, 6, v0")
    E("v_and_b32 v3, 31, v0")
    E("v_readfirstlane_b32 s3, v2")
    E("v_bfe_u32 v4, v0, 5, 1")
    E("s_waitcnt lgkmcnt(0)")
STAMPK = os.environ.get("STAMP", "")
nst = [0]
def stamp(name):
    if name != STAMPK: return
    E("s_memtime s[74:75]"); E("s_waitcnt lgkmcnt(0)"); E(f"s_mov_b32 s{76+nst[0]}, s74"); nst[0] += 1
def epilogue_end(name):
    if name == STAMPK:
        stamp(name)
        srd(40, 32, 0, 256)
        E("s_cmp_lg_u32 s2, 8"); E(f"s_cbranch_scc1 {name}_done"); E("s_cmp_lg_u32 s3, 0"); E(f"s_cbranch_scc1 {name}_done")
        srd(40, 32, 0, 256)
        for i in range(nst[0]):
            E(f"s_sub_u32 s4, s{76+i}, s76"); E("v_mov_b32 v5, s4"); E(f"v_mov_b32 v6, {4*i}"); E("buffer_store_dword v5, v6, s[40:43], 0 offen")
    L(f"{name}_done"); E("s_endpgm")
def srd(d, base, off, size):
    if off >= 0:
        E(f"s_add_u32 s{d}, s{base}, {off}"); E(f"s_addc_u32 s{d+1}, s{base+1}, 0")
    else:
        E(f"s_sub_u32 s{d}, s{base}, {-off}"); E(f"s_subb_u32 s{d+1}, s{base+1}, 0")
    E(f"s_mov_b32 s{d+2}, {size}"); E(f"s_mov_b32 s{d+3}, 0x00020000")

VX, VW, ACC0, ACC1, VT = 16, 144, 176, 192, 208

def w_addr(perm, vdst, RB=64):
    E("v_bfe_u32 v5, v0, 2, 2")
    E(f"v_lshlrev_b32 v6, {2 if perm else 3}, v4")
    E("v_add_u32 v5, v5, v6")
    E(f"v_mul_u32_u24 v5, {RB}, v5")
    E("v_bfe_u32 v6, v0, 4, 1")
    E("v_lshlrev_b32 v6, 5, v6")
    E("v_add_u32 v5, v5, v6")
    E("v_and_b32 v6, 3, v0")
    E("v_lshlrev_b32 v6, 3, v6")
    E(f"v_add_u32 v{vdst}, v5, v6")

def dma_setup(ldw):
    E("v_lshrrev_b32 v5, 2, v0"); E(f"s_mov_b32 s4, {ldw}"); E("v_mul_lo_u32 v5, v5, s4")
    E("v_and_b32 v6, 3, v0"); E("v_lshlrev_b32 v6, 4, v6"); E("v_add_u32 v7, v5, v6")
    E("s_lshl_b32 s5, s3, 10")
def dma_region(srdreg, scol, ldsbase, nj, ldw):
    E(f"s_mov_b32 s6, s{scol}"); E(f"s_add_u32 s7, s5, {ldsbase}")
    for j in range(nj):
        E("s_mov_b32 m0, s7");
        if j + 1 < nj: E("s_add_u32 s7, s7, 4096")
        else: E("s_nop 0")
        E(f"buffer_load_dwordx4 v7, s[{srdreg}:{srdreg+3}], s6 offen lds")
        if j + 1 < nj: E(f"s_add_u32 s6, s6, {64*ldw}")

def dma_list(srdreg, scolreg, coladd, ldsbase, nj, ldw):
    r = []
    for j in range(nj):
        r.append([f"s_add_u32 s6, s{scolreg}, {coladd + j*64*ldw}", f"s_add_u32 m0, s5, {ldsbase + j*4096}", "s_nop 0",
                  f"buffer_load_dwordx4 v7, s[{srdreg}:{srdreg+3}], s6 offen lds"])
    return r
def dma_setup_w(ldw):
    E("s_lshl_b32 s5, s3, 10"); E("s_mov_b32 s4, 0xAAAB"); E(f"s_mov_b32 s6, {ldw}")
    for t, vr in enumerate((7, 14, 15)):
        E(f"v_add_u32 v5, {256*t}, v0"); E("v_mul_lo_u32 v6, v5, s4"); E("v_lshrrev_b32 v6, 19, v6")
        E("v_mul_u32_u24 v2, 12, v6"); E("v_sub_u32 v5, v5, v2"); E("v_lshlrev_b32 v5, 4, v5")
        E("v_mul_lo_u32 v6, v6, s6"); E(f"v_add_u32 v{vr}, v5, v6")
def dma_list_w(srdreg, scolreg, ldsbase, row0, nrows, ldw):
    r = []
    for j in range(nrows*12//256):
        r.append([f"s_add_u32 s6, s{scolreg}, {(row0 + (j//3)*64)*ldw}", f"s_add_u32 m0, s5, {ldsbase + j*4096}", "s_nop 0",
                  f"buffer_load_dwordx4 v{(7,14,15)[j%3]}, s[{srdreg}:{srdreg+3}], s6 offen lds"])
    return r
def mfma_items(items, perm, swap_of, first_of, RB=64):
    d2 = 8*RB if perm else 4*RB
    n = len(items); D = 6
    def rd(i):
        va, off, _, _ = items[i]; w = VW + 4 * (i % 8)
        E(f"ds_read_b64_tr_b16 v[{w}:{w+1}], v{va} offset:{off}")
        E(f"ds_read_b64_tr_b16 v[{w+2}:{w+3}], v{va} offset:{off+d2}")
    for i in range(min(D, n)): rd(i)
    for i in range(n):
        va, off, x, acc = items[i][:4]; w = VW + 4 * (i % 8)
        E(f"s_waitcnt lgkmcnt({2*(min(i+D-1, n-1)-i)})")
        c = "0" if first_of(i) else f"v[{acc}:{acc+15}]"
        if swap_of(i): E(f"v_mfma_f32_32x32x16_bf16 v[{acc}:{acc+15}], v[{x}:{x+3}], v[{w}:{w+3}], {c}")
        else:          E(f"v_mfma_f32_32x32x16_bf16 v[{acc}:{acc+15}], v[{w}:{w+3}], v[{x}:{x+3}], {c}")
        if i + D < n: rd(i + D)
        yield i

def ln_regs(ndma, inter=[]):
    E("s_mov_b32 s8, 0x3f803f80")
    for q in range(4): E(f"v_mov_b32 v{VT+q}, 0"); E(f"v_mov_b32 v{VT+4+q}, 0")
    inter = list(inter); nd = 0
    for g in range(4):
        E(f"s_waitcnt vmcnt({min(63, 24-8*g+nd)})")
        for r in range(32*g, 32*g+32):
            if inter and r % 8 == 4:
                for x in inter.pop(0): E(x)
                nd += 1
            E(f"v_dot2_f32_bf16 v{VT+(r&3)}, v{VX+r}, s8, v{VT+(r&3)}")
            E(f"v_dot2_f32_bf16 v{VT+4+(r&3)}, v{VX+r}, v{VX+r}, v{VT+4+(r&3)}")
    E("s_nop 3")
    E(f"v_add_f32 v{VT}, v{VT}, v{VT+1}"); E(f"v_add_f32 v{VT+2}, v{VT+2}, v{VT+3}")
    E(f"v_add_f32 v{VT+4}, v{VT+4}, v{VT+5}"); E(f"v_add_f32 v{VT+6}, v{VT+6}, v{VT+7}")
    E(f"v_add_f32 v{VT}, v{VT}, v{VT+2}"); E(f"v_add_f32 v{VT+4}, v{VT+4}, v{VT+6}")
    E(f"v_mov_b32 v{VT+1}, v{VT}"); E(f"v_mov_b32 v{VT+5}, v{VT+4}")
    E("s_nop 1")
    E(f"v_permlane32_swap_b32 v{VT}, v{VT+1}"); E(f"v_permlane32_swap_b32 v{VT+4}, v{VT+5}")
    E("s_nop 1")
    E(f"v_add_f32 v{VT}, v{VT}, v{VT+1}"); E(f"v_add_f32 v{VT+4}, v{VT+4}, v{VT+5}")
    E(f"v_mul_f32 v{VT}, {f2u(1/512):#x}, v{VT}")
    E(f"v_mul_f32 v{VT+4}, {f2u(1/512):#x}, v{VT+4}")
    E(f"v_fma_f32 v{VT+4}, -v{VT}, v{VT}, v{VT+4}")
    E(f"v_max_f32 v{VT+4}, 0, v{VT+4}")
    E(f"v_add_f32 v{VT+4}, {f2u(1e-5):#x}, v{VT+4}")
    E(f"v_rsq_f32 v{VT+4}, v{VT+4}")
    E("s_nop 0")
    E(f"v_mul_f32 v{VT}, v{VT}, v{VT+4}")
    E(f"v_sub_f32 v{VT}, 0, v{VT}")
    for r in range(128):
        if inter and r % 5 == 0:
            for x in inter.pop(0): E(x)
        a, b = VT + 8 + 2 * (r & 3), VT + 9 + 2 * (r & 3)
        E(f"v_lshlrev_b32 v{a}, 16, v{VX+r}"); E(f"v_and_b32 v{b}, 0xffff0000, v{VX+r}")
        E(f"v_fma_f32 v{a}, v{a}, v{VT+4}, v{VT}"); E(f"v_fma_f32 v{b}, v{b}, v{VT+4}, v{VT}")
        E(f"v_cvt_pk_bf16_f32 v{VX+r}, v{a}, v{b}")

def load_x(srdreg, ld, nsteps, base=VX):
    E("s_lshl_b32 s10, s3, 5"); E("s_add_u32 s10, s10, s9")
    E("v_add_u32 v9, s10, v3"); E(f"s_mov_b32 s4, {ld}"); E("v_mul_lo_u32 v8, v9, s4")
    E("v_lshlrev_b32 v5, 4, v4"); E("v_add_u32 v8, v8, v5")
    for s in range(nsteps):
        E(f"buffer_load_dwordx4 v[{base+4*s}:{base+4*s+3}], v8, s[{srdreg}:{srdreg+3}], 0 offen offset:{32*s}")
def wgmap(a=2):
    if a == 2:
        E("s_and_b32 s9, s2, 7"); E("s_lshl_b32 s9, s9, 1"); E("s_lshr_b32 s11, s2, 7"); E("s_add_u32 s9, s9, s11"); E("s_lshl_b32 s9, s9, 7")
        E("s_lshr_b32 s11, s2, 3"); E("s_and_b32 s11, s11, 15")
    else:
        E("s_bfe_u32 s9, s2, 0x20001"); E("s_lshl_b32 s9, s9, 2"); E("s_lshr_b32 s11, s2, 6"); E("s_add_u32 s9, s9, s11"); E("s_lshl_b32 s9, s9, 7")
        E("s_bfe_u32 s11, s2, 0x30003"); E("s_and_b32 s4, s2, 1"); E("s_lshl_b32 s4, s4, 3"); E("s_add_u32 s11, s11, s4")
def load_xt(srdreg, nsteps_total, nsteps, base=VX):
    E("s_lshl_b32 s10, s3, 5"); E("s_add_u32 s10, s10, s9"); E("v_add_u32 v9, s10, v3")
    E("s_lshr_b32 s4, s10, 5"); E(f"s_mul_i32 s4, s4, {nsteps_total*1024}")
    E("v_lshlrev_b32 v8, 4, v1"); E("v_add_u32 v8, s4, v8")
    for s in range(nsteps):
        if s % 4 == 0: E(f"s_mov_b32 s4, {1024*s}")
        E(f"buffer_load_dwordx4 v[{base+4*s}:{base+4*s+3}], v8, s[{srdreg}:{srdreg+3}], s4 offen offset:{1024*(s%4)}")
def pack(acc, dst):
    for i in range(8): E(f"v_cvt_pk_bf16_f32 v{dst+i}, v{acc+2*i}, v{acc+2*i+1}")

kernels = []
def k0():
    n = "k0_ln_kernel"; kernels.append((n, 256, 0)); prologue(n, 256)
    E("s_and_b32 s9, s2, 7"); E("s_lshl_b32 s9, s9, 8"); E("s_lshr_b32 s10, s2, 3"); E("s_lshl_b32 s10, s10, 3"); E("s_add_u32 s9, s9, s10")
    E("s_lshl_b32 s10, s3, 1"); E("s_add_u32 s9, s9, s10")
    srd(40, 16, 0, 2*MB); srd(44, 34, WS_XN, 2*MB)
    E("s_cmp_lg_u32 s2, 0"); E("s_cbranch_scc1 k0_nz")
    srd(52, 34, 20*MB, 16384)
    for i in range(4): E(f"v_mov_b32 v{40+i}, 0")
    E("v_lshlrev_b32 v5, 6, v0")
    for i in range(4): E(f"buffer_store_dwordx4 v[40:43], v5, s[52:55], 0 offen offset:{16*i}")
    L("k0_nz")
    E("s_lshl_b32 s10, s9, 10"); E("v_lshlrev_b32 v5, 4, v1")
    E("buffer_load_dwordx4 v[16:19], v5, s[40:43], s10 offen"); E("buffer_load_dwordx4 v[20:23], v5, s[40:43], s10 offen offset:1024")
    E("s_lshr_b32 s11, s9, 5"); E("s_lshl_b32 s11, s11, 15"); E("s_and_b32 s12, s9, 31"); E("s_lshl_b32 s12, s12, 4"); E("s_add_u32 s11, s11, s12")
    E("v_lshrrev_b32 v6, 1, v1"); E("v_lshlrev_b32 v6, 10, v6"); E("v_and_b32 v7, 1, v1"); E("v_lshlrev_b32 v7, 9, v7"); E("v_add_u32 v6, v6, v7")
    E("s_mov_b32 s8, 0x3f803f80")
    for q in range(4): E(f"v_mov_b32 v{24+q}, 0")
    if os.environ.get("PF", "1") == "1":
        E("s_lshl_b32 s12, s2, 12"); E("v_lshlrev_b32 v32, 4, v0"); E("v_add_u32 v32, s12, v32"); E("v_add_u32 v33, 0x100000, v32")
        k = 0
        for base, size in ((18, 512*3072), (20, 512*1024), (24, 512*2752), (26, 512*2752), (28, 1376*1024)):
            srd(48, base, 0, size)
            E(f"buffer_load_dwordx4 v[{36+4*k}:{39+4*k}], v32, s[48:51], 0 offen"); k += 1
            if size > MB: E(f"buffer_load_dwordx4 v[{36+4*k}:{39+4*k}], v33, s[48:51], 0 offen"); k += 1
        npf = int(os.environ.get("NPF", "0"))
        if npf:
            E("s_getpc_b64 s[60:61]"); L("k0_pc")
            E("v_lshlrev_b32 v34, 4, v0")
            for i in range(npf):
                E(f"global_load_dwordx4 v[{72+4*i}:{75+4*i}], v34, s[60:61]"); E("v_add_u32 v34, 0x1000, v34")
        E(f"s_waitcnt vmcnt({9+npf})")
    else:
        E("s_waitcnt vmcnt(0)")
    for r in range(2):
        for i in range(4):
            E(f"v_dot2_f32_bf16 v{24+2*r}, v{16+4*r+i}, s8, v{24+2*r}"); E(f"v_dot2_f32_bf16 v{25+2*r}, v{16+4*r+i}, v{16+4*r+i}, v{25+2*r}")
    E("s_nop 3")
    for off in (0x041F, 0x081F, 0x101F, 0x201F, 0x401F):
        for q in range(4): E(f"ds_swizzle_b32 v{28+q}, v{24+q} offset:{off:#x}")
        E("s_waitcnt lgkmcnt(0)")
        for q in range(4): E(f"v_add_f32 v{24+q}, v{24+q}, v{28+q}")
    for q in range(4): E(f"v_mov_b32 v{28+q}, v{24+q}")
    E("s_nop 1")
    for q in range(4): E(f"v_permlane32_swap_b32 v{24+q}, v{28+q}")
    E("s_nop 1")
    for q in range(4): E(f"v_add_f32 v{24+q}, v{24+q}, v{28+q}")
    for r in range(2):
        a, b = 24+2*r, 25+2*r
        E(f"v_mul_f32 v{a}, {f2u(1/512):#x}, v{a}"); E(f"v_mul_f32 v{b}, {f2u(1/512):#x}, v{b}")
        E(f"v_fma_f32 v{b}, -v{a}, v{a}, v{b}"); E(f"v_max_f32 v{b}, 0, v{b}"); E(f"v_add_f32 v{b}, {f2u(1e-5):#x}, v{b}")
        E(f"v_rsq_f32 v{b}, v{b}"); E("s_nop 0"); E(f"v_mul_f32 v{a}, v{a}, v{b}"); E(f"v_sub_f32 v{a}, 0, v{a}")
        for i in range(4):
            x = 16+4*r+i
            E(f"v_lshlrev_b32 v30, 16, v{x}"); E(f"v_and_b32 v31, 0xffff0000, v{x}")
            E(f"v_fma_f32 v30, v30, v{b}, v{a}"); E(f"v_fma_f32 v31, v31, v{b}, v{a}"); E(f"v_cvt_pk_bf16_f32 v{x}, v30, v31")
        E(f"buffer_store_dwordx4 v[{16+4*r}:{19+4*r}], v6, s[44:47], s11 offen offset:{16*r}")
    epilogue_end(n)

SC = " sc1"
def lanes():
    E("v_and_b32 v1, 63, v0"); E("v_and_b32 v3, 31, v0"); E("v_bfe_u32 v4, v0, 5, 1")
WS_CNT = 20*MB
def signal(n, idx):
    E("s_waitcnt vmcnt(0)"); E("s_barrier")
    E("s_cmp_lg_u32 s3, 0"); E(f"s_cbranch_scc1 {n}_sig{idx}")
    E("s_lshl_b32 s4, s9, 1"); E(f"s_add_u32 s4, s4, {idx*4096}")
    E("v_mov_b32 v5, 1"); E("v_mov_b32 v6, s4"); E("s_mov_b64 exec, 1")
    E("buffer_atomic_add v5, v6, s[56:59], 0 offen"); E("s_mov_b64 exec, -1")
    L(f"{n}_sig{idx}")
def wait(n, idx, back=0):
    E("s_cmp_lg_u32 s3, 0"); E(f"s_cbranch_scc1 {n}_wx{idx}")
    for b in range(back + 1):
        E("s_lshl_b32 s4, s9, 1"); E(f"s_sub_i32 s4, s4, {256*b}"); E("s_max_i32 s4, s4, 0"); E(f"s_add_u32 s4, s4, {idx*4096}")
        E("v_mov_b32 v6, s4"); E("s_mov_b32 s6, 0")
        L(f"{n}_w{idx}_{b}")
        E("buffer_load_dword v5, v6, s[56:59], 0 offen sc1"); E("s_waitcnt vmcnt(0)")
        E("v_readfirstlane_b32 s4, v5"); E("s_add_u32 s6, s6, 1"); E("s_cmp_ge_u32 s4, 16"); E(f"s_cbranch_scc1 {n}_wd{idx}_{b}")
        E("s_sleep 3"); E("s_cmp_lt_u32 s6, 0x4000"); E(f"s_cbranch_scc1 {n}_w{idx}_{b}")
        L(f"{n}_wd{idx}_{b}")
    L(f"{n}_wx{idx}")
    E("s_waitcnt vmcnt(0)"); E("s_barrier")
def load_xt2(srdreg, nsteps_total, nsteps, base=VX, sc=SC):
    E("s_lshr_b32 s4, s10, 5"); E(f"s_mul_i32 s4, s4, {nsteps_total*1024}")
    E("v_lshlrev_b32 v8, 4, v1"); E("v_add_u32 v8, s4, v8")
    for s in range(nsteps):
        if s % 4 == 0: E(f"s_mov_b32 s4, {1024*s}")
        E(f"buffer_load_dwordx4 v[{base+4*s}:{base+4*s+3}], v8, s[{srdreg}:{srdreg+3}], s4 offen offset:{1024*(s%4)}{sc}")
def issue(groups):
    for g in groups:
        for x in g: E(x)

def mega():
    global VW
    n = "km_block_kernel"; kernels.append((n, 256, 163840)); prologue(n, 256)
    stamp(n); wgmap(2)
    E("s_mov_b32 s61, s11")
    E("s_lshl_b32 s10, s3, 5"); E("s_add_u32 s10, s10, s9")
    srd(56, 34, WS_CNT, 16384)
    E("s_mul_i32 s11, s61, 3")
    srd(40, 34, WS_XN, 2*MB); srd(44, 18, 0, 512*3072); srd(48, 34, 0, 6*MB)
    dma_setup_w(3072)
    E("s_lshl_b32 s60, s11, 6")
    allw = dma_list_w(44, 60, 0, 0, 512, 3072)
    issue(allw[:8]); load_xt2(40, 32, 32, VX, ""); issue(allw[8:])
    E("v_add_u32 v9, s10, v3")
    w_addr(False, 10, 192); E("v_add_u32 v13, 0xc000, v10")
    E("v_lshlrev_b32 v11, 5, v9"); E("v_lshlrev_b32 v5, 4, v4"); E("v_add_u32 v11, v11, v5")
    E("v_lshlrev_b32 v12, 12, v3"); E("v_lshlrev_b32 v5, 4, v4"); E("v_add_u32 v12, v12, v5")
    E("s_lshl_b32 s13, s10, 1"); E("v_add_u32 v12, s13, v12")
    E("s_waitcnt vmcnt(0)"); E("s_barrier")
    for j in range(3):
        E(f"s_add_u32 s12, s11, {j}"); E("s_cmp_ge_u32 s12, 32"); E(f"s_cbranch_scc1 {n}_v{j}")
        for sw in (False, True):
            if sw: L(f"{n}_v{j}")
            items = [((10, 3072*s + 64*j) if s < 16 else (13, 3072*(s-16) + 64*j)) + (VX+4*s, ACC0) for s in range(32)]
            for i in mfma_items(items, False, lambda i: sw, lambda i: i == 0, 192): pass
            E("s_nop 15"); pack(ACC0, VT)
            if not sw:
                E("s_lshr_b32 s14, s12, 4"); E("s_lshl_b32 s14, s14, 21"); E("s_and_b32 s15, s12, 15"); E("s_lshl_b32 s15, s15, 17")
                E("s_add_u32 s14, s14, s15"); E("s_add_u32 s15, s14, 65536")
                E(f"buffer_store_dwordx4 v[{VT}:{VT+3}], v11, s[48:51], s14 offen{SC}")
                E(f"buffer_store_dwordx4 v[{VT+4}:{VT+7}], v11, s[48:51], s15 offen{SC}")
                E(f"s_branch {n}_e{j}")
            else:
                E("s_sub_u32 s14, s12, 32"); E("s_lshl_b32 s14, s14, 17"); E(f"s_add_u32 s14, s14, {WS_V}")
                E(f"buffer_store_dwordx4 v[{VT}:{VT+3}], v12, s[48:51], s14 offen{SC}")
                E(f"buffer_store_dwordx4 v[{VT+4}:{VT+7}], v12, s[48:51], s14 offen offset:32{SC}")
        L(f"{n}_e{j}"); E("s_nop 1")
    stamp(n); signal(n, 0); stamp(n)
    srd(44, 20, 0, 512*1024); srd(64, 24, 0, 512*2752); srd(68, 26, 0, 512*2752)
    E("s_lshl_b32 s62, s61, 6")
    E("s_mul_i32 s63, s61, 86"); E("s_and_b32 s63, s63, 0xfffffff0"); E("s_lshl_b32 s63, s63, 1")
    dma_setup(1024); issue(dma_list(44, 62, 0, 0, 8, 1024))
    dma_setup(2752)
    slotof = {0: 1, 1: 2, 2: 3, 3: 4, 4: 0, 5: 1}
    def regl(r): return dma_list(64 if r % 2 == 0 else 68, 63, 64*(r//2), slotof[r]*32768, 8, 2752)
    E("v_mov_b32 v5, 0x3f803f80")
    for r in range(144): E(f"v_accvgpr_write_b32 a{80+r}, v5")
    wait(n, 0, 2); stamp(n)
    S, O, PK = 96, 240, 16
    srd(40, 34, WS_Q, 2*MB); srd(44, 34, WS_K - 8192, 2*MB + 8192); srd(48, 34, WS_V - 512, 2*MB + 512); srd(52, 34, WS_O, 2*MB)
    E("v_lshlrev_b32 v5, 2, v4"); E("v_sub_u32 v11, v3, v5")
    E("s_sub_i32 s15, 256, s10"); E("s_max_i32 s15, s15, 0")
    E("v_lshlrev_b32 v6, 4, v4")
    E("s_lshl_b32 s11, s61, 1")
    E("s_lshl_b32 s12, s11, 11"); E("s_add_u32 s12, s12, s10")
    E("v_add_u32 v5, s12, v3"); E("v_lshlrev_b32 v5, 5, v5"); E("v_add_u32 v8, v5, v6"); E("v_add_u32 v13, 0x10000, v8")
    E("s_lshl_b32 s14, s15, 5")
    for hh in range(2):
        va = (8, 13)[hh]
        E(f"buffer_load_dwordx4 a[{72+4*hh}:{75+4*hh}], v{va}, s[40:43], 0 offen{SC}")
        for kb in range(9):
            E(f"s_max_u32 s13, s14, {kb*1024}")
            E(f"buffer_load_dwordx4 a[{36*hh+4*kb}:{36*hh+4*kb+3}], v{va}, s[44:47], s13 offen{SC}")
    E("v_and_b32 v5, 15, v0"); E("s_lshl_b32 s13, s11, 4"); E("v_add_u32 v5, s13, v5"); E("v_lshlrev_b32 v5, 12, v5")
    E("s_lshl_b32 s13, s10, 1"); E("v_add_u32 v5, s13, v5"); E("v_add_u32 v9, v5, v6"); E("v_add_u32 v14, 0x10000, v9")
    E("s_mov_b32 s12, 0x0000ffff"); E("s_mov_b32 s13, 0x0000ffff"); E("s_mov_b64 exec, s[12:13]"); E("s_lshl_b32 s14, s15, 1")
    for hh in range(2):
        for t in range(18):
            E(f"s_max_u32 s13, s14, {32*t}")
            E(f"buffer_load_dwordx4 a[{80+72*hh+4*t}:{80+72*hh+4*t+3}], v{(9,14)[hh]}, s[48:51], s13 offen{SC}")
    E("s_mov_b64 exec, -1")
    E("s_add_u32 s13, s10, s11"); E("s_lshl_b32 s13, s13, 10"); E("v_lshlrev_b32 v5, 4, v1"); E("v_add_u32 v10, s13, v5")
    for hh in range(2):
        pf = regl(2*hh) + regl(2*hh+1)
        E(f"v_mov_b32 v12, {f2u(-1e30):#x}")
        for kb in range(9):
            if hh == 0: E(f"s_waitcnt vmcnt({54-kb})")
            E(f"v_mfma_f32_32x32x16_bf16 v[{S+16*kb}:{S+16*kb+15}], a[{36*hh+4*kb}:{36*hh+4*kb+3}], a[{72+4*hh}:{75+4*hh}], 0")
        E("s_nop 7"); E("s_nop 3")
        for kb in range(8):
            E(f"s_cmp_ge_u32 s10, {256-32*kb}"); E(f"s_cbranch_scc1 {n}_ok{hh}_{kb}")
            for i in range(16): E(f"v_mov_b32 v{S+16*kb+i}, v12")
            L(f"{n}_ok{hh}_{kb}")
        for i in range(16):
            c = 8*(i >> 2) + (i & 3)
            E(f"v_cmp_le_i32 vcc, {c}, v11"); E("s_nop 1")
            E(f"v_cndmask_b32 v{S+128+i}, v12, v{S+128+i}, vcc"); E(f"v_cndmask_b32 v{S+i}, v{S+i}, v12, vcc")
        for c in range(4): E(f"v_max_f32 v{PK+c}, v{S+c}, v{S+4+c}")
        for r in range(8, 144, 8):
            for c in range(4): E(f"v_max3_f32 v{PK+c}, v{PK+c}, v{S+r+c}, v{S+r+4+c}")
        E(f"v_max_f32 v{PK}, v{PK}, v{PK+1}"); E(f"v_max_f32 v{PK+2}, v{PK+2}, v{PK+3}"); E(f"v_max_f32 v12, v{PK}, v{PK+2}"); E("v_mov_b32 v15, v12")
        E("s_nop 1"); E("v_permlane32_swap_b32 v12, v15"); E("s_nop 1"); E("v_max_f32 v12, v12, v15")
        E(f"s_mov_b32 s13, {f2u(0.25*LOG2E):#x}"); E("v_mul_f32 v12, s13, v12")
        for r in range(0, 144, 4):
            for c in range(4): E(f"v_fma_f32 v{S+r+c}, v{S+r+c}, s13, -v12")
            for c in range(4): E(f"v_exp_f32 v{S+r+c}, v{S+r+c}")
            if r >= 4:
                p = r - 4; d = S + 16*(p//16) + (p % 16)//2
                E(f"v_cvt_pk_bf16_f32 v{d}, v{S+p}, v{S+p+1}"); E(f"v_cvt_pk_bf16_f32 v{d+1}, v{S+p+2}, v{S+p+3}")
            if r % 8 == 0 and pf: issue([pf.pop(0)])
        p = 140; d = S + 16*(p//16) + (p % 16)//2
        E("s_nop 0"); E(f"v_cvt_pk_bf16_f32 v{d}, v{S+p}, v{S+p+1}"); E(f"v_cvt_pk_bf16_f32 v{d+1}, v{S+p+2}, v{S+p+3}")
        assert not pf
        E(f"s_waitcnt vmcnt({(18+16) if hh == 0 else (16+1+16)})")
        for t in range(18):
            bb = S + 16*(t//2) + 4*(t % 2)
            E(f"v_mfma_f32_32x32x16_bf16 v[{O}:{O+15}], a[{80+72*hh+4*t}:{80+72*hh+4*t+3}], v[{bb}:{bb+3}], {'0' if t == 0 else f'v[{O}:{O+15}]'}")
        E("s_nop 15"); E(f"v_rcp_f32 v12, v{O+8}"); E("s_nop 0")
        for i in range(8): E(f"v_mul_f32 v{O+i}, v{O+i}, v12")
        for i in range(4): E(f"v_cvt_pk_bf16_f32 v{PK+i}, v{O+2*i}, v{O+2*i+1}")
        E(f"buffer_store_dwordx4 v[{PK}:{PK+3}], v10, s[52:55], 0 offen offset:{1024*hh}{SC}")
        E("s_nop 1")
    stamp(n); signal(n, 1); stamp(n)
    wait(n, 1); stamp(n)
    srd(40, 34, WS_O, 2*MB); srd(48, 34, WS_H, 2*MB); srd(52, 16, 0, 2*MB)
    load_xt2(40, 32, 32)
    E("v_add_u32 v9, s10, v3")
    w_addr(True, 10)
    E("v_lshlrev_b32 v12, 10, v9"); E("v_lshlrev_b32 v5, 3, v4"); E("v_add_u32 v12, v12, v5"); E("s_lshl_b32 s13, s61, 11")
    for q in range(4): E(f"buffer_load_dwordx2 v[{VT+8+2*q}:{VT+9+2*q}], v12, s[52:55], s62 offen offset:{16*q}")
    E("s_waitcnt vmcnt(0)"); E("s_barrier")
    items = [(10, 1024*s, VX+4*s, ACC0) for s in range(32)]
    for _ in mfma_items(items, True, lambda i: False, lambda i: i == 0): pass
    E("s_nop 15")
    for i in range(8):
        E(f"v_lshlrev_b32 v5, 16, v{VT+8+i}"); E(f"v_and_b32 v6, 0xffff0000, v{VT+8+i}")
        E(f"v_add_f32 v{ACC0+2*i}, v{ACC0+2*i}, v5"); E(f"v_add_f32 v{ACC0+2*i+1}, v{ACC0+2*i+1}, v6")
    pack(ACC0, VT)
    E(f"buffer_store_dwordx4 v[{VT}:{VT+3}], v8, s[48:51], s13 offen{SC}")
    E(f"buffer_store_dwordx4 v[{VT+4}:{VT+7}], v8, s[48:51], s13 offen offset:1024{SC}")
    stamp(n); signal(n, 2); stamp(n)
    issue(regl(4))
    wait(n, 2); stamp(n)
    srd(40, 34, WS_H, 2*MB); srd(52, 34, WS_HH, 2048*2752)
    load_xt2(40, 32, 32)
    E("s_lshr_b32 s4, s10, 5"); E(f"s_mul_i32 s4, s4, {86*1024}"); E("v_lshlrev_b32 v11, 4, v1"); E("v_add_u32 v11, s4, v11")
    ln_regs(0)
    E(f"s_mov_b32 s13, {f2u(-LOG2E):#x}")
    E("s_barrier")
    for j in range(3):
        sg, su = slotof[2*j]*32768, slotof[2*j+1]*32768
        E(f"v_add_u32 v13, {sg}, v10"); E(f"v_add_u32 v14, {su}, v10")
        items = []
        for s in range(32): items += [(13, 1024*s, VX+4*s, ACC0), (14, 1024*s, VX+4*s, ACC1)]
        for _ in mfma_items(items, True, lambda i: False, lambda i: i < 2): pass
        if j == 0: E("s_barrier"); issue(regl(5))
        if j == 1: E("s_waitcnt vmcnt(2)"); E("s_barrier")
        E("s_nop 15")
        for i in range(16): E(f"v_mul_f32 v{ACC0+i}, s13, v{ACC0+i}")
        for i in range(16): E(f"v_exp_f32 v{ACC0+i}, v{ACC0+i}")
        for i in range(16): E(f"v_add_f32 v{ACC0+i}, 1.0, v{ACC0+i}")
        for i in range(16): E(f"v_rcp_f32 v{ACC0+i}, v{ACC0+i}")
        for i in range(16): E(f"v_mul_f32 v{ACC0+i}, v{ACC0+i}, v{ACC1+i}")
        pack(ACC0, VT)
        E(f"s_add_u32 s12, s63, {64*j}"); E("s_lshl_b32 s12, s12, 5")
        E(f"buffer_store_dwordx4 v[{VT}:{VT+3}], v11, s[52:55], s12 offen{SC}")
        E(f"buffer_store_dwordx4 v[{VT+4}:{VT+7}], v11, s[52:55], s12 offen offset:1024{SC}")
        E("s_nop 1")
    stamp(n); signal(n, 3); stamp(n)
    NX = 44; X = 56; oldVW = VW; VW = 16; A = 232; T = 48
    srd(44, 28, 0, 1376*1024)
    dma_setup(1024); issue(dma_list(44, 62, 0, 0, 22, 1024))
    wait(n, 3); stamp(n)
    srd(40, 34, WS_HH, 2048*2752); srd(48, 34, WS_H, 2*MB); srd(52, 30, 0, 2*MB)
    load_xt2(40, 86, NX, X)
    E("v_add_u32 v13, 0x10000, v10"); E("v_add_u32 v9, s10, v3")
    E("v_lshlrev_b32 v12, 10, v9"); E("v_lshlrev_b32 v5, 3, v4"); E("v_add_u32 v12, v12, v5")
    E("s_lshl_b32 s13, s10, 10"); E("s_lshl_b32 s14, s61, 11"); E("s_add_u32 s13, s13, s14"); E("v_lshlrev_b32 v11, 4, v1")
    E(f"buffer_load_dwordx4 v[248:251], v11, s[48:51], s13 offen{SC}"); E(f"buffer_load_dwordx4 v[252:255], v11, s[48:51], s13 offen offset:1024{SC}")
    E("s_waitcnt vmcnt(0)"); E("s_barrier")
    items = [((10, 1024*s) if s < 64 else (13, 1024*(s-64))) + (X+4*(s % NX), A) for s in range(86)]
    for i in mfma_items(items, True, lambda i: False, lambda i: i == 0):
        if i + NX < 86:
            s = i + NX; E(f"s_mov_b32 s4, {1024*s}"); E(f"buffer_load_dwordx4 v[{X+4*i}:{X+4*i+3}], v8, s[40:43], s4 offen{SC}")
        if i + 1 >= NX and i + 1 < 86: E(f"s_waitcnt vmcnt({85-(i+1)})")
    VW = oldVW
    E("s_nop 15")
    for i in range(8):
        E(f"v_lshlrev_b32 v5, 16, v{248+i}"); E(f"v_and_b32 v6, 0xffff0000, v{248+i}")
        E(f"v_add_f32 v{A+2*i}, v{A+2*i}, v5"); E(f"v_add_f32 v{A+2*i+1}, v{A+2*i+1}, v6")
    pack(A, T)
    for q in range(4): E(f"buffer_store_dwordx2 v[{T+2*q}:{T+2*q+1}], v12, s[52:55], s62 offen offset:{16*q}")
    epilogue_end(n)

k0(); mega()
hdr = open("cdna_kernels/" + NAME + ".s.ref").read().split("\n")
head = [l for l in hdr if l.startswith(";") and "@launch" not in l and "Override" not in l and "grid=ceil" not in l]
import os
dup = int(os.environ.get("DUP", "-1"))
ll = []
for idx, (k, g, l) in enumerate(kernels):
    ll += [f"; @launch kernel={k} grid=({g},1,1) block=(256,1,1) lds={l}"] * (5 if idx == dup else 1)
if dup == 99: ll = ll + ll
if STAMPK:
    ll = ll + [x for x in ll if STAMPK in x]
txt = head + ll
txt += ['.amdgcn_target "amdgcn-amd-amdhsa--gfx950"', ".text"] + out + ['.section .rodata,"a"']
for k, g, l in kernels:
    txt += [".p2align 6", f".amdhsa_kernel {k}", f"  .amdhsa_next_free_vgpr {512 if k.startswith('km') else 256}", "  .amdhsa_next_free_sgpr 102", "  .amdhsa_accum_offset 256",
            "  .amdhsa_group_segment_fixed_size 0", "  .amdhsa_kernarg_size 80", "  .amdhsa_user_sgpr_count 2",
            "  .amdhsa_user_sgpr_kernarg_segment_ptr 1", "  .amdhsa_system_sgpr_workgroup_id_x 1", ".end_amdhsa_kernel"]
open(os.environ.get("OUT", "cdna_kernels/" + NAME + ".s"), "w").write("\n".join(txt) + "\n")
```

```python
import sys, os
NAME = "sequential_preLN__sliding_block__glu_gated_glu__prompt"
out = []
def E(s): out.append("    " + s)
def L(s): out.append(s + ":")
MB = 1 << 20
WS_Q, WS_K, WS_V, WS_O, WS_H, WS_HH = 0, 2*MB, 4*MB, 6*MB, 8*MB, 10*MB
WS_XN = 16*MB
LOG2E = 1.4426950408889634
import struct
def f2u(f): return struct.unpack("<I", struct.pack("<f", f))[0]

def prologue(name, nwg):
    out.append(".p2align 8"); out.append(f".globl {name}"); out.append(f".type {name},@function"); L(name)
    E(f"s_cmp_ge_u32 s2, {nwg}"); E(f"s_cbranch_scc1 {name}_done")
    E("s_load_dwordx16 s[16:31], s[0:1], 0"); E("s_load_dwordx4 s[32:35], s[0:1], 64")
    E("v_and_b32 v1, 63, v0")
    E("v_lshrrev_b32 v2, 6, v0")
    E("v_and_b32 v3, 31, v0")
    E("v_readfirstlane_b32 s3, v2")
    E("v_bfe_u32 v4, v0, 5, 1")
    E("s_waitcnt lgkmcnt(0)")
STAMPK = os.environ.get("STAMP", "")
nst = [0]
def stamp(name, tag=""):
    if name != STAMPK: return
    if tag != os.environ.get("STAG", "") and nst[0] > 0 and tag != "end": return
    E("s_memtime s[74:75]"); E("s_waitcnt lgkmcnt(0)"); E(f"s_mov_b32 s{76+nst[0]}, s74"); nst[0] += 1
def epilogue_end(name):
    if name == STAMPK:
        stamp(name, "end")
        srd(40, 32, 0, 256)
        E("s_cmp_lg_u32 s2, 8"); E(f"s_cbranch_scc1 {name}_done"); E("s_cmp_lg_u32 s3, 0"); E(f"s_cbranch_scc1 {name}_done")
        srd(40, 32, 0, 256)
        for i in range(nst[0]):
            E(f"s_sub_u32 s4, s{76+i}, s76"); E("v_mov_b32 v5, s4"); E(f"v_mov_b32 v6, {4*i}"); E("buffer_store_dword v5, v6, s[40:43], 0 offen")
    L(f"{name}_done"); E("s_endpgm")
def srd(d, base, off, size):
    if off >= 0:
        E(f"s_add_u32 s{d}, s{base}, {off}"); E(f"s_addc_u32 s{d+1}, s{base+1}, 0")
    else:
        E(f"s_sub_u32 s{d}, s{base}, {-off}"); E(f"s_subb_u32 s{d+1}, s{base+1}, 0")
    E(f"s_mov_b32 s{d+2}, {size}"); E(f"s_mov_b32 s{d+3}, 0x00020000")

VX, VW, ACC0, ACC1, VT = 16, 144, 176, 192, 208

def w_addr(perm, vdst, RB=64):
    E("v_bfe_u32 v5, v0, 2, 2")
    E(f"v_lshlrev_b32 v6, {2 if perm else 3}, v4")
    E("v_add_u32 v5, v5, v6")
    E(f"v_mul_u32_u24 v5, {RB}, v5")
    E("v_bfe_u32 v6, v0, 4, 1")
    E("v_lshlrev_b32 v6, 5, v6")
    E("v_add_u32 v5, v5, v6")
    E("v_and_b32 v6, 3, v0")
    E("v_lshlrev_b32 v6, 3, v6")
    E(f"v_add_u32 v{vdst}, v5, v6")

def dma_setup(ldw):
    E("v_lshrrev_b32 v5, 2, v0"); E(f"s_mov_b32 s4, {ldw}"); E("v_mul_lo_u32 v5, v5, s4")
    E("v_and_b32 v6, 3, v0"); E("v_lshlrev_b32 v6, 4, v6"); E("v_add_u32 v7, v5, v6")
    E("s_lshl_b32 s5, s3, 10")
def dma_region(srdreg, scol, ldsbase, nj, ldw):
    E(f"s_mov_b32 s6, s{scol}"); E(f"s_add_u32 s7, s5, {ldsbase}")
    for j in range(nj):
        E("s_mov_b32 m0, s7");
        if j + 1 < nj: E("s_add_u32 s7, s7, 4096")
        else: E("s_nop 0")
        E(f"buffer_load_dwordx4 v7, s[{srdreg}:{srdreg+3}], s6 offen lds")
        if j + 1 < nj: E(f"s_add_u32 s6, s6, {64*ldw}")

def dma_list(srdreg, scolreg, coladd, ldsbase, nj, ldw):
    r = []
    for j in range(nj):
        r.append([f"s_add_u32 s6, s{scolreg}, {coladd + j*64*ldw}", f"s_add_u32 m0, s5, {ldsbase + j*4096}", "s_nop 0",
                  f"buffer_load_dwordx4 v7, s[{srdreg}:{srdreg+3}], s6 offen lds"])
    return r
def dma_setup_w(ldw):
    E("s_lshl_b32 s5, s3, 10"); E("s_mov_b32 s4, 0xAAAB"); E(f"s_mov_b32 s6, {ldw}")
    for t, vr in enumerate((7, 14, 15)):
        E(f"v_add_u32 v5, {256*t}, v0"); E("v_mul_lo_u32 v6, v5, s4"); E("v_lshrrev_b32 v6, 19, v6")
        E("v_mul_u32_u24 v2, 12, v6"); E("v_sub_u32 v5, v5, v2"); E("v_lshlrev_b32 v5, 4, v5")
        E("v_mul_lo_u32 v6, v6, s6"); E(f"v_add_u32 v{vr}, v5, v6")
def dma_list_w(srdreg, scolreg, ldsbase, row0, nrows, ldw):
    r = []
    for j in range(nrows*12//256):
        r.append([f"s_add_u32 s6, s{scolreg}, {(row0 + (j//3)*64)*ldw}", f"s_add_u32 m0, s5, {ldsbase + j*4096}", "s_nop 0",
                  f"buffer_load_dwordx4 v{(7,14,15)[j%3]}, s[{srdreg}:{srdreg+3}], s6 offen lds"])
    return r
def mfma_items(items, perm, swap_of, first_of, RB=64):
    d2 = 8*RB if perm else 4*RB
    n = len(items); D = 6
    def rd(i):
        va, off, _, _ = items[i]; w = VW + 4 * (i % 8)
        E(f"ds_read_b64_tr_b16 v[{w}:{w+1}], v{va} offset:{off}")
        E(f"ds_read_b64_tr_b16 v[{w+2}:{w+3}], v{va} offset:{off+d2}")
    for i in range(min(D, n)): rd(i)
    for i in range(n):
        va, off, x, acc = items[i][:4]; w = VW + 4 * (i % 8)
        E(f"s_waitcnt lgkmcnt({2*(min(i+D-1, n-1)-i)})")
        c = "0" if first_of(i) else f"v[{acc}:{acc+15}]"
        if swap_of(i): E(f"v_mfma_f32_32x32x16_bf16 v[{acc}:{acc+15}], v[{x}:{x+3}], v[{w}:{w+3}], {c}")
        else:          E(f"v_mfma_f32_32x32x16_bf16 v[{acc}:{acc+15}], v[{w}:{w+3}], v[{x}:{x+3}], {c}")
        if i + D < n: rd(i + D)
        yield i

def ln_regs(ndma, inter=[]):
    E("s_mov_b32 s8, 0x3f803f80")
    for q in range(4): E(f"v_mov_b32 v{VT+q}, 0"); E(f"v_mov_b32 v{VT+4+q}, 0")
    inter = list(inter); nd = 0
    for g in range(4):
        E(f"s_waitcnt vmcnt({min(63, 24-8*g+nd)})")
        for r in range(32*g, 32*g+32):
            if inter and r % 8 == 4:
                for x in inter.pop(0): E(x)
                nd += 1
            E(f"v_dot2_f32_bf16 v{VT+(r&3)}, v{VX+r}, s8, v{VT+(r&3)}")
            E(f"v_dot2_f32_bf16 v{VT+4+(r&3)}, v{VX+r}, v{VX+r}, v{VT+4+(r&3)}")
    E("s_nop 3")
    E(f"v_add_f32 v{VT}, v{VT}, v{VT+1}"); E(f"v_add_f32 v{VT+2}, v{VT+2}, v{VT+3}")
    E(f"v_add_f32 v{VT+4}, v{VT+4}, v{VT+5}"); E(f"v_add_f32 v{VT+6}, v{VT+6}, v{VT+7}")
    E(f"v_add_f32 v{VT}, v{VT}, v{VT+2}"); E(f"v_add_f32 v{VT+4}, v{VT+4}, v{VT+6}")
    E(f"v_mov_b32 v{VT+1}, v{VT}"); E(f"v_mov_b32 v{VT+5}, v{VT+4}")
    E("s_nop 1")
    E(f"v_permlane32_swap_b32 v{VT}, v{VT+1}"); E(f"v_permlane32_swap_b32 v{VT+4}, v{VT+5}")
    E("s_nop 1")
    E(f"v_add_f32 v{VT}, v{VT}, v{VT+1}"); E(f"v_add_f32 v{VT+4}, v{VT+4}, v{VT+5}")
    E(f"v_mul_f32 v{VT}, {f2u(1/512):#x}, v{VT}")
    E(f"v_mul_f32 v{VT+4}, {f2u(1/512):#x}, v{VT+4}")
    E(f"v_fma_f32 v{VT+4}, -v{VT}, v{VT}, v{VT+4}")
    E(f"v_max_f32 v{VT+4}, 0, v{VT+4}")
    E(f"v_add_f32 v{VT+4}, {f2u(1e-5):#x}, v{VT+4}")
    E(f"v_rsq_f32 v{VT+4}, v{VT+4}")
    E("s_nop 0")
    E(f"v_mul_f32 v{VT}, v{VT}, v{VT+4}")
    E(f"v_sub_f32 v{VT}, 0, v{VT}")
    for r in range(128):
        if inter and r % 5 == 0:
            for x in inter.pop(0): E(x)
        a, b = VT + 8 + 2 * (r & 3), VT + 9 + 2 * (r & 3)
        E(f"v_lshlrev_b32 v{a}, 16, v{VX+r}"); E(f"v_and_b32 v{b}, 0xffff0000, v{VX+r}")
        E(f"v_fma_f32 v{a}, v{a}, v{VT+4}, v{VT}"); E(f"v_fma_f32 v{b}, v{b}, v{VT+4}, v{VT}")
        E(f"v_cvt_pk_bf16_f32 v{VX+r}, v{a}, v{b}")

def load_x(srdreg, ld, nsteps, base=VX):
    E("s_lshl_b32 s10, s3, 5"); E("s_add_u32 s10, s10, s9")
    E("v_add_u32 v9, s10, v3"); E(f"s_mov_b32 s4, {ld}"); E("v_mul_lo_u32 v8, v9, s4")
    E("v_lshlrev_b32 v5, 4, v4"); E("v_add_u32 v8, v8, v5")
    for s in range(nsteps):
        E(f"buffer_load_dwordx4 v[{base+4*s}:{base+4*s+3}], v8, s[{srdreg}:{srdreg+3}], 0 offen offset:{32*s}")
def wgmap(a=2):
    if a == 2:
        E("s_and_b32 s9, s2, 7"); E("s_lshl_b32 s9, s9, 1"); E("s_lshr_b32 s11, s2, 7"); E("s_add_u32 s9, s9, s11"); E("s_lshl_b32 s9, s9, 7")
        E("s_lshr_b32 s11, s2, 3"); E("s_and_b32 s11, s11, 15")
    else:
        E("s_bfe_u32 s9, s2, 0x20001"); E("s_lshl_b32 s9, s9, 2"); E("s_lshr_b32 s11, s2, 6"); E("s_add_u32 s9, s9, s11"); E("s_lshl_b32 s9, s9, 7")
        E("s_bfe_u32 s11, s2, 0x30003"); E("s_and_b32 s4, s2, 1"); E("s_lshl_b32 s4, s4, 3"); E("s_add_u32 s11, s11, s4")
def load_xt(srdreg, nsteps_total, nsteps, base=VX):
    E("s_lshl_b32 s10, s3, 5"); E("s_add_u32 s10, s10, s9"); E("v_add_u32 v9, s10, v3")
    E("s_lshr_b32 s4, s10, 5"); E(f"s_mul_i32 s4, s4, {nsteps_total*1024}")
    E("v_lshlrev_b32 v8, 4, v1"); E("v_add_u32 v8, s4, v8")
    for s in range(nsteps):
        if s % 4 == 0: E(f"s_mov_b32 s4, {1024*s}")
        E(f"buffer_load_dwordx4 v[{base+4*s}:{base+4*s+3}], v8, s[{srdreg}:{srdreg+3}], s4 offen offset:{1024*(s%4)}")
def pack(acc, dst):
    for i in range(8): E(f"v_cvt_pk_bf16_f32 v{dst+i}, v{acc+2*i}, v{acc+2*i+1}")

kernels = []
def k0():
    n = "k0_ln_kernel"; kernels.append((n, 256, 0)); prologue(n, 256)
    E("s_and_b32 s9, s2, 7"); E("s_lshl_b32 s9, s9, 8"); E("s_lshr_b32 s10, s2, 3"); E("s_lshl_b32 s10, s10, 3"); E("s_add_u32 s9, s9, s10")
    E("s_lshl_b32 s10, s3, 1"); E("s_add_u32 s9, s9, s10")
    srd(40, 16, 0, 2*MB); srd(44, 34, WS_XN, 2*MB)
    E("s_cmp_lg_u32 s2, 0"); E("s_cbranch_scc1 k0_nz")
    srd(52, 34, 20*MB, 16384)
    for i in range(4): E(f"v_mov_b32 v{40+i}, 0")
    E("v_lshlrev_b32 v5, 6, v0")
    for i in range(4): E(f"buffer_store_dwordx4 v[40:43], v5, s[52:55], 0 offen offset:{16*i}")
    L("k0_nz")
    E("s_lshl_b32 s10, s9, 10"); E("v_lshlrev_b32 v5, 4, v1")
    E("buffer_load_dwordx4 v[16:19], v5, s[40:43], s10 offen"); E("buffer_load_dwordx4 v[20:23], v5, s[40:43], s10 offen offset:1024")
    E("s_lshr_b32 s11, s9, 5"); E("s_lshl_b32 s11, s11, 15"); E("s_and_b32 s12, s9, 31"); E("s_lshl_b32 s12, s12, 4"); E("s_add_u32 s11, s11, s12")
    E("v_lshrrev_b32 v6, 1, v1"); E("v_lshlrev_b32 v6, 10, v6"); E("v_and_b32 v7, 1, v1"); E("v_lshlrev_b32 v7, 9, v7"); E("v_add_u32 v6, v6, v7")
    E("s_mov_b32 s8, 0x3f803f80")
    for q in range(4): E(f"v_mov_b32 v{24+q}, 0")
    if os.environ.get("PF", "1") == "1":
        E("s_lshl_b32 s12, s2, 12"); E("v_lshlrev_b32 v32, 4, v0"); E("v_add_u32 v32, s12, v32"); E("v_add_u32 v33, 0x100000, v32")
        k = 0
        for base, size in ((18, 512*3072), (20, 512*1024), (24, 512*2752), (26, 512*2752), (28, 1376*1024)):
            srd(48, base, 0, size)
            E(f"buffer_load_dwordx4 v[{36+4*k}:{39+4*k}], v32, s[48:51], 0 offen"); k += 1
            if size > MB: E(f"buffer_load_dwordx4 v[{36+4*k}:{39+4*k}], v33, s[48:51], 0 offen"); k += 1
        npf = int(os.environ.get("NPF", "0"))
        if npf:
            E("s_getpc_b64 s[60:61]"); L("k0_pc")
            E("v_lshlrev_b32 v34, 4, v0")
            for i in range(npf):
                E(f"global_load_dwordx4 v[{72+4*i}:{75+4*i}], v34, s[60:61]"); E("v_add_u32 v34, 0x1000, v34")
        E(f"s_waitcnt vmcnt({9+npf})")
    else:
        E("s_waitcnt vmcnt(0)")
    for r in range(2):
        for i in range(4):
            E(f"v_dot2_f32_bf16 v{24+2*r}, v{16+4*r+i}, s8, v{24+2*r}"); E(f"v_dot2_f32_bf16 v{25+2*r}, v{16+4*r+i}, v{16+4*r+i}, v{25+2*r}")
    E("s_nop 3")
    for off in (0x041F, 0x081F, 0x101F, 0x201F, 0x401F):
        for q in range(4): E(f"ds_swizzle_b32 v{28+q}, v{24+q} offset:{off:#x}")
        E("s_waitcnt lgkmcnt(0)")
        for q in range(4): E(f"v_add_f32 v{24+q}, v{24+q}, v{28+q}")
    for q in range(4): E(f"v_mov_b32 v{28+q}, v{24+q}")
    E("s_nop 1")
    for q in range(4): E(f"v_permlane32_swap_b32 v{24+q}, v{28+q}")
    E("s_nop 1")
    for q in range(4): E(f"v_add_f32 v{24+q}, v{24+q}, v{28+q}")
    for r in range(2):
        a, b = 24+2*r, 25+2*r
        E(f"v_mul_f32 v{a}, {f2u(1/512):#x}, v{a}"); E(f"v_mul_f32 v{b}, {f2u(1/512):#x}, v{b}")
        E(f"v_fma_f32 v{b}, -v{a}, v{a}, v{b}"); E(f"v_max_f32 v{b}, 0, v{b}"); E(f"v_add_f32 v{b}, {f2u(1e-5):#x}, v{b}")
        E(f"v_rsq_f32 v{b}, v{b}"); E("s_nop 0"); E(f"v_mul_f32 v{a}, v{a}, v{b}"); E(f"v_sub_f32 v{a}, 0, v{a}")
        for i in range(4):
            x = 16+4*r+i
            E(f"v_lshlrev_b32 v30, 16, v{x}"); E(f"v_and_b32 v31, 0xffff0000, v{x}")
            E(f"v_fma_f32 v30, v30, v{b}, v{a}"); E(f"v_fma_f32 v31, v31, v{b}, v{a}"); E(f"v_cvt_pk_bf16_f32 v{x}, v30, v31")
        E(f"buffer_store_dwordx4 v[{16+4*r}:{19+4*r}], v6, s[44:47], s11 offen offset:{16*r}")
    epilogue_end(n)

SC = " sc1"
def lanes():
    E("v_and_b32 v1, 63, v0"); E("v_and_b32 v3, 31, v0"); E("v_bfe_u32 v4, v0, 5, 1")
WS_CNT = 20*MB
def signal(n, idx):
    E("s_waitcnt vmcnt(0)"); E("s_barrier")
    E("s_cmp_lg_u32 s3, 0"); E(f"s_cbranch_scc1 {n}_sig{idx}")
    E("s_lshl_b32 s4, s9, 1"); E(f"s_add_u32 s4, s4, {idx*4096}")
    E("v_mov_b32 v5, 1"); E("v_mov_b32 v6, s4"); E("s_mov_b64 exec, 1")
    E("buffer_atomic_add v5, v6, s[56:59], 0 offen"); E("s_mov_b64 exec, -1")
    L(f"{n}_sig{idx}")
def wait(n, idx, back=0):
    E("s_cmp_lg_u32 s3, 0"); E(f"s_cbranch_scc1 {n}_wx{idx}")
    for b in range(back + 1):
        E("s_lshl_b32 s4, s9, 1"); E(f"s_sub_i32 s4, s4, {256*b}"); E("s_max_i32 s4, s4, 0"); E(f"s_add_u32 s4, s4, {idx*4096}")
        E("v_mov_b32 v6, s4"); E("s_mov_b32 s6, 0")
        L(f"{n}_w{idx}_{b}")
        E("buffer_load_dword v5, v6, s[56:59], 0 offen sc1"); E("s_waitcnt vmcnt(0)")
        E("v_readfirstlane_b32 s4, v5"); E("s_add_u32 s6, s6, 1"); E("s_cmp_ge_u32 s4, 16"); E(f"s_cbranch_scc1 {n}_wd{idx}_{b}")
        E("s_sleep 3"); E("s_cmp_lt_u32 s6, 0x4000"); E(f"s_cbranch_scc1 {n}_w{idx}_{b}")
        L(f"{n}_wd{idx}_{b}")
    L(f"{n}_wx{idx}")
    E("s_waitcnt vmcnt(0)"); E("s_barrier")
def load_xt2(srdreg, nsteps_total, nsteps, base=VX, sc=SC):
    E("s_lshr_b32 s4, s10, 5"); E(f"s_mul_i32 s4, s4, {nsteps_total*1024}")
    E("v_lshlrev_b32 v8, 4, v1"); E("v_add_u32 v8, s4, v8")
    for s in range(nsteps):
        if s % 4 == 0: E(f"s_mov_b32 s4, {1024*s}")
        E(f"buffer_load_dwordx4 v[{base+4*s}:{base+4*s+3}], v8, s[{srdreg}:{srdreg+3}], s4 offen offset:{1024*(s%4)}{sc}")
def issue(groups):
    for g in groups:
        for x in g: E(x)

def mega():
    global VW
    n = "km_block_kernel"; kernels.append((n, 256, 163840)); prologue(n, 256)
    stamp(n); wgmap(2)
    E("s_mov_b32 s61, s11")
    E("s_lshl_b32 s10, s3, 5"); E("s_add_u32 s10, s10, s9")
    srd(56, 34, WS_CNT, 16384)
    E("s_mul_i32 s11, s61, 3")
    srd(40, 34, WS_XN, 2*MB); srd(44, 18, 0, 512*3072); srd(48, 34, 0, 6*MB)
    dma_setup_w(3072)
    E("s_lshl_b32 s60, s11, 6")
    allw = dma_list_w(44, 60, 0, 0, 512, 3072)
    issue(allw[:8]); load_xt2(40, 32, 32, VX, ""); issue(allw[8:])
    E("v_add_u32 v9, s10, v3")
    w_addr(False, 10, 192); E("v_add_u32 v13, 0xc000, v10")
    E("v_lshlrev_b32 v11, 5, v9"); E("v_lshlrev_b32 v5, 4, v4"); E("v_add_u32 v11, v11, v5")
    E("v_bfe_u32 v12, v0, 4, 1"); E("v_lshlrev_b32 v12, 16, v12"); E("v_lshlrev_b32 v5, 8, v4"); E("v_add_u32 v12, v12, v5")
    E("v_and_b32 v5, 15, v0"); E("v_lshlrev_b32 v5, 4, v5"); E("v_add_u32 v12, v12, v5")
    E("s_lshl_b32 s13, s10, 5"); E("v_add_u32 v12, s13, v12")
    E("s_waitcnt vmcnt(0)"); E("s_barrier")
    for j in range(3):
        E(f"s_add_u32 s12, s11, {j}"); E("s_cmp_ge_u32 s12, 32"); E(f"s_cbranch_scc1 {n}_v{j}")
        for sw in (False, True):
            if sw: L(f"{n}_v{j}")
            items = [((10, 3072*s + 64*j) if s < 16 else (13, 3072*(s-16) + 64*j)) + (VX+4*s, ACC0) for s in range(32)]
            for i in mfma_items(items, False, lambda i: sw, lambda i: i == 0, 192): pass
            E("s_nop 15"); pack(ACC0, VT)
            if not sw:
                E("s_lshr_b32 s14, s12, 4"); E("s_lshl_b32 s14, s14, 21"); E("s_and_b32 s15, s12, 15"); E("s_lshl_b32 s15, s15, 17")
                E("s_add_u32 s14, s14, s15"); E("s_add_u32 s15, s14, 65536")
                E(f"buffer_store_dwordx4 v[{VT}:{VT+3}], v11, s[48:51], s14 offen{SC}")
                E(f"buffer_store_dwordx4 v[{VT+4}:{VT+7}], v11, s[48:51], s15 offen{SC}")
                E(f"s_branch {n}_e{j}")
            else:
                E("s_sub_u32 s14, s12, 32"); E("s_lshl_b32 s14, s14, 17"); E(f"s_add_u32 s14, s14, {WS_V}")
                E(f"buffer_store_dwordx4 v[{VT}:{VT+3}], v12, s[48:51], s14 offen{SC}")
                E(f"buffer_store_dwordx4 v[{VT+4}:{VT+7}], v12, s[48:51], s14 offen offset:512{SC}")
        L(f"{n}_e{j}"); E("s_nop 1")
    stamp(n); signal(n, 0); stamp(n)
    srd(44, 20, 0, 512*1024); srd(64, 24, 0, 512*2752); srd(68, 26, 0, 512*2752)
    E("s_lshl_b32 s62, s61, 6")
    E("s_mul_i32 s63, s61, 86"); E("s_and_b32 s63, s63, 0xfffffff0"); E("s_lshl_b32 s63, s63, 1")
    dma_setup(1024); issue(dma_list(44, 62, 0, 0, 8, 1024))
    dma_setup(2752)
    slotof = {0: 1, 1: 2, 2: 3, 3: 4, 4: 0, 5: 1}
    def regl(r): return dma_list(64 if r % 2 == 0 else 68, 63, 64*(r//2), slotof[r]*32768, 8, 2752)
    E("v_mov_b32 v5, 0x3f803f80")
    for r in range(144): E(f"v_accvgpr_write_b32 a{80+r}, v5")
    wait(n, 0, 2); stamp(n); stamp(n, "p2")
    S, O, PK = 96, 240, 16
    srd(40, 34, WS_Q, 2*MB); srd(44, 34, WS_K - 8192, 2*MB + 8192); srd(48, 34, WS_V - 8192, 2*MB + 8192); srd(52, 34, WS_O, 2*MB)
    E("v_lshlrev_b32 v5, 2, v4"); E("v_sub_u32 v11, v3, v5")
    E("s_sub_i32 s15, 256, s10"); E("s_max_i32 s15, s15, 0")
    E("v_lshlrev_b32 v6, 4, v4")
    E("s_lshl_b32 s11, s61, 1")
    E("s_lshl_b32 s12, s11, 11"); E("s_add_u32 s12, s12, s10")
    E("v_add_u32 v5, s12, v3"); E("v_lshlrev_b32 v5, 5, v5"); E("v_add_u32 v8, v5, v6"); E("v_add_u32 v13, 0x10000, v8")
    E("s_lshl_b32 s14, s15, 5")
    for hh in range(2):
        va = (8, 13)[hh]
        E(f"buffer_load_dwordx4 a[{72+4*hh}:{75+4*hh}], v{va}, s[40:43], 0 offen{SC}")
        for kb in range(9):
            E(f"s_max_u32 s13, s14, {kb*1024}")
            E(f"buffer_load_dwordx4 a[{36*hh+4*kb}:{36*hh+4*kb+3}], v{va}, s[44:47], s13 offen{SC}")
    E("v_and_b32 v5, 15, v0"); E("v_lshlrev_b32 v5, 4, v5"); E("v_lshlrev_b32 v9, 8, v4"); E("v_add_u32 v5, v5, v9")
    E("s_lshl_b32 s13, s11, 16"); E("s_lshl_b32 s12, s10, 5"); E("s_add_u32 s13, s13, s12"); E("v_add_u32 v9, s13, v5"); E("v_add_u32 v14, 0x10000, v9")
    E("s_mov_b32 s12, 0x0000ffff"); E("s_mov_b32 s13, 0x0000ffff"); E("s_mov_b64 exec, s[12:13]")
    for hh in range(2):
        for t in range(18):
            E(f"s_max_u32 s13, s14, {512*t}")
            E(f"buffer_load_dwordx4 a[{80+72*hh+4*t}:{80+72*hh+4*t+3}], v{(9,14)[hh]}, s[48:51], s13 offen{SC}")
    E("s_mov_b64 exec, -1")
    E("s_add_u32 s13, s10, s11"); E("s_lshl_b32 s13, s13, 10"); E("v_lshlrev_b32 v5, 4, v1"); E("v_add_u32 v10, s13, v5")
    stamp(n, "p2")
    for hh in range(2):
        pf = regl(2*hh) + regl(2*hh+1)
        E(f"v_mov_b32 v12, {f2u(-1e30):#x}")
        for kb in range(9):
            if hh == 0: E(f"s_waitcnt vmcnt({54-kb})")
            E(f"v_mfma_f32_32x32x16_bf16 v[{S+16*kb}:{S+16*kb+15}], a[{36*hh+4*kb}:{36*hh+4*kb+3}], a[{72+4*hh}:{75+4*hh}], 0")
        E("s_nop 7"); E("s_nop 3"); stamp(n, "p2")
        for kb in range(8):
            E(f"s_cmp_ge_u32 s10, {256-32*kb}"); E(f"s_cbranch_scc1 {n}_ok{hh}_{kb}")
            for i in range(16): E(f"v_mov_b32 v{S+16*kb+i}, v12")
            L(f"{n}_ok{hh}_{kb}")
        for i in range(16):
            c = 8*(i >> 2) + (i & 3)
            E(f"v_cmp_le_i32 vcc, {c}, v11"); E("s_nop 1")
            E(f"v_cndmask_b32 v{S+128+i}, v12, v{S+128+i}, vcc"); E(f"v_cndmask_b32 v{S+i}, v{S+i}, v12, vcc")
        for c in range(4): E(f"v_max_f32 v{PK+c}, v{S+c}, v{S+4+c}")
        for r in range(8, 144, 8):
            for c in range(4): E(f"v_max3_f32 v{PK+c}, v{PK+c}, v{S+r+c}, v{S+r+4+c}")
        E(f"v_max_f32 v{PK}, v{PK}, v{PK+1}"); E(f"v_max_f32 v{PK+2}, v{PK+2}, v{PK+3}"); E(f"v_max_f32 v12, v{PK}, v{PK+2}"); E("v_mov_b32 v15, v12")
        E("s_nop 1"); E("v_permlane32_swap_b32 v12, v15"); E("s_nop 1"); E("v_max_f32 v12, v12, v15")
        E(f"s_mov_b32 s13, {f2u(0.25*LOG2E):#x}"); E("v_mul_f32 v12, s13, v12"); stamp(n, "p2")
        for r in range(0, 144, 4):
            for c in range(4): E(f"v_fma_f32 v{S+r+c}, v{S+r+c}, s13, -v12")
            for c in range(4): E(f"v_exp_f32 v{S+r+c}, v{S+r+c}")
            if r >= 4:
                p = r - 4; d = S + 16*(p//16) + (p % 16)//2
                E(f"v_cvt_pk_bf16_f32 v{d}, v{S+p}, v{S+p+1}"); E(f"v_cvt_pk_bf16_f32 v{d+1}, v{S+p+2}, v{S+p+3}")
            if r % 8 == 0 and pf: issue([pf.pop(0)])
        p = 140; d = S + 16*(p//16) + (p % 16)//2
        E("s_nop 0"); E(f"v_cvt_pk_bf16_f32 v{d}, v{S+p}, v{S+p+1}"); E(f"v_cvt_pk_bf16_f32 v{d+1}, v{S+p+2}, v{S+p+3}")
        assert not pf
        stamp(n, "p2")
        E(f"s_waitcnt vmcnt({(18+16) if hh == 0 else (16+1+16)})"); stamp(n, "p2")
        for t in range(18):
            bb = S + 16*(t//2) + 4*(t % 2)
            E(f"v_mfma_f32_32x32x16_bf16 v[{O}:{O+15}], a[{80+72*hh+4*t}:{80+72*hh+4*t+3}], v[{bb}:{bb+3}], {'0' if t == 0 else f'v[{O}:{O+15}]'}")
        E("s_nop 15"); E(f"v_rcp_f32 v12, v{O+8}"); E("s_nop 0")
        for i in range(8): E(f"v_mul_f32 v{O+i}, v{O+i}, v12")
        for i in range(4): E(f"v_cvt_pk_bf16_f32 v{PK+i}, v{O+2*i}, v{O+2*i+1}")
        E(f"buffer_store_dwordx4 v[{PK}:{PK+3}], v10, s[52:55], 0 offen offset:{1024*hh}{SC}")
        E("s_nop 1")
    stamp(n); signal(n, 1); stamp(n)
    wait(n, 1); stamp(n)
    srd(40, 34, WS_O, 2*MB); srd(48, 34, WS_H, 2*MB); srd(52, 16, 0, 2*MB)
    load_xt2(40, 32, 32)
    E("v_add_u32 v9, s10, v3")
    w_addr(True, 10)
    E("v_lshlrev_b32 v12, 10, v9"); E("v_lshlrev_b32 v5, 3, v4"); E("v_add_u32 v12, v12, v5"); E("s_lshl_b32 s13, s61, 11")
    for q in range(4): E(f"buffer_load_dwordx2 v[{VT+8+2*q}:{VT+9+2*q}], v12, s[52:55], s62 offen offset:{16*q}")
    E("s_waitcnt vmcnt(0)"); E("s_barrier")
    items = [(10, 1024*s, VX+4*s, ACC0) for s in range(32)]
    for _ in mfma_items(items, True, lambda i: False, lambda i: i == 0): pass
    E("s_nop 15")
    for i in range(8):
        E(f"v_lshlrev_b32 v5, 16, v{VT+8+i}"); E(f"v_and_b32 v6, 0xffff0000, v{VT+8+i}")
        E(f"v_add_f32 v{ACC0+2*i}, v{ACC0+2*i}, v5"); E(f"v_add_f32 v{ACC0+2*i+1}, v{ACC0+2*i+1}, v6")
    pack(ACC0, VT)
    E(f"buffer_store_dwordx4 v[{VT}:{VT+3}], v8, s[48:51], s13 offen{SC}")
    E(f"buffer_store_dwordx4 v[{VT+4}:{VT+7}], v8, s[48:51], s13 offen offset:1024{SC}")
    stamp(n); signal(n, 2); stamp(n)
    issue(regl(4))
    wait(n, 2); stamp(n)
    srd(40, 34, WS_H, 2*MB); srd(52, 34, WS_HH, 2048*2752)
    load_xt2(40, 32, 32)
    E("s_lshr_b32 s4, s10, 5"); E(f"s_mul_i32 s4, s4, {86*1024}"); E("v_lshlrev_b32 v11, 4, v1"); E("v_add_u32 v11, s4, v11")
    ln_regs(0)
    E(f"s_mov_b32 s13, {f2u(-LOG2E):#x}")
    E("s_barrier")
    for j in range(3):
        sg, su = slotof[2*j]*32768, slotof[2*j+1]*32768
        E(f"v_add_u32 v13, {sg}, v10"); E(f"v_add_u32 v14, {su}, v10")
        items = []
        for s in range(32): items += [(13, 1024*s, VX+4*s, ACC0), (14, 1024*s, VX+4*s, ACC1)]
        for _ in mfma_items(items, True, lambda i: False, lambda i: i < 2): pass
        if j == 0: E("s_barrier"); issue(regl(5))
        if j == 1: E("s_waitcnt vmcnt(2)"); E("s_barrier")
        E("s_nop 15")
        for i in range(16): E(f"v_mul_f32 v{ACC0+i}, s13, v{ACC0+i}")
        for i in range(16): E(f"v_exp_f32 v{ACC0+i}, v{ACC0+i}")
        for i in range(16): E(f"v_add_f32 v{ACC0+i}, 1.0, v{ACC0+i}")
        for i in range(16): E(f"v_rcp_f32 v{ACC0+i}, v{ACC0+i}")
        for i in range(16): E(f"v_mul_f32 v{ACC0+i}, v{ACC0+i}, v{ACC1+i}")
        pack(ACC0, VT)
        E(f"s_add_u32 s12, s63, {64*j}"); E("s_lshl_b32 s12, s12, 5")
        E(f"buffer_store_dwordx4 v[{VT}:{VT+3}], v11, s[52:55], s12 offen{SC}")
        E(f"buffer_store_dwordx4 v[{VT+4}:{VT+7}], v11, s[52:55], s12 offen offset:1024{SC}")
        E("s_nop 1")
    stamp(n); signal(n, 3); stamp(n)
    NX = 44; X = 56; oldVW = VW; VW = 16; A = 232; T = 48
    srd(44, 28, 0, 1376*1024)
    dma_setup(1024); issue(dma_list(44, 62, 0, 0, 22, 1024))
    wait(n, 3); stamp(n)
    srd(40, 34, WS_HH, 2048*2752); srd(48, 34, WS_H, 2*MB); srd(52, 30, 0, 2*MB)
    load_xt2(40, 86, NX, X)
    E("v_add_u32 v13, 0x10000, v10"); E("v_add_u32 v9, s10, v3")
    E("v_lshlrev_b32 v12, 10, v9"); E("v_lshlrev_b32 v5, 3, v4"); E("v_add_u32 v12, v12, v5")
    E("s_lshl_b32 s13, s10, 10"); E("s_lshl_b32 s14, s61, 11"); E("s_add_u32 s13, s13, s14"); E("v_lshlrev_b32 v11, 4, v1")
    E(f"buffer_load_dwordx4 v[248:251], v11, s[48:51], s13 offen{SC}"); E(f"buffer_load_dwordx4 v[252:255], v11, s[48:51], s13 offen offset:1024{SC}")
    E("s_waitcnt vmcnt(0)"); E("s_barrier")
    items = [((10, 1024*s) if s < 64 else (13, 1024*(s-64))) + (X+4*(s % NX), A) for s in range(86)]
    for i in mfma_items(items, True, lambda i: False, lambda i: i == 0):
        if i + NX < 86:
            s = i + NX; E(f"s_mov_b32 s4, {1024*s}"); E(f"buffer_load_dwordx4 v[{X+4*i}:{X+4*i+3}], v8, s[40:43], s4 offen{SC}")
        if i + 1 >= NX and i + 1 < 86: E(f"s_waitcnt vmcnt({85-(i+1)})")
    VW = oldVW
    E("s_nop 15")
    for i in range(8):
        E(f"v_lshlrev_b32 v5, 16, v{248+i}"); E(f"v_and_b32 v6, 0xffff0000, v{248+i}")
        E(f"v_add_f32 v{A+2*i}, v{A+2*i}, v5"); E(f"v_add_f32 v{A+2*i+1}, v{A+2*i+1}, v6")
    pack(A, T)
    for q in range(4): E(f"buffer_store_dwordx2 v[{T+2*q}:{T+2*q+1}], v12, s[52:55], s62 offen offset:{16*q}")
    epilogue_end(n)

k0(); mega()
hdr = open("cdna_kernels/" + NAME + ".s.ref").read().split("\n")
head = [l for l in hdr if l.startswith(";") and "@launch" not in l and "Override" not in l and "grid=ceil" not in l]
import os
dup = int(os.environ.get("DUP", "-1"))
ll = []
for idx, (k, g, l) in enumerate(kernels):
    ll += [f"; @launch kernel={k} grid=({g},1,1) block=(256,1,1) lds={l}"] * (5 if idx == dup else 1)
if dup == 99: ll = ll + ll
if STAMPK:
    ll = ll + [x for x in ll if STAMPK in x]
txt = head + ll
txt += ['.amdgcn_target "amdgcn-amd-amdhsa--gfx950"', ".text"] + out + ['.section .rodata,"a"']
for k, g, l in kernels:
    txt += [".p2align 6", f".amdhsa_kernel {k}", f"  .amdhsa_next_free_vgpr {512 if k.startswith('km') else 256}", "  .amdhsa_next_free_sgpr 102", "  .amdhsa_accum_offset 256",
            "  .amdhsa_group_segment_fixed_size 0", "  .amdhsa_kernarg_size 80", "  .amdhsa_user_sgpr_count 2",
            "  .amdhsa_user_sgpr_kernarg_segment_ptr 1", "  .amdhsa_system_sgpr_workgroup_id_x 1", ".end_amdhsa_kernel"]
open(os.environ.get("OUT", "cdna_kernels/" + NAME + ".s"), "w").write("\n".join(txt) + "\n")
```

```python
import sys, os
NAME = "sequential_preLN__sliding_block__glu_gated_glu__prompt"
out = []
def E(s): out.append("    " + s)
def L(s): out.append(s + ":")
MB = 1 << 20
WS_Q, WS_K, WS_V, WS_O, WS_H, WS_HH = 0, 2*MB, 4*MB, 6*MB, 8*MB, 10*MB
WS_XN = 16*MB
LOG2E = 1.4426950408889634
import struct
def f2u(f): return struct.unpack("<I", struct.pack("<f", f))[0]

def prologue(name, nwg):
    out.append(".p2align 8"); out.append(f".globl {name}"); out.append(f".type {name},@function"); L(name)
    E(f"s_cmp_ge_u32 s2, {nwg}"); E(f"s_cbranch_scc1 {name}_done")
    E("s_load_dwordx16 s[16:31], s[0:1], 0"); E("s_load_dwordx4 s[32:35], s[0:1], 64")
    E("v_and_b32 v1, 63, v0")
    E("v_lshrrev_b32 v2, 6, v0")
    E("v_and_b32 v3, 31, v0")
    E("v_readfirstlane_b32 s3, v2")
    E("v_bfe_u32 v4, v0, 5, 1")
    E("s_waitcnt lgkmcnt(0)")
STAMPK = os.environ.get("STAMP", "")
nst = [0]
def stamp(name, tag=""):
    if name != STAMPK: return
    if tag != os.environ.get("STAG", "") and nst[0] > 0 and tag != "end": return
    E("s_memtime s[74:75]"); E("s_waitcnt lgkmcnt(0)"); E(f"s_mov_b32 s{76+nst[0]}, s74"); nst[0] += 1
def epilogue_end(name):
    if name == STAMPK:
        stamp(name, "end")
        srd(40, 32, 0, 256)
        E("s_cmp_lg_u32 s2, 8"); E(f"s_cbranch_scc1 {name}_done"); E("s_cmp_lg_u32 s3, 0"); E(f"s_cbranch_scc1 {name}_done")
        srd(40, 32, 0, 256)
        for i in range(nst[0]):
            E(f"s_sub_u32 s4, s{76+i}, s76"); E("v_mov_b32 v5, s4"); E(f"v_mov_b32 v6, {4*i}"); E("buffer_store_dword v5, v6, s[40:43], 0 offen")
    L(f"{name}_done"); E("s_endpgm")
def srd(d, base, off, size):
    if off >= 0:
        E(f"s_add_u32 s{d}, s{base}, {off}"); E(f"s_addc_u32 s{d+1}, s{base+1}, 0")
    else:
        E(f"s_sub_u32 s{d}, s{base}, {-off}"); E(f"s_subb_u32 s{d+1}, s{base+1}, 0")
    E(f"s_mov_b32 s{d+2}, {size}"); E(f"s_mov_b32 s{d+3}, 0x00020000")

VX, VW, ACC0, ACC1, VT = 16, 144, 176, 192, 208

def w_addr(perm, vdst, RB=64):
    E("v_bfe_u32 v5, v0, 2, 2")
    E(f"v_lshlrev_b32 v6, {2 if perm else 3}, v4")
    E("v_add_u32 v5, v5, v6")
    E(f"v_mul_u32_u24 v5, {RB}, v5")
    E("v_bfe_u32 v6, v0, 4, 1")
    E("v_lshlrev_b32 v6, 5, v6")
    E("v_add_u32 v5, v5, v6")
    E("v_and_b32 v6, 3, v0")
    E("v_lshlrev_b32 v6, 3, v6")
    E(f"v_add_u32 v{vdst}, v5, v6")

def dma_setup(ldw):
    E("v_lshrrev_b32 v5, 2, v0"); E(f"s_mov_b32 s4, {ldw}"); E("v_mul_lo_u32 v5, v5, s4")
    E("v_and_b32 v6, 3, v0"); E("v_lshlrev_b32 v6, 4, v6"); E("v_add_u32 v7, v5, v6")
    E("s_lshl_b32 s5, s3, 10")
def dma_region(srdreg, scol, ldsbase, nj, ldw):
    E(f"s_mov_b32 s6, s{scol}"); E(f"s_add_u32 s7, s5, {ldsbase}")
    for j in range(nj):
        E("s_mov_b32 m0, s7");
        if j + 1 < nj: E("s_add_u32 s7, s7, 4096")
        else: E("s_nop 0")
        E(f"buffer_load_dwordx4 v7, s[{srdreg}:{srdreg+3}], s6 offen lds")
        if j + 1 < nj: E(f"s_add_u32 s6, s6, {64*ldw}")

def dma_list(srdreg, scolreg, coladd, ldsbase, nj, ldw):
    r = []
    for j in range(nj):
        r.append([f"s_add_u32 s6, s{scolreg}, {coladd + j*64*ldw}", f"s_add_u32 m0, s5, {ldsbase + j*4096}", "s_nop 0",
                  f"buffer_load_dwordx4 v7, s[{srdreg}:{srdreg+3}], s6 offen lds"])
    return r
def dma_setup_w(ldw):
    E("s_lshl_b32 s5, s3, 10"); E("s_mov_b32 s4, 0xAAAB"); E(f"s_mov_b32 s6, {ldw}")
    for t, vr in enumerate((7, 14, 15)):
        E(f"v_add_u32 v5, {256*t}, v0"); E("v_mul_lo_u32 v6, v5, s4"); E("v_lshrrev_b32 v6, 19, v6")
        E("v_mul_u32_u24 v2, 12, v6"); E("v_sub_u32 v5, v5, v2"); E("v_lshlrev_b32 v5, 4, v5")
        E("v_mul_lo_u32 v6, v6, s6"); E(f"v_add_u32 v{vr}, v5, v6")
def dma_list_w(srdreg, scolreg, ldsbase, row0, nrows, ldw):
    r = []
    for j in range(nrows*12//256):
        r.append([f"s_add_u32 s6, s{scolreg}, {(row0 + (j//3)*64)*ldw}", f"s_add_u32 m0, s5, {ldsbase + j*4096}", "s_nop 0",
                  f"buffer_load_dwordx4 v{(7,14,15)[j%3]}, s[{srdreg}:{srdreg+3}], s6 offen lds"])
    return r
def mfma_items(items, perm, swap_of, first_of, RB=64):
    d2 = 8*RB if perm else 4*RB
    n = len(items); D = 6
    def rd(i):
        va, off, _, _ = items[i]; w = VW + 4 * (i % 8)
        E(f"ds_read_b64_tr_b16 v[{w}:{w+1}], v{va} offset:{off}")
        E(f"ds_read_b64_tr_b16 v[{w+2}:{w+3}], v{va} offset:{off+d2}")
    for i in range(min(D, n)): rd(i)
    for i in range(n):
        va, off, x, acc = items[i][:4]; w = VW + 4 * (i % 8)
        E(f"s_waitcnt lgkmcnt({2*(min(i+D-1, n-1)-i)})")
        c = "0" if first_of(i) else f"v[{acc}:{acc+15}]"
        if swap_of(i): E(f"v_mfma_f32_32x32x16_bf16 v[{acc}:{acc+15}], v[{x}:{x+3}], v[{w}:{w+3}], {c}")
        else:          E(f"v_mfma_f32_32x32x16_bf16 v[{acc}:{acc+15}], v[{w}:{w+3}], v[{x}:{x+3}], {c}")
        if i + D < n: rd(i + D)
        yield i

def ln_regs(ndma, inter=[]):
    E("s_mov_b32 s8, 0x3f803f80")
    for q in range(4): E(f"v_mov_b32 v{VT+q}, 0"); E(f"v_mov_b32 v{VT+4+q}, 0")
    inter = list(inter); nd = 0
    for g in range(4):
        E(f"s_waitcnt vmcnt({min(63, 24-8*g+nd)})")
        for r in range(32*g, 32*g+32):
            if inter and r % 8 == 4:
                for x in inter.pop(0): E(x)
                nd += 1
            E(f"v_dot2_f32_bf16 v{VT+(r&3)}, v{VX+r}, s8, v{VT+(r&3)}")
            E(f"v_dot2_f32_bf16 v{VT+4+(r&3)}, v{VX+r}, v{VX+r}, v{VT+4+(r&3)}")
    E("s_nop 3")
    E(f"v_add_f32 v{VT}, v{VT}, v{VT+1}"); E(f"v_add_f32 v{VT+2}, v{VT+2}, v{VT+3}")
    E(f"v_add_f32 v{VT+4}, v{VT+4}, v{VT+5}"); E(f"v_add_f32 v{VT+6}, v{VT+6}, v{VT+7}")
    E(f"v_add_f32 v{VT}, v{VT}, v{VT+2}"); E(f"v_add_f32 v{VT+4}, v{VT+4}, v{VT+6}")
    E(f"v_mov_b32 v{VT+1}, v{VT}"); E(f"v_mov_b32 v{VT+5}, v{VT+4}")
    E("s_nop 1")
    E(f"v_permlane32_swap_b32 v{VT}, v{VT+1}"); E(f"v_permlane32_swap_b32 v{VT+4}, v{VT+5}")
    E("s_nop 1")
    E(f"v_add_f32 v{VT}, v{VT}, v{VT+1}"); E(f"v_add_f32 v{VT+4}, v{VT+4}, v{VT+5}")
    E(f"v_mul_f32 v{VT}, {f2u(1/512):#x}, v{VT}")
    E(f"v_mul_f32 v{VT+4}, {f2u(1/512):#x}, v{VT+4}")
    E(f"v_fma_f32 v{VT+4}, -v{VT}, v{VT}, v{VT+4}")
    E(f"v_max_f32 v{VT+4}, 0, v{VT+4}")
    E(f"v_add_f32 v{VT+4}, {f2u(1e-5):#x}, v{VT+4}")
    E(f"v_rsq_f32 v{VT+4}, v{VT+4}")
    E("s_nop 0")
    E(f"v_mul_f32 v{VT}, v{VT}, v{VT+4}")
    E(f"v_sub_f32 v{VT}, 0, v{VT}")
    for r in range(128):
        if inter and r % 5 == 0:
            for x in inter.pop(0): E(x)
        a, b = VT + 8 + 2 * (r & 3), VT + 9 + 2 * (r & 3)
        E(f"v_lshlrev_b32 v{a}, 16, v{VX+r}"); E(f"v_and_b32 v{b}, 0xffff0000, v{VX+r}")
        E(f"v_fma_f32 v{a}, v{a}, v{VT+4}, v{VT}"); E(f"v_fma_f32 v{b}, v{b}, v{VT+4}, v{VT}")
        E(f"v_cvt_pk_bf16_f32 v{VX+r}, v{a}, v{b}")

def load_x(srdreg, ld, nsteps, base=VX):
    E("s_lshl_b32 s10, s3, 5"); E("s_add_u32 s10, s10, s9")
    E("v_add_u32 v9, s10, v3"); E(f"s_mov_b32 s4, {ld}"); E("v_mul_lo_u32 v8, v9, s4")
    E("v_lshlrev_b32 v5, 4, v4"); E("v_add_u32 v8, v8, v5")
    for s in range(nsteps):
        E(f"buffer_load_dwordx4 v[{base+4*s}:{base+4*s+3}], v8, s[{srdreg}:{srdreg+3}], 0 offen offset:{32*s}")
def wgmap(a=2):
    if a == 2:
        E("s_and_b32 s9, s2, 7"); E("s_lshl_b32 s9, s9, 1"); E("s_lshr_b32 s11, s2, 7"); E("s_add_u32 s9, s9, s11"); E("s_lshl_b32 s9, s9, 7")
        E("s_lshr_b32 s11, s2, 3"); E("s_and_b32 s11, s11, 15")
    else:
        E("s_bfe_u32 s9, s2, 0x20001"); E("s_lshl_b32 s9, s9, 2"); E("s_lshr_b32 s11, s2, 6"); E("s_add_u32 s9, s9, s11"); E("s_lshl_b32 s9, s9, 7")
        E("s_bfe_u32 s11, s2, 0x30003"); E("s_and_b32 s4, s2, 1"); E("s_lshl_b32 s4, s4, 3"); E("s_add_u32 s11, s11, s4")
def load_xt(srdreg, nsteps_total, nsteps, base=VX):
    E("s_lshl_b32 s10, s3, 5"); E("s_add_u32 s10, s10, s9"); E("v_add_u32 v9, s10, v3")
    E("s_lshr_b32 s4, s10, 5"); E(f"s_mul_i32 s4, s4, {nsteps_total*1024}")
    E("v_lshlrev_b32 v8, 4, v1"); E("v_add_u32 v8, s4, v8")
    for s in range(nsteps):
        if s % 4 == 0: E(f"s_mov_b32 s4, {1024*s}")
        E(f"buffer_load_dwordx4 v[{base+4*s}:{base+4*s+3}], v8, s[{srdreg}:{srdreg+3}], s4 offen offset:{1024*(s%4)}")
def pack(acc, dst):
    for i in range(8): E(f"v_cvt_pk_bf16_f32 v{dst+i}, v{acc+2*i}, v{acc+2*i+1}")

kernels = []
def k0():
    n = "k0_ln_kernel"; kernels.append((n, 256, 0)); prologue(n, 256)
    E("s_and_b32 s9, s2, 7"); E("s_lshl_b32 s9, s9, 8"); E("s_lshr_b32 s10, s2, 3"); E("s_lshl_b32 s10, s10, 3"); E("s_add_u32 s9, s9, s10")
    E("s_lshl_b32 s10, s3, 1"); E("s_add_u32 s9, s9, s10")
    srd(40, 16, 0, 2*MB); srd(44, 34, WS_XN, 2*MB)
    E("s_cmp_lg_u32 s2, 0"); E("s_cbranch_scc1 k0_nz")
    srd(52, 34, 20*MB, 16384)
    for i in range(4): E(f"v_mov_b32 v{40+i}, 0")
    E("v_lshlrev_b32 v5, 6, v0")
    for i in range(4): E(f"buffer_store_dwordx4 v[40:43], v5, s[52:55], 0 offen offset:{16*i}")
    L("k0_nz")
    E("s_lshl_b32 s10, s9, 10"); E("v_lshlrev_b32 v5, 4, v1")
    E("buffer_load_dwordx4 v[16:19], v5, s[40:43], s10 offen"); E("buffer_load_dwordx4 v[20:23], v5, s[40:43], s10 offen offset:1024")
    E("s_lshr_b32 s11, s9, 5"); E("s_lshl_b32 s11, s11, 15"); E("s_and_b32 s12, s9, 31"); E("s_lshl_b32 s12, s12, 4"); E("s_add_u32 s11, s11, s12")
    E("v_lshrrev_b32 v6, 1, v1"); E("v_lshlrev_b32 v6, 10, v6"); E("v_and_b32 v7, 1, v1"); E("v_lshlrev_b32 v7, 9, v7"); E("v_add_u32 v6, v6, v7")
    E("s_mov_b32 s8, 0x3f803f80")
    for q in range(4): E(f"v_mov_b32 v{24+q}, 0")
    if os.environ.get("PF", "1") == "1":
        E("s_lshl_b32 s12, s2, 12"); E("v_lshlrev_b32 v32, 4, v0"); E("v_add_u32 v32, s12, v32"); E("v_add_u32 v33, 0x100000, v32")
        k = 0
        for base, size in ((18, 512*3072), (20, 512*1024), (24, 512*2752), (26, 512*2752), (28, 1376*1024)):
            srd(48, base, 0, size)
            E(f"buffer_load_dwordx4 v[{36+4*k}:{39+4*k}], v32, s[48:51], 0 offen"); k += 1
            if size > MB: E(f"buffer_load_dwordx4 v[{36+4*k}:{39+4*k}], v33, s[48:51], 0 offen"); k += 1
        ntl = 0
        if os.environ.get("TLB", "1") == "1":
            E("v_lshlrev_b32 v33, 16, v1")
            srd(48, 34, 0, 24*MB)
            for i in range(6):
                E(f"s_mov_b32 s12, {4*MB*i}"); E(f"buffer_load_dword v{100+ntl}, v33, s[48:51], s12 offen"); ntl += 1
            for base, size in ((18, 512*3072), (20, 512*1024), (24, 512*2752), (26, 512*2752), (28, 1376*1024), (30, 2*MB)):
                srd(48, base, 0, size); E(f"buffer_load_dword v{100+ntl}, v33, s[48:51], 0 offen"); ntl += 1
        npf = int(os.environ.get("NPF", "0"))
        if npf:
            E("s_getpc_b64 s[60:61]"); L("k0_pc")
            E("v_lshlrev_b32 v34, 4, v0")
            for i in range(npf):
                E(f"global_load_dwordx4 v[{72+4*i}:{75+4*i}], v34, s[60:61]"); E("v_add_u32 v34, 0x1000, v34")
        E(f"s_waitcnt vmcnt({9+npf+ntl})")
    else:
        E("s_waitcnt vmcnt(0)")
    for r in range(2):
        for i in range(4):
            E(f"v_dot2_f32_bf16 v{24+2*r}, v{16+4*r+i}, s8, v{24+2*r}"); E(f"v_dot2_f32_bf16 v{25+2*r}, v{16+4*r+i}, v{16+4*r+i}, v{25+2*r}")
    E("s_nop 3")
    for off in (0x041F, 0x081F, 0x101F, 0x201F, 0x401F):
        for q in range(4): E(f"ds_swizzle_b32 v{28+q}, v{24+q} offset:{off:#x}")
        E("s_waitcnt lgkmcnt(0)")
        for q in range(4): E(f"v_add_f32 v{24+q}, v{24+q}, v{28+q}")
    for q in range(4): E(f"v_mov_b32 v{28+q}, v{24+q}")
    E("s_nop 1")
    for q in range(4): E(f"v_permlane32_swap_b32 v{24+q}, v{28+q}")
    E("s_nop 1")
    for q in range(4): E(f"v_add_f32 v{24+q}, v{24+q}, v{28+q}")
    for r in range(2):
        a, b = 24+2*r, 25+2*r
        E(f"v_mul_f32 v{a}, {f2u(1/512):#x}, v{a}"); E(f"v_mul_f32 v{b}, {f2u(1/512):#x}, v{b}")
        E(f"v_fma_f32 v{b}, -v{a}, v{a}, v{b}"); E(f"v_max_f32 v{b}, 0, v{b}"); E(f"v_add_f32 v{b}, {f2u(1e-5):#x}, v{b}")
        E(f"v_rsq_f32 v{b}, v{b}"); E("s_nop 0"); E(f"v_mul_f32 v{a}, v{a}, v{b}"); E(f"v_sub_f32 v{a}, 0, v{a}")
        for i in range(4):
            x = 16+4*r+i
            E(f"v_lshlrev_b32 v30, 16, v{x}"); E(f"v_and_b32 v31, 0xffff0000, v{x}")
            E(f"v_fma_f32 v30, v30, v{b}, v{a}"); E(f"v_fma_f32 v31, v31, v{b}, v{a}"); E(f"v_cvt_pk_bf16_f32 v{x}, v30, v31")
        E(f"buffer_store_dwordx4 v[{16+4*r}:{19+4*r}], v6, s[44:47], s11 offen offset:{16*r}")
    epilogue_end(n)

SC = " sc1"
def lanes():
    E("v_and_b32 v1, 63, v0"); E("v_and_b32 v3, 31, v0"); E("v_bfe_u32 v4, v0, 5, 1")
WS_CNT = 20*MB
def signal(n, idx):
    E("s_waitcnt vmcnt(0)"); E("s_barrier")
    E("s_cmp_lg_u32 s3, 0"); E(f"s_cbranch_scc1 {n}_sig{idx}")
    E("s_lshl_b32 s4, s9, 1"); E(f"s_add_u32 s4, s4, {idx*4096}")
    E("v_mov_b32 v5, 1"); E("v_mov_b32 v6, s4"); E("s_mov_b64 exec, 1")
    E("buffer_atomic_add v5, v6, s[56:59], 0 offen"); E("s_mov_b64 exec, -1")
    L(f"{n}_sig{idx}")
def wait(n, idx, back=0):
    E("s_cmp_lg_u32 s3, 0"); E(f"s_cbranch_scc1 {n}_wx{idx}")
    for b in range(back + 1):
        E("s_lshl_b32 s4, s9, 1"); E(f"s_sub_i32 s4, s4, {256*b}"); E("s_max_i32 s4, s4, 0"); E(f"s_add_u32 s4, s4, {idx*4096}")
        E("v_mov_b32 v6, s4"); E("s_mov_b32 s6, 0")
        L(f"{n}_w{idx}_{b}")
        E("buffer_load_dword v5, v6, s[56:59], 0 offen sc1"); E("s_waitcnt vmcnt(0)")
        E("v_readfirstlane_b32 s4, v5"); E("s_add_u32 s6, s6, 1"); E("s_cmp_ge_u32 s4, 16"); E(f"s_cbranch_scc1 {n}_wd{idx}_{b}")
        E("s_sleep 3"); E("s_cmp_lt_u32 s6, 0x4000"); E(f"s_cbranch_scc1 {n}_w{idx}_{b}")
        L(f"{n}_wd{idx}_{b}")
    L(f"{n}_wx{idx}")
    E("s_waitcnt vmcnt(0)"); E("s_barrier")
def load_xt2(srdreg, nsteps_total, nsteps, base=VX, sc=SC):
    E("s_lshr_b32 s4, s10, 5"); E(f"s_mul_i32 s4, s4, {nsteps_total*1024}")
    E("v_lshlrev_b32 v8, 4, v1"); E("v_add_u32 v8, s4, v8")
    for s in range(nsteps):
        if s % 4 == 0: E(f"s_mov_b32 s4, {1024*s}")
        E(f"buffer_load_dwordx4 v[{base+4*s}:{base+4*s+3}], v8, s[{srdreg}:{srdreg+3}], s4 offen offset:{1024*(s%4)}{sc}")
def issue(groups):
    for g in groups:
        for x in g: E(x)

def mega():
    global VW
    n = "km_block_kernel"; kernels.append((n, 256, 163840)); prologue(n, 256)
    stamp(n); wgmap(2)
    E("s_mov_b32 s61, s11")
    E("s_lshl_b32 s10, s3, 5"); E("s_add_u32 s10, s10, s9")
    srd(56, 34, WS_CNT, 16384)
    E("s_mul_i32 s11, s61, 3")
    srd(40, 34, WS_XN, 2*MB); srd(44, 18, 0, 512*3072); srd(48, 34, 0, 6*MB)
    dma_setup_w(3072)
    E("s_lshl_b32 s60, s11, 6")
    allw = dma_list_w(44, 60, 0, 0, 512, 3072)
    issue(allw[:8]); load_xt2(40, 32, 32, VX, ""); issue(allw[8:])
    E("v_add_u32 v9, s10, v3")
    w_addr(False, 10, 192); E("v_add_u32 v13, 0xc000, v10")
    E("v_lshlrev_b32 v11, 5, v9"); E("v_lshlrev_b32 v5, 4, v4"); E("v_add_u32 v11, v11, v5")
    E("v_bfe_u32 v12, v0, 4, 1"); E("v_lshlrev_b32 v12, 16, v12"); E("v_lshlrev_b32 v5, 8, v4"); E("v_add_u32 v12, v12, v5")
    E("v_and_b32 v5, 15, v0"); E("v_lshlrev_b32 v5, 4, v5"); E("v_add_u32 v12, v12, v5")
    E("s_lshl_b32 s13, s10, 5"); E("v_add_u32 v12, s13, v12")
    E("s_waitcnt vmcnt(0)"); E("s_barrier")
    for j in range(3):
        E(f"s_add_u32 s12, s11, {j}"); E("s_cmp_ge_u32 s12, 32"); E(f"s_cbranch_scc1 {n}_v{j}")
        for sw in (False, True):
            if sw: L(f"{n}_v{j}")
            items = [((10, 3072*s + 64*j) if s < 16 else (13, 3072*(s-16) + 64*j)) + (VX+4*s, ACC0) for s in range(32)]
            for i in mfma_items(items, False, lambda i: sw, lambda i: i == 0, 192): pass
            E("s_nop 15"); pack(ACC0, VT)
            if not sw:
                E("s_lshr_b32 s14, s12, 4"); E("s_lshl_b32 s14, s14, 21"); E("s_and_b32 s15, s12, 15"); E("s_lshl_b32 s15, s15, 17")
                E("s_add_u32 s14, s14, s15"); E("s_add_u32 s15, s14, 65536")
                E(f"buffer_store_dwordx4 v[{VT}:{VT+3}], v11, s[48:51], s14 offen{SC}")
                E(f"buffer_store_dwordx4 v[{VT+4}:{VT+7}], v11, s[48:51], s15 offen{SC}")
                E(f"s_branch {n}_e{j}")
            else:
                E("s_sub_u32 s14, s12, 32"); E("s_lshl_b32 s14, s14, 17"); E(f"s_add_u32 s14, s14, {WS_V}")
                E(f"buffer_store_dwordx4 v[{VT}:{VT+3}], v12, s[48:51], s14 offen{SC}")
                E(f"buffer_store_dwordx4 v[{VT+4}:{VT+7}], v12, s[48:51], s14 offen offset:512{SC}")
        L(f"{n}_e{j}"); E("s_nop 1")
    stamp(n); signal(n, 0); stamp(n)
    srd(44, 20, 0, 512*1024); srd(64, 24, 0, 512*2752); srd(68, 26, 0, 512*2752)
    E("s_lshl_b32 s62, s61, 6")
    E("s_mul_i32 s63, s61, 86"); E("s_and_b32 s63, s63, 0xfffffff0"); E("s_lshl_b32 s63, s63, 1")
    dma_setup(1024); issue(dma_list(44, 62, 0, 0, 8, 1024))
    dma_setup(2752)
    slotof = {0: 1, 1: 2, 2: 3, 3: 4, 4: 0, 5: 1}
    def regl(r): return dma_list(64 if r % 2 == 0 else 68, 63, 64*(r//2), slotof[r]*32768, 8, 2752)
    E("v_mov_b32 v5, 0x3f803f80")
    for r in range(144): E(f"v_accvgpr_write_b32 a{80+r}, v5")
    wait(n, 0, 2); stamp(n); stamp(n, "p2")
    S, O, PK = 96, 240, 16
    srd(40, 34, WS_Q, 2*MB); srd(44, 34, WS_K - 8192, 2*MB + 8192); srd(48, 34, WS_V - 8192, 2*MB + 8192); srd(52, 34, WS_O, 2*MB)
    E("v_lshlrev_b32 v5, 2, v4"); E("v_sub_u32 v11, v3, v5")
    E("s_sub_i32 s15, 256, s10"); E("s_max_i32 s15, s15, 0")
    E("v_lshlrev_b32 v6, 4, v4")
    E("s_lshl_b32 s11, s61, 1")
    E("s_lshl_b32 s12, s11, 11"); E("s_add_u32 s12, s12, s10")
    E("v_add_u32 v5, s12, v3"); E("v_lshlrev_b32 v5, 5, v5"); E("v_add_u32 v8, v5, v6"); E("v_add_u32 v13, 0x10000, v8")
    E("s_lshl_b32 s14, s15, 5")
    for hh in range(2):
        va = (8, 13)[hh]
        E(f"buffer_load_dwordx4 a[{72+4*hh}:{75+4*hh}], v{va}, s[40:43], 0 offen{SC}")
        for kb in range(9):
            E(f"s_max_u32 s13, s14, {kb*1024}")
            E(f"buffer_load_dwordx4 a[{36*hh+4*kb}:{36*hh+4*kb+3}], v{va}, s[44:47], s13 offen{SC}")
    E("v_and_b32 v5, 15, v0"); E("v_lshlrev_b32 v5, 4, v5"); E("v_lshlrev_b32 v9, 8, v4"); E("v_add_u32 v5, v5, v9")
    E("s_lshl_b32 s13, s11, 16"); E("s_lshl_b32 s12, s10, 5"); E("s_add_u32 s13, s13, s12"); E("v_add_u32 v9, s13, v5"); E("v_add_u32 v14, 0x10000, v9")
    E("s_mov_b32 s12, 0x0000ffff"); E("s_mov_b32 s13, 0x0000ffff"); E("s_mov_b64 exec, s[12:13]")
    for hh in range(2):
        for t in range(18):
            E(f"s_max_u32 s13, s14, {512*t}")
            E(f"buffer_load_dwordx4 a[{80+72*hh+4*t}:{80+72*hh+4*t+3}], v{(9,14)[hh]}, s[48:51], s13 offen{SC}")
    E("s_mov_b64 exec, -1")
    E("s_add_u32 s13, s10, s11"); E("s_lshl_b32 s13, s13, 10"); E("v_lshlrev_b32 v5, 4, v1"); E("v_add_u32 v10, s13, v5")
    stamp(n, "p2")
    for hh in range(2):
        pf = regl(2*hh) + regl(2*hh+1)
        E(f"v_mov_b32 v12, {f2u(-1e30):#x}")
        for kb in range(9):
            if hh == 0: E(f"s_waitcnt vmcnt({54-kb})")
            E(f"v_mfma_f32_32x32x16_bf16 v[{S+16*kb}:{S+16*kb+15}], a[{36*hh+4*kb}:{36*hh+4*kb+3}], a[{72+4*hh}:{75+4*hh}], 0")
        E("s_nop 7"); E("s_nop 3"); stamp(n, "p2")
        for kb in range(8):
            E(f"s_cmp_ge_u32 s10, {256-32*kb}"); E(f"s_cbranch_scc1 {n}_ok{hh}_{kb}")
            for i in range(16): E(f"v_mov_b32 v{S+16*kb+i}, v12")
            L(f"{n}_ok{hh}_{kb}")
        for i in range(16):
            c = 8*(i >> 2) + (i & 3)
            E(f"v_cmp_le_i32 vcc, {c}, v11"); E("s_nop 1")
            E(f"v_cndmask_b32 v{S+128+i}, v12, v{S+128+i}, vcc"); E(f"v_cndmask_b32 v{S+i}, v{S+i}, v12, vcc")
        for c in range(4): E(f"v_max_f32 v{PK+c}, v{S+c}, v{S+4+c}")
        for r in range(8, 144, 8):
            for c in range(4): E(f"v_max3_f32 v{PK+c}, v{PK+c}, v{S+r+c}, v{S+r+4+c}")
        E(f"v_max_f32 v{PK}, v{PK}, v{PK+1}"); E(f"v_max_f32 v{PK+2}, v{PK+2}, v{PK+3}"); E(f"v_max_f32 v12, v{PK}, v{PK+2}"); E("v_mov_b32 v15, v12")
        E("s_nop 1"); E("v_permlane32_swap_b32 v12, v15"); E("s_nop 1"); E("v_max_f32 v12, v12, v15")
        E(f"s_mov_b32 s13, {f2u(0.25*LOG2E):#x}"); E("v_mul_f32 v12, s13, v12"); stamp(n, "p2")
        for r in range(0, 144, 4):
            for c in range(4): E(f"v_fma_f32 v{S+r+c}, v{S+r+c}, s13, -v12")
            for c in range(4): E(f"v_exp_f32 v{S+r+c}, v{S+r+c}")
            if r >= 4:
                p = r - 4; d = S + 16*(p//16) + (p % 16)//2
                E(f"v_cvt_pk_bf16_f32 v{d}, v{S+p}, v{S+p+1}"); E(f"v_cvt_pk_bf16_f32 v{d+1}, v{S+p+2}, v{S+p+3}")
            if r % 8 == 0 and pf: issue([pf.pop(0)])
        p = 140; d = S + 16*(p//16) + (p % 16)//2
        E("s_nop 0"); E(f"v_cvt_pk_bf16_f32 v{d}, v{S+p}, v{S+p+1}"); E(f"v_cvt_pk_bf16_f32 v{d+1}, v{S+p+2}, v{S+p+3}")
        assert not pf
        stamp(n, "p2")
        E(f"s_waitcnt vmcnt({(18+16) if hh == 0 else (16+1+16)})"); stamp(n, "p2")
        for t in range(18):
            bb = S + 16*(t//2) + 4*(t % 2)
            E(f"v_mfma_f32_32x32x16_bf16 v[{O}:{O+15}], a[{80+72*hh+4*t}:{80+72*hh+4*t+3}], v[{bb}:{bb+3}], {'0' if t == 0 else f'v[{O}:{O+15}]'}")
        E("s_nop 15"); E(f"v_rcp_f32 v12, v{O+8}"); E("s_nop 0")
        for i in range(8): E(f"v_mul_f32 v{O+i}, v{O+i}, v12")
        for i in range(4): E(f"v_cvt_pk_bf16_f32 v{PK+i}, v{O+2*i}, v{O+2*i+1}")
        E(f"buffer_store_dwordx4 v[{PK}:{PK+3}], v10, s[52:55], 0 offen offset:{1024*hh}{SC}")
        E("s_nop 1")
    stamp(n); signal(n, 1); stamp(n)
    wait(n, 1); stamp(n)
    srd(40, 34, WS_O, 2*MB); srd(48, 34, WS_H, 2*MB); srd(52, 16, 0, 2*MB)
    load_xt2(40, 32, 32)
    E("v_add_u32 v9, s10, v3")
    w_addr(True, 10)
    E("v_lshlrev_b32 v12, 10, v9"); E("v_lshlrev_b32 v5, 3, v4"); E("v_add_u32 v12, v12, v5"); E("s_lshl_b32 s13, s61, 11")
    for q in range(4): E(f"buffer_load_dwordx2 v[{VT+8+2*q}:{VT+9+2*q}], v12, s[52:55], s62 offen offset:{16*q}")
    E("s_waitcnt vmcnt(0)"); E("s_barrier")
    items = [(10, 1024*s, VX+4*s, ACC0) for s in range(32)]
    for _ in mfma_items(items, True, lambda i: False, lambda i: i == 0): pass
    E("s_nop 15")
    for i in range(8):
        E(f"v_lshlrev_b32 v5, 16, v{VT+8+i}"); E(f"v_and_b32 v6, 0xffff0000, v{VT+8+i}")
        E(f"v_add_f32 v{ACC0+2*i}, v{ACC0+2*i}, v5"); E(f"v_add_f32 v{ACC0+2*i+1}, v{ACC0+2*i+1}, v6")
    pack(ACC0, VT)
    E(f"buffer_store_dwordx4 v[{VT}:{VT+3}], v8, s[48:51], s13 offen{SC}")
    E(f"buffer_store_dwordx4 v[{VT+4}:{VT+7}], v8, s[48:51], s13 offen offset:1024{SC}")
    stamp(n); signal(n, 2); stamp(n)
    issue(regl(4))
    wait(n, 2); stamp(n)
    srd(40, 34, WS_H, 2*MB); srd(52, 34, WS_HH, 2048*2752)
    load_xt2(40, 32, 32)
    E("s_lshr_b32 s4, s10, 5"); E(f"s_mul_i32 s4, s4, {86*1024}"); E("v_lshlrev_b32 v11, 4, v1"); E("v_add_u32 v11, s4, v11")
    ln_regs(0)
    E(f"s_mov_b32 s13, {f2u(-LOG2E):#x}")
    E("s_barrier")
    for j in range(3):
        sg, su = slotof[2*j]*32768, slotof[2*j+1]*32768
        E(f"v_add_u32 v13, {sg}, v10"); E(f"v_add_u32 v14, {su}, v10")
        items = []
        for s in range(32): items += [(13, 1024*s, VX+4*s, ACC0), (14, 1024*s, VX+4*s, ACC1)]
        for _ in mfma_items(items, True, lambda i: False, lambda i: i < 2): pass
        if j == 0: E("s_barrier"); issue(regl(5))
        if j == 1: E("s_waitcnt vmcnt(2)"); E("s_barrier")
        E("s_nop 15")
        for i in range(16): E(f"v_mul_f32 v{ACC0+i}, s13, v{ACC0+i}")
        for i in range(16): E(f"v_exp_f32 v{ACC0+i}, v{ACC0+i}")
        for i in range(16): E(f"v_add_f32 v{ACC0+i}, 1.0, v{ACC0+i}")
        for i in range(16): E(f"v_rcp_f32 v{ACC0+i}, v{ACC0+i}")
        for i in range(16): E(f"v_mul_f32 v{ACC0+i}, v{ACC0+i}, v{ACC1+i}")
        pack(ACC0, VT)
        E(f"s_add_u32 s12, s63, {64*j}"); E("s_lshl_b32 s12, s12, 5")
        E(f"buffer_store_dwordx4 v[{VT}:{VT+3}], v11, s[52:55], s12 offen{SC}")
        E(f"buffer_store_dwordx4 v[{VT+4}:{VT+7}], v11, s[52:55], s12 offen offset:1024{SC}")
        E("s_nop 1")
    stamp(n); signal(n, 3); stamp(n)
    NX = 44; X = 56; oldVW = VW; VW = 16; A = 232; T = 48
    srd(44, 28, 0, 1376*1024)
    dma_setup(1024); issue(dma_list(44, 62, 0, 0, 22, 1024))
    wait(n, 3); stamp(n)
    srd(40, 34, WS_HH, 2048*2752); srd(48, 34, WS_H, 2*MB); srd(52, 30, 0, 2*MB)
    load_xt2(40, 86, NX, X)
    E("v_add_u32 v13, 0x10000, v10"); E("v_add_u32 v9, s10, v3")
    E("v_lshlrev_b32 v12, 10, v9"); E("v_lshlrev_b32 v5, 3, v4"); E("v_add_u32 v12, v12, v5")
    E("s_lshl_b32 s13, s10, 10"); E("s_lshl_b32 s14, s61, 11"); E("s_add_u32 s13, s13, s14"); E("v_lshlrev_b32 v11, 4, v1")
    E(f"buffer_load_dwordx4 v[248:251], v11, s[48:51], s13 offen{SC}"); E(f"buffer_load_dwordx4 v[252:255], v11, s[48:51], s13 offen offset:1024{SC}")
    E("s_waitcnt vmcnt(0)"); E("s_barrier")
    items = [((10, 1024*s) if s < 64 else (13, 1024*(s-64))) + (X+4*(s % NX), A) for s in range(86)]
    for i in mfma_items(items, True, lambda i: False, lambda i: i == 0):
        if i + NX < 86:
            s = i + NX; E(f"s_mov_b32 s4, {1024*s}"); E(f"buffer_load_dwordx4 v[{X+4*i}:{X+4*i+3}], v8, s[40:43], s4 offen{SC}")
        if i + 1 >= NX and i + 1 < 86: E(f"s_waitcnt vmcnt({85-(i+1)})")
    VW = oldVW
    E("s_nop 15")
    for i in range(8):
        E(f"v_lshlrev_b32 v5, 16, v{248+i}"); E(f"v_and_b32 v6, 0xffff0000, v{248+i}")
        E(f"v_add_f32 v{A+2*i}, v{A+2*i}, v5"); E(f"v_add_f32 v{A+2*i+1}, v{A+2*i+1}, v6")
    pack(A, T)
    for q in range(4): E(f"buffer_store_dwordx2 v[{T+2*q}:{T+2*q+1}], v12, s[52:55], s62 offen offset:{16*q}")
    epilogue_end(n)

k0(); mega()
hdr = open("cdna_kernels/" + NAME + ".s.ref").read().split("\n")
head = [l for l in hdr if l.startswith(";") and "@launch" not in l and "Override" not in l and "grid=ceil" not in l]
import os
dup = int(os.environ.get("DUP", "-1"))
ll = []
for idx, (k, g, l) in enumerate(kernels):
    ll += [f"; @launch kernel={k} grid=({g},1,1) block=(256,1,1) lds={l}"] * (5 if idx == dup else 1)
if dup == 99: ll = ll + ll
if STAMPK:
    ll = ll + [x for x in ll if STAMPK in x]
txt = head + ll
txt += ['.amdgcn_target "amdgcn-amd-amdhsa--gfx950"', ".text"] + out + ['.section .rodata,"a"']
for k, g, l in kernels:
    txt += [".p2align 6", f".amdhsa_kernel {k}", f"  .amdhsa_next_free_vgpr {512 if k.startswith('km') else 256}", "  .amdhsa_next_free_sgpr 102", "  .amdhsa_accum_offset 256",
            "  .amdhsa_group_segment_fixed_size 0", "  .amdhsa_kernarg_size 80", "  .amdhsa_user_sgpr_count 2",
            "  .amdhsa_user_sgpr_kernarg_segment_ptr 1", "  .amdhsa_system_sgpr_workgroup_id_x 1", ".end_amdhsa_kernel"]
open(os.environ.get("OUT", "cdna_kernels/" + NAME + ".s"), "w").write("\n".join(txt) + "\n")
```

```python
import sys, os
NAME = "sequential_preLN__sliding_block__glu_gated_glu__prompt"
out = []
def E(s): out.append("    " + s)
def L(s): out.append(s + ":")
MB = 1 << 20
WS_Q, WS_K, WS_V, WS_O, WS_H, WS_HH = 0, 2*MB, 4*MB, 6*MB, 8*MB, 10*MB
WS_XN = 16*MB
LOG2E = 1.4426950408889634
import struct
def f2u(f): return struct.unpack("<I", struct.pack("<f", f))[0]

def prologue(name, nwg):
    out.append(".p2align 8"); out.append(f".globl {name}"); out.append(f".type {name},@function"); L(name)
    E(f"s_cmp_ge_u32 s2, {nwg}"); E(f"s_cbranch_scc1 {name}_done")
    E("s_load_dwordx16 s[16:31], s[0:1], 0"); E("s_load_dwordx4 s[32:35], s[0:1], 64")
    E("v_and_b32 v1, 63, v0")
    E("v_lshrrev_b32 v2, 6, v0")
    E("v_and_b32 v3, 31, v0")
    E("v_readfirstlane_b32 s3, v2")
    E("v_bfe_u32 v4, v0, 5, 1")
    E("s_waitcnt lgkmcnt(0)")
STAMPK = os.environ.get("STAMP", "")
nst = [0]
def stamp(name, tag=""):
    if name != STAMPK: return
    if tag != os.environ.get("STAG", "") and nst[0] > 0 and tag != "end": return
    E("s_memtime s[74:75]"); E("s_waitcnt lgkmcnt(0)"); E(f"s_mov_b32 s{76+nst[0]}, s74"); nst[0] += 1
def epilogue_end(name):
    if name == STAMPK:
        stamp(name, "end")
        srd(40, 32, 0, 256)
        E("s_cmp_lg_u32 s2, 8"); E(f"s_cbranch_scc1 {name}_done"); E("s_cmp_lg_u32 s3, 0"); E(f"s_cbranch_scc1 {name}_done")
        srd(40, 32, 0, 256)
        for i in range(nst[0]):
            E(f"s_sub_u32 s4, s{76+i}, s76"); E("v_mov_b32 v5, s4"); E(f"v_mov_b32 v6, {4*i}"); E("buffer_store_dword v5, v6, s[40:43], 0 offen")
    L(f"{name}_done"); E("s_endpgm")
def srd(d, base, off, size):
    if off >= 0:
        E(f"s_add_u32 s{d}, s{base}, {off}"); E(f"s_addc_u32 s{d+1}, s{base+1}, 0")
    else:
        E(f"s_sub_u32 s{d}, s{base}, {-off}"); E(f"s_subb_u32 s{d+1}, s{base+1}, 0")
    E(f"s_mov_b32 s{d+2}, {size}"); E(f"s_mov_b32 s{d+3}, 0x00020000")

VX, VW, ACC0, ACC1, VT = 16, 144, 176, 192, 208

def w_addr(perm, vdst, RB=64):
    E("v_bfe_u32 v5, v0, 2, 2")
    E(f"v_lshlrev_b32 v6, {2 if perm else 3}, v4")
    E("v_add_u32 v5, v5, v6")
    E(f"v_mul_u32_u24 v5, {RB}, v5")
    E("v_bfe_u32 v6, v0, 4, 1")
    E("v_lshlrev_b32 v6, 5, v6")
    E("v_add_u32 v5, v5, v6")
    E("v_and_b32 v6, 3, v0")
    E("v_lshlrev_b32 v6, 3, v6")
    E(f"v_add_u32 v{vdst}, v5, v6")

def dma_setup(ldw):
    E("v_lshrrev_b32 v5, 2, v0"); E(f"s_mov_b32 s4, {ldw}"); E("v_mul_lo_u32 v5, v5, s4")
    E("v_and_b32 v6, 3, v0"); E("v_lshlrev_b32 v6, 4, v6"); E("v_add_u32 v7, v5, v6")
    E("s_lshl_b32 s5, s3, 10")
def dma_region(srdreg, scol, ldsbase, nj, ldw):
    E(f"s_mov_b32 s6, s{scol}"); E(f"s_add_u32 s7, s5, {ldsbase}")
    for j in range(nj):
        E("s_mov_b32 m0, s7");
        if j + 1 < nj: E("s_add_u32 s7, s7, 4096")
        else: E("s_nop 0")
        E(f"buffer_load_dwordx4 v7, s[{srdreg}:{srdreg+3}], s6 offen lds")
        if j + 1 < nj: E(f"s_add_u32 s6, s6, {64*ldw}")

def dma_list(srdreg, scolreg, coladd, ldsbase, nj, ldw):
    r = []
    for j in range(nj):
        r.append([f"s_add_u32 s6, s{scolreg}, {coladd + j*64*ldw}", f"s_add_u32 m0, s5, {ldsbase + j*4096}", "s_nop 0",
                  f"buffer_load_dwordx4 v7, s[{srdreg}:{srdreg+3}], s6 offen lds"])
    return r
def dma_setup_w(ldw):
    E("s_lshl_b32 s5, s3, 10"); E("s_mov_b32 s4, 0xAAAB"); E(f"s_mov_b32 s6, {ldw}")
    for t, vr in enumerate((7, 14, 15)):
        E(f"v_add_u32 v5, {256*t}, v0"); E("v_mul_lo_u32 v6, v5, s4"); E("v_lshrrev_b32 v6, 19, v6")
        E("v_mul_u32_u24 v2, 12, v6"); E("v_sub_u32 v5, v5, v2"); E("v_lshlrev_b32 v5, 4, v5")
        E("v_mul_lo_u32 v6, v6, s6"); E(f"v_add_u32 v{vr}, v5, v6")
def dma_list_w(srdreg, scolreg, ldsbase, row0, nrows, ldw):
    r = []
    for j in range(nrows*12//256):
        r.append([f"s_add_u32 s6, s{scolreg}, {(row0 + (j//3)*64)*ldw}", f"s_add_u32 m0, s5, {ldsbase + j*4096}", "s_nop 0",
                  f"buffer_load_dwordx4 v{(7,14,15)[j%3]}, s[{srdreg}:{srdreg+3}], s6 offen lds"])
    return r
def mfma_items(items, perm, swap_of, first_of, RB=64):
    d2 = 8*RB if perm else 4*RB
    n = len(items); D = 6
    def rd(i):
        va, off, _, _ = items[i]; w = VW + 4 * (i % 8)
        E(f"ds_read_b64_tr_b16 v[{w}:{w+1}], v{va} offset:{off}")
        E(f"ds_read_b64_tr_b16 v[{w+2}:{w+3}], v{va} offset:{off+d2}")
    for i in range(min(D, n)): rd(i)
    for i in range(n):
        va, off, x, acc = items[i][:4]; w = VW + 4 * (i % 8)
        E(f"s_waitcnt lgkmcnt({2*(min(i+D-1, n-1)-i)})")
        c = "0" if first_of(i) else f"v[{acc}:{acc+15}]"
        if swap_of(i): E(f"v_mfma_f32_32x32x16_bf16 v[{acc}:{acc+15}], v[{x}:{x+3}], v[{w}:{w+3}], {c}")
        else:          E(f"v_mfma_f32_32x32x16_bf16 v[{acc}:{acc+15}], v[{w}:{w+3}], v[{x}:{x+3}], {c}")
        if i + D < n: rd(i + D)
        yield i

def ln_regs(ndma, inter=[], jit=False):
    E("s_mov_b32 s8, 0x3f803f80")
    for q in range(4): E(f"v_mov_b32 v{VT+q}, 0"); E(f"v_mov_b32 v{VT+4+q}, 0")
    inter = list(inter); nd = 0
    for g in range(4):
        E(f"s_waitcnt vmcnt({min(63, 24-8*g+nd)})")
        for r in range(32*g, 32*g+32):
            if inter and r % 8 == 4:
                for x in inter.pop(0): E(x)
                nd += 1
            E(f"v_dot2_f32_bf16 v{VT+(r&3)}, v{VX+r}, s8, v{VT+(r&3)}")
            E(f"v_dot2_f32_bf16 v{VT+4+(r&3)}, v{VX+r}, v{VX+r}, v{VT+4+(r&3)}")
    E("s_nop 3")
    E(f"v_add_f32 v{VT}, v{VT}, v{VT+1}"); E(f"v_add_f32 v{VT+2}, v{VT+2}, v{VT+3}")
    E(f"v_add_f32 v{VT+4}, v{VT+4}, v{VT+5}"); E(f"v_add_f32 v{VT+6}, v{VT+6}, v{VT+7}")
    E(f"v_add_f32 v{VT}, v{VT}, v{VT+2}"); E(f"v_add_f32 v{VT+4}, v{VT+4}, v{VT+6}")
    E(f"v_mov_b32 v{VT+1}, v{VT}"); E(f"v_mov_b32 v{VT+5}, v{VT+4}")
    E("s_nop 1")
    E(f"v_permlane32_swap_b32 v{VT}, v{VT+1}"); E(f"v_permlane32_swap_b32 v{VT+4}, v{VT+5}")
    E("s_nop 1")
    E(f"v_add_f32 v{VT}, v{VT}, v{VT+1}"); E(f"v_add_f32 v{VT+4}, v{VT+4}, v{VT+5}")
    E(f"v_mul_f32 v{VT}, {f2u(1/512):#x}, v{VT}")
    E(f"v_mul_f32 v{VT+4}, {f2u(1/512):#x}, v{VT+4}")
    E(f"v_fma_f32 v{VT+4}, -v{VT}, v{VT}, v{VT+4}")
    E(f"v_max_f32 v{VT+4}, 0, v{VT+4}")
    E(f"v_add_f32 v{VT+4}, {f2u(1e-5):#x}, v{VT+4}")
    E(f"v_rsq_f32 v{VT+4}, v{VT+4}")
    E("s_nop 0")
    E(f"v_mul_f32 v{VT}, v{VT}, v{VT+4}")
    E(f"v_sub_f32 v{VT}, 0, v{VT}")
    if jit:
        E(f"v_mov_b32 v2, v{VT+4}"); E(f"v_mov_b32 v15, v{VT}"); return
    for r in range(128):
        if inter and r % 5 == 0:
            for x in inter.pop(0): E(x)
        a, b = VT + 8 + 2 * (r & 3), VT + 9 + 2 * (r & 3)
        E(f"v_lshlrev_b32 v{a}, 16, v{VX+r}"); E(f"v_and_b32 v{b}, 0xffff0000, v{VX+r}")
        E(f"v_fma_f32 v{a}, v{a}, v{VT+4}, v{VT}"); E(f"v_fma_f32 v{b}, v{b}, v{VT+4}, v{VT}")
        E(f"v_cvt_pk_bf16_f32 v{VX+r}, v{a}, v{b}")

def load_x(srdreg, ld, nsteps, base=VX):
    E("s_lshl_b32 s10, s3, 5"); E("s_add_u32 s10, s10, s9")
    E("v_add_u32 v9, s10, v3"); E(f"s_mov_b32 s4, {ld}"); E("v_mul_lo_u32 v8, v9, s4")
    E("v_lshlrev_b32 v5, 4, v4"); E("v_add_u32 v8, v8, v5")
    for s in range(nsteps):
        E(f"buffer_load_dwordx4 v[{base+4*s}:{base+4*s+3}], v8, s[{srdreg}:{srdreg+3}], 0 offen offset:{32*s}")
def wgmap(a=2):
    if a == 2:
        E("s_and_b32 s9, s2, 7"); E("s_lshl_b32 s9, s9, 1"); E("s_lshr_b32 s11, s2, 7"); E("s_add_u32 s9, s9, s11"); E("s_lshl_b32 s9, s9, 7")
        E("s_lshr_b32 s11, s2, 3"); E("s_and_b32 s11, s11, 15")
    else:
        E("s_bfe_u32 s9, s2, 0x20001"); E("s_lshl_b32 s9, s9, 2"); E("s_lshr_b32 s11, s2, 6"); E("s_add_u32 s9, s9, s11"); E("s_lshl_b32 s9, s9, 7")
        E("s_bfe_u32 s11, s2, 0x30003"); E("s_and_b32 s4, s2, 1"); E("s_lshl_b32 s4, s4, 3"); E("s_add_u32 s11, s11, s4")
def load_xt(srdreg, nsteps_total, nsteps, base=VX):
    E("s_lshl_b32 s10, s3, 5"); E("s_add_u32 s10, s10, s9"); E("v_add_u32 v9, s10, v3")
    E("s_lshr_b32 s4, s10, 5"); E(f"s_mul_i32 s4, s4, {nsteps_total*1024}")
    E("v_lshlrev_b32 v8, 4, v1"); E("v_add_u32 v8, s4, v8")
    for s in range(nsteps):
        if s % 4 == 0: E(f"s_mov_b32 s4, {1024*s}")
        E(f"buffer_load_dwordx4 v[{base+4*s}:{base+4*s+3}], v8, s[{srdreg}:{srdreg+3}], s4 offen offset:{1024*(s%4)}")
def pack(acc, dst):
    for i in range(8): E(f"v_cvt_pk_bf16_f32 v{dst+i}, v{acc+2*i}, v{acc+2*i+1}")

kernels = []
def k0():
    n = "k0_ln_kernel"; kernels.append((n, 256, 0)); prologue(n, 256)
    E("s_and_b32 s9, s2, 7"); E("s_lshl_b32 s9, s9, 8"); E("s_lshr_b32 s10, s2, 3"); E("s_lshl_b32 s10, s10, 3"); E("s_add_u32 s9, s9, s10")
    E("s_lshl_b32 s10, s3, 1"); E("s_add_u32 s9, s9, s10")
    srd(40, 16, 0, 2*MB); srd(44, 34, WS_XN, 2*MB)
    E("s_cmp_lg_u32 s2, 0"); E("s_cbranch_scc1 k0_nz")
    srd(52, 34, 20*MB, 16384)
    for i in range(4): E(f"v_mov_b32 v{40+i}, 0")
    E("v_lshlrev_b32 v5, 6, v0")
    for i in range(4): E(f"buffer_store_dwordx4 v[40:43], v5, s[52:55], 0 offen offset:{16*i}")
    L("k0_nz")
    E("s_lshl_b32 s10, s9, 10"); E("v_lshlrev_b32 v5, 4, v1")
    E("buffer_load_dwordx4 v[16:19], v5, s[40:43], s10 offen"); E("buffer_load_dwordx4 v[20:23], v5, s[40:43], s10 offen offset:1024")
    E("s_lshr_b32 s11, s9, 5"); E("s_lshl_b32 s11, s11, 15"); E("s_and_b32 s12, s9, 31"); E("s_lshl_b32 s12, s12, 4"); E("s_add_u32 s11, s11, s12")
    E("v_lshrrev_b32 v6, 1, v1"); E("v_lshlrev_b32 v6, 10, v6"); E("v_and_b32 v7, 1, v1"); E("v_lshlrev_b32 v7, 9, v7"); E("v_add_u32 v6, v6, v7")
    E("s_mov_b32 s8, 0x3f803f80")
    for q in range(4): E(f"v_mov_b32 v{24+q}, 0")
    if os.environ.get("PF", "1") == "1":
        E("s_lshl_b32 s12, s2, 12"); E("v_lshlrev_b32 v32, 4, v0"); E("v_add_u32 v32, s12, v32"); E("v_add_u32 v33, 0x100000, v32")
        k = 0
        for base, size in ((18, 512*3072), (20, 512*1024), (24, 512*2752), (26, 512*2752), (28, 1376*1024)):
            srd(48, base, 0, size)
            E(f"buffer_load_dwordx4 v[{36+4*k}:{39+4*k}], v32, s[48:51], 0 offen"); k += 1
            if size > MB: E(f"buffer_load_dwordx4 v[{36+4*k}:{39+4*k}], v33, s[48:51], 0 offen"); k += 1
        ntl = 0
        if os.environ.get("TLB", "0") == "1":
            E("v_lshlrev_b32 v33, 16, v1")
            srd(48, 34, 0, 24*MB)
            for i in range(6):
                E(f"s_mov_b32 s12, {4*MB*i}"); E(f"buffer_load_dword v{100+ntl}, v33, s[48:51], s12 offen"); ntl += 1
            for base, size in ((18, 512*3072), (20, 512*1024), (24, 512*2752), (26, 512*2752), (28, 1376*1024), (30, 2*MB)):
                srd(48, base, 0, size); E(f"buffer_load_dword v{100+ntl}, v33, s[48:51], 0 offen"); ntl += 1
        npf = int(os.environ.get("NPF", "0"))
        if npf:
            E("s_getpc_b64 s[60:61]"); L("k0_pc")
            E("v_lshlrev_b32 v34, 4, v0")
            for i in range(npf):
                E(f"global_load_dwordx4 v[{72+4*i}:{75+4*i}], v34, s[60:61]"); E("v_add_u32 v34, 0x1000, v34")
        E(f"s_waitcnt vmcnt({9+npf+ntl})")
    else:
        E("s_waitcnt vmcnt(0)")
    for r in range(2):
        for i in range(4):
            E(f"v_dot2_f32_bf16 v{24+2*r}, v{16+4*r+i}, s8, v{24+2*r}"); E(f"v_dot2_f32_bf16 v{25+2*r}, v{16+4*r+i}, v{16+4*r+i}, v{25+2*r}")
    E("s_nop 3")
    for off in (0x041F, 0x081F, 0x101F, 0x201F, 0x401F):
        for q in range(4): E(f"ds_swizzle_b32 v{28+q}, v{24+q} offset:{off:#x}")
        E("s_waitcnt lgkmcnt(0)")
        for q in range(4): E(f"v_add_f32 v{24+q}, v{24+q}, v{28+q}")
    for q in range(4): E(f"v_mov_b32 v{28+q}, v{24+q}")
    E("s_nop 1")
    for q in range(4): E(f"v_permlane32_swap_b32 v{24+q}, v{28+q}")
    E("s_nop 1")
    for q in range(4): E(f"v_add_f32 v{24+q}, v{24+q}, v{28+q}")
    for r in range(2):
        a, b = 24+2*r, 25+2*r
        E(f"v_mul_f32 v{a}, {f2u(1/512):#x}, v{a}"); E(f"v_mul_f32 v{b}, {f2u(1/512):#x}, v{b}")
        E(f"v_fma_f32 v{b}, -v{a}, v{a}, v{b}"); E(f"v_max_f32 v{b}, 0, v{b}"); E(f"v_add_f32 v{b}, {f2u(1e-5):#x}, v{b}")
        E(f"v_rsq_f32 v{b}, v{b}"); E("s_nop 0"); E(f"v_mul_f32 v{a}, v{a}, v{b}"); E(f"v_sub_f32 v{a}, 0, v{a}")
        for i in range(4):
            x = 16+4*r+i
            E(f"v_lshlrev_b32 v30, 16, v{x}"); E(f"v_and_b32 v31, 0xffff0000, v{x}")
            E(f"v_fma_f32 v30, v30, v{b}, v{a}"); E(f"v_fma_f32 v31, v31, v{b}, v{a}"); E(f"v_cvt_pk_bf16_f32 v{x}, v30, v31")
        E(f"buffer_store_dwordx4 v[{16+4*r}:{19+4*r}], v6, s[44:47], s11 offen offset:{16*r}")
    epilogue_end(n)

SC = " sc1"
def lanes():
    E("v_and_b32 v1, 63, v0"); E("v_and_b32 v3, 31, v0"); E("v_bfe_u32 v4, v0, 5, 1")
WS_CNT = 20*MB
def signal(n, idx):
    E("s_waitcnt vmcnt(0)"); E("s_barrier")
    E("s_cmp_lg_u32 s3, 0"); E(f"s_cbranch_scc1 {n}_sig{idx}")
    E("s_lshl_b32 s4, s9, 1"); E(f"s_add_u32 s4, s4, {idx*4096}")
    E("v_mov_b32 v5, 1"); E("v_mov_b32 v6, s4"); E("s_mov_b64 exec, 1")
    E("buffer_atomic_add v5, v6, s[56:59], 0 offen"); E("s_mov_b64 exec, -1")
    L(f"{n}_sig{idx}")
def wait(n, idx, back=0):
    E("s_cmp_lg_u32 s3, 0"); E(f"s_cbranch_scc1 {n}_wx{idx}")
    for b in range(back + 1):
        E("s_lshl_b32 s4, s9, 1"); E(f"s_sub_i32 s4, s4, {256*b}"); E("s_max_i32 s4, s4, 0"); E(f"s_add_u32 s4, s4, {idx*4096}")
        E("v_mov_b32 v6, s4"); E("s_mov_b32 s6, 0")
        L(f"{n}_w{idx}_{b}")
        E("buffer_load_dword v5, v6, s[56:59], 0 offen sc1"); E("s_waitcnt vmcnt(0)")
        E("v_readfirstlane_b32 s4, v5"); E("s_add_u32 s6, s6, 1"); E("s_cmp_ge_u32 s4, 16"); E(f"s_cbranch_scc1 {n}_wd{idx}_{b}")
        E("s_sleep 3"); E("s_cmp_lt_u32 s6, 0x4000"); E(f"s_cbranch_scc1 {n}_w{idx}_{b}")
        L(f"{n}_wd{idx}_{b}")
    L(f"{n}_wx{idx}")
    E("s_waitcnt vmcnt(0)"); E("s_barrier")
def load_xt2(srdreg, nsteps_total, nsteps, base=VX, sc=SC):
    E("s_lshr_b32 s4, s10, 5"); E(f"s_mul_i32 s4, s4, {nsteps_total*1024}")
    E("v_lshlrev_b32 v8, 4, v1"); E("v_add_u32 v8, s4, v8")
    for s in range(nsteps):
        if s % 4 == 0: E(f"s_mov_b32 s4, {1024*s}")
        E(f"buffer_load_dwordx4 v[{base+4*s}:{base+4*s+3}], v8, s[{srdreg}:{srdreg+3}], s4 offen offset:{1024*(s%4)}{sc}")
def issue(groups):
    for g in groups:
        for x in g: E(x)

def mega():
    global VW
    n = "km_block_kernel"; kernels.append((n, 256, 163840)); prologue(n, 256)
    stamp(n); wgmap(2)
    E("s_mov_b32 s61, s11")
    E("s_lshl_b32 s10, s3, 5"); E("s_add_u32 s10, s10, s9")
    srd(56, 34, WS_CNT, 16384)
    E("s_mul_i32 s11, s61, 3")
    srd(40, 34, WS_XN, 2*MB); srd(44, 18, 0, 512*3072); srd(48, 34, 0, 6*MB)
    dma_setup_w(3072)
    E("s_lshl_b32 s60, s11, 6")
    allw = dma_list_w(44, 60, 0, 0, 512, 3072)
    issue(allw[:8]); load_xt2(40, 32, 32, VX, ""); issue(allw[8:])
    E("v_add_u32 v9, s10, v3")
    w_addr(False, 10, 192); E("v_add_u32 v13, 0xc000, v10")
    E("v_lshlrev_b32 v11, 5, v9"); E("v_lshlrev_b32 v5, 4, v4"); E("v_add_u32 v11, v11, v5")
    E("v_bfe_u32 v12, v0, 4, 1"); E("v_lshlrev_b32 v12, 16, v12"); E("v_lshlrev_b32 v5, 8, v4"); E("v_add_u32 v12, v12, v5")
    E("v_and_b32 v5, 15, v0"); E("v_lshlrev_b32 v5, 4, v5"); E("v_add_u32 v12, v12, v5")
    E("s_lshl_b32 s13, s10, 5"); E("v_add_u32 v12, s13, v12")
    E("s_waitcnt vmcnt(0)"); E("s_barrier")
    for j in range(3):
        E(f"s_add_u32 s12, s11, {j}"); E("s_cmp_ge_u32 s12, 32"); E(f"s_cbranch_scc1 {n}_v{j}")
        for sw in (False, True):
            if sw: L(f"{n}_v{j}")
            items = [((10, 3072*s + 64*j) if s < 16 else (13, 3072*(s-16) + 64*j)) + (VX+4*s, ACC0) for s in range(32)]
            for i in mfma_items(items, False, lambda i: sw, lambda i: i == 0, 192): pass
            E("s_nop 15"); pack(ACC0, VT)
            if not sw:
                E("s_lshr_b32 s14, s12, 4"); E("s_lshl_b32 s14, s14, 21"); E("s_and_b32 s15, s12, 15"); E("s_lshl_b32 s15, s15, 17")
                E("s_add_u32 s14, s14, s15"); E("s_add_u32 s15, s14, 65536")
                E(f"buffer_store_dwordx4 v[{VT}:{VT+3}], v11, s[48:51], s14 offen{SC}")
                E(f"buffer_store_dwordx4 v[{VT+4}:{VT+7}], v11, s[48:51], s15 offen{SC}")
                E(f"s_branch {n}_e{j}")
            else:
                E("s_sub_u32 s14, s12, 32"); E("s_lshl_b32 s14, s14, 17"); E(f"s_add_u32 s14, s14, {WS_V}")
                E(f"buffer_store_dwordx4 v[{VT}:{VT+3}], v12, s[48:51], s14 offen{SC}")
                E(f"buffer_store_dwordx4 v[{VT+4}:{VT+7}], v12, s[48:51], s14 offen offset:512{SC}")
        L(f"{n}_e{j}"); E("s_nop 1")
    stamp(n); signal(n, 0); stamp(n)
    srd(44, 20, 0, 512*1024); srd(64, 24, 0, 512*2752); srd(68, 26, 0, 512*2752)
    E("s_lshl_b32 s62, s61, 6")
    E("s_mul_i32 s63, s61, 86"); E("s_and_b32 s63, s63, 0xfffffff0"); E("s_lshl_b32 s63, s63, 1")
    dma_setup(1024); issue(dma_list(44, 62, 0, 0, 8, 1024))
    dma_setup(2752)
    slotof = {0: 1, 1: 2, 2: 3, 3: 4, 4: 0, 5: 1}
    def regl(r): return dma_list(64 if r % 2 == 0 else 68, 63, 64*(r//2), slotof[r]*32768, 8, 2752)
    E("v_mov_b32 v5, 0x3f803f80")
    for r in range(144): E(f"v_accvgpr_write_b32 a{80+r}, v5")
    wait(n, 0, 2); stamp(n); stamp(n, "p2")
    S, O, PK = 96, 240, 16
    srd(40, 34, WS_Q, 2*MB); srd(44, 34, WS_K - 8192, 2*MB + 8192); srd(48, 34, WS_V - 8192, 2*MB + 8192); srd(52, 34, WS_O, 2*MB)
    E("v_lshlrev_b32 v5, 2, v4"); E("v_sub_u32 v11, v3, v5")
    E("s_sub_i32 s15, 256, s10"); E("s_max_i32 s15, s15, 0")
    E("v_lshlrev_b32 v6, 4, v4")
    E("s_lshl_b32 s11, s61, 1")
    E("s_lshl_b32 s12, s11, 11"); E("s_add_u32 s12, s12, s10")
    E("v_add_u32 v5, s12, v3"); E("v_lshlrev_b32 v5, 5, v5"); E("v_add_u32 v8, v5, v6"); E("v_add_u32 v13, 0x10000, v8")
    E("s_lshl_b32 s14, s15, 5")
    for hh in range(2):
        va = (8, 13)[hh]
        E(f"buffer_load_dwordx4 a[{72+4*hh}:{75+4*hh}], v{va}, s[40:43], 0 offen{SC}")
        for kb in range(9):
            E(f"s_max_u32 s13, s14, {kb*1024}")
            E(f"buffer_load_dwordx4 a[{36*hh+4*kb}:{36*hh+4*kb+3}], v{va}, s[44:47], s13 offen{SC}")
    E("v_and_b32 v5, 15, v0"); E("v_lshlrev_b32 v5, 4, v5"); E("v_lshlrev_b32 v9, 8, v4"); E("v_add_u32 v5, v5, v9")
    E("s_lshl_b32 s13, s11, 16"); E("s_lshl_b32 s12, s10, 5"); E("s_add_u32 s13, s13, s12"); E("v_add_u32 v9, s13, v5"); E("v_add_u32 v14, 0x10000, v9")
    E("s_mov_b32 s12, 0x0000ffff"); E("s_mov_b32 s13, 0x0000ffff"); E("s_mov_b64 exec, s[12:13]")
    for hh in range(2):
        for t in range(18):
            E(f"s_max_u32 s13, s14, {512*t}")
            E(f"buffer_load_dwordx4 a[{80+72*hh+4*t}:{80+72*hh+4*t+3}], v{(9,14)[hh]}, s[48:51], s13 offen{SC}")
    E("s_mov_b64 exec, -1")
    E("s_add_u32 s13, s10, s11"); E("s_lshl_b32 s13, s13, 10"); E("v_lshlrev_b32 v5, 4, v1"); E("v_add_u32 v10, s13, v5")
    stamp(n, "p2")
    for hh in range(2):
        pf = regl(2*hh) + regl(2*hh+1)
        E(f"v_mov_b32 v12, {f2u(-1e30):#x}")
        for kb in range(9):
            if hh == 0: E(f"s_waitcnt vmcnt({54-kb})")
            E(f"v_mfma_f32_32x32x16_bf16 v[{S+16*kb}:{S+16*kb+15}], a[{36*hh+4*kb}:{36*hh+4*kb+3}], a[{72+4*hh}:{75+4*hh}], 0")
        E("s_nop 7"); E("s_nop 3"); stamp(n, "p2")
        for kb in range(8):
            E(f"s_cmp_ge_u32 s10, {256-32*kb}"); E(f"s_cbranch_scc1 {n}_ok{hh}_{kb}")
            for i in range(16): E(f"v_mov_b32 v{S+16*kb+i}, v12")
            L(f"{n}_ok{hh}_{kb}")
        for i in range(16):
            c = 8*(i >> 2) + (i & 3)
            E(f"v_cmp_le_i32 vcc, {c}, v11"); E("s_nop 1")
            E(f"v_cndmask_b32 v{S+128+i}, v12, v{S+128+i}, vcc"); E(f"v_cndmask_b32 v{S+i}, v{S+i}, v12, vcc")
            if i % 5 == 4: issue([pf.pop(0)])
        for c in range(4): E(f"v_max_f32 v{PK+c}, v{S+c}, v{S+4+c}")
        for r in range(8, 144, 8):
            for c in range(4): E(f"v_max3_f32 v{PK+c}, v{PK+c}, v{S+r+c}, v{S+r+4+c}")
            if r % 40 == 0: issue([pf.pop(0)])
        E(f"v_max_f32 v{PK}, v{PK}, v{PK+1}"); E(f"v_max_f32 v{PK+2}, v{PK+2}, v{PK+3}"); E(f"v_max_f32 v12, v{PK}, v{PK+2}"); E("v_mov_b32 v15, v12")
        E("s_nop 1"); E("v_permlane32_swap_b32 v12, v15"); E("s_nop 1"); E("v_max_f32 v12, v12, v15")
        E(f"s_mov_b32 s13, {f2u(0.25*LOG2E):#x}"); E("v_mul_f32 v12, s13, v12"); stamp(n, "p2")
        for r in range(0, 144, 4):
            for c in range(4): E(f"v_fma_f32 v{S+r+c}, v{S+r+c}, s13, -v12")
            for c in range(4): E(f"v_exp_f32 v{S+r+c}, v{S+r+c}")
            if r >= 4:
                p = r - 4; d = S + 16*(p//16) + (p % 16)//2
                E(f"v_cvt_pk_bf16_f32 v{d}, v{S+p}, v{S+p+1}"); E(f"v_cvt_pk_bf16_f32 v{d+1}, v{S+p+2}, v{S+p+3}")
            if r % 16 == 8 and pf: issue([pf.pop(0)])
        p = 140; d = S + 16*(p//16) + (p % 16)//2
        E("s_nop 0"); E(f"v_cvt_pk_bf16_f32 v{d}, v{S+p}, v{S+p+1}"); E(f"v_cvt_pk_bf16_f32 v{d+1}, v{S+p+2}, v{S+p+3}")
        npf_left = len(pf)
        stamp(n, "p2")
        E(f"s_waitcnt vmcnt({(18+16-npf_left) if hh == 0 else (16+1+16-npf_left)})"); stamp(n, "p2")
        for t in range(18):
            if pf and t % 4 == 1: issue([pf.pop(0)])
            bb = S + 16*(t//2) + 4*(t % 2)
            E(f"v_mfma_f32_32x32x16_bf16 v[{O}:{O+15}], a[{80+72*hh+4*t}:{80+72*hh+4*t+3}], v[{bb}:{bb+3}], {'0' if t == 0 else f'v[{O}:{O+15}]'}")
        E("s_nop 15"); E(f"v_rcp_f32 v12, v{O+8}"); E("s_nop 0")
        for i in range(8): E(f"v_mul_f32 v{O+i}, v{O+i}, v12")
        for i in range(4): E(f"v_cvt_pk_bf16_f32 v{PK+i}, v{O+2*i}, v{O+2*i+1}")
        assert not pf
        E(f"buffer_store_dwordx4 v[{PK}:{PK+3}], v10, s[52:55], 0 offen offset:{1024*hh}{SC}")
        E("s_nop 1")
    stamp(n); signal(n, 1); stamp(n)
    srd(40, 34, WS_O, 2*MB); srd(48, 34, WS_H, 2*MB); srd(52, 16, 0, 2*MB)
    E("v_add_u32 v9, s10, v3")
    w_addr(True, 10)
    E("v_lshlrev_b32 v12, 10, v9"); E("v_lshlrev_b32 v5, 3, v4"); E("v_add_u32 v12, v12, v5"); E("s_lshl_b32 s13, s61, 11")
    for q in range(4): E(f"buffer_load_dwordx2 v[{VT+8+2*q}:{VT+9+2*q}], v12, s[52:55], s62 offen offset:{16*q}")
    wait(n, 1); stamp(n)
    load_xt2(40, 32, 32)
    E("s_waitcnt vmcnt(0)"); E("s_barrier")
    items = [(10, 1024*s, VX+4*s, ACC0) for s in range(32)]
    for _ in mfma_items(items, True, lambda i: False, lambda i: i == 0): pass
    E("s_nop 15")
    for i in range(8):
        E(f"v_lshlrev_b32 v5, 16, v{VT+8+i}"); E(f"v_and_b32 v6, 0xffff0000, v{VT+8+i}")
        E(f"v_add_f32 v{ACC0+2*i}, v{ACC0+2*i}, v5"); E(f"v_add_f32 v{ACC0+2*i+1}, v{ACC0+2*i+1}, v6")
    pack(ACC0, VT)
    E(f"buffer_store_dwordx4 v[{VT}:{VT+3}], v8, s[48:51], s13 offen{SC}")
    E(f"buffer_store_dwordx4 v[{VT+4}:{VT+7}], v8, s[48:51], s13 offen offset:1024{SC}")
    stamp(n); signal(n, 2); stamp(n)
    issue(regl(4))
    wait(n, 2); stamp(n)
    srd(40, 34, WS_H, 2*MB); srd(52, 34, WS_HH, 2048*2752)
    load_xt2(40, 32, 32)
    E("s_lshr_b32 s4, s10, 5"); E(f"s_mul_i32 s4, s4, {86*1024}"); E("v_lshlrev_b32 v11, 4, v1"); E("v_add_u32 v11, s4, v11")
    ln_regs(0, [], True)
    E(f"s_mov_b32 s13, {f2u(-LOG2E):#x}")
    E("s_barrier")
    def norm(s):
        r = []
        for q in range(4):
            x = VX + 4*s + q; a_, b_ = 240 + 2*q, 241 + 2*q
            r += [f"v_lshlrev_b32 v{a_}, 16, v{x}", f"v_and_b32 v{b_}, 0xffff0000, v{x}"]
        for q in range(4):
            a_, b_ = 240 + 2*q, 241 + 2*q
            r += [f"v_fma_f32 v{a_}, v{a_}, v2, v15", f"v_fma_f32 v{b_}, v{b_}, v2, v15"]
        for q in range(4):
            r += [f"v_cvt_pk_bf16_f32 v{VX+4*s+q}, v{240+2*q}, v{241+2*q}"]
        return r
    def epi(j, G, U):
        r = []
        for i in range(16): r.append(f"v_mul_f32 v{G+i}, s13, v{G+i}")
        for i in range(16): r.append(f"v_exp_f32 v{G+i}, v{G+i}")
        for i in range(16): r.append(f"v_add_f32 v{G+i}, 1.0, v{G+i}")
        for i in range(16): r.append(f"v_rcp_f32 v{G+i}, v{G+i}")
        for i in range(16): r.append(f"v_mul_f32 v{G+i}, v{G+i}, v{U+i}")
        for i in range(8): r.append(f"v_cvt_pk_bf16_f32 v{248+i}, v{G+2*i}, v{G+2*i+1}")
        r += [f"s_add_u32 s12, s63, {64*j}", "s_lshl_b32 s12, s12, 5",
              f"buffer_store_dwordx4 v[248:251], v11, s[52:55], s12 offen{SC}",
              f"buffer_store_dwordx4 v[252:255], v11, s[52:55], s12 offen offset:1024{SC}"]
        return r
    for x in norm(0) + norm(1): E(x)
    fill = []
    for j in range(3):
        G, U = (176, 192) if j % 2 == 0 else (208, 224)
        sg, su = slotof[2*j]*32768, slotof[2*j+1]*32768
        E(f"v_add_u32 v13, {sg}, v10"); E(f"v_add_u32 v14, {su}, v10")
        items = []
        for s in range(32): items += [(13, 1024*s, VX+4*s, G), (14, 1024*s, VX+4*s, U)]
        for i in mfma_items(items, True, lambda i: False, lambda i: i < 2):
            if j == 0 and i % 2 == 1 and i//2 + 2 < 32:
                for x in norm(i//2 + 2): E(x)
            if j > 0 and i >= 4:
                for _ in range(2):
                    if fill: E(fill.pop(0))
        assert not fill
        if j == 0: E("s_barrier"); issue(regl(5))
        if j == 1: E("s_waitcnt vmcnt(2)"); E("s_barrier")
        fill = epi(j, G, U)
    E("s_nop 15")
    for x in fill: E(x)
    stamp(n); signal(n, 3); stamp(n)
    NX = 44; X = 56; oldVW = VW; VW = 16; A = 232; T = 48
    srd(44, 28, 0, 1376*1024)
    dma_setup(1024); issue(dma_list(44, 62, 0, 0, 22, 1024))
    wait(n, 3); stamp(n)
    srd(40, 34, WS_HH, 2048*2752); srd(48, 34, WS_H, 2*MB); srd(52, 30, 0, 2*MB)
    load_xt2(40, 86, NX, X)
    E("v_add_u32 v13, 0x10000, v10"); E("v_add_u32 v9, s10, v3")
    E("v_lshlrev_b32 v12, 10, v9"); E("v_lshlrev_b32 v5, 3, v4"); E("v_add_u32 v12, v12, v5")
    E("s_lshl_b32 s13, s10, 10"); E("s_lshl_b32 s14, s61, 11"); E("s_add_u32 s13, s13, s14"); E("v_lshlrev_b32 v11, 4, v1")
    E(f"buffer_load_dwordx4 v[248:251], v11, s[48:51], s13 offen{SC}"); E(f"buffer_load_dwordx4 v[252:255], v11, s[48:51], s13 offen offset:1024{SC}")
    E("s_waitcnt vmcnt(0)"); E("s_barrier")
    items = [((10, 1024*s) if s < 64 else (13, 1024*(s-64))) + (X+4*(s % NX), A) for s in range(86)]
    for i in mfma_items(items, True, lambda i: False, lambda i: i == 0):
        if i + NX < 86:
            s = i + NX; E(f"s_mov_b32 s4, {1024*s}"); E(f"buffer_load_dwordx4 v[{X+4*i}:{X+4*i+3}], v8, s[40:43], s4 offen{SC}")
        if i + 1 >= NX and i + 1 < 86: E(f"s_waitcnt vmcnt({85-(i+1)})")
    VW = oldVW
    E("s_nop 15")
    for i in range(8):
        E(f"v_lshlrev_b32 v5, 16, v{248+i}"); E(f"v_and_b32 v6, 0xffff0000, v{248+i}")
        E(f"v_add_f32 v{A+2*i}, v{A+2*i}, v5"); E(f"v_add_f32 v{A+2*i+1}, v{A+2*i+1}, v6")
    pack(A, T)
    for q in range(4): E(f"buffer_store_dwordx2 v[{T+2*q}:{T+2*q+1}], v12, s[52:55], s62 offen offset:{16*q}")
    epilogue_end(n)

k0(); mega()
hdr = open("cdna_kernels/" + NAME + ".s.ref").read().split("\n")
head = [l for l in hdr if l.startswith(";") and "@launch" not in l and "Override" not in l and "grid=ceil" not in l]
import os
dup = int(os.environ.get("DUP", "-1"))
ll = []
for idx, (k, g, l) in enumerate(kernels):
    ll += [f"; @launch kernel={k} grid=({g},1,1) block=(256,1,1) lds={l}"] * (5 if idx == dup else 1)
if dup == 99: ll = ll + ll
if STAMPK:
    ll = ll + [x for x in ll if STAMPK in x]
txt = head + ll
txt += ['.amdgcn_target "amdgcn-amd-amdhsa--gfx950"', ".text"] + out + ['.section .rodata,"a"']
for k, g, l in kernels:
    txt += [".p2align 6", f".amdhsa_kernel {k}", f"  .amdhsa_next_free_vgpr {512 if k.startswith('km') else 256}", "  .amdhsa_next_free_sgpr 102", "  .amdhsa_accum_offset 256",
            "  .amdhsa_group_segment_fixed_size 0", "  .amdhsa_kernarg_size 80", "  .amdhsa_user_sgpr_count 2",
            "  .amdhsa_user_sgpr_kernarg_segment_ptr 1", "  .amdhsa_system_sgpr_workgroup_id_x 1", ".end_amdhsa_kernel"]
open(os.environ.get("OUT", "cdna_kernels/" + NAME + ".s"), "w").write("\n".join(txt) + "\n")
```

```python
import sys, os
NAME = "sequential_preLN__sliding_block__glu_gated_glu__prompt"
out = []
def E(s): out.append("    " + s)
def L(s): out.append(s + ":")
MB = 1 << 20
WS_Q, WS_K, WS_V, WS_O, WS_H, WS_HH = 0, 2*MB, 4*MB, 6*MB, 8*MB, 10*MB
WS_XN = 16*MB
LOG2E = 1.4426950408889634
import struct
def f2u(f): return struct.unpack("<I", struct.pack("<f", f))[0]

def prologue(name, nwg):
    out.append(".p2align 8"); out.append(f".globl {name}"); out.append(f".type {name},@function"); L(name)
    E(f"s_cmp_ge_u32 s2, {nwg}"); E(f"s_cbranch_scc1 {name}_done")
    E("s_load_dwordx16 s[16:31], s[0:1], 0"); E("s_load_dwordx4 s[32:35], s[0:1], 64")
    E("v_and_b32 v1, 63, v0")
    E("v_lshrrev_b32 v2, 6, v0")
    E("v_and_b32 v3, 31, v0")
    E("v_readfirstlane_b32 s3, v2")
    E("v_bfe_u32 v4, v0, 5, 1")
    E("s_waitcnt lgkmcnt(0)")
STAMPK = os.environ.get("STAMP", "")
nst = [0]
def stamp(name, tag=""):
    if name != STAMPK: return
    if tag != os.environ.get("STAG", "") and nst[0] > 0 and tag != "end": return
    E("s_memtime s[74:75]"); E("s_waitcnt lgkmcnt(0)"); E(f"s_mov_b32 s{76+nst[0]}, s74"); nst[0] += 1
def epilogue_end(name):
    if name == STAMPK:
        stamp(name, "end")
        srd(40, 32, 0, 256)
        E("s_cmp_lg_u32 s2, 8"); E(f"s_cbranch_scc1 {name}_done"); E("s_cmp_lg_u32 s3, 0"); E(f"s_cbranch_scc1 {name}_done")
        srd(40, 32, 0, 256)
        for i in range(nst[0]):
            E(f"s_sub_u32 s4, s{76+i}, s76"); E("v_mov_b32 v5, s4"); E(f"v_mov_b32 v6, {4*i}"); E("buffer_store_dword v5, v6, s[40:43], 0 offen")
    L(f"{name}_done"); E("s_endpgm")
def srd(d, base, off, size):
    if off >= 0:
        E(f"s_add_u32 s{d}, s{base}, {off}"); E(f"s_addc_u32 s{d+1}, s{base+1}, 0")
    else:
        E(f"s_sub_u32 s{d}, s{base}, {-off}"); E(f"s_subb_u32 s{d+1}, s{base+1}, 0")
    E(f"s_mov_b32 s{d+2}, {size}"); E(f"s_mov_b32 s{d+3}, 0x00020000")

VX, VW, ACC0, ACC1, VT = 16, 144, 176, 192, 208

def w_addr(perm, vdst, RB=64):
    E("v_bfe_u32 v5, v0, 2, 2")
    E(f"v_lshlrev_b32 v6, {2 if perm else 3}, v4")
    E("v_add_u32 v5, v5, v6")
    E(f"v_mul_u32_u24 v5, {RB}, v5")
    E("v_bfe_u32 v6, v0, 4, 1")
    E("v_lshlrev_b32 v6, 5, v6")
    E("v_add_u32 v5, v5, v6")
    E("v_and_b32 v6, 3, v0")
    E("v_lshlrev_b32 v6, 3, v6")
    E(f"v_add_u32 v{vdst}, v5, v6")

def dma_setup(ldw):
    E("v_lshrrev_b32 v5, 2, v0"); E(f"s_mov_b32 s4, {ldw}"); E("v_mul_lo_u32 v5, v5, s4")
    E("v_and_b32 v6, 3, v0"); E("v_lshlrev_b32 v6, 4, v6"); E("v_add_u32 v7, v5, v6")
    E("s_lshl_b32 s5, s3, 10")
def dma_region(srdreg, scol, ldsbase, nj, ldw):
    E(f"s_mov_b32 s6, s{scol}"); E(f"s_add_u32 s7, s5, {ldsbase}")
    for j in range(nj):
        E("s_mov_b32 m0, s7");
        if j + 1 < nj: E("s_add_u32 s7, s7, 4096")
        else: E("s_nop 0")
        E(f"buffer_load_dwordx4 v7, s[{srdreg}:{srdreg+3}], s6 offen lds")
        if j + 1 < nj: E(f"s_add_u32 s6, s6, {64*ldw}")

def dma_list(srdreg, scolreg, coladd, ldsbase, nj, ldw):
    r = []
    for j in range(nj):
        r.append([f"s_add_u32 s6, s{scolreg}, {coladd + j*64*ldw}", f"s_add_u32 m0, s5, {ldsbase + j*4096}", "s_nop 0",
                  f"buffer_load_dwordx4 v7, s[{srdreg}:{srdreg+3}], s6 offen lds"])
    return r
def dma_setup_w(ldw):
    E("s_lshl_b32 s5, s3, 10"); E("s_mov_b32 s4, 0xAAAB"); E(f"s_mov_b32 s6, {ldw}")
    for t, vr in enumerate((7, 14, 15)):
        E(f"v_add_u32 v5, {256*t}, v0"); E("v_mul_lo_u32 v6, v5, s4"); E("v_lshrrev_b32 v6, 19, v6")
        E("v_mul_u32_u24 v9, 12, v6"); E("v_sub_u32 v5, v5, v9"); E("v_lshlrev_b32 v5, 4, v5")
        E("v_mul_lo_u32 v6, v6, s6"); E(f"v_add_u32 v{vr}, v5, v6")
def dma_list_w(srdreg, scolreg, ldsbase, row0, nrows, ldw):
    r = []
    for j in range(nrows*12//256):
        r.append([f"s_add_u32 s6, s{scolreg}, {(row0 + (j//3)*64)*ldw}", f"s_add_u32 m0, s5, {ldsbase + j*4096}", "s_nop 0",
                  f"buffer_load_dwordx4 v{(7,14,15)[j%3]}, s[{srdreg}:{srdreg+3}], s6 offen lds"])
    return r
def mfma_items(items, perm, swap_of, first_of, RB=64):
    d2 = 8*RB if perm else 4*RB
    n = len(items); D = 6
    def rd(i):
        va, off, _, _ = items[i]; w = VW + 4 * (i % 8)
        E(f"ds_read_b64_tr_b16 v[{w}:{w+1}], v{va} offset:{off}")
        E(f"ds_read_b64_tr_b16 v[{w+2}:{w+3}], v{va} offset:{off+d2}")
    for i in range(min(D, n)): rd(i)
    for i in range(n):
        va, off, x, acc = items[i][:4]; w = VW + 4 * (i % 8)
        E(f"s_waitcnt lgkmcnt({2*(min(i+D-1, n-1)-i)})")
        c = "0" if first_of(i) else f"v[{acc}:{acc+15}]"
        if swap_of(i): E(f"v_mfma_f32_32x32x16_bf16 v[{acc}:{acc+15}], v[{x}:{x+3}], v[{w}:{w+3}], {c}")
        else:          E(f"v_mfma_f32_32x32x16_bf16 v[{acc}:{acc+15}], v[{w}:{w+3}], v[{x}:{x+3}], {c}")
        if i + D < n: rd(i + D)
        yield i

def ln_regs(ndma, inter=[], jit=False):
    E("s_mov_b32 s8, 0x3f803f80")
    for q in range(4): E(f"v_mov_b32 v{VT+q}, 0"); E(f"v_mov_b32 v{VT+4+q}, 0")
    inter = list(inter); nd = 0
    for g in range(4):
        E(f"s_waitcnt vmcnt({min(63, 24-8*g+nd)})")
        for r in range(32*g, 32*g+32):
            if inter and r % 8 == 4:
                for x in inter.pop(0): E(x)
                nd += 1
            E(f"v_dot2_f32_bf16 v{VT+(r&3)}, v{VX+r}, s8, v{VT+(r&3)}")
            E(f"v_dot2_f32_bf16 v{VT+4+(r&3)}, v{VX+r}, v{VX+r}, v{VT+4+(r&3)}")
    E("s_nop 3")
    E(f"v_add_f32 v{VT}, v{VT}, v{VT+1}"); E(f"v_add_f32 v{VT+2}, v{VT+2}, v{VT+3}")
    E(f"v_add_f32 v{VT+4}, v{VT+4}, v{VT+5}"); E(f"v_add_f32 v{VT+6}, v{VT+6}, v{VT+7}")
    E(f"v_add_f32 v{VT}, v{VT}, v{VT+2}"); E(f"v_add_f32 v{VT+4}, v{VT+4}, v{VT+6}")
    E(f"v_mov_b32 v{VT+1}, v{VT}"); E(f"v_mov_b32 v{VT+5}, v{VT+4}")
    E("s_nop 1")
    E(f"v_permlane32_swap_b32 v{VT}, v{VT+1}"); E(f"v_permlane32_swap_b32 v{VT+4}, v{VT+5}")
    E("s_nop 1")
    E(f"v_add_f32 v{VT}, v{VT}, v{VT+1}"); E(f"v_add_f32 v{VT+4}, v{VT+4}, v{VT+5}")
    E(f"v_mul_f32 v{VT}, {f2u(1/512):#x}, v{VT}")
    E(f"v_mul_f32 v{VT+4}, {f2u(1/512):#x}, v{VT+4}")
    E(f"v_fma_f32 v{VT+4}, -v{VT}, v{VT}, v{VT+4}")
    E(f"v_max_f32 v{VT+4}, 0, v{VT+4}")
    E(f"v_add_f32 v{VT+4}, {f2u(1e-5):#x}, v{VT+4}")
    E(f"v_rsq_f32 v{VT+4}, v{VT+4}")
    E("s_nop 0")
    E(f"v_mul_f32 v{VT}, v{VT}, v{VT+4}")
    E(f"v_sub_f32 v{VT}, 0, v{VT}")
    if jit:
        E(f"v_mov_b32 v12, v{VT+4}"); E(f"v_mov_b32 v15, v{VT}"); return
    for r in range(128):
        if inter and r % 5 == 0:
            for x in inter.pop(0): E(x)
        a, b = VT + 8 + 2 * (r & 3), VT + 9 + 2 * (r & 3)
        E(f"v_lshlrev_b32 v{a}, 16, v{VX+r}"); E(f"v_and_b32 v{b}, 0xffff0000, v{VX+r}")
        E(f"v_fma_f32 v{a}, v{a}, v{VT+4}, v{VT}"); E(f"v_fma_f32 v{b}, v{b}, v{VT+4}, v{VT}")
        E(f"v_cvt_pk_bf16_f32 v{VX+r}, v{a}, v{b}")

def load_x(srdreg, ld, nsteps, base=VX):
    E("s_lshl_b32 s10, s3, 5"); E("s_add_u32 s10, s10, s9")
    E("v_add_u32 v9, s10, v3"); E(f"s_mov_b32 s4, {ld}"); E("v_mul_lo_u32 v8, v9, s4")
    E("v_lshlrev_b32 v5, 4, v4"); E("v_add_u32 v8, v8, v5")
    for s in range(nsteps):
        E(f"buffer_load_dwordx4 v[{base+4*s}:{base+4*s+3}], v8, s[{srdreg}:{srdreg+3}], 0 offen offset:{32*s}")
def wgmap(a=2):
    if a == 2:
        E("s_and_b32 s9, s2, 7"); E("s_lshl_b32 s9, s9, 1"); E("s_lshr_b32 s11, s2, 7"); E("s_add_u32 s9, s9, s11"); E("s_lshl_b32 s9, s9, 7")
        E("s_lshr_b32 s11, s2, 3"); E("s_and_b32 s11, s11, 15")
    else:
        E("s_bfe_u32 s9, s2, 0x20001"); E("s_lshl_b32 s9, s9, 2"); E("s_lshr_b32 s11, s2, 6"); E("s_add_u32 s9, s9, s11"); E("s_lshl_b32 s9, s9, 7")
        E("s_bfe_u32 s11, s2, 0x30003"); E("s_and_b32 s4, s2, 1"); E("s_lshl_b32 s4, s4, 3"); E("s_add_u32 s11, s11, s4")
def load_xt(srdreg, nsteps_total, nsteps, base=VX):
    E("s_lshl_b32 s10, s3, 5"); E("s_add_u32 s10, s10, s9"); E("v_add_u32 v9, s10, v3")
    E("s_lshr_b32 s4, s10, 5"); E(f"s_mul_i32 s4, s4, {nsteps_total*1024}")
    E("v_lshlrev_b32 v8, 4, v1"); E("v_add_u32 v8, s4, v8")
    for s in range(nsteps):
        if s % 4 == 0: E(f"s_mov_b32 s4, {1024*s}")
        E(f"buffer_load_dwordx4 v[{base+4*s}:{base+4*s+3}], v8, s[{srdreg}:{srdreg+3}], s4 offen offset:{1024*(s%4)}")
def pack(acc, dst):
    for i in range(8): E(f"v_cvt_pk_bf16_f32 v{dst+i}, v{acc+2*i}, v{acc+2*i+1}")

kernels = []
def k0():
    n = "k0_ln_kernel"; kernels.append((n, 256, 0)); prologue(n, 256)
    E("s_and_b32 s9, s2, 7"); E("s_lshl_b32 s9, s9, 8"); E("s_lshr_b32 s10, s2, 3"); E("s_lshl_b32 s10, s10, 3"); E("s_add_u32 s9, s9, s10")
    E("s_lshl_b32 s10, s3, 1"); E("s_add_u32 s9, s9, s10")
    srd(40, 16, 0, 2*MB); srd(44, 34, WS_XN, 2*MB)
    E("s_cmp_lg_u32 s2, 0"); E("s_cbranch_scc1 k0_nz")
    srd(52, 34, 20*MB, 16384)
    for i in range(4): E(f"v_mov_b32 v{40+i}, 0")
    E("v_lshlrev_b32 v5, 6, v0")
    for i in range(4): E(f"buffer_store_dwordx4 v[40:43], v5, s[52:55], 0 offen offset:{16*i}")
    L("k0_nz")
    E("s_lshl_b32 s10, s9, 10"); E("v_lshlrev_b32 v5, 4, v1")
    E("buffer_load_dwordx4 v[16:19], v5, s[40:43], s10 offen"); E("buffer_load_dwordx4 v[20:23], v5, s[40:43], s10 offen offset:1024")
    E("s_lshr_b32 s11, s9, 5"); E("s_lshl_b32 s11, s11, 15"); E("s_and_b32 s12, s9, 31"); E("s_lshl_b32 s12, s12, 4"); E("s_add_u32 s11, s11, s12")
    E("v_lshrrev_b32 v6, 1, v1"); E("v_lshlrev_b32 v6, 10, v6"); E("v_and_b32 v7, 1, v1"); E("v_lshlrev_b32 v7, 9, v7"); E("v_add_u32 v6, v6, v7")
    E("s_mov_b32 s8, 0x3f803f80")
    for q in range(4): E(f"v_mov_b32 v{24+q}, 0")
    if os.environ.get("PF", "1") == "1":
        E("s_lshl_b32 s12, s2, 12"); E("v_lshlrev_b32 v32, 4, v0"); E("v_add_u32 v32, s12, v32"); E("v_add_u32 v33, 0x100000, v32")
        k = 0
        for base, size in ((18, 512*3072), (20, 512*1024), (24, 512*2752), (26, 512*2752), (28, 1376*1024)):
            srd(48, base, 0, size)
            E(f"buffer_load_dwordx4 v[{36+4*k}:{39+4*k}], v32, s[48:51], 0 offen"); k += 1
            if size > MB: E(f"buffer_load_dwordx4 v[{36+4*k}:{39+4*k}], v33, s[48:51], 0 offen"); k += 1
        ntl = 0
        if os.environ.get("TLB", "0") == "1":
            E("v_lshlrev_b32 v33, 16, v1")
            srd(48, 34, 0, 24*MB)
            for i in range(6):
                E(f"s_mov_b32 s12, {4*MB*i}"); E(f"buffer_load_dword v{100+ntl}, v33, s[48:51], s12 offen"); ntl += 1
            for base, size in ((18, 512*3072), (20, 512*1024), (24, 512*2752), (26, 512*2752), (28, 1376*1024), (30, 2*MB)):
                srd(48, base, 0, size); E(f"buffer_load_dword v{100+ntl}, v33, s[48:51], 0 offen"); ntl += 1
        npf = int(os.environ.get("NPF", "0"))
        if npf:
            E("s_getpc_b64 s[60:61]"); L("k0_pc")
            E("v_lshlrev_b32 v34, 4, v0")
            for i in range(npf):
                E(f"global_load_dwordx4 v[{72+4*i}:{75+4*i}], v34, s[60:61]"); E("v_add_u32 v34, 0x1000, v34")
        E(f"s_waitcnt vmcnt({9+npf+ntl})")
    else:
        E("s_waitcnt vmcnt(0)")
    for r in range(2):
        for i in range(4):
            E(f"v_dot2_f32_bf16 v{24+2*r}, v{16+4*r+i}, s8, v{24+2*r}"); E(f"v_dot2_f32_bf16 v{25+2*r}, v{16+4*r+i}, v{16+4*r+i}, v{25+2*r}")
    E("s_nop 3")
    for off in (0x041F, 0x081F, 0x101F, 0x201F, 0x401F):
        for q in range(4): E(f"ds_swizzle_b32 v{28+q}, v{24+q} offset:{off:#x}")
        E("s_waitcnt lgkmcnt(0)")
        for q in range(4): E(f"v_add_f32 v{24+q}, v{24+q}, v{28+q}")
    for q in range(4): E(f"v_mov_b32 v{28+q}, v{24+q}")
    E("s_nop 1")
    for q in range(4): E(f"v_permlane32_swap_b32 v{24+q}, v{28+q}")
    E("s_nop 1")
    for q in range(4): E(f"v_add_f32 v{24+q}, v{24+q}, v{28+q}")
    for r in range(2):
        a, b = 24+2*r, 25+2*r
        E(f"v_mul_f32 v{a}, {f2u(1/512):#x}, v{a}"); E(f"v_mul_f32 v{b}, {f2u(1/512):#x}, v{b}")
        E(f"v_fma_f32 v{b}, -v{a}, v{a}, v{b}"); E(f"v_max_f32 v{b}, 0, v{b}"); E(f"v_add_f32 v{b}, {f2u(1e-5):#x}, v{b}")
        E(f"v_rsq_f32 v{b}, v{b}"); E("s_nop 0"); E(f"v_mul_f32 v{a}, v{a}, v{b}"); E(f"v_sub_f32 v{a}, 0, v{a}")
        for i in range(4):
            x = 16+4*r+i
            E(f"v_lshlrev_b32 v30, 16, v{x}"); E(f"v_and_b32 v31, 0xffff0000, v{x}")
            E(f"v_fma_f32 v30, v30, v{b}, v{a}"); E(f"v_fma_f32 v31, v31, v{b}, v{a}"); E(f"v_cvt_pk_bf16_f32 v{x}, v30, v31")
        E(f"buffer_store_dwordx4 v[{16+4*r}:{19+4*r}], v6, s[44:47], s11 offen offset:{16*r}")
    epilogue_end(n)

SC = " sc1"
def lanes():
    E("v_and_b32 v1, 63, v0"); E("v_and_b32 v3, 31, v0"); E("v_bfe_u32 v4, v0, 5, 1")
WS_CNT = 20*MB
def signal(n, idx):
    E("s_waitcnt vmcnt(0)"); E("s_barrier")
    E("s_cmp_lg_u32 s3, 0"); E(f"s_cbranch_scc1 {n}_sig{idx}")
    E("s_lshl_b32 s4, s9, 1"); E(f"s_add_u32 s4, s4, {idx*4096}")
    E("v_mov_b32 v5, 1"); E("v_mov_b32 v6, s4"); E("s_mov_b64 exec, 1")
    E("buffer_atomic_add v5, v6, s[56:59], 0 offen"); E("s_mov_b64 exec, -1")
    L(f"{n}_sig{idx}")
def wait(n, idx, back=0):
    E("s_cmp_lg_u32 s3, 0"); E(f"s_cbranch_scc1 {n}_wx{idx}")
    for b in range(back + 1):
        E("s_lshl_b32 s4, s9, 1"); E(f"s_sub_i32 s4, s4, {256*b}"); E("s_max_i32 s4, s4, 0"); E(f"s_add_u32 s4, s4, {idx*4096}")
        E("v_mov_b32 v6, s4"); E("s_mov_b32 s6, 0")
        L(f"{n}_w{idx}_{b}")
        E("buffer_load_dword v5, v6, s[56:59], 0 offen sc1"); E("s_waitcnt vmcnt(0)")
        E("v_readfirstlane_b32 s4, v5"); E("s_add_u32 s6, s6, 1"); E("s_cmp_ge_u32 s4, 16"); E(f"s_cbranch_scc1 {n}_wd{idx}_{b}")
        E("s_sleep 3"); E("s_cmp_lt_u32 s6, 0x4000"); E(f"s_cbranch_scc1 {n}_w{idx}_{b}")
        L(f"{n}_wd{idx}_{b}")
    L(f"{n}_wx{idx}")
    E("s_waitcnt vmcnt(0)"); E("s_barrier")
def load_xt2(srdreg, nsteps_total, nsteps, base=VX, sc=SC):
    E("s_lshr_b32 s4, s10, 5"); E(f"s_mul_i32 s4, s4, {nsteps_total*1024}")
    E("v_lshlrev_b32 v8, 4, v1"); E("v_add_u32 v8, s4, v8")
    for s in range(nsteps):
        if s % 4 == 0: E(f"s_mov_b32 s4, {1024*s}")
        E(f"buffer_load_dwordx4 v[{base+4*s}:{base+4*s+3}], v8, s[{srdreg}:{srdreg+3}], s4 offen offset:{1024*(s%4)}{sc}")
def issue(groups):
    for g in groups:
        for x in g: E(x)

def mega():
    global VW
    n = "km_block_kernel"; kernels.append((n, 256, 163840)); prologue(n, 256)
    stamp(n); wgmap(2)
    E("s_mov_b32 s61, s11")
    E("s_lshl_b32 s10, s3, 5"); E("s_add_u32 s10, s10, s9")
    srd(56, 34, WS_CNT, 16384)
    E("s_mul_i32 s11, s61, 3")
    srd(40, 34, WS_XN, 2*MB); srd(44, 18, 0, 512*3072); srd(48, 34, 0, 6*MB)
    srd(64, 24, 0, 512*2752); srd(68, 26, 0, 512*2752)
    E("s_lshl_b32 s62, s61, 6")
    E("s_mul_i32 s63, s61, 86"); E("s_and_b32 s63, s63, 0xfffffff0"); E("s_lshl_b32 s63, s63, 1")
    dma_setup(2752); E("v_mov_b32 v2, v7")
    slotof = {0: 3, 1: 4, 2: 1, 3: 2, 4: 0, 5: 3}
    def regl(r): return [[x.replace(" v7,", " v2,") for x in g] for g in dma_list(64 if r % 2 == 0 else 68, 63, 64*(r//2), slotof[r]*32768, 8, 2752)]
    p1pf = regl(0) + regl(1)
    dma_setup_w(3072)
    E("s_lshl_b32 s60, s11, 6")
    allw = dma_list_w(44, 60, 0, 0, 512, 3072)
    issue(allw[:8]); load_xt2(40, 32, 32, VX, ""); issue(allw[8:])
    E("v_add_u32 v9, s10, v3")
    w_addr(False, 10, 192); E("v_add_u32 v13, 0xc000, v10")
    E("v_lshlrev_b32 v11, 5, v9"); E("v_lshlrev_b32 v5, 4, v4"); E("v_add_u32 v11, v11, v5")
    E("v_bfe_u32 v12, v0, 4, 1"); E("v_lshlrev_b32 v12, 16, v12"); E("v_lshlrev_b32 v5, 8, v4"); E("v_add_u32 v12, v12, v5")
    E("v_and_b32 v5, 15, v0"); E("v_lshlrev_b32 v5, 4, v5"); E("v_add_u32 v12, v12, v5")
    E("s_lshl_b32 s13, s10, 5"); E("v_add_u32 v12, s13, v12")
    E("s_waitcnt vmcnt(0)"); E("s_barrier")
    for j in range(3):
        E(f"s_add_u32 s12, s11, {j}"); E("s_cmp_ge_u32 s12, 32"); E(f"s_cbranch_scc1 {n}_v{j}")
        for sw in (False, True):
            if sw: L(f"{n}_v{j}")
            items = [((10, 3072*s + 64*j) if s < 16 else (13, 3072*(s-16) + 64*j)) + (VX+4*s, ACC0) for s in range(32)]
            for i in mfma_items(items, False, lambda i: sw, lambda i: i == 0, 192):
                if i % 5 == 3 and 6*j + i//5 < 16: issue([p1pf[6*j + i//5]])
            E("s_nop 15"); pack(ACC0, VT)
            if not sw:
                E("s_lshr_b32 s14, s12, 4"); E("s_lshl_b32 s14, s14, 21"); E("s_and_b32 s15, s12, 15"); E("s_lshl_b32 s15, s15, 17")
                E("s_add_u32 s14, s14, s15"); E("s_add_u32 s15, s14, 65536")
                E(f"buffer_store_dwordx4 v[{VT}:{VT+3}], v11, s[48:51], s14 offen{SC}")
                E(f"buffer_store_dwordx4 v[{VT+4}:{VT+7}], v11, s[48:51], s15 offen{SC}")
                E(f"s_branch {n}_e{j}")
            else:
                E("s_sub_u32 s14, s12, 32"); E("s_lshl_b32 s14, s14, 17"); E(f"s_add_u32 s14, s14, {WS_V}")
                E(f"buffer_store_dwordx4 v[{VT}:{VT+3}], v12, s[48:51], s14 offen{SC}")
                E(f"buffer_store_dwordx4 v[{VT+4}:{VT+7}], v12, s[48:51], s14 offen offset:512{SC}")
        L(f"{n}_e{j}"); E("s_nop 1")
    stamp(n); signal(n, 0); stamp(n)
    srd(44, 20, 0, 512*1024)
    dma_setup(1024); issue(dma_list(44, 62, 0, 0, 8, 1024))
    E("v_mov_b32 v5, 0x3f803f80")
    for r in range(144): E(f"v_accvgpr_write_b32 a{80+r}, v5")
    wait(n, 0, 2); stamp(n); stamp(n, "p2")
    S, O, PK = 96, 240, 16
    srd(40, 34, WS_Q, 2*MB); srd(44, 34, WS_K - 8192, 2*MB + 8192); srd(48, 34, WS_V - 8192, 2*MB + 8192); srd(52, 34, WS_O, 2*MB)
    E("v_lshlrev_b32 v5, 2, v4"); E("v_sub_u32 v11, v3, v5")
    E("s_sub_i32 s15, 256, s10"); E("s_max_i32 s15, s15, 0")
    E("v_lshlrev_b32 v6, 4, v4")
    E("s_lshl_b32 s11, s61, 1")
    E("s_lshl_b32 s12, s11, 11"); E("s_add_u32 s12, s12, s10")
    E("v_add_u32 v5, s12, v3"); E("v_lshlrev_b32 v5, 5, v5"); E("v_add_u32 v8, v5, v6"); E("v_add_u32 v13, 0x10000, v8")
    E("s_lshl_b32 s14, s15, 5")
    E("v_and_b32 v5, 15, v0"); E("v_lshlrev_b32 v5, 4, v5"); E("v_lshlrev_b32 v9, 8, v4"); E("v_add_u32 v5, v5, v9")
    E("s_lshl_b32 s13, s11, 16"); E("s_lshl_b32 s12, s10, 5"); E("s_add_u32 s13, s13, s12"); E("v_add_u32 v9, s13, v5"); E("v_add_u32 v14, 0x10000, v9")
    E("s_mov_b32 s66x, 0") if False else None
    E("s_mov_b32 s72, 0x0000ffff"); E("s_mov_b32 s73, 0x0000ffff")
    def qk(hh):
        va = (8, 13)[hh]
        r = [[f"buffer_load_dwordx4 a[{72+4*hh}:{75+4*hh}], v{va}, s[40:43], 0 offen{SC}"]]
        for kb in range(9):
            r.append([f"s_max_u32 s12, s14, {kb*1024}", f"buffer_load_dwordx4 a[{36*hh+4*kb}:{36*hh+4*kb+3}], v{va}, s[44:47], s12 offen{SC}"])
        return r
    def vv(hh):
        return [["s_mov_b64 exec, s[72:73]", f"s_max_u32 s12, s14, {512*t}",
                 f"buffer_load_dwordx4 a[{80+72*hh+4*t}:{80+72*hh+4*t+3}], v{(9,14)[hh]}, s[48:51], s12 offen{SC}", "s_mov_b64 exec, -1"] for t in range(18)]
    issue(qk(0)); issue(vv(0))
    E("s_add_u32 s13, s10, s11"); E("s_lshl_b32 s13, s13, 10"); E("v_lshlrev_b32 v5, 4, v1"); E("v_add_u32 v10, s13, v5")
    stamp(n, "p2")
    for hh in range(2):
        pf = (qk(1) + vv(1)) if hh == 0 else (regl(2) + regl(3))
        npf0 = len(pf)
        E(f"v_mov_b32 v12, {f2u(-1e30):#x}")
        for kb in range(9):
            E(f"s_waitcnt vmcnt({(26-kb) if hh == 0 else (1 + 18 + 8 - kb)})")
            E(f"v_mfma_f32_32x32x16_bf16 v[{S+16*kb}:{S+16*kb+15}], a[{36*hh+4*kb}:{36*hh+4*kb+3}], a[{72+4*hh}:{75+4*hh}], 0")
        E("s_nop 7"); E("s_nop 3"); stamp(n, "p2")
        for kb in range(8):
            E(f"s_cmp_ge_u32 s10, {256-32*kb}"); E(f"s_cbranch_scc1 {n}_ok{hh}_{kb}")
            for i in range(16): E(f"v_mov_b32 v{S+16*kb+i}, v12")
            L(f"{n}_ok{hh}_{kb}")
        for i in range(16):
            c = 8*(i >> 2) + (i & 3)
            E(f"v_cmp_le_i32 vcc, {c}, v11"); E("s_nop 1")
            E(f"v_cndmask_b32 v{S+128+i}, v12, v{S+128+i}, vcc"); E(f"v_cndmask_b32 v{S+i}, v{S+i}, v12, vcc")
            if i % 3 == 2 and pf: issue([pf.pop(0)])
        for c in range(4): E(f"v_max_f32 v{PK+c}, v{S+c}, v{S+4+c}")
        for r in range(8, 144, 8):
            for c in range(4): E(f"v_max3_f32 v{PK+c}, v{PK+c}, v{S+r+c}, v{S+r+4+c}")
            if r % 24 == 0 and pf: issue([pf.pop(0)])
        E(f"v_max_f32 v{PK}, v{PK}, v{PK+1}"); E(f"v_max_f32 v{PK+2}, v{PK+2}, v{PK+3}"); E(f"v_max_f32 v12, v{PK}, v{PK+2}"); E("v_mov_b32 v15, v12")
        E("s_nop 1"); E("v_permlane32_swap_b32 v12, v15"); E("s_nop 1"); E("v_max_f32 v12, v12, v15")
        E(f"s_mov_b32 s13, {f2u(0.25*LOG2E):#x}"); E("v_mul_f32 v12, s13, v12"); stamp(n, "p2")
        for r in range(0, 144, 4):
            for c in range(4): E(f"v_fma_f32 v{S+r+c}, v{S+r+c}, s13, -v12")
            for c in range(4): E(f"v_exp_f32 v{S+r+c}, v{S+r+c}")
            if r >= 4:
                p = r - 4; d = S + 16*(p//16) + (p % 16)//2
                E(f"v_cvt_pk_bf16_f32 v{d}, v{S+p}, v{S+p+1}"); E(f"v_cvt_pk_bf16_f32 v{d+1}, v{S+p+2}, v{S+p+3}")
            if r % 8 == 0 and pf: issue([pf.pop(0)])
        p = 140; d = S + 16*(p//16) + (p % 16)//2
        E("s_nop 0"); E(f"v_cvt_pk_bf16_f32 v{d}, v{S+p}, v{S+p+1}"); E(f"v_cvt_pk_bf16_f32 v{d+1}, v{S+p+2}, v{S+p+3}")
        npf_left = len(pf)
        stamp(n, "p2")
        assert npf_left == 0
        E(f"s_waitcnt vmcnt({npf0 if hh == 0 else (1+npf0)})"); stamp(n, "p2")
        for t in range(18):
            if pf and t % 4 == 1: issue([pf.pop(0)])
            bb = S + 16*(t//2) + 4*(t % 2)
            E(f"v_mfma_f32_32x32x16_bf16 v[{O}:{O+15}], a[{80+72*hh+4*t}:{80+72*hh+4*t+3}], v[{bb}:{bb+3}], {'0' if t == 0 else f'v[{O}:{O+15}]'}")
        E("s_nop 15"); E(f"v_rcp_f32 v12, v{O+8}"); E("s_nop 0")
        for i in range(8): E(f"v_mul_f32 v{O+i}, v{O+i}, v12")
        for i in range(4): E(f"v_cvt_pk_bf16_f32 v{PK+i}, v{O+2*i}, v{O+2*i+1}")
        assert not pf
        E(f"buffer_store_dwordx4 v[{PK}:{PK+3}], v10, s[52:55], 0 offen offset:{1024*hh}{SC}")
        E("s_nop 1")
    stamp(n); signal(n, 1); stamp(n)
    srd(40, 34, WS_O, 2*MB); srd(48, 34, WS_H, 2*MB); srd(52, 16, 0, 2*MB)
    E("v_add_u32 v9, s10, v3")
    w_addr(True, 10)
    E("v_lshlrev_b32 v12, 10, v9"); E("v_lshlrev_b32 v5, 3, v4"); E("v_add_u32 v12, v12, v5"); E("s_lshl_b32 s13, s61, 11")
    for q in range(4): E(f"buffer_load_dwordx2 v[{VT+8+2*q}:{VT+9+2*q}], v12, s[52:55], s62 offen offset:{16*q}")
    wait(n, 1); stamp(n)
    load_xt2(40, 32, 32)
    E("s_waitcnt vmcnt(0)"); E("s_barrier")
    items = [(10, 1024*s, VX+4*s, ACC0) for s in range(32)]
    for _ in mfma_items(items, True, lambda i: False, lambda i: i == 0): pass
    E("s_nop 15")
    for i in range(8):
        E(f"v_lshlrev_b32 v5, 16, v{VT+8+i}"); E(f"v_and_b32 v6, 0xffff0000, v{VT+8+i}")
        E(f"v_add_f32 v{ACC0+2*i}, v{ACC0+2*i}, v5"); E(f"v_add_f32 v{ACC0+2*i+1}, v{ACC0+2*i+1}, v6")
    pack(ACC0, VT)
    E(f"buffer_store_dwordx4 v[{VT}:{VT+3}], v8, s[48:51], s13 offen{SC}")
    E(f"buffer_store_dwordx4 v[{VT+4}:{VT+7}], v8, s[48:51], s13 offen offset:1024{SC}")
    stamp(n); signal(n, 2); stamp(n)
    issue(regl(4))
    wait(n, 2); stamp(n)
    srd(40, 34, WS_H, 2*MB); srd(52, 34, WS_HH, 2048*2752)
    load_xt2(40, 32, 32)
    E("s_lshr_b32 s4, s10, 5"); E(f"s_mul_i32 s4, s4, {86*1024}"); E("v_lshlrev_b32 v11, 4, v1"); E("v_add_u32 v11, s4, v11")
    ln_regs(0, [], True)
    E(f"s_mov_b32 s13, {f2u(-LOG2E):#x}")
    E("s_barrier")
    def norm(s):
        r = []
        for q in range(4):
            x = VX + 4*s + q; a_, b_ = 240 + 2*q, 241 + 2*q
            r += [f"v_lshlrev_b32 v{a_}, 16, v{x}", f"v_and_b32 v{b_}, 0xffff0000, v{x}"]
        for q in range(4):
            a_, b_ = 240 + 2*q, 241 + 2*q
            r += [f"v_fma_f32 v{a_}, v{a_}, v12, v15", f"v_fma_f32 v{b_}, v{b_}, v12, v15"]
        for q in range(4):
            r += [f"v_cvt_pk_bf16_f32 v{VX+4*s+q}, v{240+2*q}, v{241+2*q}"]
        return r
    def epi(j, G, U):
        r = []
        for i in range(16): r.append(f"v_mul_f32 v{G+i}, s13, v{G+i}")
        for i in range(16): r.append(f"v_exp_f32 v{G+i}, v{G+i}")
        for i in range(16): r.append(f"v_add_f32 v{G+i}, 1.0, v{G+i}")
        for i in range(16): r.append(f"v_rcp_f32 v{G+i}, v{G+i}")
        for i in range(16): r.append(f"v_mul_f32 v{G+i}, v{G+i}, v{U+i}")
        for i in range(8): r.append(f"v_cvt_pk_bf16_f32 v{248+i}, v{G+2*i}, v{G+2*i+1}")
        r += [f"s_add_u32 s12, s63, {64*j}", "s_lshl_b32 s12, s12, 5",
              f"buffer_store_dwordx4 v[248:251], v11, s[52:55], s12 offen{SC}",
              f"buffer_store_dwordx4 v[252:255], v11, s[52:55], s12 offen offset:1024{SC}"]
        return r
    for x in norm(0) + norm(1): E(x)
    fill = []
    for j in range(3):
        G, U = (176, 192) if j % 2 == 0 else (208, 224)
        sg, su = slotof[2*j]*32768, slotof[2*j+1]*32768
        E(f"v_add_u32 v13, {sg}, v10"); E(f"v_add_u32 v14, {su}, v10")
        items = []
        for s in range(32): items += [(13, 1024*s, VX+4*s, G), (14, 1024*s, VX+4*s, U)]
        for i in mfma_items(items, True, lambda i: False, lambda i: i < 2):
            if j == 0 and i % 2 == 1 and i//2 + 2 < 32:
                for x in norm(i//2 + 2): E(x)
            if j > 0 and i >= 4:
                for _ in range(2):
                    if fill: E(fill.pop(0))
        assert not fill
        if j == 0: E("s_barrier"); issue(regl(5))
        if j == 1: E("s_waitcnt vmcnt(2)"); E("s_barrier")
        fill = epi(j, G, U)
    E("s_nop 15")
    for x in fill: E(x)
    stamp(n); signal(n, 3); stamp(n)
    NX = 44; X = 56; oldVW = VW; VW = 16; A = 232; T = 48
    srd(44, 28, 0, 1376*1024)
    dma_setup(1024); issue(dma_list(44, 62, 0, 0, 22, 1024))
    wait(n, 3); stamp(n)
    srd(40, 34, WS_HH, 2048*2752); srd(48, 34, WS_H, 2*MB); srd(52, 30, 0, 2*MB)
    load_xt2(40, 86, NX, X)
    E("v_add_u32 v13, 0x10000, v10"); E("v_add_u32 v9, s10, v3")
    E("v_lshlrev_b32 v12, 10, v9"); E("v_lshlrev_b32 v5, 3, v4"); E("v_add_u32 v12, v12, v5")
    E("s_lshl_b32 s13, s10, 10"); E("s_lshl_b32 s14, s61, 11"); E("s_add_u32 s13, s13, s14"); E("v_lshlrev_b32 v11, 4, v1")
    E(f"buffer_load_dwordx4 v[248:251], v11, s[48:51], s13 offen{SC}"); E(f"buffer_load_dwordx4 v[252:255], v11, s[48:51], s13 offen offset:1024{SC}")
    E("s_waitcnt vmcnt(0)"); E("s_barrier")
    items = [((10, 1024*s) if s < 64 else (13, 1024*(s-64))) + (X+4*(s % NX), A) for s in range(86)]
    for i in mfma_items(items, True, lambda i: False, lambda i: i == 0):
        if i + NX < 86:
            s = i + NX; E(f"s_mov_b32 s4, {1024*s}"); E(f"buffer_load_dwordx4 v[{X+4*i}:{X+4*i+3}], v8, s[40:43], s4 offen{SC}")
        if i + 1 >= NX and i + 1 < 86: E(f"s_waitcnt vmcnt({85-(i+1)})")
    VW = oldVW
    E("s_nop 15")
    for i in range(8):
        E(f"v_lshlrev_b32 v5, 16, v{248+i}"); E(f"v_and_b32 v6, 0xffff0000, v{248+i}")
        E(f"v_add_f32 v{A+2*i}, v{A+2*i}, v5"); E(f"v_add_f32 v{A+2*i+1}, v{A+2*i+1}, v6")
    pack(A, T)
    for q in range(4): E(f"buffer_store_dwordx2 v[{T+2*q}:{T+2*q+1}], v12, s[52:55], s62 offen offset:{16*q}")
    epilogue_end(n)

k0(); mega()
hdr = open("cdna_kernels/" + NAME + ".s.ref").read().split("\n")
head = [l for l in hdr if l.startswith(";") and "@launch" not in l and "Override" not in l and "grid=ceil" not in l]
import os
dup = int(os.environ.get("DUP", "-1"))
ll = []
for idx, (k, g, l) in enumerate(kernels):
    ll += [f"; @launch kernel={k} grid=({g},1,1) block=(256,1,1) lds={l}"] * (5 if idx == dup else 1)
if dup == 99: ll = ll + ll
if STAMPK:
    ll = ll + [x for x in ll if STAMPK in x]
txt = head + ll
txt += ['.amdgcn_target "amdgcn-amd-amdhsa--gfx950"', ".text"] + out + ['.section .rodata,"a"']
for k, g, l in kernels:
    txt += [".p2align 6", f".amdhsa_kernel {k}", f"  .amdhsa_next_free_vgpr {512 if k.startswith('km') else 256}", "  .amdhsa_next_free_sgpr 102", "  .amdhsa_accum_offset 256",
            "  .amdhsa_group_segment_fixed_size 0", "  .amdhsa_kernarg_size 80", "  .amdhsa_user_sgpr_count 2",
            "  .amdhsa_user_sgpr_kernarg_segment_ptr 1", "  .amdhsa_system_sgpr_workgroup_id_x 1", ".end_amdhsa_kernel"]
open(os.environ.get("OUT", "cdna_kernels/" + NAME + ".s"), "w").write("\n".join(txt) + "\n")
```

```python
import sys, os
NAME = "sequential_preLN__sliding_block__glu_gated_glu__prompt"
out = []
def E(s): out.append("    " + s)
def L(s): out.append(s + ":")
MB = 1 << 20
WS_Q, WS_K, WS_V, WS_O, WS_H, WS_HH = 0, 2*MB, 4*MB, 6*MB, 8*MB, 10*MB
WS_XN = 16*MB
LOG2E = 1.4426950408889634
import struct
def f2u(f): return struct.unpack("<I", struct.pack("<f", f))[0]

def prologue(name, nwg):
    out.append(".p2align 8"); out.append(f".globl {name}"); out.append(f".type {name},@function"); L(name)
    E(f"s_cmp_ge_u32 s2, {nwg}"); E(f"s_cbranch_scc1 {name}_done")
    E("s_load_dwordx16 s[16:31], s[0:1], 0"); E("s_load_dwordx4 s[32:35], s[0:1], 64")
    E("v_and_b32 v1, 63, v0")
    E("v_lshrrev_b32 v2, 6, v0")
    E("v_and_b32 v3, 31, v0")
    E("v_readfirstlane_b32 s3, v2")
    E("v_bfe_u32 v4, v0, 5, 1")
    E("s_waitcnt lgkmcnt(0)")
STAMPK = os.environ.get("STAMP", "")
nst = [0]
def stamp(name, tag=""):
    if name != STAMPK: return
    if tag != os.environ.get("STAG", "") and nst[0] > 0 and tag != "end": return
    E("s_memtime s[74:75]"); E("s_waitcnt lgkmcnt(0)"); E(f"s_mov_b32 s{76+nst[0]}, s74"); nst[0] += 1
def epilogue_end(name):
    if name == STAMPK:
        stamp(name, "end")
        srd(40, 32, 0, 256)
        E("s_cmp_lg_u32 s2, 8"); E(f"s_cbranch_scc1 {name}_done"); E("s_cmp_lg_u32 s3, 0"); E(f"s_cbranch_scc1 {name}_done")
        srd(40, 32, 0, 256)
        for i in range(nst[0]):
            E(f"s_sub_u32 s4, s{76+i}, s76"); E("v_mov_b32 v5, s4"); E(f"v_mov_b32 v6, {4*i}"); E("buffer_store_dword v5, v6, s[40:43], 0 offen")
    L(f"{name}_done"); E("s_endpgm")
def srd(d, base, off, size):
    if off >= 0:
        E(f"s_add_u32 s{d}, s{base}, {off}"); E(f"s_addc_u32 s{d+1}, s{base+1}, 0")
    else:
        E(f"s_sub_u32 s{d}, s{base}, {-off}"); E(f"s_subb_u32 s{d+1}, s{base+1}, 0")
    E(f"s_mov_b32 s{d+2}, {size}"); E(f"s_mov_b32 s{d+3}, 0x00020000")

VX, VW, ACC0, ACC1, VT = 16, 144, 176, 192, 208

def w_addr(perm, vdst, RB=64):
    E("v_bfe_u32 v5, v0, 2, 2")
    E(f"v_lshlrev_b32 v6, {2 if perm else 3}, v4")
    E("v_add_u32 v5, v5, v6")
    E(f"v_mul_u32_u24 v5, {RB}, v5")
    E("v_bfe_u32 v6, v0, 4, 1")
    E("v_lshlrev_b32 v6, 5, v6")
    E("v_add_u32 v5, v5, v6")
    E("v_and_b32 v6, 3, v0")
    E("v_lshlrev_b32 v6, 3, v6")
    E(f"v_add_u32 v{vdst}, v5, v6")

def dma_setup(ldw):
    E("v_lshrrev_b32 v5, 2, v0"); E(f"s_mov_b32 s4, {ldw}"); E("v_mul_lo_u32 v5, v5, s4")
    E("v_and_b32 v6, 3, v0"); E("v_lshlrev_b32 v6, 4, v6"); E("v_add_u32 v7, v5, v6")
    E("s_lshl_b32 s5, s3, 10")
def dma_region(srdreg, scol, ldsbase, nj, ldw):
    E(f"s_mov_b32 s6, s{scol}"); E(f"s_add_u32 s7, s5, {ldsbase}")
    for j in range(nj):
        E("s_mov_b32 m0, s7");
        if j + 1 < nj: E("s_add_u32 s7, s7, 4096")
        else: E("s_nop 0")
        E(f"buffer_load_dwordx4 v7, s[{srdreg}:{srdreg+3}], s6 offen lds")
        if j + 1 < nj: E(f"s_add_u32 s6, s6, {64*ldw}")

def dma_list(srdreg, scolreg, coladd, ldsbase, nj, ldw):
    r = []
    for j in range(nj):
        r.append([f"s_add_u32 s6, s{scolreg}, {coladd + j*64*ldw}", f"s_add_u32 m0, s5, {ldsbase + j*4096}", "s_nop 0",
                  f"buffer_load_dwordx4 v7, s[{srdreg}:{srdreg+3}], s6 offen lds"])
    return r
def dma_setup_w(ldw):
    E("s_lshl_b32 s5, s3, 10"); E("s_mov_b32 s4, 0xAAAB"); E(f"s_mov_b32 s6, {ldw}")
    for t, vr in enumerate((7, 14, 15)):
        E(f"v_add_u32 v5, {256*t}, v0"); E("v_mul_lo_u32 v6, v5, s4"); E("v_lshrrev_b32 v6, 19, v6")
        E("v_mul_u32_u24 v9, 12, v6"); E("v_sub_u32 v5, v5, v9"); E("v_lshlrev_b32 v5, 4, v5")
        E("v_mul_lo_u32 v6, v6, s6"); E(f"v_add_u32 v{vr}, v5, v6")
def dma_list_w(srdreg, scolreg, ldsbase, row0, nrows, ldw):
    r = []
    for j in range(nrows*12//256):
        r.append([f"s_add_u32 s6, s{scolreg}, {(row0 + (j//3)*64)*ldw}", f"s_add_u32 m0, s5, {ldsbase + j*4096}", "s_nop 0",
                  f"buffer_load_dwordx4 v{(7,14,15)[j%3]}, s[{srdreg}:{srdreg+3}], s6 offen lds"])
    return r
def mfma_items(items, perm, swap_of, first_of, RB=64):
    d2 = 8*RB if perm else 4*RB
    n = len(items); D = 6
    def rd(i):
        va, off, _, _ = items[i]; w = VW + 4 * (i % 8)
        E(f"ds_read_b64_tr_b16 v[{w}:{w+1}], v{va} offset:{off}")
        E(f"ds_read_b64_tr_b16 v[{w+2}:{w+3}], v{va} offset:{off+d2}")
    for i in range(min(D, n)): rd(i)
    for i in range(n):
        va, off, x, acc = items[i][:4]; w = VW + 4 * (i % 8)
        E(f"s_waitcnt lgkmcnt({2*(min(i+D-1, n-1)-i)})")
        c = "0" if first_of(i) else f"v[{acc}:{acc+15}]"
        if swap_of(i): E(f"v_mfma_f32_32x32x16_bf16 v[{acc}:{acc+15}], v[{x}:{x+3}], v[{w}:{w+3}], {c}")
        else:          E(f"v_mfma_f32_32x32x16_bf16 v[{acc}:{acc+15}], v[{w}:{w+3}], v[{x}:{x+3}], {c}")
        if i + D < n: rd(i + D)
        yield i

def ln_regs(ndma, inter=[], jit=False):
    E("s_mov_b32 s8, 0x3f803f80")
    for q in range(4): E(f"v_mov_b32 v{VT+q}, 0"); E(f"v_mov_b32 v{VT+4+q}, 0")
    inter = list(inter); nd = 0
    for g in range(4):
        E(f"s_waitcnt vmcnt({min(63, 24-8*g+nd)})")
        for r in range(32*g, 32*g+32):
            if inter and r % 8 == 4:
                for x in inter.pop(0): E(x)
                nd += 1
            E(f"v_dot2_f32_bf16 v{VT+(r&3)}, v{VX+r}, s8, v{VT+(r&3)}")
            E(f"v_dot2_f32_bf16 v{VT+4+(r&3)}, v{VX+r}, v{VX+r}, v{VT+4+(r&3)}")
    E("s_nop 3")
    E(f"v_add_f32 v{VT}, v{VT}, v{VT+1}"); E(f"v_add_f32 v{VT+2}, v{VT+2}, v{VT+3}")
    E(f"v_add_f32 v{VT+4}, v{VT+4}, v{VT+5}"); E(f"v_add_f32 v{VT+6}, v{VT+6}, v{VT+7}")
    E(f"v_add_f32 v{VT}, v{VT}, v{VT+2}"); E(f"v_add_f32 v{VT+4}, v{VT+4}, v{VT+6}")
    E(f"v_mov_b32 v{VT+1}, v{VT}"); E(f"v_mov_b32 v{VT+5}, v{VT+4}")
    E("s_nop 1")
    E(f"v_permlane32_swap_b32 v{VT}, v{VT+1}"); E(f"v_permlane32_swap_b32 v{VT+4}, v{VT+5}")
    E("s_nop 1")
    E(f"v_add_f32 v{VT}, v{VT}, v{VT+1}"); E(f"v_add_f32 v{VT+4}, v{VT+4}, v{VT+5}")
    E(f"v_mul_f32 v{VT}, {f2u(1/512):#x}, v{VT}")
    E(f"v_mul_f32 v{VT+4}, {f2u(1/512):#x}, v{VT+4}")
    E(f"v_fma_f32 v{VT+4}, -v{VT}, v{VT}, v{VT+4}")
    E(f"v_max_f32 v{VT+4}, 0, v{VT+4}")
    E(f"v_add_f32 v{VT+4}, {f2u(1e-5):#x}, v{VT+4}")
    E(f"v_rsq_f32 v{VT+4}, v{VT+4}")
    E("s_nop 0")
    E(f"v_mul_f32 v{VT}, v{VT}, v{VT+4}")
    E(f"v_sub_f32 v{VT}, 0, v{VT}")
    if jit:
        E(f"v_mov_b32 v12, v{VT+4}"); E(f"v_mov_b32 v15, v{VT}"); return
    for r in range(128):
        if inter and r % 5 == 0:
            for x in inter.pop(0): E(x)
        a, b = VT + 8 + 2 * (r & 3), VT + 9 + 2 * (r & 3)
        E(f"v_lshlrev_b32 v{a}, 16, v{VX+r}"); E(f"v_and_b32 v{b}, 0xffff0000, v{VX+r}")
        E(f"v_fma_f32 v{a}, v{a}, v{VT+4}, v{VT}"); E(f"v_fma_f32 v{b}, v{b}, v{VT+4}, v{VT}")
        E(f"v_cvt_pk_bf16_f32 v{VX+r}, v{a}, v{b}")

def load_x(srdreg, ld, nsteps, base=VX):
    E("s_lshl_b32 s10, s3, 5"); E("s_add_u32 s10, s10, s9")
    E("v_add_u32 v9, s10, v3"); E(f"s_mov_b32 s4, {ld}"); E("v_mul_lo_u32 v8, v9, s4")
    E("v_lshlrev_b32 v5, 4, v4"); E("v_add_u32 v8, v8, v5")
    for s in range(nsteps):
        E(f"buffer_load_dwordx4 v[{base+4*s}:{base+4*s+3}], v8, s[{srdreg}:{srdreg+3}], 0 offen offset:{32*s}")
def wgmap(a=2):
    if a == 2:
        E("s_and_b32 s9, s2, 7"); E("s_lshl_b32 s9, s9, 1"); E("s_lshr_b32 s11, s2, 7"); E("s_add_u32 s9, s9, s11"); E("s_lshl_b32 s9, s9, 7")
        E("s_lshr_b32 s11, s2, 3"); E("s_and_b32 s11, s11, 15")
    else:
        E("s_bfe_u32 s9, s2, 0x20001"); E("s_lshl_b32 s9, s9, 2"); E("s_lshr_b32 s11, s2, 6"); E("s_add_u32 s9, s9, s11"); E("s_lshl_b32 s9, s9, 7")
        E("s_bfe_u32 s11, s2, 0x30003"); E("s_and_b32 s4, s2, 1"); E("s_lshl_b32 s4, s4, 3"); E("s_add_u32 s11, s11, s4")
def load_xt(srdreg, nsteps_total, nsteps, base=VX):
    E("s_lshl_b32 s10, s3, 5"); E("s_add_u32 s10, s10, s9"); E("v_add_u32 v9, s10, v3")
    E("s_lshr_b32 s4, s10, 5"); E(f"s_mul_i32 s4, s4, {nsteps_total*1024}")
    E("v_lshlrev_b32 v8, 4, v1"); E("v_add_u32 v8, s4, v8")
    for s in range(nsteps):
        if s % 4 == 0: E(f"s_mov_b32 s4, {1024*s}")
        E(f"buffer_load_dwordx4 v[{base+4*s}:{base+4*s+3}], v8, s[{srdreg}:{srdreg+3}], s4 offen offset:{1024*(s%4)}")
def pack(acc, dst):
    for i in range(8): E(f"v_cvt_pk_bf16_f32 v{dst+i}, v{acc+2*i}, v{acc+2*i+1}")

kernels = []
def k0():
    n = "k0_ln_kernel"; kernels.append((n, 256, 0)); prologue(n, 256)
    E("s_and_b32 s9, s2, 7"); E("s_lshl_b32 s9, s9, 8"); E("s_lshr_b32 s10, s2, 3"); E("s_lshl_b32 s10, s10, 3"); E("s_add_u32 s9, s9, s10")
    E("s_lshl_b32 s10, s3, 1"); E("s_add_u32 s9, s9, s10")
    srd(40, 16, 0, 2*MB); srd(44, 34, WS_XN, 2*MB)
    E("s_cmp_lg_u32 s2, 0"); E("s_cbranch_scc1 k0_nz")
    srd(52, 34, 20*MB, 16384)
    for i in range(4): E(f"v_mov_b32 v{40+i}, 0")
    E("v_lshlrev_b32 v5, 6, v0")
    for i in range(4): E(f"buffer_store_dwordx4 v[40:43], v5, s[52:55], 0 offen offset:{16*i}")
    L("k0_nz")
    E("s_lshl_b32 s10, s9, 10"); E("v_lshlrev_b32 v5, 4, v1")
    E("buffer_load_dwordx4 v[16:19], v5, s[40:43], s10 offen"); E("buffer_load_dwordx4 v[20:23], v5, s[40:43], s10 offen offset:1024")
    E("s_lshr_b32 s11, s9, 5"); E("s_lshl_b32 s11, s11, 15"); E("s_and_b32 s12, s9, 31"); E("s_lshl_b32 s12, s12, 4"); E("s_add_u32 s11, s11, s12")
    E("v_lshrrev_b32 v6, 1, v1"); E("v_lshlrev_b32 v6, 10, v6"); E("v_and_b32 v7, 1, v1"); E("v_lshlrev_b32 v7, 9, v7"); E("v_add_u32 v6, v6, v7")
    E("s_mov_b32 s8, 0x3f803f80")
    for q in range(4): E(f"v_mov_b32 v{24+q}, 0")
    if os.environ.get("PF", "1") == "1":
        E("s_lshl_b32 s12, s2, 12"); E("v_lshlrev_b32 v32, 4, v0"); E("v_add_u32 v32, s12, v32"); E("v_add_u32 v33, 0x100000, v32")
        k = 0
        for base, size in ((18, 512*3072), (20, 512*1024), (24, 512*2752), (26, 512*2752), (28, 1376*1024)):
            srd(48, base, 0, size)
            E(f"buffer_load_dwordx4 v[{36+4*k}:{39+4*k}], v32, s[48:51], 0 offen"); k += 1
            if size > MB: E(f"buffer_load_dwordx4 v[{36+4*k}:{39+4*k}], v33, s[48:51], 0 offen"); k += 1
        ntl = 0
        if os.environ.get("TLB", "0") == "1":
            E("v_lshlrev_b32 v33, 16, v1")
            srd(48, 34, 0, 24*MB)
            for i in range(6):
                E(f"s_mov_b32 s12, {4*MB*i}"); E(f"buffer_load_dword v{100+ntl}, v33, s[48:51], s12 offen"); ntl += 1
            for base, size in ((18, 512*3072), (20, 512*1024), (24, 512*2752), (26, 512*2752), (28, 1376*1024), (30, 2*MB)):
                srd(48, base, 0, size); E(f"buffer_load_dword v{100+ntl}, v33, s[48:51], 0 offen"); ntl += 1
        npf = int(os.environ.get("NPF", "0"))
        if npf:
            E("s_getpc_b64 s[60:61]"); L("k0_pc")
            E("v_lshlrev_b32 v34, 4, v0")
            for i in range(npf):
                E(f"global_load_dwordx4 v[{72+4*i}:{75+4*i}], v34, s[60:61]"); E("v_add_u32 v34, 0x1000, v34")
        E(f"s_waitcnt vmcnt({9+npf+ntl})")
    else:
        E("s_waitcnt vmcnt(0)")
    for r in range(2):
        for i in range(4):
            E(f"v_dot2_f32_bf16 v{24+2*r}, v{16+4*r+i}, s8, v{24+2*r}"); E(f"v_dot2_f32_bf16 v{25+2*r}, v{16+4*r+i}, v{16+4*r+i}, v{25+2*r}")
    E("s_nop 3")
    for off in (0x041F, 0x081F, 0x101F, 0x201F, 0x401F):
        for q in range(4): E(f"ds_swizzle_b32 v{28+q}, v{24+q} offset:{off:#x}")
        E("s_waitcnt lgkmcnt(0)")
        for q in range(4): E(f"v_add_f32 v{24+q}, v{24+q}, v{28+q}")
    for q in range(4): E(f"v_mov_b32 v{28+q}, v{24+q}")
    E("s_nop 1")
    for q in range(4): E(f"v_permlane32_swap_b32 v{24+q}, v{28+q}")
    E("s_nop 1")
    for q in range(4): E(f"v_add_f32 v{24+q}, v{24+q}, v{28+q}")
    for r in range(2):
        a, b = 24+2*r, 25+2*r
        E(f"v_mul_f32 v{a}, {f2u(1/512):#x}, v{a}"); E(f"v_mul_f32 v{b}, {f2u(1/512):#x}, v{b}")
        E(f"v_fma_f32 v{b}, -v{a}, v{a}, v{b}"); E(f"v_max_f32 v{b}, 0, v{b}"); E(f"v_add_f32 v{b}, {f2u(1e-5):#x}, v{b}")
        E(f"v_rsq_f32 v{b}, v{b}"); E("s_nop 0"); E(f"v_mul_f32 v{a}, v{a}, v{b}"); E(f"v_sub_f32 v{a}, 0, v{a}")
        for i in range(4):
            x = 16+4*r+i
            E(f"v_lshlrev_b32 v30, 16, v{x}"); E(f"v_and_b32 v31, 0xffff0000, v{x}")
            E(f"v_fma_f32 v30, v30, v{b}, v{a}"); E(f"v_fma_f32 v31, v31, v{b}, v{a}"); E(f"v_cvt_pk_bf16_f32 v{x}, v30, v31")
        E(f"buffer_store_dwordx4 v[{16+4*r}:{19+4*r}], v6, s[44:47], s11 offen offset:{16*r}")
    epilogue_end(n)

SC = " sc1"
def lanes():
    E("v_and_b32 v1, 63, v0"); E("v_and_b32 v3, 31, v0"); E("v_bfe_u32 v4, v0, 5, 1")
WS_CNT = 20*MB
def signal(n, idx):
    E("s_waitcnt vmcnt(0)"); E("s_barrier")
    E("s_cmp_lg_u32 s3, 0"); E(f"s_cbranch_scc1 {n}_sig{idx}")
    E("s_lshl_b32 s4, s9, 1"); E(f"s_add_u32 s4, s4, {idx*4096}")
    E("v_mov_b32 v5, 1"); E("v_mov_b32 v6, s4"); E("s_mov_b64 exec, 1")
    E("buffer_atomic_add v5, v6, s[56:59], 0 offen"); E("s_mov_b64 exec, -1")
    L(f"{n}_sig{idx}")
def wait(n, idx, back=0):
    E("s_cmp_lg_u32 s3, 0"); E(f"s_cbranch_scc1 {n}_wx{idx}")
    for b in range(back + 1):
        E("s_lshl_b32 s4, s9, 1"); E(f"s_sub_i32 s4, s4, {256*b}"); E("s_max_i32 s4, s4, 0"); E(f"s_add_u32 s4, s4, {idx*4096}")
        E("v_mov_b32 v6, s4"); E("s_mov_b32 s6, 0")
        L(f"{n}_w{idx}_{b}")
        E("buffer_load_dword v5, v6, s[56:59], 0 offen sc1"); E("s_waitcnt vmcnt(0)")
        E("v_readfirstlane_b32 s4, v5"); E("s_add_u32 s6, s6, 1"); E("s_cmp_ge_u32 s4, 16"); E(f"s_cbranch_scc1 {n}_wd{idx}_{b}")
        E("s_sleep 3"); E("s_cmp_lt_u32 s6, 0x4000"); E(f"s_cbranch_scc1 {n}_w{idx}_{b}")
        L(f"{n}_wd{idx}_{b}")
    L(f"{n}_wx{idx}")
    E("s_waitcnt vmcnt(0)"); E("s_barrier")
def load_xt2(srdreg, nsteps_total, nsteps, base=VX, sc=SC):
    E("s_lshr_b32 s4, s10, 5"); E(f"s_mul_i32 s4, s4, {nsteps_total*1024}")
    E("v_lshlrev_b32 v8, 4, v1"); E("v_add_u32 v8, s4, v8")
    for s in range(nsteps):
        if s % 4 == 0: E(f"s_mov_b32 s4, {1024*s}")
        E(f"buffer_load_dwordx4 v[{base+4*s}:{base+4*s+3}], v8, s[{srdreg}:{srdreg+3}], s4 offen offset:{1024*(s%4)}{sc}")
def issue(groups):
    for g in groups:
        for x in g: E(x)

def mega():
    global VW
    n = "km_block_kernel"; kernels.append((n, 256, 163840)); prologue(n, 256)
    stamp(n); wgmap(2)
    E("s_mov_b32 s61, s11")
    E("s_lshl_b32 s10, s3, 5"); E("s_add_u32 s10, s10, s9")
    srd(56, 34, WS_CNT, 16384)
    E("s_mul_i32 s11, s61, 3")
    srd(40, 34, WS_XN, 2*MB); srd(44, 18, 0, 512*3072); srd(48, 34, 0, 6*MB)
    srd(64, 24, 0, 512*2752); srd(68, 26, 0, 512*2752)
    E("s_lshl_b32 s62, s61, 6")
    E("s_mul_i32 s63, s61, 86"); E("s_and_b32 s63, s63, 0xfffffff0"); E("s_lshl_b32 s63, s63, 1")
    dma_setup(2752); E("v_mov_b32 v2, v7")
    slotof = {0: 3, 1: 4, 2: 1, 3: 2, 4: 0, 5: 3}
    def regl(r): return [[x.replace(" v7,", " v2,") for x in g] for g in dma_list(64 if r % 2 == 0 else 68, 63, 64*(r//2), slotof[r]*32768, 8, 2752)]
    p1pf = regl(0) + regl(1)
    dma_setup_w(3072)
    E("s_lshl_b32 s60, s11, 6")
    allw = dma_list_w(44, 60, 0, 0, 512, 3072)
    issue(allw[:8]); load_xt2(40, 32, 32, VX, ""); issue(allw[8:])
    E("v_add_u32 v9, s10, v3")
    w_addr(False, 10, 192); E("v_add_u32 v13, 0xc000, v10")
    E("v_lshlrev_b32 v11, 5, v9"); E("v_lshlrev_b32 v5, 4, v4"); E("v_add_u32 v11, v11, v5")
    E("v_bfe_u32 v12, v0, 4, 1"); E("v_lshlrev_b32 v12, 16, v12"); E("v_lshlrev_b32 v5, 8, v4"); E("v_add_u32 v12, v12, v5")
    E("v_and_b32 v5, 15, v0"); E("v_lshlrev_b32 v5, 4, v5"); E("v_add_u32 v12, v12, v5")
    E("s_lshl_b32 s13, s10, 5"); E("v_add_u32 v12, s13, v12")
    E("s_waitcnt vmcnt(0)"); E("s_barrier")
    for j in range(3):
        E(f"s_add_u32 s12, s11, {j}"); E("s_cmp_ge_u32 s12, 32"); E(f"s_cbranch_scc1 {n}_v{j}")
        for sw in (False, True):
            if sw: L(f"{n}_v{j}")
            items = [((10, 3072*s + 64*j) if s < 16 else (13, 3072*(s-16) + 64*j)) + (VX+4*s, ACC0) for s in range(32)]
            for i in mfma_items(items, False, lambda i: sw, lambda i: i == 0, 192):
                if i % 5 == 3 and 6*j + i//5 < 16: issue([p1pf[6*j + i//5]])
            E("s_nop 15"); pack(ACC0, VT)
            if not sw:
                E("s_lshr_b32 s14, s12, 4"); E("s_lshl_b32 s14, s14, 21"); E("s_and_b32 s15, s12, 15"); E("s_lshl_b32 s15, s15, 17")
                E("s_add_u32 s14, s14, s15"); E("s_add_u32 s15, s14, 65536")
                E(f"buffer_store_dwordx4 v[{VT}:{VT+3}], v11, s[48:51], s14 offen{SC}")
                E(f"buffer_store_dwordx4 v[{VT+4}:{VT+7}], v11, s[48:51], s15 offen{SC}")
                E(f"s_branch {n}_e{j}")
            else:
                E("s_sub_u32 s14, s12, 32"); E("s_lshl_b32 s14, s14, 17"); E(f"s_add_u32 s14, s14, {WS_V}")
                E(f"buffer_store_dwordx4 v[{VT}:{VT+3}], v12, s[48:51], s14 offen{SC}")
                E(f"buffer_store_dwordx4 v[{VT+4}:{VT+7}], v12, s[48:51], s14 offen offset:512{SC}")
        L(f"{n}_e{j}"); E("s_nop 1")
    stamp(n); signal(n, 0); stamp(n)
    srd(44, 20, 0, 512*1024)
    dma_setup(1024); issue(dma_list(44, 62, 0, 0, 8, 1024))
    E("v_mov_b32 v5, 0x3f803f80")
    for r in range(144): E(f"v_accvgpr_write_b32 a{80+r}, v5")
    wait(n, 0, 2); stamp(n); stamp(n, "p2")
    S, O, PK = 96, 240, 16
    srd(40, 34, WS_Q, 2*MB); srd(44, 34, WS_K - 8192, 2*MB + 8192); srd(48, 34, WS_V - 8192, 2*MB + 8192); srd(52, 34, WS_O, 2*MB)
    E("v_lshlrev_b32 v5, 2, v4"); E("v_sub_u32 v11, v3, v5")
    E("s_sub_i32 s15, 256, s10"); E("s_max_i32 s15, s15, 0")
    E("v_lshlrev_b32 v6, 4, v4")
    E("s_lshl_b32 s11, s61, 1")
    E("s_lshl_b32 s12, s11, 11"); E("s_add_u32 s12, s12, s10")
    E("v_add_u32 v5, s12, v3"); E("v_lshlrev_b32 v5, 5, v5"); E("v_add_u32 v8, v5, v6"); E("v_add_u32 v13, 0x10000, v8")
    E("s_lshl_b32 s14, s15, 5")
    E("v_and_b32 v5, 15, v0"); E("v_lshlrev_b32 v5, 4, v5"); E("v_lshlrev_b32 v9, 8, v4"); E("v_add_u32 v5, v5, v9")
    E("s_lshl_b32 s13, s11, 16"); E("s_lshl_b32 s12, s10, 5"); E("s_add_u32 s13, s13, s12"); E("v_add_u32 v9, s13, v5"); E("v_add_u32 v14, 0x10000, v9")
    E("s_mov_b32 s66x, 0") if False else None
    E("s_mov_b32 s72, 0x0000ffff"); E("s_mov_b32 s73, 0x0000ffff")
    def qk(hh):
        va = (8, 13)[hh]
        r = [[f"buffer_load_dwordx4 a[{72+4*hh}:{75+4*hh}], v{va}, s[40:43], 0 offen{SC}"]]
        for kb in range(9):
            r.append([f"s_max_u32 s12, s14, {kb*1024}", f"buffer_load_dwordx4 a[{36*hh+4*kb}:{36*hh+4*kb+3}], v{va}, s[44:47], s12 offen{SC}"])
        return r
    def vv(hh):
        return [["s_mov_b64 exec, s[72:73]", f"s_max_u32 s12, s14, {512*t}",
                 f"buffer_load_dwordx4 a[{80+72*hh+4*t}:{80+72*hh+4*t+3}], v{(9,14)[hh]}, s[48:51], s12 offen{SC}", "s_mov_b64 exec, -1"] for t in range(18)]
    issue(qk(0)); issue(vv(0))
    E("s_add_u32 s13, s10, s11"); E("s_lshl_b32 s13, s13, 10"); E("v_lshlrev_b32 v5, 4, v1"); E("v_add_u32 v10, s13, v5")
    stamp(n, "p2")
    for hh in range(2):
        pf = (qk(1) + vv(1)) if hh == 0 else (regl(2) + regl(3))
        npf0 = len(pf)
        E(f"v_mov_b32 v12, {f2u(-1e30):#x}")
        for kb in range(9):
            E(f"s_waitcnt vmcnt({(26-kb) if hh == 0 else (1 + 18 + 8 - kb)})")
            E(f"v_mfma_f32_32x32x16_bf16 v[{S+16*kb}:{S+16*kb+15}], a[{36*hh+4*kb}:{36*hh+4*kb+3}], a[{72+4*hh}:{75+4*hh}], 0")
        E("s_nop 7"); E("s_nop 3"); stamp(n, "p2")
        for kb in range(8):
            E(f"s_cmp_ge_u32 s10, {256-32*kb}"); E(f"s_cbranch_scc1 {n}_ok{hh}_{kb}")
            for i in range(16): E(f"v_mov_b32 v{S+16*kb+i}, v12")
            L(f"{n}_ok{hh}_{kb}")
        for i in range(16):
            c = 8*(i >> 2) + (i & 3)
            E(f"v_cmp_le_i32 vcc, {c}, v11"); E("s_nop 1")
            E(f"v_cndmask_b32 v{S+128+i}, v12, v{S+128+i}, vcc"); E(f"v_cndmask_b32 v{S+i}, v{S+i}, v12, vcc")
            if i % 3 == 2 and pf: issue([pf.pop(0)])
        for c in range(4): E(f"v_max_f32 v{PK+c}, v{S+c}, v{S+4+c}")
        for r in range(8, 144, 8):
            for c in range(4): E(f"v_max3_f32 v{PK+c}, v{PK+c}, v{S+r+c}, v{S+r+4+c}")
            if r % 24 == 0 and pf: issue([pf.pop(0)])
        E(f"v_max_f32 v{PK}, v{PK}, v{PK+1}"); E(f"v_max_f32 v{PK+2}, v{PK+2}, v{PK+3}"); E(f"v_max_f32 v12, v{PK}, v{PK+2}"); E("v_mov_b32 v15, v12")
        E("s_nop 1"); E("v_permlane32_swap_b32 v12, v15"); E("s_nop 1"); E("v_max_f32 v12, v12, v15")
        E(f"s_mov_b32 s13, {f2u(0.25*LOG2E):#x}"); E("v_mul_f32 v12, s13, v12"); stamp(n, "p2")
        for r in range(0, 144, 4):
            for c in range(4): E(f"v_fma_f32 v{S+r+c}, v{S+r+c}, s13, -v12")
            for c in range(4): E(f"v_exp_f32 v{S+r+c}, v{S+r+c}")
            if r >= 4:
                p = r - 4; d = S + 16*(p//16) + (p % 16)//2
                E(f"v_cvt_pk_bf16_f32 v{d}, v{S+p}, v{S+p+1}"); E(f"v_cvt_pk_bf16_f32 v{d+1}, v{S+p+2}, v{S+p+3}")
            if r % 8 == 0 and pf: issue([pf.pop(0)])
        p = 140; d = S + 16*(p//16) + (p % 16)//2
        E("s_nop 0"); E(f"v_cvt_pk_bf16_f32 v{d}, v{S+p}, v{S+p+1}"); E(f"v_cvt_pk_bf16_f32 v{d+1}, v{S+p+2}, v{S+p+3}")
        npf_left = len(pf)
        stamp(n, "p2")
        assert npf_left == 0
        E(f"s_waitcnt vmcnt({npf0 if hh == 0 else (1+npf0)})"); stamp(n, "p2")
        for t in range(18):
            if pf and t % 4 == 1: issue([pf.pop(0)])
            bb = S + 16*(t//2) + 4*(t % 2)
            E(f"v_mfma_f32_32x32x16_bf16 v[{O}:{O+15}], a[{80+72*hh+4*t}:{80+72*hh+4*t+3}], v[{bb}:{bb+3}], {'0' if t == 0 else f'v[{O}:{O+15}]'}")
        E("s_nop 15"); E(f"v_rcp_f32 v12, v{O+8}"); E("s_nop 0")
        for i in range(8): E(f"v_mul_f32 v{O+i}, v{O+i}, v12")
        for i in range(4): E(f"v_cvt_pk_bf16_f32 v{PK+i}, v{O+2*i}, v{O+2*i+1}")
        assert not pf
        E(f"buffer_store_dwordx4 v[{PK}:{PK+3}], v10, s[52:55], 0 offen offset:{1024*hh}{SC}")
        E("s_nop 1")
    stamp(n); signal(n, 1); stamp(n)
    srd(40, 34, WS_O, 2*MB); srd(48, 34, WS_H, 2*MB); srd(52, 16, 0, 2*MB)
    E("v_add_u32 v9, s10, v3")
    w_addr(True, 10)
    E("v_lshlrev_b32 v12, 10, v9"); E("v_lshlrev_b32 v5, 3, v4"); E("v_add_u32 v12, v12, v5"); E("s_lshl_b32 s13, s61, 11")
    for q in range(4): E(f"buffer_load_dwordx2 v[{VT+8+2*q}:{VT+9+2*q}], v12, s[52:55], s62 offen offset:{16*q}")
    wait(n, 1); stamp(n)
    load_xt2(40, 32, 32)
    E("s_waitcnt vmcnt(0)"); E("s_barrier")
    items = [(10, 1024*s, VX+4*s, ACC0) for s in range(32)]
    for _ in mfma_items(items, True, lambda i: False, lambda i: i == 0): pass
    E("s_nop 15")
    for i in range(8):
        E(f"v_lshlrev_b32 v5, 16, v{VT+8+i}"); E(f"v_and_b32 v6, 0xffff0000, v{VT+8+i}")
        E(f"v_add_f32 v{ACC0+2*i}, v{ACC0+2*i}, v5"); E(f"v_add_f32 v{ACC0+2*i+1}, v{ACC0+2*i+1}, v6")
    pack(ACC0, VT)
    E(f"buffer_store_dwordx4 v[{VT}:{VT+3}], v8, s[48:51], s13 offen{SC}")
    E(f"buffer_store_dwordx4 v[{VT+4}:{VT+7}], v8, s[48:51], s13 offen offset:1024{SC}")
    stamp(n); signal(n, 2); stamp(n)
    issue(regl(4))
    wait(n, 2); stamp(n)
    srd(40, 34, WS_H, 2*MB); srd(52, 34, WS_HH, 2048*2752)
    load_xt2(40, 32, 32)
    E("s_lshr_b32 s4, s10, 5"); E(f"s_mul_i32 s4, s4, {86*1024}"); E("v_lshlrev_b32 v11, 4, v1"); E("v_add_u32 v11, s4, v11")
    ln_regs(0, [], True)
    E(f"s_mov_b32 s13, {f2u(-LOG2E):#x}")
    E("s_barrier")
    def norm(s):
        r = []
        for q in range(4):
            x = VX + 4*s + q; a_, b_ = 240 + 2*q, 241 + 2*q
            r += [f"v_lshlrev_b32 v{a_}, 16, v{x}", f"v_and_b32 v{b_}, 0xffff0000, v{x}"]
        for q in range(4):
            a_, b_ = 240 + 2*q, 241 + 2*q
            r += [f"v_fma_f32 v{a_}, v{a_}, v12, v15", f"v_fma_f32 v{b_}, v{b_}, v12, v15"]
        for q in range(4):
            r += [f"v_cvt_pk_bf16_f32 v{VX+4*s+q}, v{240+2*q}, v{241+2*q}"]
        return r
    def epi(j, G, U):
        r = []
        for i in range(16): r.append(f"v_mul_f32 v{G+i}, s13, v{G+i}")
        for i in range(16): r.append(f"v_exp_f32 v{G+i}, v{G+i}")
        for i in range(16): r.append(f"v_add_f32 v{G+i}, 1.0, v{G+i}")
        for i in range(16): r.append(f"v_rcp_f32 v{G+i}, v{G+i}")
        for i in range(16): r.append(f"v_mul_f32 v{G+i}, v{G+i}, v{U+i}")
        for i in range(8): r.append(f"v_cvt_pk_bf16_f32 v{248+i}, v{G+2*i}, v{G+2*i+1}")
        r += [f"s_add_u32 s12, s63, {64*j}", "s_lshl_b32 s12, s12, 5",
              f"buffer_store_dwordx4 v[248:251], v11, s[52:55], s12 offen{SC}",
              f"buffer_store_dwordx4 v[252:255], v11, s[52:55], s12 offen offset:1024{SC}"]
        return r
    for x in norm(0) + norm(1): E(x)
    fill = []
    srd(44, 28, 0, 1376*1024); dma_setup(1024)
    w5 = dma_list(44, 62, 0, 32768, 16, 1024) + dma_list(44, 62, 1024*1024, 131072, 6, 1024)
    for j in range(3):
        G, U = (176, 192) if j % 2 == 0 else (208, 224)
        sg, su = slotof[2*j]*32768, slotof[2*j+1]*32768
        E(f"v_add_u32 v13, {sg}, v10"); E(f"v_add_u32 v14, {su}, v10")
        items = []
        for s in range(32): items += [(13, 1024*s, VX+4*s, G), (14, 1024*s, VX+4*s, U)]
        for i in mfma_items(items, True, lambda i: False, lambda i: i < 2):
            if j == 0 and i % 2 == 1 and i//2 + 2 < 32:
                for x in norm(i//2 + 2): E(x)
            if j > 0 and i >= 4:
                for _ in range(2):
                    if fill: E(fill.pop(0))
            if j == 2 and i >= 2 and i % 2 == 0 and w5: issue([w5.pop(0)])
        assert not fill
        if j == 0: E("s_barrier"); issue(regl(5))
        if j == 1: E("s_waitcnt vmcnt(2)"); E("s_barrier")
        fill = epi(j, G, U)
    E("s_nop 15")
    for x in fill: E(x)
    stamp(n); signal(n, 3); stamp(n)
    NX = 44; X = 56; oldVW = VW; VW = 16; A = 232; T = 48
    assert not w5
    wait(n, 3); stamp(n)
    srd(40, 34, WS_HH, 2048*2752); srd(48, 34, WS_H, 2*MB); srd(52, 30, 0, 2*MB)
    load_xt2(40, 86, NX, X)
    E("v_add_u32 v13, 0x8000, v10"); E("v_add_u32 v14, 0x20000, v10"); E("v_add_u32 v9, s10, v3")
    E("v_lshlrev_b32 v12, 10, v9"); E("v_lshlrev_b32 v5, 3, v4"); E("v_add_u32 v12, v12, v5")
    E("s_lshl_b32 s13, s10, 10"); E("s_lshl_b32 s14, s61, 11"); E("s_add_u32 s13, s13, s14"); E("v_lshlrev_b32 v11, 4, v1")
    E(f"buffer_load_dwordx4 v[248:251], v11, s[48:51], s13 offen{SC}"); E(f"buffer_load_dwordx4 v[252:255], v11, s[48:51], s13 offen offset:1024{SC}")
    E("s_waitcnt vmcnt(45)")
    items = [((13, 1024*s) if s < 64 else (14, 1024*(s-64))) + (X+4*(s % NX), A) for s in range(86)]
    for i in mfma_items(items, True, lambda i: False, lambda i: i == 0):
        if i + NX < 86:
            s = i + NX; E(f"s_mov_b32 s4, {1024*s}"); E(f"buffer_load_dwordx4 v[{X+4*i}:{X+4*i+3}], v8, s[40:43], s4 offen{SC}")
        if i + 1 < 86: E(f"s_waitcnt vmcnt({(45 if i + 1 <= 42 else 44) if i + 1 < NX else 85-(i+1)})")
    VW = oldVW
    E("s_nop 15")
    for i in range(8):
        E(f"v_lshlrev_b32 v5, 16, v{248+i}"); E(f"v_and_b32 v6, 0xffff0000, v{248+i}")
        E(f"v_add_f32 v{A+2*i}, v{A+2*i}, v5"); E(f"v_add_f32 v{A+2*i+1}, v{A+2*i+1}, v6")
    pack(A, T)
    for q in range(4): E(f"buffer_store_dwordx2 v[{T+2*q}:{T+2*q+1}], v12, s[52:55], s62 offen offset:{16*q}")
    epilogue_end(n)

k0(); mega()
hdr = open("cdna_kernels/" + NAME + ".s.ref").read().split("\n")
head = [l for l in hdr if l.startswith(";") and "@launch" not in l and "Override" not in l and "grid=ceil" not in l]
import os
dup = int(os.environ.get("DUP", "-1"))
ll = []
for idx, (k, g, l) in enumerate(kernels):
    ll += [f"; @launch kernel={k} grid=({g},1,1) block=(256,1,1) lds={l}"] * (5 if idx == dup else 1)
if dup == 99: ll = ll + ll
if STAMPK:
    ll = ll + [x for x in ll if STAMPK in x]
txt = head + ll
txt += ['.amdgcn_target "amdgcn-amd-amdhsa--gfx950"', ".text"] + out + ['.section .rodata,"a"']
for k, g, l in kernels:
    txt += [".p2align 6", f".amdhsa_kernel {k}", f"  .amdhsa_next_free_vgpr {512 if k.startswith('km') else 256}", "  .amdhsa_next_free_sgpr 102", "  .amdhsa_accum_offset 256",
            "  .amdhsa_group_segment_fixed_size 0", "  .amdhsa_kernarg_size 80", "  .amdhsa_user_sgpr_count 2",
            "  .amdhsa_user_sgpr_kernarg_segment_ptr 1", "  .amdhsa_system_sgpr_workgroup_id_x 1", ".end_amdhsa_kernel"]
open(os.environ.get("OUT", "cdna_kernels/" + NAME + ".s"), "w").write("\n".join(txt) + "\n")
```

```python
import sys, os
NAME = "sequential_preLN__sliding_block__glu_gated_glu__prompt"
out = []
def E(s): out.append("    " + s)
def L(s): out.append(s + ":")
MB = 1 << 20
WS_Q, WS_K, WS_V, WS_O, WS_H, WS_HH = 0, 2*MB, 4*MB, 6*MB, 8*MB, 10*MB
WS_XN = 16*MB
LOG2E = 1.4426950408889634
import struct
def f2u(f): return struct.unpack("<I", struct.pack("<f", f))[0]

def prologue(name, nwg):
    out.append(".p2align 8"); out.append(f".globl {name}"); out.append(f".type {name},@function"); L(name)
    E(f"s_cmp_ge_u32 s2, {nwg}"); E(f"s_cbranch_scc1 {name}_done")
    E("s_load_dwordx16 s[16:31], s[0:1], 0"); E("s_load_dwordx4 s[32:35], s[0:1], 64")
    E("v_and_b32 v1, 63, v0")
    E("v_lshrrev_b32 v2, 6, v0")
    E("v_and_b32 v3, 31, v0")
    E("v_readfirstlane_b32 s3, v2")
    E("v_bfe_u32 v4, v0, 5, 1")
    E("s_waitcnt lgkmcnt(0)")
STAMPK = os.environ.get("STAMP", "")
nst = [0]
def stamp(name, tag=""):
    if name != STAMPK: return
    if tag != os.environ.get("STAG", "") and nst[0] > 0 and tag != "end": return
    E("s_memtime s[74:75]"); E("s_waitcnt lgkmcnt(0)"); E(f"s_mov_b32 s{76+nst[0]}, s74"); nst[0] += 1
def epilogue_end(name):
    if name == STAMPK:
        stamp(name, "end")
        srd(40, 32, 0, 256)
        E("s_cmp_lg_u32 s2, 8"); E(f"s_cbranch_scc1 {name}_done"); E("s_cmp_lg_u32 s3, 0"); E(f"s_cbranch_scc1 {name}_done")
        srd(40, 32, 0, 256)
        for i in range(nst[0]):
            E(f"s_sub_u32 s4, s{76+i}, s76"); E("v_mov_b32 v5, s4"); E(f"v_mov_b32 v6, {4*i}"); E("buffer_store_dword v5, v6, s[40:43], 0 offen")
    L(f"{name}_done"); E("s_endpgm")
def srd(d, base, off, size):
    if off >= 0:
        E(f"s_add_u32 s{d}, s{base}, {off}"); E(f"s_addc_u32 s{d+1}, s{base+1}, 0")
    else:
        E(f"s_sub_u32 s{d}, s{base}, {-off}"); E(f"s_subb_u32 s{d+1}, s{base+1}, 0")
    E(f"s_mov_b32 s{d+2}, {size}"); E(f"s_mov_b32 s{d+3}, 0x00020000")

VX, VW, ACC0, ACC1, VT = 16, 144, 176, 192, 208

def w_addr(perm, vdst, RB=64):
    E("v_bfe_u32 v5, v0, 2, 2")
    E(f"v_lshlrev_b32 v6, {2 if perm else 3}, v4")
    E("v_add_u32 v5, v5, v6")
    E(f"v_mul_u32_u24 v5, {RB}, v5")
    E("v_bfe_u32 v6, v0, 4, 1")
    E("v_lshlrev_b32 v6, 5, v6")
    E("v_add_u32 v5, v5, v6")
    E("v_and_b32 v6, 3, v0")
    E("v_lshlrev_b32 v6, 3, v6")
    E(f"v_add_u32 v{vdst}, v5, v6")

def dma_setup(ldw):
    E("v_lshrrev_b32 v5, 2, v0"); E(f"s_mov_b32 s4, {ldw}"); E("v_mul_lo_u32 v5, v5, s4")
    E("v_and_b32 v6, 3, v0"); E("v_lshlrev_b32 v6, 4, v6"); E("v_add_u32 v7, v5, v6")
    E("s_lshl_b32 s5, s3, 10")
def dma_region(srdreg, scol, ldsbase, nj, ldw):
    E(f"s_mov_b32 s6, s{scol}"); E(f"s_add_u32 s7, s5, {ldsbase}")
    for j in range(nj):
        E("s_mov_b32 m0, s7");
        if j + 1 < nj: E("s_add_u32 s7, s7, 4096")
        else: E("s_nop 0")
        E(f"buffer_load_dwordx4 v7, s[{srdreg}:{srdreg+3}], s6 offen lds")
        if j + 1 < nj: E(f"s_add_u32 s6, s6, {64*ldw}")

def dma_list(srdreg, scolreg, coladd, ldsbase, nj, ldw):
    r = []
    for j in range(nj):
        r.append([f"s_add_u32 s6, s{scolreg}, {coladd + j*64*ldw}", f"s_add_u32 m0, s5, {ldsbase + j*4096}", "s_nop 0",
                  f"buffer_load_dwordx4 v7, s[{srdreg}:{srdreg+3}], s6 offen lds"])
    return r
def dma_setup_w(ldw):
    E("s_lshl_b32 s5, s3, 10"); E("s_mov_b32 s4, 0xAAAB"); E(f"s_mov_b32 s6, {ldw}")
    for t, vr in enumerate((7, 14, 15)):
        E(f"v_add_u32 v5, {256*t}, v0"); E("v_mul_lo_u32 v6, v5, s4"); E("v_lshrrev_b32 v6, 19, v6")
        E("v_mul_u32_u24 v9, 12, v6"); E("v_sub_u32 v5, v5, v9"); E("v_lshlrev_b32 v5, 4, v5")
        E("v_mul_lo_u32 v6, v6, s6"); E(f"v_add_u32 v{vr}, v5, v6")
def dma_list_w(srdreg, scolreg, ldsbase, row0, nrows, ldw):
    r = []
    for j in range(nrows*12//256):
        r.append([f"s_add_u32 s6, s{scolreg}, {(row0 + (j//3)*64)*ldw}", f"s_add_u32 m0, s5, {ldsbase + j*4096}", "s_nop 0",
                  f"buffer_load_dwordx4 v{(7,14,15)[j%3]}, s[{srdreg}:{srdreg+3}], s6 offen lds"])
    return r
def mfma_items(items, perm, swap_of, first_of, RB=64):
    d2 = 8*RB if perm else 4*RB
    n = len(items); D = 6
    def rd(i):
        va, off, _, _ = items[i]; w = VW + 4 * (i % 8)
        E(f"ds_read_b64_tr_b16 v[{w}:{w+1}], v{va} offset:{off}")
        E(f"ds_read_b64_tr_b16 v[{w+2}:{w+3}], v{va} offset:{off+d2}")
    for i in range(min(D, n)): rd(i)
    for i in range(n):
        va, off, x, acc = items[i][:4]; w = VW + 4 * (i % 8)
        E(f"s_waitcnt lgkmcnt({2*(min(i+D-1, n-1)-i)})")
        c = "0" if first_of(i) else f"v[{acc}:{acc+15}]"
        if swap_of(i): E(f"v_mfma_f32_32x32x16_bf16 v[{acc}:{acc+15}], v[{x}:{x+3}], v[{w}:{w+3}], {c}")
        else:          E(f"v_mfma_f32_32x32x16_bf16 v[{acc}:{acc+15}], v[{w}:{w+3}], v[{x}:{x+3}], {c}")
        if i + D < n: rd(i + D)
        yield i

def ln_regs(ndma, inter=[], jit=False):
    E("s_mov_b32 s8, 0x3f803f80")
    for q in range(4): E(f"v_mov_b32 v{VT+q}, 0"); E(f"v_mov_b32 v{VT+4+q}, 0")
    inter = list(inter); nd = 0
    for g in range(4):
        E(f"s_waitcnt vmcnt({min(63, 24-8*g+nd)})")
        for r in range(32*g, 32*g+32):
            if inter and r % 8 == 4:
                for x in inter.pop(0): E(x)
                nd += 1
            E(f"v_dot2_f32_bf16 v{VT+(r&3)}, v{VX+r}, s8, v{VT+(r&3)}")
            E(f"v_dot2_f32_bf16 v{VT+4+(r&3)}, v{VX+r}, v{VX+r}, v{VT+4+(r&3)}")
    E("s_nop 3")
    E(f"v_add_f32 v{VT}, v{VT}, v{VT+1}"); E(f"v_add_f32 v{VT+2}, v{VT+2}, v{VT+3}")
    E(f"v_add_f32 v{VT+4}, v{VT+4}, v{VT+5}"); E(f"v_add_f32 v{VT+6}, v{VT+6}, v{VT+7}")
    E(f"v_add_f32 v{VT}, v{VT}, v{VT+2}"); E(f"v_add_f32 v{VT+4}, v{VT+4}, v{VT+6}")
    E(f"v_mov_b32 v{VT+1}, v{VT}"); E(f"v_mov_b32 v{VT+5}, v{VT+4}")
    E("s_nop 1")
    E(f"v_permlane32_swap_b32 v{VT}, v{VT+1}"); E(f"v_permlane32_swap_b32 v{VT+4}, v{VT+5}")
    E("s_nop 1")
    E(f"v_add_f32 v{VT}, v{VT}, v{VT+1}"); E(f"v_add_f32 v{VT+4}, v{VT+4}, v{VT+5}")
    E(f"v_mul_f32 v{VT}, {f2u(1/512):#x}, v{VT}")
    E(f"v_mul_f32 v{VT+4}, {f2u(1/512):#x}, v{VT+4}")
    E(f"v_fma_f32 v{VT+4}, -v{VT}, v{VT}, v{VT+4}")
    E(f"v_max_f32 v{VT+4}, 0, v{VT+4}")
    E(f"v_add_f32 v{VT+4}, {f2u(1e-5):#x}, v{VT+4}")
    E(f"v_rsq_f32 v{VT+4}, v{VT+4}")
    E("s_nop 0")
    E(f"v_mul_f32 v{VT}, v{VT}, v{VT+4}")
    E(f"v_sub_f32 v{VT}, 0, v{VT}")
    if jit:
        E(f"v_mov_b32 v12, v{VT+4}"); E(f"v_mov_b32 v15, v{VT}"); return
    for r in range(128):
        if inter and r % 5 == 0:
            for x in inter.pop(0): E(x)
        a, b = VT + 8 + 2 * (r & 3), VT + 9 + 2 * (r & 3)
        E(f"v_lshlrev_b32 v{a}, 16, v{VX+r}"); E(f"v_and_b32 v{b}, 0xffff0000, v{VX+r}")
        E(f"v_fma_f32 v{a}, v{a}, v{VT+4}, v{VT}"); E(f"v_fma_f32 v{b}, v{b}, v{VT+4}, v{VT}")
        E(f"v_cvt_pk_bf16_f32 v{VX+r}, v{a}, v{b}")

def load_x(srdreg, ld, nsteps, base=VX):
    E("s_lshl_b32 s10, s3, 5"); E("s_add_u32 s10, s10, s9")
    E("v_add_u32 v9, s10, v3"); E(f"s_mov_b32 s4, {ld}"); E("v_mul_lo_u32 v8, v9, s4")
    E("v_lshlrev_b32 v5, 4, v4"); E("v_add_u32 v8, v8, v5")
    for s in range(nsteps):
        E(f"buffer_load_dwordx4 v[{base+4*s}:{base+4*s+3}], v8, s[{srdreg}:{srdreg+3}], 0 offen offset:{32*s}")
def wgmap(a=2):
    if a == 2:
        E("s_and_b32 s9, s2, 7"); E("s_lshl_b32 s9, s9, 1"); E("s_lshr_b32 s11, s2, 7"); E("s_add_u32 s9, s9, s11"); E("s_lshl_b32 s9, s9, 7")
        E("s_lshr_b32 s11, s2, 3"); E("s_and_b32 s11, s11, 15")
    else:
        E("s_bfe_u32 s9, s2, 0x20001"); E("s_lshl_b32 s9, s9, 2"); E("s_lshr_b32 s11, s2, 6"); E("s_add_u32 s9, s9, s11"); E("s_lshl_b32 s9, s9, 7")
        E("s_bfe_u32 s11, s2, 0x30003"); E("s_and_b32 s4, s2, 1"); E("s_lshl_b32 s4, s4, 3"); E("s_add_u32 s11, s11, s4")
def load_xt(srdreg, nsteps_total, nsteps, base=VX):
    E("s_lshl_b32 s10, s3, 5"); E("s_add_u32 s10, s10, s9"); E("v_add_u32 v9, s10, v3")
    E("s_lshr_b32 s4, s10, 5"); E(f"s_mul_i32 s4, s4, {nsteps_total*1024}")
    E("v_lshlrev_b32 v8, 4, v1"); E("v_add_u32 v8, s4, v8")
    for s in range(nsteps):
        if s % 4 == 0: E(f"s_mov_b32 s4, {1024*s}")
        E(f"buffer_load_dwordx4 v[{base+4*s}:{base+4*s+3}], v8, s[{srdreg}:{srdreg+3}], s4 offen offset:{1024*(s%4)}")
def pack(acc, dst):
    for i in range(8): E(f"v_cvt_pk_bf16_f32 v{dst+i}, v{acc+2*i}, v{acc+2*i+1}")

kernels = []
def k0():
    n = "k0_ln_kernel"; kernels.append((n, 256, 0)); prologue(n, 256)
    E("s_and_b32 s9, s2, 7"); E("s_lshl_b32 s9, s9, 8"); E("s_lshr_b32 s10, s2, 3"); E("s_lshl_b32 s10, s10, 3"); E("s_add_u32 s9, s9, s10")
    E("s_lshl_b32 s10, s3, 1"); E("s_add_u32 s9, s9, s10")
    srd(40, 16, 0, 2*MB); srd(44, 34, WS_XN, 2*MB)
    E("s_cmp_lg_u32 s2, 0"); E("s_cbranch_scc1 k0_nz")
    srd(52, 34, 20*MB, 16384)
    for i in range(4): E(f"v_mov_b32 v{40+i}, 0")
    E("v_lshlrev_b32 v5, 6, v0")
    for i in range(4): E(f"buffer_store_dwordx4 v[40:43], v5, s[52:55], 0 offen offset:{16*i}")
    L("k0_nz")
    E("s_lshl_b32 s10, s9, 10"); E("v_lshlrev_b32 v5, 4, v1")
    E("buffer_load_dwordx4 v[16:19], v5, s[40:43], s10 offen"); E("buffer_load_dwordx4 v[20:23], v5, s[40:43], s10 offen offset:1024")
    E("s_lshr_b32 s11, s9, 5"); E("s_lshl_b32 s11, s11, 15"); E("s_and_b32 s12, s9, 31"); E("s_lshl_b32 s12, s12, 4"); E("s_add_u32 s11, s11, s12")
    E("v_lshrrev_b32 v6, 1, v1"); E("v_lshlrev_b32 v6, 10, v6"); E("v_and_b32 v7, 1, v1"); E("v_lshlrev_b32 v7, 9, v7"); E("v_add_u32 v6, v6, v7")
    E("s_mov_b32 s8, 0x3f803f80")
    for q in range(4): E(f"v_mov_b32 v{24+q}, 0")
    if os.environ.get("PF", "1") == "1":
        E("s_lshl_b32 s12, s2, 12"); E("v_lshlrev_b32 v32, 4, v0"); E("v_add_u32 v32, s12, v32"); E("v_add_u32 v33, 0x100000, v32")
        k = 0
        for base, size in ((18, 512*3072), (20, 512*1024), (24, 512*2752), (26, 512*2752), (28, 1376*1024)):
            srd(48, base, 0, size)
            E(f"buffer_load_dwordx4 v[{36+4*k}:{39+4*k}], v32, s[48:51], 0 offen"); k += 1
            if size > MB: E(f"buffer_load_dwordx4 v[{36+4*k}:{39+4*k}], v33, s[48:51], 0 offen"); k += 1
        ntl = 0
        if os.environ.get("TLB", "0") == "1":
            E("v_lshlrev_b32 v33, 16, v1")
            srd(48, 34, 0, 24*MB)
            for i in range(6):
                E(f"s_mov_b32 s12, {4*MB*i}"); E(f"buffer_load_dword v{100+ntl}, v33, s[48:51], s12 offen"); ntl += 1
            for base, size in ((18, 512*3072), (20, 512*1024), (24, 512*2752), (26, 512*2752), (28, 1376*1024), (30, 2*MB)):
                srd(48, base, 0, size); E(f"buffer_load_dword v{100+ntl}, v33, s[48:51], 0 offen"); ntl += 1
        npf = int(os.environ.get("NPF", "0"))
        if npf:
            E("s_getpc_b64 s[60:61]"); L("k0_pc")
            E("v_lshlrev_b32 v34, 4, v0")
            for i in range(npf):
                E(f"global_load_dwordx4 v[{72+4*i}:{75+4*i}], v34, s[60:61]"); E("v_add_u32 v34, 0x1000, v34")
        E(f"s_waitcnt vmcnt({9+npf+ntl})")
    else:
        E("s_waitcnt vmcnt(0)")
    for r in range(2):
        for i in range(4):
            E(f"v_dot2_f32_bf16 v{24+2*r}, v{16+4*r+i}, s8, v{24+2*r}"); E(f"v_dot2_f32_bf16 v{25+2*r}, v{16+4*r+i}, v{16+4*r+i}, v{25+2*r}")
    E("s_nop 3")
    for off in (0x041F, 0x081F, 0x101F, 0x201F, 0x401F):
        for q in range(4): E(f"ds_swizzle_b32 v{28+q}, v{24+q} offset:{off:#x}")
        E("s_waitcnt lgkmcnt(0)")
        for q in range(4): E(f"v_add_f32 v{24+q}, v{24+q}, v{28+q}")
    for q in range(4): E(f"v_mov_b32 v{28+q}, v{24+q}")
    E("s_nop 1")
    for q in range(4): E(f"v_permlane32_swap_b32 v{24+q}, v{28+q}")
    E("s_nop 1")
    for q in range(4): E(f"v_add_f32 v{24+q}, v{24+q}, v{28+q}")
    for r in range(2):
        a, b = 24+2*r, 25+2*r
        E(f"v_mul_f32 v{a}, {f2u(1/512):#x}, v{a}"); E(f"v_mul_f32 v{b}, {f2u(1/512):#x}, v{b}")
        E(f"v_fma_f32 v{b}, -v{a}, v{a}, v{b}"); E(f"v_max_f32 v{b}, 0, v{b}"); E(f"v_add_f32 v{b}, {f2u(1e-5):#x}, v{b}")
        E(f"v_rsq_f32 v{b}, v{b}"); E("s_nop 0"); E(f"v_mul_f32 v{a}, v{a}, v{b}"); E(f"v_sub_f32 v{a}, 0, v{a}")
        for i in range(4):
            x = 16+4*r+i
            E(f"v_lshlrev_b32 v30, 16, v{x}"); E(f"v_and_b32 v31, 0xffff0000, v{x}")
            E(f"v_fma_f32 v30, v30, v{b}, v{a}"); E(f"v_fma_f32 v31, v31, v{b}, v{a}"); E(f"v_cvt_pk_bf16_f32 v{x}, v30, v31")
        E(f"buffer_store_dwordx4 v[{16+4*r}:{19+4*r}], v6, s[44:47], s11 offen offset:{16*r}")
    epilogue_end(n)

SC = " sc1"
def lanes():
    E("v_and_b32 v1, 63, v0"); E("v_and_b32 v3, 31, v0"); E("v_bfe_u32 v4, v0, 5, 1")
WS_CNT = 20*MB
def signal(n, idx):
    E("s_waitcnt vmcnt(0)"); E("s_barrier")
    E("s_cmp_lg_u32 s3, 0"); E(f"s_cbranch_scc1 {n}_sig{idx}")
    E("s_lshl_b32 s4, s9, 1"); E(f"s_add_u32 s4, s4, {idx*4096}")
    E("v_mov_b32 v5, 1"); E("v_mov_b32 v6, s4"); E("s_mov_b64 exec, 1")
    E("buffer_atomic_add v5, v6, s[56:59], 0 offen"); E("s_mov_b64 exec, -1")
    L(f"{n}_sig{idx}")
def wait(n, idx, back=0):
    E("s_cmp_lg_u32 s3, 0"); E(f"s_cbranch_scc1 {n}_wx{idx}")
    for b in range(back + 1):
        E("s_lshl_b32 s4, s9, 1"); E(f"s_sub_i32 s4, s4, {256*b}"); E("s_max_i32 s4, s4, 0"); E(f"s_add_u32 s4, s4, {idx*4096}")
        E("v_mov_b32 v6, s4"); E("s_mov_b32 s6, 0")
        L(f"{n}_w{idx}_{b}")
        E("buffer_load_dword v5, v6, s[56:59], 0 offen sc1"); E("s_waitcnt vmcnt(0)")
        E("v_readfirstlane_b32 s4, v5"); E("s_add_u32 s6, s6, 1"); E("s_cmp_ge_u32 s4, 16"); E(f"s_cbranch_scc1 {n}_wd{idx}_{b}")
        E("s_sleep 3"); E("s_cmp_lt_u32 s6, 0x4000"); E(f"s_cbranch_scc1 {n}_w{idx}_{b}")
        L(f"{n}_wd{idx}_{b}")
    L(f"{n}_wx{idx}")
    E("s_waitcnt vmcnt(0)"); E("s_barrier")
def load_xt2(srdreg, nsteps_total, nsteps, base=VX, sc=SC):
    E("s_lshr_b32 s4, s10, 5"); E(f"s_mul_i32 s4, s4, {nsteps_total*1024}")
    E("v_lshlrev_b32 v8, 4, v1"); E("v_add_u32 v8, s4, v8")
    for s in range(nsteps):
        if s % 4 == 0: E(f"s_mov_b32 s4, {1024*s}")
        E(f"buffer_load_dwordx4 v[{base+4*s}:{base+4*s+3}], v8, s[{srdreg}:{srdreg+3}], s4 offen offset:{1024*(s%4)}{sc}")
def issue(groups):
    for g in groups:
        for x in g: E(x)

def mega():
    global VW
    n = "km_block_kernel"; kernels.append((n, 256, 163840)); prologue(n, 256)
    stamp(n); wgmap(2)
    E("s_mov_b32 s61, s11")
    E("s_lshl_b32 s10, s3, 5"); E("s_add_u32 s10, s10, s9")
    srd(56, 34, WS_CNT, 16384)
    E("s_mul_i32 s11, s61, 3")
    srd(40, 34, WS_XN, 2*MB); srd(44, 18, 0, 512*3072); srd(48, 34, 0, 6*MB)
    srd(64, 24, 0, 512*2752); srd(68, 26, 0, 512*2752)
    E("s_lshl_b32 s62, s61, 6")
    E("s_mul_i32 s63, s61, 86"); E("s_and_b32 s63, s63, 0xfffffff0"); E("s_lshl_b32 s63, s63, 1")
    dma_setup(2752); E("v_mov_b32 v2, v7")
    slotof = {0: 3, 1: 4, 2: 1, 3: 2, 4: 0, 5: 3}
    def regl(r): return [[x.replace(" v7,", " v2,") for x in g] for g in dma_list(64 if r % 2 == 0 else 68, 63, 64*(r//2), slotof[r]*32768, 8, 2752)]
    p1pf = regl(0) + regl(1)
    dma_setup_w(3072)
    E("s_lshl_b32 s60, s11, 6")
    allw = dma_list_w(44, 60, 0, 0, 512, 3072)
    E("s_lshr_b32 s4, s10, 5"); E(f"s_mul_i32 s4, s4, {32*1024}"); E("v_lshlrev_b32 v8, 4, v1"); E("v_add_u32 v8, s4, v8")
    for c in range(4):
        issue(allw[6*c:6*c+6])
        for s in range(8*c, 8*c+8):
            if s % 4 == 0: E(f"s_mov_b32 s4, {1024*s}")
            E(f"buffer_load_dwordx4 v[{VX+4*s}:{VX+4*s+3}], v8, s[40:43], s4 offen offset:{1024*(s%4)}")
    E("v_add_u32 v9, s10, v3")
    w_addr(False, 10, 192); E("v_add_u32 v13, 0xc000, v10")
    E("v_lshlrev_b32 v11, 5, v9"); E("v_lshlrev_b32 v5, 4, v4"); E("v_add_u32 v11, v11, v5")
    E("v_bfe_u32 v12, v0, 4, 1"); E("v_lshlrev_b32 v12, 16, v12"); E("v_lshlrev_b32 v5, 8, v4"); E("v_add_u32 v12, v12, v5")
    E("v_and_b32 v5, 15, v0"); E("v_lshlrev_b32 v5, 4, v5"); E("v_add_u32 v12, v12, v5")
    E("s_lshl_b32 s13, s10, 5"); E("v_add_u32 v12, s13, v12")
    ACCJ = (176, 192, 208); PT = 224
    E("s_cmp_eq_u32 s61, 10"); E(f"s_cbranch_scc1 {n}_p1b"); E("s_cmp_gt_u32 s61, 10"); E(f"s_cbranch_scc1 {n}_p1c")
    for vn, sws in (("a", (False, False, False)), ("b", (False, False, True)), ("c", (True, True, True))):
        L(f"{n}_p1{vn}")
        npf = 0
        for c in range(4):
            E(f"s_waitcnt vmcnt({56 - 14*(c+1) + npf})"); E("s_barrier")
            items = []
            for s in range(8*c, 8*c+8):
                for j in range(3):
                    items.append(((10, 3072*s + 64*j) if s < 16 else (13, 3072*(s-16) + 64*j)) + (VX+4*s, ACCJ[j]))
            for i in mfma_items(items, False, lambda i: sws[i % 3], lambda i: c == 0 and i < 3, 192):
                if i % 3 == 1 and npf < 16: issue([p1pf[npf]]); npf += 1
        E("s_nop 15")
        for j, sw in enumerate(sws):
            E(f"s_add_u32 s12, s11, {j}"); pack(ACCJ[j], PT + 8*j); T_ = PT + 8*j
            if not sw:
                E("s_lshr_b32 s14, s12, 4"); E("s_lshl_b32 s14, s14, 21"); E("s_and_b32 s15, s12, 15"); E("s_lshl_b32 s15, s15, 17")
                E("s_add_u32 s14, s14, s15"); E("s_add_u32 s15, s14, 65536")
                E(f"buffer_store_dwordx4 v[{T_}:{T_+3}], v11, s[48:51], s14 offen{SC}")
                E(f"buffer_store_dwordx4 v[{T_+4}:{T_+7}], v11, s[48:51], s15 offen{SC}")
            else:
                E("s_sub_u32 s14, s12, 32"); E("s_lshl_b32 s14, s14, 17"); E(f"s_add_u32 s14, s14, {WS_V}")
                E(f"buffer_store_dwordx4 v[{T_}:{T_+3}], v12, s[48:51], s14 offen{SC}")
                E(f"buffer_store_dwordx4 v[{T_+4}:{T_+7}], v12, s[48:51], s14 offen offset:512{SC}")
        if vn != "c": E(f"s_branch {n}_p1e")
    L(f"{n}_p1e")
    stamp(n); signal(n, 0); stamp(n)
    srd(44, 20, 0, 512*1024)
    dma_setup(1024); issue(dma_list(44, 62, 0, 0, 8, 1024))
    E("v_mov_b32 v5, 0x3f803f80")
    for r in range(144): E(f"v_accvgpr_write_b32 a{80+r}, v5")
    wait(n, 0, 2); stamp(n); stamp(n, "p2")
    S, O, PK = 96, 240, 16
    srd(40, 34, WS_Q, 2*MB); srd(44, 34, WS_K - 8192, 2*MB + 8192); srd(48, 34, WS_V - 8192, 2*MB + 8192); srd(52, 34, WS_O, 2*MB)
    E("v_lshlrev_b32 v5, 2, v4"); E("v_sub_u32 v11, v3, v5")
    E("s_sub_i32 s15, 256, s10"); E("s_max_i32 s15, s15, 0")
    E("v_lshlrev_b32 v6, 4, v4")
    E("s_lshl_b32 s11, s61, 1")
    E("s_lshl_b32 s12, s11, 11"); E("s_add_u32 s12, s12, s10")
    E("v_add_u32 v5, s12, v3"); E("v_lshlrev_b32 v5, 5, v5"); E("v_add_u32 v8, v5, v6"); E("v_add_u32 v13, 0x10000, v8")
    E("s_lshl_b32 s14, s15, 5")
    E("v_and_b32 v5, 15, v0"); E("v_lshlrev_b32 v5, 4, v5"); E("v_lshlrev_b32 v9, 8, v4"); E("v_add_u32 v5, v5, v9")
    E("s_lshl_b32 s13, s11, 16"); E("s_lshl_b32 s12, s10, 5"); E("s_add_u32 s13, s13, s12"); E("v_add_u32 v9, s13, v5"); E("v_add_u32 v14, 0x10000, v9")
    E("s_mov_b32 s66x, 0") if False else None
    E("s_mov_b32 s72, 0x0000ffff"); E("s_mov_b32 s73, 0x0000ffff")
    def qk(hh):
        va = (8, 13)[hh]
        r = [[f"buffer_load_dwordx4 a[{72+4*hh}:{75+4*hh}], v{va}, s[40:43], 0 offen{SC}"]]
        for kb in range(9):
            r.append([f"s_max_u32 s12, s14, {kb*1024}", f"buffer_load_dwordx4 a[{36*hh+4*kb}:{36*hh+4*kb+3}], v{va}, s[44:47], s12 offen{SC}"])
        return r
    def vv(hh):
        return [["s_mov_b64 exec, s[72:73]", f"s_max_u32 s12, s14, {512*t}",
                 f"buffer_load_dwordx4 a[{80+72*hh+4*t}:{80+72*hh+4*t+3}], v{(9,14)[hh]}, s[48:51], s12 offen{SC}", "s_mov_b64 exec, -1"] for t in range(18)]
    issue(qk(0)); issue(vv(0))
    E("s_add_u32 s13, s10, s11"); E("s_lshl_b32 s13, s13, 10"); E("v_lshlrev_b32 v5, 4, v1"); E("v_add_u32 v10, s13, v5")
    stamp(n, "p2")
    for hh in range(2):
        pf = (qk(1) + vv(1)) if hh == 0 else (regl(2) + regl(3))
        npf0 = len(pf)
        E(f"v_mov_b32 v12, {f2u(-1e30):#x}")
        for kb in range(9):
            E(f"s_waitcnt vmcnt({(26-kb) if hh == 0 else (1 + 18 + 8 - kb)})")
            E(f"v_mfma_f32_32x32x16_bf16 v[{S+16*kb}:{S+16*kb+15}], a[{36*hh+4*kb}:{36*hh+4*kb+3}], a[{72+4*hh}:{75+4*hh}], 0")
        E("s_nop 7"); E("s_nop 3"); stamp(n, "p2")
        for kb in range(8):
            E(f"s_cmp_ge_u32 s10, {256-32*kb}"); E(f"s_cbranch_scc1 {n}_ok{hh}_{kb}")
            for i in range(16): E(f"v_mov_b32 v{S+16*kb+i}, v12")
            L(f"{n}_ok{hh}_{kb}")
        for i in range(16):
            c = 8*(i >> 2) + (i & 3)
            E(f"v_cmp_le_i32 vcc, {c}, v11"); E("s_nop 1")
            E(f"v_cndmask_b32 v{S+128+i}, v12, v{S+128+i}, vcc"); E(f"v_cndmask_b32 v{S+i}, v{S+i}, v12, vcc")
            if i % 3 == 2 and pf: issue([pf.pop(0)])
        for c in range(4): E(f"v_max_f32 v{PK+c}, v{S+c}, v{S+4+c}")
        for r in range(8, 144, 8):
            for c in range(4): E(f"v_max3_f32 v{PK+c}, v{PK+c}, v{S+r+c}, v{S+r+4+c}")
            if r % 24 == 0 and pf: issue([pf.pop(0)])
        E(f"v_max_f32 v{PK}, v{PK}, v{PK+1}"); E(f"v_max_f32 v{PK+2}, v{PK+2}, v{PK+3}"); E(f"v_max_f32 v12, v{PK}, v{PK+2}"); E("v_mov_b32 v15, v12")
        E("s_nop 1"); E("v_permlane32_swap_b32 v12, v15"); E("s_nop 1"); E("v_max_f32 v12, v12, v15")
        E(f"s_mov_b32 s13, {f2u(0.25*LOG2E):#x}"); E("v_mul_f32 v12, s13, v12"); stamp(n, "p2")
        for r in range(0, 144, 4):
            for c in range(4): E(f"v_fma_f32 v{S+r+c}, v{S+r+c}, s13, -v12")
            for c in range(4): E(f"v_exp_f32 v{S+r+c}, v{S+r+c}")
            if r >= 4:
                p = r - 4; d = S + 16*(p//16) + (p % 16)//2
                E(f"v_cvt_pk_bf16_f32 v{d}, v{S+p}, v{S+p+1}"); E(f"v_cvt_pk_bf16_f32 v{d+1}, v{S+p+2}, v{S+p+3}")
            if r % 8 == 0 and pf: issue([pf.pop(0)])
        p = 140; d = S + 16*(p//16) + (p % 16)//2
        E("s_nop 0"); E(f"v_cvt_pk_bf16_f32 v{d}, v{S+p}, v{S+p+1}"); E(f"v_cvt_pk_bf16_f32 v{d+1}, v{S+p+2}, v{S+p+3}")
        npf_left = len(pf)
        stamp(n, "p2")
        assert npf_left == 0
        E(f"s_waitcnt vmcnt({npf0 if hh == 0 else (1+npf0)})"); stamp(n, "p2")
        for t in range(18):
            if pf and t % 4 == 1: issue([pf.pop(0)])
            bb = S + 16*(t//2) + 4*(t % 2)
            E(f"v_mfma_f32_32x32x16_bf16 v[{O}:{O+15}], a[{80+72*hh+4*t}:{80+72*hh+4*t+3}], v[{bb}:{bb+3}], {'0' if t == 0 else f'v[{O}:{O+15}]'}")
        E("s_nop 15"); E(f"v_rcp_f32 v12, v{O+8}"); E("s_nop 0")
        for i in range(8): E(f"v_mul_f32 v{O+i}, v{O+i}, v12")
        for i in range(4): E(f"v_cvt_pk_bf16_f32 v{PK+i}, v{O+2*i}, v{O+2*i+1}")
        assert not pf
        E(f"buffer_store_dwordx4 v[{PK}:{PK+3}], v10, s[52:55], 0 offen offset:{1024*hh}{SC}")
        E("s_nop 1")
    stamp(n); signal(n, 1); stamp(n)
    srd(40, 34, WS_O, 2*MB); srd(48, 34, WS_H, 2*MB); srd(52, 16, 0, 2*MB)
    E("v_add_u32 v9, s10, v3")
    w_addr(True, 10)
    E("v_lshlrev_b32 v12, 10, v9"); E("v_lshlrev_b32 v5, 3, v4"); E("v_add_u32 v12, v12, v5"); E("s_lshl_b32 s13, s61, 11")
    for q in range(4): E(f"buffer_load_dwordx2 v[{VT+8+2*q}:{VT+9+2*q}], v12, s[52:55], s62 offen offset:{16*q}")
    wait(n, 1); stamp(n)
    load_xt2(40, 32, 32)
    E("s_waitcnt vmcnt(0)"); E("s_barrier")
    items = [(10, 1024*s, VX+4*s, ACC0) for s in range(32)]
    for _ in mfma_items(items, True, lambda i: False, lambda i: i == 0): pass
    E("s_nop 15")
    for i in range(8):
        E(f"v_lshlrev_b32 v5, 16, v{VT+8+i}"); E(f"v_and_b32 v6, 0xffff0000, v{VT+8+i}")
        E(f"v_add_f32 v{ACC0+2*i}, v{ACC0+2*i}, v5"); E(f"v_add_f32 v{ACC0+2*i+1}, v{ACC0+2*i+1}, v6")
    pack(ACC0, VT)
    E(f"buffer_store_dwordx4 v[{VT}:{VT+3}], v8, s[48:51], s13 offen{SC}")
    E(f"buffer_store_dwordx4 v[{VT+4}:{VT+7}], v8, s[48:51], s13 offen offset:1024{SC}")
    stamp(n); signal(n, 2); stamp(n)
    issue(regl(4))
    wait(n, 2); stamp(n)
    srd(40, 34, WS_H, 2*MB); srd(52, 34, WS_HH, 2048*2752)
    load_xt2(40, 32, 32)
    E("s_lshr_b32 s4, s10, 5"); E(f"s_mul_i32 s4, s4, {86*1024}"); E("v_lshlrev_b32 v11, 4, v1"); E("v_add_u32 v11, s4, v11")
    ln_regs(0, [], True)
    E(f"s_mov_b32 s13, {f2u(-LOG2E):#x}")
    E("s_barrier")
    def norm(s):
        r = []
        for q in range(4):
            x = VX + 4*s + q; a_, b_ = 240 + 2*q, 241 + 2*q
            r += [f"v_lshlrev_b32 v{a_}, 16, v{x}", f"v_and_b32 v{b_}, 0xffff0000, v{x}"]
        for q in range(4):
            a_, b_ = 240 + 2*q, 241 + 2*q
            r += [f"v_fma_f32 v{a_}, v{a_}, v12, v15", f"v_fma_f32 v{b_}, v{b_}, v12, v15"]
        for q in range(4):
            r += [f"v_cvt_pk_bf16_f32 v{VX+4*s+q}, v{240+2*q}, v{241+2*q}"]
        return r
    def epi(j, G, U):
        r = []
        for i in range(16): r.append(f"v_mul_f32 v{G+i}, s13, v{G+i}")
        for i in range(16): r.append(f"v_exp_f32 v{G+i}, v{G+i}")
        for i in range(16): r.append(f"v_add_f32 v{G+i}, 1.0, v{G+i}")
        for i in range(16): r.append(f"v_rcp_f32 v{G+i}, v{G+i}")
        for i in range(16): r.append(f"v_mul_f32 v{G+i}, v{G+i}, v{U+i}")
        for i in range(8): r.append(f"v_cvt_pk_bf16_f32 v{248+i}, v{G+2*i}, v{G+2*i+1}")
        r += [f"s_add_u32 s12, s63, {64*j}", "s_lshl_b32 s12, s12, 5",
              f"buffer_store_dwordx4 v[248:251], v11, s[52:55], s12 offen{SC}",
              f"buffer_store_dwordx4 v[252:255], v11, s[52:55], s12 offen offset:1024{SC}"]
        return r
    for x in norm(0) + norm(1): E(x)
    fill = []
    srd(44, 28, 0, 1376*1024); dma_setup(1024)
    w5 = dma_list(44, 62, 0, 32768, 16, 1024) + dma_list(44, 62, 1024*1024, 131072, 6, 1024)
    for j in range(3):
        G, U = (176, 192) if j % 2 == 0 else (208, 224)
        sg, su = slotof[2*j]*32768, slotof[2*j+1]*32768
        E(f"v_add_u32 v13, {sg}, v10"); E(f"v_add_u32 v14, {su}, v10")
        items = []
        for s in range(32): items += [(13, 1024*s, VX+4*s, G), (14, 1024*s, VX+4*s, U)]
        for i in mfma_items(items, True, lambda i: False, lambda i: i < 2):
            if j == 0 and i % 2 == 1 and i//2 + 2 < 32:
                for x in norm(i//2 + 2): E(x)
            if j > 0 and i >= 4:
                for _ in range(2):
                    if fill: E(fill.pop(0))
            if j == 2 and i >= 2 and i % 2 == 0 and w5: issue([w5.pop(0)])
        assert not fill
        if j == 0: E("s_barrier"); issue(regl(5))
        if j == 1: E("s_waitcnt vmcnt(2)"); E("s_barrier")
        fill = epi(j, G, U)
    E("s_nop 15")
    for x in fill: E(x)
    stamp(n); signal(n, 3); stamp(n)
    NX = 44; X = 56; oldVW = VW; VW = 16; A = 232; T = 48
    assert not w5
    wait(n, 3); stamp(n)
    srd(40, 34, WS_HH, 2048*2752); srd(48, 34, WS_H, 2*MB); srd(52, 30, 0, 2*MB)
    load_xt2(40, 86, NX, X)
    E("v_add_u32 v13, 0x8000, v10"); E("v_add_u32 v14, 0x20000, v10"); E("v_add_u32 v9, s10, v3")
    E("v_lshlrev_b32 v12, 10, v9"); E("v_lshlrev_b32 v5, 3, v4"); E("v_add_u32 v12, v12, v5")
    E("s_lshl_b32 s13, s10, 10"); E("s_lshl_b32 s14, s61, 11"); E("s_add_u32 s13, s13, s14"); E("v_lshlrev_b32 v11, 4, v1")
    E(f"buffer_load_dwordx4 v[248:251], v11, s[48:51], s13 offen{SC}"); E(f"buffer_load_dwordx4 v[252:255], v11, s[48:51], s13 offen offset:1024{SC}")
    E("s_waitcnt vmcnt(45)")
    items = [((13, 1024*s) if s < 64 else (14, 1024*(s-64))) + (X+4*(s % NX), A) for s in range(86)]
    for i in mfma_items(items, True, lambda i: False, lambda i: i == 0):
        if i + NX < 86:
            s = i + NX; E(f"s_mov_b32 s4, {1024*s}"); E(f"buffer_load_dwordx4 v[{X+4*i}:{X+4*i+3}], v8, s[40:43], s4 offen{SC}")
        if i + 1 < 86: E(f"s_waitcnt vmcnt({(45 if i + 1 <= 42 else 44) if i + 1 < NX else 85-(i+1)})")
    VW = oldVW
    E("s_nop 15")
    for i in range(8):
        E(f"v_lshlrev_b32 v5, 16, v{248+i}"); E(f"v_and_b32 v6, 0xffff0000, v{248+i}")
        E(f"v_add_f32 v{A+2*i}, v{A+2*i}, v5"); E(f"v_add_f32 v{A+2*i+1}, v{A+2*i+1}, v6")
    pack(A, T)
    for q in range(4): E(f"buffer_store_dwordx2 v[{T+2*q}:{T+2*q+1}], v12, s[52:55], s62 offen offset:{16*q}")
    epilogue_end(n)

k0(); mega()
hdr = open("cdna_kernels/" + NAME + ".s.ref").read().split("\n")
head = [l for l in hdr if l.startswith(";") and "@launch" not in l and "Override" not in l and "grid=ceil" not in l]
import os
dup = int(os.environ.get("DUP", "-1"))
ll = []
for idx, (k, g, l) in enumerate(kernels):
    ll += [f"; @launch kernel={k} grid=({g},1,1) block=(256,1,1) lds={l}"] * (5 if idx == dup else 1)
if dup == 99: ll = ll + ll
if STAMPK:
    ll = ll + [x for x in ll if STAMPK in x]
txt = head + ll
txt += ['.amdgcn_target "amdgcn-amd-amdhsa--gfx950"', ".text"] + out + ['.section .rodata,"a"']
for k, g, l in kernels:
    txt += [".p2align 6", f".amdhsa_kernel {k}", f"  .amdhsa_next_free_vgpr {512 if k.startswith('km') else 256}", "  .amdhsa_next_free_sgpr 102", "  .amdhsa_accum_offset 256",
            "  .amdhsa_group_segment_fixed_size 0", "  .amdhsa_kernarg_size 80", "  .amdhsa_user_sgpr_count 2",
            "  .amdhsa_user_sgpr_kernarg_segment_ptr 1", "  .amdhsa_system_sgpr_workgroup_id_x 1", ".end_amdhsa_kernel"]
open(os.environ.get("OUT", "cdna_kernels/" + NAME + ".s"), "w").write("\n".join(txt) + "\n")
```

```python
import sys, os
NAME = "sequential_preLN__sliding_block__glu_gated_glu__prompt"
out = []
def E(s): out.append("    " + s)
def L(s): out.append(s + ":")
MB = 1 << 20
WS_Q, WS_K, WS_V, WS_O, WS_H, WS_HH = 0, 2*MB, 4*MB, 6*MB, 8*MB, 10*MB
WS_XN = 16*MB
LOG2E = 1.4426950408889634
import struct
def f2u(f): return struct.unpack("<I", struct.pack("<f", f))[0]

def prologue(name, nwg):
    out.append(".p2align 8"); out.append(f".globl {name}"); out.append(f".type {name},@function"); L(name)
    E(f"s_cmp_ge_u32 s2, {nwg}"); E(f"s_cbranch_scc1 {name}_done")
    E("s_load_dwordx16 s[16:31], s[0:1], 0"); E("s_load_dwordx4 s[32:35], s[0:1], 64")
    E("v_and_b32 v1, 63, v0")
    E("v_lshrrev_b32 v2, 6, v0")
    E("v_and_b32 v3, 31, v0")
    E("v_readfirstlane_b32 s3, v2")
    E("v_bfe_u32 v4, v0, 5, 1")
    E("s_waitcnt lgkmcnt(0)")
STAMPK = os.environ.get("STAMP", "")
nst = [0]
def stamp(name, tag=""):
    if name != STAMPK: return
    if tag != os.environ.get("STAG", "") and nst[0] > 0 and tag != "end": return
    E("s_memtime s[74:75]"); E("s_waitcnt lgkmcnt(0)"); E(f"s_mov_b32 s{76+nst[0]}, s74"); nst[0] += 1
def epilogue_end(name):
    if name == STAMPK:
        stamp(name, "end")
        srd(40, 32, 0, 256)
        E("s_cmp_lg_u32 s2, 8"); E(f"s_cbranch_scc1 {name}_done"); E("s_cmp_lg_u32 s3, 0"); E(f"s_cbranch_scc1 {name}_done")
        srd(40, 32, 0, 256)
        for i in range(nst[0]):
            E(f"s_sub_u32 s4, s{76+i}, s76"); E("v_mov_b32 v5, s4"); E(f"v_mov_b32 v6, {4*i}"); E("buffer_store_dword v5, v6, s[40:43], 0 offen")
    L(f"{name}_done"); E("s_endpgm")
def srd(d, base, off, size):
    if off >= 0:
        E(f"s_add_u32 s{d}, s{base}, {off}"); E(f"s_addc_u32 s{d+1}, s{base+1}, 0")
    else:
        E(f"s_sub_u32 s{d}, s{base}, {-off}"); E(f"s_subb_u32 s{d+1}, s{base+1}, 0")
    E(f"s_mov_b32 s{d+2}, {size}"); E(f"s_mov_b32 s{d+3}, 0x00020000")

VX, VW, ACC0, ACC1, VT = 16, 144, 176, 192, 208

def w_addr(perm, vdst, RB=64):
    E("v_bfe_u32 v5, v0, 2, 2")
    E(f"v_lshlrev_b32 v6, {2 if perm else 3}, v4")
    E("v_add_u32 v5, v5, v6")
    E(f"v_mul_u32_u24 v5, {RB}, v5")
    E("v_bfe_u32 v6, v0, 4, 1")
    E("v_lshlrev_b32 v6, 5, v6")
    E("v_add_u32 v5, v5, v6")
    E("v_and_b32 v6, 3, v0")
    E("v_lshlrev_b32 v6, 3, v6")
    E(f"v_add_u32 v{vdst}, v5, v6")

def dma_setup(ldw):
    E("v_lshrrev_b32 v5, 2, v0"); E(f"s_mov_b32 s4, {ldw}"); E("v_mul_lo_u32 v5, v5, s4")
    E("v_and_b32 v6, 3, v0"); E("v_lshlrev_b32 v6, 4, v6"); E("v_add_u32 v7, v5, v6")
    E("s_lshl_b32 s5, s3, 10")
def dma_region(srdreg, scol, ldsbase, nj, ldw):
    E(f"s_mov_b32 s6, s{scol}"); E(f"s_add_u32 s7, s5, {ldsbase}")
    for j in range(nj):
        E("s_mov_b32 m0, s7");
        if j + 1 < nj: E("s_add_u32 s7, s7, 4096")
        else: E("s_nop 0")
        E(f"buffer_load_dwordx4 v7, s[{srdreg}:{srdreg+3}], s6 offen lds")
        if j + 1 < nj: E(f"s_add_u32 s6, s6, {64*ldw}")

def dma_list(srdreg, scolreg, coladd, ldsbase, nj, ldw):
    r = []
    for j in range(nj):
        r.append([f"s_add_u32 s6, s{scolreg}, {coladd + j*64*ldw}", f"s_add_u32 m0, s5, {ldsbase + j*4096}", "s_nop 0",
                  f"buffer_load_dwordx4 v7, s[{srdreg}:{srdreg+3}], s6 offen lds"])
    return r
def dma_setup_w(ldw):
    E("s_lshl_b32 s5, s3, 10"); E("s_mov_b32 s4, 0xAAAB"); E(f"s_mov_b32 s6, {ldw}")
    for t, vr in enumerate((7, 14, 15)):
        E(f"v_add_u32 v5, {256*t}, v0"); E("v_mul_lo_u32 v6, v5, s4"); E("v_lshrrev_b32 v6, 19, v6")
        E("v_mul_u32_u24 v9, 12, v6"); E("v_sub_u32 v5, v5, v9"); E("v_lshlrev_b32 v5, 4, v5")
        E("v_mul_lo_u32 v6, v6, s6"); E(f"v_add_u32 v{vr}, v5, v6")
def dma_list_w(srdreg, scolreg, ldsbase, row0, nrows, ldw):
    r = []
    for j in range(nrows*12//256):
        r.append([f"s_add_u32 s6, s{scolreg}, {(row0 + (j//3)*64)*ldw}", f"s_add_u32 m0, s5, {ldsbase + j*4096}", "s_nop 0",
                  f"buffer_load_dwordx4 v{(7,14,15)[j%3]}, s[{srdreg}:{srdreg+3}], s6 offen lds"])
    return r
def mfma_items(items, perm, swap_of, first_of, RB=64):
    d2 = 8*RB if perm else 4*RB
    n = len(items); D = 6
    def rd(i):
        va, off, _, _ = items[i]; w = VW + 4 * (i % 8)
        E(f"ds_read_b64_tr_b16 v[{w}:{w+1}], v{va} offset:{off}")
        E(f"ds_read_b64_tr_b16 v[{w+2}:{w+3}], v{va} offset:{off+d2}")
    for i in range(min(D, n)): rd(i)
    for i in range(n):
        va, off, x, acc = items[i][:4]; w = VW + 4 * (i % 8)
        E(f"s_waitcnt lgkmcnt({2*(min(i+D-1, n-1)-i)})")
        c = "0" if first_of(i) else f"v[{acc}:{acc+15}]"
        if swap_of(i): E(f"v_mfma_f32_32x32x16_bf16 v[{acc}:{acc+15}], v[{x}:{x+3}], v[{w}:{w+3}], {c}")
        else:          E(f"v_mfma_f32_32x32x16_bf16 v[{acc}:{acc+15}], v[{w}:{w+3}], v[{x}:{x+3}], {c}")
        if i + D < n: rd(i + D)
        yield i

def ln_regs(ndma, inter=[], jit=False):
    E("s_mov_b32 s8, 0x3f803f80")
    for q in range(4): E(f"v_mov_b32 v{VT+q}, 0"); E(f"v_mov_b32 v{VT+4+q}, 0")
    inter = list(inter); nd = 0
    for g in range(4):
        E(f"s_waitcnt vmcnt({min(63, 24-8*g+nd)})")
        for r in range(32*g, 32*g+32):
            if inter and r % 8 == 4:
                for x in inter.pop(0): E(x)
                nd += 1
            E(f"v_dot2_f32_bf16 v{VT+(r&3)}, v{VX+r}, s8, v{VT+(r&3)}")
            E(f"v_dot2_f32_bf16 v{VT+4+(r&3)}, v{VX+r}, v{VX+r}, v{VT+4+(r&3)}")
    E("s_nop 3")
    E(f"v_add_f32 v{VT}, v{VT}, v{VT+1}"); E(f"v_add_f32 v{VT+2}, v{VT+2}, v{VT+3}")
    E(f"v_add_f32 v{VT+4}, v{VT+4}, v{VT+5}"); E(f"v_add_f32 v{VT+6}, v{VT+6}, v{VT+7}")
    E(f"v_add_f32 v{VT}, v{VT}, v{VT+2}"); E(f"v_add_f32 v{VT+4}, v{VT+4}, v{VT+6}")
    E(f"v_mov_b32 v{VT+1}, v{VT}"); E(f"v_mov_b32 v{VT+5}, v{VT+4}")
    E("s_nop 1")
    E(f"v_permlane32_swap_b32 v{VT}, v{VT+1}"); E(f"v_permlane32_swap_b32 v{VT+4}, v{VT+5}")
    E("s_nop 1")
    E(f"v_add_f32 v{VT}, v{VT}, v{VT+1}"); E(f"v_add_f32 v{VT+4}, v{VT+4}, v{VT+5}")
    E(f"v_mul_f32 v{VT}, {f2u(1/512):#x}, v{VT}")
    E(f"v_mul_f32 v{VT+4}, {f2u(1/512):#x}, v{VT+4}")
    E(f"v_fma_f32 v{VT+4}, -v{VT}, v{VT}, v{VT+4}")
    E(f"v_max_f32 v{VT+4}, 0, v{VT+4}")
    E(f"v_add_f32 v{VT+4}, {f2u(1e-5):#x}, v{VT+4}")
    E(f"v_rsq_f32 v{VT+4}, v{VT+4}")
    E("s_nop 0")
    E(f"v_mul_f32 v{VT}, v{VT}, v{VT+4}")
    E(f"v_sub_f32 v{VT}, 0, v{VT}")
    if jit:
        E(f"v_mov_b32 v12, v{VT+4}"); E(f"v_mov_b32 v15, v{VT}"); return
    for r in range(128):
        if inter and r % 5 == 0:
            for x in inter.pop(0): E(x)
        a, b = VT + 8 + 2 * (r & 3), VT + 9 + 2 * (r & 3)
        E(f"v_lshlrev_b32 v{a}, 16, v{VX+r}"); E(f"v_and_b32 v{b}, 0xffff0000, v{VX+r}")
        E(f"v_fma_f32 v{a}, v{a}, v{VT+4}, v{VT}"); E(f"v_fma_f32 v{b}, v{b}, v{VT+4}, v{VT}")
        E(f"v_cvt_pk_bf16_f32 v{VX+r}, v{a}, v{b}")

def load_x(srdreg, ld, nsteps, base=VX):
    E("s_lshl_b32 s10, s3, 5"); E("s_add_u32 s10, s10, s9")
    E("v_add_u32 v9, s10, v3"); E(f"s_mov_b32 s4, {ld}"); E("v_mul_lo_u32 v8, v9, s4")
    E("v_lshlrev_b32 v5, 4, v4"); E("v_add_u32 v8, v8, v5")
    for s in range(nsteps):
        E(f"buffer_load_dwordx4 v[{base+4*s}:{base+4*s+3}], v8, s[{srdreg}:{srdreg+3}], 0 offen offset:{32*s}")
def wgmap(a=2):
    if a == 2:
        E("s_and_b32 s9, s2, 7"); E("s_lshl_b32 s9, s9, 1"); E("s_lshr_b32 s11, s2, 7"); E("s_add_u32 s9, s9, s11"); E("s_lshl_b32 s9, s9, 7")
        E("s_lshr_b32 s11, s2, 3"); E("s_and_b32 s11, s11, 15")
    else:
        E("s_bfe_u32 s9, s2, 0x20001"); E("s_lshl_b32 s9, s9, 2"); E("s_lshr_b32 s11, s2, 6"); E("s_add_u32 s9, s9, s11"); E("s_lshl_b32 s9, s9, 7")
        E("s_bfe_u32 s11, s2, 0x30003"); E("s_and_b32 s4, s2, 1"); E("s_lshl_b32 s4, s4, 3"); E("s_add_u32 s11, s11, s4")
def load_xt(srdreg, nsteps_total, nsteps, base=VX):
    E("s_lshl_b32 s10, s3, 5"); E("s_add_u32 s10, s10, s9"); E("v_add_u32 v9, s10, v3")
    E("s_lshr_b32 s4, s10, 5"); E(f"s_mul_i32 s4, s4, {nsteps_total*1024}")
    E("v_lshlrev_b32 v8, 4, v1"); E("v_add_u32 v8, s4, v8")
    for s in range(nsteps):
        if s % 4 == 0: E(f"s_mov_b32 s4, {1024*s}")
        E(f"buffer_load_dwordx4 v[{base+4*s}:{base+4*s+3}], v8, s[{srdreg}:{srdreg+3}], s4 offen offset:{1024*(s%4)}")
def pack(acc, dst):
    for i in range(8): E(f"v_cvt_pk_bf16_f32 v{dst+i}, v{acc+2*i}, v{acc+2*i+1}")

kernels = []
def k0():
    n = "k0_ln_kernel"; kernels.append((n, 256, 0)); prologue(n, 256)
    E("s_and_b32 s9, s2, 7"); E("s_lshl_b32 s9, s9, 8"); E("s_lshr_b32 s10, s2, 3"); E("s_lshl_b32 s10, s10, 3"); E("s_add_u32 s9, s9, s10")
    E("s_lshl_b32 s10, s3, 1"); E("s_add_u32 s9, s9, s10")
    srd(40, 16, 0, 2*MB); srd(44, 34, WS_XN, 2*MB)
    E("s_cmp_lg_u32 s2, 0"); E("s_cbranch_scc1 k0_nz")
    srd(52, 34, 20*MB, 16384)
    for i in range(4): E(f"v_mov_b32 v{40+i}, 0")
    E("v_lshlrev_b32 v5, 6, v0")
    for i in range(4): E(f"buffer_store_dwordx4 v[40:43], v5, s[52:55], 0 offen offset:{16*i}")
    L("k0_nz")
    E("s_lshl_b32 s10, s9, 10"); E("v_lshlrev_b32 v5, 4, v1")
    E("buffer_load_dwordx4 v[16:19], v5, s[40:43], s10 offen"); E("buffer_load_dwordx4 v[20:23], v5, s[40:43], s10 offen offset:1024")
    E("s_lshr_b32 s11, s9, 5"); E("s_lshl_b32 s11, s11, 15"); E("s_and_b32 s12, s9, 31"); E("s_lshl_b32 s12, s12, 4"); E("s_add_u32 s11, s11, s12")
    E("v_lshrrev_b32 v6, 1, v1"); E("v_lshlrev_b32 v6, 10, v6"); E("v_and_b32 v7, 1, v1"); E("v_lshlrev_b32 v7, 9, v7"); E("v_add_u32 v6, v6, v7")
    E("s_mov_b32 s8, 0x3f803f80")
    for q in range(4): E(f"v_mov_b32 v{24+q}, 0")
    if os.environ.get("PF", "1") == "1":
        E("s_lshl_b32 s12, s2, 12"); E("v_lshlrev_b32 v32, 4, v0"); E("v_add_u32 v32, s12, v32"); E("v_add_u32 v33, 0x100000, v32")
        k = 0
        for base, size in ((18, 512*3072), (20, 512*1024), (24, 512*2752), (26, 512*2752), (28, 1376*1024)):
            srd(48, base, 0, size)
            E(f"buffer_load_dwordx4 v[{36+4*k}:{39+4*k}], v32, s[48:51], 0 offen"); k += 1
            if size > MB: E(f"buffer_load_dwordx4 v[{36+4*k}:{39+4*k}], v33, s[48:51], 0 offen"); k += 1
        ntl = 0
        if os.environ.get("TLB", "0") == "1":
            E("v_lshlrev_b32 v33, 16, v1")
            srd(48, 34, 0, 24*MB)
            for i in range(6):
                E(f"s_mov_b32 s12, {4*MB*i}"); E(f"buffer_load_dword v{100+ntl}, v33, s[48:51], s12 offen"); ntl += 1
            for base, size in ((18, 512*3072), (20, 512*1024), (24, 512*2752), (26, 512*2752), (28, 1376*1024), (30, 2*MB)):
                srd(48, base, 0, size); E(f"buffer_load_dword v{100+ntl}, v33, s[48:51], 0 offen"); ntl += 1
        npf = int(os.environ.get("NPF", "0"))
        if npf:
            E("s_getpc_b64 s[60:61]"); L("k0_pc")
            E("v_lshlrev_b32 v34, 4, v0")
            for i in range(npf):
                E(f"global_load_dwordx4 v[{72+4*i}:{75+4*i}], v34, s[60:61]"); E("v_add_u32 v34, 0x1000, v34")
        E(f"s_waitcnt vmcnt({9+npf+ntl})")
    else:
        E("s_waitcnt vmcnt(0)")
    for r in range(2):
        for i in range(4):
            E(f"v_dot2_f32_bf16 v{24+2*r}, v{16+4*r+i}, s8, v{24+2*r}"); E(f"v_dot2_f32_bf16 v{25+2*r}, v{16+4*r+i}, v{16+4*r+i}, v{25+2*r}")
    E("s_nop 3")
    for off in (0x041F, 0x081F, 0x101F, 0x201F, 0x401F):
        for q in range(4): E(f"ds_swizzle_b32 v{28+q}, v{24+q} offset:{off:#x}")
        E("s_waitcnt lgkmcnt(0)")
        for q in range(4): E(f"v_add_f32 v{24+q}, v{24+q}, v{28+q}")
    for q in range(4): E(f"v_mov_b32 v{28+q}, v{24+q}")
    E("s_nop 1")
    for q in range(4): E(f"v_permlane32_swap_b32 v{24+q}, v{28+q}")
    E("s_nop 1")
    for q in range(4): E(f"v_add_f32 v{24+q}, v{24+q}, v{28+q}")
    for r in range(2):
        a, b = 24+2*r, 25+2*r
        E(f"v_mul_f32 v{a}, {f2u(1/512):#x}, v{a}"); E(f"v_mul_f32 v{b}, {f2u(1/512):#x}, v{b}")
        E(f"v_fma_f32 v{b}, -v{a}, v{a}, v{b}"); E(f"v_max_f32 v{b}, 0, v{b}"); E(f"v_add_f32 v{b}, {f2u(1e-5):#x}, v{b}")
        E(f"v_rsq_f32 v{b}, v{b}"); E("s_nop 0"); E(f"v_mul_f32 v{a}, v{a}, v{b}"); E(f"v_sub_f32 v{a}, 0, v{a}")
        for i in range(4):
            x = 16+4*r+i
            E(f"v_lshlrev_b32 v30, 16, v{x}"); E(f"v_and_b32 v31, 0xffff0000, v{x}")
            E(f"v_fma_f32 v30, v30, v{b}, v{a}"); E(f"v_fma_f32 v31, v31, v{b}, v{a}"); E(f"v_cvt_pk_bf16_f32 v{x}, v30, v31")
        E(f"buffer_store_dwordx4 v[{16+4*r}:{19+4*r}], v6, s[44:47], s11 offen offset:{16*r}")
    epilogue_end(n)

SC = " sc1"
def lanes():
    E("v_and_b32 v1, 63, v0"); E("v_and_b32 v3, 31, v0"); E("v_bfe_u32 v4, v0, 5, 1")
WS_CNT = 20*MB
def signal(n, idx):
    E("s_waitcnt vmcnt(0)"); E("s_barrier")
    E("s_cmp_lg_u32 s3, 0"); E(f"s_cbranch_scc1 {n}_sig{idx}")
    E("s_lshl_b32 s4, s9, 1"); E(f"s_add_u32 s4, s4, {idx*4096}")
    E("v_mov_b32 v5, 1"); E("v_mov_b32 v6, s4"); E("s_mov_b64 exec, 1")
    E("buffer_atomic_add v5, v6, s[56:59], 0 offen"); E("s_mov_b64 exec, -1")
    L(f"{n}_sig{idx}")
def wait(n, idx, back=0):
    E("s_cmp_lg_u32 s3, 0"); E(f"s_cbranch_scc1 {n}_wx{idx}")
    for b in range(back + 1):
        E("s_lshl_b32 s4, s9, 1"); E(f"s_sub_i32 s4, s4, {256*b}"); E("s_max_i32 s4, s4, 0"); E(f"s_add_u32 s4, s4, {idx*4096}")
        E("v_mov_b32 v6, s4"); E("s_mov_b32 s6, 0")
        L(f"{n}_w{idx}_{b}")
        E("buffer_load_dword v5, v6, s[56:59], 0 offen sc1"); E("s_waitcnt vmcnt(0)")
        E("v_readfirstlane_b32 s4, v5"); E("s_add_u32 s6, s6, 1"); E("s_cmp_ge_u32 s4, 16"); E(f"s_cbranch_scc1 {n}_wd{idx}_{b}")
        E("s_sleep 3"); E("s_cmp_lt_u32 s6, 0x4000"); E(f"s_cbranch_scc1 {n}_w{idx}_{b}")
        L(f"{n}_wd{idx}_{b}")
    L(f"{n}_wx{idx}")
    E("s_waitcnt vmcnt(0)"); E("s_barrier")
def load_xt2(srdreg, nsteps_total, nsteps, base=VX, sc=SC):
    E("s_lshr_b32 s4, s10, 5"); E(f"s_mul_i32 s4, s4, {nsteps_total*1024}")
    E("v_lshlrev_b32 v8, 4, v1"); E("v_add_u32 v8, s4, v8")
    for s in range(nsteps):
        if s % 4 == 0: E(f"s_mov_b32 s4, {1024*s}")
        E(f"buffer_load_dwordx4 v[{base+4*s}:{base+4*s+3}], v8, s[{srdreg}:{srdreg+3}], s4 offen offset:{1024*(s%4)}{sc}")
def issue(groups):
    for g in groups:
        for x in g: E(x)

def mega():
    global VW
    n = "km_block_kernel"; kernels.append((n, 256, 163840)); prologue(n, 256)
    stamp(n); wgmap(2)
    E("s_mov_b32 s61, s11")
    E("s_lshl_b32 s10, s3, 5"); E("s_add_u32 s10, s10, s9")
    srd(56, 34, WS_CNT, 16384)
    E("s_mul_i32 s11, s61, 3")
    srd(40, 34, WS_XN, 2*MB); srd(44, 18, 0, 512*3072); srd(48, 34, 0, 6*MB)
    srd(64, 24, 0, 512*2752); srd(68, 26, 0, 512*2752)
    E("s_lshl_b32 s62, s61, 6")
    E("s_mul_i32 s63, s61, 86"); E("s_and_b32 s63, s63, 0xfffffff0"); E("s_lshl_b32 s63, s63, 1")
    dma_setup(2752); E("v_mov_b32 v2, v7")
    slotof = {0: 3, 1: 4, 2: 1, 3: 2, 4: 0, 5: 3}
    def regl(r): return [[x.replace(" v7,", " v2,") for x in g] for g in dma_list(64 if r % 2 == 0 else 68, 63, 64*(r//2), slotof[r]*32768, 8, 2752)]
    p1pf = regl(0) + regl(1)
    dma_setup_w(3072)
    E("s_lshl_b32 s60, s11, 6")
    allw = dma_list_w(44, 60, 0, 0, 512, 3072)
    E("s_lshr_b32 s4, s10, 5"); E(f"s_mul_i32 s4, s4, {32*1024}"); E("v_lshlrev_b32 v8, 4, v1"); E("v_add_u32 v8, s4, v8")
    def chunk(c):
        r = list(allw[6*c:6*c+6])
        for s_ in range(8*c, 8*c+8):
            r.append([f"s_mov_b32 s4, {1024*(s_ & ~3)}", f"buffer_load_dwordx4 v[{VX+4*s_}:{VX+4*s_+3}], v8, s[40:43], s4 offen offset:{1024*(s_%4)}"])
        return r
    issue(chunk(0) + chunk(1))
    E("v_add_u32 v9, s10, v3")
    w_addr(False, 10, 192); E("v_add_u32 v13, 0xc000, v10")
    E("v_lshlrev_b32 v11, 5, v9"); E("v_lshlrev_b32 v5, 4, v4"); E("v_add_u32 v11, v11, v5")
    E("v_bfe_u32 v12, v0, 4, 1"); E("v_lshlrev_b32 v12, 16, v12"); E("v_lshlrev_b32 v5, 8, v4"); E("v_add_u32 v12, v12, v5")
    E("v_and_b32 v5, 15, v0"); E("v_lshlrev_b32 v5, 4, v5"); E("v_add_u32 v12, v12, v5")
    E("s_lshl_b32 s13, s10, 5"); E("v_add_u32 v12, s13, v12")
    ACCJ = (176, 192, 208); PT = 224
    stamp(n, "p1")
    E("s_cmp_eq_u32 s61, 10"); E(f"s_cbranch_scc1 {n}_p1b"); E("s_cmp_gt_u32 s61, 10"); E(f"s_cbranch_scc1 {n}_p1c")
    for vn, sws in (("a", (False, False, False)), ("b", (False, False, True)), ("c", (True, True, True))):
        L(f"{n}_p1{vn}")
        for c in range(4):
            E(f"s_waitcnt vmcnt({14 if c < 3 else 0})"); E("s_barrier")
            if vn == "a": stamp(n, "p1")
            items = []
            for s in range(8*c, 8*c+8):
                for j in range(3):
                    items.append(((10, 3072*s + 64*j) if s < 16 else (13, 3072*(s-16) + 64*j)) + (VX+4*s, ACCJ[j]))
            nxt = chunk(c + 2) if c < 2 else []
            for i in mfma_items(items, False, lambda i: sws[i % 3], lambda i: c == 0 and i < 3, 192):
                if nxt and i % 3 != 2: issue([nxt.pop(0)])
            assert not nxt
        E("s_nop 15")
        if vn == "a": stamp(n, "p1")
        for j, sw in enumerate(sws):
            E(f"s_add_u32 s12, s11, {j}"); pack(ACCJ[j], PT + 8*j); T_ = PT + 8*j
            if not sw:
                E("s_lshr_b32 s14, s12, 4"); E("s_lshl_b32 s14, s14, 21"); E("s_and_b32 s15, s12, 15"); E("s_lshl_b32 s15, s15, 17")
                E("s_add_u32 s14, s14, s15"); E("s_add_u32 s15, s14, 65536")
                E(f"buffer_store_dwordx4 v[{T_}:{T_+3}], v11, s[48:51], s14 offen{SC}")
                E(f"buffer_store_dwordx4 v[{T_+4}:{T_+7}], v11, s[48:51], s15 offen{SC}")
            else:
                E("s_sub_u32 s14, s12, 32"); E("s_lshl_b32 s14, s14, 17"); E(f"s_add_u32 s14, s14, {WS_V}")
                E(f"buffer_store_dwordx4 v[{T_}:{T_+3}], v12, s[48:51], s14 offen{SC}")
                E(f"buffer_store_dwordx4 v[{T_+4}:{T_+7}], v12, s[48:51], s14 offen offset:512{SC}")
        if vn != "c": E(f"s_branch {n}_p1e")
    L(f"{n}_p1e")
    stamp(n, "p1")
    stamp(n); signal(n, 0); stamp(n)
    srd(44, 20, 0, 512*1024)
    dma_setup(1024); issue(dma_list(44, 62, 0, 0, 8, 1024))
    issue(p1pf)
    E("v_mov_b32 v5, 0x3f803f80")
    for r in range(144): E(f"v_accvgpr_write_b32 a{80+r}, v5")
    wait(n, 0, 2); stamp(n); stamp(n, "p2")
    S, O, PK = 96, 240, 16
    srd(40, 34, WS_Q, 2*MB); srd(44, 34, WS_K - 8192, 2*MB + 8192); srd(48, 34, WS_V - 8192, 2*MB + 8192); srd(52, 34, WS_O, 2*MB)
    E("v_lshlrev_b32 v5, 2, v4"); E("v_sub_u32 v11, v3, v5")
    E("s_sub_i32 s15, 256, s10"); E("s_max_i32 s15, s15, 0")
    E("v_lshlrev_b32 v6, 4, v4")
    E("s_lshl_b32 s11, s61, 1")
    E("s_lshl_b32 s12, s11, 11"); E("s_add_u32 s12, s12, s10")
    E("v_add_u32 v5, s12, v3"); E("v_lshlrev_b32 v5, 5, v5"); E("v_add_u32 v8, v5, v6"); E("v_add_u32 v13, 0x10000, v8")
    E("s_lshl_b32 s14, s15, 5")
    E("v_and_b32 v5, 15, v0"); E("v_lshlrev_b32 v5, 4, v5"); E("v_lshlrev_b32 v9, 8, v4"); E("v_add_u32 v5, v5, v9")
    E("s_lshl_b32 s13, s11, 16"); E("s_lshl_b32 s12, s10, 5"); E("s_add_u32 s13, s13, s12"); E("v_add_u32 v9, s13, v5"); E("v_add_u32 v14, 0x10000, v9")
    E("s_mov_b32 s66x, 0") if False else None
    E("s_mov_b32 s72, 0x0000ffff"); E("s_mov_b32 s73, 0x0000ffff")
    def qk(hh):
        va = (8, 13)[hh]
        r = [[f"buffer_load_dwordx4 a[{72+4*hh}:{75+4*hh}], v{va}, s[40:43], 0 offen{SC}"]]
        for kb in range(9):
            r.append([f"s_max_u32 s12, s14, {kb*1024}", f"buffer_load_dwordx4 a[{36*hh+4*kb}:{36*hh+4*kb+3}], v{va}, s[44:47], s12 offen{SC}"])
        return r
    def vv(hh):
        return [["s_mov_b64 exec, s[72:73]", f"s_max_u32 s12, s14, {512*t}",
                 f"buffer_load_dwordx4 a[{80+72*hh+4*t}:{80+72*hh+4*t+3}], v{(9,14)[hh]}, s[48:51], s12 offen{SC}", "s_mov_b64 exec, -1"] for t in range(18)]
    issue(qk(0)); issue(vv(0))
    E("s_add_u32 s13, s10, s11"); E("s_lshl_b32 s13, s13, 10"); E("v_lshlrev_b32 v5, 4, v1"); E("v_add_u32 v10, s13, v5")
    stamp(n, "p2")
    for hh in range(2):
        pf = (qk(1) + vv(1)) if hh == 0 else (regl(2) + regl(3))
        npf0 = len(pf)
        E(f"v_mov_b32 v12, {f2u(-1e30):#x}")
        for kb in range(9):
            E(f"s_waitcnt vmcnt({(26-kb) if hh == 0 else (1 + 18 + 8 - kb)})")
            E(f"v_mfma_f32_32x32x16_bf16 v[{S+16*kb}:{S+16*kb+15}], a[{36*hh+4*kb}:{36*hh+4*kb+3}], a[{72+4*hh}:{75+4*hh}], 0")
        E("s_nop 7"); E("s_nop 3"); stamp(n, "p2")
        for kb in range(8):
            E(f"s_cmp_ge_u32 s10, {256-32*kb}"); E(f"s_cbranch_scc1 {n}_ok{hh}_{kb}")
            for i in range(16): E(f"v_mov_b32 v{S+16*kb+i}, v12")
            L(f"{n}_ok{hh}_{kb}")
        for i in range(16):
            c = 8*(i >> 2) + (i & 3)
            E(f"v_cmp_le_i32 vcc, {c}, v11"); E("s_nop 1")
            E(f"v_cndmask_b32 v{S+128+i}, v12, v{S+128+i}, vcc"); E(f"v_cndmask_b32 v{S+i}, v{S+i}, v12, vcc")
            if i % 3 == 2 and pf: issue([pf.pop(0)])
        for c in range(4): E(f"v_max_f32 v{PK+c}, v{S+c}, v{S+4+c}")
        for r in range(8, 144, 8):
            for c in range(4): E(f"v_max3_f32 v{PK+c}, v{PK+c}, v{S+r+c}, v{S+r+4+c}")
            if r % 24 == 0 and pf: issue([pf.pop(0)])
        E(f"v_max_f32 v{PK}, v{PK}, v{PK+1}"); E(f"v_max_f32 v{PK+2}, v{PK+2}, v{PK+3}"); E(f"v_max_f32 v12, v{PK}, v{PK+2}"); E("v_mov_b32 v15, v12")
        E("s_nop 1"); E("v_permlane32_swap_b32 v12, v15"); E("s_nop 1"); E("v_max_f32 v12, v12, v15")
        E(f"s_mov_b32 s13, {f2u(0.25*LOG2E):#x}"); E("v_mul_f32 v12, s13, v12"); stamp(n, "p2")
        for r in range(0, 144, 4):
            for c in range(4): E(f"v_fma_f32 v{S+r+c}, v{S+r+c}, s13, -v12")
            for c in range(4): E(f"v_exp_f32 v{S+r+c}, v{S+r+c}")
            if r >= 4:
                p = r - 4; d = S + 16*(p//16) + (p % 16)//2
                E(f"v_cvt_pk_bf16_f32 v{d}, v{S+p}, v{S+p+1}"); E(f"v_cvt_pk_bf16_f32 v{d+1}, v{S+p+2}, v{S+p+3}")
            if r % 8 == 0 and pf: issue([pf.pop(0)])
        p = 140; d = S + 16*(p//16) + (p % 16)//2
        E("s_nop 0"); E(f"v_cvt_pk_bf16_f32 v{d}, v{S+p}, v{S+p+1}"); E(f"v_cvt_pk_bf16_f32 v{d+1}, v{S+p+2}, v{S+p+3}")
        npf_left = len(pf)
        stamp(n, "p2")
        assert npf_left == 0
        E(f"s_waitcnt vmcnt({npf0 if hh == 0 else (1+npf0)})"); stamp(n, "p2")
        for t in range(18):
            if pf and t % 4 == 1: issue([pf.pop(0)])
            bb = S + 16*(t//2) + 4*(t % 2)
            E(f"v_mfma_f32_32x32x16_bf16 v[{O}:{O+15}], a[{80+72*hh+4*t}:{80+72*hh+4*t+3}], v[{bb}:{bb+3}], {'0' if t == 0 else f'v[{O}:{O+15}]'}")
        E("s_nop 15"); E(f"v_rcp_f32 v12, v{O+8}"); E("s_nop 0")
        for i in range(8): E(f"v_mul_f32 v{O+i}, v{O+i}, v12")
        for i in range(4): E(f"v_cvt_pk_bf16_f32 v{PK+i}, v{O+2*i}, v{O+2*i+1}")
        assert not pf
        E(f"buffer_store_dwordx4 v[{PK}:{PK+3}], v10, s[52:55], 0 offen offset:{1024*hh}{SC}")
        E("s_nop 1")
    stamp(n); signal(n, 1); stamp(n)
    srd(40, 34, WS_O, 2*MB); srd(48, 34, WS_H, 2*MB); srd(52, 16, 0, 2*MB)
    E("v_add_u32 v9, s10, v3")
    w_addr(True, 10)
    E("v_lshlrev_b32 v12, 10, v9"); E("v_lshlrev_b32 v5, 3, v4"); E("v_add_u32 v12, v12, v5"); E("s_lshl_b32 s13, s61, 11")
    for q in range(4): E(f"buffer_load_dwordx2 v[{VT+8+2*q}:{VT+9+2*q}], v12, s[52:55], s62 offen offset:{16*q}")
    wait(n, 1); stamp(n)
    load_xt2(40, 32, 32)
    E("s_waitcnt vmcnt(0)"); E("s_barrier")
    items = [(10, 1024*s, VX+4*s, ACC0) for s in range(32)]
    for _ in mfma_items(items, True, lambda i: False, lambda i: i == 0): pass
    E("s_nop 15")
    for i in range(8):
        E(f"v_lshlrev_b32 v5, 16, v{VT+8+i}"); E(f"v_and_b32 v6, 0xffff0000, v{VT+8+i}")
        E(f"v_add_f32 v{ACC0+2*i}, v{ACC0+2*i}, v5"); E(f"v_add_f32 v{ACC0+2*i+1}, v{ACC0+2*i+1}, v6")
    pack(ACC0, VT)
    E(f"buffer_store_dwordx4 v[{VT}:{VT+3}], v8, s[48:51], s13 offen{SC}")
    E(f"buffer_store_dwordx4 v[{VT+4}:{VT+7}], v8, s[48:51], s13 offen offset:1024{SC}")
    stamp(n); signal(n, 2); stamp(n)
    issue(regl(4))
    wait(n, 2); stamp(n)
    srd(40, 34, WS_H, 2*MB); srd(52, 34, WS_HH, 2048*2752)
    load_xt2(40, 32, 32)
    E("s_lshr_b32 s4, s10, 5"); E(f"s_mul_i32 s4, s4, {86*1024}"); E("v_lshlrev_b32 v11, 4, v1"); E("v_add_u32 v11, s4, v11")
    ln_regs(0, [], True)
    E(f"s_mov_b32 s13, {f2u(-LOG2E):#x}")
    E("s_barrier")
    def norm(s):
        r = []
        for q in range(4):
            x = VX + 4*s + q; a_, b_ = 240 + 2*q, 241 + 2*q
            r += [f"v_lshlrev_b32 v{a_}, 16, v{x}", f"v_and_b32 v{b_}, 0xffff0000, v{x}"]
        for q in range(4):
            a_, b_ = 240 + 2*q, 241 + 2*q
            r += [f"v_fma_f32 v{a_}, v{a_}, v12, v15", f"v_fma_f32 v{b_}, v{b_}, v12, v15"]
        for q in range(4):
            r += [f"v_cvt_pk_bf16_f32 v{VX+4*s+q}, v{240+2*q}, v{241+2*q}"]
        return r
    def epi(j, G, U):
        r = []
        for i in range(16): r.append(f"v_mul_f32 v{G+i}, s13, v{G+i}")
        for i in range(16): r.append(f"v_exp_f32 v{G+i}, v{G+i}")
        for i in range(16): r.append(f"v_add_f32 v{G+i}, 1.0, v{G+i}")
        for i in range(16): r.append(f"v_rcp_f32 v{G+i}, v{G+i}")
        for i in range(16): r.append(f"v_mul_f32 v{G+i}, v{G+i}, v{U+i}")
        for i in range(8): r.append(f"v_cvt_pk_bf16_f32 v{248+i}, v{G+2*i}, v{G+2*i+1}")
        r += [f"s_add_u32 s12, s63, {64*j}", "s_lshl_b32 s12, s12, 5",
              f"buffer_store_dwordx4 v[248:251], v11, s[52:55], s12 offen{SC}",
              f"buffer_store_dwordx4 v[252:255], v11, s[52:55], s12 offen offset:1024{SC}"]
        return r
    for x in norm(0) + norm(1): E(x)
    fill = []
    srd(44, 28, 0, 1376*1024); dma_setup(1024)
    w5 = dma_list(44, 62, 0, 32768, 16, 1024) + dma_list(44, 62, 1024*1024, 131072, 6, 1024)
    for j in range(3):
        G, U = (176, 192) if j % 2 == 0 else (208, 224)
        sg, su = slotof[2*j]*32768, slotof[2*j+1]*32768
        E(f"v_add_u32 v13, {sg}, v10"); E(f"v_add_u32 v14, {su}, v10")
        items = []
        for s in range(32): items += [(13, 1024*s, VX+4*s, G), (14, 1024*s, VX+4*s, U)]
        for i in mfma_items(items, True, lambda i: False, lambda i: i < 2):
            if j == 0 and i % 2 == 1 and i//2 + 2 < 32:
                for x in norm(i//2 + 2): E(x)
            if j > 0 and i >= 4:
                for _ in range(2):
                    if fill: E(fill.pop(0))
            if j == 2 and i >= 2 and i % 2 == 0 and w5: issue([w5.pop(0)])
        assert not fill
        if j == 0: E("s_barrier"); issue(regl(5))
        if j == 1: E("s_waitcnt vmcnt(2)"); E("s_barrier")
        fill = epi(j, G, U)
    E("s_nop 15")
    for x in fill: E(x)
    stamp(n); signal(n, 3); stamp(n)
    NX = 44; X = 56; oldVW = VW; VW = 16; A = 232; T = 48
    assert not w5
    wait(n, 3); stamp(n)
    srd(40, 34, WS_HH, 2048*2752); srd(48, 34, WS_H, 2*MB); srd(52, 30, 0, 2*MB)
    load_xt2(40, 86, NX, X)
    E("v_add_u32 v13, 0x8000, v10"); E("v_add_u32 v14, 0x20000, v10"); E("v_add_u32 v9, s10, v3")
    E("v_lshlrev_b32 v12, 10, v9"); E("v_lshlrev_b32 v5, 3, v4"); E("v_add_u32 v12, v12, v5")
    E("s_lshl_b32 s13, s10, 10"); E("s_lshl_b32 s14, s61, 11"); E("s_add_u32 s13, s13, s14"); E("v_lshlrev_b32 v11, 4, v1")
    E(f"buffer_load_dwordx4 v[248:251], v11, s[48:51], s13 offen{SC}"); E(f"buffer_load_dwordx4 v[252:255], v11, s[48:51], s13 offen offset:1024{SC}")
    E("s_waitcnt vmcnt(45)")
    items = [((13, 1024*s) if s < 64 else (14, 1024*(s-64))) + (X+4*(s % NX), A) for s in range(86)]
    for i in mfma_items(items, True, lambda i: False, lambda i: i == 0):
        if i + NX < 86:
            s = i + NX; E(f"s_mov_b32 s4, {1024*s}"); E(f"buffer_load_dwordx4 v[{X+4*i}:{X+4*i+3}], v8, s[40:43], s4 offen{SC}")
        if i + 1 < 86: E(f"s_waitcnt vmcnt({(45 if i + 1 <= 42 else 44) if i + 1 < NX else 85-(i+1)})")
    VW = oldVW
    E("s_nop 15")
    for i in range(8):
        E(f"v_lshlrev_b32 v5, 16, v{248+i}"); E(f"v_and_b32 v6, 0xffff0000, v{248+i}")
        E(f"v_add_f32 v{A+2*i}, v{A+2*i}, v5"); E(f"v_add_f32 v{A+2*i+1}, v{A+2*i+1}, v6")
    pack(A, T)
    for q in range(4): E(f"buffer_store_dwordx2 v[{T+2*q}:{T+2*q+1}], v12, s[52:55], s62 offen offset:{16*q}")
    epilogue_end(n)

k0(); mega()
hdr = open("cdna_kernels/" + NAME + ".s.ref").read().split("\n")
head = [l for l in hdr if l.startswith(";") and "@launch" not in l and "Override" not in l and "grid=ceil" not in l]
import os
dup = int(os.environ.get("DUP", "-1"))
ll = []
for idx, (k, g, l) in enumerate(kernels):
    ll += [f"; @launch kernel={k} grid=({g},1,1) block=(256,1,1) lds={l}"] * (5 if idx == dup else 1)
if dup == 99: ll = ll + ll
if STAMPK:
    ll = ll + [x for x in ll if STAMPK in x]
txt = head + ll
txt += ['.amdgcn_target "amdgcn-amd-amdhsa--gfx950"', ".text"] + out + ['.section .rodata,"a"']
for k, g, l in kernels:
    txt += [".p2align 6", f".amdhsa_kernel {k}", f"  .amdhsa_next_free_vgpr {512 if k.startswith('km') else 256}", "  .amdhsa_next_free_sgpr 102", "  .amdhsa_accum_offset 256",
            "  .amdhsa_group_segment_fixed_size 0", "  .amdhsa_kernarg_size 80", "  .amdhsa_user_sgpr_count 2",
            "  .amdhsa_user_sgpr_kernarg_segment_ptr 1", "  .amdhsa_system_sgpr_workgroup_id_x 1", ".end_amdhsa_kernel"]
open(os.environ.get("OUT", "cdna_kernels/" + NAME + ".s"), "w").write("\n".join(txt) + "\n")
```

```python
import sys, os
NAME = "sequential_preLN__sliding_block__glu_gated_glu__prompt"
out = []
def E(s): out.append("    " + s)
def L(s): out.append(s + ":")
MB = 1 << 20
WS_Q, WS_K, WS_V, WS_O, WS_H, WS_HH = 0, 2*MB, 4*MB, 6*MB, 8*MB, 10*MB
WS_XN = 16*MB
LOG2E = 1.4426950408889634
import struct
def f2u(f): return struct.unpack("<I", struct.pack("<f", f))[0]

def prologue(name, nwg):
    out.append(".p2align 8"); out.append(f".globl {name}"); out.append(f".type {name},@function"); L(name)
    E(f"s_cmp_ge_u32 s2, {nwg}"); E(f"s_cbranch_scc1 {name}_done")
    E("s_load_dwordx16 s[16:31], s[0:1], 0"); E("s_load_dwordx4 s[32:35], s[0:1], 64")
    E("v_and_b32 v1, 63, v0")
    E("v_lshrrev_b32 v2, 6, v0")
    E("v_and_b32 v3, 31, v0")
    E("v_readfirstlane_b32 s3, v2")
    E("v_bfe_u32 v4, v0, 5, 1")
    E("s_waitcnt lgkmcnt(0)")
STAMPK = os.environ.get("STAMP", "")
nst = [0]
def stamp(name, tag=""):
    if name != STAMPK: return
    if tag != os.environ.get("STAG", "") and nst[0] > 0 and tag != "end": return
    E("s_memrealtime s[74:75]" if os.environ.get("ABS") else "s_memtime s[74:75]"); E("s_waitcnt lgkmcnt(0)"); E(f"s_mov_b32 s{76+nst[0]}, s74"); nst[0] += 1
def epilogue_end(name):
    if name == STAMPK:
        stamp(name, "end")
        srd(40, 32, 0, 256)
        if os.environ.get("ABS"):
            k = int(os.environ["ABS"])
            E("s_and_b32 s4, s2, 7"); E("s_cmp_lg_u32 s4, 0"); E(f"s_cbranch_scc1 {name}_done"); E("s_cmp_lg_u32 s3, 0"); E(f"s_cbranch_scc1 {name}_done")
            E("s_cmp_ge_u32 s2, 256"); E(f"s_cbranch_scc1 {name}_done")
            E("s_lshr_b32 s4, s2, 4"); E("s_lshl_b32 s4, s4, 2"); E("s_and_b32 s5, s2, 8"); E("s_cmp_lg_u32 s5, 0"); E(f"s_cbranch_scc1 {name}_done")
            E("v_mov_b32 v6, s4"); E(f"v_mov_b32 v5, s{76+k}"); E("buffer_store_dword v5, v6, s[40:43], 0 offen"); E(f"s_branch {name}_done")
        E("s_cmp_lg_u32 s2, 8"); E(f"s_cbranch_scc1 {name}_done"); E("s_cmp_lg_u32 s3, 0"); E(f"s_cbranch_scc1 {name}_done")
        srd(40, 32, 0, 256)
        for i in range(nst[0]):
            E(f"s_sub_u32 s4, s{76+i}, s76"); E("v_mov_b32 v5, s4"); E(f"v_mov_b32 v6, {4*i}"); E("buffer_store_dword v5, v6, s[40:43], 0 offen")
    L(f"{name}_done"); E("s_endpgm")
def srd(d, base, off, size):
    if off >= 0:
        E(f"s_add_u32 s{d}, s{base}, {off}"); E(f"s_addc_u32 s{d+1}, s{base+1}, 0")
    else:
        E(f"s_sub_u32 s{d}, s{base}, {-off}"); E(f"s_subb_u32 s{d+1}, s{base+1}, 0")
    E(f"s_mov_b32 s{d+2}, {size}"); E(f"s_mov_b32 s{d+3}, 0x00020000")

VX, VW, ACC0, ACC1, VT = 16, 144, 176, 192, 208

def w_addr(perm, vdst, RB=64):
    E("v_bfe_u32 v5, v0, 2, 2")
    E(f"v_lshlrev_b32 v6, {2 if perm else 3}, v4")
    E("v_add_u32 v5, v5, v6")
    E(f"v_mul_u32_u24 v5, {RB}, v5")
    E("v_bfe_u32 v6, v0, 4, 1")
    E("v_lshlrev_b32 v6, 5, v6")
    E("v_add_u32 v5, v5, v6")
    E("v_and_b32 v6, 3, v0")
    E("v_lshlrev_b32 v6, 3, v6")
    E(f"v_add_u32 v{vdst}, v5, v6")

def dma_setup(ldw):
    E("v_lshrrev_b32 v5, 2, v0"); E(f"s_mov_b32 s4, {ldw}"); E("v_mul_lo_u32 v5, v5, s4")
    E("v_and_b32 v6, 3, v0"); E("v_lshlrev_b32 v6, 4, v6"); E("v_add_u32 v7, v5, v6")
    E("s_lshl_b32 s5, s3, 10")
def dma_region(srdreg, scol, ldsbase, nj, ldw):
    E(f"s_mov_b32 s6, s{scol}"); E(f"s_add_u32 s7, s5, {ldsbase}")
    for j in range(nj):
        E("s_mov_b32 m0, s7");
        if j + 1 < nj: E("s_add_u32 s7, s7, 4096")
        else: E("s_nop 0")
        E(f"buffer_load_dwordx4 v7, s[{srdreg}:{srdreg+3}], s6 offen lds")
        if j + 1 < nj: E(f"s_add_u32 s6, s6, {64*ldw}")

def dma_list(srdreg, scolreg, coladd, ldsbase, nj, ldw):
    r = []
    for j in range(nj):
        r.append([f"s_add_u32 s6, s{scolreg}, {coladd + j*64*ldw}", f"s_add_u32 m0, s5, {ldsbase + j*4096}", "s_nop 0",
                  f"buffer_load_dwordx4 v7, s[{srdreg}:{srdreg+3}], s6 offen lds"])
    return r
def dma_setup_w(ldw):
    E("s_lshl_b32 s5, s3, 10"); E("s_mov_b32 s4, 0xAAAB"); E(f"s_mov_b32 s6, {ldw}")
    for t, vr in enumerate((7, 14, 15)):
        E(f"v_add_u32 v5, {256*t}, v0"); E("v_mul_lo_u32 v6, v5, s4"); E("v_lshrrev_b32 v6, 19, v6")
        E("v_mul_u32_u24 v9, 12, v6"); E("v_sub_u32 v5, v5, v9"); E("v_lshlrev_b32 v5, 4, v5")
        E("v_mul_lo_u32 v6, v6, s6"); E(f"v_add_u32 v{vr}, v5, v6")
def dma_list_w(srdreg, scolreg, ldsbase, row0, nrows, ldw):
    r = []
    for j in range(nrows*12//256):
        r.append([f"s_add_u32 s6, s{scolreg}, {(row0 + (j//3)*64)*ldw}", f"s_add_u32 m0, s5, {ldsbase + j*4096}", "s_nop 0",
                  f"buffer_load_dwordx4 v{(7,14,15)[j%3]}, s[{srdreg}:{srdreg+3}], s6 offen lds"])
    return r
def mfma_items(items, perm, swap_of, first_of, RB=64):
    d2 = 8*RB if perm else 4*RB
    n = len(items); D = 6
    def rd(i):
        va, off, _, _ = items[i]; w = VW + 4 * (i % 8)
        E(f"ds_read_b64_tr_b16 v[{w}:{w+1}], v{va} offset:{off}")
        E(f"ds_read_b64_tr_b16 v[{w+2}:{w+3}], v{va} offset:{off+d2}")
    for i in range(min(D, n)): rd(i)
    for i in range(n):
        va, off, x, acc = items[i][:4]; w = VW + 4 * (i % 8)
        E(f"s_waitcnt lgkmcnt({2*(min(i+D-1, n-1)-i)})")
        c = "0" if first_of(i) else f"v[{acc}:{acc+15}]"
        if swap_of(i): E(f"v_mfma_f32_32x32x16_bf16 v[{acc}:{acc+15}], v[{x}:{x+3}], v[{w}:{w+3}], {c}")
        else:          E(f"v_mfma_f32_32x32x16_bf16 v[{acc}:{acc+15}], v[{w}:{w+3}], v[{x}:{x+3}], {c}")
        if i + D < n: rd(i + D)
        yield i

def ln_regs(ndma, inter=[], jit=False):
    E("s_mov_b32 s8, 0x3f803f80")
    for q in range(4): E(f"v_mov_b32 v{VT+q}, 0"); E(f"v_mov_b32 v{VT+4+q}, 0")
    inter = list(inter); nd = 0
    for g in range(4):
        E(f"s_waitcnt vmcnt({min(63, 24-8*g+nd)})")
        for r in range(32*g, 32*g+32):
            if inter and r % 8 == 4:
                for x in inter.pop(0): E(x)
                nd += 1
            E(f"v_dot2_f32_bf16 v{VT+(r&3)}, v{VX+r}, s8, v{VT+(r&3)}")
            E(f"v_dot2_f32_bf16 v{VT+4+(r&3)}, v{VX+r}, v{VX+r}, v{VT+4+(r&3)}")
    E("s_nop 3")
    E(f"v_add_f32 v{VT}, v{VT}, v{VT+1}"); E(f"v_add_f32 v{VT+2}, v{VT+2}, v{VT+3}")
    E(f"v_add_f32 v{VT+4}, v{VT+4}, v{VT+5}"); E(f"v_add_f32 v{VT+6}, v{VT+6}, v{VT+7}")
    E(f"v_add_f32 v{VT}, v{VT}, v{VT+2}"); E(f"v_add_f32 v{VT+4}, v{VT+4}, v{VT+6}")
    E(f"v_mov_b32 v{VT+1}, v{VT}"); E(f"v_mov_b32 v{VT+5}, v{VT+4}")
    E("s_nop 1")
    E(f"v_permlane32_swap_b32 v{VT}, v{VT+1}"); E(f"v_permlane32_swap_b32 v{VT+4}, v{VT+5}")
    E("s_nop 1")
    E(f"v_add_f32 v{VT}, v{VT}, v{VT+1}"); E(f"v_add_f32 v{VT+4}, v{VT+4}, v{VT+5}")
    E(f"v_mul_f32 v{VT}, {f2u(1/512):#x}, v{VT}")
    E(f"v_mul_f32 v{VT+4}, {f2u(1/512):#x}, v{VT+4}")
    E(f"v_fma_f32 v{VT+4}, -v{VT}, v{VT}, v{VT+4}")
    E(f"v_max_f32 v{VT+4}, 0, v{VT+4}")
    E(f"v_add_f32 v{VT+4}, {f2u(1e-5):#x}, v{VT+4}")
    E(f"v_rsq_f32 v{VT+4}, v{VT+4}")
    E("s_nop 0")
    E(f"v_mul_f32 v{VT}, v{VT}, v{VT+4}")
    E(f"v_sub_f32 v{VT}, 0, v{VT}")
    if jit:
        E(f"v_mov_b32 v12, v{VT+4}"); E(f"v_mov_b32 v15, v{VT}"); return
    for r in range(128):
        if inter and r % 5 == 0:
            for x in inter.pop(0): E(x)
        a, b = VT + 8 + 2 * (r & 3), VT + 9 + 2 * (r & 3)
        E(f"v_lshlrev_b32 v{a}, 16, v{VX+r}"); E(f"v_and_b32 v{b}, 0xffff0000, v{VX+r}")
        E(f"v_fma_f32 v{a}, v{a}, v{VT+4}, v{VT}"); E(f"v_fma_f32 v{b}, v{b}, v{VT+4}, v{VT}")
        E(f"v_cvt_pk_bf16_f32 v{VX+r}, v{a}, v{b}")

def load_x(srdreg, ld, nsteps, base=VX):
    E("s_lshl_b32 s10, s3, 5"); E("s_add_u32 s10, s10, s9")
    E("v_add_u32 v9, s10, v3"); E(f"s_mov_b32 s4, {ld}"); E("v_mul_lo_u32 v8, v9, s4")
    E("v_lshlrev_b32 v5, 4, v4"); E("v_add_u32 v8, v8, v5")
    for s in range(nsteps):
        E(f"buffer_load_dwordx4 v[{base+4*s}:{base+4*s+3}], v8, s[{srdreg}:{srdreg+3}], 0 offen offset:{32*s}")
def wgmap(a=2):
    if a == 2:
        E("s_and_b32 s9, s2, 7"); E("s_lshl_b32 s9, s9, 1"); E("s_lshr_b32 s11, s2, 7"); E("s_add_u32 s9, s9, s11"); E("s_lshl_b32 s9, s9, 7")
        E("s_lshr_b32 s11, s2, 3"); E("s_and_b32 s11, s11, 15")
    else:
        E("s_bfe_u32 s9, s2, 0x20001"); E("s_lshl_b32 s9, s9, 2"); E("s_lshr_b32 s11, s2, 6"); E("s_add_u32 s9, s9, s11"); E("s_lshl_b32 s9, s9, 7")
        E("s_bfe_u32 s11, s2, 0x30003"); E("s_and_b32 s4, s2, 1"); E("s_lshl_b32 s4, s4, 3"); E("s_add_u32 s11, s11, s4")
def load_xt(srdreg, nsteps_total, nsteps, base=VX):
    E("s_lshl_b32 s10, s3, 5"); E("s_add_u32 s10, s10, s9"); E("v_add_u32 v9, s10, v3")
    E("s_lshr_b32 s4, s10, 5"); E(f"s_mul_i32 s4, s4, {nsteps_total*1024}")
    E("v_lshlrev_b32 v8, 4, v1"); E("v_add_u32 v8, s4, v8")
    for s in range(nsteps):
        if s % 4 == 0: E(f"s_mov_b32 s4, {1024*s}")
        E(f"buffer_load_dwordx4 v[{base+4*s}:{base+4*s+3}], v8, s[{srdreg}:{srdreg+3}], s4 offen offset:{1024*(s%4)}")
def pack(acc, dst):
    for i in range(8): E(f"v_cvt_pk_bf16_f32 v{dst+i}, v{acc+2*i}, v{acc+2*i+1}")

kernels = []
def k0():
    n = "k0_ln_kernel"; kernels.append((n, 256, 0)); prologue(n, 256)
    E("s_and_b32 s9, s2, 7"); E("s_lshl_b32 s9, s9, 8"); E("s_lshr_b32 s10, s2, 3"); E("s_lshl_b32 s10, s10, 3"); E("s_add_u32 s9, s9, s10")
    E("s_lshl_b32 s10, s3, 1"); E("s_add_u32 s9, s9, s10")
    srd(40, 16, 0, 2*MB); srd(44, 34, WS_XN, 2*MB)
    E("s_cmp_lg_u32 s2, 0"); E("s_cbranch_scc1 k0_nz")
    srd(52, 34, 20*MB, 16384)
    for i in range(4): E(f"v_mov_b32 v{40+i}, 0")
    E("v_lshlrev_b32 v5, 6, v0")
    for i in range(4): E(f"buffer_store_dwordx4 v[40:43], v5, s[52:55], 0 offen offset:{16*i}")
    L("k0_nz")
    E("s_lshl_b32 s10, s9, 10"); E("v_lshlrev_b32 v5, 4, v1")
    E("buffer_load_dwordx4 v[16:19], v5, s[40:43], s10 offen"); E("buffer_load_dwordx4 v[20:23], v5, s[40:43], s10 offen offset:1024")
    E("s_lshr_b32 s11, s9, 5"); E("s_lshl_b32 s11, s11, 15"); E("s_and_b32 s12, s9, 31"); E("s_lshl_b32 s12, s12, 4"); E("s_add_u32 s11, s11, s12")
    E("v_lshrrev_b32 v6, 1, v1"); E("v_lshlrev_b32 v6, 10, v6"); E("v_and_b32 v7, 1, v1"); E("v_lshlrev_b32 v7, 9, v7"); E("v_add_u32 v6, v6, v7")
    E("s_mov_b32 s8, 0x3f803f80")
    for q in range(4): E(f"v_mov_b32 v{24+q}, 0")
    if os.environ.get("PF", "1") == "1":
        E("s_lshl_b32 s12, s2, 12"); E("v_lshlrev_b32 v32, 4, v0"); E("v_add_u32 v32, s12, v32"); E("v_add_u32 v33, 0x100000, v32")
        k = 0
        for base, size in ((18, 512*3072), (20, 512*1024), (24, 512*2752), (26, 512*2752), (28, 1376*1024)):
            srd(48, base, 0, size)
            E(f"buffer_load_dwordx4 v[{36+4*k}:{39+4*k}], v32, s[48:51], 0 offen"); k += 1
            if size > MB: E(f"buffer_load_dwordx4 v[{36+4*k}:{39+4*k}], v33, s[48:51], 0 offen"); k += 1
        ntl = 0
        if os.environ.get("TLB", "0") == "1":
            E("v_lshlrev_b32 v33, 16, v1")
            srd(48, 34, 0, 24*MB)
            for i in range(6):
                E(f"s_mov_b32 s12, {4*MB*i}"); E(f"buffer_load_dword v{100+ntl}, v33, s[48:51], s12 offen"); ntl += 1
            for base, size in ((18, 512*3072), (20, 512*1024), (24, 512*2752), (26, 512*2752), (28, 1376*1024), (30, 2*MB)):
                srd(48, base, 0, size); E(f"buffer_load_dword v{100+ntl}, v33, s[48:51], 0 offen"); ntl += 1
        npf = int(os.environ.get("NPF", "0"))
        if npf:
            E("s_getpc_b64 s[60:61]"); L("k0_pc")
            E("v_lshlrev_b32 v34, 4, v0")
            for i in range(npf):
                E(f"global_load_dwordx4 v[{72+4*i}:{75+4*i}], v34, s[60:61]"); E("v_add_u32 v34, 0x1000, v34")
        E(f"s_waitcnt vmcnt({9+npf+ntl})")
    else:
        E("s_waitcnt vmcnt(0)")
    for r in range(2):
        for i in range(4):
            E(f"v_dot2_f32_bf16 v{24+2*r}, v{16+4*r+i}, s8, v{24+2*r}"); E(f"v_dot2_f32_bf16 v{25+2*r}, v{16+4*r+i}, v{16+4*r+i}, v{25+2*r}")
    E("s_nop 3")
    for off in (0x041F, 0x081F, 0x101F, 0x201F, 0x401F):
        for q in range(4): E(f"ds_swizzle_b32 v{28+q}, v{24+q} offset:{off:#x}")
        E("s_waitcnt lgkmcnt(0)")
        for q in range(4): E(f"v_add_f32 v{24+q}, v{24+q}, v{28+q}")
    for q in range(4): E(f"v_mov_b32 v{28+q}, v{24+q}")
    E("s_nop 1")
    for q in range(4): E(f"v_permlane32_swap_b32 v{24+q}, v{28+q}")
    E("s_nop 1")
    for q in range(4): E(f"v_add_f32 v{24+q}, v{24+q}, v{28+q}")
    for r in range(2):
        a, b = 24+2*r, 25+2*r
        E(f"v_mul_f32 v{a}, {f2u(1/512):#x}, v{a}"); E(f"v_mul_f32 v{b}, {f2u(1/512):#x}, v{b}")
        E(f"v_fma_f32 v{b}, -v{a}, v{a}, v{b}"); E(f"v_max_f32 v{b}, 0, v{b}"); E(f"v_add_f32 v{b}, {f2u(1e-5):#x}, v{b}")
        E(f"v_rsq_f32 v{b}, v{b}"); E("s_nop 0"); E(f"v_mul_f32 v{a}, v{a}, v{b}"); E(f"v_sub_f32 v{a}, 0, v{a}")
        for i in range(4):
            x = 16+4*r+i
            E(f"v_lshlrev_b32 v30, 16, v{x}"); E(f"v_and_b32 v31, 0xffff0000, v{x}")
            E(f"v_fma_f32 v30, v30, v{b}, v{a}"); E(f"v_fma_f32 v31, v31, v{b}, v{a}"); E(f"v_cvt_pk_bf16_f32 v{x}, v30, v31")
        E(f"buffer_store_dwordx4 v[{16+4*r}:{19+4*r}], v6, s[44:47], s11 offen offset:{16*r}")
    epilogue_end(n)

SC = " sc1"
def lanes():
    E("v_and_b32 v1, 63, v0"); E("v_and_b32 v3, 31, v0"); E("v_bfe_u32 v4, v0, 5, 1")
WS_CNT = 20*MB
def signal(n, idx):
    E("s_waitcnt vmcnt(0)"); E("s_barrier")
    E("s_cmp_lg_u32 s3, 0"); E(f"s_cbranch_scc1 {n}_sig{idx}")
    E("s_lshl_b32 s4, s9, 1"); E(f"s_add_u32 s4, s4, {idx*4096}")
    E("v_mov_b32 v5, 1"); E("v_mov_b32 v6, s4"); E("s_mov_b64 exec, 1")
    E("buffer_atomic_add v5, v6, s[56:59], 0 offen"); E("s_mov_b64 exec, -1")
    L(f"{n}_sig{idx}")
def wait(n, idx, back=0):
    E("s_cmp_lg_u32 s3, 0"); E(f"s_cbranch_scc1 {n}_wx{idx}")
    E("s_lshl_b32 s4, s9, 1"); E("v_lshlrev_b32 v6, 8, v1"); E("v_sub_u32 v6, s4, v6"); E("v_max_i32 v6, 0, v6"); E(f"v_add_u32 v6, {idx*4096}, v6")
    E("s_mov_b32 s6, 0"); E(f"s_mov_b64 exec, {(1 << (back+1)) - 1}")
    L(f"{n}_w{idx}")
    E("buffer_load_dword v5, v6, s[56:59], 0 offen sc1"); E("s_waitcnt vmcnt(0)")
    E("v_cmp_gt_u32 vcc, 16, v5"); E("s_add_u32 s6, s6, 1"); E("s_nop 0"); E(f"s_cbranch_vccz {n}_wd{idx}")
    E("s_sleep 3"); E("s_cmp_lt_u32 s6, 0x4000"); E(f"s_cbranch_scc1 {n}_w{idx}")
    L(f"{n}_wd{idx}"); E("s_mov_b64 exec, -1")
    L(f"{n}_wx{idx}")
    E("s_waitcnt vmcnt(0)"); E("s_barrier")
def load_xt2(srdreg, nsteps_total, nsteps, base=VX, sc=SC):
    E("s_lshr_b32 s4, s10, 5"); E(f"s_mul_i32 s4, s4, {nsteps_total*1024}")
    E("v_lshlrev_b32 v8, 4, v1"); E("v_add_u32 v8, s4, v8")
    for s in range(nsteps):
        if s % 4 == 0: E(f"s_mov_b32 s4, {1024*s}")
        E(f"buffer_load_dwordx4 v[{base+4*s}:{base+4*s+3}], v8, s[{srdreg}:{srdreg+3}], s4 offen offset:{1024*(s%4)}{sc}")
def issue(groups):
    for g in groups:
        for x in g: E(x)

def mega():
    global VW
    n = "km_block_kernel"; kernels.append((n, 256, 163840)); prologue(n, 256)
    stamp(n); wgmap(2)
    E("s_mov_b32 s61, s11")
    E("s_lshl_b32 s10, s3, 5"); E("s_add_u32 s10, s10, s9")
    srd(56, 34, WS_CNT, 16384)
    E("s_mul_i32 s11, s61, 3")
    srd(40, 34, WS_XN, 2*MB); srd(44, 18, 0, 512*3072); srd(48, 34, 0, 6*MB)
    srd(64, 24, 0, 512*2752); srd(68, 26, 0, 512*2752)
    E("s_lshl_b32 s62, s61, 6")
    E("s_mul_i32 s63, s61, 86"); E("s_and_b32 s63, s63, 0xfffffff0"); E("s_lshl_b32 s63, s63, 1")
    dma_setup(2752); E("v_mov_b32 v2, v7")
    slotof = {0: 3, 1: 4, 2: 1, 3: 2, 4: 0, 5: 3}
    def regl(r): return [[x.replace(" v7,", " v2,") for x in g] for g in dma_list(64 if r % 2 == 0 else 68, 63, 64*(r//2), slotof[r]*32768, 8, 2752)]
    p1pf = regl(0) + regl(1)
    dma_setup_w(3072)
    E("s_lshl_b32 s60, s11, 6")
    allw = dma_list_w(44, 60, 0, 0, 512, 3072)
    E("s_lshr_b32 s4, s10, 5"); E(f"s_mul_i32 s4, s4, {32*1024}"); E("v_lshlrev_b32 v8, 4, v1"); E("v_add_u32 v8, s4, v8")
    def chunk(c):
        r = list(allw[6*c:6*c+6])
        for s_ in range(8*c, 8*c+8):
            r.append([f"s_mov_b32 s4, {1024*(s_ & ~3)}", f"buffer_load_dwordx4 v[{VX+4*s_}:{VX+4*s_+3}], v8, s[40:43], s4 offen offset:{1024*(s_%4)}"])
        return r
    issue(chunk(0) + chunk(1))
    E("v_add_u32 v9, s10, v3")
    w_addr(False, 10, 192); E("v_add_u32 v13, 0xc000, v10")
    E("v_lshlrev_b32 v11, 5, v9"); E("v_lshlrev_b32 v5, 4, v4"); E("v_add_u32 v11, v11, v5")
    E("v_bfe_u32 v12, v0, 4, 1"); E("v_lshlrev_b32 v12, 16, v12"); E("v_lshlrev_b32 v5, 8, v4"); E("v_add_u32 v12, v12, v5")
    E("v_and_b32 v5, 15, v0"); E("v_lshlrev_b32 v5, 4, v5"); E("v_add_u32 v12, v12, v5")
    E("s_lshl_b32 s13, s10, 5"); E("v_add_u32 v12, s13, v12")
    ACCJ = (176, 192, 208); PT = 224
    stamp(n, "p1")
    E("s_cmp_eq_u32 s61, 10"); E(f"s_cbranch_scc1 {n}_p1b"); E("s_cmp_gt_u32 s61, 10"); E(f"s_cbranch_scc1 {n}_p1c")
    for vn, sws in (("a", (False, False, False)), ("b", (False, False, True)), ("c", (True, True, True))):
        L(f"{n}_p1{vn}")
        for c in range(4):
            E(f"s_waitcnt vmcnt({14 if c < 3 else 0})"); E("s_barrier")
            if vn == "a": stamp(n, "p1")
            items = []
            for s in range(8*c, 8*c+8):
                for j in range(3):
                    items.append(((10, 3072*s + 64*j) if s < 16 else (13, 3072*(s-16) + 64*j)) + (VX+4*s, ACCJ[j]))
            nxt = chunk(c + 2) if c < 2 else []
            for i in mfma_items(items, False, lambda i: sws[i % 3], lambda i: c == 0 and i < 3, 192):
                if nxt and i % 3 != 2: issue([nxt.pop(0)])
            assert not nxt
        E("s_nop 15")
        if vn == "a": stamp(n, "p1")
        for j, sw in enumerate(sws):
            E(f"s_add_u32 s12, s11, {j}"); pack(ACCJ[j], PT + 8*j); T_ = PT + 8*j
            if not sw:
                E("s_lshr_b32 s14, s12, 4"); E("s_lshl_b32 s14, s14, 21"); E("s_and_b32 s15, s12, 15"); E("s_lshl_b32 s15, s15, 17")
                E("s_add_u32 s14, s14, s15"); E("s_add_u32 s15, s14, 65536")
                E(f"buffer_store_dwordx4 v[{T_}:{T_+3}], v11, s[48:51], s14 offen{SC}")
                E(f"buffer_store_dwordx4 v[{T_+4}:{T_+7}], v11, s[48:51], s15 offen{SC}")
            else:
                E("s_sub_u32 s14, s12, 32"); E("s_lshl_b32 s14, s14, 17"); E(f"s_add_u32 s14, s14, {WS_V}")
                E(f"buffer_store_dwordx4 v[{T_}:{T_+3}], v12, s[48:51], s14 offen{SC}")
                E(f"buffer_store_dwordx4 v[{T_+4}:{T_+7}], v12, s[48:51], s14 offen offset:512{SC}")
        if vn != "c": E(f"s_branch {n}_p1e")
    L(f"{n}_p1e")
    stamp(n, "p1")
    stamp(n); signal(n, 0); stamp(n)
    srd(44, 20, 0, 512*1024)
    dma_setup(1024); issue(dma_list(44, 62, 0, 0, 8, 1024))
    E("v_mov_b32 v5, 0x3f803f80")
    for r in range(144): E(f"v_accvgpr_write_b32 a{80+r}, v5")
    wait(n, 0, 2); stamp(n); stamp(n, "p2")
    S, O, PK = 96, 240, 16
    srd(40, 34, WS_Q, 2*MB); srd(44, 34, WS_K - 8192, 2*MB + 8192); srd(48, 34, WS_V - 8192, 2*MB + 8192); srd(52, 34, WS_O, 2*MB)
    E("v_lshlrev_b32 v5, 2, v4"); E("v_sub_u32 v11, v3, v5")
    E("s_sub_i32 s15, 256, s10"); E("s_max_i32 s15, s15, 0")
    E("v_lshlrev_b32 v6, 4, v4")
    E("s_lshl_b32 s11, s61, 1")
    E("s_lshl_b32 s12, s11, 11"); E("s_add_u32 s12, s12, s10")
    E("v_add_u32 v5, s12, v3"); E("v_lshlrev_b32 v5, 5, v5"); E("v_add_u32 v8, v5, v6"); E("v_add_u32 v13, 0x10000, v8")
    E("s_lshl_b32 s14, s15, 5")
    E("v_and_b32 v5, 15, v0"); E("v_lshlrev_b32 v5, 4, v5"); E("v_lshlrev_b32 v9, 8, v4"); E("v_add_u32 v5, v5, v9")
    E("s_lshl_b32 s13, s11, 16"); E("s_lshl_b32 s12, s10, 5"); E("s_add_u32 s13, s13, s12"); E("v_add_u32 v9, s13, v5"); E("v_add_u32 v14, 0x10000, v9")
    E("s_mov_b32 s66x, 0") if False else None
    E("s_mov_b32 s72, 0x0000ffff"); E("s_mov_b32 s73, 0x0000ffff")
    def qk(hh):
        va = (8, 13)[hh]
        r = [[f"buffer_load_dwordx4 a[{72+4*hh}:{75+4*hh}], v{va}, s[40:43], 0 offen{SC}"]]
        for kb in range(9):
            r.append([f"s_max_u32 s12, s14, {kb*1024}", f"buffer_load_dwordx4 a[{36*hh+4*kb}:{36*hh+4*kb+3}], v{va}, s[44:47], s12 offen{SC}"])
        return r
    def vv(hh):
        return [["s_mov_b64 exec, s[72:73]", f"s_max_u32 s12, s14, {512*t}",
                 f"buffer_load_dwordx4 a[{80+72*hh+4*t}:{80+72*hh+4*t+3}], v{(9,14)[hh]}, s[48:51], s12 offen{SC}", "s_mov_b64 exec, -1"] for t in range(18)]
    issue(qk(0)); issue(vv(0))
    E("s_add_u32 s13, s10, s11"); E("s_lshl_b32 s13, s13, 10"); E("v_lshlrev_b32 v5, 4, v1"); E("v_add_u32 v10, s13, v5")
    stamp(n, "p2")
    for hh in range(2):
        pf = (qk(1) + vv(1)) if hh == 0 else (regl(1) + regl(2) + regl(3))
        npf0 = len(pf)
        E(f"v_mov_b32 v12, {f2u(-1e30):#x}")
        for kb in range(9):
            E(f"s_waitcnt vmcnt({(26-kb) if hh == 0 else (8 + 1 + 18 + 8 - kb)})")
            E(f"v_mfma_f32_32x32x16_bf16 v[{S+16*kb}:{S+16*kb+15}], a[{36*hh+4*kb}:{36*hh+4*kb+3}], a[{72+4*hh}:{75+4*hh}], 0")
        E("s_nop 7"); E("s_nop 3"); stamp(n, "p2")
        for kb in range(8):
            E(f"s_cmp_ge_u32 s10, {256-32*kb}"); E(f"s_cbranch_scc1 {n}_ok{hh}_{kb}")
            for i in range(16): E(f"v_mov_b32 v{S+16*kb+i}, v12")
            L(f"{n}_ok{hh}_{kb}")
        for i in range(16):
            c = 8*(i >> 2) + (i & 3)
            E(f"v_cmp_le_i32 vcc, {c}, v11"); E("s_nop 1")
            E(f"v_cndmask_b32 v{S+128+i}, v12, v{S+128+i}, vcc"); E(f"v_cndmask_b32 v{S+i}, v{S+i}, v12, vcc")
            if i % 3 == 2 and pf: issue([pf.pop(0)])
        for c in range(4): E(f"v_max_f32 v{PK+c}, v{S+c}, v{S+4+c}")
        for r in range(8, 144, 8):
            for c in range(4): E(f"v_max3_f32 v{PK+c}, v{PK+c}, v{S+r+c}, v{S+r+4+c}")
            if r % 24 == 0 and pf: issue([pf.pop(0)])
        E(f"v_max_f32 v{PK}, v{PK}, v{PK+1}"); E(f"v_max_f32 v{PK+2}, v{PK+2}, v{PK+3}"); E(f"v_max_f32 v12, v{PK}, v{PK+2}"); E("v_mov_b32 v15, v12")
        E("s_nop 1"); E("v_permlane32_swap_b32 v12, v15"); E("s_nop 1"); E("v_max_f32 v12, v12, v15")
        E(f"s_mov_b32 s13, {f2u(0.25*LOG2E):#x}"); E("v_mul_f32 v12, s13, v12"); stamp(n, "p2")
        for r in range(0, 144, 4):
            for c in range(4): E(f"v_fma_f32 v{S+r+c}, v{S+r+c}, s13, -v12")
            for c in range(4): E(f"v_exp_f32 v{S+r+c}, v{S+r+c}")
            if r >= 4:
                p = r - 4; d = S + 16*(p//16) + (p % 16)//2
                E(f"v_cvt_pk_bf16_f32 v{d}, v{S+p}, v{S+p+1}"); E(f"v_cvt_pk_bf16_f32 v{d+1}, v{S+p+2}, v{S+p+3}")
            if r % 8 == 0 and pf: issue([pf.pop(0)])
        p = 140; d = S + 16*(p//16) + (p % 16)//2
        E("s_nop 0"); E(f"v_cvt_pk_bf16_f32 v{d}, v{S+p}, v{S+p+1}"); E(f"v_cvt_pk_bf16_f32 v{d+1}, v{S+p+2}, v{S+p+3}")
        npf_left = len(pf)
        stamp(n, "p2")
        assert npf_left == 0
        E(f"s_waitcnt vmcnt({npf0 if hh == 0 else (9+npf0)})"); stamp(n, "p2")
        if hh == 0: pf = regl(0)
        for t in range(18):
            if pf and t % 2 == 1: issue([pf.pop(0)])
            bb = S + 16*(t//2) + 4*(t % 2)
            E(f"v_mfma_f32_32x32x16_bf16 v[{O}:{O+15}], a[{80+72*hh+4*t}:{80+72*hh+4*t+3}], v[{bb}:{bb+3}], {'0' if t == 0 else f'v[{O}:{O+15}]'}")
        E("s_nop 15"); E(f"v_rcp_f32 v12, v{O+8}"); E("s_nop 0")
        for i in range(8): E(f"v_mul_f32 v{O+i}, v{O+i}, v12")
        for i in range(4): E(f"v_cvt_pk_bf16_f32 v{PK+i}, v{O+2*i}, v{O+2*i+1}")
        assert not pf
        E(f"buffer_store_dwordx4 v[{PK}:{PK+3}], v10, s[52:55], 0 offen offset:{1024*hh}{SC}")
        E("s_nop 1")
    stamp(n); signal(n, 1); stamp(n)
    srd(40, 34, WS_O, 2*MB); srd(48, 34, WS_H, 2*MB); srd(52, 16, 0, 2*MB)
    E("v_add_u32 v9, s10, v3")
    w_addr(True, 10)
    E("v_lshlrev_b32 v12, 10, v9"); E("v_lshlrev_b32 v5, 3, v4"); E("v_add_u32 v12, v12, v5"); E("s_lshl_b32 s13, s61, 11")
    for q in range(4): E(f"buffer_load_dwordx2 v[{VT+8+2*q}:{VT+9+2*q}], v12, s[52:55], s62 offen offset:{16*q}")
    wait(n, 1); stamp(n)
    load_xt2(40, 32, 32)
    E("s_waitcnt vmcnt(0)"); E("s_barrier")
    items = [(10, 1024*s, VX+4*s, ACC0) for s in range(32)]
    for _ in mfma_items(items, True, lambda i: False, lambda i: i == 0): pass
    E("s_nop 15")
    for i in range(8):
        E(f"v_lshlrev_b32 v5, 16, v{VT+8+i}"); E(f"v_and_b32 v6, 0xffff0000, v{VT+8+i}")
        E(f"v_add_f32 v{ACC0+2*i}, v{ACC0+2*i}, v5"); E(f"v_add_f32 v{ACC0+2*i+1}, v{ACC0+2*i+1}, v6")
    pack(ACC0, VT)
    E(f"buffer_store_dwordx4 v[{VT}:{VT+3}], v8, s[48:51], s13 offen{SC}")
    E(f"buffer_store_dwordx4 v[{VT+4}:{VT+7}], v8, s[48:51], s13 offen offset:1024{SC}")
    stamp(n); signal(n, 2); stamp(n)
    issue(regl(4))
    wait(n, 2); stamp(n)
    srd(40, 34, WS_H, 2*MB); srd(52, 34, WS_HH, 2048*2752)
    load_xt2(40, 32, 32)
    E("s_lshr_b32 s4, s10, 5"); E(f"s_mul_i32 s4, s4, {86*1024}"); E("v_lshlrev_b32 v11, 4, v1"); E("v_add_u32 v11, s4, v11")
    ln_regs(0, [], True)
    E(f"s_mov_b32 s13, {f2u(-LOG2E):#x}")
    E("s_barrier")
    def norm(s):
        r = []
        for q in range(4):
            x = VX + 4*s + q; a_, b_ = 240 + 2*q, 241 + 2*q
            r += [f"v_lshlrev_b32 v{a_}, 16, v{x}", f"v_and_b32 v{b_}, 0xffff0000, v{x}"]
        for q in range(4):
            a_, b_ = 240 + 2*q, 241 + 2*q
            r += [f"v_fma_f32 v{a_}, v{a_}, v12, v15", f"v_fma_f32 v{b_}, v{b_}, v12, v15"]
        for q in range(4):
            r += [f"v_cvt_pk_bf16_f32 v{VX+4*s+q}, v{240+2*q}, v{241+2*q}"]
        return r
    def epi(j, G, U):
        r = []
        for i in range(16): r.append(f"v_mul_f32 v{G+i}, s13, v{G+i}")
        for i in range(16): r.append(f"v_exp_f32 v{G+i}, v{G+i}")
        for i in range(16): r.append(f"v_add_f32 v{G+i}, 1.0, v{G+i}")
        for i in range(16): r.append(f"v_rcp_f32 v{G+i}, v{G+i}")
        for i in range(16): r.append(f"v_mul_f32 v{G+i}, v{G+i}, v{U+i}")
        for i in range(8): r.append(f"v_cvt_pk_bf16_f32 v{248+i}, v{G+2*i}, v{G+2*i+1}")
        r += [f"s_add_u32 s12, s63, {64*j}", "s_lshl_b32 s12, s12, 5",
              f"buffer_store_dwordx4 v[248:251], v11, s[52:55], s12 offen{SC}",
              f"buffer_store_dwordx4 v[252:255], v11, s[52:55], s12 offen offset:1024{SC}"]
        return r
    for x in norm(0) + norm(1): E(x)
    fill = []
    srd(44, 28, 0, 1376*1024); dma_setup(1024)
    w5 = dma_list(44, 62, 0, 32768, 16, 1024) + dma_list(44, 62, 1024*1024, 131072, 6, 1024)
    for j in range(3):
        G, U = (176, 192) if j % 2 == 0 else (208, 224)
        sg, su = slotof[2*j]*32768, slotof[2*j+1]*32768
        E(f"v_add_u32 v13, {sg}, v10"); E(f"v_add_u32 v14, {su}, v10")
        items = []
        for s in range(32): items += [(13, 1024*s, VX+4*s, G), (14, 1024*s, VX+4*s, U)]
        for i in mfma_items(items, True, lambda i: False, lambda i: i < 2):
            if j == 0 and i % 2 == 1 and i//2 + 2 < 32:
                for x in norm(i//2 + 2): E(x)
            if j > 0 and i >= 4:
                for _ in range(2):
                    if fill: E(fill.pop(0))
            if j == 2 and i >= 2 and i % 2 == 0 and w5: issue([w5.pop(0)])
        assert not fill
        if j == 0: E("s_barrier"); issue(regl(5))
        if j == 1: E("s_waitcnt vmcnt(2)"); E("s_barrier")
        fill = epi(j, G, U)
    E("s_nop 15")
    for x in fill: E(x)
    stamp(n); signal(n, 3); stamp(n)
    NX = 44; X = 56; oldVW = VW; VW = 16; A = 232; T = 48
    assert not w5
    wait(n, 3); stamp(n)
    srd(40, 34, WS_HH, 2048*2752); srd(48, 34, WS_H, 2*MB); srd(52, 30, 0, 2*MB)
    load_xt2(40, 86, NX, X)
    E("v_add_u32 v13, 0x8000, v10"); E("v_add_u32 v14, 0x20000, v10"); E("v_add_u32 v9, s10, v3")
    E("v_lshlrev_b32 v12, 10, v9"); E("v_lshlrev_b32 v5, 3, v4"); E("v_add_u32 v12, v12, v5")
    E("s_lshl_b32 s13, s10, 10"); E("s_lshl_b32 s14, s61, 11"); E("s_add_u32 s13, s13, s14"); E("v_lshlrev_b32 v11, 4, v1")
    E(f"buffer_load_dwordx4 v[248:251], v11, s[48:51], s13 offen{SC}"); E(f"buffer_load_dwordx4 v[252:255], v11, s[48:51], s13 offen offset:1024{SC}")
    E("s_waitcnt vmcnt(45)")
    items = [((13, 1024*s) if s < 64 else (14, 1024*(s-64))) + (X+4*(s % NX), A) for s in range(86)]
    for i in mfma_items(items, True, lambda i: False, lambda i: i == 0):
        if i + NX < 86:
            s = i + NX; E(f"s_mov_b32 s4, {1024*s}"); E(f"buffer_load_dwordx4 v[{X+4*i}:{X+4*i+3}], v8, s[40:43], s4 offen{SC}")
        if i + 1 < 86: E(f"s_waitcnt vmcnt({(45 if i + 1 <= 42 else 44) if i + 1 < NX else 85-(i+1)})")
    VW = oldVW
    E("s_nop 15")
    for i in range(8):
        E(f"v_lshlrev_b32 v5, 16, v{248+i}"); E(f"v_and_b32 v6, 0xffff0000, v{248+i}")
        E(f"v_add_f32 v{A+2*i}, v{A+2*i}, v5"); E(f"v_add_f32 v{A+2*i+1}, v{A+2*i+1}, v6")
    pack(A, T)
    for q in range(4): E(f"buffer_store_dwordx2 v[{T+2*q}:{T+2*q+1}], v12, s[52:55], s62 offen offset:{16*q}")
    epilogue_end(n)

k0(); mega()
hdr = open("cdna_kernels/" + NAME + ".s.ref").read().split("\n")
head = [l for l in hdr if l.startswith(";") and "@launch" not in l and "Override" not in l and "grid=ceil" not in l]
import os
dup = int(os.environ.get("DUP", "-1"))
ll = []
for idx, (k, g, l) in enumerate(kernels):
    ll += [f"; @launch kernel={k} grid=({g},1,1) block=(256,1,1) lds={l}"] * (5 if idx == dup else 1)
if dup == 99: ll = ll + ll
if STAMPK:
    ll = ll + [x for x in ll if STAMPK in x]
txt = head + ll
txt += ['.amdgcn_target "amdgcn-amd-amdhsa--gfx950"', ".text"] + out + ['.section .rodata,"a"']
for k, g, l in kernels:
    txt += [".p2align 6", f".amdhsa_kernel {k}", f"  .amdhsa_next_free_vgpr {512 if k.startswith('km') else 256}", "  .amdhsa_next_free_sgpr 102", "  .amdhsa_accum_offset 256",
            "  .amdhsa_group_segment_fixed_size 0", "  .amdhsa_kernarg_size 80", "  .amdhsa_user_sgpr_count 2",
            "  .amdhsa_user_sgpr_kernarg_segment_ptr 1", "  .amdhsa_system_sgpr_workgroup_id_x 1", ".end_amdhsa_kernel"]
open(os.environ.get("OUT", "cdna_kernels/" + NAME + ".s"), "w").write("\n".join(txt) + "\n")
```

```python
import sys, os
NAME = "sequential_preLN__sliding_block__glu_gated_glu__prompt"
out = []
def E(s): out.append("    " + s)
def L(s): out.append(s + ":")
MB = 1 << 20
WS_Q, WS_K, WS_V, WS_O, WS_H, WS_HH = 0, 2*MB, 4*MB, 6*MB, 8*MB, 10*MB
WS_XN = 16*MB
LOG2E = 1.4426950408889634
import struct
def f2u(f): return struct.unpack("<I", struct.pack("<f", f))[0]

def prologue(name, nwg):
    out.append(".p2align 8"); out.append(f".globl {name}"); out.append(f".type {name},@function"); L(name)
    E(f"s_cmp_ge_u32 s2, {nwg}"); E(f"s_cbranch_scc1 {name}_done")
    E("s_load_dwordx16 s[16:31], s[0:1], 0"); E("s_load_dwordx4 s[32:35], s[0:1], 64")
    E("v_and_b32 v1, 63, v0")
    E("v_lshrrev_b32 v2, 6, v0")
    E("v_and_b32 v3, 31, v0")
    E("v_readfirstlane_b32 s3, v2")
    E("v_bfe_u32 v4, v0, 5, 1")
    E("s_waitcnt lgkmcnt(0)")
STAMPK = os.environ.get("STAMP", "")
nst = [0]
def stamp(name, tag=""):
    if name != STAMPK: return
    if tag != os.environ.get("STAG", "") and nst[0] > 0 and tag != "end": return
    E("s_memrealtime s[74:75]" if os.environ.get("ABS") else "s_memtime s[74:75]"); E("s_waitcnt lgkmcnt(0)"); E(f"s_mov_b32 s{76+nst[0]}, s74"); nst[0] += 1
def epilogue_end(name):
    if name == STAMPK:
        stamp(name, "end")
        srd(40, 32, 0, 256)
        if os.environ.get("ABS"):
            k = int(os.environ["ABS"])
            E("s_and_b32 s4, s2, 7"); E("s_cmp_lg_u32 s4, 0"); E(f"s_cbranch_scc1 {name}_done"); E("s_cmp_lg_u32 s3, 0"); E(f"s_cbranch_scc1 {name}_done")
            E("s_cmp_ge_u32 s2, 256"); E(f"s_cbranch_scc1 {name}_done")
            E("s_lshr_b32 s4, s2, 4"); E("s_lshl_b32 s4, s4, 2"); E("s_and_b32 s5, s2, 8"); E("s_cmp_lg_u32 s5, 0"); E(f"s_cbranch_scc1 {name}_done")
            E("v_mov_b32 v6, s4"); E(f"v_mov_b32 v5, s{76+k}"); E("buffer_store_dword v5, v6, s[40:43], 0 offen"); E(f"s_branch {name}_done")
        E("s_cmp_lg_u32 s2, 8"); E(f"s_cbranch_scc1 {name}_done"); E("s_cmp_lg_u32 s3, 0"); E(f"s_cbranch_scc1 {name}_done")
        srd(40, 32, 0, 256)
        for i in range(nst[0]):
            E(f"s_sub_u32 s4, s{76+i}, s76"); E("v_mov_b32 v5, s4"); E(f"v_mov_b32 v6, {4*i}"); E("buffer_store_dword v5, v6, s[40:43], 0 offen")
    L(f"{name}_done"); E("s_endpgm")
def srd(d, base, off, size):
    if off >= 0:
        E(f"s_add_u32 s{d}, s{base}, {off}"); E(f"s_addc_u32 s{d+1}, s{base+1}, 0")
    else:
        E(f"s_sub_u32 s{d}, s{base}, {-off}"); E(f"s_subb_u32 s{d+1}, s{base+1}, 0")
    E(f"s_mov_b32 s{d+2}, {size}"); E(f"s_mov_b32 s{d+3}, 0x00020000")

VX, VW, ACC0, ACC1, VT = 16, 144, 176, 192, 208

def w_addr(perm, vdst, RB=64):
    E("v_bfe_u32 v5, v0, 2, 2")
    E(f"v_lshlrev_b32 v6, {2 if perm else 3}, v4")
    E("v_add_u32 v5, v5, v6")
    E(f"v_mul_u32_u24 v5, {RB}, v5")
    E("v_bfe_u32 v6, v0, 4, 1")
    E("v_lshlrev_b32 v6, 5, v6")
    E("v_add_u32 v5, v5, v6")
    E("v_and_b32 v6, 3, v0")
    E("v_lshlrev_b32 v6, 3, v6")
    E(f"v_add_u32 v{vdst}, v5, v6")

def dma_setup(ldw):
    E("v_lshrrev_b32 v5, 2, v0"); E(f"s_mov_b32 s4, {ldw}"); E("v_mul_lo_u32 v5, v5, s4")
    E("v_and_b32 v6, 3, v0"); E("v_lshlrev_b32 v6, 4, v6"); E("v_add_u32 v7, v5, v6")
    E("s_lshl_b32 s5, s3, 10")
def dma_region(srdreg, scol, ldsbase, nj, ldw):
    E(f"s_mov_b32 s6, s{scol}"); E(f"s_add_u32 s7, s5, {ldsbase}")
    for j in range(nj):
        E("s_mov_b32 m0, s7");
        if j + 1 < nj: E("s_add_u32 s7, s7, 4096")
        else: E("s_nop 0")
        E(f"buffer_load_dwordx4 v7, s[{srdreg}:{srdreg+3}], s6 offen lds")
        if j + 1 < nj: E(f"s_add_u32 s6, s6, {64*ldw}")

def dma_list(srdreg, scolreg, coladd, ldsbase, nj, ldw):
    r = []
    for j in range(nj):
        r.append([f"s_add_u32 s6, s{scolreg}, {coladd + j*64*ldw}", f"s_add_u32 m0, s5, {ldsbase + j*4096}", "s_nop 0",
                  f"buffer_load_dwordx4 v7, s[{srdreg}:{srdreg+3}], s6 offen lds"])
    return r
def dma_setup_w(ldw):
    E("s_lshl_b32 s5, s3, 10"); E("s_mov_b32 s4, 0xAAAB"); E(f"s_mov_b32 s6, {ldw}")
    for t, vr in enumerate((7, 14, 15)):
        E(f"v_add_u32 v5, {256*t}, v0"); E("v_mul_lo_u32 v6, v5, s4"); E("v_lshrrev_b32 v6, 19, v6")
        E("v_mul_u32_u24 v9, 12, v6"); E("v_sub_u32 v5, v5, v9"); E("v_lshlrev_b32 v5, 4, v5")
        E("v_mul_lo_u32 v6, v6, s6"); E(f"v_add_u32 v{vr}, v5, v6")
def dma_list_w(srdreg, scolreg, ldsbase, row0, nrows, ldw):
    r = []
    for j in range(nrows*12//256):
        r.append([f"s_add_u32 s6, s{scolreg}, {(row0 + (j//3)*64)*ldw}", f"s_add_u32 m0, s5, {ldsbase + j*4096}", "s_nop 0",
                  f"buffer_load_dwordx4 v{(7,14,15)[j%3]}, s[{srdreg}:{srdreg+3}], s6 offen lds"])
    return r
def mfma_items(items, perm, swap_of, first_of, RB=64):
    d2 = 8*RB if perm else 4*RB
    n = len(items); D = 6
    def rd(i):
        va, off, _, _ = items[i]; w = VW + 4 * (i % 8)
        E(f"ds_read_b64_tr_b16 v[{w}:{w+1}], v{va} offset:{off}")
        E(f"ds_read_b64_tr_b16 v[{w+2}:{w+3}], v{va} offset:{off+d2}")
    for i in range(min(D, n)): rd(i)
    for i in range(n):
        va, off, x, acc = items[i][:4]; w = VW + 4 * (i % 8)
        E(f"s_waitcnt lgkmcnt({2*(min(i+D-1, n-1)-i)})")
        c = "0" if first_of(i) else f"v[{acc}:{acc+15}]"
        if swap_of(i): E(f"v_mfma_f32_32x32x16_bf16 v[{acc}:{acc+15}], v[{x}:{x+3}], v[{w}:{w+3}], {c}")
        else:          E(f"v_mfma_f32_32x32x16_bf16 v[{acc}:{acc+15}], v[{w}:{w+3}], v[{x}:{x+3}], {c}")
        if i + D < n: rd(i + D)
        yield i

def ln_regs(ndma, inter=[], jit=False):
    E("s_mov_b32 s8, 0x3f803f80")
    for q in range(4): E(f"v_mov_b32 v{VT+q}, 0"); E(f"v_mov_b32 v{VT+4+q}, 0")
    inter = list(inter); nd = 0
    for g in range(4):
        E(f"s_waitcnt vmcnt({min(63, 24-8*g+nd)})")
        for r in range(32*g, 32*g+32):
            if inter and r % 8 == 4:
                for x in inter.pop(0): E(x)
                nd += 1
            E(f"v_dot2_f32_bf16 v{VT+(r&3)}, v{VX+r}, s8, v{VT+(r&3)}")
            E(f"v_dot2_f32_bf16 v{VT+4+(r&3)}, v{VX+r}, v{VX+r}, v{VT+4+(r&3)}")
    E("s_nop 3")
    E(f"v_add_f32 v{VT}, v{VT}, v{VT+1}"); E(f"v_add_f32 v{VT+2}, v{VT+2}, v{VT+3}")
    E(f"v_add_f32 v{VT+4}, v{VT+4}, v{VT+5}"); E(f"v_add_f32 v{VT+6}, v{VT+6}, v{VT+7}")
    E(f"v_add_f32 v{VT}, v{VT}, v{VT+2}"); E(f"v_add_f32 v{VT+4}, v{VT+4}, v{VT+6}")
    E(f"v_mov_b32 v{VT+1}, v{VT}"); E(f"v_mov_b32 v{VT+5}, v{VT+4}")
    E("s_nop 1")
    E(f"v_permlane32_swap_b32 v{VT}, v{VT+1}"); E(f"v_permlane32_swap_b32 v{VT+4}, v{VT+5}")
    E("s_nop 1")
    E(f"v_add_f32 v{VT}, v{VT}, v{VT+1}"); E(f"v_add_f32 v{VT+4}, v{VT+4}, v{VT+5}")
    E(f"v_mul_f32 v{VT}, {f2u(1/512):#x}, v{VT}")
    E(f"v_mul_f32 v{VT+4}, {f2u(1/512):#x}, v{VT+4}")
    E(f"v_fma_f32 v{VT+4}, -v{VT}, v{VT}, v{VT+4}")
    E(f"v_max_f32 v{VT+4}, 0, v{VT+4}")
    E(f"v_add_f32 v{VT+4}, {f2u(1e-5):#x}, v{VT+4}")
    E(f"v_rsq_f32 v{VT+4}, v{VT+4}")
    E("s_nop 0")
    E(f"v_mul_f32 v{VT}, v{VT}, v{VT+4}")
    E(f"v_sub_f32 v{VT}, 0, v{VT}")
    if jit:
        E(f"v_mov_b32 v12, v{VT+4}"); E(f"v_mov_b32 v15, v{VT}"); return
    for r in range(128):
        if inter and r % 5 == 0:
            for x in inter.pop(0): E(x)
        a, b = VT + 8 + 2 * (r & 3), VT + 9 + 2 * (r & 3)
        E(f"v_lshlrev_b32 v{a}, 16, v{VX+r}"); E(f"v_and_b32 v{b}, 0xffff0000, v{VX+r}")
        E(f"v_fma_f32 v{a}, v{a}, v{VT+4}, v{VT}"); E(f"v_fma_f32 v{b}, v{b}, v{VT+4}, v{VT}")
        E(f"v_cvt_pk_bf16_f32 v{VX+r}, v{a}, v{b}")

def load_x(srdreg, ld, nsteps, base=VX):
    E("s_lshl_b32 s10, s3, 5"); E("s_add_u32 s10, s10, s9")
    E("v_add_u32 v9, s10, v3"); E(f"s_mov_b32 s4, {ld}"); E("v_mul_lo_u32 v8, v9, s4")
    E("v_lshlrev_b32 v5, 4, v4"); E("v_add_u32 v8, v8, v5")
    for s in range(nsteps):
        E(f"buffer_load_dwordx4 v[{base+4*s}:{base+4*s+3}], v8, s[{srdreg}:{srdreg+3}], 0 offen offset:{32*s}")
def wgmap(a=2):
    if a == 2:
        E("s_and_b32 s9, s2, 7"); E("s_lshl_b32 s9, s9, 1"); E("s_lshr_b32 s11, s2, 7"); E("s_add_u32 s9, s9, s11"); E("s_lshl_b32 s9, s9, 7")
        E("s_lshr_b32 s11, s2, 3"); E("s_and_b32 s11, s11, 15")
    else:
        E("s_bfe_u32 s9, s2, 0x20001"); E("s_lshl_b32 s9, s9, 2"); E("s_lshr_b32 s11, s2, 6"); E("s_add_u32 s9, s9, s11"); E("s_lshl_b32 s9, s9, 7")
        E("s_bfe_u32 s11, s2, 0x30003"); E("s_and_b32 s4, s2, 1"); E("s_lshl_b32 s4, s4, 3"); E("s_add_u32 s11, s11, s4")
def load_xt(srdreg, nsteps_total, nsteps, base=VX):
    E("s_lshl_b32 s10, s3, 5"); E("s_add_u32 s10, s10, s9"); E("v_add_u32 v9, s10, v3")
    E("s_lshr_b32 s4, s10, 5"); E(f"s_mul_i32 s4, s4, {nsteps_total*1024}")
    E("v_lshlrev_b32 v8, 4, v1"); E("v_add_u32 v8, s4, v8")
    for s in range(nsteps):
        if s % 4 == 0: E(f"s_mov_b32 s4, {1024*s}")
        E(f"buffer_load_dwordx4 v[{base+4*s}:{base+4*s+3}], v8, s[{srdreg}:{srdreg+3}], s4 offen offset:{1024*(s%4)}")
def pack(acc, dst):
    for i in range(8): E(f"v_cvt_pk_bf16_f32 v{dst+i}, v{acc+2*i}, v{acc+2*i+1}")

kernels = []
WS_T = 24*MB
def k0():
    n = "k0_ln_kernel"; kernels.append((n, 256, 0)); prologue(n, 256)
    E("s_and_b32 s9, s2, 7"); E("s_lshl_b32 s9, s9, 8"); E("s_lshr_b32 s10, s2, 3"); E("s_lshl_b32 s10, s10, 3"); E("s_add_u32 s9, s9, s10")
    E("s_lshl_b32 s10, s3, 1"); E("s_add_u32 s9, s9, s10")
    srd(40, 16, 0, 2*MB); srd(44, 34, WS_XN, 2*MB)
    E("s_cmp_lg_u32 s2, 0"); E("s_cbranch_scc1 k0_nz")
    srd(52, 34, 20*MB, 16384)
    for i in range(4): E(f"v_mov_b32 v{40+i}, 0")
    E("v_lshlrev_b32 v5, 6, v0")
    for i in range(4): E(f"buffer_store_dwordx4 v[40:43], v5, s[52:55], 0 offen offset:{16*i}")
    L("k0_nz")
    E("s_lshl_b32 s10, s9, 10"); E("v_lshlrev_b32 v5, 4, v1")
    E("buffer_load_dwordx4 v[16:19], v5, s[40:43], s10 offen"); E("buffer_load_dwordx4 v[20:23], v5, s[40:43], s10 offen offset:1024")
    E("s_lshr_b32 s11, s9, 5"); E("s_lshl_b32 s11, s11, 15"); E("s_and_b32 s12, s9, 31"); E("s_lshl_b32 s12, s12, 4"); E("s_add_u32 s11, s11, s12")
    E("v_lshrrev_b32 v6, 1, v1"); E("v_lshlrev_b32 v6, 10, v6"); E("v_and_b32 v7, 1, v1"); E("v_lshlrev_b32 v7, 9, v7"); E("v_add_u32 v6, v6, v7")
    E("s_mov_b32 s8, 0x3f803f80")
    for q in range(4): E(f"v_mov_b32 v{24+q}, 0")
    if os.environ.get("PF", "1") == "1":
        E("s_lshl_b32 s12, s2, 12"); E("v_lshlrev_b32 v32, 4, v0"); E("v_add_u32 v32, s12, v32"); E("v_add_u32 v33, 0x100000, v32")
        k = 0
        for base, size in ((18, 512*3072),):
            srd(48, base, 0, size)
            E(f"buffer_load_dwordx4 v[{36+4*k}:{39+4*k}], v32, s[48:51], 0 offen"); k += 1
            if size > MB: E(f"buffer_load_dwordx4 v[{36+4*k}:{39+4*k}], v33, s[48:51], 0 offen"); k += 1
        E("s_lshl_b32 s60, s2, 2"); E("s_add_u32 s60, s60, s3")
        E("v_lshrrev_b32 v34, 2, v1"); E("v_and_b32 v35, 3, v1"); E("v_lshlrev_b32 v35, 4, v35")
        E("v_mul_u32_u24 v33, 2752, v34"); E("v_add_u32 v33, v33, v35"); E("v_lshlrev_b32 v34, 10, v34"); E("v_add_u32 v34, v34, v35")
        E(f"s_mov_b32 s50, {512*2752}"); E("s_mov_b32 s51, 0x00020000")
        for t in range(3):
            E(f"s_add_u32 s61, s60, {1024*t}"); E("s_lshr_b32 s62, s61, 6"); E("s_mul_i32 s62, s62, 171"); E("s_lshr_b32 s62, s62, 9")
            E("s_mul_i32 s63, s62, 192"); E("s_sub_u32 s63, s61, s63")
            E("s_and_b32 s64, s63, 31"); E(f"s_mul_i32 s64, s64, {16*2752}")
            E("s_mul_i32 s65, s62, 86"); E("s_and_b32 s65, s65, 0xfffffff0"); E("s_lshl_b32 s65, s65, 1"); E("s_add_u32 s64, s64, s65")
            E("s_lshr_b32 s65, s63, 6"); E("s_lshl_b32 s65, s65, 6"); E("s_add_u32 s64, s64, s65")
            E("s_bitcmp1_b32 s63, 5"); E("s_cselect_b32 s48, s26, s24"); E("s_cselect_b32 s49, s27, s25")
            E(f"buffer_load_dwordx4 v[{44+4*t}:{47+4*t}], v33, s[48:51], s64 offen")
        srd(48, 28, 0, 1376*1024); srd(52, 20, 0, 512*1024)
        for t in (3, 4):
            E(f"s_add_u32 s61, s60, {1024*(t-3)}"); E("s_min_u32 s66, s61, 1407")
            E("s_lshr_b32 s62, s66, 3"); E("s_mul_i32 s62, s62, 187"); E("s_lshr_b32 s62, s62, 11"); E("s_mul_i32 s63, s62, 88"); E("s_sub_u32 s63, s66, s63")
            E("s_lshl_b32 s63, s63, 14"); E("s_lshl_b32 s62, s62, 6"); E("s_add_u32 s64, s63, s62")
            if t == 3:
                E(f"buffer_load_dwordx4 v[{44+4*t}:{47+4*t}], v34, s[48:51], s64 offen")
            else:
                E("s_cmp_lt_u32 s61, 1408"); E("s_cbranch_scc0 k0_w3")
                E(f"buffer_load_dwordx4 v[{44+4*t}:{47+4*t}], v34, s[48:51], s64 offen"); E("s_branch k0_w3e")
                L("k0_w3"); E("s_sub_u32 s61, s61, 1408"); E("s_min_u32 s61, s61, 511")
                E("s_and_b32 s63, s61, 31"); E("s_lshl_b32 s63, s63, 14"); E("s_lshr_b32 s62, s61, 5"); E("s_lshl_b32 s62, s62, 6"); E("s_add_u32 s64, s63, s62")
                E(f"buffer_load_dwordx4 v[{44+4*t}:{47+4*t}], v34, s[52:55], s64 offen")
                L("k0_w3e")
        srd(52, 34, WS_T, 5*MB); E("s_lshl_b32 s60, s60, 10"); E("v_lshlrev_b32 v35, 4, v1")
        ntl = 0
        if os.environ.get("TLB", "0") == "1":
            E("v_lshlrev_b32 v33, 16, v1")
            srd(48, 34, 0, 24*MB)
            for i in range(6):
                E(f"s_mov_b32 s12, {4*MB*i}"); E(f"buffer_load_dword v{100+ntl}, v33, s[48:51], s12 offen"); ntl += 1
            for base, size in ((18, 512*3072), (20, 512*1024), (24, 512*2752), (26, 512*2752), (28, 1376*1024), (30, 2*MB)):
                srd(48, base, 0, size); E(f"buffer_load_dword v{100+ntl}, v33, s[48:51], 0 offen"); ntl += 1
        npf = int(os.environ.get("NPF", "0"))
        if npf:
            E("s_getpc_b64 s[60:61]"); L("k0_pc")
            E("v_lshlrev_b32 v34, 4, v0")
            for i in range(npf):
                E(f"global_load_dwordx4 v[{72+4*i}:{75+4*i}], v34, s[60:61]"); E("v_add_u32 v34, 0x1000, v34")
        E(f"s_waitcnt vmcnt({7+npf+ntl})")
    else:
        E("s_waitcnt vmcnt(0)")
    for r in range(2):
        for i in range(4):
            E(f"v_dot2_f32_bf16 v{24+2*r}, v{16+4*r+i}, s8, v{24+2*r}"); E(f"v_dot2_f32_bf16 v{25+2*r}, v{16+4*r+i}, v{16+4*r+i}, v{25+2*r}")
    E("s_nop 3")
    for off in (0x041F, 0x081F, 0x101F, 0x201F, 0x401F):
        for q in range(4): E(f"ds_swizzle_b32 v{28+q}, v{24+q} offset:{off:#x}")
        E("s_waitcnt lgkmcnt(0)")
        for q in range(4): E(f"v_add_f32 v{24+q}, v{24+q}, v{28+q}")
    for q in range(4): E(f"v_mov_b32 v{28+q}, v{24+q}")
    E("s_nop 1")
    for q in range(4): E(f"v_permlane32_swap_b32 v{24+q}, v{28+q}")
    E("s_nop 1")
    for q in range(4): E(f"v_add_f32 v{24+q}, v{24+q}, v{28+q}")
    for r in range(2):
        a, b = 24+2*r, 25+2*r
        E(f"v_mul_f32 v{a}, {f2u(1/512):#x}, v{a}"); E(f"v_mul_f32 v{b}, {f2u(1/512):#x}, v{b}")
        E(f"v_fma_f32 v{b}, -v{a}, v{a}, v{b}"); E(f"v_max_f32 v{b}, 0, v{b}"); E(f"v_add_f32 v{b}, {f2u(1e-5):#x}, v{b}")
        E(f"v_rsq_f32 v{b}, v{b}"); E("s_nop 0"); E(f"v_mul_f32 v{a}, v{a}, v{b}"); E(f"v_sub_f32 v{a}, 0, v{a}")
        for i in range(4):
            x = 16+4*r+i
            E(f"v_lshlrev_b32 v30, 16, v{x}"); E(f"v_and_b32 v31, 0xffff0000, v{x}")
            E(f"v_fma_f32 v30, v30, v{b}, v{a}"); E(f"v_fma_f32 v31, v31, v{b}, v{a}"); E(f"v_cvt_pk_bf16_f32 v{x}, v30, v31")
        if r == 0:
            E("s_waitcnt vmcnt(0)")
            for t in range(5):
                E(f"s_add_u32 s61, s60, {MB*t}"); E(f"buffer_store_dwordx4 v[{44+4*t}:{47+4*t}], v35, s[52:55], s61 offen")
        E(f"buffer_store_dwordx4 v[{16+4*r}:{19+4*r}], v6, s[44:47], s11 offen offset:{16*r}")
    epilogue_end(n)

SC = " sc1"
def lanes():
    E("v_and_b32 v1, 63, v0"); E("v_and_b32 v3, 31, v0"); E("v_bfe_u32 v4, v0, 5, 1")
WS_CNT = 20*MB
def signal(n, idx):
    E("s_waitcnt vmcnt(0)"); E("s_barrier")
    E("s_cmp_lg_u32 s3, 0"); E(f"s_cbranch_scc1 {n}_sig{idx}")
    E("s_lshl_b32 s4, s9, 1"); E(f"s_add_u32 s4, s4, {idx*4096}")
    E("v_mov_b32 v5, 1"); E("v_mov_b32 v6, s4"); E("s_mov_b64 exec, 1")
    E("buffer_atomic_add v5, v6, s[56:59], 0 offen"); E("s_mov_b64 exec, -1")
    L(f"{n}_sig{idx}")
def wait(n, idx, back=0):
    E("s_cmp_lg_u32 s3, 0"); E(f"s_cbranch_scc1 {n}_wx{idx}")
    E("s_lshl_b32 s4, s9, 1"); E("v_lshlrev_b32 v6, 8, v1"); E("v_sub_u32 v6, s4, v6"); E("v_max_i32 v6, 0, v6"); E(f"v_add_u32 v6, {idx*4096}, v6")
    E("s_mov_b32 s6, 0"); E(f"s_mov_b64 exec, {(1 << (back+1)) - 1}")
    L(f"{n}_w{idx}")
    E("buffer_load_dword v5, v6, s[56:59], 0 offen sc1"); E("s_waitcnt vmcnt(0)")
    E("v_cmp_gt_u32 vcc, 16, v5"); E("s_add_u32 s6, s6, 1"); E("s_nop 0"); E(f"s_cbranch_vccz {n}_wd{idx}")
    E("s_sleep 3"); E("s_cmp_lt_u32 s6, 0x4000"); E(f"s_cbranch_scc1 {n}_w{idx}")
    L(f"{n}_wd{idx}"); E("s_mov_b64 exec, -1")
    L(f"{n}_wx{idx}")
    E("s_waitcnt vmcnt(0)"); E("s_barrier")
def load_xt2(srdreg, nsteps_total, nsteps, base=VX, sc=SC):
    E("s_lshr_b32 s4, s10, 5"); E(f"s_mul_i32 s4, s4, {nsteps_total*1024}")
    E("v_lshlrev_b32 v8, 4, v1"); E("v_add_u32 v8, s4, v8")
    for s in range(nsteps):
        if s % 4 == 0: E(f"s_mov_b32 s4, {1024*s}")
        E(f"buffer_load_dwordx4 v[{base+4*s}:{base+4*s+3}], v8, s[{srdreg}:{srdreg+3}], s4 offen offset:{1024*(s%4)}{sc}")
def issue(groups):
    for g in groups:
        for x in g: E(x)

def mega():
    global VW
    n = "km_block_kernel"; kernels.append((n, 256, 163840)); prologue(n, 256)
    stamp(n); wgmap(2)
    E("s_mov_b32 s61, s11")
    E("s_lshl_b32 s10, s3, 5"); E("s_add_u32 s10, s10, s9")
    srd(56, 34, WS_CNT, 16384)
    E("s_mul_i32 s11, s61, 3")
    srd(40, 34, WS_XN, 2*MB); srd(44, 18, 0, 512*3072); srd(48, 34, 0, 6*MB)
    srd(64, 34, WS_T, 5*MB); E("s_mul_i32 s68, s61, 196608"); E("s_mul_i32 s69, s61, 90112"); E(f"s_add_u32 s69, s69, {3072*1024}"); E("s_lshl_b32 s70, s61, 15"); E(f"s_add_u32 s70, s70, {4480*1024}")
    E("s_lshl_b32 s62, s61, 6")
    E("s_mul_i32 s63, s61, 86"); E("s_and_b32 s63, s63, 0xfffffff0"); E("s_lshl_b32 s63, s63, 1")
    E("v_lshlrev_b32 v2, 4, v0")
    slotof = {0: 3, 1: 4, 2: 1, 3: 2, 4: 0, 5: 3}
    def tl(sc, add, lds, nj): return [[x.replace(" v7,", " v2,") for x in g] for g in dma_list(64, sc, add, lds, nj, 64)]
    def regl(r): return tl(68, r*32768, slotof[r]*32768, 8)
    p1pf = regl(0) + regl(1)
    dma_setup_w(3072)
    E("s_lshl_b32 s60, s11, 6")
    allw = dma_list_w(44, 60, 0, 0, 512, 3072)
    E("s_lshr_b32 s4, s10, 5"); E(f"s_mul_i32 s4, s4, {32*1024}"); E("v_lshlrev_b32 v8, 4, v1"); E("v_add_u32 v8, s4, v8")
    def chunk(c):
        r = list(allw[6*c:6*c+6])
        for s_ in range(8*c, 8*c+8):
            r.append([f"s_mov_b32 s4, {1024*(s_ & ~3)}", f"buffer_load_dwordx4 v[{VX+4*s_}:{VX+4*s_+3}], v8, s[40:43], s4 offen offset:{1024*(s_%4)}"])
        return r
    issue(chunk(0) + chunk(1))
    E("v_add_u32 v9, s10, v3")
    w_addr(False, 10, 192); E("v_add_u32 v13, 0xc000, v10")
    E("v_lshlrev_b32 v11, 5, v9"); E("v_lshlrev_b32 v5, 4, v4"); E("v_add_u32 v11, v11, v5")
    E("v_bfe_u32 v12, v0, 4, 1"); E("v_lshlrev_b32 v12, 16, v12"); E("v_lshlrev_b32 v5, 8, v4"); E("v_add_u32 v12, v12, v5")
    E("v_and_b32 v5, 15, v0"); E("v_lshlrev_b32 v5, 4, v5"); E("v_add_u32 v12, v12, v5")
    E("s_lshl_b32 s13, s10, 5"); E("v_add_u32 v12, s13, v12")
    ACCJ = (176, 192, 208); PT = 224
    stamp(n, "p1")
    E("s_cmp_eq_u32 s61, 10"); E(f"s_cbranch_scc1 {n}_p1b"); E("s_cmp_gt_u32 s61, 10"); E(f"s_cbranch_scc1 {n}_p1c")
    for vn, sws in (("a", (False, False, False)), ("b", (False, False, True)), ("c", (True, True, True))):
        L(f"{n}_p1{vn}")
        for c in range(4):
            E(f"s_waitcnt vmcnt({14 if c < 3 else 0})"); E("s_barrier")
            if vn == "a": stamp(n, "p1")
            items = []
            for s in range(8*c, 8*c+8):
                for j in range(3):
                    items.append(((10, 3072*s + 64*j) if s < 16 else (13, 3072*(s-16) + 64*j)) + (VX+4*s, ACCJ[j]))
            nxt = chunk(c + 2) if c < 2 else []
            for i in mfma_items(items, False, lambda i: sws[i % 3], lambda i: c == 0 and i < 3, 192):
                if nxt and i % 3 != 2: issue([nxt.pop(0)])
            assert not nxt
        E("s_nop 15")
        if vn == "a": stamp(n, "p1")
        for j, sw in enumerate(sws):
            E(f"s_add_u32 s12, s11, {j}"); pack(ACCJ[j], PT + 8*j); T_ = PT + 8*j
            if not sw:
                E("s_lshr_b32 s14, s12, 4"); E("s_lshl_b32 s14, s14, 21"); E("s_and_b32 s15, s12, 15"); E("s_lshl_b32 s15, s15, 17")
                E("s_add_u32 s14, s14, s15"); E("s_add_u32 s15, s14, 65536")
                E(f"buffer_store_dwordx4 v[{T_}:{T_+3}], v11, s[48:51], s14 offen{SC}")
                E(f"buffer_store_dwordx4 v[{T_+4}:{T_+7}], v11, s[48:51], s15 offen{SC}")
            else:
                E("s_sub_u32 s14, s12, 32"); E("s_lshl_b32 s14, s14, 17"); E(f"s_add_u32 s14, s14, {WS_V}")
                E(f"buffer_store_dwordx4 v[{T_}:{T_+3}], v12, s[48:51], s14 offen{SC}")
                E(f"buffer_store_dwordx4 v[{T_+4}:{T_+7}], v12, s[48:51], s14 offen offset:512{SC}")
        if vn != "c": E(f"s_branch {n}_p1e")
    L(f"{n}_p1e")
    stamp(n, "p1")
    stamp(n); signal(n, 0); stamp(n)
    issue(tl(70, 0, 0, 8))
    E("v_mov_b32 v5, 0x3f803f80")
    for r in range(144): E(f"v_accvgpr_write_b32 a{80+r}, v5")
    wait(n, 0, 2); stamp(n); stamp(n, "p2")
    S, O, PK = 96, 240, 16
    srd(40, 34, WS_Q, 2*MB); srd(44, 34, WS_K - 8192, 2*MB + 8192); srd(48, 34, WS_V - 8192, 2*MB + 8192); srd(52, 34, WS_O, 2*MB)
    E("v_lshlrev_b32 v5, 2, v4"); E("v_sub_u32 v11, v3, v5")
    E("s_sub_i32 s15, 256, s10"); E("s_max_i32 s15, s15, 0")
    E("v_lshlrev_b32 v6, 4, v4")
    E("s_lshl_b32 s11, s61, 1")
    E("s_lshl_b32 s12, s11, 11"); E("s_add_u32 s12, s12, s10")
    E("v_add_u32 v5, s12, v3"); E("v_lshlrev_b32 v5, 5, v5"); E("v_add_u32 v8, v5, v6"); E("v_add_u32 v13, 0x10000, v8")
    E("s_lshl_b32 s14, s15, 5")
    E("v_and_b32 v5, 15, v0"); E("v_lshlrev_b32 v5, 4, v5"); E("v_lshlrev_b32 v9, 8, v4"); E("v_add_u32 v5, v5, v9")
    E("s_lshl_b32 s13, s11, 16"); E("s_lshl_b32 s12, s10, 5"); E("s_add_u32 s13, s13, s12"); E("v_add_u32 v9, s13, v5"); E("v_add_u32 v14, 0x10000, v9")
    E("s_mov_b32 s66x, 0") if False else None
    E("s_mov_b32 s72, 0x0000ffff"); E("s_mov_b32 s73, 0x0000ffff")
    def qk(hh):
        va = (8, 13)[hh]
        r = [[f"buffer_load_dwordx4 a[{72+4*hh}:{75+4*hh}], v{va}, s[40:43], 0 offen{SC}"]]
        for kb in range(9):
            r.append([f"s_max_u32 s12, s14, {kb*1024}", f"buffer_load_dwordx4 a[{36*hh+4*kb}:{36*hh+4*kb+3}], v{va}, s[44:47], s12 offen{SC}"])
        return r
    def vv(hh):
        return [["s_mov_b64 exec, s[72:73]", f"s_max_u32 s12, s14, {512*t}",
                 f"buffer_load_dwordx4 a[{80+72*hh+4*t}:{80+72*hh+4*t+3}], v{(9,14)[hh]}, s[48:51], s12 offen{SC}", "s_mov_b64 exec, -1"] for t in range(18)]
    issue(qk(0)); issue(vv(0))
    E("s_add_u32 s13, s10, s11"); E("s_lshl_b32 s13, s13, 10"); E("v_lshlrev_b32 v5, 4, v1"); E("v_add_u32 v10, s13, v5")
    stamp(n, "p2")
    for hh in range(2):
        pf = (qk(1) + vv(1)) if hh == 0 else (regl(1) + regl(2) + regl(3))
        npf0 = len(pf)
        E(f"v_mov_b32 v12, {f2u(-1e30):#x}")
        for kb in range(9):
            E(f"s_waitcnt vmcnt({(26-kb) if hh == 0 else (8 + 1 + 18 + 8 - kb)})")
            E(f"v_mfma_f32_32x32x16_bf16 v[{S+16*kb}:{S+16*kb+15}], a[{36*hh+4*kb}:{36*hh+4*kb+3}], a[{72+4*hh}:{75+4*hh}], 0")
        E("s_nop 7"); E("s_nop 3"); stamp(n, "p2")
        for kb in range(8):
            E(f"s_cmp_ge_u32 s10, {256-32*kb}"); E(f"s_cbranch_scc1 {n}_ok{hh}_{kb}")
            for i in range(16): E(f"v_mov_b32 v{S+16*kb+i}, v12")
            L(f"{n}_ok{hh}_{kb}")
        for i in range(16):
            c = 8*(i >> 2) + (i & 3)
            E(f"v_cmp_le_i32 vcc, {c}, v11"); E("s_nop 1")
            E(f"v_cndmask_b32 v{S+128+i}, v12, v{S+128+i}, vcc"); E(f"v_cndmask_b32 v{S+i}, v{S+i}, v12, vcc")
            if i % 3 == 2 and pf: issue([pf.pop(0)])
        for c in range(4): E(f"v_max_f32 v{PK+c}, v{S+c}, v{S+4+c}")
        for r in range(8, 144, 8):
            for c in range(4): E(f"v_max3_f32 v{PK+c}, v{PK+c}, v{S+r+c}, v{S+r+4+c}")
            if r % 24 == 0 and pf: issue([pf.pop(0)])
        E(f"v_max_f32 v{PK}, v{PK}, v{PK+1}"); E(f"v_max_f32 v{PK+2}, v{PK+2}, v{PK+3}"); E(f"v_max_f32 v12, v{PK}, v{PK+2}"); E("v_mov_b32 v15, v12")
        E("s_nop 1"); E("v_permlane32_swap_b32 v12, v15"); E("s_nop 1"); E("v_max_f32 v12, v12, v15")
        E(f"s_mov_b32 s13, {f2u(0.25*LOG2E):#x}"); E("v_mul_f32 v12, s13, v12"); stamp(n, "p2")
        for r in range(0, 144, 4):
            for c in range(4): E(f"v_fma_f32 v{S+r+c}, v{S+r+c}, s13, -v12")
            for c in range(4): E(f"v_exp_f32 v{S+r+c}, v{S+r+c}")
            if r >= 4:
                p = r - 4; d = S + 16*(p//16) + (p % 16)//2
                E(f"v_cvt_pk_bf16_f32 v{d}, v{S+p}, v{S+p+1}"); E(f"v_cvt_pk_bf16_f32 v{d+1}, v{S+p+2}, v{S+p+3}")
            if r % 8 == 0 and pf: issue([pf.pop(0)])
        p = 140; d = S + 16*(p//16) + (p % 16)//2
        E("s_nop 0"); E(f"v_cvt_pk_bf16_f32 v{d}, v{S+p}, v{S+p+1}"); E(f"v_cvt_pk_bf16_f32 v{d+1}, v{S+p+2}, v{S+p+3}")
        npf_left = len(pf)
        stamp(n, "p2")
        assert npf_left == 0
        E(f"s_waitcnt vmcnt({npf0 if hh == 0 else (9+npf0)})"); stamp(n, "p2")
        if hh == 0: pf = regl(0)
        for t in range(18):
            if pf and t % 2 == 1: issue([pf.pop(0)])
            bb = S + 16*(t//2) + 4*(t % 2)
            E(f"v_mfma_f32_32x32x16_bf16 v[{O}:{O+15}], a[{80+72*hh+4*t}:{80+72*hh+4*t+3}], v[{bb}:{bb+3}], {'0' if t == 0 else f'v[{O}:{O+15}]'}")
        E("s_nop 15"); E(f"v_rcp_f32 v12, v{O+8}"); E("s_nop 0")
        for i in range(8): E(f"v_mul_f32 v{O+i}, v{O+i}, v12")
        for i in range(4): E(f"v_cvt_pk_bf16_f32 v{PK+i}, v{O+2*i}, v{O+2*i+1}")
        assert not pf
        E(f"buffer_store_dwordx4 v[{PK}:{PK+3}], v10, s[52:55], 0 offen offset:{1024*hh}{SC}")
        E("s_nop 1")
    stamp(n); signal(n, 1); stamp(n)
    srd(40, 34, WS_O, 2*MB); srd(48, 34, WS_H, 2*MB); srd(52, 16, 0, 2*MB)
    E("v_add_u32 v9, s10, v3")
    w_addr(True, 10)
    E("v_lshlrev_b32 v12, 10, v9"); E("v_lshlrev_b32 v5, 3, v4"); E("v_add_u32 v12, v12, v5"); E("s_lshl_b32 s13, s61, 11")
    for q in range(4): E(f"buffer_load_dwordx2 v[{VT+8+2*q}:{VT+9+2*q}], v12, s[52:55], s62 offen offset:{16*q}")
    wait(n, 1); stamp(n)
    load_xt2(40, 32, 32)
    E("s_waitcnt vmcnt(0)"); E("s_barrier")
    items = [(10, 1024*s, VX+4*s, ACC0) for s in range(32)]
    for _ in mfma_items(items, True, lambda i: False, lambda i: i == 0): pass
    E("s_nop 15")
    for i in range(8):
        E(f"v_lshlrev_b32 v5, 16, v{VT+8+i}"); E(f"v_and_b32 v6, 0xffff0000, v{VT+8+i}")
        E(f"v_add_f32 v{ACC0+2*i}, v{ACC0+2*i}, v5"); E(f"v_add_f32 v{ACC0+2*i+1}, v{ACC0+2*i+1}, v6")
    pack(ACC0, VT)
    E(f"buffer_store_dwordx4 v[{VT}:{VT+3}], v8, s[48:51], s13 offen{SC}")
    E(f"buffer_store_dwordx4 v[{VT+4}:{VT+7}], v8, s[48:51], s13 offen offset:1024{SC}")
    stamp(n); signal(n, 2); stamp(n)
    issue(regl(4))
    wait(n, 2); stamp(n)
    srd(40, 34, WS_H, 2*MB); srd(52, 34, WS_HH, 2048*2752)
    load_xt2(40, 32, 32)
    E("s_lshr_b32 s4, s10, 5"); E(f"s_mul_i32 s4, s4, {86*1024}"); E("v_lshlrev_b32 v11, 4, v1"); E("v_add_u32 v11, s4, v11")
    ln_regs(0, [], True)
    E(f"s_mov_b32 s13, {f2u(-LOG2E):#x}")
    E("s_barrier")
    def norm(s):
        r = []
        for q in range(4):
            x = VX + 4*s + q; a_, b_ = 240 + 2*q, 241 + 2*q
            r += [f"v_lshlrev_b32 v{a_}, 16, v{x}", f"v_and_b32 v{b_}, 0xffff0000, v{x}"]
        for q in range(4):
            a_, b_ = 240 + 2*q, 241 + 2*q
            r += [f"v_fma_f32 v{a_}, v{a_}, v12, v15", f"v_fma_f32 v{b_}, v{b_}, v12, v15"]
        for q in range(4):
            r += [f"v_cvt_pk_bf16_f32 v{VX+4*s+q}, v{240+2*q}, v{241+2*q}"]
        return r
    def epi(j, G, U):
        r = []
        for i in range(16): r.append(f"v_mul_f32 v{G+i}, s13, v{G+i}")
        for i in range(16): r.append(f"v_exp_f32 v{G+i}, v{G+i}")
        for i in range(16): r.append(f"v_add_f32 v{G+i}, 1.0, v{G+i}")
        for i in range(16): r.append(f"v_rcp_f32 v{G+i}, v{G+i}")
        for i in range(16): r.append(f"v_mul_f32 v{G+i}, v{G+i}, v{U+i}")
        for i in range(8): r.append(f"v_cvt_pk_bf16_f32 v{248+i}, v{G+2*i}, v{G+2*i+1}")
        r += [f"s_add_u32 s12, s63, {64*j}", "s_lshl_b32 s12, s12, 5",
              f"buffer_store_dwordx4 v[248:251], v11, s[52:55], s12 offen{SC}",
              f"buffer_store_dwordx4 v[252:255], v11, s[52:55], s12 offen offset:1024{SC}"]
        return r
    for x in norm(0) + norm(1): E(x)
    fill = []
    w5 = tl(69, 0, 32768, 16) + tl(69, 65536, 131072, 6)
    for j in range(3):
        G, U = (176, 192) if j % 2 == 0 else (208, 224)
        sg, su = slotof[2*j]*32768, slotof[2*j+1]*32768
        E(f"v_add_u32 v13, {sg}, v10"); E(f"v_add_u32 v14, {su}, v10")
        items = []
        for s in range(32): items += [(13, 1024*s, VX+4*s, G), (14, 1024*s, VX+4*s, U)]
        for i in mfma_items(items, True, lambda i: False, lambda i: i < 2):
            if j == 0 and i % 2 == 1 and i//2 + 2 < 32:
                for x in norm(i//2 + 2): E(x)
            if j > 0 and i >= 4:
                for _ in range(2):
                    if fill: E(fill.pop(0))
            if j == 2 and i >= 2 and i % 2 == 0 and w5: issue([w5.pop(0)])
        assert not fill
        if j == 0: E("s_barrier"); issue(regl(5))
        if j == 1: E("s_waitcnt vmcnt(2)"); E("s_barrier")
        fill = epi(j, G, U)
    E("s_nop 15")
    for x in fill: E(x)
    stamp(n); signal(n, 3); stamp(n)
    NX = 44; X = 56; oldVW = VW; VW = 16; A = 232; T = 48
    assert not w5
    wait(n, 3); stamp(n)
    srd(40, 34, WS_HH, 2048*2752); srd(48, 34, WS_H, 2*MB); srd(52, 30, 0, 2*MB)
    load_xt2(40, 86, NX, X)
    E("v_add_u32 v13, 0x8000, v10"); E("v_add_u32 v14, 0x20000, v10"); E("v_add_u32 v9, s10, v3")
    E("v_lshlrev_b32 v12, 10, v9"); E("v_lshlrev_b32 v5, 3, v4"); E("v_add_u32 v12, v12, v5")
    E("s_lshl_b32 s13, s10, 10"); E("s_lshl_b32 s14, s61, 11"); E("s_add_u32 s13, s13, s14"); E("v_lshlrev_b32 v11, 4, v1")
    E(f"buffer_load_dwordx4 v[248:251], v11, s[48:51], s13 offen{SC}"); E(f"buffer_load_dwordx4 v[252:255], v11, s[48:51], s13 offen offset:1024{SC}")
    E("s_waitcnt vmcnt(45)")
    items = [((13, 1024*s) if s < 64 else (14, 1024*(s-64))) + (X+4*(s % NX), A) for s in range(86)]
    for i in mfma_items(items, True, lambda i: False, lambda i: i == 0):
        if i + NX < 86:
            s = i + NX; E(f"s_mov_b32 s4, {1024*s}"); E(f"buffer_load_dwordx4 v[{X+4*i}:{X+4*i+3}], v8, s[40:43], s4 offen{SC}")
        if i + 1 < 86: E(f"s_waitcnt vmcnt({(45 if i + 1 <= 42 else 44) if i + 1 < NX else 85-(i+1)})")
    VW = oldVW
    E("s_nop 15")
    for i in range(8):
        E(f"v_lshlrev_b32 v5, 16, v{248+i}"); E(f"v_and_b32 v6, 0xffff0000, v{248+i}")
        E(f"v_add_f32 v{A+2*i}, v{A+2*i}, v5"); E(f"v_add_f32 v{A+2*i+1}, v{A+2*i+1}, v6")
    pack(A, T)
    for q in range(4): E(f"buffer_store_dwordx2 v[{T+2*q}:{T+2*q+1}], v12, s[52:55], s62 offen offset:{16*q}")
    epilogue_end(n)

k0(); mega()
hdr = open("cdna_kernels/" + NAME + ".s.ref").read().split("\n")
head = [l for l in hdr if l.startswith(";") and "@launch" not in l and "Override" not in l and "grid=ceil" not in l]
import os
dup = int(os.environ.get("DUP", "-1"))
ll = []
for idx, (k, g, l) in enumerate(kernels):
    ll += [f"; @launch kernel={k} grid=({g},1,1) block=(256,1,1) lds={l}"] * (5 if idx == dup else 1)
if dup == 99: ll = ll + ll
if STAMPK:
    ll = ll + [x for x in ll if STAMPK in x]
txt = head + ll
txt += ['.amdgcn_target "amdgcn-amd-amdhsa--gfx950"', ".text"] + out + ['.section .rodata,"a"']
for k, g, l in kernels:
    txt += [".p2align 6", f".amdhsa_kernel {k}", f"  .amdhsa_next_free_vgpr {512 if k.startswith('km') else 256}", "  .amdhsa_next_free_sgpr 102", "  .amdhsa_accum_offset 256",
            "  .amdhsa_group_segment_fixed_size 0", "  .amdhsa_kernarg_size 80", "  .amdhsa_user_sgpr_count 2",
            "  .amdhsa_user_sgpr_kernarg_segment_ptr 1", "  .amdhsa_system_sgpr_workgroup_id_x 1", ".end_amdhsa_kernel"]
open(os.environ.get("OUT", "cdna_kernels/" + NAME + ".s"), "w").write("\n".join(txt) + "\n")
```

```python
import sys, os
NAME = "sequential_preLN__sliding_block__glu_gated_glu__prompt"
out = []
def E(s): out.append("    " + s)
def L(s): out.append(s + ":")
MB = 1 << 20
WS_Q, WS_K, WS_V, WS_O, WS_H, WS_HH = 0, 2*MB, 4*MB, 6*MB, 8*MB, 10*MB
WS_XN = 16*MB
LOG2E = 1.4426950408889634
import struct
def f2u(f): return struct.unpack("<I", struct.pack("<f", f))[0]

def prologue(name, nwg):
    out.append(".p2align 8"); out.append(f".globl {name}"); out.append(f".type {name},@function"); L(name)
    E(f"s_cmp_ge_u32 s2, {nwg}"); E(f"s_cbranch_scc1 {name}_done")
    E("s_load_dwordx16 s[16:31], s[0:1], 0"); E("s_load_dwordx4 s[32:35], s[0:1], 64")
    E("v_and_b32 v1, 63, v0")
    E("v_lshrrev_b32 v2, 6, v0")
    E("v_and_b32 v3, 31, v0")
    E("v_readfirstlane_b32 s3, v2")
    E("v_bfe_u32 v4, v0, 5, 1")
    E("s_waitcnt lgkmcnt(0)")
STAMPK = os.environ.get("STAMP", "")
nst = [0]
def stamp(name, tag=""):
    if name != STAMPK: return
    if tag != os.environ.get("STAG", "") and nst[0] > 0 and tag != "end": return
    E("s_memrealtime s[74:75]" if os.environ.get("ABS") else "s_memtime s[74:75]"); E("s_waitcnt lgkmcnt(0)"); E(f"s_mov_b32 s{76+nst[0]}, s74"); nst[0] += 1
def epilogue_end(name):
    if name == STAMPK:
        stamp(name, "end")
        srd(40, 32, 0, 256)
        if os.environ.get("ABS"):
            k = int(os.environ["ABS"])
            E("s_and_b32 s4, s2, 7"); E("s_cmp_lg_u32 s4, 0"); E(f"s_cbranch_scc1 {name}_done"); E("s_cmp_lg_u32 s3, 0"); E(f"s_cbranch_scc1 {name}_done")
            E("s_cmp_ge_u32 s2, 256"); E(f"s_cbranch_scc1 {name}_done")
            E("s_lshr_b32 s4, s2, 4"); E("s_lshl_b32 s4, s4, 2"); E("s_and_b32 s5, s2, 8"); E("s_cmp_lg_u32 s5, 0"); E(f"s_cbranch_scc1 {name}_done")
            E("v_mov_b32 v6, s4"); E(f"v_mov_b32 v5, s{76+k}"); E("buffer_store_dword v5, v6, s[40:43], 0 offen"); E(f"s_branch {name}_done")
        E("s_cmp_lg_u32 s2, 8"); E(f"s_cbranch_scc1 {name}_done"); E("s_cmp_lg_u32 s3, 0"); E(f"s_cbranch_scc1 {name}_done")
        srd(40, 32, 0, 256)
        for i in range(nst[0]):
            E(f"s_sub_u32 s4, s{76+i}, s76"); E("v_mov_b32 v5, s4"); E(f"v_mov_b32 v6, {4*i}"); E("buffer_store_dword v5, v6, s[40:43], 0 offen")
    L(f"{name}_done"); E("s_endpgm")
def srd(d, base, off, size):
    if off >= 0:
        E(f"s_add_u32 s{d}, s{base}, {off}"); E(f"s_addc_u32 s{d+1}, s{base+1}, 0")
    else:
        E(f"s_sub_u32 s{d}, s{base}, {-off}"); E(f"s_subb_u32 s{d+1}, s{base+1}, 0")
    E(f"s_mov_b32 s{d+2}, {size}"); E(f"s_mov_b32 s{d+3}, 0x00020000")

VX, VW, ACC0, ACC1, VT = 16, 144, 176, 192, 208

def w_addr(perm, vdst, RB=64):
    E("v_bfe_u32 v5, v0, 2, 2")
    E(f"v_lshlrev_b32 v6, {2 if perm else 3}, v4")
    E("v_add_u32 v5, v5, v6")
    E(f"v_mul_u32_u24 v5, {RB}, v5")
    E("v_bfe_u32 v6, v0, 4, 1")
    E("v_lshlrev_b32 v6, 5, v6")
    E("v_add_u32 v5, v5, v6")
    E("v_and_b32 v6, 3, v0")
    E("v_lshlrev_b32 v6, 3, v6")
    E(f"v_add_u32 v{vdst}, v5, v6")

def dma_setup(ldw):
    E("v_lshrrev_b32 v5, 2, v0"); E(f"s_mov_b32 s4, {ldw}"); E("v_mul_lo_u32 v5, v5, s4")
    E("v_and_b32 v6, 3, v0"); E("v_lshlrev_b32 v6, 4, v6"); E("v_add_u32 v7, v5, v6")
    E("s_lshl_b32 s5, s3, 10")
def dma_region(srdreg, scol, ldsbase, nj, ldw):
    E(f"s_mov_b32 s6, s{scol}"); E(f"s_add_u32 s7, s5, {ldsbase}")
    for j in range(nj):
        E("s_mov_b32 m0, s7");
        if j + 1 < nj: E("s_add_u32 s7, s7, 4096")
        else: E("s_nop 0")
        E(f"buffer_load_dwordx4 v7, s[{srdreg}:{srdreg+3}], s6 offen lds")
        if j + 1 < nj: E(f"s_add_u32 s6, s6, {64*ldw}")

def dma_list(srdreg, scolreg, coladd, ldsbase, nj, ldw):
    r = []
    for j in range(nj):
        r.append([f"s_add_u32 s6, s{scolreg}, {coladd + j*64*ldw}", f"s_add_u32 m0, s5, {ldsbase + j*4096}", "s_nop 0",
                  f"buffer_load_dwordx4 v7, s[{srdreg}:{srdreg+3}], s6 offen lds"])
    return r
def dma_setup_w(ldw):
    E("s_lshl_b32 s5, s3, 10"); E("s_mov_b32 s4, 0xAAAB"); E(f"s_mov_b32 s6, {ldw}")
    for t, vr in enumerate((7, 14, 15)):
        E(f"v_add_u32 v5, {256*t}, v0"); E("v_mul_lo_u32 v6, v5, s4"); E("v_lshrrev_b32 v6, 19, v6")
        E("v_mul_u32_u24 v9, 12, v6"); E("v_sub_u32 v5, v5, v9"); E("v_lshlrev_b32 v5, 4, v5")
        E("v_mul_lo_u32 v6, v6, s6"); E(f"v_add_u32 v{vr}, v5, v6")
def dma_list_w(srdreg, scolreg, ldsbase, row0, nrows, ldw):
    r = []
    for j in range(nrows*12//256):
        r.append([f"s_add_u32 s6, s{scolreg}, {(row0 + (j//3)*64)*ldw}", f"s_add_u32 m0, s5, {ldsbase + j*4096}", "s_nop 0",
                  f"buffer_load_dwordx4 v{(7,14,15)[j%3]}, s[{srdreg}:{srdreg+3}], s6 offen lds"])
    return r
def mfma_items(items, perm, swap_of, first_of, RB=64):
    d2 = 8*RB if perm else 4*RB
    n = len(items); D = 6
    def rd(i):
        va, off, _, _ = items[i]; w = VW + 4 * (i % 8)
        E(f"ds_read_b64_tr_b16 v[{w}:{w+1}], v{va} offset:{off}")
        E(f"ds_read_b64_tr_b16 v[{w+2}:{w+3}], v{va} offset:{off+d2}")
    for i in range(min(D, n)): rd(i)
    for i in range(n):
        va, off, x, acc = items[i][:4]; w = VW + 4 * (i % 8)
        E(f"s_waitcnt lgkmcnt({2*(min(i+D-1, n-1)-i)})")
        c = "0" if first_of(i) else f"v[{acc}:{acc+15}]"
        if swap_of(i): E(f"v_mfma_f32_32x32x16_bf16 v[{acc}:{acc+15}], v[{x}:{x+3}], v[{w}:{w+3}], {c}")
        else:          E(f"v_mfma_f32_32x32x16_bf16 v[{acc}:{acc+15}], v[{w}:{w+3}], v[{x}:{x+3}], {c}")
        if i + D < n: rd(i + D)
        yield i

def ln_regs(ndma, inter=[], jit=False):
    E("s_mov_b32 s8, 0x3f803f80")
    for q in range(4): E(f"v_mov_b32 v{VT+q}, 0"); E(f"v_mov_b32 v{VT+4+q}, 0")
    inter = list(inter); nd = 0
    for g in range(4):
        E(f"s_waitcnt vmcnt({min(63, 24-8*g+nd)})")
        for r in range(32*g, 32*g+32):
            if inter and r % 8 == 4:
                for x in inter.pop(0): E(x)
                nd += 1
            E(f"v_dot2_f32_bf16 v{VT+(r&3)}, v{VX+r}, s8, v{VT+(r&3)}")
            E(f"v_dot2_f32_bf16 v{VT+4+(r&3)}, v{VX+r}, v{VX+r}, v{VT+4+(r&3)}")
    E("s_nop 3")
    E(f"v_add_f32 v{VT}, v{VT}, v{VT+1}"); E(f"v_add_f32 v{VT+2}, v{VT+2}, v{VT+3}")
    E(f"v_add_f32 v{VT+4}, v{VT+4}, v{VT+5}"); E(f"v_add_f32 v{VT+6}, v{VT+6}, v{VT+7}")
    E(f"v_add_f32 v{VT}, v{VT}, v{VT+2}"); E(f"v_add_f32 v{VT+4}, v{VT+4}, v{VT+6}")
    E(f"v_mov_b32 v{VT+1}, v{VT}"); E(f"v_mov_b32 v{VT+5}, v{VT+4}")
    E("s_nop 1")
    E(f"v_permlane32_swap_b32 v{VT}, v{VT+1}"); E(f"v_permlane32_swap_b32 v{VT+4}, v{VT+5}")
    E("s_nop 1")
    E(f"v_add_f32 v{VT}, v{VT}, v{VT+1}"); E(f"v_add_f32 v{VT+4}, v{VT+4}, v{VT+5}")
    E(f"v_mul_f32 v{VT}, {f2u(1/512):#x}, v{VT}")
    E(f"v_mul_f32 v{VT+4}, {f2u(1/512):#x}, v{VT+4}")
    E(f"v_fma_f32 v{VT+4}, -v{VT}, v{VT}, v{VT+4}")
    E(f"v_max_f32 v{VT+4}, 0, v{VT+4}")
    E(f"v_add_f32 v{VT+4}, {f2u(1e-5):#x}, v{VT+4}")
    E(f"v_rsq_f32 v{VT+4}, v{VT+4}")
    E("s_nop 0")
    E(f"v_mul_f32 v{VT}, v{VT}, v{VT+4}")
    E(f"v_sub_f32 v{VT}, 0, v{VT}")
    if jit:
        E(f"v_mov_b32 v12, v{VT+4}"); E(f"v_mov_b32 v15, v{VT}"); return
    for r in range(128):
        if inter and r % 5 == 0:
            for x in inter.pop(0): E(x)
        a, b = VT + 8 + 2 * (r & 3), VT + 9 + 2 * (r & 3)
        E(f"v_lshlrev_b32 v{a}, 16, v{VX+r}"); E(f"v_and_b32 v{b}, 0xffff0000, v{VX+r}")
        E(f"v_fma_f32 v{a}, v{a}, v{VT+4}, v{VT}"); E(f"v_fma_f32 v{b}, v{b}, v{VT+4}, v{VT}")
        E(f"v_cvt_pk_bf16_f32 v{VX+r}, v{a}, v{b}")

def load_x(srdreg, ld, nsteps, base=VX):
    E("s_lshl_b32 s10, s3, 5"); E("s_add_u32 s10, s10, s9")
    E("v_add_u32 v9, s10, v3"); E(f"s_mov_b32 s4, {ld}"); E("v_mul_lo_u32 v8, v9, s4")
    E("v_lshlrev_b32 v5, 4, v4"); E("v_add_u32 v8, v8, v5")
    for s in range(nsteps):
        E(f"buffer_load_dwordx4 v[{base+4*s}:{base+4*s+3}], v8, s[{srdreg}:{srdreg+3}], 0 offen offset:{32*s}")
def wgmap(a=2):
    if a == 2:
        E("s_and_b32 s9, s2, 7"); E("s_lshl_b32 s9, s9, 1"); E("s_lshr_b32 s11, s2, 7"); E("s_add_u32 s9, s9, s11"); E("s_lshl_b32 s9, s9, 7")
        E("s_lshr_b32 s11, s2, 3"); E("s_and_b32 s11, s11, 15")
    else:
        E("s_bfe_u32 s9, s2, 0x20001"); E("s_lshl_b32 s9, s9, 2"); E("s_lshr_b32 s11, s2, 6"); E("s_add_u32 s9, s9, s11"); E("s_lshl_b32 s9, s9, 7")
        E("s_bfe_u32 s11, s2, 0x30003"); E("s_and_b32 s4, s2, 1"); E("s_lshl_b32 s4, s4, 3"); E("s_add_u32 s11, s11, s4")
def load_xt(srdreg, nsteps_total, nsteps, base=VX):
    E("s_lshl_b32 s10, s3, 5"); E("s_add_u32 s10, s10, s9"); E("v_add_u32 v9, s10, v3")
    E("s_lshr_b32 s4, s10, 5"); E(f"s_mul_i32 s4, s4, {nsteps_total*1024}")
    E("v_lshlrev_b32 v8, 4, v1"); E("v_add_u32 v8, s4, v8")
    for s in range(nsteps):
        if s % 4 == 0: E(f"s_mov_b32 s4, {1024*s}")
        E(f"buffer_load_dwordx4 v[{base+4*s}:{base+4*s+3}], v8, s[{srdreg}:{srdreg+3}], s4 offen offset:{1024*(s%4)}")
def pack(acc, dst):
    for i in range(8): E(f"v_cvt_pk_bf16_f32 v{dst+i}, v{acc+2*i}, v{acc+2*i+1}")

kernels = []
WS_T = 24*MB
def k0():
    n = "k0_ln_kernel"; kernels.append((n, 256, 0)); prologue(n, 256)
    E("s_and_b32 s9, s2, 7"); E("s_lshl_b32 s9, s9, 8"); E("s_lshr_b32 s10, s2, 3"); E("s_lshl_b32 s10, s10, 3"); E("s_add_u32 s9, s9, s10")
    E("s_lshl_b32 s10, s3, 1"); E("s_add_u32 s9, s9, s10")
    srd(40, 16, 0, 2*MB); srd(44, 34, WS_XN, 2*MB)
    E("s_cmp_lg_u32 s2, 0"); E("s_cbranch_scc1 k0_nz")
    srd(52, 34, 20*MB, 16384)
    for i in range(4): E(f"v_mov_b32 v{40+i}, 0")
    E("v_lshlrev_b32 v5, 6, v0")
    for i in range(4): E(f"buffer_store_dwordx4 v[40:43], v5, s[52:55], 0 offen offset:{16*i}")
    L("k0_nz")
    E("s_lshl_b32 s10, s9, 10"); E("v_lshlrev_b32 v5, 4, v1")
    E("buffer_load_dwordx4 v[16:19], v5, s[40:43], s10 offen"); E("buffer_load_dwordx4 v[20:23], v5, s[40:43], s10 offen offset:1024")
    E("s_lshr_b32 s11, s9, 5"); E("s_lshl_b32 s11, s11, 15"); E("s_and_b32 s12, s9, 31"); E("s_lshl_b32 s12, s12, 4"); E("s_add_u32 s11, s11, s12")
    E("v_lshrrev_b32 v6, 1, v1"); E("v_lshlrev_b32 v6, 10, v6"); E("v_and_b32 v7, 1, v1"); E("v_lshlrev_b32 v7, 9, v7"); E("v_add_u32 v6, v6, v7")
    E("s_mov_b32 s8, 0x3f803f80")
    for q in range(4): E(f"v_mov_b32 v{24+q}, 0")
    if os.environ.get("PF", "1") == "1":
        E("s_lshl_b32 s12, s2, 12"); E("v_lshlrev_b32 v32, 4, v0"); E("v_add_u32 v32, s12, v32"); E("v_add_u32 v33, 0x100000, v32")
        k = 0
        for base, size in ((18, 512*3072),):
            srd(48, base, 0, size)
            E(f"buffer_load_dwordx4 v[{36+4*k}:{39+4*k}], v32, s[48:51], 0 offen"); k += 1
            if size > MB: E(f"buffer_load_dwordx4 v[{36+4*k}:{39+4*k}], v33, s[48:51], 0 offen"); k += 1
        E("s_lshl_b32 s60, s2, 2"); E("s_add_u32 s60, s60, s3")
        E("v_lshrrev_b32 v34, 2, v1"); E("v_and_b32 v35, 3, v1"); E("v_lshlrev_b32 v35, 4, v35")
        E("v_mul_u32_u24 v33, 2752, v34"); E("v_add_u32 v33, v33, v35"); E("v_lshlrev_b32 v34, 10, v34"); E("v_add_u32 v34, v34, v35")
        E(f"s_mov_b32 s50, {512*2752}"); E("s_mov_b32 s51, 0x00020000")
        for t in range(3):
            E(f"s_add_u32 s61, s60, {1024*t}"); E("s_lshr_b32 s62, s61, 6"); E("s_mul_i32 s62, s62, 171"); E("s_lshr_b32 s62, s62, 9")
            E("s_mul_i32 s63, s62, 192"); E("s_sub_u32 s63, s61, s63")
            E("s_and_b32 s64, s63, 31"); E(f"s_mul_i32 s64, s64, {16*2752}")
            E("s_mul_i32 s65, s62, 86"); E("s_and_b32 s65, s65, 0xfffffff0"); E("s_lshl_b32 s65, s65, 1"); E("s_add_u32 s64, s64, s65")
            E("s_lshr_b32 s65, s63, 6"); E("s_lshl_b32 s65, s65, 6"); E("s_add_u32 s64, s64, s65")
            E("s_bitcmp1_b32 s63, 5"); E("s_cselect_b32 s48, s26, s24"); E("s_cselect_b32 s49, s27, s25")
            E(f"buffer_load_dwordx4 v[{44+4*t}:{47+4*t}], v33, s[48:51], s64 offen")
        srd(48, 28, 0, 1376*1024); srd(52, 20, 0, 512*1024)
        for t in (3, 4):
            E(f"s_add_u32 s61, s60, {1024*(t-3)}"); E("s_min_u32 s66, s61, 1407")
            E("s_lshr_b32 s62, s66, 3"); E("s_mul_i32 s62, s62, 187"); E("s_lshr_b32 s62, s62, 11"); E("s_mul_i32 s63, s62, 88"); E("s_sub_u32 s63, s66, s63")
            E("s_lshl_b32 s63, s63, 14"); E("s_lshl_b32 s62, s62, 6"); E("s_add_u32 s64, s63, s62")
            if t == 3:
                E(f"buffer_load_dwordx4 v[{44+4*t}:{47+4*t}], v34, s[48:51], s64 offen")
            else:
                E("s_cmp_lt_u32 s61, 1408"); E("s_cbranch_scc0 k0_w3")
                E(f"buffer_load_dwordx4 v[{44+4*t}:{47+4*t}], v34, s[48:51], s64 offen"); E("s_branch k0_w3e")
                L("k0_w3"); E("s_sub_u32 s61, s61, 1408"); E("s_min_u32 s61, s61, 511")
                E("s_and_b32 s63, s61, 31"); E("s_lshl_b32 s63, s63, 14"); E("s_lshr_b32 s62, s61, 5"); E("s_lshl_b32 s62, s62, 6"); E("s_add_u32 s64, s63, s62")
                E(f"buffer_load_dwordx4 v[{44+4*t}:{47+4*t}], v34, s[52:55], s64 offen")
                L("k0_w3e")
        srd(52, 34, WS_T, 5*MB); E("s_lshl_b32 s60, s60, 10"); E("v_lshlrev_b32 v35, 4, v1")
        ntl = 0
        if os.environ.get("TLB", "0") == "1":
            E("v_lshlrev_b32 v33, 16, v1")
            srd(48, 34, 0, 24*MB)
            for i in range(6):
                E(f"s_mov_b32 s12, {4*MB*i}"); E(f"buffer_load_dword v{100+ntl}, v33, s[48:51], s12 offen"); ntl += 1
            for base, size in ((18, 512*3072), (20, 512*1024), (24, 512*2752), (26, 512*2752), (28, 1376*1024), (30, 2*MB)):
                srd(48, base, 0, size); E(f"buffer_load_dword v{100+ntl}, v33, s[48:51], 0 offen"); ntl += 1
        npf = int(os.environ.get("NPF", "0"))
        if npf:
            E("s_getpc_b64 s[60:61]"); L("k0_pc")
            E("v_lshlrev_b32 v34, 4, v0")
            for i in range(npf):
                E(f"global_load_dwordx4 v[{72+4*i}:{75+4*i}], v34, s[60:61]"); E("v_add_u32 v34, 0x1000, v34")
        E(f"s_waitcnt vmcnt({7+npf+ntl})")
    else:
        E("s_waitcnt vmcnt(0)")
    for r in range(2):
        for i in range(4):
            E(f"v_dot2_f32_bf16 v{24+2*r}, v{16+4*r+i}, s8, v{24+2*r}"); E(f"v_dot2_f32_bf16 v{25+2*r}, v{16+4*r+i}, v{16+4*r+i}, v{25+2*r}")
    E("s_nop 3")
    for off in (0x041F, 0x081F, 0x101F, 0x201F, 0x401F):
        for q in range(4): E(f"ds_swizzle_b32 v{28+q}, v{24+q} offset:{off:#x}")
        E("s_waitcnt lgkmcnt(0)")
        for q in range(4): E(f"v_add_f32 v{24+q}, v{24+q}, v{28+q}")
    for q in range(4): E(f"v_mov_b32 v{28+q}, v{24+q}")
    E("s_nop 1")
    for q in range(4): E(f"v_permlane32_swap_b32 v{24+q}, v{28+q}")
    E("s_nop 1")
    for q in range(4): E(f"v_add_f32 v{24+q}, v{24+q}, v{28+q}")
    for r in range(2):
        a, b = 24+2*r, 25+2*r
        E(f"v_mul_f32 v{a}, {f2u(1/512):#x}, v{a}"); E(f"v_mul_f32 v{b}, {f2u(1/512):#x}, v{b}")
        E(f"v_fma_f32 v{b}, -v{a}, v{a}, v{b}"); E(f"v_max_f32 v{b}, 0, v{b}"); E(f"v_add_f32 v{b}, {f2u(1e-5):#x}, v{b}")
        E(f"v_rsq_f32 v{b}, v{b}"); E("s_nop 0"); E(f"v_mul_f32 v{a}, v{a}, v{b}"); E(f"v_sub_f32 v{a}, 0, v{a}")
        for i in range(4):
            x = 16+4*r+i
            E(f"v_lshlrev_b32 v30, 16, v{x}"); E(f"v_and_b32 v31, 0xffff0000, v{x}")
            E(f"v_fma_f32 v30, v30, v{b}, v{a}"); E(f"v_fma_f32 v31, v31, v{b}, v{a}"); E(f"v_cvt_pk_bf16_f32 v{x}, v30, v31")
        if r == 0:
            E("s_waitcnt vmcnt(0)")
            for t in range(5):
                E(f"s_add_u32 s61, s60, {MB*t}"); E(f"buffer_store_dwordx4 v[{44+4*t}:{47+4*t}], v35, s[52:55], s61 offen")
        E(f"buffer_store_dwordx4 v[{16+4*r}:{19+4*r}], v6, s[44:47], s11 offen offset:{16*r}")
    epilogue_end(n)

SC = " sc1"
def lanes():
    E("v_and_b32 v1, 63, v0"); E("v_and_b32 v3, 31, v0"); E("v_bfe_u32 v4, v0, 5, 1")
WS_CNT = 20*MB
def signal(n, idx):
    E("s_waitcnt vmcnt(0)"); E("s_barrier")
    E("s_cmp_lg_u32 s3, 0"); E(f"s_cbranch_scc1 {n}_sig{idx}")
    E("s_lshl_b32 s4, s9, 1"); E(f"s_add_u32 s4, s4, {idx*4096}")
    E("v_mov_b32 v5, 1"); E("v_mov_b32 v6, s4"); E("s_mov_b64 exec, 1")
    E("buffer_atomic_add v5, v6, s[56:59], 0 offen"); E("s_mov_b64 exec, -1")
    L(f"{n}_sig{idx}")
def wait(n, idx, back=0):
    E("s_cmp_lg_u32 s3, 0"); E(f"s_cbranch_scc1 {n}_wx{idx}")
    E("s_lshl_b32 s4, s9, 1"); E("v_lshlrev_b32 v6, 8, v1"); E("v_sub_u32 v6, s4, v6"); E("v_max_i32 v6, 0, v6"); E(f"v_add_u32 v6, {idx*4096}, v6")
    E("s_mov_b32 s6, 0"); E(f"s_mov_b64 exec, {(1 << (back+1)) - 1}")
    L(f"{n}_w{idx}")
    E("buffer_load_dword v5, v6, s[56:59], 0 offen sc1"); E("s_waitcnt vmcnt(0)")
    E("v_cmp_gt_u32 vcc, 16, v5"); E("s_add_u32 s6, s6, 1"); E("s_nop 0"); E(f"s_cbranch_vccz {n}_wd{idx}")
    E("s_sleep 3"); E("s_cmp_lt_u32 s6, 0x4000"); E(f"s_cbranch_scc1 {n}_w{idx}")
    L(f"{n}_wd{idx}"); E("s_mov_b64 exec, -1")
    L(f"{n}_wx{idx}")
    E("s_waitcnt vmcnt(0)"); E("s_barrier")
def load_xt2(srdreg, nsteps_total, nsteps, base=VX, sc=SC):
    E("s_lshr_b32 s4, s10, 5"); E(f"s_mul_i32 s4, s4, {nsteps_total*1024}")
    E("v_lshlrev_b32 v8, 4, v1"); E("v_add_u32 v8, s4, v8")
    for s in range(nsteps):
        if s % 4 == 0: E(f"s_mov_b32 s4, {1024*s}")
        E(f"buffer_load_dwordx4 v[{base+4*s}:{base+4*s+3}], v8, s[{srdreg}:{srdreg+3}], s4 offen offset:{1024*(s%4)}{sc}")
def issue(groups):
    for g in groups:
        for x in g: E(x)

def mega():
    global VW
    n = "km_block_kernel"; kernels.append((n, 256, 163840)); prologue(n, 256)
    stamp(n); wgmap(2)
    E("s_mov_b32 s61, s11")
    E("s_lshl_b32 s10, s3, 5"); E("s_add_u32 s10, s10, s9")
    srd(56, 34, WS_CNT, 16384)
    E("s_mul_i32 s11, s61, 3")
    srd(40, 34, WS_XN, 2*MB); srd(44, 18, 0, 512*3072); srd(48, 34, 0, 6*MB)
    srd(64, 34, WS_T, 5*MB); E("s_mul_i32 s68, s61, 196608"); E("s_mul_i32 s69, s61, 90112"); E(f"s_add_u32 s69, s69, {3072*1024}"); E("s_lshl_b32 s70, s61, 15"); E(f"s_add_u32 s70, s70, {4480*1024}")
    E("s_lshl_b32 s62, s61, 6")
    E("s_mul_i32 s63, s61, 86"); E("s_and_b32 s63, s63, 0xfffffff0"); E("s_lshl_b32 s63, s63, 1")
    E("v_lshlrev_b32 v2, 4, v0")
    slotof = {0: 3, 1: 4, 2: 1, 3: 2, 4: 0, 5: 3}
    def tl(sc, add, lds, nj): return [[x.replace(" v7,", " v2,") for x in g] for g in dma_list(64, sc, add, lds, nj, 64)]
    def regl(r): return tl(68, r*32768, slotof[r]*32768, 8)
    p1pf = regl(0) + regl(1)
    dma_setup_w(3072)
    E("s_lshl_b32 s60, s11, 6")
    allw = dma_list_w(44, 60, 0, 0, 512, 3072)
    E("s_lshr_b32 s4, s10, 5"); E(f"s_mul_i32 s4, s4, {32*1024}"); E("v_lshlrev_b32 v8, 4, v1"); E("v_add_u32 v8, s4, v8")
    def chunk(c):
        r = list(allw[6*c:6*c+6])
        for s_ in range(8*c, 8*c+8):
            r.append([f"s_mov_b32 s4, {1024*(s_ & ~3)}", f"buffer_load_dwordx4 v[{VX+4*s_}:{VX+4*s_+3}], v8, s[40:43], s4 offen offset:{1024*(s_%4)}"])
        return r
    issue(chunk(0) + chunk(1))
    E("v_add_u32 v9, s10, v3")
    w_addr(False, 10, 192); E("v_add_u32 v13, 0xc000, v10")
    E("v_lshlrev_b32 v11, 5, v9"); E("v_lshlrev_b32 v5, 4, v4"); E("v_add_u32 v11, v11, v5")
    E("v_bfe_u32 v12, v0, 4, 1"); E("v_lshlrev_b32 v12, 16, v12"); E("v_lshlrev_b32 v5, 8, v4"); E("v_add_u32 v12, v12, v5")
    E("v_and_b32 v5, 15, v0"); E("v_lshlrev_b32 v5, 4, v5"); E("v_add_u32 v12, v12, v5")
    E("s_lshl_b32 s13, s10, 5"); E("v_add_u32 v12, s13, v12")
    ACCJ = (176, 192, 208); PT = 224
    stamp(n, "p1")
    E("s_cmp_eq_u32 s61, 10"); E(f"s_cbranch_scc1 {n}_p1b"); E("s_cmp_gt_u32 s61, 10"); E(f"s_cbranch_scc1 {n}_p1c")
    for vn, sws in (("a", (False, False, False)), ("b", (False, False, True)), ("c", (True, True, True))):
        L(f"{n}_p1{vn}")
        for c in range(4):
            E(f"s_waitcnt vmcnt({14 if c < 3 else 0})"); E("s_barrier")
            if vn == "a": stamp(n, "p1")
            items = []
            for s in range(8*c, 8*c+8):
                for j in range(3):
                    items.append(((10, 3072*s + 64*j) if s < 16 else (13, 3072*(s-16) + 64*j)) + (VX+4*s, ACCJ[j]))
            nxt = chunk(c + 2) if c < 2 else []
            for i in mfma_items(items, False, lambda i: sws[i % 3], lambda i: c == 0 and i < 3, 192):
                if nxt and i % 3 != 2: issue([nxt.pop(0)])
            assert not nxt
        E("s_nop 15")
        if vn == "a": stamp(n, "p1")
        for j, sw in enumerate(sws):
            E(f"s_add_u32 s12, s11, {j}"); pack(ACCJ[j], PT + 8*j); T_ = PT + 8*j
            if not sw:
                E("s_lshr_b32 s14, s12, 4"); E("s_lshl_b32 s14, s14, 21"); E("s_and_b32 s15, s12, 15"); E("s_lshl_b32 s15, s15, 17")
                E("s_add_u32 s14, s14, s15"); E("s_add_u32 s15, s14, 65536")
                E(f"buffer_store_dwordx4 v[{T_}:{T_+3}], v11, s[48:51], s14 offen{SC}")
                E(f"buffer_store_dwordx4 v[{T_+4}:{T_+7}], v11, s[48:51], s15 offen{SC}")
            else:
                E("s_sub_u32 s14, s12, 32"); E("s_lshl_b32 s14, s14, 17"); E(f"s_add_u32 s14, s14, {WS_V}")
                E(f"buffer_store_dwordx4 v[{T_}:{T_+3}], v12, s[48:51], s14 offen{SC}")
                E(f"buffer_store_dwordx4 v[{T_+4}:{T_+7}], v12, s[48:51], s14 offen offset:512{SC}")
        if vn != "c": E(f"s_branch {n}_p1e")
    L(f"{n}_p1e")
    stamp(n, "p1")
    stamp(n); signal(n, 0); stamp(n)
    issue(tl(70, 0, 0, 8))
    E("v_mov_b32 v5, 0x3f803f80")
    for r in range(144): E(f"v_accvgpr_write_b32 a{80+r}, v5")
    wait(n, 0, 2); stamp(n); stamp(n, "p2")
    S, O, PK = 96, 240, 16
    srd(40, 34, WS_Q, 2*MB); srd(44, 34, WS_K - 8192, 2*MB + 8192); srd(48, 34, WS_V - 8192, 2*MB + 8192); srd(52, 34, WS_O, 2*MB)
    E("v_lshlrev_b32 v5, 2, v4"); E("v_sub_u32 v11, v3, v5")
    E("s_sub_i32 s15, 256, s10"); E("s_max_i32 s15, s15, 0")
    E("v_lshlrev_b32 v6, 4, v4")
    E("s_lshl_b32 s11, s61, 1")
    E("s_lshl_b32 s12, s11, 11"); E("s_add_u32 s12, s12, s10")
    E("v_add_u32 v5, s12, v3"); E("v_lshlrev_b32 v5, 5, v5"); E("v_add_u32 v8, v5, v6"); E("v_add_u32 v13, 0x10000, v8")
    E("s_lshl_b32 s14, s15, 5")
    E("v_and_b32 v5, 15, v0"); E("v_lshlrev_b32 v5, 4, v5"); E("v_lshlrev_b32 v9, 8, v4"); E("v_add_u32 v5, v5, v9")
    E("s_lshl_b32 s13, s11, 16"); E("s_lshl_b32 s12, s10, 5"); E("s_add_u32 s13, s13, s12"); E("v_add_u32 v9, s13, v5"); E("v_add_u32 v14, 0x10000, v9")
    E("s_mov_b32 s66x, 0") if False else None
    E("s_mov_b32 s72, 0x0000ffff"); E("s_mov_b32 s73, 0x0000ffff")
    def qk(hh):
        va = (8, 13)[hh]
        r = [[f"buffer_load_dwordx4 a[{72+4*hh}:{75+4*hh}], v{va}, s[40:43], 0 offen{SC}"]]
        for kb in range(9):
            r.append([f"s_max_u32 s12, s14, {kb*1024}", f"buffer_load_dwordx4 a[{36*hh+4*kb}:{36*hh+4*kb+3}], v{va}, s[44:47], s12 offen{SC}"])
        return r
    def vv(hh):
        return [["s_mov_b64 exec, s[72:73]", f"s_max_u32 s12, s14, {512*t}",
                 f"buffer_load_dwordx4 a[{80+72*hh+4*t}:{80+72*hh+4*t+3}], v{(9,14)[hh]}, s[48:51], s12 offen{SC}", "s_mov_b64 exec, -1"] for t in range(18)]
    issue(qk(0)); issue(vv(0))
    E("s_add_u32 s13, s10, s11"); E("s_lshl_b32 s13, s13, 10"); E("v_lshlrev_b32 v5, 4, v1"); E("v_add_u32 v10, s13, v5")
    stamp(n, "p2")
    for hh in range(2):
        pf = (qk(1) + vv(1)) if hh == 0 else (regl(1) + regl(2) + regl(3))
        npf0 = len(pf)
        E(f"v_mov_b32 v12, {f2u(-1e30):#x}")
        for kb in range(9):
            E(f"s_waitcnt vmcnt({(26-kb) if hh == 0 else (8 + 1 + 18 + 8 - kb)})")
            E(f"v_mfma_f32_32x32x16_bf16 v[{S+16*kb}:{S+16*kb+15}], a[{36*hh+4*kb}:{36*hh+4*kb+3}], a[{72+4*hh}:{75+4*hh}], 0")
        E("s_nop 7"); E("s_nop 3"); stamp(n, "p2")
        for kb in range(8):
            E(f"s_cmp_ge_u32 s10, {256-32*kb}"); E(f"s_cbranch_scc1 {n}_ok{hh}_{kb}")
            for i in range(16): E(f"v_mov_b32 v{S+16*kb+i}, v12")
            L(f"{n}_ok{hh}_{kb}")
        for i in range(16):
            c = 8*(i >> 2) + (i & 3)
            E(f"v_cmp_le_i32 vcc, {c}, v11"); E("s_nop 1")
            E(f"v_cndmask_b32 v{S+128+i}, v12, v{S+128+i}, vcc"); E(f"v_cndmask_b32 v{S+i}, v{S+i}, v12, vcc")
            if i % 3 == 2 and pf: issue([pf.pop(0)])
        for c in range(4): E(f"v_max_f32 v{PK+c}, v{S+c}, v{S+4+c}")
        for r in range(8, 144, 8):
            for c in range(4): E(f"v_max3_f32 v{PK+c}, v{PK+c}, v{S+r+c}, v{S+r+4+c}")
            if r % 24 == 0 and pf: issue([pf.pop(0)])
        E(f"v_max_f32 v{PK}, v{PK}, v{PK+1}"); E(f"v_max_f32 v{PK+2}, v{PK+2}, v{PK+3}"); E(f"v_max_f32 v12, v{PK}, v{PK+2}"); E("v_mov_b32 v15, v12")
        E("s_nop 1"); E("v_permlane32_swap_b32 v12, v15"); E("s_nop 1"); E("v_max_f32 v12, v12, v15")
        E(f"s_mov_b32 s13, {f2u(0.25*LOG2E):#x}"); E("v_mul_f32 v12, s13, v12"); stamp(n, "p2")
        for r in range(0, 144, 4):
            for c in range(4): E(f"v_fma_f32 v{S+r+c}, v{S+r+c}, s13, -v12")
            for c in range(4): E(f"v_exp_f32 v{S+r+c}, v{S+r+c}")
            if r >= 4:
                p = r - 4; d = S + 16*(p//16) + (p % 16)//2
                E(f"v_cvt_pk_bf16_f32 v{d}, v{S+p}, v{S+p+1}"); E(f"v_cvt_pk_bf16_f32 v{d+1}, v{S+p+2}, v{S+p+3}")
            if r % 8 == 0 and pf: issue([pf.pop(0)])
        p = 140; d = S + 16*(p//16) + (p % 16)//2
        E("s_nop 0"); E(f"v_cvt_pk_bf16_f32 v{d}, v{S+p}, v{S+p+1}"); E(f"v_cvt_pk_bf16_f32 v{d+1}, v{S+p+2}, v{S+p+3}")
        npf_left = len(pf)
        stamp(n, "p2")
        assert npf_left == 0
        E(f"s_waitcnt vmcnt({npf0 if hh == 0 else (9+npf0)})"); stamp(n, "p2")
        if hh == 0: pf = regl(0)
        for t in range(18):
            if pf and t % 2 == 1: issue([pf.pop(0)])
            bb = S + 16*(t//2) + 4*(t % 2)
            E(f"v_mfma_f32_32x32x16_bf16 v[{O}:{O+15}], a[{80+72*hh+4*t}:{80+72*hh+4*t+3}], v[{bb}:{bb+3}], {'0' if t == 0 else f'v[{O}:{O+15}]'}")
        E("s_nop 15"); E(f"v_rcp_f32 v12, v{O+8}"); E("s_nop 0")
        for i in range(8): E(f"v_mul_f32 v{O+i}, v{O+i}, v12")
        for i in range(4): E(f"v_cvt_pk_bf16_f32 v{PK+i}, v{O+2*i}, v{O+2*i+1}")
        assert not pf
        E(f"buffer_store_dwordx4 v[{PK}:{PK+3}], v10, s[52:55], 0 offen offset:{1024*hh}{SC}")
        E("s_nop 1")
    stamp(n); signal(n, 1); stamp(n)
    srd(40, 34, WS_O, 2*MB); srd(48, 34, WS_H, 2*MB); srd(52, 16, 0, 2*MB)
    E("v_add_u32 v9, s10, v3")
    w_addr(True, 10)
    E("v_lshlrev_b32 v12, 10, v9"); E("v_lshlrev_b32 v5, 3, v4"); E("v_add_u32 v12, v12, v5"); E("s_lshl_b32 s13, s61, 11")
    for q in range(4): E(f"buffer_load_dwordx2 v[{VT+8+2*q}:{VT+9+2*q}], v12, s[52:55], s62 offen offset:{16*q}")
    wait(n, 1); stamp(n)
    load_xt2(40, 32, 32)
    E("s_waitcnt vmcnt(0)"); E("s_barrier")
    items = [(10, 1024*s, VX+4*s, ACC0) for s in range(32)]
    for _ in mfma_items(items, True, lambda i: False, lambda i: i == 0): pass
    E("s_nop 15")
    for i in range(8):
        E(f"v_lshlrev_b32 v5, 16, v{VT+8+i}"); E(f"v_and_b32 v6, 0xffff0000, v{VT+8+i}")
        E(f"v_add_f32 v{ACC0+2*i}, v{ACC0+2*i}, v5"); E(f"v_add_f32 v{ACC0+2*i+1}, v{ACC0+2*i+1}, v6")
    pack(ACC0, VT)
    E(f"buffer_store_dwordx4 v[{VT}:{VT+3}], v8, s[48:51], s13 offen{SC}")
    E(f"buffer_store_dwordx4 v[{VT+4}:{VT+7}], v8, s[48:51], s13 offen offset:1024{SC}")
    stamp(n); signal(n, 2); stamp(n)
    issue(regl(4))
    wait(n, 2); stamp(n); stamp(n, "p4")
    srd(40, 34, WS_H, 2*MB); srd(52, 34, WS_HH, 2048*2752)
    load_xt2(40, 32, 32)
    E("s_lshr_b32 s4, s10, 5"); E(f"s_mul_i32 s4, s4, {86*1024}"); E("v_lshlrev_b32 v11, 4, v1"); E("v_add_u32 v11, s4, v11")
    stamp(n, "p4")
    ln_regs(0, [], True)
    E(f"s_mov_b32 s13, {f2u(-LOG2E):#x}")
    stamp(n, "p4")
    E("s_barrier")
    stamp(n, "p4")
    def norm(s):
        r = []
        for q in range(4):
            x = VX + 4*s + q; a_, b_ = 240 + 2*q, 241 + 2*q
            r += [f"v_lshlrev_b32 v{a_}, 16, v{x}", f"v_and_b32 v{b_}, 0xffff0000, v{x}"]
        for q in range(4):
            a_, b_ = 240 + 2*q, 241 + 2*q
            r += [f"v_fma_f32 v{a_}, v{a_}, v12, v15", f"v_fma_f32 v{b_}, v{b_}, v12, v15"]
        for q in range(4):
            r += [f"v_cvt_pk_bf16_f32 v{VX+4*s+q}, v{240+2*q}, v{241+2*q}"]
        return r
    def epi(j, G, U):
        r = []
        for i in range(16): r.append(f"v_mul_f32 v{G+i}, s13, v{G+i}")
        for i in range(16): r.append(f"v_exp_f32 v{G+i}, v{G+i}")
        for i in range(16): r.append(f"v_add_f32 v{G+i}, 1.0, v{G+i}")
        for i in range(16): r.append(f"v_rcp_f32 v{G+i}, v{G+i}")
        for i in range(16): r.append(f"v_mul_f32 v{G+i}, v{G+i}, v{U+i}")
        for i in range(8): r.append(f"v_cvt_pk_bf16_f32 v{248+i}, v{G+2*i}, v{G+2*i+1}")
        r += [f"s_add_u32 s12, s63, {64*j}", "s_lshl_b32 s12, s12, 5",
              f"buffer_store_dwordx4 v[248:251], v11, s[52:55], s12 offen{SC}",
              f"buffer_store_dwordx4 v[252:255], v11, s[52:55], s12 offen offset:1024{SC}"]
        return r
    for x in norm(0) + norm(1): E(x)
    fill = []
    w5 = tl(69, 0, 32768, 16) + tl(69, 65536, 131072, 6)
    for j in range(3):
        G, U = (176, 192) if j % 2 == 0 else (208, 224)
        sg, su = slotof[2*j]*32768, slotof[2*j+1]*32768
        E(f"v_add_u32 v13, {sg}, v10"); E(f"v_add_u32 v14, {su}, v10")
        items = []
        for s in range(32): items += [(13, 1024*s, VX+4*s, G), (14, 1024*s, VX+4*s, U)]
        for i in mfma_items(items, True, lambda i: False, lambda i: i < 2):
            if j == 0 and i//2 + 2 < 32:
                for x in norm(i//2 + 2)[10*(i % 2):10*(i % 2)+10]: E(x)
            if j > 0 and i >= 4:
                for _ in range(2):
                    if fill: E(fill.pop(0))
            if j == 2 and i >= 2 and i % 2 == 0 and w5: issue([w5.pop(0)])
        assert not fill
        stamp(n, "p4")
        if j == 0: E("s_barrier"); issue(regl(5))
        if j == 1: E("s_waitcnt vmcnt(2)"); E("s_barrier")
        fill = epi(j, G, U)
    E("s_nop 15")
    for x in fill: E(x)
    stamp(n); stamp(n, "p4"); signal(n, 3); stamp(n); stamp(n, "p4")
    NX = 44; X = 56; oldVW = VW; VW = 16; A = 232; T = 48
    assert not w5
    wait(n, 3); stamp(n)
    srd(40, 34, WS_HH, 2048*2752); srd(48, 34, WS_H, 2*MB); srd(52, 30, 0, 2*MB)
    load_xt2(40, 86, NX, X)
    E("v_add_u32 v13, 0x8000, v10"); E("v_add_u32 v14, 0x20000, v10"); E("v_add_u32 v9, s10, v3")
    E("v_lshlrev_b32 v12, 10, v9"); E("v_lshlrev_b32 v5, 3, v4"); E("v_add_u32 v12, v12, v5")
    E("s_lshl_b32 s13, s10, 10"); E("s_lshl_b32 s14, s61, 11"); E("s_add_u32 s13, s13, s14"); E("v_lshlrev_b32 v11, 4, v1")
    E(f"buffer_load_dwordx4 v[248:251], v11, s[48:51], s13 offen{SC}"); E(f"buffer_load_dwordx4 v[252:255], v11, s[48:51], s13 offen offset:1024{SC}")
    E("s_waitcnt vmcnt(45)")
    items = [((13, 1024*s) if s < 64 else (14, 1024*(s-64))) + (X+4*(s % NX), A) for s in range(86)]
    for i in mfma_items(items, True, lambda i: False, lambda i: i == 0):
        if i + NX < 86:
            s = i + NX; E(f"s_mov_b32 s4, {1024*s}"); E(f"buffer_load_dwordx4 v[{X+4*i}:{X+4*i+3}], v8, s[40:43], s4 offen{SC}")
        if i + 1 < 86: E(f"s_waitcnt vmcnt({(45 if i + 1 <= 42 else 44) if i + 1 < NX else 85-(i+1)})")
    VW = oldVW
    E("s_nop 15")
    for i in range(8):
        E(f"v_lshlrev_b32 v5, 16, v{248+i}"); E(f"v_and_b32 v6, 0xffff0000, v{248+i}")
        E(f"v_add_f32 v{A+2*i}, v{A+2*i}, v5"); E(f"v_add_f32 v{A+2*i+1}, v{A+2*i+1}, v6")
    pack(A, T)
    for q in range(4): E(f"buffer_store_dwordx2 v[{T+2*q}:{T+2*q+1}], v12, s[52:55], s62 offen offset:{16*q}")
    epilogue_end(n)

k0(); mega()
hdr = open("cdna_kernels/" + NAME + ".s.ref").read().split("\n")
head = [l for l in hdr if l.startswith(";") and "@launch" not in l and "Override" not in l and "grid=ceil" not in l]
import os
dup = int(os.environ.get("DUP", "-1"))
ll = []
for idx, (k, g, l) in enumerate(kernels):
    ll += [f"; @launch kernel={k} grid=({g},1,1) block=(256,1,1) lds={l}"] * (5 if idx == dup else 1)
if dup == 99: ll = ll + ll
if STAMPK:
    ll = ll + [x for x in ll if STAMPK in x]
txt = head + ll
txt += ['.amdgcn_target "amdgcn-amd-amdhsa--gfx950"', ".text"] + out + ['.section .rodata,"a"']
for k, g, l in kernels:
    txt += [".p2align 6", f".amdhsa_kernel {k}", f"  .amdhsa_next_free_vgpr {512 if k.startswith('km') else 256}", "  .amdhsa_next_free_sgpr 102", "  .amdhsa_accum_offset 256",
            "  .amdhsa_group_segment_fixed_size 0", "  .amdhsa_kernarg_size 80", "  .amdhsa_user_sgpr_count 2",
            "  .amdhsa_user_sgpr_kernarg_segment_ptr 1", "  .amdhsa_system_sgpr_workgroup_id_x 1", ".end_amdhsa_kernel"]
open(os.environ.get("OUT", "cdna_kernels/" + NAME + ".s"), "w").write("\n".join(txt) + "\n")
```

```python
import sys, os
NAME = "sequential_preLN__sliding_block__glu_gated_glu__prompt"
out = []
def E(s): out.append("    " + s)
def L(s): out.append(s + ":")
MB = 1 << 20
WS_Q, WS_K, WS_V, WS_O, WS_H, WS_HH = 0, 2*MB, 4*MB, 6*MB, 8*MB, 10*MB
WS_XN = 16*MB
LOG2E = 1.4426950408889634
import struct
def f2u(f): return struct.unpack("<I", struct.pack("<f", f))[0]

def prologue(name, nwg):
    out.append(".p2align 8"); out.append(f".globl {name}"); out.append(f".type {name},@function"); L(name)
    E(f"s_cmp_ge_u32 s2, {nwg}"); E(f"s_cbranch_scc1 {name}_done")
    E("s_load_dwordx16 s[16:31], s[0:1], 0"); E("s_load_dwordx4 s[32:35], s[0:1], 64")
    E("v_and_b32 v1, 63, v0")
    E("v_lshrrev_b32 v2, 6, v0")
    E("v_and_b32 v3, 31, v0")
    E("v_readfirstlane_b32 s3, v2")
    E("v_bfe_u32 v4, v0, 5, 1")
    E("s_waitcnt lgkmcnt(0)")
STAMPK = os.environ.get("STAMP", "")
nst = [0]
def stamp(name, tag=""):
    if name != STAMPK: return
    if tag != os.environ.get("STAG", "") and nst[0] > 0 and tag != "end": return
    E("s_memrealtime s[74:75]" if os.environ.get("ABS") else "s_memtime s[74:75]"); E("s_waitcnt lgkmcnt(0)"); E(f"s_mov_b32 s{76+nst[0]}, s74"); nst[0] += 1
def epilogue_end(name):
    if name == STAMPK:
        stamp(name, "end")
        srd(40, 32, 0, 256)
        if os.environ.get("ABS"):
            k = int(os.environ["ABS"])
            E("s_and_b32 s4, s2, 7"); E("s_cmp_lg_u32 s4, 0"); E(f"s_cbranch_scc1 {name}_done"); E("s_cmp_lg_u32 s3, 0"); E(f"s_cbranch_scc1 {name}_done")
            E("s_cmp_ge_u32 s2, 256"); E(f"s_cbranch_scc1 {name}_done")
            E("s_lshr_b32 s4, s2, 4"); E("s_lshl_b32 s4, s4, 2"); E("s_and_b32 s5, s2, 8"); E("s_cmp_lg_u32 s5, 0"); E(f"s_cbranch_scc1 {name}_done")
            E("v_mov_b32 v6, s4"); E(f"v_mov_b32 v5, s{76+k}"); E("buffer_store_dword v5, v6, s[40:43], 0 offen"); E(f"s_branch {name}_done")
        E("s_cmp_lg_u32 s2, 8"); E(f"s_cbranch_scc1 {name}_done"); E("s_cmp_lg_u32 s3, 0"); E(f"s_cbranch_scc1 {name}_done")
        srd(40, 32, 0, 256)
        for i in range(nst[0]):
            E(f"s_sub_u32 s4, s{76+i}, s76"); E("v_mov_b32 v5, s4"); E(f"v_mov_b32 v6, {4*i}"); E("buffer_store_dword v5, v6, s[40:43], 0 offen")
    L(f"{name}_done"); E("s_endpgm")
def srd(d, base, off, size):
    if off >= 0:
        E(f"s_add_u32 s{d}, s{base}, {off}"); E(f"s_addc_u32 s{d+1}, s{base+1}, 0")
    else:
        E(f"s_sub_u32 s{d}, s{base}, {-off}"); E(f"s_subb_u32 s{d+1}, s{base+1}, 0")
    E(f"s_mov_b32 s{d+2}, {size}"); E(f"s_mov_b32 s{d+3}, 0x00020000")

VX, VW, ACC0, ACC1, VT = 16, 144, 176, 192, 208

def w_addr(perm, vdst, RB=64):
    E("v_bfe_u32 v5, v0, 2, 2")
    E(f"v_lshlrev_b32 v6, {2 if perm else 3}, v4")
    E("v_add_u32 v5, v5, v6")
    E(f"v_mul_u32_u24 v5, {RB}, v5")
    E("v_bfe_u32 v6, v0, 4, 1")
    E("v_lshlrev_b32 v6, 5, v6")
    E("v_add_u32 v5, v5, v6")
    E("v_and_b32 v6, 3, v0")
    E("v_lshlrev_b32 v6, 3, v6")
    E(f"v_add_u32 v{vdst}, v5, v6")

def dma_setup(ldw):
    E("v_lshrrev_b32 v5, 2, v0"); E(f"s_mov_b32 s4, {ldw}"); E("v_mul_lo_u32 v5, v5, s4")
    E("v_and_b32 v6, 3, v0"); E("v_lshlrev_b32 v6, 4, v6"); E("v_add_u32 v7, v5, v6")
    E("s_lshl_b32 s5, s3, 10")
def dma_region(srdreg, scol, ldsbase, nj, ldw):
    E(f"s_mov_b32 s6, s{scol}"); E(f"s_add_u32 s7, s5, {ldsbase}")
    for j in range(nj):
        E("s_mov_b32 m0, s7");
        if j + 1 < nj: E("s_add_u32 s7, s7, 4096")
        else: E("s_nop 0")
        E(f"buffer_load_dwordx4 v7, s[{srdreg}:{srdreg+3}], s6 offen lds")
        if j + 1 < nj: E(f"s_add_u32 s6, s6, {64*ldw}")

def dma_list(srdreg, scolreg, coladd, ldsbase, nj, ldw):
    r = []
    for j in range(nj):
        r.append([f"s_add_u32 s6, s{scolreg}, {coladd + j*64*ldw}", f"s_add_u32 m0, s5, {ldsbase + j*4096}", "s_nop 0",
                  f"buffer_load_dwordx4 v7, s[{srdreg}:{srdreg+3}], s6 offen lds"])
    return r
def dma_setup_w(ldw):
    E("s_lshl_b32 s5, s3, 10"); E("s_mov_b32 s4, 0xAAAB"); E(f"s_mov_b32 s6, {ldw}")
    for t, vr in enumerate((7, 14, 15)):
        E(f"v_add_u32 v5, {256*t}, v0"); E("v_mul_lo_u32 v6, v5, s4"); E("v_lshrrev_b32 v6, 19, v6")
        E("v_mul_u32_u24 v9, 12, v6"); E("v_sub_u32 v5, v5, v9"); E("v_lshlrev_b32 v5, 4, v5")
        E("v_mul_lo_u32 v6, v6, s6"); E(f"v_add_u32 v{vr}, v5, v6")
def dma_list_w(srdreg, scolreg, ldsbase, row0, nrows, ldw):
    r = []
    for j in range(nrows*12//256):
        r.append([f"s_add_u32 s6, s{scolreg}, {(row0 + (j//3)*64)*ldw}", f"s_add_u32 m0, s5, {ldsbase + j*4096}", "s_nop 0",
                  f"buffer_load_dwordx4 v{(7,14,15)[j%3]}, s[{srdreg}:{srdreg+3}], s6 offen lds"])
    return r
def mfma_items(items, perm, swap_of, first_of, RB=64):
    d2 = 8*RB if perm else 4*RB
    n = len(items); D = 6
    def rd(i):
        va, off, _, _ = items[i]; w = VW + 4 * (i % 8)
        E(f"ds_read_b64_tr_b16 v[{w}:{w+1}], v{va} offset:{off}")
        E(f"ds_read_b64_tr_b16 v[{w+2}:{w+3}], v{va} offset:{off+d2}")
    for i in range(min(D, n)): rd(i)
    for i in range(n):
        va, off, x, acc = items[i][:4]; w = VW + 4 * (i % 8)
        E(f"s_waitcnt lgkmcnt({2*(min(i+D-1, n-1)-i)})")
        c = "0" if first_of(i) else f"v[{acc}:{acc+15}]"
        if swap_of(i): E(f"v_mfma_f32_32x32x16_bf16 v[{acc}:{acc+15}], v[{x}:{x+3}], v[{w}:{w+3}], {c}")
        else:          E(f"v_mfma_f32_32x32x16_bf16 v[{acc}:{acc+15}], v[{w}:{w+3}], v[{x}:{x+3}], {c}")
        if i + D < n: rd(i + D)
        yield i

def ln_regs(ndma, inter=[], jit=False):
    E("s_mov_b32 s8, 0x3f803f80")
    for q in range(4): E(f"v_mov_b32 v{VT+q}, 0"); E(f"v_mov_b32 v{VT+4+q}, 0")
    inter = list(inter); nd = 0
    for g in range(4):
        E(f"s_waitcnt vmcnt({min(63, 24-8*g+nd)})")
        for r in range(32*g, 32*g+32):
            if inter and r % 8 == 4:
                for x in inter.pop(0): E(x)
                nd += 1
            E(f"v_dot2_f32_bf16 v{VT+(r&3)}, v{VX+r}, s8, v{VT+(r&3)}")
            E(f"v_dot2_f32_bf16 v{VT+4+(r&3)}, v{VX+r}, v{VX+r}, v{VT+4+(r&3)}")
    E("s_nop 3")
    E(f"v_add_f32 v{VT}, v{VT}, v{VT+1}"); E(f"v_add_f32 v{VT+2}, v{VT+2}, v{VT+3}")
    E(f"v_add_f32 v{VT+4}, v{VT+4}, v{VT+5}"); E(f"v_add_f32 v{VT+6}, v{VT+6}, v{VT+7}")
    E(f"v_add_f32 v{VT}, v{VT}, v{VT+2}"); E(f"v_add_f32 v{VT+4}, v{VT+4}, v{VT+6}")
    E(f"v_mov_b32 v{VT+1}, v{VT}"); E(f"v_mov_b32 v{VT+5}, v{VT+4}")
    E("s_nop 1")
    E(f"v_permlane32_swap_b32 v{VT}, v{VT+1}"); E(f"v_permlane32_swap_b32 v{VT+4}, v{VT+5}")
    E("s_nop 1")
    E(f"v_add_f32 v{VT}, v{VT}, v{VT+1}"); E(f"v_add_f32 v{VT+4}, v{VT+4}, v{VT+5}")
    E(f"v_mul_f32 v{VT}, {f2u(1/512):#x}, v{VT}")
    E(f"v_mul_f32 v{VT+4}, {f2u(1/512):#x}, v{VT+4}")
    E(f"v_fma_f32 v{VT+4}, -v{VT}, v{VT}, v{VT+4}")
    E(f"v_max_f32 v{VT+4}, 0, v{VT+4}")
    E(f"v_add_f32 v{VT+4}, {f2u(1e-5):#x}, v{VT+4}")
    E(f"v_rsq_f32 v{VT+4}, v{VT+4}")
    E("s_nop 0")
    E(f"v_mul_f32 v{VT}, v{VT}, v{VT+4}")
    E(f"v_sub_f32 v{VT}, 0, v{VT}")
    if jit:
        E(f"v_mov_b32 v12, v{VT+4}"); E(f"v_mov_b32 v15, v{VT}"); return
    for r in range(128):
        if inter and r % 5 == 0:
            for x in inter.pop(0): E(x)
        a, b = VT + 8 + 2 * (r & 3), VT + 9 + 2 * (r & 3)
        E(f"v_lshlrev_b32 v{a}, 16, v{VX+r}"); E(f"v_and_b32 v{b}, 0xffff0000, v{VX+r}")
        E(f"v_fma_f32 v{a}, v{a}, v{VT+4}, v{VT}"); E(f"v_fma_f32 v{b}, v{b}, v{VT+4}, v{VT}")
        E(f"v_cvt_pk_bf16_f32 v{VX+r}, v{a}, v{b}")

def load_x(srdreg, ld, nsteps, base=VX):
    E("s_lshl_b32 s10, s3, 5"); E("s_add_u32 s10, s10, s9")
    E("v_add_u32 v9, s10, v3"); E(f"s_mov_b32 s4, {ld}"); E("v_mul_lo_u32 v8, v9, s4")
    E("v_lshlrev_b32 v5, 4, v4"); E("v_add_u32 v8, v8, v5")
    for s in range(nsteps):
        E(f"buffer_load_dwordx4 v[{base+4*s}:{base+4*s+3}], v8, s[{srdreg}:{srdreg+3}], 0 offen offset:{32*s}")
def wgmap(a=2):
    if a == 2:
        E("s_and_b32 s9, s2, 7"); E("s_lshl_b32 s9, s9, 1"); E("s_lshr_b32 s11, s2, 7"); E("s_add_u32 s9, s9, s11"); E("s_lshl_b32 s9, s9, 7")
        E("s_lshr_b32 s11, s2, 3"); E("s_and_b32 s11, s11, 15")
    else:
        E("s_bfe_u32 s9, s2, 0x20001"); E("s_lshl_b32 s9, s9, 2"); E("s_lshr_b32 s11, s2, 6"); E("s_add_u32 s9, s9, s11"); E("s_lshl_b32 s9, s9, 7")
        E("s_bfe_u32 s11, s2, 0x30003"); E("s_and_b32 s4, s2, 1"); E("s_lshl_b32 s4, s4, 3"); E("s_add_u32 s11, s11, s4")
def load_xt(srdreg, nsteps_total, nsteps, base=VX):
    E("s_lshl_b32 s10, s3, 5"); E("s_add_u32 s10, s10, s9"); E("v_add_u32 v9, s10, v3")
    E("s_lshr_b32 s4, s10, 5"); E(f"s_mul_i32 s4, s4, {nsteps_total*1024}")
    E("v_lshlrev_b32 v8, 4, v1"); E("v_add_u32 v8, s4, v8")
    for s in range(nsteps):
        if s % 4 == 0: E(f"s_mov_b32 s4, {1024*s}")
        E(f"buffer_load_dwordx4 v[{base+4*s}:{base+4*s+3}], v8, s[{srdreg}:{srdreg+3}], s4 offen offset:{1024*(s%4)}")
def pack(acc, dst):
    for i in range(8): E(f"v_cvt_pk_bf16_f32 v{dst+i}, v{acc+2*i}, v{acc+2*i+1}")

kernels = []
WS_T = 24*MB
WS_ST = 30*MB
def k0():
    n = "k0_ln_kernel"; kernels.append((n, 256, 0)); prologue(n, 256)
    E("s_and_b32 s9, s2, 7"); E("s_lshl_b32 s9, s9, 8"); E("s_lshr_b32 s10, s2, 3"); E("s_lshl_b32 s10, s10, 3"); E("s_add_u32 s9, s9, s10")
    E("s_lshl_b32 s10, s3, 1"); E("s_add_u32 s9, s9, s10")
    srd(40, 16, 0, 2*MB); srd(44, 34, WS_XN, 2*MB)
    E("s_cmp_lg_u32 s2, 0"); E("s_cbranch_scc1 k0_nz")
    srd(52, 34, 20*MB, 16384)
    for i in range(4): E(f"v_mov_b32 v{40+i}, 0")
    E("v_lshlrev_b32 v5, 6, v0")
    for i in range(4): E(f"buffer_store_dwordx4 v[40:43], v5, s[52:55], 0 offen offset:{16*i}")
    L("k0_nz")
    E("s_lshl_b32 s10, s9, 10"); E("v_lshlrev_b32 v5, 4, v1")
    E("buffer_load_dwordx4 v[16:19], v5, s[40:43], s10 offen"); E("buffer_load_dwordx4 v[20:23], v5, s[40:43], s10 offen offset:1024")
    E("s_lshr_b32 s11, s9, 5"); E("s_lshl_b32 s11, s11, 15"); E("s_and_b32 s12, s9, 31"); E("s_lshl_b32 s12, s12, 4"); E("s_add_u32 s11, s11, s12")
    E("v_lshrrev_b32 v6, 1, v1"); E("v_lshlrev_b32 v6, 10, v6"); E("v_and_b32 v7, 1, v1"); E("v_lshlrev_b32 v7, 9, v7"); E("v_add_u32 v6, v6, v7")
    E("s_mov_b32 s8, 0x3f803f80")
    for q in range(4): E(f"v_mov_b32 v{24+q}, 0")
    if os.environ.get("PF", "1") == "1":
        E("s_lshl_b32 s12, s2, 12"); E("v_lshlrev_b32 v32, 4, v0"); E("v_add_u32 v32, s12, v32"); E("v_add_u32 v33, 0x100000, v32")
        k = 0
        for base, size in ((18, 512*3072),):
            srd(48, base, 0, size)
            E(f"buffer_load_dwordx4 v[{36+4*k}:{39+4*k}], v32, s[48:51], 0 offen"); k += 1
            if size > MB: E(f"buffer_load_dwordx4 v[{36+4*k}:{39+4*k}], v33, s[48:51], 0 offen"); k += 1
        E("s_lshl_b32 s60, s2, 2"); E("s_add_u32 s60, s60, s3")
        E("v_lshrrev_b32 v34, 2, v1"); E("v_and_b32 v35, 3, v1"); E("v_lshlrev_b32 v35, 4, v35")
        E("v_mul_u32_u24 v33, 2752, v34"); E("v_add_u32 v33, v33, v35"); E("v_lshlrev_b32 v34, 10, v34"); E("v_add_u32 v34, v34, v35")
        E(f"s_mov_b32 s50, {512*2752}"); E("s_mov_b32 s51, 0x00020000")
        for t in range(3):
            E(f"s_add_u32 s61, s60, {1024*t}"); E("s_lshr_b32 s62, s61, 6"); E("s_mul_i32 s62, s62, 171"); E("s_lshr_b32 s62, s62, 9")
            E("s_mul_i32 s63, s62, 192"); E("s_sub_u32 s63, s61, s63")
            E("s_and_b32 s64, s63, 31"); E(f"s_mul_i32 s64, s64, {16*2752}")
            E("s_mul_i32 s65, s62, 86"); E("s_and_b32 s65, s65, 0xfffffff0"); E("s_lshl_b32 s65, s65, 1"); E("s_add_u32 s64, s64, s65")
            E("s_lshr_b32 s65, s63, 6"); E("s_lshl_b32 s65, s65, 6"); E("s_add_u32 s64, s64, s65")
            E("s_bitcmp1_b32 s63, 5"); E("s_cselect_b32 s48, s26, s24"); E("s_cselect_b32 s49, s27, s25")
            E(f"buffer_load_dwordx4 v[{44+4*t}:{47+4*t}], v33, s[48:51], s64 offen")
        srd(48, 28, 0, 1376*1024); srd(52, 20, 0, 512*1024)
        for t in (3, 4):
            E(f"s_add_u32 s61, s60, {1024*(t-3)}"); E("s_min_u32 s66, s61, 1407")
            E("s_lshr_b32 s62, s66, 3"); E("s_mul_i32 s62, s62, 187"); E("s_lshr_b32 s62, s62, 11"); E("s_mul_i32 s63, s62, 88"); E("s_sub_u32 s63, s66, s63")
            E("s_lshl_b32 s63, s63, 14"); E("s_lshl_b32 s62, s62, 6"); E("s_add_u32 s64, s63, s62")
            if t == 3:
                E(f"buffer_load_dwordx4 v[{44+4*t}:{47+4*t}], v34, s[48:51], s64 offen")
            else:
                E("s_cmp_lt_u32 s61, 1408"); E("s_cbranch_scc0 k0_w3")
                E(f"buffer_load_dwordx4 v[{44+4*t}:{47+4*t}], v34, s[48:51], s64 offen"); E("s_branch k0_w3e")
                L("k0_w3"); E("s_sub_u32 s61, s61, 1408"); E("s_min_u32 s61, s61, 511")
                E("s_and_b32 s63, s61, 31"); E("s_lshl_b32 s63, s63, 14"); E("s_lshr_b32 s62, s61, 5"); E("s_lshl_b32 s62, s62, 6"); E("s_add_u32 s64, s63, s62")
                E(f"buffer_load_dwordx4 v[{44+4*t}:{47+4*t}], v34, s[52:55], s64 offen")
                L("k0_w3e")
        srd(52, 34, WS_T, 5*MB); E("s_lshl_b32 s60, s60, 10"); E("v_lshlrev_b32 v35, 4, v1")
        ntl = 0
        if os.environ.get("TLB", "0") == "1":
            E("v_lshlrev_b32 v33, 16, v1")
            srd(48, 34, 0, 24*MB)
            for i in range(6):
                E(f"s_mov_b32 s12, {4*MB*i}"); E(f"buffer_load_dword v{100+ntl}, v33, s[48:51], s12 offen"); ntl += 1
            for base, size in ((18, 512*3072), (20, 512*1024), (24, 512*2752), (26, 512*2752), (28, 1376*1024), (30, 2*MB)):
                srd(48, base, 0, size); E(f"buffer_load_dword v{100+ntl}, v33, s[48:51], 0 offen"); ntl += 1
        npf = int(os.environ.get("NPF", "0"))
        if npf:
            E("s_getpc_b64 s[60:61]"); L("k0_pc")
            E("v_lshlrev_b32 v34, 4, v0")
            for i in range(npf):
                E(f"global_load_dwordx4 v[{72+4*i}:{75+4*i}], v34, s[60:61]"); E("v_add_u32 v34, 0x1000, v34")
        E(f"s_waitcnt vmcnt({7+npf+ntl})")
    else:
        E("s_waitcnt vmcnt(0)")
    for r in range(2):
        for i in range(4):
            E(f"v_dot2_f32_bf16 v{24+2*r}, v{16+4*r+i}, s8, v{24+2*r}"); E(f"v_dot2_f32_bf16 v{25+2*r}, v{16+4*r+i}, v{16+4*r+i}, v{25+2*r}")
    E("s_nop 3")
    for off in (0x041F, 0x081F, 0x101F, 0x201F, 0x401F):
        for q in range(4): E(f"ds_swizzle_b32 v{28+q}, v{24+q} offset:{off:#x}")
        E("s_waitcnt lgkmcnt(0)")
        for q in range(4): E(f"v_add_f32 v{24+q}, v{24+q}, v{28+q}")
    for q in range(4): E(f"v_mov_b32 v{28+q}, v{24+q}")
    E("s_nop 1")
    for q in range(4): E(f"v_permlane32_swap_b32 v{24+q}, v{28+q}")
    E("s_nop 1")
    for q in range(4): E(f"v_add_f32 v{24+q}, v{24+q}, v{28+q}")
    for r in range(2):
        a, b = 24+2*r, 25+2*r
        E(f"v_mul_f32 v{a}, {f2u(1/512):#x}, v{a}"); E(f"v_mul_f32 v{b}, {f2u(1/512):#x}, v{b}")
        E(f"v_fma_f32 v{b}, -v{a}, v{a}, v{b}"); E(f"v_max_f32 v{b}, 0, v{b}"); E(f"v_add_f32 v{b}, {f2u(1e-5):#x}, v{b}")
        E(f"v_rsq_f32 v{b}, v{b}"); E("s_nop 0"); E(f"v_mul_f32 v{a}, v{a}, v{b}"); E(f"v_sub_f32 v{a}, 0, v{a}")
        for i in range(4):
            x = 16+4*r+i
            E(f"v_lshlrev_b32 v30, 16, v{x}"); E(f"v_and_b32 v31, 0xffff0000, v{x}")
            E(f"v_fma_f32 v30, v30, v{b}, v{a}"); E(f"v_fma_f32 v31, v31, v{b}, v{a}"); E(f"v_cvt_pk_bf16_f32 v{x}, v30, v31")
        if r == 0:
            E("s_waitcnt vmcnt(0)")
            for t in range(5):
                E(f"s_add_u32 s61, s60, {MB*t}"); E(f"buffer_store_dwordx4 v[{44+4*t}:{47+4*t}], v35, s[52:55], s61 offen")
        E(f"buffer_store_dwordx4 v[{16+4*r}:{19+4*r}], v6, s[44:47], s11 offen offset:{16*r}")
    epilogue_end(n)

SC = " sc1"
def lanes():
    E("v_and_b32 v1, 63, v0"); E("v_and_b32 v3, 31, v0"); E("v_bfe_u32 v4, v0, 5, 1")
WS_CNT = 20*MB
def signal(n, idx):
    E("s_waitcnt vmcnt(0)"); E("s_barrier")
    E("s_cmp_lg_u32 s3, 0"); E(f"s_cbranch_scc1 {n}_sig{idx}")
    E("s_lshl_b32 s4, s9, 1"); E(f"s_add_u32 s4, s4, {idx*4096}")
    E("v_mov_b32 v5, 1"); E("v_mov_b32 v6, s4"); E("s_mov_b64 exec, 1")
    E("buffer_atomic_add v5, v6, s[56:59], 0 offen"); E("s_mov_b64 exec, -1")
    L(f"{n}_sig{idx}")
def wait(n, idx, back=0):
    E("s_cmp_lg_u32 s3, 0"); E(f"s_cbranch_scc1 {n}_wx{idx}")
    E("s_lshl_b32 s4, s9, 1"); E("v_lshlrev_b32 v6, 8, v1"); E("v_sub_u32 v6, s4, v6"); E("v_max_i32 v6, 0, v6"); E(f"v_add_u32 v6, {idx*4096}, v6")
    E("s_mov_b32 s6, 0"); E(f"s_mov_b64 exec, {(1 << (back+1)) - 1}")
    L(f"{n}_w{idx}")
    E("buffer_load_dword v5, v6, s[56:59], 0 offen sc1"); E("s_waitcnt vmcnt(0)")
    E("v_cmp_gt_u32 vcc, 16, v5"); E("s_add_u32 s6, s6, 1"); E("s_nop 0"); E(f"s_cbranch_vccz {n}_wd{idx}")
    E("s_sleep 3"); E("s_cmp_lt_u32 s6, 0x4000"); E(f"s_cbranch_scc1 {n}_w{idx}")
    L(f"{n}_wd{idx}"); E("s_mov_b64 exec, -1")
    L(f"{n}_wx{idx}")
    E("s_waitcnt vmcnt(0)"); E("s_barrier")
def load_xt2(srdreg, nsteps_total, nsteps, base=VX, sc=SC):
    E("s_lshr_b32 s4, s10, 5"); E(f"s_mul_i32 s4, s4, {nsteps_total*1024}")
    E("v_lshlrev_b32 v8, 4, v1"); E("v_add_u32 v8, s4, v8")
    for s in range(nsteps):
        if s % 4 == 0: E(f"s_mov_b32 s4, {1024*s}")
        E(f"buffer_load_dwordx4 v[{base+4*s}:{base+4*s+3}], v8, s[{srdreg}:{srdreg+3}], s4 offen offset:{1024*(s%4)}{sc}")
def issue(groups):
    for g in groups:
        for x in g: E(x)

def mega():
    global VW
    n = "km_block_kernel"; kernels.append((n, 256, 163840)); prologue(n, 256)
    stamp(n); wgmap(2)
    E("s_mov_b32 s61, s11")
    E("s_lshl_b32 s10, s3, 5"); E("s_add_u32 s10, s10, s9")
    srd(56, 34, WS_CNT, 16384)
    E("s_mul_i32 s11, s61, 3")
    srd(40, 34, WS_XN, 2*MB); srd(44, 18, 0, 512*3072); srd(48, 34, 0, 6*MB)
    srd(64, 34, WS_T, 5*MB); E("s_mul_i32 s68, s61, 196608"); E("s_mul_i32 s69, s61, 90112"); E(f"s_add_u32 s69, s69, {3072*1024}"); E("s_lshl_b32 s70, s61, 15"); E(f"s_add_u32 s70, s70, {4480*1024}")
    E("s_lshl_b32 s62, s61, 6")
    E("s_mul_i32 s63, s61, 86"); E("s_and_b32 s63, s63, 0xfffffff0"); E("s_lshl_b32 s63, s63, 1")
    E("v_lshlrev_b32 v2, 4, v0")
    slotof = {0: 3, 1: 4, 2: 1, 3: 2, 4: 0, 5: 3}
    def tl(sc, add, lds, nj): return [[x.replace(" v7,", " v2,") for x in g] for g in dma_list(64, sc, add, lds, nj, 64)]
    def regl(r): return tl(68, r*32768, slotof[r]*32768, 8)
    p1pf = regl(0) + regl(1)
    dma_setup_w(3072)
    E("s_lshl_b32 s60, s11, 6")
    allw = dma_list_w(44, 60, 0, 0, 512, 3072)
    E("s_lshr_b32 s4, s10, 5"); E(f"s_mul_i32 s4, s4, {32*1024}"); E("v_lshlrev_b32 v8, 4, v1"); E("v_add_u32 v8, s4, v8")
    def chunk(c):
        r = list(allw[6*c:6*c+6])
        for s_ in range(8*c, 8*c+8):
            r.append([f"s_mov_b32 s4, {1024*(s_ & ~3)}", f"buffer_load_dwordx4 v[{VX+4*s_}:{VX+4*s_+3}], v8, s[40:43], s4 offen offset:{1024*(s_%4)}"])
        return r
    issue(chunk(0) + chunk(1))
    E("v_add_u32 v9, s10, v3")
    w_addr(False, 10, 192); E("v_add_u32 v13, 0xc000, v10")
    E("v_lshlrev_b32 v11, 5, v9"); E("v_lshlrev_b32 v5, 4, v4"); E("v_add_u32 v11, v11, v5")
    E("v_bfe_u32 v12, v0, 4, 1"); E("v_lshlrev_b32 v12, 16, v12"); E("v_lshlrev_b32 v5, 8, v4"); E("v_add_u32 v12, v12, v5")
    E("v_and_b32 v5, 15, v0"); E("v_lshlrev_b32 v5, 4, v5"); E("v_add_u32 v12, v12, v5")
    E("s_lshl_b32 s13, s10, 5"); E("v_add_u32 v12, s13, v12")
    ACCJ = (176, 192, 208); PT = 224
    stamp(n, "p1")
    E("s_cmp_eq_u32 s61, 10"); E(f"s_cbranch_scc1 {n}_p1b"); E("s_cmp_gt_u32 s61, 10"); E(f"s_cbranch_scc1 {n}_p1c")
    for vn, sws in (("a", (False, False, False)), ("b", (False, False, True)), ("c", (True, True, True))):
        L(f"{n}_p1{vn}")
        for c in range(4):
            E(f"s_waitcnt vmcnt({14 if c < 3 else 0})"); E("s_barrier")
            if vn == "a": stamp(n, "p1")
            items = []
            for s in range(8*c, 8*c+8):
                for j in range(3):
                    items.append(((10, 3072*s + 64*j) if s < 16 else (13, 3072*(s-16) + 64*j)) + (VX+4*s, ACCJ[j]))
            nxt = chunk(c + 2) if c < 2 else []
            for i in mfma_items(items, False, lambda i: sws[i % 3], lambda i: c == 0 and i < 3, 192):
                if nxt and i % 3 != 2: issue([nxt.pop(0)])
            assert not nxt
        E("s_nop 15")
        if vn == "a": stamp(n, "p1")
        for j, sw in enumerate(sws):
            E(f"s_add_u32 s12, s11, {j}"); pack(ACCJ[j], PT + 8*j); T_ = PT + 8*j
            if not sw:
                E("s_lshr_b32 s14, s12, 4"); E("s_lshl_b32 s14, s14, 21"); E("s_and_b32 s15, s12, 15"); E("s_lshl_b32 s15, s15, 17")
                E("s_add_u32 s14, s14, s15"); E("s_add_u32 s15, s14, 65536")
                E(f"buffer_store_dwordx4 v[{T_}:{T_+3}], v11, s[48:51], s14 offen{SC}")
                E(f"buffer_store_dwordx4 v[{T_+4}:{T_+7}], v11, s[48:51], s15 offen{SC}")
            else:
                E("s_sub_u32 s14, s12, 32"); E("s_lshl_b32 s14, s14, 17"); E(f"s_add_u32 s14, s14, {WS_V}")
                E(f"buffer_store_dwordx4 v[{T_}:{T_+3}], v12, s[48:51], s14 offen{SC}")
                E(f"buffer_store_dwordx4 v[{T_+4}:{T_+7}], v12, s[48:51], s14 offen offset:512{SC}")
        if vn != "c": E(f"s_branch {n}_p1e")
    L(f"{n}_p1e")
    stamp(n, "p1")
    stamp(n); signal(n, 0); stamp(n)
    issue(tl(70, 0, 0, 8))
    E("v_mov_b32 v5, 0x3f803f80")
    for r in range(144): E(f"v_accvgpr_write_b32 a{80+r}, v5")
    wait(n, 0, 2); stamp(n); stamp(n, "p2")
    S, O, PK = 96, 240, 16
    srd(40, 34, WS_Q, 2*MB); srd(44, 34, WS_K - 8192, 2*MB + 8192); srd(48, 34, WS_V - 8192, 2*MB + 8192); srd(52, 34, WS_O, 2*MB)
    E("v_lshlrev_b32 v5, 2, v4"); E("v_sub_u32 v11, v3, v5")
    E("s_sub_i32 s15, 256, s10"); E("s_max_i32 s15, s15, 0")
    E("v_lshlrev_b32 v6, 4, v4")
    E("s_lshl_b32 s11, s61, 1")
    E("s_lshl_b32 s12, s11, 11"); E("s_add_u32 s12, s12, s10")
    E("v_add_u32 v5, s12, v3"); E("v_lshlrev_b32 v5, 5, v5"); E("v_add_u32 v8, v5, v6"); E("v_add_u32 v13, 0x10000, v8")
    E("s_lshl_b32 s14, s15, 5")
    E("v_and_b32 v5, 15, v0"); E("v_lshlrev_b32 v5, 4, v5"); E("v_lshlrev_b32 v9, 8, v4"); E("v_add_u32 v5, v5, v9")
    E("s_lshl_b32 s13, s11, 16"); E("s_lshl_b32 s12, s10, 5"); E("s_add_u32 s13, s13, s12"); E("v_add_u32 v9, s13, v5"); E("v_add_u32 v14, 0x10000, v9")
    E("s_mov_b32 s66x, 0") if False else None
    E("s_mov_b32 s72, 0x0000ffff"); E("s_mov_b32 s73, 0x0000ffff")
    def qk(hh):
        va = (8, 13)[hh]
        r = [[f"buffer_load_dwordx4 a[{72+4*hh}:{75+4*hh}], v{va}, s[40:43], 0 offen{SC}"]]
        for kb in range(9):
            r.append([f"s_max_u32 s12, s14, {kb*1024}", f"buffer_load_dwordx4 a[{36*hh+4*kb}:{36*hh+4*kb+3}], v{va}, s[44:47], s12 offen{SC}"])
        return r
    def vv(hh):
        return [["s_mov_b64 exec, s[72:73]", f"s_max_u32 s12, s14, {512*t}",
                 f"buffer_load_dwordx4 a[{80+72*hh+4*t}:{80+72*hh+4*t+3}], v{(9,14)[hh]}, s[48:51], s12 offen{SC}", "s_mov_b64 exec, -1"] for t in range(18)]
    issue(qk(0)); issue(vv(0))
    E("s_add_u32 s13, s10, s11"); E("s_lshl_b32 s13, s13, 10"); E("v_lshlrev_b32 v5, 4, v1"); E("v_add_u32 v10, s13, v5")
    stamp(n, "p2")
    for hh in range(2):
        pf = (qk(1) + vv(1)) if hh == 0 else (regl(1) + regl(2) + regl(3))
        npf0 = len(pf)
        E(f"v_mov_b32 v12, {f2u(-1e30):#x}")
        for kb in range(9):
            E(f"s_waitcnt vmcnt({(26-kb) if hh == 0 else (8 + 1 + 18 + 8 - kb)})")
            E(f"v_mfma_f32_32x32x16_bf16 v[{S+16*kb}:{S+16*kb+15}], a[{36*hh+4*kb}:{36*hh+4*kb+3}], a[{72+4*hh}:{75+4*hh}], 0")
        E("s_nop 7"); E("s_nop 3"); stamp(n, "p2")
        for kb in range(8):
            E(f"s_cmp_ge_u32 s10, {256-32*kb}"); E(f"s_cbranch_scc1 {n}_ok{hh}_{kb}")
            for i in range(16): E(f"v_mov_b32 v{S+16*kb+i}, v12")
            L(f"{n}_ok{hh}_{kb}")
        for i in range(16):
            c = 8*(i >> 2) + (i & 3)
            E(f"v_cmp_le_i32 vcc, {c}, v11"); E("s_nop 1")
            E(f"v_cndmask_b32 v{S+128+i}, v12, v{S+128+i}, vcc"); E(f"v_cndmask_b32 v{S+i}, v{S+i}, v12, vcc")
            if i % 3 == 2 and pf: issue([pf.pop(0)])
        for c in range(4): E(f"v_max_f32 v{PK+c}, v{S+c}, v{S+4+c}")
        for r in range(8, 144, 8):
            for c in range(4): E(f"v_max3_f32 v{PK+c}, v{PK+c}, v{S+r+c}, v{S+r+4+c}")
            if r % 24 == 0 and pf: issue([pf.pop(0)])
        E(f"v_max_f32 v{PK}, v{PK}, v{PK+1}"); E(f"v_max_f32 v{PK+2}, v{PK+2}, v{PK+3}"); E(f"v_max_f32 v12, v{PK}, v{PK+2}"); E("v_mov_b32 v15, v12")
        E("s_nop 1"); E("v_permlane32_swap_b32 v12, v15"); E("s_nop 1"); E("v_max_f32 v12, v12, v15")
        E(f"s_mov_b32 s13, {f2u(0.25*LOG2E):#x}"); E("v_mul_f32 v12, s13, v12"); stamp(n, "p2")
        for r in range(0, 144, 4):
            for c in range(4): E(f"v_fma_f32 v{S+r+c}, v{S+r+c}, s13, -v12")
            for c in range(4): E(f"v_exp_f32 v{S+r+c}, v{S+r+c}")
            if r >= 4:
                p = r - 4; d = S + 16*(p//16) + (p % 16)//2
                E(f"v_cvt_pk_bf16_f32 v{d}, v{S+p}, v{S+p+1}"); E(f"v_cvt_pk_bf16_f32 v{d+1}, v{S+p+2}, v{S+p+3}")
            if r % 8 == 0 and pf: issue([pf.pop(0)])
        p = 140; d = S + 16*(p//16) + (p % 16)//2
        E("s_nop 0"); E(f"v_cvt_pk_bf16_f32 v{d}, v{S+p}, v{S+p+1}"); E(f"v_cvt_pk_bf16_f32 v{d+1}, v{S+p+2}, v{S+p+3}")
        npf_left = len(pf)
        stamp(n, "p2")
        assert npf_left == 0
        E(f"s_waitcnt vmcnt({npf0 if hh == 0 else (9+npf0)})"); stamp(n, "p2")
        if hh == 0: pf = regl(0)
        for t in range(18):
            if pf and t % 2 == 1: issue([pf.pop(0)])
            bb = S + 16*(t//2) + 4*(t % 2)
            E(f"v_mfma_f32_32x32x16_bf16 v[{O}:{O+15}], a[{80+72*hh+4*t}:{80+72*hh+4*t+3}], v[{bb}:{bb+3}], {'0' if t == 0 else f'v[{O}:{O+15}]'}")
        E("s_nop 15"); E(f"v_rcp_f32 v12, v{O+8}"); E("s_nop 0")
        for i in range(8): E(f"v_mul_f32 v{O+i}, v{O+i}, v12")
        for i in range(4): E(f"v_cvt_pk_bf16_f32 v{PK+i}, v{O+2*i}, v{O+2*i+1}")
        assert not pf
        E(f"buffer_store_dwordx4 v[{PK}:{PK+3}], v10, s[52:55], 0 offen offset:{1024*hh}{SC}")
        E("s_nop 1")
    stamp(n); signal(n, 1); stamp(n)
    srd(40, 34, WS_O, 2*MB); srd(48, 34, WS_H, 2*MB); srd(52, 16, 0, 2*MB)
    E("v_add_u32 v9, s10, v3")
    w_addr(True, 10)
    E("v_lshlrev_b32 v12, 10, v9"); E("v_lshlrev_b32 v5, 3, v4"); E("v_add_u32 v12, v12, v5"); E("s_lshl_b32 s13, s61, 11")
    for q in range(4): E(f"buffer_load_dwordx2 v[{VT+8+2*q}:{VT+9+2*q}], v12, s[52:55], s62 offen offset:{16*q}")
    wait(n, 1); stamp(n)
    load_xt2(40, 32, 32)
    E("s_waitcnt vmcnt(0)"); E("s_barrier")
    items = [(10, 1024*s, VX+4*s, ACC0) for s in range(32)]
    for _ in mfma_items(items, True, lambda i: False, lambda i: i == 0): pass
    E("s_nop 15")
    for i in range(8):
        E(f"v_lshlrev_b32 v5, 16, v{VT+8+i}"); E(f"v_and_b32 v6, 0xffff0000, v{VT+8+i}")
        E(f"v_add_f32 v{ACC0+2*i}, v{ACC0+2*i}, v5"); E(f"v_add_f32 v{ACC0+2*i+1}, v{ACC0+2*i+1}, v6")
    pack(ACC0, VT)
    E(f"buffer_store_dwordx4 v[{VT}:{VT+3}], v8, s[48:51], s13 offen{SC}")
    E(f"buffer_store_dwordx4 v[{VT+4}:{VT+7}], v8, s[48:51], s13 offen offset:1024{SC}")
    E("s_mov_b32 s8, 0x3f803f80"); srd(44, 34, WS_ST, 262144)
    for q in range(4): E(f"v_mov_b32 v{240+q}, 0")
    for i in range(8):
        E(f"v_dot2_f32_bf16 v{240+(i&1)}, v{VT+i}, s8, v{240+(i&1)}"); E(f"v_dot2_f32_bf16 v{242+(i&1)}, v{VT+i}, v{VT+i}, v{242+(i&1)}")
    E("s_lshl_b32 s14, s9, 7"); E("s_lshl_b32 s15, s61, 10"); E("s_add_u32 s14, s14, s15"); E("s_lshl_b32 s15, s3, 8"); E("s_add_u32 s14, s14, s15")
    E("v_lshlrev_b32 v13, 3, v3"); E("s_nop 1")
    E("v_add_f32 v244, v240, v241"); E("v_add_f32 v245, v242, v243"); E("v_mov_b32 v246, v244"); E("v_mov_b32 v247, v245"); E("s_nop 1")
    E("v_permlane32_swap_b32 v244, v246"); E("v_permlane32_swap_b32 v245, v247"); E("s_nop 1")
    E("v_add_f32 v244, v244, v246"); E("v_add_f32 v245, v245, v247")
    E(f"buffer_store_dwordx2 v[244:245], v13, s[44:47], s14 offen{SC}")
    stamp(n); signal(n, 2); stamp(n)
    issue(regl(4))
    wait(n, 2); stamp(n); stamp(n, "p4")
    srd(40, 34, WS_H, 2*MB); srd(52, 34, WS_HH, 2048*2752)
    E("s_lshl_b32 s14, s9, 7"); E("s_lshl_b32 s15, s3, 8"); E("s_add_u32 s14, s14, s15")
    E("v_lshlrev_b32 v13, 3, v3"); E("v_lshlrev_b32 v5, 13, v4"); E("v_add_u32 v13, v13, v5")
    for k in range(8):
        if k % 4 == 0: E(f"s_add_u32 s15, s14, {1024*k}")
        E(f"buffer_load_dwordx2 v[{240+2*k}:{241+2*k}], v13, s[44:47], s15 offen offset:{1024*(k%4)}{SC}")
    E("s_lshr_b32 s4, s10, 5"); E(f"s_mul_i32 s4, s4, {32*1024}"); E("v_lshlrev_b32 v8, 4, v1"); E("v_add_u32 v8, s4, v8")
    def xld(s_): return [f"s_mov_b32 s4, {1024*s_}", f"buffer_load_dwordx4 v[{VX+4*s_}:{VX+4*s_+3}], v8, s[40:43], s4 offen{SC}"]
    for s_ in range(16): issue([xld(s_)])
    E("s_lshr_b32 s4, s10, 5"); E(f"s_mul_i32 s4, s4, {86*1024}"); E("v_lshlrev_b32 v11, 4, v1"); E("v_add_u32 v11, s4, v11")
    stamp(n, "p4")
    E("s_waitcnt vmcnt(16)")
    for w in (4, 2, 1):
        for k in range(w):
            E(f"v_add_f32 v{240+2*k}, v{240+2*k}, v{240+2*(k+w)}"); E(f"v_add_f32 v{241+2*k}, v{241+2*k}, v{241+2*(k+w)}")
    E("v_mov_b32 v242, v240"); E("v_mov_b32 v243, v241"); E("s_nop 1")
    E("v_permlane32_swap_b32 v240, v242"); E("v_permlane32_swap_b32 v241, v243"); E("s_nop 1")
    E("v_add_f32 v240, v240, v242"); E("v_add_f32 v241, v241, v243")
    E(f"v_mul_f32 v240, {f2u(1/512):#x}, v240"); E(f"v_mul_f32 v241, {f2u(1/512):#x}, v241")
    E("v_fma_f32 v241, -v240, v240, v241"); E("v_max_f32 v241, 0, v241"); E(f"v_add_f32 v241, {f2u(1e-5):#x}, v241")
    E("v_rsq_f32 v12, v241"); E("s_nop 0"); E("v_mul_f32 v240, v240, v12"); E("v_sub_f32 v15, 0, v240")
    E(f"s_mov_b32 s13, {f2u(-LOG2E):#x}")
    stamp(n, "p4")
    E("s_waitcnt vmcnt(14)")
    stamp(n, "p4")
    def norm(s):
        r = []
        for q in range(4):
            x = VX + 4*s + q; a_, b_ = 240 + 2*q, 241 + 2*q
            r += [f"v_lshlrev_b32 v{a_}, 16, v{x}", f"v_and_b32 v{b_}, 0xffff0000, v{x}"]
        for q in range(4):
            a_, b_ = 240 + 2*q, 241 + 2*q
            r += [f"v_fma_f32 v{a_}, v{a_}, v12, v15", f"v_fma_f32 v{b_}, v{b_}, v12, v15"]
        for q in range(4):
            r += [f"v_cvt_pk_bf16_f32 v{VX+4*s+q}, v{240+2*q}, v{241+2*q}"]
        return r
    def epi(j, G, U):
        r = []
        for i in range(16): r.append(f"v_mul_f32 v{G+i}, s13, v{G+i}")
        for i in range(16): r.append(f"v_exp_f32 v{G+i}, v{G+i}")
        for i in range(16): r.append(f"v_add_f32 v{G+i}, 1.0, v{G+i}")
        for i in range(16): r.append(f"v_rcp_f32 v{G+i}, v{G+i}")
        for i in range(16): r.append(f"v_mul_f32 v{G+i}, v{G+i}, v{U+i}")
        for i in range(8): r.append(f"v_cvt_pk_bf16_f32 v{248+i}, v{G+2*i}, v{G+2*i+1}")
        r += [f"s_add_u32 s12, s63, {64*j}", "s_lshl_b32 s12, s12, 5",
              f"buffer_store_dwordx4 v[248:251], v11, s[52:55], s12 offen{SC}",
              f"buffer_store_dwordx4 v[252:255], v11, s[52:55], s12 offen offset:1024{SC}"]
        return r
    for x in norm(0) + norm(1): E(x)
    fill = []
    w5 = tl(69, 0, 32768, 16) + tl(69, 65536, 131072, 6)
    for j in range(3):
        G, U = (176, 192) if j % 2 == 0 else (208, 224)
        sg, su = slotof[2*j]*32768, slotof[2*j+1]*32768
        E(f"v_add_u32 v13, {sg}, v10"); E(f"v_add_u32 v14, {su}, v10")
        items = []
        for s in range(32): items += [(13, 1024*s, VX+4*s, G), (14, 1024*s, VX+4*s, U)]
        for i in mfma_items(items, True, lambda i: False, lambda i: i < 2):
            if j == 0 and i//2 + 2 < 32:
                s_ = i//2
                if i % 2 == 0:
                    if s_ + 16 < 32: issue([xld(s_ + 16)])
                    E(f"s_waitcnt vmcnt({min(s_ + 16, 31) - (s_ + 2)})")
                for x in norm(s_ + 2)[10*(i % 2):10*(i % 2)+10]: E(x)
            if j > 0 and i >= 4:
                for _ in range(2):
                    if fill: E(fill.pop(0))
            if j == 2 and i >= 2 and i % 2 == 0 and w5: issue([w5.pop(0)])
        assert not fill
        stamp(n, "p4")
        if j == 0: E("s_barrier"); issue(regl(5))
        if j == 1: E("s_waitcnt vmcnt(2)"); E("s_barrier")
        fill = epi(j, G, U)
    E("s_nop 15")
    for x in fill: E(x)
    stamp(n); stamp(n, "p4"); signal(n, 3); stamp(n); stamp(n, "p4")
    NX = 44; X = 56; oldVW = VW; VW = 16; A = 232; T = 48
    assert not w5
    wait(n, 3); stamp(n)
    srd(40, 34, WS_HH, 2048*2752); srd(48, 34, WS_H, 2*MB); srd(52, 30, 0, 2*MB)
    load_xt2(40, 86, NX, X)
    E("v_add_u32 v13, 0x8000, v10"); E("v_add_u32 v14, 0x20000, v10"); E("v_add_u32 v9, s10, v3")
    E("v_lshlrev_b32 v12, 10, v9"); E("v_lshlrev_b32 v5, 3, v4"); E("v_add_u32 v12, v12, v5")
    E("s_lshl_b32 s13, s10, 10"); E("s_lshl_b32 s14, s61, 11"); E("s_add_u32 s13, s13, s14"); E("v_lshlrev_b32 v11, 4, v1")
    E(f"buffer_load_dwordx4 v[248:251], v11, s[48:51], s13 offen{SC}"); E(f"buffer_load_dwordx4 v[252:255], v11, s[48:51], s13 offen offset:1024{SC}")
    E("s_waitcnt vmcnt(45)")
    items = [((13, 1024*s) if s < 64 else (14, 1024*(s-64))) + (X+4*(s % NX), A) for s in range(86)]
    for i in mfma_items(items, True, lambda i: False, lambda i: i == 0):
        if i + NX < 86:
            s = i + NX; E(f"s_mov_b32 s4, {1024*s}"); E(f"buffer_load_dwordx4 v[{X+4*i}:{X+4*i+3}], v8, s[40:43], s4 offen{SC}")
        if i + 1 < 86: E(f"s_waitcnt vmcnt({(45 if i + 1 <= 42 else 44) if i + 1 < NX else 85-(i+1)})")
    VW = oldVW
    E("s_nop 15")
    for i in range(8):
        E(f"v_lshlrev_b32 v5, 16, v{248+i}"); E(f"v_and_b32 v6, 0xffff0000, v{248+i}")
        E(f"v_add_f32 v{A+2*i}, v{A+2*i}, v5"); E(f"v_add_f32 v{A+2*i+1}, v{A+2*i+1}, v6")
    pack(A, T)
    for q in range(4): E(f"buffer_store_dwordx2 v[{T+2*q}:{T+2*q+1}], v12, s[52:55], s62 offen offset:{16*q}")
    epilogue_end(n)

k0(); mega()
hdr = open("cdna_kernels/" + NAME + ".s.ref").read().split("\n")
head = [l for l in hdr if l.startswith(";") and "@launch" not in l and "Override" not in l and "grid=ceil" not in l]
import os
dup = int(os.environ.get("DUP", "-1"))
ll = []
for idx, (k, g, l) in enumerate(kernels):
    ll += [f"; @launch kernel={k} grid=({g},1,1) block=(256,1,1) lds={l}"] * (5 if idx == dup else 1)
if dup == 99: ll = ll + ll
if STAMPK:
    ll = ll + [x for x in ll if STAMPK in x]
txt = head + ll
txt += ['.amdgcn_target "amdgcn-amd-amdhsa--gfx950"', ".text"] + out + ['.section .rodata,"a"']
for k, g, l in kernels:
    txt += [".p2align 6", f".amdhsa_kernel {k}", f"  .amdhsa_next_free_vgpr {512 if k.startswith('km') else 256}", "  .amdhsa_next_free_sgpr 102", "  .amdhsa_accum_offset 256",
            "  .amdhsa_group_segment_fixed_size 0", "  .amdhsa_kernarg_size 80", "  .amdhsa_user_sgpr_count 2",
            "  .amdhsa_user_sgpr_kernarg_segment_ptr 1", "  .amdhsa_system_sgpr_workgroup_id_x 1", ".end_amdhsa_kernel"]
open(os.environ.get("OUT", "cdna_kernels/" + NAME + ".s"), "w").write("\n".join(txt) + "\n")
```

```python
import sys, os
NAME = "sequential_preLN__sliding_block__glu_gated_glu__prompt"
out = []
def E(s): out.append("    " + s)
def L(s): out.append(s + ":")
MB = 1 << 20
WS_Q, WS_K, WS_V, WS_O, WS_H, WS_HH = 0, 2*MB, 4*MB, 6*MB, 8*MB, 10*MB
WS_XN = 16*MB
LOG2E = 1.4426950408889634
import struct
def f2u(f): return struct.unpack("<I", struct.pack("<f", f))[0]

def prologue(name, nwg):
    out.append(".p2align 8"); out.append(f".globl {name}"); out.append(f".type {name},@function"); L(name)
    E(f"s_cmp_ge_u32 s2, {nwg}"); E(f"s_cbranch_scc1 {name}_done")
    E("s_load_dwordx16 s[16:31], s[0:1], 0"); E("s_load_dwordx4 s[32:35], s[0:1], 64")
    E("v_and_b32 v1, 63, v0")
    E("v_lshrrev_b32 v2, 6, v0")
    E("v_and_b32 v3, 31, v0")
    E("v_readfirstlane_b32 s3, v2")
    E("v_bfe_u32 v4, v0, 5, 1")
    E("s_waitcnt lgkmcnt(0)")
STAMPK = os.environ.get("STAMP", "")
nst = [0]
def stamp(name, tag=""):
    if name != STAMPK: return
    if tag != os.environ.get("STAG", "") and nst[0] > 0 and tag != "end": return
    E("s_memrealtime s[74:75]" if os.environ.get("ABS") else "s_memtime s[74:75]"); E("s_waitcnt lgkmcnt(0)"); E(f"s_mov_b32 s{76+nst[0]}, s74"); nst[0] += 1
def epilogue_end(name):
    if name == STAMPK:
        stamp(name, "end")
        srd(40, 32, 0, 256)
        if os.environ.get("ABS"):
            k = int(os.environ["ABS"])
            E("s_and_b32 s4, s2, 7"); E("s_cmp_lg_u32 s4, 0"); E(f"s_cbranch_scc1 {name}_done"); E("s_cmp_lg_u32 s3, 0"); E(f"s_cbranch_scc1 {name}_done")
            E("s_cmp_ge_u32 s2, 256"); E(f"s_cbranch_scc1 {name}_done")
            E("s_lshr_b32 s4, s2, 4"); E("s_lshl_b32 s4, s4, 2"); E("s_and_b32 s5, s2, 8"); E("s_cmp_lg_u32 s5, 0"); E(f"s_cbranch_scc1 {name}_done")
            E("v_mov_b32 v6, s4"); E(f"v_mov_b32 v5, s{76+k}"); E("buffer_store_dword v5, v6, s[40:43], 0 offen"); E(f"s_branch {name}_done")
        E("s_cmp_lg_u32 s2, 8"); E(f"s_cbranch_scc1 {name}_done"); E("s_cmp_lg_u32 s3, 0"); E(f"s_cbranch_scc1 {name}_done")
        srd(40, 32, 0, 256)
        for i in range(nst[0]):
            E(f"s_sub_u32 s4, s{76+i}, s76"); E("v_mov_b32 v5, s4"); E(f"v_mov_b32 v6, {4*i}"); E("buffer_store_dword v5, v6, s[40:43], 0 offen")
    L(f"{name}_done"); E("s_endpgm")
def srd(d, base, off, size):
    if off >= 0:
        E(f"s_add_u32 s{d}, s{base}, {off}"); E(f"s_addc_u32 s{d+1}, s{base+1}, 0")
    else:
        E(f"s_sub_u32 s{d}, s{base}, {-off}"); E(f"s_subb_u32 s{d+1}, s{base+1}, 0")
    E(f"s_mov_b32 s{d+2}, {size}"); E(f"s_mov_b32 s{d+3}, 0x00020000")

VX, VW, ACC0, ACC1, VT = 16, 144, 176, 192, 208

def w_addr(perm, vdst, RB=64):
    E("v_bfe_u32 v5, v0, 2, 2")
    E(f"v_lshlrev_b32 v6, {2 if perm else 3}, v4")
    E("v_add_u32 v5, v5, v6")
    E(f"v_mul_u32_u24 v5, {RB}, v5")
    E("v_bfe_u32 v6, v0, 4, 1")
    E("v_lshlrev_b32 v6, 5, v6")
    E("v_add_u32 v5, v5, v6")
    E("v_and_b32 v6, 3, v0")
    E("v_lshlrev_b32 v6, 3, v6")
    E(f"v_add_u32 v{vdst}, v5, v6")

def dma_setup(ldw):
    E("v_lshrrev_b32 v5, 2, v0"); E(f"s_mov_b32 s4, {ldw}"); E("v_mul_lo_u32 v5, v5, s4")
    E("v_and_b32 v6, 3, v0"); E("v_lshlrev_b32 v6, 4, v6"); E("v_add_u32 v7, v5, v6")
    E("s_lshl_b32 s5, s3, 10")
def dma_region(srdreg, scol, ldsbase, nj, ldw):
    E(f"s_mov_b32 s6, s{scol}"); E(f"s_add_u32 s7, s5, {ldsbase}")
    for j in range(nj):
        E("s_mov_b32 m0, s7");
        if j + 1 < nj: E("s_add_u32 s7, s7, 4096")
        else: E("s_nop 0")
        E(f"buffer_load_dwordx4 v7, s[{srdreg}:{srdreg+3}], s6 offen lds")
        if j + 1 < nj: E(f"s_add_u32 s6, s6, {64*ldw}")

def dma_list(srdreg, scolreg, coladd, ldsbase, nj, ldw):
    r = []
    for j in range(nj):
        r.append([f"s_add_u32 s6, s{scolreg}, {coladd + j*64*ldw}", f"s_add_u32 m0, s5, {ldsbase + j*4096}", "s_nop 0",
                  f"buffer_load_dwordx4 v7, s[{srdreg}:{srdreg+3}], s6 offen lds"])
    return r
def dma_setup_w(ldw):
    E("s_lshl_b32 s5, s3, 10"); E("s_mov_b32 s4, 0xAAAB"); E(f"s_mov_b32 s6, {ldw}")
    for t, vr in enumerate((7, 14, 15)):
        E(f"v_add_u32 v5, {256*t}, v0"); E("v_mul_lo_u32 v6, v5, s4"); E("v_lshrrev_b32 v6, 19, v6")
        E("v_mul_u32_u24 v9, 12, v6"); E("v_sub_u32 v5, v5, v9"); E("v_lshlrev_b32 v5, 4, v5")
        E("v_mul_lo_u32 v6, v6, s6"); E(f"v_add_u32 v{vr}, v5, v6")
def dma_list_w(srdreg, scolreg, ldsbase, row0, nrows, ldw):
    r = []
    for j in range(nrows*12//256):
        r.append([f"s_add_u32 s6, s{scolreg}, {(row0 + (j//3)*64)*ldw}", f"s_add_u32 m0, s5, {ldsbase + j*4096}", "s_nop 0",
                  f"buffer_load_dwordx4 v{(7,14,15)[j%3]}, s[{srdreg}:{srdreg+3}], s6 offen lds"])
    return r
def mfma_items(items, perm, swap_of, first_of, RB=64):
    d2 = 8*RB if perm else 4*RB
    n = len(items); D = 6
    def rd(i):
        va, off, _, _ = items[i]; w = VW + 4 * (i % 8)
        E(f"ds_read_b64_tr_b16 v[{w}:{w+1}], v{va} offset:{off}")
        E(f"ds_read_b64_tr_b16 v[{w+2}:{w+3}], v{va} offset:{off+d2}")
    for i in range(min(D, n)): rd(i)
    for i in range(n):
        va, off, x, acc = items[i][:4]; w = VW + 4 * (i % 8)
        E(f"s_waitcnt lgkmcnt({2*(min(i+D-1, n-1)-i)})")
        c = "0" if first_of(i) else f"v[{acc}:{acc+15}]"
        if swap_of(i): E(f"v_mfma_f32_32x32x16_bf16 v[{acc}:{acc+15}], v[{x}:{x+3}], v[{w}:{w+3}], {c}")
        else:          E(f"v_mfma_f32_32x32x16_bf16 v[{acc}:{acc+15}], v[{w}:{w+3}], v[{x}:{x+3}], {c}")
        if i + D < n: rd(i + D)
        yield i

def ln_regs(ndma, inter=[], jit=False):
    E("s_mov_b32 s8, 0x3f803f80")
    for q in range(4): E(f"v_mov_b32 v{VT+q}, 0"); E(f"v_mov_b32 v{VT+4+q}, 0")
    inter = list(inter); nd = 0
    for g in range(4):
        E(f"s_waitcnt vmcnt({min(63, 24-8*g+nd)})")
        for r in range(32*g, 32*g+32):
            if inter and r % 8 == 4:
                for x in inter.pop(0): E(x)
                nd += 1
            E(f"v_dot2_f32_bf16 v{VT+(r&3)}, v{VX+r}, s8, v{VT+(r&3)}")
            E(f"v_dot2_f32_bf16 v{VT+4+(r&3)}, v{VX+r}, v{VX+r}, v{VT+4+(r&3)}")
    E("s_nop 3")
    E(f"v_add_f32 v{VT}, v{VT}, v{VT+1}"); E(f"v_add_f32 v{VT+2}, v{VT+2}, v{VT+3}")
    E(f"v_add_f32 v{VT+4}, v{VT+4}, v{VT+5}"); E(f"v_add_f32 v{VT+6}, v{VT+6}, v{VT+7}")
    E(f"v_add_f32 v{VT}, v{VT}, v{VT+2}"); E(f"v_add_f32 v{VT+4}, v{VT+4}, v{VT+6}")
    E(f"v_mov_b32 v{VT+1}, v{VT}"); E(f"v_mov_b32 v{VT+5}, v{VT+4}")
    E("s_nop 1")
    E(f"v_permlane32_swap_b32 v{VT}, v{VT+1}"); E(f"v_permlane32_swap_b32 v{VT+4}, v{VT+5}")
    E("s_nop 1")
    E(f"v_add_f32 v{VT}, v{VT}, v{VT+1}"); E(f"v_add_f32 v{VT+4}, v{VT+4}, v{VT+5}")
    E(f"v_mul_f32 v{VT}, {f2u(1/512):#x}, v{VT}")
    E(f"v_mul_f32 v{VT+4}, {f2u(1/512):#x}, v{VT+4}")
    E(f"v_fma_f32 v{VT+4}, -v{VT}, v{VT}, v{VT+4}")
    E(f"v_max_f32 v{VT+4}, 0, v{VT+4}")
    E(f"v_add_f32 v{VT+4}, {f2u(1e-5):#x}, v{VT+4}")
    E(f"v_rsq_f32 v{VT+4}, v{VT+4}")
    E("s_nop 0")
    E(f"v_mul_f32 v{VT}, v{VT}, v{VT+4}")
    E(f"v_sub_f32 v{VT}, 0, v{VT}")
    if jit:
        E(f"v_mov_b32 v12, v{VT+4}"); E(f"v_mov_b32 v15, v{VT}"); return
    for r in range(128):
        if inter and r % 5 == 0:
            for x in inter.pop(0): E(x)
        a, b = VT + 8 + 2 * (r & 3), VT + 9 + 2 * (r & 3)
        E(f"v_lshlrev_b32 v{a}, 16, v{VX+r}"); E(f"v_and_b32 v{b}, 0xffff0000, v{VX+r}")
        E(f"v_fma_f32 v{a}, v{a}, v{VT+4}, v{VT}"); E(f"v_fma_f32 v{b}, v{b}, v{VT+4}, v{VT}")
        E(f"v_cvt_pk_bf16_f32 v{VX+r}, v{a}, v{b}")

def load_x(srdreg, ld, nsteps, base=VX):
    E("s_lshl_b32 s10, s3, 5"); E("s_add_u32 s10, s10, s9")
    E("v_add_u32 v9, s10, v3"); E(f"s_mov_b32 s4, {ld}"); E("v_mul_lo_u32 v8, v9, s4")
    E("v_lshlrev_b32 v5, 4, v4"); E("v_add_u32 v8, v8, v5")
    for s in range(nsteps):
        E(f"buffer_load_dwordx4 v[{base+4*s}:{base+4*s+3}], v8, s[{srdreg}:{srdreg+3}], 0 offen offset:{32*s}")
def wgmap(a=2):
    if a == 2:
        E("s_and_b32 s9, s2, 7"); E("s_lshl_b32 s9, s9, 1"); E("s_lshr_b32 s11, s2, 7"); E("s_add_u32 s9, s9, s11"); E("s_lshl_b32 s9, s9, 7")
        E("s_lshr_b32 s11, s2, 3"); E("s_and_b32 s11, s11, 15")
    else:
        E("s_bfe_u32 s9, s2, 0x20001"); E("s_lshl_b32 s9, s9, 2"); E("s_lshr_b32 s11, s2, 6"); E("s_add_u32 s9, s9, s11"); E("s_lshl_b32 s9, s9, 7")
        E("s_bfe_u32 s11, s2, 0x30003"); E("s_and_b32 s4, s2, 1"); E("s_lshl_b32 s4, s4, 3"); E("s_add_u32 s11, s11, s4")
def load_xt(srdreg, nsteps_total, nsteps, base=VX):
    E("s_lshl_b32 s10, s3, 5"); E("s_add_u32 s10, s10, s9"); E("v_add_u32 v9, s10, v3")
    E("s_lshr_b32 s4, s10, 5"); E(f"s_mul_i32 s4, s4, {nsteps_total*1024}")
    E("v_lshlrev_b32 v8, 4, v1"); E("v_add_u32 v8, s4, v8")
    for s in range(nsteps):
        if s % 4 == 0: E(f"s_mov_b32 s4, {1024*s}")
        E(f"buffer_load_dwordx4 v[{base+4*s}:{base+4*s+3}], v8, s[{srdreg}:{srdreg+3}], s4 offen offset:{1024*(s%4)}")
def pack(acc, dst):
    for i in range(8): E(f"v_cvt_pk_bf16_f32 v{dst+i}, v{acc+2*i}, v{acc+2*i+1}")

kernels = []
WS_T = 24*MB
WS_ST = 30*MB
def k0():
    n = "k0_ln_kernel"; kernels.append((n, 256, 0)); prologue(n, 256)
    E("s_and_b32 s9, s2, 7"); E("s_lshl_b32 s9, s9, 8"); E("s_lshr_b32 s10, s2, 3"); E("s_lshl_b32 s10, s10, 3"); E("s_add_u32 s9, s9, s10")
    E("s_lshl_b32 s10, s3, 1"); E("s_add_u32 s9, s9, s10")
    srd(40, 16, 0, 2*MB); srd(44, 34, WS_XN, 2*MB)
    E("s_cmp_lg_u32 s2, 0"); E("s_cbranch_scc1 k0_nz")
    srd(52, 34, 20*MB, 16384)
    for i in range(4): E(f"v_mov_b32 v{40+i}, 0")
    E("v_lshlrev_b32 v5, 6, v0")
    for i in range(4): E(f"buffer_store_dwordx4 v[40:43], v5, s[52:55], 0 offen offset:{16*i}")
    L("k0_nz")
    E("s_lshl_b32 s10, s9, 10"); E("v_lshlrev_b32 v5, 4, v1")
    E("buffer_load_dwordx4 v[16:19], v5, s[40:43], s10 offen"); E("buffer_load_dwordx4 v[20:23], v5, s[40:43], s10 offen offset:1024")
    E("s_lshr_b32 s11, s9, 5"); E("s_lshl_b32 s11, s11, 15"); E("s_and_b32 s12, s9, 31"); E("s_lshl_b32 s12, s12, 4"); E("s_add_u32 s11, s11, s12")
    E("v_lshrrev_b32 v6, 1, v1"); E("v_lshlrev_b32 v6, 10, v6"); E("v_and_b32 v7, 1, v1"); E("v_lshlrev_b32 v7, 9, v7"); E("v_add_u32 v6, v6, v7")
    E("s_mov_b32 s8, 0x3f803f80")
    for q in range(4): E(f"v_mov_b32 v{24+q}, 0")
    if os.environ.get("PF", "1") == "1":
        E("s_lshl_b32 s12, s2, 12"); E("v_lshlrev_b32 v32, 4, v0"); E("v_add_u32 v32, s12, v32"); E("v_add_u32 v33, 0x100000, v32")
        k = 0
        for base, size in ((18, 512*3072),):
            srd(48, base, 0, size)
            E(f"buffer_load_dwordx4 v[{36+4*k}:{39+4*k}], v32, s[48:51], 0 offen"); k += 1
            if size > MB: E(f"buffer_load_dwordx4 v[{36+4*k}:{39+4*k}], v33, s[48:51], 0 offen"); k += 1
        E("s_lshl_b32 s60, s2, 2"); E("s_add_u32 s60, s60, s3")
        E("v_lshrrev_b32 v34, 2, v1"); E("v_and_b32 v35, 3, v1"); E("v_lshlrev_b32 v35, 4, v35")
        E("v_mul_u32_u24 v33, 2752, v34"); E("v_add_u32 v33, v33, v35"); E("v_lshlrev_b32 v34, 10, v34"); E("v_add_u32 v34, v34, v35")
        E(f"s_mov_b32 s50, {512*2752}"); E("s_mov_b32 s51, 0x00020000")
        for t in range(3):
            E(f"s_add_u32 s61, s60, {1024*t}"); E("s_lshr_b32 s62, s61, 6"); E("s_mul_i32 s62, s62, 171"); E("s_lshr_b32 s62, s62, 9")
            E("s_mul_i32 s63, s62, 192"); E("s_sub_u32 s63, s61, s63")
            E("s_and_b32 s64, s63, 31"); E(f"s_mul_i32 s64, s64, {16*2752}")
            E("s_mul_i32 s65, s62, 86"); E("s_and_b32 s65, s65, 0xfffffff0"); E("s_lshl_b32 s65, s65, 1"); E("s_add_u32 s64, s64, s65")
            E("s_lshr_b32 s65, s63, 6"); E("s_lshl_b32 s65, s65, 6"); E("s_add_u32 s64, s64, s65")
            E("s_bitcmp1_b32 s63, 5"); E("s_cselect_b32 s48, s26, s24"); E("s_cselect_b32 s49, s27, s25")
            E(f"buffer_load_dwordx4 v[{44+4*t}:{47+4*t}], v33, s[48:51], s64 offen")
        srd(48, 28, 0, 1376*1024); srd(52, 20, 0, 512*1024)
        for t in (3, 4):
            E(f"s_add_u32 s61, s60, {1024*(t-3)}"); E("s_min_u32 s66, s61, 1407")
            E("s_lshr_b32 s62, s66, 3"); E("s_mul_i32 s62, s62, 187"); E("s_lshr_b32 s62, s62, 11"); E("s_mul_i32 s63, s62, 88"); E("s_sub_u32 s63, s66, s63")
            E("s_lshl_b32 s63, s63, 14"); E("s_lshl_b32 s62, s62, 6"); E("s_add_u32 s64, s63, s62")
            if t == 3:
                E(f"buffer_load_dwordx4 v[{44+4*t}:{47+4*t}], v34, s[48:51], s64 offen")
            else:
                E("s_cmp_lt_u32 s61, 1408"); E("s_cbranch_scc0 k0_w3")
                E(f"buffer_load_dwordx4 v[{44+4*t}:{47+4*t}], v34, s[48:51], s64 offen"); E("s_branch k0_w3e")
                L("k0_w3"); E("s_sub_u32 s61, s61, 1408"); E("s_min_u32 s61, s61, 511")
                E("s_and_b32 s63, s61, 31"); E("s_lshl_b32 s63, s63, 14"); E("s_lshr_b32 s62, s61, 5"); E("s_lshl_b32 s62, s62, 6"); E("s_add_u32 s64, s63, s62")
                E(f"buffer_load_dwordx4 v[{44+4*t}:{47+4*t}], v34, s[52:55], s64 offen")
                L("k0_w3e")
        srd(52, 34, WS_T, 5*MB); E("s_lshl_b32 s60, s60, 10"); E("v_lshlrev_b32 v35, 4, v1")
        ntl = 0
        if os.environ.get("TLB", "0") == "1":
            E("v_lshlrev_b32 v33, 16, v1")
            srd(48, 34, 0, 24*MB)
            for i in range(6):
                E(f"s_mov_b32 s12, {4*MB*i}"); E(f"buffer_load_dword v{100+ntl}, v33, s[48:51], s12 offen"); ntl += 1
            for base, size in ((18, 512*3072), (20, 512*1024), (24, 512*2752), (26, 512*2752), (28, 1376*1024), (30, 2*MB)):
                srd(48, base, 0, size); E(f"buffer_load_dword v{100+ntl}, v33, s[48:51], 0 offen"); ntl += 1
        npf = int(os.environ.get("NPF", "0"))
        if npf:
            E("s_getpc_b64 s[60:61]"); L("k0_pc")
            E("v_lshlrev_b32 v34, 4, v0")
            for i in range(npf):
                E(f"global_load_dwordx4 v[{72+4*i}:{75+4*i}], v34, s[60:61]"); E("v_add_u32 v34, 0x1000, v34")
        E(f"s_waitcnt vmcnt({7+npf+ntl})")
    else:
        E("s_waitcnt vmcnt(0)")
    for r in range(2):
        for i in range(4):
            E(f"v_dot2_f32_bf16 v{24+2*r}, v{16+4*r+i}, s8, v{24+2*r}"); E(f"v_dot2_f32_bf16 v{25+2*r}, v{16+4*r+i}, v{16+4*r+i}, v{25+2*r}")
    E("s_nop 3")
    for off in (0x041F, 0x081F, 0x101F, 0x201F, 0x401F):
        for q in range(4): E(f"ds_swizzle_b32 v{28+q}, v{24+q} offset:{off:#x}")
        E("s_waitcnt lgkmcnt(0)")
        for q in range(4): E(f"v_add_f32 v{24+q}, v{24+q}, v{28+q}")
    for q in range(4): E(f"v_mov_b32 v{28+q}, v{24+q}")
    E("s_nop 1")
    for q in range(4): E(f"v_permlane32_swap_b32 v{24+q}, v{28+q}")
    E("s_nop 1")
    for q in range(4): E(f"v_add_f32 v{24+q}, v{24+q}, v{28+q}")
    for r in range(2):
        a, b = 24+2*r, 25+2*r
        E(f"v_mul_f32 v{a}, {f2u(1/512):#x}, v{a}"); E(f"v_mul_f32 v{b}, {f2u(1/512):#x}, v{b}")
        E(f"v_fma_f32 v{b}, -v{a}, v{a}, v{b}"); E(f"v_max_f32 v{b}, 0, v{b}"); E(f"v_add_f32 v{b}, {f2u(1e-5):#x}, v{b}")
        E(f"v_rsq_f32 v{b}, v{b}"); E("s_nop 0"); E(f"v_mul_f32 v{a}, v{a}, v{b}"); E(f"v_sub_f32 v{a}, 0, v{a}")
        for i in range(4):
            x = 16+4*r+i
            E(f"v_lshlrev_b32 v30, 16, v{x}"); E(f"v_and_b32 v31, 0xffff0000, v{x}")
            E(f"v_fma_f32 v30, v30, v{b}, v{a}"); E(f"v_fma_f32 v31, v31, v{b}, v{a}"); E(f"v_cvt_pk_bf16_f32 v{x}, v30, v31")
        if r == 0:
            E("s_waitcnt vmcnt(0)")
            for t in range(5):
                E(f"s_add_u32 s61, s60, {MB*t}"); E(f"buffer_store_dwordx4 v[{44+4*t}:{47+4*t}], v35, s[52:55], s61 offen")
        E(f"buffer_store_dwordx4 v[{16+4*r}:{19+4*r}], v6, s[44:47], s11 offen offset:{16*r}")
    epilogue_end(n)

SC = " sc1"
def lanes():
    E("v_and_b32 v1, 63, v0"); E("v_and_b32 v3, 31, v0"); E("v_bfe_u32 v4, v0, 5, 1")
WS_CNT = 20*MB
def signal(n, idx):
    E("s_waitcnt vmcnt(0)"); E("s_barrier")
    E("s_cmp_lg_u32 s3, 0"); E(f"s_cbranch_scc1 {n}_sig{idx}")
    E("s_lshl_b32 s4, s9, 1"); E(f"s_add_u32 s4, s4, {idx*4096}")
    E("v_mov_b32 v5, 1"); E("v_mov_b32 v6, s4"); E("s_mov_b64 exec, 1")
    E("buffer_atomic_add v5, v6, s[56:59], 0 offen"); E("s_mov_b64 exec, -1")
    L(f"{n}_sig{idx}")
def wait(n, idx, back=0):
    E("s_cmp_lg_u32 s3, 0"); E(f"s_cbranch_scc1 {n}_wx{idx}")
    E("s_lshl_b32 s4, s9, 1"); E("v_lshlrev_b32 v6, 8, v1"); E("v_sub_u32 v6, s4, v6"); E("v_max_i32 v6, 0, v6"); E(f"v_add_u32 v6, {idx*4096}, v6")
    E("s_mov_b32 s6, 0"); E(f"s_mov_b64 exec, {(1 << (back+1)) - 1}")
    L(f"{n}_w{idx}")
    E("buffer_load_dword v5, v6, s[56:59], 0 offen sc1"); E("s_waitcnt vmcnt(0)")
    E("v_cmp_gt_u32 vcc, 16, v5"); E("s_add_u32 s6, s6, 1"); E("s_nop 0"); E(f"s_cbranch_vccz {n}_wd{idx}")
    E("s_sleep 3"); E("s_cmp_lt_u32 s6, 0x4000"); E(f"s_cbranch_scc1 {n}_w{idx}")
    L(f"{n}_wd{idx}"); E("s_mov_b64 exec, -1")
    L(f"{n}_wx{idx}")
    E("s_waitcnt vmcnt(0)"); E("s_barrier")
def load_xt2(srdreg, nsteps_total, nsteps, base=VX, sc=SC):
    E("s_lshr_b32 s4, s10, 5"); E(f"s_mul_i32 s4, s4, {nsteps_total*1024}")
    E("v_lshlrev_b32 v8, 4, v1"); E("v_add_u32 v8, s4, v8")
    for s in range(nsteps):
        if s % 4 == 0: E(f"s_mov_b32 s4, {1024*s}")
        E(f"buffer_load_dwordx4 v[{base+4*s}:{base+4*s+3}], v8, s[{srdreg}:{srdreg+3}], s4 offen offset:{1024*(s%4)}{sc}")
def issue(groups):
    for g in groups:
        for x in g: E(x)

def mega():
    global VW
    n = "km_block_kernel"; kernels.append((n, 256, 163840)); prologue(n, 256)
    stamp(n); wgmap(2)
    E("s_mov_b32 s61, s11")
    E("s_lshl_b32 s10, s3, 5"); E("s_add_u32 s10, s10, s9")
    srd(56, 34, WS_CNT, 16384)
    E("s_mul_i32 s11, s61, 3")
    srd(40, 34, WS_XN, 2*MB); srd(44, 18, 0, 512*3072); srd(48, 34, 0, 6*MB)
    srd(64, 34, WS_T, 5*MB); E("s_mul_i32 s68, s61, 196608"); E("s_mul_i32 s69, s61, 90112"); E(f"s_add_u32 s69, s69, {3072*1024}"); E("s_lshl_b32 s70, s61, 15"); E(f"s_add_u32 s70, s70, {4480*1024}")
    E("s_lshl_b32 s62, s61, 6")
    E("s_mul_i32 s63, s61, 86"); E("s_and_b32 s63, s63, 0xfffffff0"); E("s_lshl_b32 s63, s63, 1")
    E("v_lshlrev_b32 v2, 4, v0")
    slotof = {0: 3, 1: 4, 2: 1, 3: 2, 4: 0, 5: 3}
    def tl(sc, add, lds, nj): return [[x.replace(" v7,", " v2,") for x in g] for g in dma_list(64, sc, add, lds, nj, 64)]
    def regl(r): return tl(68, r*32768, slotof[r]*32768, 8)
    p1pf = regl(0) + regl(1)
    dma_setup_w(3072)
    E("s_lshl_b32 s60, s11, 6")
    allw = dma_list_w(44, 60, 0, 0, 512, 3072)
    E("s_lshr_b32 s4, s10, 5"); E(f"s_mul_i32 s4, s4, {32*1024}"); E("v_lshlrev_b32 v8, 4, v1"); E("v_add_u32 v8, s4, v8")
    def chunk(c):
        r = list(allw[6*c:6*c+6])
        for s_ in range(8*c, 8*c+8):
            r.append([f"s_mov_b32 s4, {1024*(s_ & ~3)}", f"buffer_load_dwordx4 v[{VX+4*s_}:{VX+4*s_+3}], v8, s[40:43], s4 offen offset:{1024*(s_%4)}"])
        return r
    issue(chunk(0) + chunk(1))
    E("v_add_u32 v9, s10, v3")
    w_addr(False, 10, 192); E("v_add_u32 v13, 0xc000, v10")
    E("v_lshlrev_b32 v11, 5, v9"); E("v_lshlrev_b32 v5, 4, v4"); E("v_add_u32 v11, v11, v5")
    E("v_bfe_u32 v12, v0, 4, 1"); E("v_lshlrev_b32 v12, 16, v12"); E("v_lshlrev_b32 v5, 8, v4"); E("v_add_u32 v12, v12, v5")
    E("v_and_b32 v5, 15, v0"); E("v_lshlrev_b32 v5, 4, v5"); E("v_add_u32 v12, v12, v5")
    E("s_lshl_b32 s13, s10, 5"); E("v_add_u32 v12, s13, v12")
    ACCJ = (176, 192, 208); PT = 224
    stamp(n, "p1")
    E("s_cmp_eq_u32 s61, 10"); E(f"s_cbranch_scc1 {n}_p1b"); E("s_cmp_gt_u32 s61, 10"); E(f"s_cbranch_scc1 {n}_p1c")
    for vn, sws in (("a", (False, False, False)), ("b", (False, False, True)), ("c", (True, True, True))):
        L(f"{n}_p1{vn}")
        for c in range(4):
            E(f"s_waitcnt vmcnt({14 if c < 3 else 0})"); E("s_barrier")
            if vn == "a": stamp(n, "p1")
            items = []
            for s in range(8*c, 8*c+8):
                for j in range(3):
                    items.append(((10, 3072*s + 64*j) if s < 16 else (13, 3072*(s-16) + 64*j)) + (VX+4*s, ACCJ[j]))
            nxt = chunk(c + 2) if c < 2 else []
            for i in mfma_items(items, False, lambda i: sws[i % 3], lambda i: c == 0 and i < 3, 192):
                if nxt and i % 3 != 2: issue([nxt.pop(0)])
            assert not nxt
        E("s_nop 15")
        if vn == "a": stamp(n, "p1")
        for j, sw in enumerate(sws):
            E(f"s_add_u32 s12, s11, {j}"); pack(ACCJ[j], PT + 8*j); T_ = PT + 8*j
            if not sw:
                E("s_lshr_b32 s14, s12, 4"); E("s_lshl_b32 s14, s14, 21"); E("s_and_b32 s15, s12, 15"); E("s_lshl_b32 s15, s15, 17")
                E("s_add_u32 s14, s14, s15"); E("s_add_u32 s15, s14, 65536")
                E(f"buffer_store_dwordx4 v[{T_}:{T_+3}], v11, s[48:51], s14 offen{SC}")
                E(f"buffer_store_dwordx4 v[{T_+4}:{T_+7}], v11, s[48:51], s15 offen{SC}")
            else:
                E("s_sub_u32 s14, s12, 32"); E("s_lshl_b32 s14, s14, 17"); E(f"s_add_u32 s14, s14, {WS_V}")
                E(f"buffer_store_dwordx4 v[{T_}:{T_+3}], v12, s[48:51], s14 offen{SC}")
                E(f"buffer_store_dwordx4 v[{T_+4}:{T_+7}], v12, s[48:51], s14 offen offset:512{SC}")
        if vn != "c": E(f"s_branch {n}_p1e")
    L(f"{n}_p1e")
    stamp(n, "p1")
    stamp(n); signal(n, 0); stamp(n)
    issue(tl(70, 0, 0, 8))
    E("v_mov_b32 v5, 0x3f803f80")
    for r in range(144): E(f"v_accvgpr_write_b32 a{80+r}, v5")
    wait(n, 0, 2); stamp(n); stamp(n, "p2")
    S, O, PK = 96, 240, 16
    srd(40, 34, WS_Q, 2*MB); srd(44, 34, WS_K - 8192, 2*MB + 8192); srd(48, 34, WS_V - 8192, 2*MB + 8192); srd(52, 34, WS_O, 2*MB)
    E("v_lshlrev_b32 v5, 2, v4"); E("v_sub_u32 v11, v3, v5")
    E("s_sub_i32 s15, 256, s10"); E("s_max_i32 s15, s15, 0")
    E("v_lshlrev_b32 v6, 4, v4")
    E("s_lshl_b32 s11, s61, 1")
    E("s_lshl_b32 s12, s11, 11"); E("s_add_u32 s12, s12, s10")
    E("v_add_u32 v5, s12, v3"); E("v_lshlrev_b32 v5, 5, v5"); E("v_add_u32 v8, v5, v6"); E("v_add_u32 v13, 0x10000, v8")
    E("s_lshl_b32 s14, s15, 5")
    E("v_and_b32 v5, 15, v0"); E("v_lshlrev_b32 v5, 4, v5"); E("v_lshlrev_b32 v9, 8, v4"); E("v_add_u32 v5, v5, v9")
    E("s_lshl_b32 s13, s11, 16"); E("s_lshl_b32 s12, s10, 5"); E("s_add_u32 s13, s13, s12"); E("v_add_u32 v9, s13, v5"); E("v_add_u32 v14, 0x10000, v9")
    E("s_mov_b32 s66x, 0") if False else None
    E("s_mov_b32 s72, 0x0000ffff"); E("s_mov_b32 s73, 0x0000ffff")
    def qk(hh):
        va = (8, 13)[hh]
        r = [[f"buffer_load_dwordx4 a[{72+4*hh}:{75+4*hh}], v{va}, s[40:43], 0 offen{SC}"]]
        for kb in range(9):
            r.append([f"s_max_u32 s12, s14, {kb*1024}", f"buffer_load_dwordx4 a[{36*hh+4*kb}:{36*hh+4*kb+3}], v{va}, s[44:47], s12 offen{SC}"])
        return r
    def vv(hh):
        return [["s_mov_b64 exec, s[72:73]", f"s_max_u32 s12, s14, {512*t}",
                 f"buffer_load_dwordx4 a[{80+72*hh+4*t}:{80+72*hh+4*t+3}], v{(9,14)[hh]}, s[48:51], s12 offen{SC}", "s_mov_b64 exec, -1"] for t in range(18)]
    issue(qk(0)); issue(vv(0))
    E("s_add_u32 s13, s10, s11"); E("s_lshl_b32 s13, s13, 10"); E("v_lshlrev_b32 v5, 4, v1"); E("v_add_u32 v10, s13, v5")
    stamp(n, "p2")
    for hh in range(2):
        pf = (qk(1) + vv(1)) if hh == 0 else (regl(1) + regl(2) + regl(3))
        npf0 = len(pf)
        E(f"v_mov_b32 v12, {f2u(-1e30):#x}")
        for kb in range(9):
            E(f"s_waitcnt vmcnt({(26-kb) if hh == 0 else (8 + 1 + 18 + 8 - kb)})")
            E(f"v_mfma_f32_32x32x16_bf16 v[{S+16*kb}:{S+16*kb+15}], a[{36*hh+4*kb}:{36*hh+4*kb+3}], a[{72+4*hh}:{75+4*hh}], 0")
        E("s_nop 7"); E("s_nop 3"); stamp(n, "p2")
        for kb in range(8):
            E(f"s_cmp_ge_u32 s10, {256-32*kb}"); E(f"s_cbranch_scc1 {n}_ok{hh}_{kb}")
            for i in range(16): E(f"v_mov_b32 v{S+16*kb+i}, v12")
            L(f"{n}_ok{hh}_{kb}")
        for i in range(16):
            c = 8*(i >> 2) + (i & 3)
            E(f"v_cmp_le_i32 vcc, {c}, v11"); E("s_nop 1")
            E(f"v_cndmask_b32 v{S+128+i}, v12, v{S+128+i}, vcc"); E(f"v_cndmask_b32 v{S+i}, v{S+i}, v12, vcc")
            if i % 3 == 2 and pf: issue([pf.pop(0)])
        for c in range(4): E(f"v_max_f32 v{PK+c}, v{S+c}, v{S+4+c}")
        for r in range(8, 144, 8):
            for c in range(4): E(f"v_max3_f32 v{PK+c}, v{PK+c}, v{S+r+c}, v{S+r+4+c}")
            if r % 24 == 0 and pf: issue([pf.pop(0)])
        E(f"v_max_f32 v{PK}, v{PK}, v{PK+1}"); E(f"v_max_f32 v{PK+2}, v{PK+2}, v{PK+3}"); E(f"v_max_f32 v12, v{PK}, v{PK+2}"); E("v_mov_b32 v15, v12")
        E("s_nop 1"); E("v_permlane32_swap_b32 v12, v15"); E("s_nop 1"); E("v_max_f32 v12, v12, v15")
        E(f"s_mov_b32 s13, {f2u(0.25*LOG2E):#x}"); E("v_mul_f32 v12, s13, v12"); stamp(n, "p2")
        for r in range(0, 144, 4):
            for c in range(4): E(f"v_fma_f32 v{S+r+c}, v{S+r+c}, s13, -v12")
            for c in range(4): E(f"v_exp_f32 v{S+r+c}, v{S+r+c}")
            if r >= 4:
                p = r - 4; d = S + 16*(p//16) + (p % 16)//2
                E(f"v_cvt_pk_bf16_f32 v{d}, v{S+p}, v{S+p+1}"); E(f"v_cvt_pk_bf16_f32 v{d+1}, v{S+p+2}, v{S+p+3}")
            if r % 8 == 0 and pf: issue([pf.pop(0)])
        p = 140; d = S + 16*(p//16) + (p % 16)//2
        E("s_nop 0"); E(f"v_cvt_pk_bf16_f32 v{d}, v{S+p}, v{S+p+1}"); E(f"v_cvt_pk_bf16_f32 v{d+1}, v{S+p+2}, v{S+p+3}")
        npf_left = len(pf)
        stamp(n, "p2")
        assert npf_left == 0
        E(f"s_waitcnt vmcnt({npf0 if hh == 0 else (9+npf0)})"); stamp(n, "p2")
        if hh == 0: pf = regl(0)
        for t in range(18):
            if pf and t % 2 == 1: issue([pf.pop(0)])
            bb = S + 16*(t//2) + 4*(t % 2)
            E(f"v_mfma_f32_32x32x16_bf16 v[{O}:{O+15}], a[{80+72*hh+4*t}:{80+72*hh+4*t+3}], v[{bb}:{bb+3}], {'0' if t == 0 else f'v[{O}:{O+15}]'}")
        E("s_nop 15"); E(f"v_rcp_f32 v12, v{O+8}"); E("s_nop 0")
        for i in range(8): E(f"v_mul_f32 v{O+i}, v{O+i}, v12")
        for i in range(4): E(f"v_cvt_pk_bf16_f32 v{PK+i}, v{O+2*i}, v{O+2*i+1}")
        assert not pf
        E(f"buffer_store_dwordx4 v[{PK}:{PK+3}], v10, s[52:55], 0 offen offset:{1024*hh}{SC}")
        E("s_nop 1")
    stamp(n); signal(n, 1); stamp(n)
    srd(40, 34, WS_O, 2*MB); srd(48, 34, WS_H, 2*MB); srd(52, 16, 0, 2*MB)
    E("v_add_u32 v9, s10, v3")
    w_addr(True, 10)
    E("v_lshlrev_b32 v12, 10, v9"); E("v_lshlrev_b32 v5, 3, v4"); E("v_add_u32 v12, v12, v5"); E("s_lshl_b32 s13, s61, 11")
    for q in range(4): E(f"buffer_load_dwordx2 v[{VT+8+2*q}:{VT+9+2*q}], v12, s[52:55], s62 offen offset:{16*q}")
    wait(n, 1); stamp(n)
    load_xt2(40, 32, 32)
    E("s_waitcnt vmcnt(31)")
    items = [(10, 1024*s, VX+4*s, ACC0) for s in range(32)]
    for i in mfma_items(items, True, lambda i: False, lambda i: i == 0):
        if i + 1 < 32: E(f"s_waitcnt vmcnt({30-i})")
    E("s_nop 15")
    for i in range(8):
        E(f"v_lshlrev_b32 v5, 16, v{VT+8+i}"); E(f"v_and_b32 v6, 0xffff0000, v{VT+8+i}")
        E(f"v_add_f32 v{ACC0+2*i}, v{ACC0+2*i}, v5"); E(f"v_add_f32 v{ACC0+2*i+1}, v{ACC0+2*i+1}, v6")
    pack(ACC0, VT)
    E(f"buffer_store_dwordx4 v[{VT}:{VT+3}], v8, s[48:51], s13 offen{SC}")
    E(f"buffer_store_dwordx4 v[{VT+4}:{VT+7}], v8, s[48:51], s13 offen offset:1024{SC}")
    E("s_mov_b32 s8, 0x3f803f80"); srd(44, 34, WS_ST, 262144)
    for q in range(4): E(f"v_mov_b32 v{240+q}, 0")
    for i in range(8):
        E(f"v_dot2_f32_bf16 v{240+(i&1)}, v{VT+i}, s8, v{240+(i&1)}"); E(f"v_dot2_f32_bf16 v{242+(i&1)}, v{VT+i}, v{VT+i}, v{242+(i&1)}")
    E("s_lshl_b32 s14, s9, 7"); E("s_lshl_b32 s15, s61, 10"); E("s_add_u32 s14, s14, s15"); E("s_lshl_b32 s15, s3, 8"); E("s_add_u32 s14, s14, s15")
    E("v_lshlrev_b32 v13, 3, v3"); E("s_nop 1")
    E("v_add_f32 v244, v240, v241"); E("v_add_f32 v245, v242, v243"); E("v_mov_b32 v246, v244"); E("v_mov_b32 v247, v245"); E("s_nop 1")
    E("v_permlane32_swap_b32 v244, v246"); E("v_permlane32_swap_b32 v245, v247"); E("s_nop 1")
    E("v_add_f32 v244, v244, v246"); E("v_add_f32 v245, v245, v247")
    E(f"buffer_store_dwordx2 v[244:245], v13, s[44:47], s14 offen{SC}")
    stamp(n); signal(n, 2); stamp(n)
    issue(regl(4))
    wait(n, 2); stamp(n); stamp(n, "p4")
    srd(40, 34, WS_H, 2*MB); srd(52, 34, WS_HH, 2048*2752)
    E("s_lshl_b32 s14, s9, 7"); E("s_lshl_b32 s15, s3, 8"); E("s_add_u32 s14, s14, s15")
    E("v_lshlrev_b32 v13, 3, v3"); E("v_lshlrev_b32 v5, 13, v4"); E("v_add_u32 v13, v13, v5")
    for k in range(8):
        if k % 4 == 0: E(f"s_add_u32 s15, s14, {1024*k}")
        E(f"buffer_load_dwordx2 v[{240+2*k}:{241+2*k}], v13, s[44:47], s15 offen offset:{1024*(k%4)}{SC}")
    E("s_lshr_b32 s4, s10, 5"); E(f"s_mul_i32 s4, s4, {32*1024}"); E("v_lshlrev_b32 v8, 4, v1"); E("v_add_u32 v8, s4, v8")
    def xld(s_): return [f"s_mov_b32 s4, {1024*s_}", f"buffer_load_dwordx4 v[{VX+4*s_}:{VX+4*s_+3}], v8, s[40:43], s4 offen{SC}"]
    for s_ in range(16): issue([xld(s_)])
    E("s_lshr_b32 s4, s10, 5"); E(f"s_mul_i32 s4, s4, {86*1024}"); E("v_lshlrev_b32 v11, 4, v1"); E("v_add_u32 v11, s4, v11")
    stamp(n, "p4")
    E("s_waitcnt vmcnt(16)")
    for w in (4, 2, 1):
        for k in range(w):
            E(f"v_add_f32 v{240+2*k}, v{240+2*k}, v{240+2*(k+w)}"); E(f"v_add_f32 v{241+2*k}, v{241+2*k}, v{241+2*(k+w)}")
    E("v_mov_b32 v242, v240"); E("v_mov_b32 v243, v241"); E("s_nop 1")
    E("v_permlane32_swap_b32 v240, v242"); E("v_permlane32_swap_b32 v241, v243"); E("s_nop 1")
    E("v_add_f32 v240, v240, v242"); E("v_add_f32 v241, v241, v243")
    E(f"v_mul_f32 v240, {f2u(1/512):#x}, v240"); E(f"v_mul_f32 v241, {f2u(1/512):#x}, v241")
    E("v_fma_f32 v241, -v240, v240, v241"); E("v_max_f32 v241, 0, v241"); E(f"v_add_f32 v241, {f2u(1e-5):#x}, v241")
    E("v_rsq_f32 v12, v241"); E("s_nop 0"); E("v_mul_f32 v240, v240, v12"); E("v_sub_f32 v15, 0, v240")
    E(f"s_mov_b32 s13, {f2u(-LOG2E):#x}")
    stamp(n, "p4")
    E("s_waitcnt vmcnt(14)")
    stamp(n, "p4")
    def norm(s):
        r = []
        for q in range(4):
            x = VX + 4*s + q; a_, b_ = 240 + 2*q, 241 + 2*q
            r += [f"v_lshlrev_b32 v{a_}, 16, v{x}", f"v_and_b32 v{b_}, 0xffff0000, v{x}"]
        for q in range(4):
            a_, b_ = 240 + 2*q, 241 + 2*q
            r += [f"v_fma_f32 v{a_}, v{a_}, v12, v15", f"v_fma_f32 v{b_}, v{b_}, v12, v15"]
        for q in range(4):
            r += [f"v_cvt_pk_bf16_f32 v{VX+4*s+q}, v{240+2*q}, v{241+2*q}"]
        return r
    def epi(j, G, U):
        r = []
        for i in range(16): r.append(f"v_mul_f32 v{G+i}, s13, v{G+i}")
        for i in range(16): r.append(f"v_exp_f32 v{G+i}, v{G+i}")
        for i in range(16): r.append(f"v_add_f32 v{G+i}, 1.0, v{G+i}")
        for i in range(16): r.append(f"v_rcp_f32 v{G+i}, v{G+i}")
        for i in range(16): r.append(f"v_mul_f32 v{G+i}, v{G+i}, v{U+i}")
        for i in range(8): r.append(f"v_cvt_pk_bf16_f32 v{248+i}, v{G+2*i}, v{G+2*i+1}")
        r += [f"s_add_u32 s12, s63, {64*j}", "s_lshl_b32 s12, s12, 5",
              f"buffer_store_dwordx4 v[248:251], v11, s[52:55], s12 offen{SC}",
              f"buffer_store_dwordx4 v[252:255], v11, s[52:55], s12 offen offset:1024{SC}"]
        return r
    for x in norm(0) + norm(1): E(x)
    fill = []
    w5 = tl(69, 0, 32768, 16) + tl(69, 65536, 131072, 6)
    for j in range(3):
        G, U = (176, 192) if j % 2 == 0 else (208, 224)
        sg, su = slotof[2*j]*32768, slotof[2*j+1]*32768
        E(f"v_add_u32 v13, {sg}, v10"); E(f"v_add_u32 v14, {su}, v10")
        items = []
        for s in range(32): items += [(13, 1024*s, VX+4*s, G), (14, 1024*s, VX+4*s, U)]
        for i in mfma_items(items, True, lambda i: False, lambda i: i < 2):
            if j == 0 and i//2 + 2 < 32:
                s_ = i//2
                if i % 2 == 0:
                    if s_ + 16 < 32: issue([xld(s_ + 16)])
                    E(f"s_waitcnt vmcnt({min(s_ + 16, 31) - (s_ + 2)})")
                for x in norm(s_ + 2)[10*(i % 2):10*(i % 2)+10]: E(x)
            if j > 0 and i >= 4:
                for _ in range(2):
                    if fill: E(fill.pop(0))
            if j == 2 and i >= 2 and i % 2 == 0 and w5: issue([w5.pop(0)])
        assert not fill
        stamp(n, "p4")
        if j == 0: E("s_barrier"); issue(regl(5))
        if j == 1: E("s_waitcnt vmcnt(2)"); E("s_barrier")
        fill = epi(j, G, U)
    E("s_nop 15")
    for x in fill: E(x)
    stamp(n); stamp(n, "p4"); signal(n, 3); stamp(n); stamp(n, "p4")
    NX = 44; X = 56; oldVW = VW; VW = 16; A = 232; T = 48
    assert not w5
    wait(n, 3); stamp(n)
    srd(40, 34, WS_HH, 2048*2752); srd(48, 34, WS_H, 2*MB); srd(52, 30, 0, 2*MB)
    load_xt2(40, 86, NX, X)
    E("v_add_u32 v13, 0x8000, v10"); E("v_add_u32 v14, 0x20000, v10"); E("v_add_u32 v9, s10, v3")
    E("v_lshlrev_b32 v12, 10, v9"); E("v_lshlrev_b32 v5, 3, v4"); E("v_add_u32 v12, v12, v5")
    E("s_lshl_b32 s13, s10, 10"); E("s_lshl_b32 s14, s61, 11"); E("s_add_u32 s13, s13, s14"); E("v_lshlrev_b32 v11, 4, v1")
    E(f"buffer_load_dwordx4 v[248:251], v11, s[48:51], s13 offen{SC}"); E(f"buffer_load_dwordx4 v[252:255], v11, s[48:51], s13 offen offset:1024{SC}")
    E("s_waitcnt vmcnt(45)")
    items = [((13, 1024*s) if s < 64 else (14, 1024*(s-64))) + (X+4*(s % NX), A) for s in range(86)]
    for i in mfma_items(items, True, lambda i: False, lambda i: i == 0):
        if i + NX < 86:
            s = i + NX; E(f"s_mov_b32 s4, {1024*s}"); E(f"buffer_load_dwordx4 v[{X+4*i}:{X+4*i+3}], v8, s[40:43], s4 offen{SC}")
        if i + 1 < 86: E(f"s_waitcnt vmcnt({(45 if i + 1 <= 42 else 44) if i + 1 < NX else 85-(i+1)})")
    VW = oldVW
    E("s_nop 15")
    for i in range(8):
        E(f"v_lshlrev_b32 v5, 16, v{248+i}"); E(f"v_and_b32 v6, 0xffff0000, v{248+i}")
        E(f"v_add_f32 v{A+2*i}, v{A+2*i}, v5"); E(f"v_add_f32 v{A+2*i+1}, v{A+2*i+1}, v6")
    pack(A, T)
    for q in range(4): E(f"buffer_store_dwordx2 v[{T+2*q}:{T+2*q+1}], v12, s[52:55], s62 offen offset:{16*q}")
    epilogue_end(n)

k0(); mega()
hdr = open("cdna_kernels/" + NAME + ".s.ref").read().split("\n")
head = [l for l in hdr if l.startswith(";") and "@launch" not in l and "Override" not in l and "grid=ceil" not in l]
import os
dup = int(os.environ.get("DUP", "-1"))
ll = []
for idx, (k, g, l) in enumerate(kernels):
    ll += [f"; @launch kernel={k} grid=({g},1,1) block=(256,1,1) lds={l}"] * (5 if idx == dup else 1)
if dup == 99: ll = ll + ll
if STAMPK:
    ll = ll + [x for x in ll if STAMPK in x]
txt = head + ll
txt += ['.amdgcn_target "amdgcn-amd-amdhsa--gfx950"', ".text"] + out + ['.section .rodata,"a"']
for k, g, l in kernels:
    txt += [".p2align 6", f".amdhsa_kernel {k}", f"  .amdhsa_next_free_vgpr {512 if k.startswith('km') else 256}", "  .amdhsa_next_free_sgpr 102", "  .amdhsa_accum_offset 256",
            "  .amdhsa_group_segment_fixed_size 0", "  .amdhsa_kernarg_size 80", "  .amdhsa_user_sgpr_count 2",
            "  .amdhsa_user_sgpr_kernarg_segment_ptr 1", "  .amdhsa_system_sgpr_workgroup_id_x 1", ".end_amdhsa_kernel"]
open(os.environ.get("OUT", "cdna_kernels/" + NAME + ".s"), "w").write("\n".join(txt) + "\n")
```

```python
import sys, os
NAME = "sequential_preLN__sliding_block__glu_gated_glu__prompt"
out = []
def E(s): out.append("    " + s)
def L(s): out.append(s + ":")
MB = 1 << 20
WS_Q, WS_K, WS_V, WS_O, WS_H, WS_HH = 0, 2*MB, 4*MB, 6*MB, 8*MB, 10*MB
WS_XN = 16*MB
LOG2E = 1.4426950408889634
import struct
def f2u(f): return struct.unpack("<I", struct.pack("<f", f))[0]

def prologue(name, nwg):
    out.append(".p2align 8"); out.append(f".globl {name}"); out.append(f".type {name},@function"); L(name)
    E(f"s_cmp_ge_u32 s2, {nwg}"); E(f"s_cbranch_scc1 {name}_done")
    E("s_load_dwordx16 s[16:31], s[0:1], 0"); E("s_load_dwordx4 s[32:35], s[0:1], 64")
    E("v_and_b32 v1, 63, v0")
    E("v_lshrrev_b32 v2, 6, v0")
    E("v_and_b32 v3, 31, v0")
    E("v_readfirstlane_b32 s3, v2")
    E("v_bfe_u32 v4, v0, 5, 1")
    E("s_waitcnt lgkmcnt(0)")
STAMPK = os.environ.get("STAMP", "")
nst = [0]
def stamp(name, tag=""):
    if name != STAMPK: return
    if tag != os.environ.get("STAG", "") and nst[0] > 0 and tag != "end": return
    E("s_memrealtime s[74:75]" if (os.environ.get("ABS") or os.environ.get("RT")) else "s_memtime s[74:75]"); E("s_waitcnt lgkmcnt(0)"); E(f"s_mov_b32 s{76+nst[0]}, s74"); nst[0] += 1
def epilogue_end(name):
    if name == STAMPK:
        stamp(name, "end")
        srd(40, 32, 0, 256)
        if os.environ.get("ABS"):
            k = int(os.environ["ABS"])
            E("s_and_b32 s4, s2, 7"); E("s_cmp_lg_u32 s4, 0"); E(f"s_cbranch_scc1 {name}_done"); E("s_cmp_lg_u32 s3, 0"); E(f"s_cbranch_scc1 {name}_done")
            E("s_cmp_ge_u32 s2, 256"); E(f"s_cbranch_scc1 {name}_done")
            E("s_lshr_b32 s4, s2, 4"); E("s_lshl_b32 s4, s4, 2"); E("s_and_b32 s5, s2, 8"); E("s_cmp_lg_u32 s5, 0"); E(f"s_cbranch_scc1 {name}_done")
            E("v_mov_b32 v6, s4"); E(f"v_mov_b32 v5, s{76+k}"); E("buffer_store_dword v5, v6, s[40:43], 0 offen"); E(f"s_branch {name}_done")
        E("s_cmp_lg_u32 s2, 8"); E(f"s_cbranch_scc1 {name}_done"); E("s_cmp_lg_u32 s3, 0"); E(f"s_cbranch_scc1 {name}_done")
        srd(40, 32, 0, 256)
        for i in range(nst[0]):
            E(f"s_sub_u32 s4, s{76+i}, s76"); E("v_mov_b32 v5, s4"); E(f"v_mov_b32 v6, {4*i}"); E("buffer_store_dword v5, v6, s[40:43], 0 offen")
    L(f"{name}_done"); E("s_endpgm")
def srd(d, base, off, size):
    if off >= 0:
        E(f"s_add_u32 s{d}, s{base}, {off}"); E(f"s_addc_u32 s{d+1}, s{base+1}, 0")
    else:
        E(f"s_sub_u32 s{d}, s{base}, {-off}"); E(f"s_subb_u32 s{d+1}, s{base+1}, 0")
    E(f"s_mov_b32 s{d+2}, {size}"); E(f"s_mov_b32 s{d+3}, 0x00020000")

VX, VW, ACC0, ACC1, VT = 16, 144, 176, 192, 208

def w_addr(perm, vdst, RB=64):
    E("v_bfe_u32 v5, v0, 2, 2")
    E(f"v_lshlrev_b32 v6, {2 if perm else 3}, v4")
    E("v_add_u32 v5, v5, v6")
    E(f"v_mul_u32_u24 v5, {RB}, v5")
    E("v_bfe_u32 v6, v0, 4, 1")
    E("v_lshlrev_b32 v6, 5, v6")
    E("v_add_u32 v5, v5, v6")
    E("v_and_b32 v6, 3, v0")
    E("v_lshlrev_b32 v6, 3, v6")
    E(f"v_add_u32 v{vdst}, v5, v6")

def dma_setup(ldw):
    E("v_lshrrev_b32 v5, 2, v0"); E(f"s_mov_b32 s4, {ldw}"); E("v_mul_lo_u32 v5, v5, s4")
    E("v_and_b32 v6, 3, v0"); E("v_lshlrev_b32 v6, 4, v6"); E("v_add_u32 v7, v5, v6")
    E("s_lshl_b32 s5, s3, 10")
def dma_region(srdreg, scol, ldsbase, nj, ldw):
    E(f"s_mov_b32 s6, s{scol}"); E(f"s_add_u32 s7, s5, {ldsbase}")
    for j in range(nj):
        E("s_mov_b32 m0, s7");
        if j + 1 < nj: E("s_add_u32 s7, s7, 4096")
        else: E("s_nop 0")
        E(f"buffer_load_dwordx4 v7, s[{srdreg}:{srdreg+3}], s6 offen lds")
        if j + 1 < nj: E(f"s_add_u32 s6, s6, {64*ldw}")

def dma_list(srdreg, scolreg, coladd, ldsbase, nj, ldw):
    r = []
    for j in range(nj):
        r.append([f"s_add_u32 s6, s{scolreg}, {coladd + j*64*ldw}", f"s_add_u32 m0, s5, {ldsbase + j*4096}", "s_nop 0",
                  f"buffer_load_dwordx4 v7, s[{srdreg}:{srdreg+3}], s6 offen lds"])
    return r
def dma_setup_w(ldw):
    E("s_lshl_b32 s5, s3, 10"); E("s_mov_b32 s4, 0xAAAB"); E(f"s_mov_b32 s6, {ldw}")
    for t, vr in enumerate((7, 14, 15)):
        E(f"v_add_u32 v5, {256*t}, v0"); E("v_mul_lo_u32 v6, v5, s4"); E("v_lshrrev_b32 v6, 19, v6")
        E("v_mul_u32_u24 v9, 12, v6"); E("v_sub_u32 v5, v5, v9"); E("v_lshlrev_b32 v5, 4, v5")
        E("v_mul_lo_u32 v6, v6, s6"); E(f"v_add_u32 v{vr}, v5, v6")
def dma_list_w(srdreg, scolreg, ldsbase, row0, nrows, ldw):
    r = []
    for j in range(nrows*12//256):
        r.append([f"s_add_u32 s6, s{scolreg}, {(row0 + (j//3)*64)*ldw}", f"s_add_u32 m0, s5, {ldsbase + j*4096}", "s_nop 0",
                  f"buffer_load_dwordx4 v{(7,14,15)[j%3]}, s[{srdreg}:{srdreg+3}], s6 offen lds"])
    return r
def mfma_items(items, perm, swap_of, first_of, RB=64):
    d2 = 8*RB if perm else 4*RB
    n = len(items); D = 6
    def rd(i):
        va, off, _, _ = items[i]; w = VW + 4 * (i % 8)
        E(f"ds_read_b64_tr_b16 v[{w}:{w+1}], v{va} offset:{off}")
        E(f"ds_read_b64_tr_b16 v[{w+2}:{w+3}], v{va} offset:{off+d2}")
    for i in range(min(D, n)): rd(i)
    for i in range(n):
        va, off, x, acc = items[i][:4]; w = VW + 4 * (i % 8)
        E(f"s_waitcnt lgkmcnt({2*(min(i+D-1, n-1)-i)})")
        c = "0" if first_of(i) else f"v[{acc}:{acc+15}]"
        if swap_of(i): E(f"v_mfma_f32_32x32x16_bf16 v[{acc}:{acc+15}], v[{x}:{x+3}], v[{w}:{w+3}], {c}")
        else:          E(f"v_mfma_f32_32x32x16_bf16 v[{acc}:{acc+15}], v[{w}:{w+3}], v[{x}:{x+3}], {c}")
        if i + D < n: rd(i + D)
        yield i

def ln_regs(ndma, inter=[], jit=False):
    E("s_mov_b32 s8, 0x3f803f80")
    for q in range(4): E(f"v_mov_b32 v{VT+q}, 0"); E(f"v_mov_b32 v{VT+4+q}, 0")
    inter = list(inter); nd = 0
    for g in range(4):
        E(f"s_waitcnt vmcnt({min(63, 24-8*g+nd)})")
        for r in range(32*g, 32*g+32):
            if inter and r % 8 == 4:
                for x in inter.pop(0): E(x)
                nd += 1
            E(f"v_dot2_f32_bf16 v{VT+(r&3)}, v{VX+r}, s8, v{VT+(r&3)}")
            E(f"v_dot2_f32_bf16 v{VT+4+(r&3)}, v{VX+r}, v{VX+r}, v{VT+4+(r&3)}")
    E("s_nop 3")
    E(f"v_add_f32 v{VT}, v{VT}, v{VT+1}"); E(f"v_add_f32 v{VT+2}, v{VT+2}, v{VT+3}")
    E(f"v_add_f32 v{VT+4}, v{VT+4}, v{VT+5}"); E(f"v_add_f32 v{VT+6}, v{VT+6}, v{VT+7}")
    E(f"v_add_f32 v{VT}, v{VT}, v{VT+2}"); E(f"v_add_f32 v{VT+4}, v{VT+4}, v{VT+6}")
    E(f"v_mov_b32 v{VT+1}, v{VT}"); E(f"v_mov_b32 v{VT+5}, v{VT+4}")
    E("s_nop 1")
    E(f"v_permlane32_swap_b32 v{VT}, v{VT+1}"); E(f"v_permlane32_swap_b32 v{VT+4}, v{VT+5}")
    E("s_nop 1")
    E(f"v_add_f32 v{VT}, v{VT}, v{VT+1}"); E(f"v_add_f32 v{VT+4}, v{VT+4}, v{VT+5}")
    E(f"v_mul_f32 v{VT}, {f2u(1/512):#x}, v{VT}")
    E(f"v_mul_f32 v{VT+4}, {f2u(1/512):#x}, v{VT+4}")
    E(f"v_fma_f32 v{VT+4}, -v{VT}, v{VT}, v{VT+4}")
    E(f"v_max_f32 v{VT+4}, 0, v{VT+4}")
    E(f"v_add_f32 v{VT+4}, {f2u(1e-5):#x}, v{VT+4}")
    E(f"v_rsq_f32 v{VT+4}, v{VT+4}")
    E("s_nop 0")
    E(f"v_mul_f32 v{VT}, v{VT}, v{VT+4}")
    E(f"v_sub_f32 v{VT}, 0, v{VT}")
    if jit:
        E(f"v_mov_b32 v12, v{VT+4}"); E(f"v_mov_b32 v15, v{VT}"); return
    for r in range(128):
        if inter and r % 5 == 0:
            for x in inter.pop(0): E(x)
        a, b = VT + 8 + 2 * (r & 3), VT + 9 + 2 * (r & 3)
        E(f"v_lshlrev_b32 v{a}, 16, v{VX+r}"); E(f"v_and_b32 v{b}, 0xffff0000, v{VX+r}")
        E(f"v_fma_f32 v{a}, v{a}, v{VT+4}, v{VT}"); E(f"v_fma_f32 v{b}, v{b}, v{VT+4}, v{VT}")
        E(f"v_cvt_pk_bf16_f32 v{VX+r}, v{a}, v{b}")

def load_x(srdreg, ld, nsteps, base=VX):
    E("s_lshl_b32 s10, s3, 5"); E("s_add_u32 s10, s10, s9")
    E("v_add_u32 v9, s10, v3"); E(f"s_mov_b32 s4, {ld}"); E("v_mul_lo_u32 v8, v9, s4")
    E("v_lshlrev_b32 v5, 4, v4"); E("v_add_u32 v8, v8, v5")
    for s in range(nsteps):
        E(f"buffer_load_dwordx4 v[{base+4*s}:{base+4*s+3}], v8, s[{srdreg}:{srdreg+3}], 0 offen offset:{32*s}")
def wgmap(a=2):
    if a == 2:
        E("s_and_b32 s9, s2, 7"); E("s_lshl_b32 s9, s9, 1"); E("s_lshr_b32 s11, s2, 7"); E("s_add_u32 s9, s9, s11"); E("s_lshl_b32 s9, s9, 7")
        E("s_lshr_b32 s11, s2, 3"); E("s_and_b32 s11, s11, 15")
    else:
        E("s_bfe_u32 s9, s2, 0x20001"); E("s_lshl_b32 s9, s9, 2"); E("s_lshr_b32 s11, s2, 6"); E("s_add_u32 s9, s9, s11"); E("s_lshl_b32 s9, s9, 7")
        E("s_bfe_u32 s11, s2, 0x30003"); E("s_and_b32 s4, s2, 1"); E("s_lshl_b32 s4, s4, 3"); E("s_add_u32 s11, s11, s4")
def load_xt(srdreg, nsteps_total, nsteps, base=VX):
    E("s_lshl_b32 s10, s3, 5"); E("s_add_u32 s10, s10, s9"); E("v_add_u32 v9, s10, v3")
    E("s_lshr_b32 s4, s10, 5"); E(f"s_mul_i32 s4, s4, {nsteps_total*1024}")
    E("v_lshlrev_b32 v8, 4, v1"); E("v_add_u32 v8, s4, v8")
    for s in range(nsteps):
        if s % 4 == 0: E(f"s_mov_b32 s4, {1024*s}")
        E(f"buffer_load_dwordx4 v[{base+4*s}:{base+4*s+3}], v8, s[{srdreg}:{srdreg+3}], s4 offen offset:{1024*(s%4)}")
def pack(acc, dst):
    for i in range(8): E(f"v_cvt_pk_bf16_f32 v{dst+i}, v{acc+2*i}, v{acc+2*i+1}")

kernels = []
WS_T = 24*MB
WS_ST = 30*MB
def k0():
    n = "k0_ln_kernel"; kernels.append((n, 256, 0)); prologue(n, 256); stamp(n)
    E("s_and_b32 s9, s2, 7"); E("s_lshl_b32 s9, s9, 8"); E("s_lshr_b32 s10, s2, 3"); E("s_lshl_b32 s10, s10, 3"); E("s_add_u32 s9, s9, s10")
    E("s_lshl_b32 s10, s3, 1"); E("s_add_u32 s9, s9, s10")
    srd(40, 16, 0, 2*MB); srd(44, 34, WS_XN, 2*MB)
    E("s_cmp_lg_u32 s2, 0"); E("s_cbranch_scc1 k0_nz")
    srd(52, 34, 20*MB, 16384)
    for i in range(4): E(f"v_mov_b32 v{40+i}, 0")
    E("v_lshlrev_b32 v5, 6, v0")
    for i in range(4): E(f"buffer_store_dwordx4 v[40:43], v5, s[52:55], 0 offen offset:{16*i}")
    L("k0_nz")
    E("s_lshl_b32 s10, s9, 10"); E("v_lshlrev_b32 v5, 4, v1")
    E("buffer_load_dwordx4 v[16:19], v5, s[40:43], s10 offen"); E("buffer_load_dwordx4 v[20:23], v5, s[40:43], s10 offen offset:1024")
    E("s_lshr_b32 s11, s9, 5"); E("s_lshl_b32 s11, s11, 15"); E("s_and_b32 s12, s9, 31"); E("s_lshl_b32 s12, s12, 4"); E("s_add_u32 s11, s11, s12")
    E("v_lshrrev_b32 v6, 1, v1"); E("v_lshlrev_b32 v6, 10, v6"); E("v_and_b32 v7, 1, v1"); E("v_lshlrev_b32 v7, 9, v7"); E("v_add_u32 v6, v6, v7")
    E("s_mov_b32 s8, 0x3f803f80")
    for q in range(4): E(f"v_mov_b32 v{24+q}, 0")
    if os.environ.get("PF", "1") == "1":
        E("s_lshl_b32 s12, s2, 12"); E("v_lshlrev_b32 v32, 4, v0"); E("v_add_u32 v32, s12, v32"); E("v_add_u32 v33, 0x100000, v32")
        k = 0
        for base, size in ((18, 512*3072),):
            srd(48, base, 0, size)
            E(f"buffer_load_dwordx4 v[{36+4*k}:{39+4*k}], v32, s[48:51], 0 offen"); k += 1
            if size > MB: E(f"buffer_load_dwordx4 v[{36+4*k}:{39+4*k}], v33, s[48:51], 0 offen"); k += 1
        E("s_lshl_b32 s60, s2, 2"); E("s_add_u32 s60, s60, s3")
        E("v_lshrrev_b32 v34, 2, v1"); E("v_and_b32 v35, 3, v1"); E("v_lshlrev_b32 v35, 4, v35")
        E("v_mul_u32_u24 v33, 2752, v34"); E("v_add_u32 v33, v33, v35"); E("v_lshlrev_b32 v34, 10, v34"); E("v_add_u32 v34, v34, v35")
        E(f"s_mov_b32 s50, {512*2752}"); E("s_mov_b32 s51, 0x00020000")
        for t in range(3):
            E(f"s_add_u32 s61, s60, {1024*t}"); E("s_lshr_b32 s62, s61, 6"); E("s_mul_i32 s62, s62, 171"); E("s_lshr_b32 s62, s62, 9")
            E("s_mul_i32 s63, s62, 192"); E("s_sub_u32 s63, s61, s63")
            E("s_and_b32 s64, s63, 31"); E(f"s_mul_i32 s64, s64, {16*2752}")
            E("s_mul_i32 s65, s62, 86"); E("s_and_b32 s65, s65, 0xfffffff0"); E("s_lshl_b32 s65, s65, 1"); E("s_add_u32 s64, s64, s65")
            E("s_lshr_b32 s65, s63, 6"); E("s_lshl_b32 s65, s65, 6"); E("s_add_u32 s64, s64, s65")
            E("s_bitcmp1_b32 s63, 5"); E("s_cselect_b32 s48, s26, s24"); E("s_cselect_b32 s49, s27, s25")
            E(f"buffer_load_dwordx4 v[{44+4*t}:{47+4*t}], v33, s[48:51], s64 offen")
        srd(48, 28, 0, 1376*1024); srd(52, 20, 0, 512*1024)
        for t in (3, 4):
            E(f"s_add_u32 s61, s60, {1024*(t-3)}"); E("s_min_u32 s66, s61, 1407")
            E("s_lshr_b32 s62, s66, 3"); E("s_mul_i32 s62, s62, 187"); E("s_lshr_b32 s62, s62, 11"); E("s_mul_i32 s63, s62, 88"); E("s_sub_u32 s63, s66, s63")
            E("s_lshl_b32 s63, s63, 14"); E("s_lshl_b32 s62, s62, 6"); E("s_add_u32 s64, s63, s62")
            if t == 3:
                E(f"buffer_load_dwordx4 v[{44+4*t}:{47+4*t}], v34, s[48:51], s64 offen")
            else:
                E("s_cmp_lt_u32 s61, 1408"); E("s_cbranch_scc0 k0_w3")
                E(f"buffer_load_dwordx4 v[{44+4*t}:{47+4*t}], v34, s[48:51], s64 offen"); E("s_branch k0_w3e")
                L("k0_w3"); E("s_sub_u32 s61, s61, 1408"); E("s_min_u32 s61, s61, 511")
                E("s_and_b32 s63, s61, 31"); E("s_lshl_b32 s63, s63, 14"); E("s_lshr_b32 s62, s61, 5"); E("s_lshl_b32 s62, s62, 6"); E("s_add_u32 s64, s63, s62")
                E(f"buffer_load_dwordx4 v[{44+4*t}:{47+4*t}], v34, s[52:55], s64 offen")
                L("k0_w3e")
        srd(52, 34, WS_T, 5*MB); E("s_lshl_b32 s60, s60, 10"); E("v_lshlrev_b32 v35, 4, v1")
        ntl = 0
        if os.environ.get("TLB", "0") == "1":
            E("v_lshlrev_b32 v33, 16, v1")
            srd(48, 34, 0, 24*MB)
            for i in range(6):
                E(f"s_mov_b32 s12, {4*MB*i}"); E(f"buffer_load_dword v{100+ntl}, v33, s[48:51], s12 offen"); ntl += 1
            for base, size in ((18, 512*3072), (20, 512*1024), (24, 512*2752), (26, 512*2752), (28, 1376*1024), (30, 2*MB)):
                srd(48, base, 0, size); E(f"buffer_load_dword v{100+ntl}, v33, s[48:51], 0 offen"); ntl += 1
        npf = int(os.environ.get("NPF", "0"))
        if npf:
            E("s_getpc_b64 s[60:61]"); L("k0_pc")
            E("v_lshlrev_b32 v34, 4, v0")
            for i in range(npf):
                E(f"global_load_dwordx4 v[{72+4*i}:{75+4*i}], v34, s[60:61]"); E("v_add_u32 v34, 0x1000, v34")
        stamp(n); E(f"s_waitcnt vmcnt({7+npf+ntl})"); stamp(n)
    else:
        E("s_waitcnt vmcnt(0)")
    for r in range(2):
        for i in range(4):
            E(f"v_dot2_f32_bf16 v{24+2*r}, v{16+4*r+i}, s8, v{24+2*r}"); E(f"v_dot2_f32_bf16 v{25+2*r}, v{16+4*r+i}, v{16+4*r+i}, v{25+2*r}")
    E("s_nop 3")
    for off in (0x041F, 0x081F, 0x101F, 0x201F, 0x401F):
        for q in range(4): E(f"ds_swizzle_b32 v{28+q}, v{24+q} offset:{off:#x}")
        E("s_waitcnt lgkmcnt(0)")
        for q in range(4): E(f"v_add_f32 v{24+q}, v{24+q}, v{28+q}")
    for q in range(4): E(f"v_mov_b32 v{28+q}, v{24+q}")
    E("s_nop 1")
    for q in range(4): E(f"v_permlane32_swap_b32 v{24+q}, v{28+q}")
    E("s_nop 1")
    for q in range(4): E(f"v_add_f32 v{24+q}, v{24+q}, v{28+q}")
    for r in range(2):
        a, b = 24+2*r, 25+2*r
        E(f"v_mul_f32 v{a}, {f2u(1/512):#x}, v{a}"); E(f"v_mul_f32 v{b}, {f2u(1/512):#x}, v{b}")
        E(f"v_fma_f32 v{b}, -v{a}, v{a}, v{b}"); E(f"v_max_f32 v{b}, 0, v{b}"); E(f"v_add_f32 v{b}, {f2u(1e-5):#x}, v{b}")
        E(f"v_rsq_f32 v{b}, v{b}"); E("s_nop 0"); E(f"v_mul_f32 v{a}, v{a}, v{b}"); E(f"v_sub_f32 v{a}, 0, v{a}")
        for i in range(4):
            x = 16+4*r+i
            E(f"v_lshlrev_b32 v30, 16, v{x}"); E(f"v_and_b32 v31, 0xffff0000, v{x}")
            E(f"v_fma_f32 v30, v30, v{b}, v{a}"); E(f"v_fma_f32 v31, v31, v{b}, v{a}"); E(f"v_cvt_pk_bf16_f32 v{x}, v30, v31")
        if r == 0:
            stamp(n); E("s_waitcnt vmcnt(0)"); stamp(n)
            for t in range(5):
                E(f"s_add_u32 s61, s60, {MB*t}"); E(f"buffer_store_dwordx4 v[{44+4*t}:{47+4*t}], v35, s[52:55], s61 offen")
        E(f"buffer_store_dwordx4 v[{16+4*r}:{19+4*r}], v6, s[44:47], s11 offen offset:{16*r}")
    epilogue_end(n)

SC = " sc1"
def lanes():
    E("v_and_b32 v1, 63, v0"); E("v_and_b32 v3, 31, v0"); E("v_bfe_u32 v4, v0, 5, 1")
WS_CNT = 20*MB
def signal(n, idx):
    E("s_waitcnt vmcnt(0)"); E("s_barrier")
    E("s_cmp_lg_u32 s3, 0"); E(f"s_cbranch_scc1 {n}_sig{idx}")
    E("s_lshl_b32 s4, s9, 1"); E(f"s_add_u32 s4, s4, {idx*4096}")
    E("v_mov_b32 v5, 1"); E("v_mov_b32 v6, s4"); E("s_mov_b64 exec, 1")
    E("buffer_atomic_add v5, v6, s[56:59], 0 offen"); E("s_mov_b64 exec, -1")
    L(f"{n}_sig{idx}")
def wait(n, idx, back=0):
    E("s_cmp_lg_u32 s3, 0"); E(f"s_cbranch_scc1 {n}_wx{idx}")
    E("s_lshl_b32 s4, s9, 1"); E("v_lshlrev_b32 v6, 8, v1"); E("v_sub_u32 v6, s4, v6"); E("v_max_i32 v6, 0, v6"); E(f"v_add_u32 v6, {idx*4096}, v6")
    E("s_mov_b32 s6, 0"); E(f"s_mov_b64 exec, {(1 << (back+1)) - 1}")
    L(f"{n}_w{idx}")
    E("buffer_load_dword v5, v6, s[56:59], 0 offen sc1"); E("s_waitcnt vmcnt(0)")
    E("v_cmp_gt_u32 vcc, 16, v5"); E("s_add_u32 s6, s6, 1"); E("s_nop 0"); E(f"s_cbranch_vccz {n}_wd{idx}")
    E("s_sleep 3"); E("s_cmp_lt_u32 s6, 0x4000"); E(f"s_cbranch_scc1 {n}_w{idx}")
    L(f"{n}_wd{idx}"); E("s_mov_b64 exec, -1")
    L(f"{n}_wx{idx}")
    E("s_waitcnt vmcnt(0)"); E("s_barrier")
def load_xt2(srdreg, nsteps_total, nsteps, base=VX, sc=SC):
    E("s_lshr_b32 s4, s10, 5"); E(f"s_mul_i32 s4, s4, {nsteps_total*1024}")
    E("v_lshlrev_b32 v8, 4, v1"); E("v_add_u32 v8, s4, v8")
    for s in range(nsteps):
        if s % 4 == 0: E(f"s_mov_b32 s4, {1024*s}")
        E(f"buffer_load_dwordx4 v[{base+4*s}:{base+4*s+3}], v8, s[{srdreg}:{srdreg+3}], s4 offen offset:{1024*(s%4)}{sc}")
def issue(groups):
    for g in groups:
        for x in g: E(x)

def mega():
    global VW
    n = "km_block_kernel"; kernels.append((n, 256, 163840)); prologue(n, 256)
    stamp(n); wgmap(2)
    E("s_mov_b32 s61, s11")
    E("s_lshl_b32 s10, s3, 5"); E("s_add_u32 s10, s10, s9")
    srd(56, 34, WS_CNT, 16384)
    E("s_mul_i32 s11, s61, 3")
    srd(40, 34, WS_XN, 2*MB); srd(44, 18, 0, 512*3072); srd(48, 34, 0, 6*MB)
    srd(64, 34, WS_T, 5*MB); E("s_mul_i32 s68, s61, 196608"); E("s_mul_i32 s69, s61, 90112"); E(f"s_add_u32 s69, s69, {3072*1024}"); E("s_lshl_b32 s70, s61, 15"); E(f"s_add_u32 s70, s70, {4480*1024}")
    E("s_lshl_b32 s62, s61, 6")
    E("s_mul_i32 s63, s61, 86"); E("s_and_b32 s63, s63, 0xfffffff0"); E("s_lshl_b32 s63, s63, 1")
    E("v_lshlrev_b32 v2, 4, v0")
    slotof = {0: 3, 1: 4, 2: 1, 3: 2, 4: 0, 5: 3}
    def tl(sc, add, lds, nj): return [[x.replace(" v7,", " v2,") for x in g] for g in dma_list(64, sc, add, lds, nj, 64)]
    def regl(r): return tl(68, r*32768, slotof[r]*32768, 8)
    p1pf = regl(0) + regl(1)
    dma_setup_w(3072)
    E("s_lshl_b32 s60, s11, 6")
    allw = dma_list_w(44, 60, 0, 0, 512, 3072)
    E("s_lshr_b32 s4, s10, 5"); E(f"s_mul_i32 s4, s4, {32*1024}"); E("v_lshlrev_b32 v8, 4, v1"); E("v_add_u32 v8, s4, v8")
    def chunk(c):
        r = list(allw[6*c:6*c+6])
        for s_ in range(8*c, 8*c+8):
            r.append([f"s_mov_b32 s4, {1024*(s_ & ~3)}", f"buffer_load_dwordx4 v[{VX+4*s_}:{VX+4*s_+3}], v8, s[40:43], s4 offen offset:{1024*(s_%4)}"])
        return r
    issue(chunk(0) + chunk(1))
    E("v_add_u32 v9, s10, v3")
    w_addr(False, 10, 192); E("v_add_u32 v13, 0xc000, v10")
    E("v_lshlrev_b32 v11, 5, v9"); E("v_lshlrev_b32 v5, 4, v4"); E("v_add_u32 v11, v11, v5")
    E("v_bfe_u32 v12, v0, 4, 1"); E("v_lshlrev_b32 v12, 16, v12"); E("v_lshlrev_b32 v5, 8, v4"); E("v_add_u32 v12, v12, v5")
    E("v_and_b32 v5, 15, v0"); E("v_lshlrev_b32 v5, 4, v5"); E("v_add_u32 v12, v12, v5")
    E("s_lshl_b32 s13, s10, 5"); E("v_add_u32 v12, s13, v12")
    ACCJ = (176, 192, 208); PT = 224
    stamp(n, "p1")
    E("s_cmp_eq_u32 s61, 10"); E(f"s_cbranch_scc1 {n}_p1b"); E("s_cmp_gt_u32 s61, 10"); E(f"s_cbranch_scc1 {n}_p1c")
    for vn, sws in (("a", (False, False, False)), ("b", (False, False, True)), ("c", (True, True, True))):
        L(f"{n}_p1{vn}")
        for c in range(4):
            E(f"s_waitcnt vmcnt({14 if c < 3 else 0})"); E("s_barrier")
            if vn == "a": stamp(n, "p1")
            items = []
            for s in range(8*c, 8*c+8):
                for j in range(3):
                    items.append(((10, 3072*s + 64*j) if s < 16 else (13, 3072*(s-16) + 64*j)) + (VX+4*s, ACCJ[j]))
            nxt = chunk(c + 2) if c < 2 else []
            for i in mfma_items(items, False, lambda i: sws[i % 3], lambda i: c == 0 and i < 3, 192):
                if nxt and i % 3 != 2: issue([nxt.pop(0)])
            assert not nxt
        E("s_nop 15")
        if vn == "a": stamp(n, "p1")
        for j, sw in enumerate(sws):
            E(f"s_add_u32 s12, s11, {j}"); pack(ACCJ[j], PT + 8*j); T_ = PT + 8*j
            if not sw:
                E("s_lshr_b32 s14, s12, 4"); E("s_lshl_b32 s14, s14, 21"); E("s_and_b32 s15, s12, 15"); E("s_lshl_b32 s15, s15, 17")
                E("s_add_u32 s14, s14, s15"); E("s_add_u32 s15, s14, 65536")
                E(f"buffer_store_dwordx4 v[{T_}:{T_+3}], v11, s[48:51], s14 offen{SC}")
                E(f"buffer_store_dwordx4 v[{T_+4}:{T_+7}], v11, s[48:51], s15 offen{SC}")
            else:
                E("s_sub_u32 s14, s12, 32"); E("s_lshl_b32 s14, s14, 17"); E(f"s_add_u32 s14, s14, {WS_V}")
                E(f"buffer_store_dwordx4 v[{T_}:{T_+3}], v12, s[48:51], s14 offen{SC}")
                E(f"buffer_store_dwordx4 v[{T_+4}:{T_+7}], v12, s[48:51], s14 offen offset:512{SC}")
        if vn != "c": E(f"s_branch {n}_p1e")
    L(f"{n}_p1e")
    stamp(n, "p1")
    stamp(n); signal(n, 0); stamp(n)
    issue(tl(70, 0, 0, 8))
    E("v_mov_b32 v5, 0x3f803f80")
    for r in range(144): E(f"v_accvgpr_write_b32 a{80+r}, v5")
    wait(n, 0, 2); stamp(n); stamp(n, "p2")
    S, O, PK = 96, 240, 16
    srd(40, 34, WS_Q, 2*MB); srd(44, 34, WS_K - 8192, 2*MB + 8192); srd(48, 34, WS_V - 8192, 2*MB + 8192); srd(52, 34, WS_O, 2*MB)
    E("v_lshlrev_b32 v5, 2, v4"); E("v_sub_u32 v11, v3, v5")
    E("s_sub_i32 s15, 256, s10"); E("s_max_i32 s15, s15, 0")
    E("v_lshlrev_b32 v6, 4, v4")
    E("s_lshl_b32 s11, s61, 1")
    E("s_lshl_b32 s12, s11, 11"); E("s_add_u32 s12, s12, s10")
    E("v_add_u32 v5, s12, v3"); E("v_lshlrev_b32 v5, 5, v5"); E("v_add_u32 v8, v5, v6"); E("v_add_u32 v13, 0x10000, v8")
    E("s_lshl_b32 s14, s15, 5")
    E("v_and_b32 v5, 15, v0"); E("v_lshlrev_b32 v5, 4, v5"); E("v_lshlrev_b32 v9, 8, v4"); E("v_add_u32 v5, v5, v9")
    E("s_lshl_b32 s13, s11, 16"); E("s_lshl_b32 s12, s10, 5"); E("s_add_u32 s13, s13, s12"); E("v_add_u32 v9, s13, v5"); E("v_add_u32 v14, 0x10000, v9")
    E("s_mov_b32 s66x, 0") if False else None
    E("s_mov_b32 s72, 0x0000ffff"); E("s_mov_b32 s73, 0x0000ffff")
    def qk(hh):
        va = (8, 13)[hh]
        r = [[f"buffer_load_dwordx4 a[{72+4*hh}:{75+4*hh}], v{va}, s[40:43], 0 offen{SC}"]]
        for kb in range(9):
            r.append([f"s_max_u32 s12, s14, {kb*1024}", f"buffer_load_dwordx4 a[{36*hh+4*kb}:{36*hh+4*kb+3}], v{va}, s[44:47], s12 offen{SC}"])
        return r
    def vv(hh):
        return [["s_mov_b64 exec, s[72:73]", f"s_max_u32 s12, s14, {512*t}",
                 f"buffer_load_dwordx4 a[{80+72*hh+4*t}:{80+72*hh+4*t+3}], v{(9,14)[hh]}, s[48:51], s12 offen{SC}", "s_mov_b64 exec, -1"] for t in range(18)]
    issue(qk(0)); issue(vv(0))
    E("s_add_u32 s13, s10, s11"); E("s_lshl_b32 s13, s13, 10"); E("v_lshlrev_b32 v5, 4, v1"); E("v_add_u32 v10, s13, v5")
    stamp(n, "p2")
    for hh in range(2):
        pf = (qk(1) + vv(1)) if hh == 0 else (regl(1) + regl(2) + regl(3))
        npf0 = len(pf)
        E(f"v_mov_b32 v12, {f2u(-1e30):#x}")
        for kb in range(9):
            E(f"s_waitcnt vmcnt({(26-kb) if hh == 0 else (8 + 1 + 18 + 8 - kb)})")
            E(f"v_mfma_f32_32x32x16_bf16 v[{S+16*kb}:{S+16*kb+15}], a[{36*hh+4*kb}:{36*hh+4*kb+3}], a[{72+4*hh}:{75+4*hh}], 0")
        E("s_nop 7"); E("s_nop 3"); stamp(n, "p2")
        for kb in range(8):
            E(f"s_cmp_ge_u32 s10, {256-32*kb}"); E(f"s_cbranch_scc1 {n}_ok{hh}_{kb}")
            for i in range(16): E(f"v_mov_b32 v{S+16*kb+i}, v12")
            L(f"{n}_ok{hh}_{kb}")
        for i in range(16):
            c = 8*(i >> 2) + (i & 3)
            E(f"v_cmp_le_i32 vcc, {c}, v11"); E("s_nop 1")
            E(f"v_cndmask_b32 v{S+128+i}, v12, v{S+128+i}, vcc"); E(f"v_cndmask_b32 v{S+i}, v{S+i}, v12, vcc")
            if i % 3 == 2 and pf: issue([pf.pop(0)])
        for c in range(4): E(f"v_max_f32 v{PK+c}, v{S+c}, v{S+4+c}")
        for r in range(8, 144, 8):
            for c in range(4): E(f"v_max3_f32 v{PK+c}, v{PK+c}, v{S+r+c}, v{S+r+4+c}")
            if r % 24 == 0 and pf: issue([pf.pop(0)])
        E(f"v_max_f32 v{PK}, v{PK}, v{PK+1}"); E(f"v_max_f32 v{PK+2}, v{PK+2}, v{PK+3}"); E(f"v_max_f32 v12, v{PK}, v{PK+2}"); E("v_mov_b32 v15, v12")
        E("s_nop 1"); E("v_permlane32_swap_b32 v12, v15"); E("s_nop 1"); E("v_max_f32 v12, v12, v15")
        E(f"s_mov_b32 s13, {f2u(0.25*LOG2E):#x}"); E("v_mul_f32 v12, s13, v12"); stamp(n, "p2")
        for r in range(0, 144, 4):
            for c in range(4): E(f"v_fma_f32 v{S+r+c}, v{S+r+c}, s13, -v12")
            for c in range(4): E(f"v_exp_f32 v{S+r+c}, v{S+r+c}")
            if r >= 4:
                p = r - 4; d = S + 16*(p//16) + (p % 16)//2
                E(f"v_cvt_pk_bf16_f32 v{d}, v{S+p}, v{S+p+1}"); E(f"v_cvt_pk_bf16_f32 v{d+1}, v{S+p+2}, v{S+p+3}")
            if r % 8 == 0 and pf: issue([pf.pop(0)])
        p = 140; d = S + 16*(p//16) + (p % 16)//2
        E("s_nop 0"); E(f"v_cvt_pk_bf16_f32 v{d}, v{S+p}, v{S+p+1}"); E(f"v_cvt_pk_bf16_f32 v{d+1}, v{S+p+2}, v{S+p+3}")
        npf_left = len(pf)
        stamp(n, "p2")
        assert npf_left == 0
        E(f"s_waitcnt vmcnt({npf0 if hh == 0 else (9+npf0)})"); stamp(n, "p2")
        if hh == 0: pf = regl(0)
        for t in range(18):
            if pf and t % 2 == 1: issue([pf.pop(0)])
            bb = S + 16*(t//2) + 4*(t % 2)
            E(f"v_mfma_f32_32x32x16_bf16 v[{O}:{O+15}], a[{80+72*hh+4*t}:{80+72*hh+4*t+3}], v[{bb}:{bb+3}], {'0' if t == 0 else f'v[{O}:{O+15}]'}")
        E("s_nop 15"); E(f"v_rcp_f32 v12, v{O+8}"); E("s_nop 0")
        for i in range(8): E(f"v_mul_f32 v{O+i}, v{O+i}, v12")
        for i in range(4): E(f"v_cvt_pk_bf16_f32 v{PK+i}, v{O+2*i}, v{O+2*i+1}")
        assert not pf
        E(f"buffer_store_dwordx4 v[{PK}:{PK+3}], v10, s[52:55], 0 offen offset:{1024*hh}{SC}")
        E("s_nop 1")
    stamp(n); signal(n, 1); stamp(n)
    srd(40, 34, WS_O, 2*MB); srd(48, 34, WS_H, 2*MB); srd(52, 16, 0, 2*MB)
    E("v_add_u32 v9, s10, v3")
    w_addr(True, 10)
    E("v_lshlrev_b32 v12, 10, v9"); E("v_lshlrev_b32 v5, 3, v4"); E("v_add_u32 v12, v12, v5"); E("s_lshl_b32 s13, s61, 11")
    for q in range(4): E(f"buffer_load_dwordx2 v[{VT+8+2*q}:{VT+9+2*q}], v12, s[52:55], s62 offen offset:{16*q}")
    wait(n, 1); stamp(n)
    load_xt2(40, 32, 32)
    E("s_waitcnt vmcnt(31)")
    items = [(10, 1024*s, VX+4*s, ACC0) for s in range(32)]
    for i in mfma_items(items, True, lambda i: False, lambda i: i == 0):
        if i + 1 < 32: E(f"s_waitcnt vmcnt({30-i})")
    E("s_nop 15")
    for i in range(8):
        E(f"v_lshlrev_b32 v5, 16, v{VT+8+i}"); E(f"v_and_b32 v6, 0xffff0000, v{VT+8+i}")
        E(f"v_add_f32 v{ACC0+2*i}, v{ACC0+2*i}, v5"); E(f"v_add_f32 v{ACC0+2*i+1}, v{ACC0+2*i+1}, v6")
    pack(ACC0, VT)
    E(f"buffer_store_dwordx4 v[{VT}:{VT+3}], v8, s[48:51], s13 offen{SC}")
    E(f"buffer_store_dwordx4 v[{VT+4}:{VT+7}], v8, s[48:51], s13 offen offset:1024{SC}")
    E("s_mov_b32 s8, 0x3f803f80"); srd(44, 34, WS_ST, 262144)
    for q in range(4): E(f"v_mov_b32 v{240+q}, 0")
    for i in range(8):
        E(f"v_dot2_f32_bf16 v{240+(i&1)}, v{VT+i}, s8, v{240+(i&1)}"); E(f"v_dot2_f32_bf16 v{242+(i&1)}, v{VT+i}, v{VT+i}, v{242+(i&1)}")
    E("s_lshl_b32 s14, s9, 7"); E("s_lshl_b32 s15, s61, 10"); E("s_add_u32 s14, s14, s15"); E("s_lshl_b32 s15, s3, 8"); E("s_add_u32 s14, s14, s15")
    E("v_lshlrev_b32 v13, 3, v3"); E("s_nop 1")
    E("v_add_f32 v244, v240, v241"); E("v_add_f32 v245, v242, v243"); E("v_mov_b32 v246, v244"); E("v_mov_b32 v247, v245"); E("s_nop 1")
    E("v_permlane32_swap_b32 v244, v246"); E("v_permlane32_swap_b32 v245, v247"); E("s_nop 1")
    E("v_add_f32 v244, v244, v246"); E("v_add_f32 v245, v245, v247")
    E(f"buffer_store_dwordx2 v[244:245], v13, s[44:47], s14 offen{SC}")
    stamp(n); signal(n, 2); stamp(n)
    issue(regl(4))
    wait(n, 2); stamp(n); stamp(n, "p4")
    srd(40, 34, WS_H, 2*MB); srd(52, 34, WS_HH, 2048*2752)
    E("s_lshl_b32 s14, s9, 7"); E("s_lshl_b32 s15, s3, 8"); E("s_add_u32 s14, s14, s15")
    E("v_lshlrev_b32 v13, 3, v3"); E("v_lshlrev_b32 v5, 13, v4"); E("v_add_u32 v13, v13, v5")
    for k in range(8):
        if k % 4 == 0: E(f"s_add_u32 s15, s14, {1024*k}")
        E(f"buffer_load_dwordx2 v[{240+2*k}:{241+2*k}], v13, s[44:47], s15 offen offset:{1024*(k%4)}{SC}")
    E("s_lshr_b32 s4, s10, 5"); E(f"s_mul_i32 s4, s4, {32*1024}"); E("v_lshlrev_b32 v8, 4, v1"); E("v_add_u32 v8, s4, v8")
    def xld(s_): return [f"s_mov_b32 s4, {1024*s_}", f"buffer_load_dwordx4 v[{VX+4*s_}:{VX+4*s_+3}], v8, s[40:43], s4 offen{SC}"]
    for s_ in range(16): issue([xld(s_)])
    E("s_lshr_b32 s4, s10, 5"); E(f"s_mul_i32 s4, s4, {86*1024}"); E("v_lshlrev_b32 v11, 4, v1"); E("v_add_u32 v11, s4, v11")
    stamp(n, "p4")
    E("s_waitcnt vmcnt(16)")
    for w in (4, 2, 1):
        for k in range(w):
            E(f"v_add_f32 v{240+2*k}, v{240+2*k}, v{240+2*(k+w)}"); E(f"v_add_f32 v{241+2*k}, v{241+2*k}, v{241+2*(k+w)}")
    E("v_mov_b32 v242, v240"); E("v_mov_b32 v243, v241"); E("s_nop 1")
    E("v_permlane32_swap_b32 v240, v242"); E("v_permlane32_swap_b32 v241, v243"); E("s_nop 1")
    E("v_add_f32 v240, v240, v242"); E("v_add_f32 v241, v241, v243")
    E(f"v_mul_f32 v240, {f2u(1/512):#x}, v240"); E(f"v_mul_f32 v241, {f2u(1/512):#x}, v241")
    E("v_fma_f32 v241, -v240, v240, v241"); E("v_max_f32 v241, 0, v241"); E(f"v_add_f32 v241, {f2u(1e-5):#x}, v241")
    E("v_rsq_f32 v12, v241"); E("s_nop 0"); E("v_mul_f32 v240, v240, v12"); E("v_sub_f32 v15, 0, v240")
    E(f"s_mov_b32 s13, {f2u(-LOG2E):#x}")
    stamp(n, "p4")
    E("s_waitcnt vmcnt(14)")
    stamp(n, "p4")
    def norm(s):
        r = []
        for q in range(4):
            x = VX + 4*s + q; a_, b_ = 240 + 2*q, 241 + 2*q
            r += [f"v_lshlrev_b32 v{a_}, 16, v{x}", f"v_and_b32 v{b_}, 0xffff0000, v{x}"]
        for q in range(4):
            a_, b_ = 240 + 2*q, 241 + 2*q
            r += [f"v_fma_f32 v{a_}, v{a_}, v12, v15", f"v_fma_f32 v{b_}, v{b_}, v12, v15"]
        for q in range(4):
            r += [f"v_cvt_pk_bf16_f32 v{VX+4*s+q}, v{240+2*q}, v{241+2*q}"]
        return r
    def epi(j, G, U):
        r = []
        for i in range(16): r.append(f"v_mul_f32 v{G+i}, s13, v{G+i}")
        for i in range(16): r.append(f"v_exp_f32 v{G+i}, v{G+i}")
        for i in range(16): r.append(f"v_add_f32 v{G+i}, 1.0, v{G+i}")
        for i in range(16): r.append(f"v_rcp_f32 v{G+i}, v{G+i}")
        for i in range(16): r.append(f"v_mul_f32 v{G+i}, v{G+i}, v{U+i}")
        for i in range(8): r.append(f"v_cvt_pk_bf16_f32 v{248+i}, v{G+2*i}, v{G+2*i+1}")
        r += [f"s_add_u32 s12, s63, {64*j}", "s_lshl_b32 s12, s12, 5",
              f"buffer_store_dwordx4 v[248:251], v11, s[52:55], s12 offen{SC}",
              f"buffer_store_dwordx4 v[252:255], v11, s[52:55], s12 offen offset:1024{SC}"]
        return r
    for x in norm(0) + norm(1): E(x)
    fill = []
    w5 = tl(69, 0, 32768, 16) + tl(69, 65536, 131072, 6)
    for j in range(3):
        G, U = (176, 192) if j % 2 == 0 else (208, 224)
        sg, su = slotof[2*j]*32768, slotof[2*j+1]*32768
        E(f"v_add_u32 v13, {sg}, v10"); E(f"v_add_u32 v14, {su}, v10")
        items = []
        for s in range(32): items += [(13, 1024*s, VX+4*s, G), (14, 1024*s, VX+4*s, U)]
        for i in mfma_items(items, True, lambda i: False, lambda i: i < 2):
            if j == 0 and i//2 + 2 < 32:
                s_ = i//2
                if i % 2 == 0:
                    if s_ + 16 < 32: issue([xld(s_ + 16)])
                    E(f"s_waitcnt vmcnt({min(s_ + 16, 31) - (s_ + 2)})")
                for x in norm(s_ + 2)[10*(i % 2):10*(i % 2)+10]: E(x)
            if j > 0 and i >= 4:
                for _ in range(2):
                    if fill: E(fill.pop(0))
            if j == 2 and i >= 2 and i % 2 == 0 and w5: issue([w5.pop(0)])
        assert not fill
        stamp(n, "p4")
        if j == 0: E("s_barrier"); issue(regl(5))
        if j == 1: E("s_waitcnt vmcnt(2)"); E("s_barrier")
        fill = epi(j, G, U)
    E("s_nop 15")
    for x in fill: E(x)
    stamp(n); stamp(n, "p4"); signal(n, 3); stamp(n); stamp(n, "p4")
    NX = 44; X = 56; oldVW = VW; VW = 16; A = 232; T = 48
    assert not w5
    wait(n, 3); stamp(n)
    srd(40, 34, WS_HH, 2048*2752); srd(48, 34, WS_H, 2*MB); srd(52, 30, 0, 2*MB)
    load_xt2(40, 86, NX, X)
    E("v_add_u32 v13, 0x8000, v10"); E("v_add_u32 v14, 0x20000, v10"); E("v_add_u32 v9, s10, v3")
    E("v_lshlrev_b32 v12, 10, v9"); E("v_lshlrev_b32 v5, 3, v4"); E("v_add_u32 v12, v12, v5")
    E("s_lshl_b32 s13, s10, 10"); E("s_lshl_b32 s14, s61, 11"); E("s_add_u32 s13, s13, s14"); E("v_lshlrev_b32 v11, 4, v1")
    E(f"buffer_load_dwordx4 v[248:251], v11, s[48:51], s13 offen{SC}"); E(f"buffer_load_dwordx4 v[252:255], v11, s[48:51], s13 offen offset:1024{SC}")
    E("s_waitcnt vmcnt(45)")
    items = [((13, 1024*s) if s < 64 else (14, 1024*(s-64))) + (X+4*(s % NX), A) for s in range(86)]
    for i in mfma_items(items, True, lambda i: False, lambda i: i == 0):
        if i + NX < 86:
            s = i + NX; E(f"s_mov_b32 s4, {1024*s}"); E(f"buffer_load_dwordx4 v[{X+4*i}:{X+4*i+3}], v8, s[40:43], s4 offen{SC}")
        if i + 1 < 86: E(f"s_waitcnt vmcnt({(45 if i + 1 <= 42 else 44) if i + 1 < NX else 85-(i+1)})")
    VW = oldVW
    E("s_nop 15")
    for i in range(8):
        E(f"v_lshlrev_b32 v5, 16, v{248+i}"); E(f"v_and_b32 v6, 0xffff0000, v{248+i}")
        E(f"v_add_f32 v{A+2*i}, v{A+2*i}, v5"); E(f"v_add_f32 v{A+2*i+1}, v{A+2*i+1}, v6")
    pack(A, T)
    for q in range(4): E(f"buffer_store_dwordx2 v[{T+2*q}:{T+2*q+1}], v12, s[52:55], s62 offen offset:{16*q}")
    epilogue_end(n)

k0(); mega()
hdr = open("cdna_kernels/" + NAME + ".s.ref").read().split("\n")
head = [l for l in hdr if l.startswith(";") and "@launch" not in l and "Override" not in l and "grid=ceil" not in l]
import os
dup = int(os.environ.get("DUP", "-1"))
ll = []
for idx, (k, g, l) in enumerate(kernels):
    ll += [f"; @launch kernel={k} grid=({g},1,1) block=(256,1,1) lds={l}"] * (5 if idx == dup else 1)
if dup == 99: ll = ll + ll
if STAMPK:
    ll = ll + [x for x in ll if STAMPK in x]
txt = head + ll
txt += ['.amdgcn_target "amdgcn-amd-amdhsa--gfx950"', ".text"] + out + ['.section .rodata,"a"']
for k, g, l in kernels:
    txt += [".p2align 6", f".amdhsa_kernel {k}", f"  .amdhsa_next_free_vgpr {512 if k.startswith('km') else 256}", "  .amdhsa_next_free_sgpr 102", "  .amdhsa_accum_offset 256",
            "  .amdhsa_group_segment_fixed_size 0", "  .amdhsa_kernarg_size 80", "  .amdhsa_user_sgpr_count 2",
            "  .amdhsa_user_sgpr_kernarg_segment_ptr 1", "  .amdhsa_system_sgpr_workgroup_id_x 1", ".end_amdhsa_kernel"]
open(os.environ.get("OUT", "cdna_kernels/" + NAME + ".s"), "w").write("\n".join(txt) + "\n")
```

```python
import sys, os
NAME = "sequential_preLN__sliding_block__glu_gated_glu__prompt"
out = []
def E(s): out.append("    " + s)
def L(s): out.append(s + ":")
MB = 1 << 20
WS_Q, WS_K, WS_V, WS_O, WS_H, WS_HH = 0, 2*MB, 4*MB, 6*MB, 8*MB, 10*MB
WS_XN = 16*MB
LOG2E = 1.4426950408889634
import struct
def f2u(f): return struct.unpack("<I", struct.pack("<f", f))[0]

def prologue(name, nwg):
    out.append(".p2align 8"); out.append(f".globl {name}"); out.append(f".type {name},@function"); L(name)
    E(f"s_cmp_ge_u32 s2, {nwg}"); E(f"s_cbranch_scc1 {name}_done")
    E("s_load_dwordx16 s[16:31], s[0:1], 0"); E("s_load_dwordx4 s[32:35], s[0:1], 64")
    E("v_and_b32 v1, 63, v0")
    E("v_lshrrev_b32 v2, 6, v0")
    E("v_and_b32 v3, 31, v0")
    E("v_readfirstlane_b32 s3, v2")
    E("v_bfe_u32 v4, v0, 5, 1")
    E("s_waitcnt lgkmcnt(0)")
STAMPK = os.environ.get("STAMP", "")
nst = [0]
def stamp(name, tag=""):
    if name != STAMPK: return
    if tag != os.environ.get("STAG", "") and nst[0] > 0 and tag != "end": return
    E("s_memrealtime s[74:75]" if os.environ.get("ABS") else "s_memtime s[74:75]"); E("s_waitcnt lgkmcnt(0)"); E(f"s_mov_b32 s{76+nst[0]}, s74"); nst[0] += 1
def epilogue_end(name):
    if name == STAMPK:
        stamp(name, "end")
        srd(40, 32, 0, 256)
        if os.environ.get("ABS"):
            k = int(os.environ["ABS"])
            E("s_and_b32 s4, s2, 7"); E("s_cmp_lg_u32 s4, 0"); E(f"s_cbranch_scc1 {name}_done"); E("s_cmp_lg_u32 s3, 0"); E(f"s_cbranch_scc1 {name}_done")
            E("s_cmp_ge_u32 s2, 256"); E(f"s_cbranch_scc1 {name}_done")
            E("s_lshr_b32 s4, s2, 4"); E("s_lshl_b32 s4, s4, 2"); E("s_and_b32 s5, s2, 8"); E("s_cmp_lg_u32 s5, 0"); E(f"s_cbranch_scc1 {name}_done")
            E("v_mov_b32 v6, s4"); E(f"v_mov_b32 v5, s{76+k}"); E("buffer_store_dword v5, v6, s[40:43], 0 offen"); E(f"s_branch {name}_done")
        E("s_cmp_lg_u32 s2, 8"); E(f"s_cbranch_scc1 {name}_done"); E("s_cmp_lg_u32 s3, 0"); E(f"s_cbranch_scc1 {name}_done")
        srd(40, 32, 0, 256)
        for i in range(nst[0]):
            E(f"s_sub_u32 s4, s{76+i}, s76"); E("v_mov_b32 v5, s4"); E(f"v_mov_b32 v6, {4*i}"); E("buffer_store_dword v5, v6, s[40:43], 0 offen")
    L(f"{name}_done"); E("s_endpgm")
def srd(d, base, off, size):
    if off >= 0:
        E(f"s_add_u32 s{d}, s{base}, {off}"); E(f"s_addc_u32 s{d+1}, s{base+1}, 0")
    else:
        E(f"s_sub_u32 s{d}, s{base}, {-off}"); E(f"s_subb_u32 s{d+1}, s{base+1}, 0")
    E(f"s_mov_b32 s{d+2}, {size}"); E(f"s_mov_b32 s{d+3}, 0x00020000")

VX, VW, ACC0, ACC1, VT = 16, 144, 176, 192, 208

def w_addr(perm, vdst, RB=64):
    E("v_bfe_u32 v5, v0, 2, 2")
    E(f"v_lshlrev_b32 v6, {2 if perm else 3}, v4")
    E("v_add_u32 v5, v5, v6")
    E(f"v_mul_u32_u24 v5, {RB}, v5")
    E("v_bfe_u32 v6, v0, 4, 1")
    E("v_lshlrev_b32 v6, 5, v6")
    E("v_add_u32 v5, v5, v6")
    E("v_and_b32 v6, 3, v0")
    E("v_lshlrev_b32 v6, 3, v6")
    E(f"v_add_u32 v{vdst}, v5, v6")

def dma_setup(ldw):
    E("v_lshrrev_b32 v5, 2, v0"); E(f"s_mov_b32 s4, {ldw}"); E("v_mul_lo_u32 v5, v5, s4")
    E("v_and_b32 v6, 3, v0"); E("v_lshlrev_b32 v6, 4, v6"); E("v_add_u32 v7, v5, v6")
    E("s_lshl_b32 s5, s3, 10")
def dma_region(srdreg, scol, ldsbase, nj, ldw):
    E(f"s_mov_b32 s6, s{scol}"); E(f"s_add_u32 s7, s5, {ldsbase}")
    for j in range(nj):
        E("s_mov_b32 m0, s7");
        if j + 1 < nj: E("s_add_u32 s7, s7, 4096")
        else: E("s_nop 0")
        E(f"buffer_load_dwordx4 v7, s[{srdreg}:{srdreg+3}], s6 offen lds")
        if j + 1 < nj: E(f"s_add_u32 s6, s6, {64*ldw}")

def dma_list(srdreg, scolreg, coladd, ldsbase, nj, ldw):
    r = []
    for j in range(nj):
        r.append([f"s_add_u32 s6, s{scolreg}, {coladd + j*64*ldw}", f"s_add_u32 m0, s5, {ldsbase + j*4096}", "s_nop 0",
                  f"buffer_load_dwordx4 v7, s[{srdreg}:{srdreg+3}], s6 offen lds"])
    return r
def dma_setup_w(ldw):
    E("s_lshl_b32 s5, s3, 10"); E("s_mov_b32 s4, 0xAAAB"); E(f"s_mov_b32 s6, {ldw}")
    for t, vr in enumerate((7, 14, 15)):
        E(f"v_add_u32 v5, {256*t}, v0"); E("v_mul_lo_u32 v6, v5, s4"); E("v_lshrrev_b32 v6, 19, v6")
        E("v_mul_u32_u24 v9, 12, v6"); E("v_sub_u32 v5, v5, v9"); E("v_lshlrev_b32 v5, 4, v5")
        E("v_mul_lo_u32 v6, v6, s6"); E(f"v_add_u32 v{vr}, v5, v6")
def dma_list_w(srdreg, scolreg, ldsbase, row0, nrows, ldw):
    r = []
    for j in range(nrows*12//256):
        r.append([f"s_add_u32 s6, s{scolreg}, {(row0 + (j//3)*64)*ldw}", f"s_add_u32 m0, s5, {ldsbase + j*4096}", "s_nop 0",
                  f"buffer_load_dwordx4 v{(7,14,15)[j%3]}, s[{srdreg}:{srdreg+3}], s6 offen lds"])
    return r
def mfma_items(items, perm, swap_of, first_of, RB=64):
    d2 = 8*RB if perm else 4*RB
    n = len(items); D = 6
    def rd(i):
        va, off, _, _ = items[i]; w = VW + 4 * (i % 8)
        E(f"ds_read_b64_tr_b16 v[{w}:{w+1}], v{va} offset:{off}")
        E(f"ds_read_b64_tr_b16 v[{w+2}:{w+3}], v{va} offset:{off+d2}")
    for i in range(min(D, n)): rd(i)
    for i in range(n):
        va, off, x, acc = items[i][:4]; w = VW + 4 * (i % 8)
        E(f"s_waitcnt lgkmcnt({2*(min(i+D-1, n-1)-i)})")
        c = "0" if first_of(i) else f"v[{acc}:{acc+15}]"
        if swap_of(i): E(f"v_mfma_f32_32x32x16_bf16 v[{acc}:{acc+15}], v[{x}:{x+3}], v[{w}:{w+3}], {c}")
        else:          E(f"v_mfma_f32_32x32x16_bf16 v[{acc}:{acc+15}], v[{w}:{w+3}], v[{x}:{x+3}], {c}")
        if i + D < n: rd(i + D)
        yield i

def ln_regs(ndma, inter=[], jit=False):
    E("s_mov_b32 s8, 0x3f803f80")
    for q in range(4): E(f"v_mov_b32 v{VT+q}, 0"); E(f"v_mov_b32 v{VT+4+q}, 0")
    inter = list(inter); nd = 0
    for g in range(4):
        E(f"s_waitcnt vmcnt({min(63, 24-8*g+nd)})")
        for r in range(32*g, 32*g+32):
            if inter and r % 8 == 4:
                for x in inter.pop(0): E(x)
                nd += 1
            E(f"v_dot2_f32_bf16 v{VT+(r&3)}, v{VX+r}, s8, v{VT+(r&3)}")
            E(f"v_dot2_f32_bf16 v{VT+4+(r&3)}, v{VX+r}, v{VX+r}, v{VT+4+(r&3)}")
    E("s_nop 3")
    E(f"v_add_f32 v{VT}, v{VT}, v{VT+1}"); E(f"v_add_f32 v{VT+2}, v{VT+2}, v{VT+3}")
    E(f"v_add_f32 v{VT+4}, v{VT+4}, v{VT+5}"); E(f"v_add_f32 v{VT+6}, v{VT+6}, v{VT+7}")
    E(f"v_add_f32 v{VT}, v{VT}, v{VT+2}"); E(f"v_add_f32 v{VT+4}, v{VT+4}, v{VT+6}")
    E(f"v_mov_b32 v{VT+1}, v{VT}"); E(f"v_mov_b32 v{VT+5}, v{VT+4}")
    E("s_nop 1")
    E(f"v_permlane32_swap_b32 v{VT}, v{VT+1}"); E(f"v_permlane32_swap_b32 v{VT+4}, v{VT+5}")
    E("s_nop 1")
    E(f"v_add_f32 v{VT}, v{VT}, v{VT+1}"); E(f"v_add_f32 v{VT+4}, v{VT+4}, v{VT+5}")
    E(f"v_mul_f32 v{VT}, {f2u(1/512):#x}, v{VT}")
    E(f"v_mul_f32 v{VT+4}, {f2u(1/512):#x}, v{VT+4}")
    E(f"v_fma_f32 v{VT+4}, -v{VT}, v{VT}, v{VT+4}")
    E(f"v_max_f32 v{VT+4}, 0, v{VT+4}")
    E(f"v_add_f32 v{VT+4}, {f2u(1e-5):#x}, v{VT+4}")
    E(f"v_rsq_f32 v{VT+4}, v{VT+4}")
    E("s_nop 0")
    E(f"v_mul_f32 v{VT}, v{VT}, v{VT+4}")
    E(f"v_sub_f32 v{VT}, 0, v{VT}")
    if jit:
        E(f"v_mov_b32 v12, v{VT+4}"); E(f"v_mov_b32 v15, v{VT}"); return
    for r in range(128):
        if inter and r % 5 == 0:
            for x in inter.pop(0): E(x)
        a, b = VT + 8 + 2 * (r & 3), VT + 9 + 2 * (r & 3)
        E(f"v_lshlrev_b32 v{a}, 16, v{VX+r}"); E(f"v_and_b32 v{b}, 0xffff0000, v{VX+r}")
        E(f"v_fma_f32 v{a}, v{a}, v{VT+4}, v{VT}"); E(f"v_fma_f32 v{b}, v{b}, v{VT+4}, v{VT}")
        E(f"v_cvt_pk_bf16_f32 v{VX+r}, v{a}, v{b}")

def load_x(srdreg, ld, nsteps, base=VX):
    E("s_lshl_b32 s10, s3, 5"); E("s_add_u32 s10, s10, s9")
    E("v_add_u32 v9, s10, v3"); E(f"s_mov_b32 s4, {ld}"); E("v_mul_lo_u32 v8, v9, s4")
    E("v_lshlrev_b32 v5, 4, v4"); E("v_add_u32 v8, v8, v5")
    for s in range(nsteps):
        E(f"buffer_load_dwordx4 v[{base+4*s}:{base+4*s+3}], v8, s[{srdreg}:{srdreg+3}], 0 offen offset:{32*s}")
def wgmap(a=2):
    if a == 2:
        E("s_and_b32 s9, s2, 7"); E("s_lshl_b32 s9, s9, 1"); E("s_lshr_b32 s11, s2, 7"); E("s_add_u32 s9, s9, s11"); E("s_lshl_b32 s9, s9, 7")
        E("s_lshr_b32 s11, s2, 3"); E("s_and_b32 s11, s11, 15")
    else:
        E("s_bfe_u32 s9, s2, 0x20001"); E("s_lshl_b32 s9, s9, 2"); E("s_lshr_b32 s11, s2, 6"); E("s_add_u32 s9, s9, s11"); E("s_lshl_b32 s9, s9, 7")
        E("s_bfe_u32 s11, s2, 0x30003"); E("s_and_b32 s4, s2, 1"); E("s_lshl_b32 s4, s4, 3"); E("s_add_u32 s11, s11, s4")
def load_xt(srdreg, nsteps_total, nsteps, base=VX):
    E("s_lshl_b32 s10, s3, 5"); E("s_add_u32 s10, s10, s9"); E("v_add_u32 v9, s10, v3")
    E("s_lshr_b32 s4, s10, 5"); E(f"s_mul_i32 s4, s4, {nsteps_total*1024}")
    E("v_lshlrev_b32 v8, 4, v1"); E("v_add_u32 v8, s4, v8")
    for s in range(nsteps):
        if s % 4 == 0: E(f"s_mov_b32 s4, {1024*s}")
        E(f"buffer_load_dwordx4 v[{base+4*s}:{base+4*s+3}], v8, s[{srdreg}:{srdreg+3}], s4 offen offset:{1024*(s%4)}")
def pack(acc, dst):
    for i in range(8): E(f"v_cvt_pk_bf16_f32 v{dst+i}, v{acc+2*i}, v{acc+2*i+1}")

kernels = []
WS_T = 24*MB
WS_ST = 30*MB
KSC = os.environ.get("KSC", "")
def k0():
    n = "k0_ln_kernel"; kernels.append((n, 256, 0)); prologue(n, 256)
    E("s_and_b32 s9, s2, 7"); E("s_lshl_b32 s9, s9, 8"); E("s_lshr_b32 s10, s2, 3"); E("s_lshl_b32 s10, s10, 3"); E("s_add_u32 s9, s9, s10")
    E("s_lshl_b32 s10, s3, 1"); E("s_add_u32 s9, s9, s10")
    srd(40, 16, 0, 2*MB); srd(44, 34, WS_XN, 2*MB)
    E("s_cmp_lg_u32 s2, 0"); E("s_cbranch_scc1 k0_nz")
    srd(52, 34, 20*MB, 16384)
    for i in range(4): E(f"v_mov_b32 v{40+i}, 0")
    E("v_lshlrev_b32 v5, 6, v0")
    for i in range(4): E(f"buffer_store_dwordx4 v[40:43], v5, s[52:55], 0 offen offset:{16*i}")
    L("k0_nz")
    E("s_lshl_b32 s10, s9, 10"); E("v_lshlrev_b32 v5, 4, v1")
    E("buffer_load_dwordx4 v[16:19], v5, s[40:43], s10 offen"); E("buffer_load_dwordx4 v[20:23], v5, s[40:43], s10 offen offset:1024")
    E("s_lshr_b32 s11, s9, 5"); E("s_lshl_b32 s11, s11, 15"); E("s_and_b32 s12, s9, 31"); E("s_lshl_b32 s12, s12, 4"); E("s_add_u32 s11, s11, s12")
    E("v_lshrrev_b32 v6, 1, v1"); E("v_lshlrev_b32 v6, 10, v6"); E("v_and_b32 v7, 1, v1"); E("v_lshlrev_b32 v7, 9, v7"); E("v_add_u32 v6, v6, v7")
    E("s_mov_b32 s8, 0x3f803f80")
    for q in range(4): E(f"v_mov_b32 v{24+q}, 0")
    if os.environ.get("PF", "1") == "1":
        E("s_lshl_b32 s12, s2, 12"); E("v_lshlrev_b32 v32, 4, v0"); E("v_add_u32 v32, s12, v32"); E("v_add_u32 v33, 0x100000, v32")
        k = 0
        for base, size in ((18, 512*3072),):
            srd(48, base, 0, size)
            E(f"buffer_load_dwordx4 v[{36+4*k}:{39+4*k}], v32, s[48:51], 0 offen"); k += 1
            if size > MB: E(f"buffer_load_dwordx4 v[{36+4*k}:{39+4*k}], v33, s[48:51], 0 offen"); k += 1
        E("s_lshl_b32 s60, s2, 2"); E("s_add_u32 s60, s60, s3")
        E("v_lshrrev_b32 v34, 2, v1"); E("v_and_b32 v35, 3, v1"); E("v_lshlrev_b32 v35, 4, v35")
        E("v_mul_u32_u24 v33, 2752, v34"); E("v_add_u32 v33, v33, v35"); E("v_lshlrev_b32 v34, 10, v34"); E("v_add_u32 v34, v34, v35")
        E(f"s_mov_b32 s50, {512*2752}"); E("s_mov_b32 s51, 0x00020000")
        for t in range(3):
            E(f"s_add_u32 s61, s60, {1024*t}"); E("s_lshr_b32 s62, s61, 6"); E("s_mul_i32 s62, s62, 171"); E("s_lshr_b32 s62, s62, 9")
            E("s_mul_i32 s63, s62, 192"); E("s_sub_u32 s63, s61, s63")
            E("s_and_b32 s64, s63, 31"); E(f"s_mul_i32 s64, s64, {16*2752}")
            E("s_mul_i32 s65, s62, 86"); E("s_and_b32 s65, s65, 0xfffffff0"); E("s_lshl_b32 s65, s65, 1"); E("s_add_u32 s64, s64, s65")
            E("s_lshr_b32 s65, s63, 6"); E("s_lshl_b32 s65, s65, 6"); E("s_add_u32 s64, s64, s65")
            E("s_bitcmp1_b32 s63, 5"); E("s_cselect_b32 s48, s26, s24"); E("s_cselect_b32 s49, s27, s25")
            E(f"buffer_load_dwordx4 v[{44+4*t}:{47+4*t}], v33, s[48:51], s64 offen")
        srd(48, 28, 0, 1376*1024); srd(52, 20, 0, 512*1024)
        for t in (3, 4):
            E(f"s_add_u32 s61, s60, {1024*(t-3)}"); E("s_min_u32 s66, s61, 1407")
            E("s_lshr_b32 s62, s66, 3"); E("s_mul_i32 s62, s62, 187"); E("s_lshr_b32 s62, s62, 11"); E("s_mul_i32 s63, s62, 88"); E("s_sub_u32 s63, s66, s63")
            E("s_lshl_b32 s63, s63, 14"); E("s_lshl_b32 s62, s62, 6"); E("s_add_u32 s64, s63, s62")
            if t == 3:
                E(f"buffer_load_dwordx4 v[{44+4*t}:{47+4*t}], v34, s[48:51], s64 offen")
            else:
                E("s_cmp_lt_u32 s61, 1408"); E("s_cbranch_scc0 k0_w3")
                E(f"buffer_load_dwordx4 v[{44+4*t}:{47+4*t}], v34, s[48:51], s64 offen"); E("s_branch k0_w3e")
                L("k0_w3"); E("s_sub_u32 s61, s61, 1408"); E("s_min_u32 s61, s61, 511")
                E("s_and_b32 s63, s61, 31"); E("s_lshl_b32 s63, s63, 14"); E("s_lshr_b32 s62, s61, 5"); E("s_lshl_b32 s62, s62, 6"); E("s_add_u32 s64, s63, s62")
                E(f"buffer_load_dwordx4 v[{44+4*t}:{47+4*t}], v34, s[52:55], s64 offen")
                L("k0_w3e")
        srd(52, 34, WS_T, 5*MB); E("s_lshl_b32 s60, s60, 10"); E("v_lshlrev_b32 v35, 4, v1")
        ntl = 0
        if os.environ.get("TLB", "0") == "1":
            E("v_lshlrev_b32 v33, 16, v1")
            srd(48, 34, 0, 24*MB)
            for i in range(6):
                E(f"s_mov_b32 s12, {4*MB*i}"); E(f"buffer_load_dword v{100+ntl}, v33, s[48:51], s12 offen"); ntl += 1
            for base, size in ((18, 512*3072), (20, 512*1024), (24, 512*2752), (26, 512*2752), (28, 1376*1024), (30, 2*MB)):
                srd(48, base, 0, size); E(f"buffer_load_dword v{100+ntl}, v33, s[48:51], 0 offen"); ntl += 1
        npf = int(os.environ.get("NPF", "0"))
        if npf:
            E("s_getpc_b64 s[60:61]"); L("k0_pc")
            E("v_lshlrev_b32 v34, 4, v0")
            for i in range(npf):
                E(f"global_load_dwordx4 v[{72+4*i}:{75+4*i}], v34, s[60:61]"); E("v_add_u32 v34, 0x1000, v34")
        E(f"s_waitcnt vmcnt({7+npf+ntl})")
    else:
        E("s_waitcnt vmcnt(0)")
    for r in range(2):
        for i in range(4):
            E(f"v_dot2_f32_bf16 v{24+2*r}, v{16+4*r+i}, s8, v{24+2*r}"); E(f"v_dot2_f32_bf16 v{25+2*r}, v{16+4*r+i}, v{16+4*r+i}, v{25+2*r}")
    E("s_nop 3")
    for off in (0x041F, 0x081F, 0x101F, 0x201F, 0x401F):
        for q in range(4): E(f"ds_swizzle_b32 v{28+q}, v{24+q} offset:{off:#x}")
        E("s_waitcnt lgkmcnt(0)")
        for q in range(4): E(f"v_add_f32 v{24+q}, v{24+q}, v{28+q}")
    for q in range(4): E(f"v_mov_b32 v{28+q}, v{24+q}")
    E("s_nop 1")
    for q in range(4): E(f"v_permlane32_swap_b32 v{24+q}, v{28+q}")
    E("s_nop 1")
    for q in range(4): E(f"v_add_f32 v{24+q}, v{24+q}, v{28+q}")
    for r in range(2):
        a, b = 24+2*r, 25+2*r
        E(f"v_mul_f32 v{a}, {f2u(1/512):#x}, v{a}"); E(f"v_mul_f32 v{b}, {f2u(1/512):#x}, v{b}")
        E(f"v_fma_f32 v{b}, -v{a}, v{a}, v{b}"); E(f"v_max_f32 v{b}, 0, v{b}"); E(f"v_add_f32 v{b}, {f2u(1e-5):#x}, v{b}")
        E(f"v_rsq_f32 v{b}, v{b}"); E("s_nop 0"); E(f"v_mul_f32 v{a}, v{a}, v{b}"); E(f"v_sub_f32 v{a}, 0, v{a}")
        for i in range(4):
            x = 16+4*r+i
            E(f"v_lshlrev_b32 v30, 16, v{x}"); E(f"v_and_b32 v31, 0xffff0000, v{x}")
            E(f"v_fma_f32 v30, v30, v{b}, v{a}"); E(f"v_fma_f32 v31, v31, v{b}, v{a}"); E(f"v_cvt_pk_bf16_f32 v{x}, v30, v31")
        if r == 0:
            E("s_waitcnt vmcnt(0)")
            for t in range(5):
                E(f"s_add_u32 s61, s60, {MB*t}"); E(f"buffer_store_dwordx4 v[{44+4*t}:{47+4*t}], v35, s[52:55], s61 offen{KSC}")
        E(f"buffer_store_dwordx4 v[{16+4*r}:{19+4*r}], v6, s[44:47], s11 offen offset:{16*r}{KSC}")
    epilogue_end(n)

SC = " sc1"
def lanes():
    E("v_and_b32 v1, 63, v0"); E("v_and_b32 v3, 31, v0"); E("v_bfe_u32 v4, v0, 5, 1")
WS_CNT = 20*MB
def signal(n, idx):
    E("s_waitcnt vmcnt(0)"); E("s_barrier")
    E("s_cmp_lg_u32 s3, 0"); E(f"s_cbranch_scc1 {n}_sig{idx}")
    E("s_lshl_b32 s4, s9, 1"); E(f"s_add_u32 s4, s4, {idx*4096}")
    E("v_mov_b32 v5, 1"); E("v_mov_b32 v6, s4"); E("s_mov_b64 exec, 1")
    E("buffer_atomic_add v5, v6, s[56:59], 0 offen"); E("s_mov_b64 exec, -1")
    L(f"{n}_sig{idx}")
def wait(n, idx, back=0):
    E("s_cmp_lg_u32 s3, 0"); E(f"s_cbranch_scc1 {n}_wx{idx}")
    E("s_lshl_b32 s4, s9, 1"); E("v_lshlrev_b32 v6, 8, v1"); E("v_sub_u32 v6, s4, v6"); E("v_max_i32 v6, 0, v6"); E(f"v_add_u32 v6, {idx*4096}, v6")
    E("s_mov_b32 s6, 0"); E(f"s_mov_b64 exec, {(1 << (back+1)) - 1}")
    L(f"{n}_w{idx}")
    E("buffer_load_dword v5, v6, s[56:59], 0 offen sc1"); E("s_waitcnt vmcnt(0)")
    E("v_cmp_gt_u32 vcc, 16, v5"); E("s_add_u32 s6, s6, 1"); E("s_nop 0"); E(f"s_cbranch_vccz {n}_wd{idx}")
    E("s_sleep 3"); E("s_cmp_lt_u32 s6, 0x4000"); E(f"s_cbranch_scc1 {n}_w{idx}")
    L(f"{n}_wd{idx}"); E("s_mov_b64 exec, -1")
    L(f"{n}_wx{idx}")
    E("s_waitcnt vmcnt(0)"); E("s_barrier")
def load_xt2(srdreg, nsteps_total, nsteps, base=VX, sc=SC):
    E("s_lshr_b32 s4, s10, 5"); E(f"s_mul_i32 s4, s4, {nsteps_total*1024}")
    E("v_lshlrev_b32 v8, 4, v1"); E("v_add_u32 v8, s4, v8")
    for s in range(nsteps):
        if s % 4 == 0: E(f"s_mov_b32 s4, {1024*s}")
        E(f"buffer_load_dwordx4 v[{base+4*s}:{base+4*s+3}], v8, s[{srdreg}:{srdreg+3}], s4 offen offset:{1024*(s%4)}{sc}")
def issue(groups):
    for g in groups:
        for x in g: E(x)

def mega():
    global VW
    n = "km_block_kernel"; kernels.append((n, 256, 163840)); prologue(n, 256)
    stamp(n); wgmap(2)
    E("s_mov_b32 s61, s11")
    E("s_lshl_b32 s10, s3, 5"); E("s_add_u32 s10, s10, s9")
    srd(56, 34, WS_CNT, 16384)
    E("s_mul_i32 s11, s61, 3")
    srd(40, 34, WS_XN, 2*MB); srd(44, 18, 0, 512*3072); srd(48, 34, 0, 6*MB)
    srd(64, 34, WS_T, 5*MB); E("s_mul_i32 s68, s61, 196608"); E("s_mul_i32 s69, s61, 90112"); E(f"s_add_u32 s69, s69, {3072*1024}"); E("s_lshl_b32 s70, s61, 15"); E(f"s_add_u32 s70, s70, {4480*1024}")
    E("s_lshl_b32 s62, s61, 6")
    E("s_mul_i32 s63, s61, 86"); E("s_and_b32 s63, s63, 0xfffffff0"); E("s_lshl_b32 s63, s63, 1")
    E("v_lshlrev_b32 v2, 4, v0")
    slotof = {0: 3, 1: 4, 2: 1, 3: 2, 4: 0, 5: 3}
    def tl(sc, add, lds, nj): return [[x.replace(" v7,", " v2,") for x in g] for g in dma_list(64, sc, add, lds, nj, 64)]
    def regl(r): return tl(68, r*32768, slotof[r]*32768, 8)
    p1pf = regl(0) + regl(1)
    dma_setup_w(3072)
    E("s_lshl_b32 s60, s11, 6")
    allw = dma_list_w(44, 60, 0, 0, 512, 3072)
    E("s_lshr_b32 s4, s10, 5"); E(f"s_mul_i32 s4, s4, {32*1024}"); E("v_lshlrev_b32 v8, 4, v1"); E("v_add_u32 v8, s4, v8")
    def chunk(c):
        r = list(allw[6*c:6*c+6])
        for s_ in range(8*c, 8*c+8):
            r.append([f"s_mov_b32 s4, {1024*(s_ & ~3)}", f"buffer_load_dwordx4 v[{VX+4*s_}:{VX+4*s_+3}], v8, s[40:43], s4 offen offset:{1024*(s_%4)}"])
        return r
    issue(chunk(0) + chunk(1))
    E("v_add_u32 v9, s10, v3")
    w_addr(False, 10, 192); E("v_add_u32 v13, 0xc000, v10")
    E("v_lshlrev_b32 v11, 5, v9"); E("v_lshlrev_b32 v5, 4, v4"); E("v_add_u32 v11, v11, v5")
    E("v_bfe_u32 v12, v0, 4, 1"); E("v_lshlrev_b32 v12, 16, v12"); E("v_lshlrev_b32 v5, 8, v4"); E("v_add_u32 v12, v12, v5")
    E("v_and_b32 v5, 15, v0"); E("v_lshlrev_b32 v5, 4, v5"); E("v_add_u32 v12, v12, v5")
    E("s_lshl_b32 s13, s10, 5"); E("v_add_u32 v12, s13, v12")
    ACCJ = (176, 192, 208); PT = 224
    stamp(n, "p1")
    E("s_cmp_eq_u32 s61, 10"); E(f"s_cbranch_scc1 {n}_p1b"); E("s_cmp_gt_u32 s61, 10"); E(f"s_cbranch_scc1 {n}_p1c")
    for vn, sws in (("a", (False, False, False)), ("b", (False, False, True)), ("c", (True, True, True))):
        L(f"{n}_p1{vn}")
        for c in range(4):
            E(f"s_waitcnt vmcnt({14 if c < 3 else 0})"); E("s_barrier")
            if vn == "a": stamp(n, "p1")
            items = []
            for s in range(8*c, 8*c+8):
                for j in range(3):
                    items.append(((10, 3072*s + 64*j) if s < 16 else (13, 3072*(s-16) + 64*j)) + (VX+4*s, ACCJ[j]))
            nxt = chunk(c + 2) if c < 2 else []
            for i in mfma_items(items, False, lambda i: sws[i % 3], lambda i: c == 0 and i < 3, 192):
                if nxt and i % 3 != 2: issue([nxt.pop(0)])
            assert not nxt
        E("s_nop 15")
        if vn == "a": stamp(n, "p1")
        for j, sw in enumerate(sws):
            E(f"s_add_u32 s12, s11, {j}"); pack(ACCJ[j], PT + 8*j); T_ = PT + 8*j
            if not sw:
                E("s_lshr_b32 s14, s12, 4"); E("s_lshl_b32 s14, s14, 21"); E("s_and_b32 s15, s12, 15"); E("s_lshl_b32 s15, s15, 17")
                E("s_add_u32 s14, s14, s15"); E("s_add_u32 s15, s14, 65536")
                E(f"buffer_store_dwordx4 v[{T_}:{T_+3}], v11, s[48:51], s14 offen{SC}")
                E(f"buffer_store_dwordx4 v[{T_+4}:{T_+7}], v11, s[48:51], s15 offen{SC}")
            else:
                E("s_sub_u32 s14, s12, 32"); E("s_lshl_b32 s14, s14, 17"); E(f"s_add_u32 s14, s14, {WS_V}")
                E(f"buffer_store_dwordx4 v[{T_}:{T_+3}], v12, s[48:51], s14 offen{SC}")
                E(f"buffer_store_dwordx4 v[{T_+4}:{T_+7}], v12, s[48:51], s14 offen offset:512{SC}")
        if vn != "c": E(f"s_branch {n}_p1e")
    L(f"{n}_p1e")
    stamp(n, "p1")
    stamp(n); signal(n, 0); stamp(n)
    issue(tl(70, 0, 0, 8))
    E("v_mov_b32 v5, 0x3f803f80")
    for r in range(144): E(f"v_accvgpr_write_b32 a{80+r}, v5")
    wait(n, 0, 2); stamp(n); stamp(n, "p2")
    S, O, PK = 96, 240, 16
    srd(40, 34, WS_Q, 2*MB); srd(44, 34, WS_K - 8192, 2*MB + 8192); srd(48, 34, WS_V - 8192, 2*MB + 8192); srd(52, 34, WS_O, 2*MB)
    E("v_lshlrev_b32 v5, 2, v4"); E("v_sub_u32 v11, v3, v5")
    E("s_sub_i32 s15, 256, s10"); E("s_max_i32 s15, s15, 0")
    E("v_lshlrev_b32 v6, 4, v4")
    E("s_lshl_b32 s11, s61, 1")
    E("s_lshl_b32 s12, s11, 11"); E("s_add_u32 s12, s12, s10")
    E("v_add_u32 v5, s12, v3"); E("v_lshlrev_b32 v5, 5, v5"); E("v_add_u32 v8, v5, v6"); E("v_add_u32 v13, 0x10000, v8")
    E("s_lshl_b32 s14, s15, 5")
    E("v_and_b32 v5, 15, v0"); E("v_lshlrev_b32 v5, 4, v5"); E("v_lshlrev_b32 v9, 8, v4"); E("v_add_u32 v5, v5, v9")
    E("s_lshl_b32 s13, s11, 16"); E("s_lshl_b32 s12, s10, 5"); E("s_add_u32 s13, s13, s12"); E("v_add_u32 v9, s13, v5"); E("v_add_u32 v14, 0x10000, v9")
    E("s_mov_b32 s66x, 0") if False else None
    E("s_mov_b32 s72, 0x0000ffff"); E("s_mov_b32 s73, 0x0000ffff")
    def qk(hh):
        va = (8, 13)[hh]
        r = [[f"buffer_load_dwordx4 a[{72+4*hh}:{75+4*hh}], v{va}, s[40:43], 0 offen{SC}"]]
        for kb in range(9):
            r.append([f"s_max_u32 s12, s14, {kb*1024}", f"buffer_load_dwordx4 a[{36*hh+4*kb}:{36*hh+4*kb+3}], v{va}, s[44:47], s12 offen{SC}"])
        return r
    def vv(hh):
        return [["s_mov_b64 exec, s[72:73]", f"s_max_u32 s12, s14, {512*t}",
                 f"buffer_load_dwordx4 a[{80+72*hh+4*t}:{80+72*hh+4*t+3}], v{(9,14)[hh]}, s[48:51], s12 offen{SC}", "s_mov_b64 exec, -1"] for t in range(18)]
    issue(qk(0)); issue(vv(0))
    E("s_add_u32 s13, s10, s11"); E("s_lshl_b32 s13, s13, 10"); E("v_lshlrev_b32 v5, 4, v1"); E("v_add_u32 v10, s13, v5")
    stamp(n, "p2")
    for hh in range(2):
        pf = (qk(1) + vv(1)) if hh == 0 else (regl(1) + regl(2) + regl(3))
        npf0 = len(pf)
        E(f"v_mov_b32 v12, {f2u(-1e30):#x}")
        for kb in range(9):
            E(f"s_waitcnt vmcnt({(26-kb) if hh == 0 else (8 + 1 + 18 + 8 - kb)})")
            E(f"v_mfma_f32_32x32x16_bf16 v[{S+16*kb}:{S+16*kb+15}], a[{36*hh+4*kb}:{36*hh+4*kb+3}], a[{72+4*hh}:{75+4*hh}], 0")
        E("s_nop 7"); E("s_nop 3"); stamp(n, "p2")
        for kb in range(8):
            E(f"s_cmp_ge_u32 s10, {256-32*kb}"); E(f"s_cbranch_scc1 {n}_ok{hh}_{kb}")
            for i in range(16): E(f"v_mov_b32 v{S+16*kb+i}, v12")
            L(f"{n}_ok{hh}_{kb}")
        for i in range(16):
            c = 8*(i >> 2) + (i & 3)
            E(f"v_cmp_le_i32 vcc, {c}, v11"); E("s_nop 1")
            E(f"v_cndmask_b32 v{S+128+i}, v12, v{S+128+i}, vcc"); E(f"v_cndmask_b32 v{S+i}, v{S+i}, v12, vcc")
            if i % 3 == 2 and pf: issue([pf.pop(0)])
        for c in range(4): E(f"v_max_f32 v{PK+c}, v{S+c}, v{S+4+c}")
        for r in range(8, 144, 8):
            for c in range(4): E(f"v_max3_f32 v{PK+c}, v{PK+c}, v{S+r+c}, v{S+r+4+c}")
            if r % 24 == 0 and pf: issue([pf.pop(0)])
        E(f"v_max_f32 v{PK}, v{PK}, v{PK+1}"); E(f"v_max_f32 v{PK+2}, v{PK+2}, v{PK+3}"); E(f"v_max_f32 v12, v{PK}, v{PK+2}"); E("v_mov_b32 v15, v12")
        E("s_nop 1"); E("v_permlane32_swap_b32 v12, v15"); E("s_nop 1"); E("v_max_f32 v12, v12, v15")
        E(f"s_mov_b32 s13, {f2u(0.25*LOG2E):#x}"); E("v_mul_f32 v12, s13, v12"); stamp(n, "p2")
        for r in range(0, 144, 4):
            for c in range(4): E(f"v_fma_f32 v{S+r+c}, v{S+r+c}, s13, -v12")
            for c in range(4): E(f"v_exp_f32 v{S+r+c}, v{S+r+c}")
            if r >= 4:
                p = r - 4; d = S + 16*(p//16) + (p % 16)//2
                E(f"v_cvt_pk_bf16_f32 v{d}, v{S+p}, v{S+p+1}"); E(f"v_cvt_pk_bf16_f32 v{d+1}, v{S+p+2}, v{S+p+3}")
            if r % 8 == 0 and pf: issue([pf.pop(0)])
        p = 140; d = S + 16*(p//16) + (p % 16)//2
        E("s_nop 0"); E(f"v_cvt_pk_bf16_f32 v{d}, v{S+p}, v{S+p+1}"); E(f"v_cvt_pk_bf16_f32 v{d+1}, v{S+p+2}, v{S+p+3}")
        npf_left = len(pf)
        stamp(n, "p2")
        assert npf_left == 0
        E(f"s_waitcnt vmcnt({npf0 if hh == 0 else (9+npf0)})"); stamp(n, "p2")
        if hh == 0: pf = regl(0)
        for t in range(18):
            if pf and t % 2 == 1: issue([pf.pop(0)])
            bb = S + 16*(t//2) + 4*(t % 2)
            E(f"v_mfma_f32_32x32x16_bf16 v[{O}:{O+15}], a[{80+72*hh+4*t}:{80+72*hh+4*t+3}], v[{bb}:{bb+3}], {'0' if t == 0 else f'v[{O}:{O+15}]'}")
        E("s_nop 15"); E(f"v_rcp_f32 v12, v{O+8}"); E("s_nop 0")
        for i in range(8): E(f"v_mul_f32 v{O+i}, v{O+i}, v12")
        for i in range(4): E(f"v_cvt_pk_bf16_f32 v{PK+i}, v{O+2*i}, v{O+2*i+1}")
        assert not pf
        E(f"buffer_store_dwordx4 v[{PK}:{PK+3}], v10, s[52:55], 0 offen offset:{1024*hh}{SC}")
        E("s_nop 1")
    stamp(n); signal(n, 1); stamp(n)
    srd(40, 34, WS_O, 2*MB); srd(48, 34, WS_H, 2*MB); srd(52, 16, 0, 2*MB)
    E("v_add_u32 v9, s10, v3")
    w_addr(True, 10)
    E("v_lshlrev_b32 v12, 10, v9"); E("v_lshlrev_b32 v5, 3, v4"); E("v_add_u32 v12, v12, v5"); E("s_lshl_b32 s13, s61, 11")
    for q in range(4): E(f"buffer_load_dwordx2 v[{VT+8+2*q}:{VT+9+2*q}], v12, s[52:55], s62 offen offset:{16*q}")
    wait(n, 1); stamp(n)
    load_xt2(40, 32, 32)
    E("s_waitcnt vmcnt(31)")
    items = [(10, 1024*s, VX+4*s, ACC0) for s in range(32)]
    for i in mfma_items(items, True, lambda i: False, lambda i: i == 0):
        if i + 1 < 32: E(f"s_waitcnt vmcnt({30-i})")
    E("s_nop 15")
    for i in range(8):
        E(f"v_lshlrev_b32 v5, 16, v{VT+8+i}"); E(f"v_and_b32 v6, 0xffff0000, v{VT+8+i}")
        E(f"v_add_f32 v{ACC0+2*i}, v{ACC0+2*i}, v5"); E(f"v_add_f32 v{ACC0+2*i+1}, v{ACC0+2*i+1}, v6")
    pack(ACC0, VT)
    E(f"buffer_store_dwordx4 v[{VT}:{VT+3}], v8, s[48:51], s13 offen{SC}")
    E(f"buffer_store_dwordx4 v[{VT+4}:{VT+7}], v8, s[48:51], s13 offen offset:1024{SC}")
    E("s_mov_b32 s8, 0x3f803f80"); srd(44, 34, WS_ST, 262144)
    for q in range(4): E(f"v_mov_b32 v{240+q}, 0")
    for i in range(8):
        E(f"v_dot2_f32_bf16 v{240+(i&1)}, v{VT+i}, s8, v{240+(i&1)}"); E(f"v_dot2_f32_bf16 v{242+(i&1)}, v{VT+i}, v{VT+i}, v{242+(i&1)}")
    E("s_lshl_b32 s14, s9, 7"); E("s_lshl_b32 s15, s61, 10"); E("s_add_u32 s14, s14, s15"); E("s_lshl_b32 s15, s3, 8"); E("s_add_u32 s14, s14, s15")
    E("v_lshlrev_b32 v13, 3, v3"); E("s_nop 1")
    E("v_add_f32 v244, v240, v241"); E("v_add_f32 v245, v242, v243"); E("v_mov_b32 v246, v244"); E("v_mov_b32 v247, v245"); E("s_nop 1")
    E("v_permlane32_swap_b32 v244, v246"); E("v_permlane32_swap_b32 v245, v247"); E("s_nop 1")
    E("v_add_f32 v244, v244, v246"); E("v_add_f32 v245, v245, v247")
    E(f"buffer_store_dwordx2 v[244:245], v13, s[44:47], s14 offen{SC}")
    stamp(n); signal(n, 2); stamp(n)
    issue(regl(4))
    wait(n, 2); stamp(n); stamp(n, "p4")
    srd(40, 34, WS_H, 2*MB); srd(52, 34, WS_HH, 2048*2752)
    E("s_lshl_b32 s14, s9, 7"); E("s_lshl_b32 s15, s3, 8"); E("s_add_u32 s14, s14, s15")
    E("v_lshlrev_b32 v13, 3, v3"); E("v_lshlrev_b32 v5, 13, v4"); E("v_add_u32 v13, v13, v5")
    for k in range(8):
        if k % 4 == 0: E(f"s_add_u32 s15, s14, {1024*k}")
        E(f"buffer_load_dwordx2 v[{240+2*k}:{241+2*k}], v13, s[44:47], s15 offen offset:{1024*(k%4)}{SC}")
    E("s_lshr_b32 s4, s10, 5"); E(f"s_mul_i32 s4, s4, {32*1024}"); E("v_lshlrev_b32 v8, 4, v1"); E("v_add_u32 v8, s4, v8")
    def xld(s_): return [f"s_mov_b32 s4, {1024*s_}", f"buffer_load_dwordx4 v[{VX+4*s_}:{VX+4*s_+3}], v8, s[40:43], s4 offen{SC}"]
    for s_ in range(16): issue([xld(s_)])
    E("s_lshr_b32 s4, s10, 5"); E(f"s_mul_i32 s4, s4, {86*1024}"); E("v_lshlrev_b32 v11, 4, v1"); E("v_add_u32 v11, s4, v11")
    stamp(n, "p4")
    E("s_waitcnt vmcnt(16)")
    for w in (4, 2, 1):
        for k in range(w):
            E(f"v_add_f32 v{240+2*k}, v{240+2*k}, v{240+2*(k+w)}"); E(f"v_add_f32 v{241+2*k}, v{241+2*k}, v{241+2*(k+w)}")
    E("v_mov_b32 v242, v240"); E("v_mov_b32 v243, v241"); E("s_nop 1")
    E("v_permlane32_swap_b32 v240, v242"); E("v_permlane32_swap_b32 v241, v243"); E("s_nop 1")
    E("v_add_f32 v240, v240, v242"); E("v_add_f32 v241, v241, v243")
    E(f"v_mul_f32 v240, {f2u(1/512):#x}, v240"); E(f"v_mul_f32 v241, {f2u(1/512):#x}, v241")
    E("v_fma_f32 v241, -v240, v240, v241"); E("v_max_f32 v241, 0, v241"); E(f"v_add_f32 v241, {f2u(1e-5):#x}, v241")
    E("v_rsq_f32 v12, v241"); E("s_nop 0"); E("v_mul_f32 v240, v240, v12"); E("v_sub_f32 v15, 0, v240")
    E(f"s_mov_b32 s13, {f2u(-LOG2E):#x}")
    stamp(n, "p4")
    E("s_waitcnt vmcnt(14)")
    stamp(n, "p4")
    def norm(s):
        r = []
        for q in range(4):
            x = VX + 4*s + q; a_, b_ = 240 + 2*q, 241 + 2*q
            r += [f"v_lshlrev_b32 v{a_}, 16, v{x}", f"v_and_b32 v{b_}, s14, v{x}"]
        for q in range(4):
            a_, b_ = 240 + 2*q, 241 + 2*q
            r += [f"v_fma_f32 v{a_}, v{a_}, v12, v15", f"v_fma_f32 v{b_}, v{b_}, v12, v15"]
        for q in range(4):
            r += [f"v_cvt_pk_bf16_f32 v{VX+4*s+q}, v{240+2*q}, v{241+2*q}"]
        return r
    def epi(j, G, U):
        r = []
        for i in range(16): r.append(f"v_mul_f32 v{G+i}, s13, v{G+i}")
        for i in range(16): r.append(f"v_exp_f32 v{G+i}, v{G+i}")
        for i in range(16): r.append(f"v_add_f32 v{G+i}, 1.0, v{G+i}")
        for i in range(16): r.append(f"v_rcp_f32 v{G+i}, v{G+i}")
        for i in range(16): r.append(f"v_mul_f32 v{G+i}, v{G+i}, v{U+i}")
        for i in range(8): r.append(f"v_cvt_pk_bf16_f32 v{248+i}, v{G+2*i}, v{G+2*i+1}")
        r += [f"s_add_u32 s12, s63, {64*j}", "s_lshl_b32 s12, s12, 5",
              f"buffer_store_dwordx4 v[248:251], v11, s[52:55], s12 offen{SC}",
              f"buffer_store_dwordx4 v[252:255], v11, s[52:55], s12 offen offset:1024{SC}"]
        return r
    E("s_mov_b32 s14, 0xffff0000")
    for x in norm(0) + norm(1): E(x)
    fill = []
    w5 = tl(69, 0, 32768, 16) + tl(69, 65536, 131072, 6)
    for j in range(3):
        G, U = (176, 192) if j % 2 == 0 else (208, 224)
        sg, su = slotof[2*j]*32768, slotof[2*j+1]*32768
        E(f"v_add_u32 v13, {sg}, v10"); E(f"v_add_u32 v14, {su}, v10")
        items = []
        for s in range(32): items += [(13, 1024*s, VX+4*s, G), (14, 1024*s, VX+4*s, U)]
        for i in mfma_items(items, True, lambda i: False, lambda i: i < 2):
            if j == 0 and i//2 + 2 < 32:
                s_ = i//2
                if i % 2 == 0:
                    if s_ + 16 < 32: issue([xld(s_ + 16)])
                    E(f"s_waitcnt vmcnt({min(s_ + 16, 31) - (s_ + 2)})")
                for x in norm(s_ + 2)[10*(i % 2):10*(i % 2)+10]: E(x)
            if j > 0 and i >= 4:
                for _ in range(2):
                    if fill: E(fill.pop(0))
            if j == 2 and i >= 2 and i % 2 == 0 and w5: issue([w5.pop(0)])
        assert not fill
        stamp(n, "p4")
        if j == 0: E("s_barrier"); issue(regl(5))
        if j == 1: E("s_waitcnt vmcnt(2)"); E("s_barrier")
        fill = epi(j, G, U)
    E("s_nop 15")
    for x in fill: E(x)
    stamp(n); stamp(n, "p4"); signal(n, 3); stamp(n); stamp(n, "p4")
    NX = 44; X = 56; oldVW = VW; VW = 16; A = 232; T = 48
    assert not w5
    wait(n, 3); stamp(n)
    srd(40, 34, WS_HH, 2048*2752); srd(48, 34, WS_H, 2*MB); srd(52, 30, 0, 2*MB)
    load_xt2(40, 86, NX, X)
    E("v_add_u32 v13, 0x8000, v10"); E("v_add_u32 v14, 0x20000, v10"); E("v_add_u32 v9, s10, v3")
    E("v_lshlrev_b32 v12, 10, v9"); E("v_lshlrev_b32 v5, 3, v4"); E("v_add_u32 v12, v12, v5")
    E("s_lshl_b32 s13, s10, 10"); E("s_lshl_b32 s14, s61, 11"); E("s_add_u32 s13, s13, s14"); E("v_lshlrev_b32 v11, 4, v1")
    E(f"buffer_load_dwordx4 v[248:251], v11, s[48:51], s13 offen{SC}"); E(f"buffer_load_dwordx4 v[252:255], v11, s[48:51], s13 offen offset:1024{SC}")
    E("s_waitcnt vmcnt(45)")
    items = [((13, 1024*s) if s < 64 else (14, 1024*(s-64))) + (X+4*(s % NX), A) for s in range(86)]
    for i in mfma_items(items, True, lambda i: False, lambda i: i == 0):
        if i + NX < 86:
            s = i + NX; E(f"s_mov_b32 s4, {1024*s}"); E(f"buffer_load_dwordx4 v[{X+4*i}:{X+4*i+3}], v8, s[40:43], s4 offen{SC}")
        if i + 1 < 86: E(f"s_waitcnt vmcnt({(45 if i + 1 <= 42 else 44) if i + 1 < NX else 85-(i+1)})")
    VW = oldVW
    E("s_nop 15")
    for i in range(8):
        E(f"v_lshlrev_b32 v5, 16, v{248+i}"); E(f"v_and_b32 v6, 0xffff0000, v{248+i}")
        E(f"v_add_f32 v{A+2*i}, v{A+2*i}, v5"); E(f"v_add_f32 v{A+2*i+1}, v{A+2*i+1}, v6")
    pack(A, T)
    for q in range(4): E(f"buffer_store_dwordx2 v[{T+2*q}:{T+2*q+1}], v12, s[52:55], s62 offen offset:{16*q}")
    epilogue_end(n)

k0(); mega()
hdr = open("cdna_kernels/" + NAME + ".s.ref").read().split("\n")
head = [l for l in hdr if l.startswith(";") and "@launch" not in l and "Override" not in l and "grid=ceil" not in l]
import os
dup = int(os.environ.get("DUP", "-1"))
ll = []
for idx, (k, g, l) in enumerate(kernels):
    ll += [f"; @launch kernel={k} grid=({g},1,1) block=(256,1,1) lds={l}"] * (5 if idx == dup else 1)
if dup == 99: ll = ll + ll
if STAMPK:
    ll = ll + [x for x in ll if STAMPK in x]
txt = head + ll
txt += ['.amdgcn_target "amdgcn-amd-amdhsa--gfx950"', ".text"] + out + ['.section .rodata,"a"']
for k, g, l in kernels:
    txt += [".p2align 6", f".amdhsa_kernel {k}", f"  .amdhsa_next_free_vgpr {512 if k.startswith('km') else 256}", "  .amdhsa_next_free_sgpr 102", "  .amdhsa_accum_offset 256",
            "  .amdhsa_group_segment_fixed_size 0", "  .amdhsa_kernarg_size 80", "  .amdhsa_user_sgpr_count 2",
            "  .amdhsa_user_sgpr_kernarg_segment_ptr 1", "  .amdhsa_system_sgpr_workgroup_id_x 1", ".end_amdhsa_kernel"]
open(os.environ.get("OUT", "cdna_kernels/" + NAME + ".s"), "w").write("\n".join(txt) + "\n")
```

```python
import sys, os
NAME = "sequential_preLN__sliding_block__glu_gated_glu__prompt"
out = []
def E(s): out.append("    " + s)
def L(s): out.append(s + ":")
MB = 1 << 20
WS_Q, WS_K, WS_V, WS_O, WS_H, WS_HH = 0, 2*MB, 4*MB, 6*MB, 8*MB, 10*MB
WS_XN = 16*MB
LOG2E = 1.4426950408889634
import struct
def f2u(f): return struct.unpack("<I", struct.pack("<f", f))[0]

def prologue(name, nwg):
    out.append(".p2align 8"); out.append(f".globl {name}"); out.append(f".type {name},@function"); L(name)
    E(f"s_cmp_ge_u32 s2, {nwg}"); E(f"s_cbranch_scc1 {name}_done")
    E("s_load_dwordx16 s[16:31], s[0:1], 0"); E("s_load_dwordx4 s[32:35], s[0:1], 64")
    E("v_and_b32 v1, 63, v0")
    E("v_lshrrev_b32 v2, 6, v0")
    E("v_and_b32 v3, 31, v0")
    E("v_readfirstlane_b32 s3, v2")
    E("v_bfe_u32 v4, v0, 5, 1")
    E("s_waitcnt lgkmcnt(0)")
STAMPK = os.environ.get("STAMP", "")
nst = [0]
def stamp(name, tag=""):
    if name != STAMPK: return
    if tag != os.environ.get("STAG", "") and nst[0] > 0 and tag != "end": return
    E("s_memrealtime s[74:75]" if os.environ.get("ABS") else "s_memtime s[74:75]"); E("s_waitcnt lgkmcnt(0)"); E(f"s_mov_b32 s{76+nst[0]}, s74"); nst[0] += 1
def epilogue_end(name):
    if name == STAMPK:
        stamp(name, "end")
        srd(40, 32, 0, 256)
        if os.environ.get("ABS"):
            k = int(os.environ["ABS"])
            E("s_and_b32 s4, s2, 7"); E("s_cmp_lg_u32 s4, 0"); E(f"s_cbranch_scc1 {name}_done"); E("s_cmp_lg_u32 s3, 0"); E(f"s_cbranch_scc1 {name}_done")
            E("s_cmp_ge_u32 s2, 256"); E(f"s_cbranch_scc1 {name}_done")
            E("s_lshr_b32 s4, s2, 4"); E("s_lshl_b32 s4, s4, 2"); E("s_and_b32 s5, s2, 8"); E("s_cmp_lg_u32 s5, 0"); E(f"s_cbranch_scc1 {name}_done")
            E("v_mov_b32 v6, s4"); E(f"v_mov_b32 v5, s{76+k}"); E("buffer_store_dword v5, v6, s[40:43], 0 offen"); E(f"s_branch {name}_done")
        E("s_cmp_lg_u32 s2, 8"); E(f"s_cbranch_scc1 {name}_done"); E("s_cmp_lg_u32 s3, 0"); E(f"s_cbranch_scc1 {name}_done")
        srd(40, 32, 0, 256)
        for i in range(nst[0]):
            E(f"s_sub_u32 s4, s{76+i}, s76"); E("v_mov_b32 v5, s4"); E(f"v_mov_b32 v6, {4*i}"); E("buffer_store_dword v5, v6, s[40:43], 0 offen")
    L(f"{name}_done"); E("s_endpgm")
def srd(d, base, off, size):
    if off >= 0:
        E(f"s_add_u32 s{d}, s{base}, {off}"); E(f"s_addc_u32 s{d+1}, s{base+1}, 0")
    else:
        E(f"s_sub_u32 s{d}, s{base}, {-off}"); E(f"s_subb_u32 s{d+1}, s{base+1}, 0")
    E(f"s_mov_b32 s{d+2}, {size}"); E(f"s_mov_b32 s{d+3}, 0x00020000")

VX, VW, ACC0, ACC1, VT = 16, 144, 176, 192, 208

def w_addr(perm, vdst, RB=64):
    E("v_bfe_u32 v5, v0, 2, 2")
    E(f"v_lshlrev_b32 v6, {2 if perm else 3}, v4")
    E("v_add_u32 v5, v5, v6")
    E(f"v_mul_u32_u24 v5, {RB}, v5")
    E("v_bfe_u32 v6, v0, 4, 1")
    E("v_lshlrev_b32 v6, 5, v6")
    E("v_add_u32 v5, v5, v6")
    E("v_and_b32 v6, 3, v0")
    E("v_lshlrev_b32 v6, 3, v6")
    E(f"v_add_u32 v{vdst}, v5, v6")

def dma_setup(ldw):
    E("v_lshrrev_b32 v5, 2, v0"); E(f"s_mov_b32 s4, {ldw}"); E("v_mul_lo_u32 v5, v5, s4")
    E("v_and_b32 v6, 3, v0"); E("v_lshlrev_b32 v6, 4, v6"); E("v_add_u32 v7, v5, v6")
    E("s_lshl_b32 s5, s3, 10")
def dma_region(srdreg, scol, ldsbase, nj, ldw):
    E(f"s_mov_b32 s6, s{scol}"); E(f"s_add_u32 s7, s5, {ldsbase}")
    for j in range(nj):
        E("s_mov_b32 m0, s7");
        if j + 1 < nj: E("s_add_u32 s7, s7, 4096")
        else: E("s_nop 0")
        E(f"buffer_load_dwordx4 v7, s[{srdreg}:{srdreg+3}], s6 offen lds")
        if j + 1 < nj: E(f"s_add_u32 s6, s6, {64*ldw}")

def dma_list(srdreg, scolreg, coladd, ldsbase, nj, ldw):
    r = []
    for j in range(nj):
        r.append([f"s_add_u32 s6, s{scolreg}, {coladd + j*64*ldw}", f"s_add_u32 m0, s5, {ldsbase + j*4096}", "s_nop 0",
                  f"buffer_load_dwordx4 v7, s[{srdreg}:{srdreg+3}], s6 offen lds"])
    return r
def dma_setup_w(ldw):
    E("s_lshl_b32 s5, s3, 10"); E("s_mov_b32 s4, 0xAAAB"); E(f"s_mov_b32 s6, {ldw}")
    for t, vr in enumerate((7, 14, 15)):
        E(f"v_add_u32 v5, {256*t}, v0"); E("v_mul_lo_u32 v6, v5, s4"); E("v_lshrrev_b32 v6, 19, v6")
        E("v_mul_u32_u24 v9, 12, v6"); E("v_sub_u32 v5, v5, v9"); E("v_lshlrev_b32 v5, 4, v5")
        E("v_mul_lo_u32 v6, v6, s6"); E(f"v_add_u32 v{vr}, v5, v6")
def dma_list_w(srdreg, scolreg, ldsbase, row0, nrows, ldw):
    r = []
    for j in range(nrows*12//256):
        r.append([f"s_add_u32 s6, s{scolreg}, {(row0 + (j//3)*64)*ldw}", f"s_add_u32 m0, s5, {ldsbase + j*4096}", "s_nop 0",
                  f"buffer_load_dwordx4 v{(7,14,15)[j%3]}, s[{srdreg}:{srdreg+3}], s6 offen lds"])
    return r
def mfma_items(items, perm, swap_of, first_of, RB=64):
    d2 = 8*RB if perm else 4*RB
    n = len(items); D = 6
    def rd(i):
        va, off, _, _ = items[i]; w = VW + 4 * (i % 8)
        E(f"ds_read_b64_tr_b16 v[{w}:{w+1}], v{va} offset:{off}")
        E(f"ds_read_b64_tr_b16 v[{w+2}:{w+3}], v{va} offset:{off+d2}")
    for i in range(min(D, n)): rd(i)
    for i in range(n):
        va, off, x, acc = items[i][:4]; w = VW + 4 * (i % 8)
        E(f"s_waitcnt lgkmcnt({2*(min(i+D-1, n-1)-i)})")
        c = "0" if first_of(i) else f"v[{acc}:{acc+15}]"
        if swap_of(i): E(f"v_mfma_f32_32x32x16_bf16 v[{acc}:{acc+15}], v[{x}:{x+3}], v[{w}:{w+3}], {c}")
        else:          E(f"v_mfma_f32_32x32x16_bf16 v[{acc}:{acc+15}], v[{w}:{w+3}], v[{x}:{x+3}], {c}")
        if i + D < n: rd(i + D)
        yield i

def ln_regs(ndma, inter=[], jit=False):
    E("s_mov_b32 s8, 0x3f803f80")
    for q in range(4): E(f"v_mov_b32 v{VT+q}, 0"); E(f"v_mov_b32 v{VT+4+q}, 0")
    inter = list(inter); nd = 0
    for g in range(4):
        E(f"s_waitcnt vmcnt({min(63, 24-8*g+nd)})")
        for r in range(32*g, 32*g+32):
            if inter and r % 8 == 4:
                for x in inter.pop(0): E(x)
                nd += 1
            E(f"v_dot2_f32_bf16 v{VT+(r&3)}, v{VX+r}, s8, v{VT+(r&3)}")
            E(f"v_dot2_f32_bf16 v{VT+4+(r&3)}, v{VX+r}, v{VX+r}, v{VT+4+(r&3)}")
    E("s_nop 3")
    E(f"v_add_f32 v{VT}, v{VT}, v{VT+1}"); E(f"v_add_f32 v{VT+2}, v{VT+2}, v{VT+3}")
    E(f"v_add_f32 v{VT+4}, v{VT+4}, v{VT+5}"); E(f"v_add_f32 v{VT+6}, v{VT+6}, v{VT+7}")
    E(f"v_add_f32 v{VT}, v{VT}, v{VT+2}"); E(f"v_add_f32 v{VT+4}, v{VT+4}, v{VT+6}")
    E(f"v_mov_b32 v{VT+1}, v{VT}"); E(f"v_mov_b32 v{VT+5}, v{VT+4}")
    E("s_nop 1")
    E(f"v_permlane32_swap_b32 v{VT}, v{VT+1}"); E(f"v_permlane32_swap_b32 v{VT+4}, v{VT+5}")
    E("s_nop 1")
    E(f"v_add_f32 v{VT}, v{VT}, v{VT+1}"); E(f"v_add_f32 v{VT+4}, v{VT+4}, v{VT+5}")
    E(f"v_mul_f32 v{VT}, {f2u(1/512):#x}, v{VT}")
    E(f"v_mul_f32 v{VT+4}, {f2u(1/512):#x}, v{VT+4}")
    E(f"v_fma_f32 v{VT+4}, -v{VT}, v{VT}, v{VT+4}")
    E(f"v_max_f32 v{VT+4}, 0, v{VT+4}")
    E(f"v_add_f32 v{VT+4}, {f2u(1e-5):#x}, v{VT+4}")
    E(f"v_rsq_f32 v{VT+4}, v{VT+4}")
    E("s_nop 0")
    E(f"v_mul_f32 v{VT}, v{VT}, v{VT+4}")
    E(f"v_sub_f32 v{VT}, 0, v{VT}")
    if jit:
        E(f"v_mov_b32 v12, v{VT+4}"); E(f"v_mov_b32 v15, v{VT}"); return
    for r in range(128):
        if inter and r % 5 == 0:
            for x in inter.pop(0): E(x)
        a, b = VT + 8 + 2 * (r & 3), VT + 9 + 2 * (r & 3)
        E(f"v_lshlrev_b32 v{a}, 16, v{VX+r}"); E(f"v_and_b32 v{b}, 0xffff0000, v{VX+r}")
        E(f"v_fma_f32 v{a}, v{a}, v{VT+4}, v{VT}"); E(f"v_fma_f32 v{b}, v{b}, v{VT+4}, v{VT}")
        E(f"v_cvt_pk_bf16_f32 v{VX+r}, v{a}, v{b}")

def load_x(srdreg, ld, nsteps, base=VX):
    E("s_lshl_b32 s10, s3, 5"); E("s_add_u32 s10, s10, s9")
    E("v_add_u32 v9, s10, v3"); E(f"s_mov_b32 s4, {ld}"); E("v_mul_lo_u32 v8, v9, s4")
    E("v_lshlrev_b32 v5, 4, v4"); E("v_add_u32 v8, v8, v5")
    for s in range(nsteps):
        E(f"buffer_load_dwordx4 v[{base+4*s}:{base+4*s+3}], v8, s[{srdreg}:{srdreg+3}], 0 offen offset:{32*s}")
def wgmap(a=2):
    if a == 2:
        E("s_and_b32 s9, s2, 7"); E("s_lshl_b32 s9, s9, 1"); E("s_lshr_b32 s11, s2, 7"); E("s_add_u32 s9, s9, s11"); E("s_lshl_b32 s9, s9, 7")
        E("s_lshr_b32 s11, s2, 3"); E("s_and_b32 s11, s11, 15")
    else:
        E("s_bfe_u32 s9, s2, 0x20001"); E("s_lshl_b32 s9, s9, 2"); E("s_lshr_b32 s11, s2, 6"); E("s_add_u32 s9, s9, s11"); E("s_lshl_b32 s9, s9, 7")
        E("s_bfe_u32 s11, s2, 0x30003"); E("s_and_b32 s4, s2, 1"); E("s_lshl_b32 s4, s4, 3"); E("s_add_u32 s11, s11, s4")
def load_xt(srdreg, nsteps_total, nsteps, base=VX):
    E("s_lshl_b32 s10, s3, 5"); E("s_add_u32 s10, s10, s9"); E("v_add_u32 v9, s10, v3")
    E("s_lshr_b32 s4, s10, 5"); E(f"s_mul_i32 s4, s4, {nsteps_total*1024}")
    E("v_lshlrev_b32 v8, 4, v1"); E("v_add_u32 v8, s4, v8")
    for s in range(nsteps):
        if s % 4 == 0: E(f"s_mov_b32 s4, {1024*s}")
        E(f"buffer_load_dwordx4 v[{base+4*s}:{base+4*s+3}], v8, s[{srdreg}:{srdreg+3}], s4 offen offset:{1024*(s%4)}")
def pack(acc, dst):
    for i in range(8): E(f"v_cvt_pk_bf16_f32 v{dst+i}, v{acc+2*i}, v{acc+2*i+1}")

kernels = []
WS_T = 24*MB
WS_ST = 30*MB
KSC = os.environ.get("KSC", "")
def k0():
    n = "k0_ln_kernel"; kernels.append((n, 256, 0)); prologue(n, 256)
    E("s_and_b32 s9, s2, 7"); E("s_lshl_b32 s9, s9, 8"); E("s_lshr_b32 s10, s2, 3"); E("s_lshl_b32 s10, s10, 3"); E("s_add_u32 s9, s9, s10")
    E("s_lshl_b32 s10, s3, 1"); E("s_add_u32 s9, s9, s10")
    srd(40, 16, 0, 2*MB); srd(44, 34, WS_XN, 2*MB)
    E("s_cmp_lg_u32 s2, 0"); E("s_cbranch_scc1 k0_nz")
    srd(52, 34, 20*MB, 16384)
    for i in range(4): E(f"v_mov_b32 v{40+i}, 0")
    E("v_lshlrev_b32 v5, 6, v0")
    for i in range(4): E(f"buffer_store_dwordx4 v[40:43], v5, s[52:55], 0 offen offset:{16*i}")
    L("k0_nz")
    E("s_lshl_b32 s10, s9, 10"); E("v_lshlrev_b32 v5, 4, v1")
    E("buffer_load_dwordx4 v[16:19], v5, s[40:43], s10 offen"); E("buffer_load_dwordx4 v[20:23], v5, s[40:43], s10 offen offset:1024")
    E("s_lshr_b32 s11, s9, 5"); E("s_lshl_b32 s11, s11, 15"); E("s_and_b32 s12, s9, 31"); E("s_lshl_b32 s12, s12, 4"); E("s_add_u32 s11, s11, s12")
    E("v_lshrrev_b32 v6, 1, v1"); E("v_lshlrev_b32 v6, 10, v6"); E("v_and_b32 v7, 1, v1"); E("v_lshlrev_b32 v7, 9, v7"); E("v_add_u32 v6, v6, v7")
    E("s_mov_b32 s8, 0x3f803f80")
    for q in range(4): E(f"v_mov_b32 v{24+q}, 0")
    if os.environ.get("PF", "1") == "1":
        E("s_lshl_b32 s12, s2, 12"); E("v_lshlrev_b32 v32, 4, v0"); E("v_add_u32 v32, s12, v32"); E("v_add_u32 v33, 0x100000, v32")
        k = 0
        for base, size in ((18, 512*3072),):
            srd(48, base, 0, size)
            E(f"buffer_load_dwordx4 v[{36+4*k}:{39+4*k}], v32, s[48:51], 0 offen"); k += 1
            if size > MB: E(f"buffer_load_dwordx4 v[{36+4*k}:{39+4*k}], v33, s[48:51], 0 offen"); k += 1
        E("s_lshl_b32 s60, s2, 2"); E("s_add_u32 s60, s60, s3")
        E("v_lshrrev_b32 v34, 2, v1"); E("v_and_b32 v35, 3, v1"); E("v_lshlrev_b32 v35, 4, v35")
        E("v_mul_u32_u24 v33, 2752, v34"); E("v_add_u32 v33, v33, v35"); E("v_lshlrev_b32 v34, 10, v34"); E("v_add_u32 v34, v34, v35")
        E(f"s_mov_b32 s50, {512*2752}"); E("s_mov_b32 s51, 0x00020000")
        for t in range(3):
            E(f"s_add_u32 s61, s60, {1024*t}"); E("s_lshr_b32 s62, s61, 6"); E("s_mul_i32 s62, s62, 171"); E("s_lshr_b32 s62, s62, 9")
            E("s_mul_i32 s63, s62, 192"); E("s_sub_u32 s63, s61, s63")
            E("s_and_b32 s64, s63, 31"); E(f"s_mul_i32 s64, s64, {16*2752}")
            E("s_mul_i32 s65, s62, 86"); E("s_and_b32 s65, s65, 0xfffffff0"); E("s_lshl_b32 s65, s65, 1"); E("s_add_u32 s64, s64, s65")
            E("s_lshr_b32 s65, s63, 6"); E("s_lshl_b32 s65, s65, 6"); E("s_add_u32 s64, s64, s65")
            E("s_bitcmp1_b32 s63, 5"); E("s_cselect_b32 s48, s26, s24"); E("s_cselect_b32 s49, s27, s25")
            E(f"buffer_load_dwordx4 v[{44+4*t}:{47+4*t}], v33, s[48:51], s64 offen")
        srd(48, 28, 0, 1376*1024); srd(52, 20, 0, 512*1024)
        for t in (3, 4):
            E(f"s_add_u32 s61, s60, {1024*(t-3)}"); E("s_min_u32 s66, s61, 1407")
            E("s_lshr_b32 s62, s66, 3"); E("s_mul_i32 s62, s62, 187"); E("s_lshr_b32 s62, s62, 11"); E("s_mul_i32 s63, s62, 88"); E("s_sub_u32 s63, s66, s63")
            E("s_lshl_b32 s63, s63, 14"); E("s_lshl_b32 s62, s62, 6"); E("s_add_u32 s64, s63, s62")
            if t == 3:
                E(f"buffer_load_dwordx4 v[{44+4*t}:{47+4*t}], v34, s[48:51], s64 offen")
            else:
                E("s_cmp_lt_u32 s61, 1408"); E("s_cbranch_scc0 k0_w3")
                E(f"buffer_load_dwordx4 v[{44+4*t}:{47+4*t}], v34, s[48:51], s64 offen"); E("s_branch k0_w3e")
                L("k0_w3"); E("s_sub_u32 s61, s61, 1408"); E("s_min_u32 s61, s61, 511")
                E("s_and_b32 s63, s61, 31"); E("s_lshl_b32 s63, s63, 14"); E("s_lshr_b32 s62, s61, 5"); E("s_lshl_b32 s62, s62, 6"); E("s_add_u32 s64, s63, s62")
                E(f"buffer_load_dwordx4 v[{44+4*t}:{47+4*t}], v34, s[52:55], s64 offen")
                L("k0_w3e")
        srd(52, 34, WS_T, 5*MB); E("s_lshl_b32 s60, s60, 10"); E("v_lshlrev_b32 v35, 4, v1")
        ntl = 0
        if os.environ.get("TLB", "0") == "1":
            E("v_lshlrev_b32 v33, 16, v1")
            srd(48, 34, 0, 24*MB)
            for i in range(6):
                E(f"s_mov_b32 s12, {4*MB*i}"); E(f"buffer_load_dword v{100+ntl}, v33, s[48:51], s12 offen"); ntl += 1
            for base, size in ((18, 512*3072), (20, 512*1024), (24, 512*2752), (26, 512*2752), (28, 1376*1024), (30, 2*MB)):
                srd(48, base, 0, size); E(f"buffer_load_dword v{100+ntl}, v33, s[48:51], 0 offen"); ntl += 1
        npf = int(os.environ.get("NPF", "0"))
        if npf:
            E("s_getpc_b64 s[66:67]"); L("k0_pc")
            E("v_lshlrev_b32 v30, 4, v0"); E("s_lshr_b32 s64, s2, 3"); E(f"s_mul_i32 s64, s64, {4096*npf}"); E("v_add_u32 v30, s64, v30")
            E("s_mov_b32 s65, code_end-k0_pc-16")
            for i in range(npf):
                E("v_min_u32 v31, s65, v30"); E(f"global_load_dwordx4 v[{72+4*i}:{75+4*i}], v31, s[66:67]"); E("v_add_u32 v30, 0x1000, v30")
        E(f"s_waitcnt vmcnt({7+npf+ntl})")
    else:
        E("s_waitcnt vmcnt(0)")
    for r in range(2):
        for i in range(4):
            E(f"v_dot2_f32_bf16 v{24+2*r}, v{16+4*r+i}, s8, v{24+2*r}"); E(f"v_dot2_f32_bf16 v{25+2*r}, v{16+4*r+i}, v{16+4*r+i}, v{25+2*r}")
    E("s_nop 3")
    for off in (0x041F, 0x081F, 0x101F, 0x201F, 0x401F):
        for q in range(4): E(f"ds_swizzle_b32 v{28+q}, v{24+q} offset:{off:#x}")
        E("s_waitcnt lgkmcnt(0)")
        for q in range(4): E(f"v_add_f32 v{24+q}, v{24+q}, v{28+q}")
    for q in range(4): E(f"v_mov_b32 v{28+q}, v{24+q}")
    E("s_nop 1")
    for q in range(4): E(f"v_permlane32_swap_b32 v{24+q}, v{28+q}")
    E("s_nop 1")
    for q in range(4): E(f"v_add_f32 v{24+q}, v{24+q}, v{28+q}")
    for r in range(2):
        a, b = 24+2*r, 25+2*r
        E(f"v_mul_f32 v{a}, {f2u(1/512):#x}, v{a}"); E(f"v_mul_f32 v{b}, {f2u(1/512):#x}, v{b}")
        E(f"v_fma_f32 v{b}, -v{a}, v{a}, v{b}"); E(f"v_max_f32 v{b}, 0, v{b}"); E(f"v_add_f32 v{b}, {f2u(1e-5):#x}, v{b}")
        E(f"v_rsq_f32 v{b}, v{b}"); E("s_nop 0"); E(f"v_mul_f32 v{a}, v{a}, v{b}"); E(f"v_sub_f32 v{a}, 0, v{a}")
        for i in range(4):
            x = 16+4*r+i
            E(f"v_lshlrev_b32 v30, 16, v{x}"); E(f"v_and_b32 v31, 0xffff0000, v{x}")
            E(f"v_fma_f32 v30, v30, v{b}, v{a}"); E(f"v_fma_f32 v31, v31, v{b}, v{a}"); E(f"v_cvt_pk_bf16_f32 v{x}, v30, v31")
        if r == 0:
            E("s_waitcnt vmcnt(0)")
            for t in range(5):
                E(f"s_add_u32 s61, s60, {MB*t}"); E(f"buffer_store_dwordx4 v[{44+4*t}:{47+4*t}], v35, s[52:55], s61 offen{KSC}")
        E(f"buffer_store_dwordx4 v[{16+4*r}:{19+4*r}], v6, s[44:47], s11 offen offset:{16*r}{KSC}")
    epilogue_end(n)

SC = " sc1"
def lanes():
    E("v_and_b32 v1, 63, v0"); E("v_and_b32 v3, 31, v0"); E("v_bfe_u32 v4, v0, 5, 1")
WS_CNT = 20*MB
def signal(n, idx):
    E("s_waitcnt vmcnt(0)"); E("s_barrier")
    E("s_cmp_lg_u32 s3, 0"); E(f"s_cbranch_scc1 {n}_sig{idx}")
    E("s_lshl_b32 s4, s9, 1"); E(f"s_add_u32 s4, s4, {idx*4096}")
    E("v_mov_b32 v5, 1"); E("v_mov_b32 v6, s4"); E("s_mov_b64 exec, 1")
    E("buffer_atomic_add v5, v6, s[56:59], 0 offen"); E("s_mov_b64 exec, -1")
    L(f"{n}_sig{idx}")
def wait(n, idx, back=0):
    E("s_cmp_lg_u32 s3, 0"); E(f"s_cbranch_scc1 {n}_wx{idx}")
    E("s_lshl_b32 s4, s9, 1"); E("v_lshlrev_b32 v6, 8, v1"); E("v_sub_u32 v6, s4, v6"); E("v_max_i32 v6, 0, v6"); E(f"v_add_u32 v6, {idx*4096}, v6")
    E("s_mov_b32 s6, 0"); E(f"s_mov_b64 exec, {(1 << (back+1)) - 1}")
    L(f"{n}_w{idx}")
    E("buffer_load_dword v5, v6, s[56:59], 0 offen sc1"); E("s_waitcnt vmcnt(0)")
    E("v_cmp_gt_u32 vcc, 16, v5"); E("s_add_u32 s6, s6, 1"); E("s_nop 0"); E(f"s_cbranch_vccz {n}_wd{idx}")
    E("s_sleep 3"); E("s_cmp_lt_u32 s6, 0x4000"); E(f"s_cbranch_scc1 {n}_w{idx}")
    L(f"{n}_wd{idx}"); E("s_mov_b64 exec, -1")
    L(f"{n}_wx{idx}")
    E("s_waitcnt vmcnt(0)"); E("s_barrier")
def load_xt2(srdreg, nsteps_total, nsteps, base=VX, sc=SC):
    E("s_lshr_b32 s4, s10, 5"); E(f"s_mul_i32 s4, s4, {nsteps_total*1024}")
    E("v_lshlrev_b32 v8, 4, v1"); E("v_add_u32 v8, s4, v8")
    for s in range(nsteps):
        if s % 4 == 0: E(f"s_mov_b32 s4, {1024*s}")
        E(f"buffer_load_dwordx4 v[{base+4*s}:{base+4*s+3}], v8, s[{srdreg}:{srdreg+3}], s4 offen offset:{1024*(s%4)}{sc}")
def issue(groups):
    for g in groups:
        for x in g: E(x)

def mega():
    global VW
    n = "km_block_kernel"; kernels.append((n, 256, 163840)); prologue(n, 256)
    stamp(n); wgmap(2)
    E("s_mov_b32 s61, s11")
    E("s_lshl_b32 s10, s3, 5"); E("s_add_u32 s10, s10, s9")
    srd(56, 34, WS_CNT, 16384)
    E("s_mul_i32 s11, s61, 3")
    srd(40, 34, WS_XN, 2*MB); srd(44, 18, 0, 512*3072); srd(48, 34, 0, 6*MB)
    srd(64, 34, WS_T, 5*MB); E("s_mul_i32 s68, s61, 196608"); E("s_mul_i32 s69, s61, 90112"); E(f"s_add_u32 s69, s69, {3072*1024}"); E("s_lshl_b32 s70, s61, 15"); E(f"s_add_u32 s70, s70, {4480*1024}")
    E("s_lshl_b32 s62, s61, 6")
    E("s_mul_i32 s63, s61, 86"); E("s_and_b32 s63, s63, 0xfffffff0"); E("s_lshl_b32 s63, s63, 1")
    E("v_lshlrev_b32 v2, 4, v0")
    slotof = {0: 3, 1: 4, 2: 1, 3: 2, 4: 0, 5: 3}
    def tl(sc, add, lds, nj): return [[x.replace(" v7,", " v2,") for x in g] for g in dma_list(64, sc, add, lds, nj, 64)]
    def regl(r): return tl(68, r*32768, slotof[r]*32768, 8)
    p1pf = regl(0) + regl(1)
    dma_setup_w(3072)
    E("s_lshl_b32 s60, s11, 6")
    allw = dma_list_w(44, 60, 0, 0, 512, 3072)
    E("s_lshr_b32 s4, s10, 5"); E(f"s_mul_i32 s4, s4, {32*1024}"); E("v_lshlrev_b32 v8, 4, v1"); E("v_add_u32 v8, s4, v8")
    def chunk(c):
        r = list(allw[6*c:6*c+6])
        for s_ in range(8*c, 8*c+8):
            r.append([f"s_mov_b32 s4, {1024*(s_ & ~3)}", f"buffer_load_dwordx4 v[{VX+4*s_}:{VX+4*s_+3}], v8, s[40:43], s4 offen offset:{1024*(s_%4)}"])
        return r
    issue(chunk(0) + chunk(1))
    E("v_add_u32 v9, s10, v3")
    w_addr(False, 10, 192); E("v_add_u32 v13, 0xc000, v10")
    E("v_lshlrev_b32 v11, 5, v9"); E("v_lshlrev_b32 v5, 4, v4"); E("v_add_u32 v11, v11, v5")
    E("v_bfe_u32 v12, v0, 4, 1"); E("v_lshlrev_b32 v12, 16, v12"); E("v_lshlrev_b32 v5, 8, v4"); E("v_add_u32 v12, v12, v5")
    E("v_and_b32 v5, 15, v0"); E("v_lshlrev_b32 v5, 4, v5"); E("v_add_u32 v12, v12, v5")
    E("s_lshl_b32 s13, s10, 5"); E("v_add_u32 v12, s13, v12")
    ACCJ = (176, 192, 208); PT = 224
    stamp(n, "p1")
    E("s_cmp_eq_u32 s61, 10"); E(f"s_cbranch_scc1 {n}_p1b"); E("s_cmp_gt_u32 s61, 10"); E(f"s_cbranch_scc1 {n}_p1c")
    for vn, sws in (("a", (False, False, False)), ("b", (False, False, True)), ("c", (True, True, True))):
        L(f"{n}_p1{vn}")
        for c in range(4):
            E(f"s_waitcnt vmcnt({14 if c < 3 else 0})"); E("s_barrier")
            if vn == "a": stamp(n, "p1")
            items = []
            for s in range(8*c, 8*c+8):
                for j in range(3):
                    items.append(((10, 3072*s + 64*j) if s < 16 else (13, 3072*(s-16) + 64*j)) + (VX+4*s, ACCJ[j]))
            nxt = chunk(c + 2) if c < 2 else []
            for i in mfma_items(items, False, lambda i: sws[i % 3], lambda i: c == 0 and i < 3, 192):
                if nxt and i % 3 != 2: issue([nxt.pop(0)])
            assert not nxt
        E("s_nop 15")
        if vn == "a": stamp(n, "p1")
        for j, sw in enumerate(sws):
            E(f"s_add_u32 s12, s11, {j}"); pack(ACCJ[j], PT + 8*j); T_ = PT + 8*j
            if not sw:
                E("s_lshr_b32 s14, s12, 4"); E("s_lshl_b32 s14, s14, 21"); E("s_and_b32 s15, s12, 15"); E("s_lshl_b32 s15, s15, 17")
                E("s_add_u32 s14, s14, s15"); E("s_add_u32 s15, s14, 65536")
                E(f"buffer_store_dwordx4 v[{T_}:{T_+3}], v11, s[48:51], s14 offen{SC}")
                E(f"buffer_store_dwordx4 v[{T_+4}:{T_+7}], v11, s[48:51], s15 offen{SC}")
            else:
                E("s_sub_u32 s14, s12, 32"); E("s_lshl_b32 s14, s14, 17"); E(f"s_add_u32 s14, s14, {WS_V}")
                E(f"buffer_store_dwordx4 v[{T_}:{T_+3}], v12, s[48:51], s14 offen{SC}")
                E(f"buffer_store_dwordx4 v[{T_+4}:{T_+7}], v12, s[48:51], s14 offen offset:512{SC}")
        if vn != "c": E(f"s_branch {n}_p1e")
    L(f"{n}_p1e")
    stamp(n, "p1")
    stamp(n); signal(n, 0); stamp(n)
    issue(tl(70, 0, 0, 8))
    E("v_mov_b32 v5, 0x3f803f80")
    for r in range(144): E(f"v_accvgpr_write_b32 a{80+r}, v5")
    wait(n, 0, 2); stamp(n); stamp(n, "p2")
    S, O, PK = 96, 240, 16
    srd(40, 34, WS_Q, 2*MB); srd(44, 34, WS_K - 8192, 2*MB + 8192); srd(48, 34, WS_V - 8192, 2*MB + 8192); srd(52, 34, WS_O, 2*MB)
    E("v_lshlrev_b32 v5, 2, v4"); E("v_sub_u32 v11, v3, v5")
    E("s_sub_i32 s15, 256, s10"); E("s_max_i32 s15, s15, 0")
    E("v_lshlrev_b32 v6, 4, v4")
    E("s_lshl_b32 s11, s61, 1")
    E("s_lshl_b32 s12, s11, 11"); E("s_add_u32 s12, s12, s10")
    E("v_add_u32 v5, s12, v3"); E("v_lshlrev_b32 v5, 5, v5"); E("v_add_u32 v8, v5, v6"); E("v_add_u32 v13, 0x10000, v8")
    E("s_lshl_b32 s14, s15, 5")
    E("v_and_b32 v5, 15, v0"); E("v_lshlrev_b32 v5, 4, v5"); E("v_lshlrev_b32 v9, 8, v4"); E("v_add_u32 v5, v5, v9")
    E("s_lshl_b32 s13, s11, 16"); E("s_lshl_b32 s12, s10, 5"); E("s_add_u32 s13, s13, s12"); E("v_add_u32 v9, s13, v5"); E("v_add_u32 v14, 0x10000, v9")
    E("s_mov_b32 s66x, 0") if False else None
    E("s_mov_b32 s72, 0x0000ffff"); E("s_mov_b32 s73, 0x0000ffff")
    def qk(hh):
        va = (8, 13)[hh]
        r = [[f"buffer_load_dwordx4 a[{72+4*hh}:{75+4*hh}], v{va}, s[40:43], 0 offen{SC}"]]
        for kb in range(9):
            r.append([f"s_max_u32 s12, s14, {kb*1024}", f"buffer_load_dwordx4 a[{36*hh+4*kb}:{36*hh+4*kb+3}], v{va}, s[44:47], s12 offen{SC}"])
        return r
    def vv(hh):
        return [["s_mov_b64 exec, s[72:73]", f"s_max_u32 s12, s14, {512*t}",
                 f"buffer_load_dwordx4 a[{80+72*hh+4*t}:{80+72*hh+4*t+3}], v{(9,14)[hh]}, s[48:51], s12 offen{SC}", "s_mov_b64 exec, -1"] for t in range(18)]
    issue(qk(0)); issue(vv(0))
    E("s_add_u32 s13, s10, s11"); E("s_lshl_b32 s13, s13, 10"); E("v_lshlrev_b32 v5, 4, v1"); E("v_add_u32 v10, s13, v5")
    stamp(n, "p2")
    for hh in range(2):
        pf = (qk(1) + vv(1)) if hh == 0 else (regl(1) + regl(2) + regl(3))
        npf0 = len(pf)
        E(f"v_mov_b32 v12, {f2u(-1e30):#x}")
        for kb in range(9):
            E(f"s_waitcnt vmcnt({(26-kb) if hh == 0 else (8 + 1 + 18 + 8 - kb)})")
            E(f"v_mfma_f32_32x32x16_bf16 v[{S+16*kb}:{S+16*kb+15}], a[{36*hh+4*kb}:{36*hh+4*kb+3}], a[{72+4*hh}:{75+4*hh}], 0")
        E("s_nop 7"); E("s_nop 3"); stamp(n, "p2")
        for kb in range(8):
            E(f"s_cmp_ge_u32 s10, {256-32*kb}"); E(f"s_cbranch_scc1 {n}_ok{hh}_{kb}")
            for i in range(16): E(f"v_mov_b32 v{S+16*kb+i}, v12")
            L(f"{n}_ok{hh}_{kb}")
        for i in range(16):
            c = 8*(i >> 2) + (i & 3)
            E(f"v_cmp_le_i32 vcc, {c}, v11"); E("s_nop 1")
            E(f"v_cndmask_b32 v{S+128+i}, v12, v{S+128+i}, vcc"); E(f"v_cndmask_b32 v{S+i}, v{S+i}, v12, vcc")
            if i % 3 == 2 and pf: issue([pf.pop(0)])
        for c in range(4): E(f"v_max_f32 v{PK+c}, v{S+c}, v{S+4+c}")
        for r in range(8, 144, 8):
            for c in range(4): E(f"v_max3_f32 v{PK+c}, v{PK+c}, v{S+r+c}, v{S+r+4+c}")
            if r % 24 == 0 and pf: issue([pf.pop(0)])
        E(f"v_max_f32 v{PK}, v{PK}, v{PK+1}"); E(f"v_max_f32 v{PK+2}, v{PK+2}, v{PK+3}"); E(f"v_max_f32 v12, v{PK}, v{PK+2}"); E("v_mov_b32 v15, v12")
        E("s_nop 1"); E("v_permlane32_swap_b32 v12, v15"); E("s_nop 1"); E("v_max_f32 v12, v12, v15")
        E(f"s_mov_b32 s13, {f2u(0.25*LOG2E):#x}"); E("v_mul_f32 v12, s13, v12"); stamp(n, "p2")
        for r in range(0, 144, 4):
            for c in range(4): E(f"v_fma_f32 v{S+r+c}, v{S+r+c}, s13, -v12")
            for c in range(4): E(f"v_exp_f32 v{S+r+c}, v{S+r+c}")
            if r >= 4:
                p = r - 4; d = S + 16*(p//16) + (p % 16)//2
                E(f"v_cvt_pk_bf16_f32 v{d}, v{S+p}, v{S+p+1}"); E(f"v_cvt_pk_bf16_f32 v{d+1}, v{S+p+2}, v{S+p+3}")
            if r % 8 == 0 and pf: issue([pf.pop(0)])
        p = 140; d = S + 16*(p//16) + (p % 16)//2
        E("s_nop 0"); E(f"v_cvt_pk_bf16_f32 v{d}, v{S+p}, v{S+p+1}"); E(f"v_cvt_pk_bf16_f32 v{d+1}, v{S+p+2}, v{S+p+3}")
        npf_left = len(pf)
        stamp(n, "p2")
        assert npf_left == 0
        E(f"s_waitcnt vmcnt({npf0 if hh == 0 else (9+npf0)})"); stamp(n, "p2")
        if hh == 0: pf = regl(0)
        for t in range(18):
            if pf and t % 2 == 1: issue([pf.pop(0)])
            bb = S + 16*(t//2) + 4*(t % 2)
            E(f"v_mfma_f32_32x32x16_bf16 v[{O}:{O+15}], a[{80+72*hh+4*t}:{80+72*hh+4*t+3}], v[{bb}:{bb+3}], {'0' if t == 0 else f'v[{O}:{O+15}]'}")
        E("s_nop 15"); E(f"v_rcp_f32 v12, v{O+8}"); E("s_nop 0")
        for i in range(8): E(f"v_mul_f32 v{O+i}, v{O+i}, v12")
        for i in range(4): E(f"v_cvt_pk_bf16_f32 v{PK+i}, v{O+2*i}, v{O+2*i+1}")
        assert not pf
        E(f"buffer_store_dwordx4 v[{PK}:{PK+3}], v10, s[52:55], 0 offen offset:{1024*hh}{SC}")
        E("s_nop 1")
    stamp(n); signal(n, 1); stamp(n)
    srd(40, 34, WS_O, 2*MB); srd(48, 34, WS_H, 2*MB); srd(52, 16, 0, 2*MB)
    E("v_add_u32 v9, s10, v3")
    w_addr(True, 10)
    E("v_lshlrev_b32 v12, 10, v9"); E("v_lshlrev_b32 v5, 3, v4"); E("v_add_u32 v12, v12, v5"); E("s_lshl_b32 s13, s61, 11")
    for q in range(4): E(f"buffer_load_dwordx2 v[{VT+8+2*q}:{VT+9+2*q}], v12, s[52:55], s62 offen offset:{16*q}")
    wait(n, 1); stamp(n)
    load_xt2(40, 32, 32)
    E("s_waitcnt vmcnt(31)")
    items = [(10, 1024*s, VX+4*s, ACC0) for s in range(32)]
    for i in mfma_items(items, True, lambda i: False, lambda i: i == 0):
        if i + 1 < 32: E(f"s_waitcnt vmcnt({30-i})")
    E("s_nop 15")
    for i in range(8):
        E(f"v_lshlrev_b32 v5, 16, v{VT+8+i}"); E(f"v_and_b32 v6, 0xffff0000, v{VT+8+i}")
        E(f"v_add_f32 v{ACC0+2*i}, v{ACC0+2*i}, v5"); E(f"v_add_f32 v{ACC0+2*i+1}, v{ACC0+2*i+1}, v6")
    pack(ACC0, VT)
    E(f"buffer_store_dwordx4 v[{VT}:{VT+3}], v8, s[48:51], s13 offen{SC}")
    E(f"buffer_store_dwordx4 v[{VT+4}:{VT+7}], v8, s[48:51], s13 offen offset:1024{SC}")
    E("s_mov_b32 s8, 0x3f803f80"); srd(44, 34, WS_ST, 262144)
    for q in range(4): E(f"v_mov_b32 v{240+q}, 0")
    for i in range(8):
        E(f"v_dot2_f32_bf16 v{240+(i&1)}, v{VT+i}, s8, v{240+(i&1)}"); E(f"v_dot2_f32_bf16 v{242+(i&1)}, v{VT+i}, v{VT+i}, v{242+(i&1)}")
    E("s_lshl_b32 s14, s9, 7"); E("s_lshl_b32 s15, s61, 10"); E("s_add_u32 s14, s14, s15"); E("s_lshl_b32 s15, s3, 8"); E("s_add_u32 s14, s14, s15")
    E("v_lshlrev_b32 v13, 3, v3"); E("s_nop 1")
    E("v_add_f32 v244, v240, v241"); E("v_add_f32 v245, v242, v243"); E("v_mov_b32 v246, v244"); E("v_mov_b32 v247, v245"); E("s_nop 1")
    E("v_permlane32_swap_b32 v244, v246"); E("v_permlane32_swap_b32 v245, v247"); E("s_nop 1")
    E("v_add_f32 v244, v244, v246"); E("v_add_f32 v245, v245, v247")
    E(f"buffer_store_dwordx2 v[244:245], v13, s[44:47], s14 offen{SC}")
    stamp(n); signal(n, 2); stamp(n)
    issue(regl(4))
    wait(n, 2); stamp(n); stamp(n, "p4")
    srd(40, 34, WS_H, 2*MB); srd(52, 34, WS_HH, 2048*2752)
    E("s_lshl_b32 s14, s9, 7"); E("s_lshl_b32 s15, s3, 8"); E("s_add_u32 s14, s14, s15")
    E("v_lshlrev_b32 v13, 3, v3"); E("v_lshlrev_b32 v5, 13, v4"); E("v_add_u32 v13, v13, v5")
    for k in range(8):
        if k % 4 == 0: E(f"s_add_u32 s15, s14, {1024*k}")
        E(f"buffer_load_dwordx2 v[{240+2*k}:{241+2*k}], v13, s[44:47], s15 offen offset:{1024*(k%4)}{SC}")
    E("s_lshr_b32 s4, s10, 5"); E(f"s_mul_i32 s4, s4, {32*1024}"); E("v_lshlrev_b32 v8, 4, v1"); E("v_add_u32 v8, s4, v8")
    def xld(s_): return [f"s_mov_b32 s4, {1024*s_}", f"buffer_load_dwordx4 v[{VX+4*s_}:{VX+4*s_+3}], v8, s[40:43], s4 offen{SC}"]
    for s_ in range(16): issue([xld(s_)])
    E("s_lshr_b32 s4, s10, 5"); E(f"s_mul_i32 s4, s4, {86*1024}"); E("v_lshlrev_b32 v11, 4, v1"); E("v_add_u32 v11, s4, v11")
    stamp(n, "p4")
    E("s_waitcnt vmcnt(16)")
    for w in (4, 2, 1):
        for k in range(w):
            E(f"v_add_f32 v{240+2*k}, v{240+2*k}, v{240+2*(k+w)}"); E(f"v_add_f32 v{241+2*k}, v{241+2*k}, v{241+2*(k+w)}")
    E("v_mov_b32 v242, v240"); E("v_mov_b32 v243, v241"); E("s_nop 1")
    E("v_permlane32_swap_b32 v240, v242"); E("v_permlane32_swap_b32 v241, v243"); E("s_nop 1")
    E("v_add_f32 v240, v240, v242"); E("v_add_f32 v241, v241, v243")
    E(f"v_mul_f32 v240, {f2u(1/512):#x}, v240"); E(f"v_mul_f32 v241, {f2u(1/512):#x}, v241")
    E("v_fma_f32 v241, -v240, v240, v241"); E("v_max_f32 v241, 0, v241"); E(f"v_add_f32 v241, {f2u(1e-5):#x}, v241")
    E("v_rsq_f32 v12, v241"); E("s_nop 0"); E("v_mul_f32 v240, v240, v12"); E("v_sub_f32 v15, 0, v240")
    E(f"s_mov_b32 s13, {f2u(-LOG2E):#x}")
    stamp(n, "p4")
    E("s_waitcnt vmcnt(14)")
    stamp(n, "p4")
    def norm(s):
        r = []
        for q in range(4):
            x = VX + 4*s + q; a_, b_ = 240 + 2*q, 241 + 2*q
            r += [f"v_lshlrev_b32 v{a_}, 16, v{x}", f"v_and_b32 v{b_}, s14, v{x}"]
        for q in range(4):
            a_, b_ = 240 + 2*q, 241 + 2*q
            r += [f"v_fma_f32 v{a_}, v{a_}, v12, v15", f"v_fma_f32 v{b_}, v{b_}, v12, v15"]
        for q in range(4):
            r += [f"v_cvt_pk_bf16_f32 v{VX+4*s+q}, v{240+2*q}, v{241+2*q}"]
        return r
    def epi(j, G, U):
        r = []
        for i in range(16): r.append(f"v_mul_f32 v{G+i}, s13, v{G+i}")
        for i in range(16): r.append(f"v_exp_f32 v{G+i}, v{G+i}")
        for i in range(16): r.append(f"v_add_f32 v{G+i}, 1.0, v{G+i}")
        for i in range(16): r.append(f"v_rcp_f32 v{G+i}, v{G+i}")
        for i in range(16): r.append(f"v_mul_f32 v{G+i}, v{G+i}, v{U+i}")
        for i in range(8): r.append(f"v_cvt_pk_bf16_f32 v{248+i}, v{G+2*i}, v{G+2*i+1}")
        r += [f"s_add_u32 s12, s63, {64*j}", "s_lshl_b32 s12, s12, 5",
              f"buffer_store_dwordx4 v[248:251], v11, s[52:55], s12 offen{SC}",
              f"buffer_store_dwordx4 v[252:255], v11, s[52:55], s12 offen offset:1024{SC}"]
        return r
    E("s_mov_b32 s14, 0xffff0000")
    for x in norm(0) + norm(1): E(x)
    fill = []
    w5 = tl(69, 0, 32768, 16) + tl(69, 65536, 131072, 6)
    for j in range(3):
        G, U = (176, 192) if j % 2 == 0 else (208, 224)
        sg, su = slotof[2*j]*32768, slotof[2*j+1]*32768
        E(f"v_add_u32 v13, {sg}, v10"); E(f"v_add_u32 v14, {su}, v10")
        items = []
        for s in range(32): items += [(13, 1024*s, VX+4*s, G), (14, 1024*s, VX+4*s, U)]
        for i in mfma_items(items, True, lambda i: False, lambda i: i < 2):
            if j == 0 and i//2 + 2 < 32:
                s_ = i//2
                if i % 2 == 0:
                    if s_ + 16 < 32: issue([xld(s_ + 16)])
                    E(f"s_waitcnt vmcnt({min(s_ + 16, 31) - (s_ + 2)})")
                for x in norm(s_ + 2)[10*(i % 2):10*(i % 2)+10]: E(x)
            if j > 0 and i >= 4:
                for _ in range(2):
                    if fill: E(fill.pop(0))
            if j == 2 and i >= 2 and i % 2 == 0 and w5: issue([w5.pop(0)])
        assert not fill
        stamp(n, "p4")
        if j == 0: E("s_barrier"); issue(regl(5))
        if j == 1: E("s_waitcnt vmcnt(2)"); E("s_barrier")
        fill = epi(j, G, U)
    E("s_nop 15")
    for x in fill: E(x)
    stamp(n); stamp(n, "p4"); signal(n, 3); stamp(n); stamp(n, "p4")
    NX = 44; X = 56; oldVW = VW; VW = 16; A = 232; T = 48
    assert not w5
    wait(n, 3); stamp(n)
    srd(40, 34, WS_HH, 2048*2752); srd(48, 34, WS_H, 2*MB); srd(52, 30, 0, 2*MB)
    load_xt2(40, 86, NX, X)
    E("v_add_u32 v13, 0x8000, v10"); E("v_add_u32 v14, 0x20000, v10"); E("v_add_u32 v9, s10, v3")
    E("v_lshlrev_b32 v12, 10, v9"); E("v_lshlrev_b32 v5, 3, v4"); E("v_add_u32 v12, v12, v5")
    E("s_lshl_b32 s13, s10, 10"); E("s_lshl_b32 s14, s61, 11"); E("s_add_u32 s13, s13, s14"); E("v_lshlrev_b32 v11, 4, v1")
    E(f"buffer_load_dwordx4 v[248:251], v11, s[48:51], s13 offen{SC}"); E(f"buffer_load_dwordx4 v[252:255], v11, s[48:51], s13 offen offset:1024{SC}")
    E("s_waitcnt vmcnt(45)")
    items = [((13, 1024*s) if s < 64 else (14, 1024*(s-64))) + (X+4*(s % NX), A) for s in range(86)]
    for i in mfma_items(items, True, lambda i: False, lambda i: i == 0):
        if i + NX < 86:
            s = i + NX; E(f"s_mov_b32 s4, {1024*s}"); E(f"buffer_load_dwordx4 v[{X+4*i}:{X+4*i+3}], v8, s[40:43], s4 offen{SC}")
        if i + 1 < 86: E(f"s_waitcnt vmcnt({(45 if i + 1 <= 42 else 44) if i + 1 < NX else 85-(i+1)})")
    VW = oldVW
    E("s_nop 15")
    for i in range(8):
        E(f"v_lshlrev_b32 v5, 16, v{248+i}"); E(f"v_and_b32 v6, 0xffff0000, v{248+i}")
        E(f"v_add_f32 v{A+2*i}, v{A+2*i}, v5"); E(f"v_add_f32 v{A+2*i+1}, v{A+2*i+1}, v6")
    pack(A, T)
    for q in range(4): E(f"buffer_store_dwordx2 v[{T+2*q}:{T+2*q+1}], v12, s[52:55], s62 offen offset:{16*q}")
    epilogue_end(n)

k0(); mega(); L("code_end")
hdr = open("cdna_kernels/" + NAME + ".s.ref").read().split("\n")
head = [l for l in hdr if l.startswith(";") and "@launch" not in l and "Override" not in l and "grid=ceil" not in l]
import os
dup = int(os.environ.get("DUP", "-1"))
ll = []
for idx, (k, g, l) in enumerate(kernels):
    ll += [f"; @launch kernel={k} grid=({g},1,1) block=(256,1,1) lds={l}"] * (5 if idx == dup else 1)
if dup == 99: ll = ll + ll
if STAMPK:
    ll = ll + [x for x in ll if STAMPK in x]
txt = head + ll
txt += ['.amdgcn_target "amdgcn-amd-amdhsa--gfx950"', ".text"] + out + ['.section .rodata,"a"']
for k, g, l in kernels:
    txt += [".p2align 6", f".amdhsa_kernel {k}", f"  .amdhsa_next_free_vgpr {512 if k.startswith('km') else 256}", "  .amdhsa_next_free_sgpr 102", "  .amdhsa_accum_offset 256",
            "  .amdhsa_group_segment_fixed_size 0", "  .amdhsa_kernarg_size 80", "  .amdhsa_user_sgpr_count 2",
            "  .amdhsa_user_sgpr_kernarg_segment_ptr 1", "  .amdhsa_system_sgpr_workgroup_id_x 1", ".end_amdhsa_kernel"]
open(os.environ.get("OUT", "cdna_kernels/" + NAME + ".s"), "w").write("\n".join(txt) + "\n")
```

```python
import sys, os
NAME = "sequential_preLN__sliding_block__glu_gated_glu__prompt"
out = []
def E(s): out.append("    " + s)
def L(s): out.append(s + ":")
MB = 1 << 20
WS_Q, WS_K, WS_V, WS_O, WS_H, WS_HH = 0, 2*MB, 4*MB, 6*MB, 8*MB, 10*MB
WS_XN = 16*MB
LOG2E = 1.4426950408889634
import struct
def f2u(f): return struct.unpack("<I", struct.pack("<f", f))[0]

def prologue(name, nwg):
    out.append(".p2align 8"); out.append(f".globl {name}"); out.append(f".type {name},@function"); L(name)
    E(f"s_cmp_ge_u32 s2, {nwg}"); E(f"s_cbranch_scc1 {name}_done")
    E("s_load_dwordx16 s[16:31], s[0:1], 0"); E("s_load_dwordx4 s[32:35], s[0:1], 64")
    E("v_and_b32 v1, 63, v0")
    E("v_lshrrev_b32 v2, 6, v0")
    E("v_and_b32 v3, 31, v0")
    E("v_readfirstlane_b32 s3, v2")
    E("v_bfe_u32 v4, v0, 5, 1")
    E("s_waitcnt lgkmcnt(0)")
STAMPK = os.environ.get("STAMP", "")
nst = [0]
def stamp(name, tag=""):
    if name != STAMPK: return
    if tag != os.environ.get("STAG", "") and nst[0] > 0 and tag != "end": return
    E("s_memrealtime s[74:75]" if os.environ.get("ABS") else "s_memtime s[74:75]"); E("s_waitcnt lgkmcnt(0)"); E(f"s_mov_b32 s{76+nst[0]}, s74"); nst[0] += 1
def epilogue_end(name):
    if name == STAMPK:
        stamp(name, "end")
        srd(40, 32, 0, 256)
        if os.environ.get("ABS"):
            k = int(os.environ["ABS"])
            E("s_and_b32 s4, s2, 7"); E("s_cmp_lg_u32 s4, 0"); E(f"s_cbranch_scc1 {name}_done"); E("s_cmp_lg_u32 s3, 0"); E(f"s_cbranch_scc1 {name}_done")
            E("s_cmp_ge_u32 s2, 256"); E(f"s_cbranch_scc1 {name}_done")
            E("s_lshr_b32 s4, s2, 4"); E("s_lshl_b32 s4, s4, 2"); E("s_and_b32 s5, s2, 8"); E("s_cmp_lg_u32 s5, 0"); E(f"s_cbranch_scc1 {name}_done")
            E("v_mov_b32 v6, s4"); E(f"v_mov_b32 v5, s{76+k}"); E("buffer_store_dword v5, v6, s[40:43], 0 offen"); E(f"s_branch {name}_done")
        E("s_cmp_lg_u32 s2, 8"); E(f"s_cbranch_scc1 {name}_done"); E("s_cmp_lg_u32 s3, 0"); E(f"s_cbranch_scc1 {name}_done")
        srd(40, 32, 0, 256)
        for i in range(nst[0]):
            E(f"s_sub_u32 s4, s{76+i}, s76"); E("v_mov_b32 v5, s4"); E(f"v_mov_b32 v6, {4*i}"); E("buffer_store_dword v5, v6, s[40:43], 0 offen")
    L(f"{name}_done"); E("s_endpgm")
def srd(d, base, off, size):
    if off >= 0:
        E(f"s_add_u32 s{d}, s{base}, {off}"); E(f"s_addc_u32 s{d+1}, s{base+1}, 0")
    else:
        E(f"s_sub_u32 s{d}, s{base}, {-off}"); E(f"s_subb_u32 s{d+1}, s{base+1}, 0")
    E(f"s_mov_b32 s{d+2}, {size}"); E(f"s_mov_b32 s{d+3}, 0x00020000")

VX, VW, ACC0, ACC1, VT = 16, 144, 176, 192, 208

def w_addr(perm, vdst, RB=64):
    E("v_bfe_u32 v5, v0, 2, 2")
    E(f"v_lshlrev_b32 v6, {2 if perm else 3}, v4")
    E("v_add_u32 v5, v5, v6")
    E(f"v_mul_u32_u24 v5, {RB}, v5")
    E("v_bfe_u32 v6, v0, 4, 1")
    E("v_lshlrev_b32 v6, 5, v6")
    E("v_add_u32 v5, v5, v6")
    E("v_and_b32 v6, 3, v0")
    E("v_lshlrev_b32 v6, 3, v6")
    E(f"v_add_u32 v{vdst}, v5, v6")

def dma_setup(ldw):
    E("v_lshrrev_b32 v5, 2, v0"); E(f"s_mov_b32 s4, {ldw}"); E("v_mul_lo_u32 v5, v5, s4")
    E("v_and_b32 v6, 3, v0"); E("v_lshlrev_b32 v6, 4, v6"); E("v_add_u32 v7, v5, v6")
    E("s_lshl_b32 s5, s3, 10")
def dma_region(srdreg, scol, ldsbase, nj, ldw):
    E(f"s_mov_b32 s6, s{scol}"); E(f"s_add_u32 s7, s5, {ldsbase}")
    for j in range(nj):
        E("s_mov_b32 m0, s7");
        if j + 1 < nj: E("s_add_u32 s7, s7, 4096")
        else: E("s_nop 0")
        E(f"buffer_load_dwordx4 v7, s[{srdreg}:{srdreg+3}], s6 offen lds")
        if j + 1 < nj: E(f"s_add_u32 s6, s6, {64*ldw}")

def dma_list(srdreg, scolreg, coladd, ldsbase, nj, ldw):
    r = []
    for j in range(nj):
        r.append([f"s_add_u32 s6, s{scolreg}, {coladd + j*64*ldw}", f"s_add_u32 m0, s5, {ldsbase + j*4096}", "s_nop 0",
                  f"buffer_load_dwordx4 v7, s[{srdreg}:{srdreg+3}], s6 offen lds"])
    return r
def dma_setup_w(ldw):
    E("s_lshl_b32 s5, s3, 10"); E("s_mov_b32 s4, 0xAAAB"); E(f"s_mov_b32 s6, {ldw}")
    for t, vr in enumerate((7, 14, 15)):
        E(f"v_add_u32 v5, {256*t}, v0"); E("v_mul_lo_u32 v6, v5, s4"); E("v_lshrrev_b32 v6, 19, v6")
        E("v_mul_u32_u24 v9, 12, v6"); E("v_sub_u32 v5, v5, v9"); E("v_lshlrev_b32 v5, 4, v5")
        E("v_mul_lo_u32 v6, v6, s6"); E(f"v_add_u32 v{vr}, v5, v6")
def dma_list_w(srdreg, scolreg, ldsbase, row0, nrows, ldw):
    r = []
    for j in range(nrows*12//256):
        r.append([f"s_add_u32 s6, s{scolreg}, {(row0 + (j//3)*64)*ldw}", f"s_add_u32 m0, s5, {ldsbase + j*4096}", "s_nop 0",
                  f"buffer_load_dwordx4 v{(7,14,15)[j%3]}, s[{srdreg}:{srdreg+3}], s6 offen lds"])
    return r
def mfma_items(items, perm, swap_of, first_of, RB=64):
    d2 = 8*RB if perm else 4*RB
    n = len(items); D = 6
    def rd(i):
        va, off, _, _ = items[i]; w = VW + 4 * (i % 8)
        E(f"ds_read_b64_tr_b16 v[{w}:{w+1}], v{va} offset:{off}")
        E(f"ds_read_b64_tr_b16 v[{w+2}:{w+3}], v{va} offset:{off+d2}")
    for i in range(min(D, n)): rd(i)
    for i in range(n):
        va, off, x, acc = items[i][:4]; w = VW + 4 * (i % 8)
        E(f"s_waitcnt lgkmcnt({2*(min(i+D-1, n-1)-i)})")
        c = "0" if first_of(i) else f"v[{acc}:{acc+15}]"
        if swap_of(i): E(f"v_mfma_f32_32x32x16_bf16 v[{acc}:{acc+15}], v[{x}:{x+3}], v[{w}:{w+3}], {c}")
        else:          E(f"v_mfma_f32_32x32x16_bf16 v[{acc}:{acc+15}], v[{w}:{w+3}], v[{x}:{x+3}], {c}")
        if i + D < n: rd(i + D)
        yield i

def ln_regs(ndma, inter=[], jit=False):
    E("s_mov_b32 s8, 0x3f803f80")
    for q in range(4): E(f"v_mov_b32 v{VT+q}, 0"); E(f"v_mov_b32 v{VT+4+q}, 0")
    inter = list(inter); nd = 0
    for g in range(4):
        E(f"s_waitcnt vmcnt({min(63, 24-8*g+nd)})")
        for r in range(32*g, 32*g+32):
            if inter and r % 8 == 4:
                for x in inter.pop(0): E(x)
                nd += 1
            E(f"v_dot2_f32_bf16 v{VT+(r&3)}, v{VX+r}, s8, v{VT+(r&3)}")
            E(f"v_dot2_f32_bf16 v{VT+4+(r&3)}, v{VX+r}, v{VX+r}, v{VT+4+(r&3)}")
    E("s_nop 3")
    E(f"v_add_f32 v{VT}, v{VT}, v{VT+1}"); E(f"v_add_f32 v{VT+2}, v{VT+2}, v{VT+3}")
    E(f"v_add_f32 v{VT+4}, v{VT+4}, v{VT+5}"); E(f"v_add_f32 v{VT+6}, v{VT+6}, v{VT+7}")
    E(f"v_add_f32 v{VT}, v{VT}, v{VT+2}"); E(f"v_add_f32 v{VT+4}, v{VT+4}, v{VT+6}")
    E(f"v_mov_b32 v{VT+1}, v{VT}"); E(f"v_mov_b32 v{VT+5}, v{VT+4}")
    E("s_nop 1")
    E(f"v_permlane32_swap_b32 v{VT}, v{VT+1}"); E(f"v_permlane32_swap_b32 v{VT+4}, v{VT+5}")
    E("s_nop 1")
    E(f"v_add_f32 v{VT}, v{VT}, v{VT+1}"); E(f"v_add_f32 v{VT+4}, v{VT+4}, v{VT+5}")
    E(f"v_mul_f32 v{VT}, {f2u(1/512):#x}, v{VT}")
    E(f"v_mul_f32 v{VT+4}, {f2u(1/512):#x}, v{VT+4}")
    E(f"v_fma_f32 v{VT+4}, -v{VT}, v{VT}, v{VT+4}")
    E(f"v_max_f32 v{VT+4}, 0, v{VT+4}")
    E(f"v_add_f32 v{VT+4}, {f2u(1e-5):#x}, v{VT+4}")
    E(f"v_rsq_f32 v{VT+4}, v{VT+4}")
    E("s_nop 0")
    E(f"v_mul_f32 v{VT}, v{VT}, v{VT+4}")
    E(f"v_sub_f32 v{VT}, 0, v{VT}")
    if jit:
        E(f"v_mov_b32 v12, v{VT+4}"); E(f"v_mov_b32 v15, v{VT}"); return
    for r in range(128):
        if inter and r % 5 == 0:
            for x in inter.pop(0): E(x)
        a, b = VT + 8 + 2 * (r & 3), VT + 9 + 2 * (r & 3)
        E(f"v_lshlrev_b32 v{a}, 16, v{VX+r}"); E(f"v_and_b32 v{b}, 0xffff0000, v{VX+r}")
        E(f"v_fma_f32 v{a}, v{a}, v{VT+4}, v{VT}"); E(f"v_fma_f32 v{b}, v{b}, v{VT+4}, v{VT}")
        E(f"v_cvt_pk_bf16_f32 v{VX+r}, v{a}, v{b}")

def load_x(srdreg, ld, nsteps, base=VX):
    E("s_lshl_b32 s10, s3, 5"); E("s_add_u32 s10, s10, s9")
    E("v_add_u32 v9, s10, v3"); E(f"s_mov_b32 s4, {ld}"); E("v_mul_lo_u32 v8, v9, s4")
    E("v_lshlrev_b32 v5, 4, v4"); E("v_add_u32 v8, v8, v5")
    for s in range(nsteps):
        E(f"buffer_load_dwordx4 v[{base+4*s}:{base+4*s+3}], v8, s[{srdreg}:{srdreg+3}], 0 offen offset:{32*s}")
def wgmap(a=2):
    if a == 2:
        E("s_and_b32 s9, s2, 7"); E("s_lshl_b32 s9, s9, 1"); E("s_lshr_b32 s11, s2, 7"); E("s_add_u32 s9, s9, s11"); E("s_lshl_b32 s9, s9, 7")
        E("s_lshr_b32 s11, s2, 3"); E("s_and_b32 s11, s11, 15")
    else:
        E("s_bfe_u32 s9, s2, 0x20001"); E("s_lshl_b32 s9, s9, 2"); E("s_lshr_b32 s11, s2, 6"); E("s_add_u32 s9, s9, s11"); E("s_lshl_b32 s9, s9, 7")
        E("s_bfe_u32 s11, s2, 0x30003"); E("s_and_b32 s4, s2, 1"); E("s_lshl_b32 s4, s4, 3"); E("s_add_u32 s11, s11, s4")
def load_xt(srdreg, nsteps_total, nsteps, base=VX):
    E("s_lshl_b32 s10, s3, 5"); E("s_add_u32 s10, s10, s9"); E("v_add_u32 v9, s10, v3")
    E("s_lshr_b32 s4, s10, 5"); E(f"s_mul_i32 s4, s4, {nsteps_total*1024}")
    E("v_lshlrev_b32 v8, 4, v1"); E("v_add_u32 v8, s4, v8")
    for s in range(nsteps):
        if s % 4 == 0: E(f"s_mov_b32 s4, {1024*s}")
        E(f"buffer_load_dwordx4 v[{base+4*s}:{base+4*s+3}], v8, s[{srdreg}:{srdreg+3}], s4 offen offset:{1024*(s%4)}")
def pack(acc, dst):
    for i in range(8): E(f"v_cvt_pk_bf16_f32 v{dst+i}, v{acc+2*i}, v{acc+2*i+1}")

kernels = []
WS_T = 24*MB
WS_ST = 30*MB
KSC = os.environ.get("KSC", "")
def k0():
    n = "k0_ln_kernel"; kernels.append((n, 256, 0)); prologue(n, 256)
    E("s_and_b32 s9, s2, 7"); E("s_lshl_b32 s9, s9, 8"); E("s_lshr_b32 s10, s2, 3"); E("s_lshl_b32 s10, s10, 3"); E("s_add_u32 s9, s9, s10")
    E("s_lshl_b32 s10, s3, 1"); E("s_add_u32 s9, s9, s10")
    srd(40, 16, 0, 2*MB); srd(44, 34, WS_XN, 2*MB)
    E("s_cmp_lg_u32 s2, 0"); E("s_cbranch_scc1 k0_nz")
    srd(52, 34, 20*MB, 16384)
    for i in range(4): E(f"v_mov_b32 v{40+i}, 0")
    E("v_lshlrev_b32 v5, 6, v0")
    for i in range(4): E(f"buffer_store_dwordx4 v[40:43], v5, s[52:55], 0 offen offset:{16*i}")
    L("k0_nz")
    E("s_lshl_b32 s10, s9, 10"); E("v_lshlrev_b32 v5, 4, v1")
    E("buffer_load_dwordx4 v[16:19], v5, s[40:43], s10 offen"); E("buffer_load_dwordx4 v[20:23], v5, s[40:43], s10 offen offset:1024")
    E("s_lshr_b32 s11, s9, 5"); E("s_lshl_b32 s11, s11, 15"); E("s_and_b32 s12, s9, 31"); E("s_lshl_b32 s12, s12, 4"); E("s_add_u32 s11, s11, s12")
    E("v_lshrrev_b32 v6, 1, v1"); E("v_lshlrev_b32 v6, 10, v6"); E("v_and_b32 v7, 1, v1"); E("v_lshlrev_b32 v7, 9, v7"); E("v_add_u32 v6, v6, v7")
    E("s_mov_b32 s8, 0x3f803f80")
    for q in range(4): E(f"v_mov_b32 v{24+q}, 0")
    if os.environ.get("PF", "1") == "1":
        E("s_lshl_b32 s12, s2, 12"); E("v_lshlrev_b32 v32, 4, v0"); E("v_add_u32 v32, s12, v32"); E("v_add_u32 v33, 0x100000, v32")
        k = 0
        for base, size in ((18, 512*3072),):
            srd(48, base, 0, size)
            E(f"buffer_load_dwordx4 v[{36+4*k}:{39+4*k}], v32, s[48:51], 0 offen"); k += 1
            if size > MB: E(f"buffer_load_dwordx4 v[{36+4*k}:{39+4*k}], v33, s[48:51], 0 offen"); k += 1
        E("s_lshl_b32 s60, s2, 2"); E("s_add_u32 s60, s60, s3")
        E("v_lshrrev_b32 v34, 2, v1"); E("v_and_b32 v35, 3, v1"); E("v_lshlrev_b32 v35, 4, v35")
        E("v_mul_u32_u24 v33, 2752, v34"); E("v_add_u32 v33, v33, v35"); E("v_lshlrev_b32 v34, 10, v34"); E("v_add_u32 v34, v34, v35")
        E(f"s_mov_b32 s50, {512*2752}"); E("s_mov_b32 s51, 0x00020000")
        for t in range(3):
            E(f"s_add_u32 s61, s60, {1024*t}"); E("s_lshr_b32 s62, s61, 6"); E("s_mul_i32 s62, s62, 171"); E("s_lshr_b32 s62, s62, 9")
            E("s_mul_i32 s63, s62, 192"); E("s_sub_u32 s63, s61, s63")
            E("s_and_b32 s64, s63, 31"); E(f"s_mul_i32 s64, s64, {16*2752}")
            E("s_mul_i32 s65, s62, 86"); E("s_and_b32 s65, s65, 0xfffffff0"); E("s_lshl_b32 s65, s65, 1"); E("s_add_u32 s64, s64, s65")
            E("s_lshr_b32 s65, s63, 6"); E("s_lshl_b32 s65, s65, 6"); E("s_add_u32 s64, s64, s65")
            E("s_bitcmp1_b32 s63, 5"); E("s_cselect_b32 s48, s26, s24"); E("s_cselect_b32 s49, s27, s25")
            E(f"buffer_load_dwordx4 v[{44+4*t}:{47+4*t}], v33, s[48:51], s64 offen")
        srd(48, 28, 0, 1376*1024); srd(52, 20, 0, 512*1024)
        for t in (3, 4):
            E(f"s_add_u32 s61, s60, {1024*(t-3)}"); E("s_min_u32 s66, s61, 1407")
            E("s_lshr_b32 s62, s66, 3"); E("s_mul_i32 s62, s62, 187"); E("s_lshr_b32 s62, s62, 11"); E("s_mul_i32 s63, s62, 88"); E("s_sub_u32 s63, s66, s63")
            E("s_lshl_b32 s63, s63, 14"); E("s_lshl_b32 s62, s62, 6"); E("s_add_u32 s64, s63, s62")
            if t == 3:
                E(f"buffer_load_dwordx4 v[{44+4*t}:{47+4*t}], v34, s[48:51], s64 offen")
            else:
                E("s_cmp_lt_u32 s61, 1408"); E("s_cbranch_scc0 k0_w3")
                E(f"buffer_load_dwordx4 v[{44+4*t}:{47+4*t}], v34, s[48:51], s64 offen"); E("s_branch k0_w3e")
                L("k0_w3"); E("s_sub_u32 s61, s61, 1408"); E("s_min_u32 s61, s61, 511")
                E("s_and_b32 s63, s61, 31"); E("s_lshl_b32 s63, s63, 14"); E("s_lshr_b32 s62, s61, 5"); E("s_lshl_b32 s62, s62, 6"); E("s_add_u32 s64, s63, s62")
                E(f"buffer_load_dwordx4 v[{44+4*t}:{47+4*t}], v34, s[52:55], s64 offen")
                L("k0_w3e")
        srd(52, 34, WS_T, 5*MB); E("s_lshl_b32 s60, s60, 10"); E("v_lshlrev_b32 v35, 4, v1")
        ntl = 0
        if os.environ.get("TLB", "0") == "1":
            E("v_lshlrev_b32 v33, 16, v1")
            srd(48, 34, 0, 24*MB)
            for i in range(6):
                E(f"s_mov_b32 s12, {4*MB*i}"); E(f"buffer_load_dword v{100+ntl}, v33, s[48:51], s12 offen"); ntl += 1
            for base, size in ((18, 512*3072), (20, 512*1024), (24, 512*2752), (26, 512*2752), (28, 1376*1024), (30, 2*MB)):
                srd(48, base, 0, size); E(f"buffer_load_dword v{100+ntl}, v33, s[48:51], 0 offen"); ntl += 1
        npf = int(os.environ.get("NPF", "1"))
        if npf:
            E("s_getpc_b64 s[66:67]"); L("k0_pc")
            E("v_lshlrev_b32 v30, 4, v0"); E("s_lshr_b32 s64, s2, 3"); E(f"s_mul_i32 s64, s64, {4096*npf}"); E("v_add_u32 v30, s64, v30")
            E("s_mov_b32 s65, code_end-k0_pc-16")
            for i in range(npf):
                E("v_min_u32 v31, s65, v30"); E(f"global_load_dwordx4 v[{72+4*i}:{75+4*i}], v31, s[66:67]"); E("v_add_u32 v30, 0x1000, v30")
        E(f"s_waitcnt vmcnt({7+npf+ntl})")
    else:
        E("s_waitcnt vmcnt(0)")
    for r in range(2):
        for i in range(4):
            E(f"v_dot2_f32_bf16 v{24+2*r}, v{16+4*r+i}, s8, v{24+2*r}"); E(f"v_dot2_f32_bf16 v{25+2*r}, v{16+4*r+i}, v{16+4*r+i}, v{25+2*r}")
    E("s_nop 3")
    for off in (0x041F, 0x081F, 0x101F, 0x201F, 0x401F):
        for q in range(4): E(f"ds_swizzle_b32 v{28+q}, v{24+q} offset:{off:#x}")
        E("s_waitcnt lgkmcnt(0)")
        for q in range(4): E(f"v_add_f32 v{24+q}, v{24+q}, v{28+q}")
    for q in range(4): E(f"v_mov_b32 v{28+q}, v{24+q}")
    E("s_nop 1")
    for q in range(4): E(f"v_permlane32_swap_b32 v{24+q}, v{28+q}")
    E("s_nop 1")
    for q in range(4): E(f"v_add_f32 v{24+q}, v{24+q}, v{28+q}")
    for r in range(2):
        a, b = 24+2*r, 25+2*r
        E(f"v_mul_f32 v{a}, {f2u(1/512):#x}, v{a}"); E(f"v_mul_f32 v{b}, {f2u(1/512):#x}, v{b}")
        E(f"v_fma_f32 v{b}, -v{a}, v{a}, v{b}"); E(f"v_max_f32 v{b}, 0, v{b}"); E(f"v_add_f32 v{b}, {f2u(1e-5):#x}, v{b}")
        E(f"v_rsq_f32 v{b}, v{b}"); E("s_nop 0"); E(f"v_mul_f32 v{a}, v{a}, v{b}"); E(f"v_sub_f32 v{a}, 0, v{a}")
        for i in range(4):
            x = 16+4*r+i
            E(f"v_lshlrev_b32 v30, 16, v{x}"); E(f"v_and_b32 v31, 0xffff0000, v{x}")
            E(f"v_fma_f32 v30, v30, v{b}, v{a}"); E(f"v_fma_f32 v31, v31, v{b}, v{a}"); E(f"v_cvt_pk_bf16_f32 v{x}, v30, v31")
        if r == 0:
            E("s_waitcnt vmcnt(0)")
            for t in range(5):
                E(f"s_add_u32 s61, s60, {MB*t}"); E(f"buffer_store_dwordx4 v[{44+4*t}:{47+4*t}], v35, s[52:55], s61 offen{KSC}")
        E(f"buffer_store_dwordx4 v[{16+4*r}:{19+4*r}], v6, s[44:47], s11 offen offset:{16*r}{KSC}")
    epilogue_end(n)

SC = " sc1"
def lanes():
    E("v_and_b32 v1, 63, v0"); E("v_and_b32 v3, 31, v0"); E("v_bfe_u32 v4, v0, 5, 1")
WS_CNT = 20*MB
def signal(n, idx):
    E("s_waitcnt vmcnt(0)"); E("s_barrier")
    E("s_cmp_lg_u32 s3, 0"); E(f"s_cbranch_scc1 {n}_sig{idx}")
    E("s_lshl_b32 s4, s9, 1"); E(f"s_add_u32 s4, s4, {idx*4096}")
    E("v_mov_b32 v5, 1"); E("v_mov_b32 v6, s4"); E("s_mov_b64 exec, 1")
    E("buffer_atomic_add v5, v6, s[56:59], 0 offen"); E("s_mov_b64 exec, -1")
    L(f"{n}_sig{idx}")
def wait(n, idx, back=0):
    E("s_cmp_lg_u32 s3, 0"); E(f"s_cbranch_scc1 {n}_wx{idx}")
    E("s_lshl_b32 s4, s9, 1"); E("v_lshlrev_b32 v6, 8, v1"); E("v_sub_u32 v6, s4, v6"); E("v_max_i32 v6, 0, v6"); E(f"v_add_u32 v6, {idx*4096}, v6")
    E("s_mov_b32 s6, 0"); E(f"s_mov_b64 exec, {(1 << (back+1)) - 1}")
    L(f"{n}_w{idx}")
    E("buffer_load_dword v5, v6, s[56:59], 0 offen sc1"); E("s_waitcnt vmcnt(0)")
    E("v_cmp_gt_u32 vcc, 16, v5"); E("s_add_u32 s6, s6, 1"); E("s_nop 0"); E(f"s_cbranch_vccz {n}_wd{idx}")
    E("s_sleep 1"); E("s_cmp_lt_u32 s6, 0x4000"); E(f"s_cbranch_scc1 {n}_w{idx}")
    L(f"{n}_wd{idx}"); E("s_mov_b64 exec, -1")
    L(f"{n}_wx{idx}")
    E("s_waitcnt vmcnt(0)"); E("s_barrier")
def load_xt2(srdreg, nsteps_total, nsteps, base=VX, sc=SC):
    E("s_lshr_b32 s4, s10, 5"); E(f"s_mul_i32 s4, s4, {nsteps_total*1024}")
    E("v_lshlrev_b32 v8, 4, v1"); E("v_add_u32 v8, s4, v8")
    for s in range(nsteps):
        if s % 4 == 0: E(f"s_mov_b32 s4, {1024*s}")
        E(f"buffer_load_dwordx4 v[{base+4*s}:{base+4*s+3}], v8, s[{srdreg}:{srdreg+3}], s4 offen offset:{1024*(s%4)}{sc}")
def issue(groups):
    for g in groups:
        for x in g: E(x)

def mega():
    global VW
    n = "km_block_kernel"; kernels.append((n, 256, 163840)); prologue(n, 256)
    stamp(n); wgmap(2)
    E("s_mov_b32 s61, s11")
    E("s_lshl_b32 s10, s3, 5"); E("s_add_u32 s10, s10, s9")
    srd(56, 34, WS_CNT, 16384)
    E("s_mul_i32 s11, s61, 3")
    srd(40, 34, WS_XN, 2*MB); srd(44, 18, 0, 512*3072); srd(48, 34, 0, 6*MB)
    srd(64, 34, WS_T, 5*MB); E("s_mul_i32 s68, s61, 196608"); E("s_mul_i32 s69, s61, 90112"); E(f"s_add_u32 s69, s69, {3072*1024}"); E("s_lshl_b32 s70, s61, 15"); E(f"s_add_u32 s70, s70, {4480*1024}")
    E("s_lshl_b32 s62, s61, 6")
    E("s_mul_i32 s63, s61, 86"); E("s_and_b32 s63, s63, 0xfffffff0"); E("s_lshl_b32 s63, s63, 1")
    E("v_lshlrev_b32 v2, 4, v0")
    slotof = {0: 3, 1: 4, 2: 1, 3: 2, 4: 0, 5: 3}
    def tl(sc, add, lds, nj): return [[x.replace(" v7,", " v2,") for x in g] for g in dma_list(64, sc, add, lds, nj, 64)]
    def regl(r): return tl(68, r*32768, slotof[r]*32768, 8)
    p1pf = regl(0) + regl(1)
    dma_setup_w(3072)
    E("s_lshl_b32 s60, s11, 6")
    allw = dma_list_w(44, 60, 0, 0, 512, 3072)
    E("s_lshr_b32 s4, s10, 5"); E(f"s_mul_i32 s4, s4, {32*1024}"); E("v_lshlrev_b32 v8, 4, v1"); E("v_add_u32 v8, s4, v8")
    def chunk(c):
        r = list(allw[6*c:6*c+6])
        for s_ in range(8*c, 8*c+8):
            r.append([f"s_mov_b32 s4, {1024*(s_ & ~3)}", f"buffer_load_dwordx4 v[{VX+4*s_}:{VX+4*s_+3}], v8, s[40:43], s4 offen offset:{1024*(s_%4)}"])
        return r
    issue(chunk(0) + chunk(1))
    E("v_add_u32 v9, s10, v3")
    w_addr(False, 10, 192); E("v_add_u32 v13, 0xc000, v10")
    E("v_lshlrev_b32 v11, 5, v9"); E("v_lshlrev_b32 v5, 4, v4"); E("v_add_u32 v11, v11, v5")
    E("v_bfe_u32 v12, v0, 4, 1"); E("v_lshlrev_b32 v12, 16, v12"); E("v_lshlrev_b32 v5, 8, v4"); E("v_add_u32 v12, v12, v5")
    E("v_and_b32 v5, 15, v0"); E("v_lshlrev_b32 v5, 4, v5"); E("v_add_u32 v12, v12, v5")
    E("s_lshl_b32 s13, s10, 5"); E("v_add_u32 v12, s13, v12")
    ACCJ = (176, 192, 208); PT = 224
    stamp(n, "p1")
    E("s_cmp_eq_u32 s61, 10"); E(f"s_cbranch_scc1 {n}_p1b"); E("s_cmp_gt_u32 s61, 10"); E(f"s_cbranch_scc1 {n}_p1c")
    for vn, sws in (("a", (False, False, False)), ("b", (False, False, True)), ("c", (True, True, True))):
        L(f"{n}_p1{vn}")
        for c in range(4):
            E(f"s_waitcnt vmcnt({14 if c < 3 else 0})"); E("s_barrier")
            if vn == "a": stamp(n, "p1")
            items = []
            for s in range(8*c, 8*c+8):
                for j in range(3):
                    items.append(((10, 3072*s + 64*j) if s < 16 else (13, 3072*(s-16) + 64*j)) + (VX+4*s, ACCJ[j]))
            nxt = chunk(c + 2) if c < 2 else []
            for i in mfma_items(items, False, lambda i: sws[i % 3], lambda i: c == 0 and i < 3, 192):
                if nxt and i % 3 != 2: issue([nxt.pop(0)])
            assert not nxt
        E("s_nop 15")
        if vn == "a": stamp(n, "p1")
        for j, sw in enumerate(sws):
            E(f"s_add_u32 s12, s11, {j}"); pack(ACCJ[j], PT + 8*j); T_ = PT + 8*j
            if not sw:
                E("s_lshr_b32 s14, s12, 4"); E("s_lshl_b32 s14, s14, 21"); E("s_and_b32 s15, s12, 15"); E("s_lshl_b32 s15, s15, 17")
                E("s_add_u32 s14, s14, s15"); E("s_add_u32 s15, s14, 65536")
                E(f"buffer_store_dwordx4 v[{T_}:{T_+3}], v11, s[48:51], s14 offen{SC}")
                E(f"buffer_store_dwordx4 v[{T_+4}:{T_+7}], v11, s[48:51], s15 offen{SC}")
            else:
                E("s_sub_u32 s14, s12, 32"); E("s_lshl_b32 s14, s14, 17"); E(f"s_add_u32 s14, s14, {WS_V}")
                E(f"buffer_store_dwordx4 v[{T_}:{T_+3}], v12, s[48:51], s14 offen{SC}")
                E(f"buffer_store_dwordx4 v[{T_+4}:{T_+7}], v12, s[48:51], s14 offen offset:512{SC}")
        if vn != "c": E(f"s_branch {n}_p1e")
    L(f"{n}_p1e")
    stamp(n, "p1")
    stamp(n); signal(n, 0); stamp(n)
    issue(tl(70, 0, 0, 8))
    E("v_mov_b32 v5, 0x3f803f80")
    for r in range(144): E(f"v_accvgpr_write_b32 a{80+r}, v5")
    wait(n, 0, 2); stamp(n); stamp(n, "p2")
    S, O, PK = 96, 240, 16
    srd(40, 34, WS_Q, 2*MB); srd(44, 34, WS_K - 8192, 2*MB + 8192); srd(48, 34, WS_V - 8192, 2*MB + 8192); srd(52, 34, WS_O, 2*MB)
    E("v_lshlrev_b32 v5, 2, v4"); E("v_sub_u32 v11, v3, v5")
    E("s_sub_i32 s15, 256, s10"); E("s_max_i32 s15, s15, 0")
    E("v_lshlrev_b32 v6, 4, v4")
    E("s_lshl_b32 s11, s61, 1")
    E("s_lshl_b32 s12, s11, 11"); E("s_add_u32 s12, s12, s10")
    E("v_add_u32 v5, s12, v3"); E("v_lshlrev_b32 v5, 5, v5"); E("v_add_u32 v8, v5, v6"); E("v_add_u32 v13, 0x10000, v8")
    E("s_lshl_b32 s14, s15, 5")
    E("v_and_b32 v5, 15, v0"); E("v_lshlrev_b32 v5, 4, v5"); E("v_lshlrev_b32 v9, 8, v4"); E("v_add_u32 v5, v5, v9")
    E("s_lshl_b32 s13, s11, 16"); E("s_lshl_b32 s12, s10, 5"); E("s_add_u32 s13, s13, s12"); E("v_add_u32 v9, s13, v5"); E("v_add_u32 v14, 0x10000, v9")
    E("s_mov_b32 s66x, 0") if False else None
    E("s_mov_b32 s72, 0x0000ffff"); E("s_mov_b32 s73, 0x0000ffff")
    def qk(hh):
        va = (8, 13)[hh]
        r = [[f"buffer_load_dwordx4 a[{72+4*hh}:{75+4*hh}], v{va}, s[40:43], 0 offen{SC}"]]
        for kb in range(9):
            r.append([f"s_max_u32 s12, s14, {kb*1024}", f"buffer_load_dwordx4 a[{36*hh+4*kb}:{36*hh+4*kb+3}], v{va}, s[44:47], s12 offen{SC}"])
        return r
    def vv(hh):
        return [["s_mov_b64 exec, s[72:73]", f"s_max_u32 s12, s14, {512*t}",
                 f"buffer_load_dwordx4 a[{80+72*hh+4*t}:{80+72*hh+4*t+3}], v{(9,14)[hh]}, s[48:51], s12 offen{SC}", "s_mov_b64 exec, -1"] for t in range(18)]
    issue(qk(0)); issue(vv(0))
    E("s_add_u32 s13, s10, s11"); E("s_lshl_b32 s13, s13, 10"); E("v_lshlrev_b32 v5, 4, v1"); E("v_add_u32 v10, s13, v5")
    stamp(n, "p2")
    for hh in range(2):
        pf = (qk(1) + vv(1)) if hh == 0 else (regl(1) + regl(2) + regl(3))
        npf0 = len(pf)
        E(f"v_mov_b32 v12, {f2u(-1e30):#x}")
        for kb in range(9):
            E(f"s_waitcnt vmcnt({(26-kb) if hh == 0 else (8 + 1 + 18 + 8 - kb)})")
            E(f"v_mfma_f32_32x32x16_bf16 v[{S+16*kb}:{S+16*kb+15}], a[{36*hh+4*kb}:{36*hh+4*kb+3}], a[{72+4*hh}:{75+4*hh}], 0")
        E("s_nop 7"); E("s_nop 3"); stamp(n, "p2")
        for kb in range(8):
            E(f"s_cmp_ge_u32 s10, {256-32*kb}"); E(f"s_cbranch_scc1 {n}_ok{hh}_{kb}")
            for i in range(16): E(f"v_mov_b32 v{S+16*kb+i}, v12")
            L(f"{n}_ok{hh}_{kb}")
        for i in range(16):
            c = 8*(i >> 2) + (i & 3)
            E(f"v_cmp_le_i32 vcc, {c}, v11"); E("s_nop 1")
            E(f"v_cndmask_b32 v{S+128+i}, v12, v{S+128+i}, vcc"); E(f"v_cndmask_b32 v{S+i}, v{S+i}, v12, vcc")
            if i % 3 == 2 and pf: issue([pf.pop(0)])
        for c in range(4): E(f"v_max_f32 v{PK+c}, v{S+c}, v{S+4+c}")
        for r in range(8, 144, 8):
            for c in range(4): E(f"v_max3_f32 v{PK+c}, v{PK+c}, v{S+r+c}, v{S+r+4+c}")
            if r % 24 == 0 and pf: issue([pf.pop(0)])
        E(f"v_max_f32 v{PK}, v{PK}, v{PK+1}"); E(f"v_max_f32 v{PK+2}, v{PK+2}, v{PK+3}"); E(f"v_max_f32 v12, v{PK}, v{PK+2}"); E("v_mov_b32 v15, v12")
        E("s_nop 1"); E("v_permlane32_swap_b32 v12, v15"); E("s_nop 1"); E("v_max_f32 v12, v12, v15")
        E(f"s_mov_b32 s13, {f2u(0.25*LOG2E):#x}"); E("v_mul_f32 v12, s13, v12"); stamp(n, "p2")
        for r in range(0, 144, 4):
            for c in range(4): E(f"v_fma_f32 v{S+r+c}, v{S+r+c}, s13, -v12")
            for c in range(4): E(f"v_exp_f32 v{S+r+c}, v{S+r+c}")
            if r >= 4:
                p = r - 4; d = S + 16*(p//16) + (p % 16)//2
                E(f"v_cvt_pk_bf16_f32 v{d}, v{S+p}, v{S+p+1}"); E(f"v_cvt_pk_bf16_f32 v{d+1}, v{S+p+2}, v{S+p+3}")
            if r % 8 == 0 and pf: issue([pf.pop(0)])
        p = 140; d = S + 16*(p//16) + (p % 16)//2
        E("s_nop 0"); E(f"v_cvt_pk_bf16_f32 v{d}, v{S+p}, v{S+p+1}"); E(f"v_cvt_pk_bf16_f32 v{d+1}, v{S+p+2}, v{S+p+3}")
        npf_left = len(pf)
        stamp(n, "p2")
        assert npf_left == 0
        E(f"s_waitcnt vmcnt({npf0 if hh == 0 else (9+npf0)})"); stamp(n, "p2")
        if hh == 0: pf = regl(0)
        for t in range(18):
            if pf and t % 2 == 1: issue([pf.pop(0)])
            bb = S + 16*(t//2) + 4*(t % 2)
            E(f"v_mfma_f32_32x32x16_bf16 v[{O}:{O+15}], a[{80+72*hh+4*t}:{80+72*hh+4*t+3}], v[{bb}:{bb+3}], {'0' if t == 0 else f'v[{O}:{O+15}]'}")
        E("s_nop 15"); E(f"v_rcp_f32 v12, v{O+8}"); E("s_nop 0")
        for i in range(8): E(f"v_mul_f32 v{O+i}, v{O+i}, v12")
        for i in range(4): E(f"v_cvt_pk_bf16_f32 v{PK+i}, v{O+2*i}, v{O+2*i+1}")
        assert not pf
        E(f"buffer_store_dwordx4 v[{PK}:{PK+3}], v10, s[52:55], 0 offen offset:{1024*hh}{SC}")
        E("s_nop 1")
    stamp(n); signal(n, 1); stamp(n)
    srd(40, 34, WS_O, 2*MB); srd(48, 34, WS_H, 2*MB); srd(52, 16, 0, 2*MB)
    E("v_add_u32 v9, s10, v3")
    w_addr(True, 10)
    E("v_lshlrev_b32 v12, 10, v9"); E("v_lshlrev_b32 v5, 3, v4"); E("v_add_u32 v12, v12, v5"); E("s_lshl_b32 s13, s61, 11")
    for q in range(4): E(f"buffer_load_dwordx2 v[{VT+8+2*q}:{VT+9+2*q}], v12, s[52:55], s62 offen offset:{16*q}")
    wait(n, 1); stamp(n)
    load_xt2(40, 32, 32)
    E("s_waitcnt vmcnt(31)")
    items = [(10, 1024*s, VX+4*s, ACC0) for s in range(32)]
    for i in mfma_items(items, True, lambda i: False, lambda i: i == 0):
        if i + 1 < 32: E(f"s_waitcnt vmcnt({30-i})")
    E("s_nop 15")
    for i in range(8):
        E(f"v_lshlrev_b32 v5, 16, v{VT+8+i}"); E(f"v_and_b32 v6, 0xffff0000, v{VT+8+i}")
        E(f"v_add_f32 v{ACC0+2*i}, v{ACC0+2*i}, v5"); E(f"v_add_f32 v{ACC0+2*i+1}, v{ACC0+2*i+1}, v6")
    pack(ACC0, VT)
    E(f"buffer_store_dwordx4 v[{VT}:{VT+3}], v8, s[48:51], s13 offen{SC}")
    E(f"buffer_store_dwordx4 v[{VT+4}:{VT+7}], v8, s[48:51], s13 offen offset:1024{SC}")
    E("s_mov_b32 s8, 0x3f803f80"); srd(44, 34, WS_ST, 262144)
    for q in range(4): E(f"v_mov_b32 v{240+q}, 0")
    for i in range(8):
        E(f"v_dot2_f32_bf16 v{240+(i&1)}, v{VT+i}, s8, v{240+(i&1)}"); E(f"v_dot2_f32_bf16 v{242+(i&1)}, v{VT+i}, v{VT+i}, v{242+(i&1)}")
    E("s_lshl_b32 s14, s9, 7"); E("s_lshl_b32 s15, s61, 10"); E("s_add_u32 s14, s14, s15"); E("s_lshl_b32 s15, s3, 8"); E("s_add_u32 s14, s14, s15")
    E("v_lshlrev_b32 v13, 3, v3"); E("s_nop 1")
    E("v_add_f32 v244, v240, v241"); E("v_add_f32 v245, v242, v243"); E("v_mov_b32 v246, v244"); E("v_mov_b32 v247, v245"); E("s_nop 1")
    E("v_permlane32_swap_b32 v244, v246"); E("v_permlane32_swap_b32 v245, v247"); E("s_nop 1")
    E("v_add_f32 v244, v244, v246"); E("v_add_f32 v245, v245, v247")
    E(f"buffer_store_dwordx2 v[244:245], v13, s[44:47], s14 offen{SC}")
    stamp(n); signal(n, 2); stamp(n)
    issue(regl(4))
    wait(n, 2); stamp(n); stamp(n, "p4")
    srd(40, 34, WS_H, 2*MB); srd(52, 34, WS_HH, 2048*2752)
    E("s_lshl_b32 s14, s9, 7"); E("s_lshl_b32 s15, s3, 8"); E("s_add_u32 s14, s14, s15")
    E("v_lshlrev_b32 v13, 3, v3"); E("v_lshlrev_b32 v5, 13, v4"); E("v_add_u32 v13, v13, v5")
    for k in range(8):
        if k % 4 == 0: E(f"s_add_u32 s15, s14, {1024*k}")
        E(f"buffer_load_dwordx2 v[{240+2*k}:{241+2*k}], v13, s[44:47], s15 offen offset:{1024*(k%4)}{SC}")
    E("s_lshr_b32 s4, s10, 5"); E(f"s_mul_i32 s4, s4, {32*1024}"); E("v_lshlrev_b32 v8, 4, v1"); E("v_add_u32 v8, s4, v8")
    def xld(s_): return [f"s_mov_b32 s4, {1024*s_}", f"buffer_load_dwordx4 v[{VX+4*s_}:{VX+4*s_+3}], v8, s[40:43], s4 offen{SC}"]
    for s_ in range(16): issue([xld(s_)])
    E("s_lshr_b32 s4, s10, 5"); E(f"s_mul_i32 s4, s4, {86*1024}"); E("v_lshlrev_b32 v11, 4, v1"); E("v_add_u32 v11, s4, v11")
    stamp(n, "p4")
    E("s_waitcnt vmcnt(16)")
    for w in (4, 2, 1):
        for k in range(w):
            E(f"v_add_f32 v{240+2*k}, v{240+2*k}, v{240+2*(k+w)}"); E(f"v_add_f32 v{241+2*k}, v{241+2*k}, v{241+2*(k+w)}")
    E("v_mov_b32 v242, v240"); E("v_mov_b32 v243, v241"); E("s_nop 1")
    E("v_permlane32_swap_b32 v240, v242"); E("v_permlane32_swap_b32 v241, v243"); E("s_nop 1")
    E("v_add_f32 v240, v240, v242"); E("v_add_f32 v241, v241, v243")
    E(f"v_mul_f32 v240, {f2u(1/512):#x}, v240"); E(f"v_mul_f32 v241, {f2u(1/512):#x}, v241")
    E("v_fma_f32 v241, -v240, v240, v241"); E("v_max_f32 v241, 0, v241"); E(f"v_add_f32 v241, {f2u(1e-5):#x}, v241")
    E("v_rsq_f32 v12, v241"); E("s_nop 0"); E("v_mul_f32 v240, v240, v12"); E("v_sub_f32 v15, 0, v240")
    E(f"s_mov_b32 s13, {f2u(-LOG2E):#x}")
    stamp(n, "p4")
    E("s_waitcnt vmcnt(14)")
    stamp(n, "p4")
    def norm(s):
        r = []
        for q in range(4):
            x = VX + 4*s + q; a_, b_ = 240 + 2*q, 241 + 2*q
            r += [f"v_lshlrev_b32 v{a_}, 16, v{x}", f"v_and_b32 v{b_}, s14, v{x}"]
        for q in range(4):
            a_, b_ = 240 + 2*q, 241 + 2*q
            r += [f"v_fma_f32 v{a_}, v{a_}, v12, v15", f"v_fma_f32 v{b_}, v{b_}, v12, v15"]
        for q in range(4):
            r += [f"v_cvt_pk_bf16_f32 v{VX+4*s+q}, v{240+2*q}, v{241+2*q}"]
        return r
    def epi(j, G, U):
        r = []
        for i in range(16): r.append(f"v_mul_f32 v{G+i}, s13, v{G+i}")
        for i in range(16): r.append(f"v_exp_f32 v{G+i}, v{G+i}")
        for i in range(16): r.append(f"v_add_f32 v{G+i}, 1.0, v{G+i}")
        for i in range(16): r.append(f"v_rcp_f32 v{G+i}, v{G+i}")
        for i in range(16): r.append(f"v_mul_f32 v{G+i}, v{G+i}, v{U+i}")
        for i in range(8): r.append(f"v_cvt_pk_bf16_f32 v{248+i}, v{G+2*i}, v{G+2*i+1}")
        r += [f"s_add_u32 s12, s63, {64*j}", "s_lshl_b32 s12, s12, 5",
              f"buffer_store_dwordx4 v[248:251], v11, s[52:55], s12 offen{SC}",
              f"buffer_store_dwordx4 v[252:255], v11, s[52:55], s12 offen offset:1024{SC}"]
        return r
    E("s_mov_b32 s14, 0xffff0000")
    for x in norm(0) + norm(1): E(x)
    fill = []
    w5 = tl(69, 0, 32768, 16) + tl(69, 65536, 131072, 6)
    for j in range(3):
        G, U = (176, 192) if j % 2 == 0 else (208, 224)
        sg, su = slotof[2*j]*32768, slotof[2*j+1]*32768
        E(f"v_add_u32 v13, {sg}, v10"); E(f"v_add_u32 v14, {su}, v10")
        items = []
        for s in range(32): items += [(13, 1024*s, VX+4*s, G), (14, 1024*s, VX+4*s, U)]
        for i in mfma_items(items, True, lambda i: False, lambda i: i < 2):
            if j == 0 and i//2 + 2 < 32:
                s_ = i//2
                if i % 2 == 0:
                    if s_ + 16 < 32: issue([xld(s_ + 16)])
                    E(f"s_waitcnt vmcnt({min(s_ + 16, 31) - (s_ + 2)})")
                for x in norm(s_ + 2)[10*(i % 2):10*(i % 2)+10]: E(x)
            if j > 0 and i >= 4:
                for _ in range(2):
                    if fill: E(fill.pop(0))
            if j == 2 and i >= 2 and i % 2 == 0 and w5: issue([w5.pop(0)])
        assert not fill
        stamp(n, "p4")
        if j == 0: E("s_barrier"); issue(regl(5))
        if j == 1: E("s_waitcnt vmcnt(2)"); E("s_barrier")
        fill = epi(j, G, U)
    E("s_nop 15")
    for x in fill: E(x)
    stamp(n); stamp(n, "p4"); signal(n, 3); stamp(n); stamp(n, "p4")
    NX = 44; X = 56; oldVW = VW; VW = 16; A = 232; T = 48
    assert not w5
    wait(n, 3); stamp(n)
    srd(40, 34, WS_HH, 2048*2752); srd(48, 34, WS_H, 2*MB); srd(52, 30, 0, 2*MB)
    load_xt2(40, 86, NX, X)
    E("v_add_u32 v13, 0x8000, v10"); E("v_add_u32 v14, 0x20000, v10"); E("v_add_u32 v9, s10, v3")
    E("v_lshlrev_b32 v12, 10, v9"); E("v_lshlrev_b32 v5, 3, v4"); E("v_add_u32 v12, v12, v5")
    E("s_lshl_b32 s13, s10, 10"); E("s_lshl_b32 s14, s61, 11"); E("s_add_u32 s13, s13, s14"); E("v_lshlrev_b32 v11, 4, v1")
    E(f"buffer_load_dwordx4 v[248:251], v11, s[48:51], s13 offen{SC}"); E(f"buffer_load_dwordx4 v[252:255], v11, s[48:51], s13 offen offset:1024{SC}")
    E("s_waitcnt vmcnt(45)")
    items = [((13, 1024*s) if s < 64 else (14, 1024*(s-64))) + (X+4*(s % NX), A) for s in range(86)]
    for i in mfma_items(items, True, lambda i: False, lambda i: i == 0):
        if i + NX < 86:
            s = i + NX; E(f"s_mov_b32 s4, {1024*s}"); E(f"buffer_load_dwordx4 v[{X+4*i}:{X+4*i+3}], v8, s[40:43], s4 offen{SC}")
        if i + 1 < 86: E(f"s_waitcnt vmcnt({(45 if i + 1 <= 42 else 44) if i + 1 < NX else 85-(i+1)})")
    VW = oldVW
    E("s_nop 15")
    for i in range(8):
        E(f"v_lshlrev_b32 v5, 16, v{248+i}"); E(f"v_and_b32 v6, 0xffff0000, v{248+i}")
        E(f"v_add_f32 v{A+2*i}, v{A+2*i}, v5"); E(f"v_add_f32 v{A+2*i+1}, v{A+2*i+1}, v6")
    pack(A, T)
    for q in range(4): E(f"buffer_store_dwordx2 v[{T+2*q}:{T+2*q+1}], v12, s[52:55], s62 offen offset:{16*q}")
    epilogue_end(n)

k0(); mega(); L("code_end")
hdr = open("cdna_kernels/" + NAME + ".s.ref").read().split("\n")
head = [l for l in hdr if l.startswith(";") and "@launch" not in l and "Override" not in l and "grid=ceil" not in l]
import os
dup = int(os.environ.get("DUP", "-1"))
ll = []
for idx, (k, g, l) in enumerate(kernels):
    ll += [f"; @launch kernel={k} grid=({g},1,1) block=(256,1,1) lds={l}"] * (5 if idx == dup else 1)
if dup == 99: ll = ll + ll
if STAMPK:
    ll = ll + [x for x in ll if STAMPK in x]
txt = head + ll
txt += ['.amdgcn_target "amdgcn-amd-amdhsa--gfx950"', ".text"] + out + ['.section .rodata,"a"']
for k, g, l in kernels:
    txt += [".p2align 6", f".amdhsa_kernel {k}", f"  .amdhsa_next_free_vgpr {512 if k.startswith('km') else 256}", "  .amdhsa_next_free_sgpr 102", "  .amdhsa_accum_offset 256",
            "  .amdhsa_group_segment_fixed_size 0", "  .amdhsa_kernarg_size 80", "  .amdhsa_user_sgpr_count 2",
            "  .amdhsa_user_sgpr_kernarg_segment_ptr 1", "  .amdhsa_system_sgpr_workgroup_id_x 1", ".end_amdhsa_kernel"]
open(os.environ.get("OUT", "cdna_kernels/" + NAME + ".s"), "w").write("\n".join(txt) + "\n")
```

```python
import sys, os
NAME = "sequential_preLN__sliding_block__glu_gated_glu__prompt"
out = []
def E(s): out.append("    " + s)
def L(s): out.append(s + ":")
MB = 1 << 20
WS_Q, WS_K, WS_V, WS_O, WS_H, WS_HH = 0, 2*MB, 4*MB, 6*MB, 8*MB, 10*MB
WS_XN = 16*MB
LOG2E = 1.4426950408889634
import struct
def f2u(f): return struct.unpack("<I", struct.pack("<f", f))[0]

def prologue(name, nwg):
    out.append(".p2align 8"); out.append(f".globl {name}"); out.append(f".type {name},@function"); L(name)
    E(f"s_cmp_ge_u32 s2, {nwg}"); E(f"s_cbranch_scc1 {name}_done")
    E("s_load_dwordx16 s[16:31], s[0:1], 0"); E("s_load_dwordx4 s[32:35], s[0:1], 64")
    E("v_and_b32 v1, 63, v0")
    E("v_lshrrev_b32 v2, 6, v0")
    E("v_and_b32 v3, 31, v0")
    E("v_readfirstlane_b32 s3, v2")
    E("v_bfe_u32 v4, v0, 5, 1")
    E("s_waitcnt lgkmcnt(0)")
STAMPK = os.environ.get("STAMP", "")
nst = [0]
def stamp(name, tag=""):
    if name != STAMPK: return
    if tag != os.environ.get("STAG", "") and nst[0] > 0 and tag != "end": return
    E("s_memrealtime s[74:75]" if os.environ.get("ABS") else "s_memtime s[74:75]"); E("s_waitcnt lgkmcnt(0)"); E(f"s_mov_b32 s{76+nst[0]}, s74"); nst[0] += 1
def epilogue_end(name):
    if name == STAMPK:
        stamp(name, "end")
        srd(40, 32, 0, 256)
        if os.environ.get("ABS"):
            k = int(os.environ["ABS"])
            E("s_and_b32 s4, s2, 7"); E("s_cmp_lg_u32 s4, 0"); E(f"s_cbranch_scc1 {name}_done"); E("s_cmp_lg_u32 s3, 0"); E(f"s_cbranch_scc1 {name}_done")
            E("s_cmp_ge_u32 s2, 256"); E(f"s_cbranch_scc1 {name}_done")
            E("s_lshr_b32 s4, s2, 4"); E("s_lshl_b32 s4, s4, 2"); E("s_and_b32 s5, s2, 8"); E("s_cmp_lg_u32 s5, 0"); E(f"s_cbranch_scc1 {name}_done")
            E("v_mov_b32 v6, s4"); E(f"v_mov_b32 v5, s{76+k}"); E("buffer_store_dword v5, v6, s[40:43], 0 offen"); E(f"s_branch {name}_done")
        E("s_cmp_lg_u32 s2, 8"); E(f"s_cbranch_scc1 {name}_done"); E("s_cmp_lg_u32 s3, 0"); E(f"s_cbranch_scc1 {name}_done")
        srd(40, 32, 0, 256)
        for i in range(nst[0]):
            E(f"s_sub_u32 s4, s{76+i}, s76"); E("v_mov_b32 v5, s4"); E(f"v_mov_b32 v6, {4*i}"); E("buffer_store_dword v5, v6, s[40:43], 0 offen")
    L(f"{name}_done"); E("s_endpgm")
def srd(d, base, off, size):
    if off >= 0:
        E(f"s_add_u32 s{d}, s{base}, {off}"); E(f"s_addc_u32 s{d+1}, s{base+1}, 0")
    else:
        E(f"s_sub_u32 s{d}, s{base}, {-off}"); E(f"s_subb_u32 s{d+1}, s{base+1}, 0")
    E(f"s_mov_b32 s{d+2}, {size}"); E(f"s_mov_b32 s{d+3}, 0x00020000")

VX, VW, ACC0, ACC1, VT = 16, 144, 176, 192, 208

def w_addr(perm, vdst, RB=64):
    E("v_bfe_u32 v5, v0, 2, 2")
    E(f"v_lshlrev_b32 v6, {2 if perm else 3}, v4")
    E("v_add_u32 v5, v5, v6")
    E(f"v_mul_u32_u24 v5, {RB}, v5")
    E("v_bfe_u32 v6, v0, 4, 1")
    E("v_lshlrev_b32 v6, 5, v6")
    E("v_add_u32 v5, v5, v6")
    E("v_and_b32 v6, 3, v0")
    E("v_lshlrev_b32 v6, 3, v6")
    E(f"v_add_u32 v{vdst}, v5, v6")

def dma_setup(ldw):
    E("v_lshrrev_b32 v5, 2, v0"); E(f"s_mov_b32 s4, {ldw}"); E("v_mul_lo_u32 v5, v5, s4")
    E("v_and_b32 v6, 3, v0"); E("v_lshlrev_b32 v6, 4, v6"); E("v_add_u32 v7, v5, v6")
    E("s_lshl_b32 s5, s3, 10")
def dma_region(srdreg, scol, ldsbase, nj, ldw):
    E(f"s_mov_b32 s6, s{scol}"); E(f"s_add_u32 s7, s5, {ldsbase}")
    for j in range(nj):
        E("s_mov_b32 m0, s7");
        if j + 1 < nj: E("s_add_u32 s7, s7, 4096")
        else: E("s_nop 0")
        E(f"buffer_load_dwordx4 v7, s[{srdreg}:{srdreg+3}], s6 offen lds")
        if j + 1 < nj: E(f"s_add_u32 s6, s6, {64*ldw}")

def dma_list(srdreg, scolreg, coladd, ldsbase, nj, ldw):
    r = []
    for j in range(nj):
        r.append([f"s_add_u32 s6, s{scolreg}, {coladd + j*64*ldw}", f"s_add_u32 m0, s5, {ldsbase + j*4096}", "s_nop 0",
                  f"buffer_load_dwordx4 v7, s[{srdreg}:{srdreg+3}], s6 offen lds"])
    return r
def dma_setup_w(ldw):
    E("s_lshl_b32 s5, s3, 10"); E("s_mov_b32 s4, 0xAAAB"); E(f"s_mov_b32 s6, {ldw}")
    for t, vr in enumerate((7, 14, 15)):
        E(f"v_add_u32 v5, {256*t}, v0"); E("v_mul_lo_u32 v6, v5, s4"); E("v_lshrrev_b32 v6, 19, v6")
        E("v_mul_u32_u24 v9, 12, v6"); E("v_sub_u32 v5, v5, v9"); E("v_lshlrev_b32 v5, 4, v5")
        E("v_mul_lo_u32 v6, v6, s6"); E(f"v_add_u32 v{vr}, v5, v6")
def dma_list_w(srdreg, scolreg, ldsbase, row0, nrows, ldw):
    r = []
    for j in range(nrows*12//256):
        r.append([f"s_add_u32 s6, s{scolreg}, {(row0 + (j//3)*64)*ldw}", f"s_add_u32 m0, s5, {ldsbase + j*4096}", "s_nop 0",
                  f"buffer_load_dwordx4 v{(7,14,15)[j%3]}, s[{srdreg}:{srdreg+3}], s6 offen lds"])
    return r
def mfma_items(items, perm, swap_of, first_of, RB=64):
    d2 = 8*RB if perm else 4*RB
    n = len(items); D = 7
    def rd(i):
        va, off, _, _ = items[i]; w = VW + 4 * (i % 8)
        E(f"ds_read_b64_tr_b16 v[{w}:{w+1}], v{va} offset:{off}")
        E(f"ds_read_b64_tr_b16 v[{w+2}:{w+3}], v{va} offset:{off+d2}")
    for i in range(min(D, n)): rd(i)
    for i in range(n):
        va, off, x, acc = items[i][:4]; w = VW + 4 * (i % 8)
        E(f"s_waitcnt lgkmcnt({2*(min(i+D-1, n-1)-i)})")
        c = "0" if first_of(i) else f"v[{acc}:{acc+15}]"
        if swap_of(i): E(f"v_mfma_f32_32x32x16_bf16 v[{acc}:{acc+15}], v[{x}:{x+3}], v[{w}:{w+3}], {c}")
        else:          E(f"v_mfma_f32_32x32x16_bf16 v[{acc}:{acc+15}], v[{w}:{w+3}], v[{x}:{x+3}], {c}")
        if i + D < n: rd(i + D)
        yield i

def ln_regs(ndma, inter=[], jit=False):
    E("s_mov_b32 s8, 0x3f803f80")
    for q in range(4): E(f"v_mov_b32 v{VT+q}, 0"); E(f"v_mov_b32 v{VT+4+q}, 0")
    inter = list(inter); nd = 0
    for g in range(4):
        E(f"s_waitcnt vmcnt({min(63, 24-8*g+nd)})")
        for r in range(32*g, 32*g+32):
            if inter and r % 8 == 4:
                for x in inter.pop(0): E(x)
                nd += 1
            E(f"v_dot2_f32_bf16 v{VT+(r&3)}, v{VX+r}, s8, v{VT+(r&3)}")
            E(f"v_dot2_f32_bf16 v{VT+4+(r&3)}, v{VX+r}, v{VX+r}, v{VT+4+(r&3)}")
    E("s_nop 3")
    E(f"v_add_f32 v{VT}, v{VT}, v{VT+1}"); E(f"v_add_f32 v{VT+2}, v{VT+2}, v{VT+3}")
    E(f"v_add_f32 v{VT+4}, v{VT+4}, v{VT+5}"); E(f"v_add_f32 v{VT+6}, v{VT+6}, v{VT+7}")
    E(f"v_add_f32 v{VT}, v{VT}, v{VT+2}"); E(f"v_add_f32 v{VT+4}, v{VT+4}, v{VT+6}")
    E(f"v_mov_b32 v{VT+1}, v{VT}"); E(f"v_mov_b32 v{VT+5}, v{VT+4}")
    E("s_nop 1")
    E(f"v_permlane32_swap_b32 v{VT}, v{VT+1}"); E(f"v_permlane32_swap_b32 v{VT+4}, v{VT+5}")
    E("s_nop 1")
    E(f"v_add_f32 v{VT}, v{VT}, v{VT+1}"); E(f"v_add_f32 v{VT+4}, v{VT+4}, v{VT+5}")
    E(f"v_mul_f32 v{VT}, {f2u(1/512):#x}, v{VT}")
    E(f"v_mul_f32 v{VT+4}, {f2u(1/512):#x}, v{VT+4}")
    E(f"v_fma_f32 v{VT+4}, -v{VT}, v{VT}, v{VT+4}")
    E(f"v_max_f32 v{VT+4}, 0, v{VT+4}")
    E(f"v_add_f32 v{VT+4}, {f2u(1e-5):#x}, v{VT+4}")
    E(f"v_rsq_f32 v{VT+4}, v{VT+4}")
    E("s_nop 0")
    E(f"v_mul_f32 v{VT}, v{VT}, v{VT+4}")
    E(f"v_sub_f32 v{VT}, 0, v{VT}")
    if jit:
        E(f"v_mov_b32 v12, v{VT+4}"); E(f"v_mov_b32 v15, v{VT}"); return
    for r in range(128):
        if inter and r % 5 == 0:
            for x in inter.pop(0): E(x)
        a, b = VT + 8 + 2 * (r & 3), VT + 9 + 2 * (r & 3)
        E(f"v_lshlrev_b32 v{a}, 16, v{VX+r}"); E(f"v_and_b32 v{b}, 0xffff0000, v{VX+r}")
        E(f"v_fma_f32 v{a}, v{a}, v{VT+4}, v{VT}"); E(f"v_fma_f32 v{b}, v{b}, v{VT+4}, v{VT}")
        E(f"v_cvt_pk_bf16_f32 v{VX+r}, v{a}, v{b}")

def load_x(srdreg, ld, nsteps, base=VX):
    E("s_lshl_b32 s10, s3, 5"); E("s_add_u32 s10, s10, s9")
    E("v_add_u32 v9, s10, v3"); E(f"s_mov_b32 s4, {ld}"); E("v_mul_lo_u32 v8, v9, s4")
    E("v_lshlrev_b32 v5, 4, v4"); E("v_add_u32 v8, v8, v5")
    for s in range(nsteps):
        E(f"buffer_load_dwordx4 v[{base+4*s}:{base+4*s+3}], v8, s[{srdreg}:{srdreg+3}], 0 offen offset:{32*s}")
def wgmap(a=2):
    if a == 2:
        E("s_and_b32 s9, s2, 7"); E("s_lshl_b32 s9, s9, 1"); E("s_lshr_b32 s11, s2, 7"); E("s_add_u32 s9, s9, s11"); E("s_lshl_b32 s9, s9, 7")
        E("s_lshr_b32 s11, s2, 3"); E("s_and_b32 s11, s11, 15")
    else:
        E("s_bfe_u32 s9, s2, 0x20001"); E("s_lshl_b32 s9, s9, 2"); E("s_lshr_b32 s11, s2, 6"); E("s_add_u32 s9, s9, s11"); E("s_lshl_b32 s9, s9, 7")
        E("s_bfe_u32 s11, s2, 0x30003"); E("s_and_b32 s4, s2, 1"); E("s_lshl_b32 s4, s4, 3"); E("s_add_u32 s11, s11, s4")
def load_xt(srdreg, nsteps_total, nsteps, base=VX):
    E("s_lshl_b32 s10, s3, 5"); E("s_add_u32 s10, s10, s9"); E("v_add_u32 v9, s10, v3")
    E("s_lshr_b32 s4, s10, 5"); E(f"s_mul_i32 s4, s4, {nsteps_total*1024}")
    E("v_lshlrev_b32 v8, 4, v1"); E("v_add_u32 v8, s4, v8")
    for s in range(nsteps):
        if s % 4 == 0: E(f"s_mov_b32 s4, {1024*s}")
        E(f"buffer_load_dwordx4 v[{base+4*s}:{base+4*s+3}], v8, s[{srdreg}:{srdreg+3}], s4 offen offset:{1024*(s%4)}")
def pack(acc, dst):
    for i in range(8): E(f"v_cvt_pk_bf16_f32 v{dst+i}, v{acc+2*i}, v{acc+2*i+1}")

kernels = []
WS_T = 24*MB
WS_ST = 30*MB
KSC = os.environ.get("KSC", "")
def k0():
    n = "k0_ln_kernel"; kernels.append((n, 256, 0)); prologue(n, 256)
    E("s_and_b32 s9, s2, 7"); E("s_lshl_b32 s9, s9, 8"); E("s_lshr_b32 s10, s2, 3"); E("s_lshl_b32 s10, s10, 3"); E("s_add_u32 s9, s9, s10")
    E("s_lshl_b32 s10, s3, 1"); E("s_add_u32 s9, s9, s10")
    srd(40, 16, 0, 2*MB); srd(44, 34, WS_XN, 2*MB)
    E("s_cmp_lg_u32 s2, 0"); E("s_cbranch_scc1 k0_nz")
    srd(52, 34, 20*MB, 16384)
    for i in range(4): E(f"v_mov_b32 v{40+i}, 0")
    E("v_lshlrev_b32 v5, 6, v0")
    for i in range(4): E(f"buffer_store_dwordx4 v[40:43], v5, s[52:55], 0 offen offset:{16*i}")
    L("k0_nz")
    E("s_lshl_b32 s10, s9, 10"); E("v_lshlrev_b32 v5, 4, v1")
    E("buffer_load_dwordx4 v[16:19], v5, s[40:43], s10 offen"); E("buffer_load_dwordx4 v[20:23], v5, s[40:43], s10 offen offset:1024")
    E("s_lshr_b32 s11, s9, 5"); E("s_lshl_b32 s11, s11, 15"); E("s_and_b32 s12, s9, 31"); E("s_lshl_b32 s12, s12, 4"); E("s_add_u32 s11, s11, s12")
    E("v_lshrrev_b32 v6, 1, v1"); E("v_lshlrev_b32 v6, 10, v6"); E("v_and_b32 v7, 1, v1"); E("v_lshlrev_b32 v7, 9, v7"); E("v_add_u32 v6, v6, v7")
    E("s_mov_b32 s8, 0x3f803f80")
    for q in range(4): E(f"v_mov_b32 v{24+q}, 0")
    if os.environ.get("PF", "1") == "1":
        E("s_lshl_b32 s12, s2, 12"); E("v_lshlrev_b32 v32, 4, v0"); E("v_add_u32 v32, s12, v32"); E("v_add_u32 v33, 0x100000, v32")
        k = 0
        for base, size in ((18, 512*3072),):
            srd(48, base, 0, size)
            E(f"buffer_load_dwordx4 v[{36+4*k}:{39+4*k}], v32, s[48:51], 0 offen"); k += 1
            if size > MB: E(f"buffer_load_dwordx4 v[{36+4*k}:{39+4*k}], v33, s[48:51], 0 offen"); k += 1
        E("s_lshl_b32 s60, s2, 2"); E("s_add_u32 s60, s60, s3")
        E("v_lshrrev_b32 v34, 2, v1"); E("v_and_b32 v35, 3, v1"); E("v_lshlrev_b32 v35, 4, v35")
        E("v_mul_u32_u24 v33, 2752, v34"); E("v_add_u32 v33, v33, v35"); E("v_lshlrev_b32 v34, 10, v34"); E("v_add_u32 v34, v34, v35")
        E(f"s_mov_b32 s50, {512*2752}"); E("s_mov_b32 s51, 0x00020000")
        for t in range(3):
            E(f"s_add_u32 s61, s60, {1024*t}"); E("s_lshr_b32 s62, s61, 6"); E("s_mul_i32 s62, s62, 171"); E("s_lshr_b32 s62, s62, 9")
            E("s_mul_i32 s63, s62, 192"); E("s_sub_u32 s63, s61, s63")
            E("s_and_b32 s64, s63, 31"); E(f"s_mul_i32 s64, s64, {16*2752}")
            E("s_mul_i32 s65, s62, 86"); E("s_and_b32 s65, s65, 0xfffffff0"); E("s_lshl_b32 s65, s65, 1"); E("s_add_u32 s64, s64, s65")
            E("s_lshr_b32 s65, s63, 6"); E("s_lshl_b32 s65, s65, 6"); E("s_add_u32 s64, s64, s65")
            E("s_bitcmp1_b32 s63, 5"); E("s_cselect_b32 s48, s26, s24"); E("s_cselect_b32 s49, s27, s25")
            E(f"buffer_load_dwordx4 v[{44+4*t}:{47+4*t}], v33, s[48:51], s64 offen")
        srd(48, 28, 0, 1376*1024); srd(52, 20, 0, 512*1024)
        for t in (3, 4):
            E(f"s_add_u32 s61, s60, {1024*(t-3)}"); E("s_min_u32 s66, s61, 1407")
            E("s_lshr_b32 s62, s66, 3"); E("s_mul_i32 s62, s62, 187"); E("s_lshr_b32 s62, s62, 11"); E("s_mul_i32 s63, s62, 88"); E("s_sub_u32 s63, s66, s63")
            E("s_lshl_b32 s63, s63, 14"); E("s_lshl_b32 s62, s62, 6"); E("s_add_u32 s64, s63, s62")
            if t == 3:
                E(f"buffer_load_dwordx4 v[{44+4*t}:{47+4*t}], v34, s[48:51], s64 offen")
            else:
                E("s_cmp_lt_u32 s61, 1408"); E("s_cbranch_scc0 k0_w3")
                E(f"buffer_load_dwordx4 v[{44+4*t}:{47+4*t}], v34, s[48:51], s64 offen"); E("s_branch k0_w3e")
                L("k0_w3"); E("s_sub_u32 s61, s61, 1408"); E("s_min_u32 s61, s61, 511")
                E("s_and_b32 s63, s61, 31"); E("s_lshl_b32 s63, s63, 14"); E("s_lshr_b32 s62, s61, 5"); E("s_lshl_b32 s62, s62, 6"); E("s_add_u32 s64, s63, s62")
                E(f"buffer_load_dwordx4 v[{44+4*t}:{47+4*t}], v34, s[52:55], s64 offen")
                L("k0_w3e")
        srd(52, 34, WS_T, 5*MB); E("s_lshl_b32 s60, s60, 10"); E("v_lshlrev_b32 v35, 4, v1")
        ntl = 0
        if os.environ.get("TLB", "0") == "1":
            E("v_lshlrev_b32 v33, 16, v1")
            srd(48, 34, 0, 24*MB)
            for i in range(6):
                E(f"s_mov_b32 s12, {4*MB*i}"); E(f"buffer_load_dword v{100+ntl}, v33, s[48:51], s12 offen"); ntl += 1
            for base, size in ((18, 512*3072), (20, 512*1024), (24, 512*2752), (26, 512*2752), (28, 1376*1024), (30, 2*MB)):
                srd(48, base, 0, size); E(f"buffer_load_dword v{100+ntl}, v33, s[48:51], 0 offen"); ntl += 1
        npf = int(os.environ.get("NPF", "1"))
        if npf:
            E("s_getpc_b64 s[66:67]"); L("k0_pc")
            E("v_lshlrev_b32 v30, 4, v0"); E("s_lshr_b32 s64, s2, 3"); E(f"s_mul_i32 s64, s64, {4096*npf}"); E("v_add_u32 v30, s64, v30")
            E("s_mov_b32 s65, code_end-k0_pc-16")
            for i in range(npf):
                E("v_min_u32 v31, s65, v30"); E(f"global_load_dwordx4 v[{72+4*i}:{75+4*i}], v31, s[66:67]"); E("v_add_u32 v30, 0x1000, v30")
        E(f"s_waitcnt vmcnt({7+npf+ntl})")
    else:
        E("s_waitcnt vmcnt(0)")
    for r in range(2):
        for i in range(4):
            E(f"v_dot2_f32_bf16 v{24+2*r}, v{16+4*r+i}, s8, v{24+2*r}"); E(f"v_dot2_f32_bf16 v{25+2*r}, v{16+4*r+i}, v{16+4*r+i}, v{25+2*r}")
    E("s_nop 3")
    for off in (0x041F, 0x081F, 0x101F, 0x201F, 0x401F):
        for q in range(4): E(f"ds_swizzle_b32 v{28+q}, v{24+q} offset:{off:#x}")
        E("s_waitcnt lgkmcnt(0)")
        for q in range(4): E(f"v_add_f32 v{24+q}, v{24+q}, v{28+q}")
    for q in range(4): E(f"v_mov_b32 v{28+q}, v{24+q}")
    E("s_nop 1")
    for q in range(4): E(f"v_permlane32_swap_b32 v{24+q}, v{28+q}")
    E("s_nop 1")
    for q in range(4): E(f"v_add_f32 v{24+q}, v{24+q}, v{28+q}")
    for r in range(2):
        a, b = 24+2*r, 25+2*r
        E(f"v_mul_f32 v{a}, {f2u(1/512):#x}, v{a}"); E(f"v_mul_f32 v{b}, {f2u(1/512):#x}, v{b}")
        E(f"v_fma_f32 v{b}, -v{a}, v{a}, v{b}"); E(f"v_max_f32 v{b}, 0, v{b}"); E(f"v_add_f32 v{b}, {f2u(1e-5):#x}, v{b}")
        E(f"v_rsq_f32 v{b}, v{b}"); E("s_nop 0"); E(f"v_mul_f32 v{a}, v{a}, v{b}"); E(f"v_sub_f32 v{a}, 0, v{a}")
        for i in range(4):
            x = 16+4*r+i
            E(f"v_lshlrev_b32 v30, 16, v{x}"); E(f"v_and_b32 v31, 0xffff0000, v{x}")
            E(f"v_fma_f32 v30, v30, v{b}, v{a}"); E(f"v_fma_f32 v31, v31, v{b}, v{a}"); E(f"v_cvt_pk_bf16_f32 v{x}, v30, v31")
        if r == 0:
            E("s_waitcnt vmcnt(1)")
            for t in range(5):
                E(f"s_add_u32 s61, s60, {MB*t}"); E(f"buffer_store_dwordx4 v[{44+4*t}:{47+4*t}], v35, s[52:55], s61 offen{KSC}")
        E(f"buffer_store_dwordx4 v[{16+4*r}:{19+4*r}], v6, s[44:47], s11 offen offset:{16*r}{KSC}")
    epilogue_end(n)

SC = " sc1"
def lanes():
    E("v_and_b32 v1, 63, v0"); E("v_and_b32 v3, 31, v0"); E("v_bfe_u32 v4, v0, 5, 1")
WS_CNT = 20*MB
def signal(n, idx):
    E("s_waitcnt vmcnt(0)"); E("s_barrier")
    E("s_cmp_lg_u32 s3, 0"); E(f"s_cbranch_scc1 {n}_sig{idx}")
    E("s_lshl_b32 s4, s9, 1"); E(f"s_add_u32 s4, s4, {idx*4096}")
    E("v_mov_b32 v5, 1"); E("v_mov_b32 v6, s4"); E("s_mov_b64 exec, 1")
    E("buffer_atomic_add v5, v6, s[56:59], 0 offen"); E("s_mov_b64 exec, -1")
    L(f"{n}_sig{idx}")
def wait(n, idx, back=0):
    E("s_cmp_lg_u32 s3, 0"); E(f"s_cbranch_scc1 {n}_wx{idx}")
    E("s_lshl_b32 s4, s9, 1"); E("v_lshlrev_b32 v6, 8, v1"); E("v_sub_u32 v6, s4, v6"); E("v_max_i32 v6, 0, v6"); E(f"v_add_u32 v6, {idx*4096}, v6")
    E("s_mov_b32 s6, 0"); E(f"s_mov_b64 exec, {(1 << (back+1)) - 1}")
    L(f"{n}_w{idx}")
    E("buffer_load_dword v5, v6, s[56:59], 0 offen sc1"); E("s_waitcnt vmcnt(0)")
    E("v_cmp_gt_u32 vcc, 16, v5"); E("s_add_u32 s6, s6, 1"); E("s_nop 0"); E(f"s_cbranch_vccz {n}_wd{idx}")
    E("s_sleep 1"); E("s_cmp_lt_u32 s6, 0x4000"); E(f"s_cbranch_scc1 {n}_w{idx}")
    L(f"{n}_wd{idx}"); E("s_mov_b64 exec, -1")
    L(f"{n}_wx{idx}")
    E("s_waitcnt vmcnt(0)"); E("s_barrier")
def load_xt2(srdreg, nsteps_total, nsteps, base=VX, sc=SC):
    E("s_lshr_b32 s4, s10, 5"); E(f"s_mul_i32 s4, s4, {nsteps_total*1024}")
    E("v_lshlrev_b32 v8, 4, v1"); E("v_add_u32 v8, s4, v8")
    for s in range(nsteps):
        if s % 4 == 0: E(f"s_mov_b32 s4, {1024*s}")
        E(f"buffer_load_dwordx4 v[{base+4*s}:{base+4*s+3}], v8, s[{srdreg}:{srdreg+3}], s4 offen offset:{1024*(s%4)}{sc}")
def issue(groups):
    for g in groups:
        for x in g: E(x)

def mega():
    global VW
    n = "km_block_kernel"; kernels.append((n, 256, 163840)); prologue(n, 256)
    stamp(n); wgmap(2)
    E("s_mov_b32 s61, s11")
    E("s_lshl_b32 s10, s3, 5"); E("s_add_u32 s10, s10, s9")
    srd(56, 34, WS_CNT, 16384)
    E("s_mul_i32 s11, s61, 3")
    srd(40, 34, WS_XN, 2*MB); srd(44, 18, 0, 512*3072); srd(48, 34, 0, 6*MB)
    srd(64, 34, WS_T, 5*MB); E("s_mul_i32 s68, s61, 196608"); E("s_mul_i32 s69, s61, 90112"); E(f"s_add_u32 s69, s69, {3072*1024}"); E("s_lshl_b32 s70, s61, 15"); E(f"s_add_u32 s70, s70, {4480*1024}")
    E("s_lshl_b32 s62, s61, 6")
    E("s_mul_i32 s63, s61, 86"); E("s_and_b32 s63, s63, 0xfffffff0"); E("s_lshl_b32 s63, s63, 1")
    E("v_lshlrev_b32 v2, 4, v0")
    slotof = {0: 3, 1: 4, 2: 1, 3: 2, 4: 0, 5: 3}
    def tl(sc, add, lds, nj): return [[x.replace(" v7,", " v2,") for x in g] for g in dma_list(64, sc, add, lds, nj, 64)]
    def regl(r): return tl(68, r*32768, slotof[r]*32768, 8)
    p1pf = regl(0) + regl(1)
    dma_setup_w(3072)
    E("s_lshl_b32 s60, s11, 6")
    allw = dma_list_w(44, 60, 0, 0, 512, 3072)
    E("s_lshr_b32 s4, s10, 5"); E(f"s_mul_i32 s4, s4, {32*1024}"); E("v_lshlrev_b32 v8, 4, v1"); E("v_add_u32 v8, s4, v8")
    def chunk(c):
        r = list(allw[6*c:6*c+6])
        for s_ in range(8*c, 8*c+8):
            r.append([f"s_mov_b32 s4, {1024*(s_ & ~3)}", f"buffer_load_dwordx4 v[{VX+4*s_}:{VX+4*s_+3}], v8, s[40:43], s4 offen offset:{1024*(s_%4)}"])
        return r
    issue(chunk(0) + chunk(1))
    E("v_add_u32 v9, s10, v3")
    w_addr(False, 10, 192); E("v_add_u32 v13, 0xc000, v10")
    E("v_lshlrev_b32 v11, 5, v9"); E("v_lshlrev_b32 v5, 4, v4"); E("v_add_u32 v11, v11, v5")
    E("v_bfe_u32 v12, v0, 4, 1"); E("v_lshlrev_b32 v12, 16, v12"); E("v_lshlrev_b32 v5, 8, v4"); E("v_add_u32 v12, v12, v5")
    E("v_and_b32 v5, 15, v0"); E("v_lshlrev_b32 v5, 4, v5"); E("v_add_u32 v12, v12, v5")
    E("s_lshl_b32 s13, s10, 5"); E("v_add_u32 v12, s13, v12")
    ACCJ = (176, 192, 208); PT = 224
    stamp(n, "p1")
    E("s_cmp_eq_u32 s61, 10"); E(f"s_cbranch_scc1 {n}_p1b"); E("s_cmp_gt_u32 s61, 10"); E(f"s_cbranch_scc1 {n}_p1c")
    for vn, sws in (("a", (False, False, False)), ("b", (False, False, True)), ("c", (True, True, True))):
        L(f"{n}_p1{vn}")
        for c in range(4):
            E(f"s_waitcnt vmcnt({14 if c < 3 else 0})"); E("s_barrier")
            if vn == "a": stamp(n, "p1")
            items = []
            for s in range(8*c, 8*c+8):
                for j in range(3):
                    items.append(((10, 3072*s + 64*j) if s < 16 else (13, 3072*(s-16) + 64*j)) + (VX+4*s, ACCJ[j]))
            nxt = chunk(c + 2) if c < 2 else []
            for i in mfma_items(items, False, lambda i: sws[i % 3], lambda i: c == 0 and i < 3, 192):
                if nxt and i % 3 != 2: issue([nxt.pop(0)])
            assert not nxt
        E("s_nop 15")
        if vn == "a": stamp(n, "p1")
        for j, sw in enumerate(sws):
            E(f"s_add_u32 s12, s11, {j}"); pack(ACCJ[j], PT + 8*j); T_ = PT + 8*j
            if not sw:
                E("s_lshr_b32 s14, s12, 4"); E("s_lshl_b32 s14, s14, 21"); E("s_and_b32 s15, s12, 15"); E("s_lshl_b32 s15, s15, 17")
                E("s_add_u32 s14, s14, s15"); E("s_add_u32 s15, s14, 65536")
                E(f"buffer_store_dwordx4 v[{T_}:{T_+3}], v11, s[48:51], s14 offen{SC}")
                E(f"buffer_store_dwordx4 v[{T_+4}:{T_+7}], v11, s[48:51], s15 offen{SC}")
            else:
                E("s_sub_u32 s14, s12, 32"); E("s_lshl_b32 s14, s14, 17"); E(f"s_add_u32 s14, s14, {WS_V}")
                E(f"buffer_store_dwordx4 v[{T_}:{T_+3}], v12, s[48:51], s14 offen{SC}")
                E(f"buffer_store_dwordx4 v[{T_+4}:{T_+7}], v12, s[48:51], s14 offen offset:512{SC}")
        if vn != "c": E(f"s_branch {n}_p1e")
    L(f"{n}_p1e")
    stamp(n, "p1")
    stamp(n); signal(n, 0); stamp(n)
    issue(tl(70, 0, 0, 8))
    E("v_mov_b32 v5, 0x3f803f80")
    for r in range(144): E(f"v_accvgpr_write_b32 a{80+r}, v5")
    wait(n, 0, 2); stamp(n); stamp(n, "p2")
    S, O, PK = 96, 240, 16
    srd(40, 34, WS_Q, 2*MB); srd(44, 34, WS_K - 8192, 2*MB + 8192); srd(48, 34, WS_V - 8192, 2*MB + 8192); srd(52, 34, WS_O, 2*MB)
    E("v_lshlrev_b32 v5, 2, v4"); E("v_sub_u32 v11, v3, v5")
    E("s_sub_i32 s15, 256, s10"); E("s_max_i32 s15, s15, 0")
    E("v_lshlrev_b32 v6, 4, v4")
    E("s_lshl_b32 s11, s61, 1")
    E("s_lshl_b32 s12, s11, 11"); E("s_add_u32 s12, s12, s10")
    E("v_add_u32 v5, s12, v3"); E("v_lshlrev_b32 v5, 5, v5"); E("v_add_u32 v8, v5, v6"); E("v_add_u32 v13, 0x10000, v8")
    E("s_lshl_b32 s14, s15, 5")
    E("v_and_b32 v5, 15, v0"); E("v_lshlrev_b32 v5, 4, v5"); E("v_lshlrev_b32 v9, 8, v4"); E("v_add_u32 v5, v5, v9")
    E("s_lshl_b32 s13, s11, 16"); E("s_lshl_b32 s12, s10, 5"); E("s_add_u32 s13, s13, s12"); E("v_add_u32 v9, s13, v5"); E("v_add_u32 v14, 0x10000, v9")
    E("s_mov_b32 s66x, 0") if False else None
    E("s_mov_b32 s72, 0x0000ffff"); E("s_mov_b32 s73, 0x0000ffff")
    def qk(hh):
        va = (8, 13)[hh]
        r = [[f"buffer_load_dwordx4 a[{72+4*hh}:{75+4*hh}], v{va}, s[40:43], 0 offen{SC}"]]
        for kb in range(9):
            r.append([f"s_max_u32 s12, s14, {kb*1024}", f"buffer_load_dwordx4 a[{36*hh+4*kb}:{36*hh+4*kb+3}], v{va}, s[44:47], s12 offen{SC}"])
        return r
    def vv(hh):
        return [["s_mov_b64 exec, s[72:73]", f"s_max_u32 s12, s14, {512*t}",
                 f"buffer_load_dwordx4 a[{80+72*hh+4*t}:{80+72*hh+4*t+3}], v{(9,14)[hh]}, s[48:51], s12 offen{SC}", "s_mov_b64 exec, -1"] for t in range(18)]
    issue(qk(0)); issue(vv(0))
    E("s_add_u32 s13, s10, s11"); E("s_lshl_b32 s13, s13, 10"); E("v_lshlrev_b32 v5, 4, v1"); E("v_add_u32 v10, s13, v5")
    stamp(n, "p2")
    for hh in range(2):
        pf = (qk(1) + vv(1)) if hh == 0 else (regl(1) + regl(2) + regl(3))
        npf0 = len(pf)
        E(f"v_mov_b32 v12, {f2u(-1e30):#x}")
        for kb in range(9):
            E(f"s_waitcnt vmcnt({(26-kb) if hh == 0 else (8 + 1 + 18 + 8 - kb)})")
            E(f"v_mfma_f32_32x32x16_bf16 v[{S+16*kb}:{S+16*kb+15}], a[{36*hh+4*kb}:{36*hh+4*kb+3}], a[{72+4*hh}:{75+4*hh}], 0")
        E("s_nop 7"); E("s_nop 3"); stamp(n, "p2")
        for kb in range(8):
            E(f"s_cmp_ge_u32 s10, {256-32*kb}"); E(f"s_cbranch_scc1 {n}_ok{hh}_{kb}")
            for i in range(16): E(f"v_mov_b32 v{S+16*kb+i}, v12")
            L(f"{n}_ok{hh}_{kb}")
        for i in range(16):
            c = 8*(i >> 2) + (i & 3)
            E(f"v_cmp_le_i32 vcc, {c}, v11"); E("s_nop 1")
            E(f"v_cndmask_b32 v{S+128+i}, v12, v{S+128+i}, vcc"); E(f"v_cndmask_b32 v{S+i}, v{S+i}, v12, vcc")
            if i % 3 == 2 and pf: issue([pf.pop(0)])
        for c in range(4): E(f"v_max_f32 v{PK+c}, v{S+c}, v{S+4+c}")
        for r in range(8, 144, 8):
            for c in range(4): E(f"v_max3_f32 v{PK+c}, v{PK+c}, v{S+r+c}, v{S+r+4+c}")
            if r % 24 == 0 and pf: issue([pf.pop(0)])
        E(f"v_max_f32 v{PK}, v{PK}, v{PK+1}"); E(f"v_max_f32 v{PK+2}, v{PK+2}, v{PK+3}"); E(f"v_max_f32 v12, v{PK}, v{PK+2}"); E("v_mov_b32 v15, v12")
        E("s_nop 1"); E("v_permlane32_swap_b32 v12, v15"); E("s_nop 1"); E("v_max_f32 v12, v12, v15")
        E(f"s_mov_b32 s13, {f2u(0.25*LOG2E):#x}"); E("v_mul_f32 v12, s13, v12"); stamp(n, "p2")
        for r in range(0, 144, 4):
            for c in range(4): E(f"v_fma_f32 v{S+r+c}, v{S+r+c}, s13, -v12")
            for c in range(4): E(f"v_exp_f32 v{S+r+c}, v{S+r+c}")
            if r >= 4:
                p = r - 4; d = S + 16*(p//16) + (p % 16)//2
                E(f"v_cvt_pk_bf16_f32 v{d}, v{S+p}, v{S+p+1}"); E(f"v_cvt_pk_bf16_f32 v{d+1}, v{S+p+2}, v{S+p+3}")
            if r % 8 == 0 and pf: issue([pf.pop(0)])
        p = 140; d = S + 16*(p//16) + (p % 16)//2
        E("s_nop 0"); E(f"v_cvt_pk_bf16_f32 v{d}, v{S+p}, v{S+p+1}"); E(f"v_cvt_pk_bf16_f32 v{d+1}, v{S+p+2}, v{S+p+3}")
        npf_left = len(pf)
        stamp(n, "p2")
        assert npf_left == 0
        E(f"s_waitcnt vmcnt({npf0 if hh == 0 else (9+npf0)})"); stamp(n, "p2")
        if hh == 0: pf = regl(0)
        for t in range(18):
            if pf and t % 2 == 1: issue([pf.pop(0)])
            bb = S + 16*(t//2) + 4*(t % 2)
            E(f"v_mfma_f32_32x32x16_bf16 v[{O}:{O+15}], a[{80+72*hh+4*t}:{80+72*hh+4*t+3}], v[{bb}:{bb+3}], {'0' if t == 0 else f'v[{O}:{O+15}]'}")
        E("s_nop 15"); E(f"v_rcp_f32 v12, v{O+8}"); E("s_nop 0")
        for i in range(8): E(f"v_mul_f32 v{O+i}, v{O+i}, v12")
        for i in range(4): E(f"v_cvt_pk_bf16_f32 v{PK+i}, v{O+2*i}, v{O+2*i+1}")
        assert not pf
        E(f"buffer_store_dwordx4 v[{PK}:{PK+3}], v10, s[52:55], 0 offen offset:{1024*hh}{SC}")
        E("s_nop 1")
    stamp(n); signal(n, 1); stamp(n)
    srd(40, 34, WS_O, 2*MB); srd(48, 34, WS_H, 2*MB); srd(52, 16, 0, 2*MB)
    E("v_add_u32 v9, s10, v3")
    w_addr(True, 10)
    E("v_lshlrev_b32 v12, 10, v9"); E("v_lshlrev_b32 v5, 3, v4"); E("v_add_u32 v12, v12, v5"); E("s_lshl_b32 s13, s61, 11")
    for q in range(4): E(f"buffer_load_dwordx2 v[{VT+8+2*q}:{VT+9+2*q}], v12, s[52:55], s62 offen offset:{16*q}")
    wait(n, 1); stamp(n)
    load_xt2(40, 32, 32)
    E("s_waitcnt vmcnt(31)")
    items = [(10, 1024*s, VX+4*s, ACC0) for s in range(32)]
    for i in mfma_items(items, True, lambda i: False, lambda i: i == 0):
        if i + 1 < 32: E(f"s_waitcnt vmcnt({30-i})")
    E("s_nop 15")
    for i in range(8):
        E(f"v_lshlrev_b32 v5, 16, v{VT+8+i}"); E(f"v_and_b32 v6, 0xffff0000, v{VT+8+i}")
        E(f"v_add_f32 v{ACC0+2*i}, v{ACC0+2*i}, v5"); E(f"v_add_f32 v{ACC0+2*i+1}, v{ACC0+2*i+1}, v6")
    pack(ACC0, VT)
    E(f"buffer_store_dwordx4 v[{VT}:{VT+3}], v8, s[48:51], s13 offen{SC}")
    E(f"buffer_store_dwordx4 v[{VT+4}:{VT+7}], v8, s[48:51], s13 offen offset:1024{SC}")
    E("s_mov_b32 s8, 0x3f803f80"); srd(44, 34, WS_ST, 262144)
    for q in range(4): E(f"v_mov_b32 v{240+q}, 0")
    for i in range(8):
        E(f"v_dot2_f32_bf16 v{240+(i&1)}, v{VT+i}, s8, v{240+(i&1)}"); E(f"v_dot2_f32_bf16 v{242+(i&1)}, v{VT+i}, v{VT+i}, v{242+(i&1)}")
    E("s_lshl_b32 s14, s9, 7"); E("s_lshl_b32 s15, s61, 10"); E("s_add_u32 s14, s14, s15"); E("s_lshl_b32 s15, s3, 8"); E("s_add_u32 s14, s14, s15")
    E("v_lshlrev_b32 v13, 3, v3"); E("s_nop 1")
    E("v_add_f32 v244, v240, v241"); E("v_add_f32 v245, v242, v243"); E("v_mov_b32 v246, v244"); E("v_mov_b32 v247, v245"); E("s_nop 1")
    E("v_permlane32_swap_b32 v244, v246"); E("v_permlane32_swap_b32 v245, v247"); E("s_nop 1")
    E("v_add_f32 v244, v244, v246"); E("v_add_f32 v245, v245, v247")
    E(f"buffer_store_dwordx2 v[244:245], v13, s[44:47], s14 offen{SC}")
    stamp(n); signal(n, 2); stamp(n)
    issue(regl(4))
    wait(n, 2); stamp(n); stamp(n, "p4")
    srd(40, 34, WS_H, 2*MB); srd(52, 34, WS_HH, 2048*2752)
    E("s_lshl_b32 s14, s9, 7"); E("s_lshl_b32 s15, s3, 8"); E("s_add_u32 s14, s14, s15")
    E("v_lshlrev_b32 v13, 3, v3"); E("v_lshlrev_b32 v5, 13, v4"); E("v_add_u32 v13, v13, v5")
    for k in range(8):
        if k % 4 == 0: E(f"s_add_u32 s15, s14, {1024*k}")
        E(f"buffer_load_dwordx2 v[{240+2*k}:{241+2*k}], v13, s[44:47], s15 offen offset:{1024*(k%4)}{SC}")
    E("s_lshr_b32 s4, s10, 5"); E(f"s_mul_i32 s4, s4, {32*1024}"); E("v_lshlrev_b32 v8, 4, v1"); E("v_add_u32 v8, s4, v8")
    def xld(s_): return [f"s_mov_b32 s4, {1024*s_}", f"buffer_load_dwordx4 v[{VX+4*s_}:{VX+4*s_+3}], v8, s[40:43], s4 offen{SC}"]
    for s_ in range(16): issue([xld(s_)])
    E("s_lshr_b32 s4, s10, 5"); E(f"s_mul_i32 s4, s4, {86*1024}"); E("v_lshlrev_b32 v11, 4, v1"); E("v_add_u32 v11, s4, v11")
    stamp(n, "p4")
    E("s_waitcnt vmcnt(16)")
    for w in (4, 2, 1):
        for k in range(w):
            E(f"v_add_f32 v{240+2*k}, v{240+2*k}, v{240+2*(k+w)}"); E(f"v_add_f32 v{241+2*k}, v{241+2*k}, v{241+2*(k+w)}")
    E("v_mov_b32 v242, v240"); E("v_mov_b32 v243, v241"); E("s_nop 1")
    E("v_permlane32_swap_b32 v240, v242"); E("v_permlane32_swap_b32 v241, v243"); E("s_nop 1")
    E("v_add_f32 v240, v240, v242"); E("v_add_f32 v241, v241, v243")
    E(f"v_mul_f32 v240, {f2u(1/512):#x}, v240"); E(f"v_mul_f32 v241, {f2u(1/512):#x}, v241")
    E("v_fma_f32 v241, -v240, v240, v241"); E("v_max_f32 v241, 0, v241"); E(f"v_add_f32 v241, {f2u(1e-5):#x}, v241")
    E("v_rsq_f32 v12, v241"); E("s_nop 0"); E("v_mul_f32 v240, v240, v12"); E("v_sub_f32 v15, 0, v240")
    E(f"s_mov_b32 s13, {f2u(-LOG2E):#x}")
    stamp(n, "p4")
    E("s_waitcnt vmcnt(14)")
    stamp(n, "p4")
    def norm(s):
        r = []
        for q in range(4):
            x = VX + 4*s + q; a_, b_ = 240 + 2*q, 241 + 2*q
            r += [f"v_lshlrev_b32 v{a_}, 16, v{x}", f"v_and_b32 v{b_}, s14, v{x}"]
        for q in range(4):
            a_, b_ = 240 + 2*q, 241 + 2*q
            r += [f"v_fma_f32 v{a_}, v{a_}, v12, v15", f"v_fma_f32 v{b_}, v{b_}, v12, v15"]
        for q in range(4):
            r += [f"v_cvt_pk_bf16_f32 v{VX+4*s+q}, v{240+2*q}, v{241+2*q}"]
        return r
    def epi(j, G, U):
        r = []
        for i in range(16): r.append(f"v_mul_f32 v{G+i}, s13, v{G+i}")
        for i in range(16): r.append(f"v_exp_f32 v{G+i}, v{G+i}")
        for i in range(16): r.append(f"v_add_f32 v{G+i}, 1.0, v{G+i}")
        for i in range(16): r.append(f"v_rcp_f32 v{G+i}, v{G+i}")
        for i in range(16): r.append(f"v_mul_f32 v{G+i}, v{G+i}, v{U+i}")
        for i in range(8): r.append(f"v_cvt_pk_bf16_f32 v{248+i}, v{G+2*i}, v{G+2*i+1}")
        r += [f"s_add_u32 s12, s63, {64*j}", "s_lshl_b32 s12, s12, 5",
              f"buffer_store_dwordx4 v[248:251], v11, s[52:55], s12 offen{SC}",
              f"buffer_store_dwordx4 v[252:255], v11, s[52:55], s12 offen offset:1024{SC}"]
        return r
    E("s_mov_b32 s14, 0xffff0000")
    for x in norm(0) + norm(1): E(x)
    fill = []
    w5 = tl(69, 0, 32768, 16) + tl(69, 65536, 131072, 6)
    for j in range(3):
        G, U = (176, 192) if j % 2 == 0 else (208, 224)
        sg, su = slotof[2*j]*32768, slotof[2*j+1]*32768
        E(f"v_add_u32 v13, {sg}, v10"); E(f"v_add_u32 v14, {su}, v10")
        items = []
        for s in range(32): items += [(13, 1024*s, VX+4*s, G), (14, 1024*s, VX+4*s, U)]
        for i in mfma_items(items, True, lambda i: False, lambda i: i < 2):
            if j == 0 and i//2 + 2 < 32:
                s_ = i//2
                if i % 2 == 0:
                    if s_ + 16 < 32: issue([xld(s_ + 16)])
                    E(f"s_waitcnt vmcnt({min(s_ + 16, 31) - (s_ + 2)})")
                for x in norm(s_ + 2)[10*(i % 2):10*(i % 2)+10]: E(x)
            if j > 0 and i >= 4:
                for _ in range(2):
                    if fill: E(fill.pop(0))
            if j == 2 and i >= 2 and i % 2 == 0 and w5: issue([w5.pop(0)])
        assert not fill
        stamp(n, "p4")
        if j == 0: E("s_barrier"); issue(regl(5))
        if j == 1: E("s_waitcnt vmcnt(2)"); E("s_barrier")
        fill = epi(j, G, U)
    E("s_nop 15")
    for x in fill: E(x)
    stamp(n); stamp(n, "p4"); signal(n, 3); stamp(n); stamp(n, "p4")
    NX = 44; X = 56; oldVW = VW; VW = 16; A = 232; T = 48
    assert not w5
    wait(n, 3); stamp(n)
    srd(40, 34, WS_HH, 2048*2752); srd(48, 34, WS_H, 2*MB); srd(52, 30, 0, 2*MB)
    load_xt2(40, 86, NX, X)
    E("v_add_u32 v13, 0x8000, v10"); E("v_add_u32 v14, 0x20000, v10"); E("v_add_u32 v9, s10, v3")
    E("v_lshlrev_b32 v12, 10, v9"); E("v_lshlrev_b32 v5, 3, v4"); E("v_add_u32 v12, v12, v5")
    E("s_lshl_b32 s13, s10, 10"); E("s_lshl_b32 s14, s61, 11"); E("s_add_u32 s13, s13, s14"); E("v_lshlrev_b32 v11, 4, v1")
    E(f"buffer_load_dwordx4 v[248:251], v11, s[48:51], s13 offen{SC}"); E(f"buffer_load_dwordx4 v[252:255], v11, s[48:51], s13 offen offset:1024{SC}")
    E("s_waitcnt vmcnt(45)")
    items = [((13, 1024*s) if s < 64 else (14, 1024*(s-64))) + (X+4*(s % NX), A) for s in range(86)]
    for i in mfma_items(items, True, lambda i: False, lambda i: i == 0):
        if i + NX < 86:
            s = i + NX; E(f"s_mov_b32 s4, {1024*s}"); E(f"buffer_load_dwordx4 v[{X+4*i}:{X+4*i+3}], v8, s[40:43], s4 offen{SC}")
        if i + 1 < 86: E(f"s_waitcnt vmcnt({(45 if i + 1 <= 42 else 44) if i + 1 < NX else 85-(i+1)})")
    VW = oldVW
    E("s_nop 15")
    for i in range(8):
        E(f"v_lshlrev_b32 v5, 16, v{248+i}"); E(f"v_and_b32 v6, 0xffff0000, v{248+i}")
        E(f"v_add_f32 v{A+2*i}, v{A+2*i}, v5"); E(f"v_add_f32 v{A+2*i+1}, v{A+2*i+1}, v6")
    pack(A, T)
    for q in range(4): E(f"buffer_store_dwordx2 v[{T+2*q}:{T+2*q+1}], v12, s[52:55], s62 offen offset:{16*q}")
    epilogue_end(n)

k0(); mega(); L("code_end")
hdr = open("cdna_kernels/" + NAME + ".s.ref").read().split("\n")
head = [l for l in hdr if l.startswith(";") and "@launch" not in l and "Override" not in l and "grid=ceil" not in l]
import os
dup = int(os.environ.get("DUP", "-1"))
ll = []
for idx, (k, g, l) in enumerate(kernels):
    ll += [f"; @launch kernel={k} grid=({g},1,1) block=(256,1,1) lds={l}"] * (5 if idx == dup else 1)
if dup == 99: ll = ll + ll
if STAMPK:
    ll = ll + [x for x in ll if STAMPK in x]
txt = head + ll
txt += ['.amdgcn_target "amdgcn-amd-amdhsa--gfx950"', ".text"] + out + ['.section .rodata,"a"']
for k, g, l in kernels:
    txt += [".p2align 6", f".amdhsa_kernel {k}", f"  .amdhsa_next_free_vgpr {512 if k.startswith('km') else 256}", "  .amdhsa_next_free_sgpr 102", "  .amdhsa_accum_offset 256",
            "  .amdhsa_group_segment_fixed_size 0", "  .amdhsa_kernarg_size 80", "  .amdhsa_user_sgpr_count 2",
            "  .amdhsa_user_sgpr_kernarg_segment_ptr 1", "  .amdhsa_system_sgpr_workgroup_id_x 1", ".end_amdhsa_kernel"]
open(os.environ.get("OUT", "cdna_kernels/" + NAME + ".s"), "w").write("\n".join(txt) + "\n")
```
